```python
import torch

def _softmax(x, axis=-1):
    return torch.softmax(x, dim=axis)
def _gelu(x):
    return torch.nn.functional.gelu(x, approximate="tanh")
def _silu(x):
    return torch.nn.functional.silu(x)
def _sigmoid(x):
    return torch.sigmoid(x)
def _layernorm(x, axis=-1, eps=1e-5):
    m = x.mean(dim=axis, keepdim=True)
    v = x.var(dim=axis, keepdim=True, unbiased=False)
    return (x - m) / torch.sqrt(v + eps)
def _scatter_add(tgt, idx, src, axis=0):
    return tgt.clone().index_add_(axis, idx, src)
def _segment_sum(src, seg, n):
    out = torch.zeros((n,) + src.shape[1:], dtype=src.dtype)
    return out.index_add_(0, seg, src)
def _pad(x, pw):
    flat = tuple(v for pair in reversed(pw) for v in pair)
    return torch.nn.functional.pad(x, flat)

kernel_name = 'concat_heads__spectral_gfnet__ssm_conv_h3__prompt'

def setup_inputs():

    _w = (lambda a: (lambda t: t.to(torch.bfloat16) if t.is_floating_point() else t)(torch.as_tensor(a)))
    def _A_setup():
        B, S, D = 1, 2048, 640
        Df = D // 2 + 1
        return {
            "x": _w((lambda *s: torch.randn(*s, dtype=torch.bfloat16) * 0.05)(B, S, D)),
            "w_r": _w((lambda *s: torch.randn(*s, dtype=torch.bfloat16) * 0.05)(S, Df) * 0.02),
            "w_i": _w((lambda *s: torch.randn(*s, dtype=torch.bfloat16) * 0.05)(S, Df) * 0.02),
        }
    _A_in = _A_setup()

    def _B_setup():
        B, S, D = 1, 2048, 640
        ks = 4
        return {
            "q": _w((lambda *s: torch.randn(*s, dtype=torch.bfloat16) * 0.05)(B, S, D)),
            "k": _w((lambda *s: torch.randn(*s, dtype=torch.bfloat16) * 0.1)(B, S, D)),
            "v": _w((lambda *s: torch.randn(*s, dtype=torch.bfloat16) * 0.1)(B, S, D)),
            "shift_k": _w((lambda *s: torch.randn(*s, dtype=torch.bfloat16) * 0.1)(D, ks) * 0.5),
            "ssm_k": _w((lambda *s: torch.randn(*s, dtype=torch.bfloat16) * 0.1)(D, S) * (1.0 / S ** 0.5)),
            "ssm_D": _w((lambda *s: torch.randn(*s, dtype=torch.bfloat16) * 0.1)(D)),
        }
    _B_in = _B_setup()

    return {
        "A_x": _A_in["x"],
        "A_w_r": _A_in["w_r"],
        "A_w_i": _A_in["w_i"],
        "B_q": _B_in["q"],
        "B_k": _B_in["k"],
        "B_v": _B_in["v"],
        "B_shift_k": _B_in["shift_k"],
        "B_ssm_k": _B_in["ssm_k"],
        "B_ssm_D": _B_in["ssm_D"],
    }

def reference(A_x, A_w_r, A_w_i, B_q, B_k, B_v, B_shift_k, B_ssm_k, B_ssm_D):
    def _A_ref(x, w_r, w_i):
        B, S, D = x.shape
        X = (lambda x, axes=(-2,-1): torch.fft.rfft2(x.float(), dim=axes))(x, axes=(-2, -1))
        W = w_r + 1j * w_i
        X = X * W
        y = (lambda x, s, axes=(-2,-1): torch.fft.irfft2(x, s=s, dim=axes).to(torch.bfloat16))(X, (S, D), axes=(-2, -1))
        return y

    def _B_ref(q, k, v, shift_k, ssm_k, ssm_D):
        B, S, D = q.shape
        ks = shift_k.shape[-1]
        k_pad = _pad(k, ((0, 0), (ks - 1, 0), (0, 0)))
        k_shift = torch.zeros_like(k)
        for t in range(ks):
            k_shift = k_shift + k_pad[:, t:t + S, :] * shift_k[:, ks - 1 - t][None, None, :]
        kv = k_shift * v
        L = 2 * S
        kv_pad = _pad(kv, ((0, 0), (0, S), (0, 0)))
        kf_pad = _pad(ssm_k, ((0, 0), (0, S)))
        kv_f = (lambda x, axes=(-2,-1): torch.fft.rfft2(x.float(), dim=axes))(kv_pad[:, None, :, :], axes=(1, 2))
        kf_f = (lambda x, axes=(-2,-1): torch.fft.rfft2(x.float(), dim=axes))(kf_pad[:, None, :], axes=(1, 2))
        kf_f = (lambda x, *d: x.permute(*d))(kf_f, 1, 2, 0)
        y_f = kv_f * kf_f[None, :, :, :]
        y = (lambda x, s, axes=(-2,-1): torch.fft.irfft2(x, s=s, dim=axes).to(torch.bfloat16))(y_f, (1, L), axes=(1, 2))[:, 0, :S, :]
        y = y + kv * ssm_D[None, None, :]
        return q * y

    a = _A_ref(A_x, A_w_r, A_w_i)
    b = _B_ref(B_q, B_k, B_v, B_shift_k, B_ssm_k, B_ssm_D)
    return torch.concatenate([a, b], axis=-1)
```

```python
import re

REG_RE = re.compile(r'^(-|\|)?(?:abs\()?([vsa])(?:(\d+)|\[(\d+):(\d+)\])\)?\|?$')

def regs_of(op):
    if not isinstance(op, str): return set()
    op = op.strip()
    if op == 'vcc': return {('s', 106), ('s', 107)}
    if op == 'vcc_lo': return {('s', 106)}
    if op == 'vcc_hi': return {('s', 107)}
    if op == 'exec': return {('s', 126), ('s', 127)}
    if op == 'exec_lo': return {('s', 126)}
    if op == 'exec_hi': return {('s', 127)}
    if op == 'm0': return {('s', 124)}
    m = REG_RE.match(op)
    if not m: return set()
    k = m.group(2)
    if m.group(3) is not None: return {(k, int(m.group(3)))}
    return {(k, i) for i in range(int(m.group(4)), int(m.group(5)) + 1)}

def v(n, cnt=1):
    return f"v{n}" if cnt == 1 else f"v[{n}:{n+cnt-1}]"
def s(n, cnt=1):
    return f"s{n}" if cnt == 1 else f"s[{n}:{n+cnt-1}]"

TRANS = ('v_exp_', 'v_log_', 'v_rcp_', 'v_rsq_', 'v_sqrt_', 'v_sin_', 'v_cos_')
VCC = {('s', 106), ('s', 107)}

def mfma_passes(op):
    if '32x32x16' in op or '32x32x8' in op: return 8
    if '16x16x32' in op or '16x16x16' in op: return 4
    raise ValueError(op)

class Ins:
    __slots__ = ('op', 'args', 'mods', 'kind', 'defs', 'uses', 'srcC', 'srcAB', 'passes', 'ws', 'text', 'wide_data', 'comment')
    def __init__(self, op, args, mods):
        self.op, self.args, self.mods = op, [str(a) for a in args], mods
        self.defs, self.uses, self.srcC, self.srcAB = set(), set(), set(), set()
        self.passes = 0; self.ws = 1; self.wide_data = set()
        a = self.args
        R = lambda xs: set().union(*[regs_of(x) for x in xs]) if xs else set()
        if op.startswith('v_mfma'):
            self.kind = 'mfma'; self.passes = mfma_passes(op)
            self.defs = R(a[:1]); self.srcAB = R(a[1:3]); self.srcC = R(a[3:4]); self.uses = self.srcAB | self.srcC
        elif op.startswith('v_'):
            self.kind = 'trans' if op.startswith(TRANS) else 'valu'
            if op.startswith('v_permlane') and 'swap' in op:
                self.defs = R(a[:2]); self.uses = R(a[:2])
            elif op.startswith(('v_add_co', 'v_sub_co', 'v_subrev_co', 'v_addc_co', 'v_subb_co', 'v_mad_u64')):
                self.defs = R(a[:2]); self.uses = R(a[2:])
            else:
                self.defs = R(a[:1]); self.uses = R(a[1:])
                if op.startswith(('v_fmac', 'v_pk_fmac', 'v_dot2c', 'v_writelane')) or 'mixlo' in op or 'mixhi' in op:
                    self.uses |= self.defs
                if 'dpp' in op or 'row_' in mods or 'quad_perm' in mods: self.uses |= self.defs
        elif op.startswith('ds_'):
            self.kind = 'ds'
            if op.startswith(('ds_read', 'ds_bpermute', 'ds_permute', 'ds_swizzle')) or '_rtn_' in op:
                self.defs = R(a[:1]); self.uses = R(a[1:])
                if 'd16' in op: self.uses |= self.defs
            else:
                self.uses = R(a)
        elif op.startswith(('global_', 'buffer_')):
            self.kind = 'vmem'
            lds = ('_lds_' in op) or (' lds' in ' ' + mods)
            if lds:
                self.uses = R(a) | {('s', 124)}
            elif '_load' in op or ('atomic' in op and 'sc0' in mods):
                self.defs = R(a[:1]); self.uses = R(a[1:])
                if 'd16' in op: self.uses |= self.defs
                if 'atomic' in op and op.startswith('buffer_'): self.uses |= self.defs
            else:
                self.uses = R(a)
                if 'x4' in op or 'x3' in op:
                    self.wide_data = R([a[1] if op.startswith('global_') else a[0]])
        elif op.startswith(('s_load', 's_memtime', 's_memrealtime', 's_buffer_load')):
            self.kind = 'smem'; self.defs = R(a[:1]); self.uses = R(a[1:])
        elif op.startswith('s_'):
            self.kind = 'salu'
            if op == 's_nop': self.ws = int(a[0]) + 1
            elif op.startswith(('s_cmp', 's_cbranch', 's_branch', 's_waitcnt', 's_barrier', 's_sleep', 's_setprio', 's_endpgm', 's_bitcmp', 's_setreg')):
                self.uses = R(a)
            else:
                self.defs = R(a[:1]); self.uses = R(a[1:])
                if 'saveexec' in op: self.defs |= regs_of('exec'); self.uses |= regs_of('exec')
                if op in ('s_addk_i32', 's_mulk_i32'): self.uses |= self.defs
        else:
            raise ValueError(op)
        self.text = op + (' ' + ', '.join(self.args) if self.args else '') + (' ' + mods if mods else '')

class Asm:
    def __init__(self):
        self.lines = []
        self.hist = []
        self.vm = []
        self.lg = []
        self.maxv = 0; self.maxs = 0
        self.nins = 0
        self.snap = {}
        self.dead = False
    def raw(self, t): self.lines.append(t)
    def comment(self, t): self.lines.append('    ; ' + t)
    def label(self, name, keep=False):
        if not keep and not self.dead:
            self.settle()
        self.hist = []
        states = self.snap.pop(name, [])
        if not self.dead: states = states + [(self.vm, self.lg)]
        if len(states) == 1:
            self.vm, self.lg = list(states[0][0]), list(states[0][1])
        else:
            same_v = all(x[0] == states[0][0] for x in states); same_l = all(x[1] == states[0][1] for x in states)
            if states and same_v: self.vm = list(states[0][0])
            else:
                un = set().union(*[d for x in states for d in x[0]]) if any(x[0] for x in states) else None
                self.vm = [un] if un is not None else []
            if states and same_l: self.lg = list(states[0][1])
            else:
                anyl = any(x[1] for x in states)
                un = set().union(*[d[0] for x in states for d in x[1]]) if anyl else None
                self.lg = [(un, any(d[1] for x in states for d in x[1]))] if anyl else []
        self.dead = False
        self.lines.append(name + ':')
    def settle(self, keep_hist=False, minus=0):
        need = 0; dist = minus
        for p in reversed(self.hist):
            if p.kind == 'mfma': need = max(need, {4: 8, 8: 12}[p.passes] - dist)
            elif p.kind in ('valu', 'trans'):
                need = max(need, (5 if any(r[0] == 's' and r[1] != 40 for r in p.defs) else (2 if any(r[0] == 'v' for r in p.defs) else 0)) - dist)
            elif p.wide_data: need = max(need, 2 - dist)
            elif ('s', 124) in p.defs: need = max(need, 1 - dist)
            dist += p.ws
            if dist > 20: break
        if need > 0: self._nop(need)
        if not keep_hist: self.hist = []
    def _nop(self, n):
        while n > 0:
            k = min(n, 16)
            i = Ins('s_nop', [k - 1], ''); self.hist.append(i); self.lines.append('    ' + i.text); self.nins += 1
            n -= k
    def _emit(self, i):
        self.hist.append(i); self.lines.append('    ' + i.text); self.nins += 1
        if len(self.hist) > 64: self.hist = self.hist[-40:]
    def wait(self, vm=None, lgkm=None):
        parts = []
        if vm is not None:
            vm = min(vm, 63); parts.append(f'vmcnt({vm})'); self.vm = self.vm[len(self.vm) - vm:] if vm < len(self.vm) else self.vm
            if vm == 0: self.vm = []
        if lgkm is not None:
            lgkm = min(lgkm, 15); parts.append(f'lgkmcnt({lgkm})'); self.lg = self.lg[len(self.lg) - lgkm:] if lgkm < len(self.lg) else self.lg
            if lgkm == 0: self.lg = []
        self._emit(Ins('s_waitcnt', [' '.join(parts)], ''))
    def forget(self):
        self.vm = []; self.lg = []
    def __call__(self, op, *args, mods=''):
        i = Ins(op, args, mods)
        touch = i.defs | i.uses
        for r in touch:
            if r[0] == 'v': self.maxv = max(self.maxv, r[1])
            elif r[0] == 's' and r[1] < 102: self.maxs = max(self.maxs, r[1])
        wv = wl = None
        for k in range(len(self.vm) - 1, -1, -1):
            if self.vm[k] & touch:
                if i.kind == 'vmem' and 'd16' in op and not (self.vm[k] & (i.uses - i.defs)): continue
                wv = len(self.vm) - 1 - k; break
        for k in range(len(self.lg) - 1, -1, -1):
            if self.lg[k][0] & touch:
                if i.kind == 'ds' and 'd16' in op and not (self.lg[k][0] & (i.uses - i.defs)): continue
                wl = len(self.lg) - 1 - k; break
        if wl is not None and any(x[1] for x in self.lg): wl = 0
        if wv is not None or wl is not None: self.wait(wv, wl)
        need = 0; dist = 0
        isv = i.kind in ('valu', 'trans')
        for p in reversed(self.hist):
            n = 0
            if p.kind in ('valu', 'trans'):
                pv = {r for r in p.defs if r[0] != 's'}; ps = {r for r in p.defs if r[0] == 's'}
                if i.kind == 'mfma' and pv & i.uses: n = max(n, 2)
                if p.kind == 'trans' and i.kind == 'valu' and pv & i.uses: n = max(n, 1)
                if isv and pv & i.uses:
                    if op.startswith(('v_readlane', 'v_readfirstlane')): n = max(n, 1)
                    if op.startswith('v_permlane') or 'row_' in mods or 'quad_perm' in mods or 'dpp' in op: n = max(n, 2)
                if ('op_sel' in p.mods and ('mixhi' in p.op or 'mixlo' in p.op or 'sdwa' in p.op)) and isv and pv & touch: n = max(n, 1)
                if ps & i.uses:
                    if isv: n = max(n, 4 if op.startswith(('v_readlane', 'v_writelane', 'v_div_fmas')) else 2)
                    if i.kind == 'vmem': n = max(n, 5)
                    if i.kind == 'mfma': n = max(n, 4)
            elif p.kind == 'mfma':
                big = {4: 8, 8: 12}[p.passes]
                if i.kind == 'mfma':
                    if p.defs & i.srcAB: n = max(n, big)
                    if p.defs & i.srcC:
                        if not (p.defs == i.srcC and p.op == i.op): n = max(n, big - 2)
                    elif p.defs & i.defs and p.passes != i.passes: n = max(n, big - 2)
                elif i.kind in ('valu', 'trans', 'vmem', 'ds'):
                    if p.defs & touch: n = max(n, big)
                    if isv and p.srcC & i.defs: n = max(n, {4: 3, 8: 7}[p.passes])
            elif p.kind == 'vmem':
                if p.wide_data & i.defs: n = max(n, 2)
            elif p.kind == 'salu':
                if ('s', 124) in p.defs and ('s', 124) in i.uses and i.kind in ('vmem', 'ds'): n = max(n, 1)
            need = max(need, n - dist)
            dist += p.ws
            if dist > 20: break
        if need > 0: self._nop(need)
        if op.startswith(('s_cbranch', 's_branch')):
            self.settle(keep_hist=True, minus=1)
            self.snap.setdefault(str(args[0]), []).append((list(self.vm), list(self.lg)))
        self._emit(i)
        if op in ('s_branch', 's_endpgm'): self.dead = True
        if i.kind == 'vmem': self.vm.append(set(i.defs))
        elif i.kind == 'ds': self.lg.append((set(i.defs), False))
        elif i.kind == 'smem': self.lg.append((set(i.defs), True))
        return i
    def text(self): return '\n'.join(self.lines) + '\n'

class RegAlloc:
    def __init__(self, start=0, limit=256):
        self.next = start; self.limit = limit; self.free_list = []
    def alloc(self, n=1, align=None):
        if align is None: align = 1 if n == 1 else 2
        b = (self.next + align - 1) // align * align
        self.next = b + n
        assert self.next <= self.limit, f"out of registers ({self.next} > {self.limit})"
        return b
    def mark(self): return self.next
    def release(self, m): self.next = m

def kernel_desc(name, vgpr, sgpr):
    vg = max(8, (vgpr + 3) // 4 * 4)
    return f""".section .rodata,"a"
.p2align 6
.amdhsa_kernel {name}
  .amdhsa_next_free_vgpr {vg}
  .amdhsa_next_free_sgpr {sgpr}
  .amdhsa_accum_offset {vg}
  .amdhsa_group_segment_fixed_size 0
  .amdhsa_kernarg_size 96
  .amdhsa_user_sgpr_count 2
  .amdhsa_user_sgpr_kernarg_segment_ptr 1
  .amdhsa_system_sgpr_workgroup_id_x 1
.end_amdhsa_kernel
.text
"""
import struct
def f2u(x): return struct.unpack('<I', struct.pack('<f', x))[0]
def fl(x): return f"0x{f2u(x):08x}"
```

```python
from asmlib import *
import math
X_, WR_, WI_, Q_, K_, V_, SK_, H_, D_, OUT_, DBG_, WS_ = [f"s[{16+2*i}:{17+2*i}]" for i in range(12)]
WS_T, WS_W, WS_U, WS_Z, WS_F = 0, 0x300000, 0x600000, 0x900000, 0xC00000
TBLK = 20992
L_CNT = 0
L_H = 256
HSZ = 16912
L_U = L_H + 3*HSZ
USZ = 6768
L_RED = L_U + 3*USZ
L_P1 = L_RED + 3*4096
L_XR = L_P1
L_EI = L_XR + 8*3072
L_KI = L_P1
L_VI = L_KI + 17*1296
P1SZ = max(8*3072 + 8*2640 + 1024, 33*1296)
L_A2 = L_P1 + P1SZ
LDS_TOTAL = L_A2 + 32768
assert LDS_TOTAL <= 163840, LDS_TOTAL
for x in (L_H, L_U, L_RED, L_P1, L_EI, L_VI, L_A2): assert x % 16 == 0
assert L_XR % 256 == 0 or True

_lbl = [0]
def newlabel(p='L'):
    _lbl[0] += 1; return f"{p}{_lbl[0]}"

def prologue(a, name, endlabel):
    a.raw(f".globl {name}\n.p2align 8\n.type {name},@function\n{name}:")
    a('s_cmp_ge_u32', 's2', 256); a('s_cbranch_scc1', endlabel)
    a('s_load_dwordx16', 's[16:31]', 's[0:1]', 0)
    a('s_load_dwordx8', 's[32:39]', 's[0:1]', 64)
    a('v_lshrrev_b32', 'v1', 6, 'v0')
    a('v_and_b32', 'v0', 63, 'v0')
    a('v_readfirstlane_b32', 's3', 'v1')
    a('s_and_b32', 's4', 's2', 7)
    a('s_bfe_u32', 's5', 's2', (1 << 16) | 3)
    a('s_lshr_b32', 's6', 's2', 4)
    a('s_lshl3_add_u32', 's7', 's6', 's4')
    a('v_lshlrev_b32', 'v1', 2, 'v0'); a('v_mov_b32', 'v2', 0)
    a('ds_write_b32', 'v1', 'v2', mods=f'offset:{L_CNT}')
    a.wait(lgkm=0)
    a('s_barrier')

def subbar(a, cid, n, va, vb, vm=False):
    a('v_mov_b32', v(va), L_CNT + 4*cid); a('v_mov_b32', v(vb), 1)
    a.wait(vm=0 if vm else None, lgkm=0)
    a('s_mov_b64', 'exec', 1)
    a('ds_add_rtn_u32', v(vb), v(va), v(vb))
    a('s_mov_b64', 'exec', -1)
    a('v_readfirstlane_b32', 's40', v(vb))
    done = newlabel('Lbd'); loop = newlabel('Lbl')
    a('s_cmp_ge_u32', 's40', n - 1); a('s_cbranch_scc1', done)
    a.label(loop)
    a('ds_read_b32', v(vb), v(va))
    a('v_readfirstlane_b32', 's40', v(vb))
    a('s_cmp_lt_u32', 's40', n); a('s_cbranch_scc1', loop)
    a.label(done)

def arrive(a, cid, va, vb, vm=False):
    a('v_mov_b32', v(va), L_CNT + 4*cid); a('v_mov_b32', v(vb), 1)
    a.wait(vm=0 if vm else None, lgkm=0)
    a('s_mov_b64', 'exec', 1)
    a('ds_add_u32', v(va), v(vb))
    a('s_mov_b64', 'exec', -1)

def await_cnt(a, cid, n, va, vb):
    a('v_mov_b32', v(va), L_CNT + 4*cid)
    loop = newlabel('Lbl')
    a.label(loop)
    a('ds_read_b32', v(vb), v(va))
    a('v_readfirstlane_b32', 's40', v(vb))
    a('s_cmp_lt_u32', 's40', n); a('s_cbranch_scc1', loop)
    a.label(newlabel('Lbd'))

def sincos(a, ang, c, s_):
    a('v_cos_f32', v(c), v(ang)); a('v_sin_f32', v(s_), v(ang))

def k1_regs(a, R, vka):
    t = R.alloc(); u = R.alloc(); out = [R.alloc() for _ in range(3)]
    a('v_mul_u32_u24', v(t), 65, v(vka))
    a('v_mul_u32_u24', v(u), 205, v(t)); a('v_lshrrev_b32', v(u), 14, v(u))
    a('v_mul_u32_u24', v(u), 80, v(u)); a('v_sub_u32', v(t), v(t), v(u))
    for k5 in range(3):
        if k5:
            a('v_add_u32', v(t), 16, v(t)); a('v_subrev_u32', v(u), 80, v(t)); a('v_min_u32', v(t), v(t), v(u))
        a('v_cvt_f32_u32', v(out[k5]), v(t)); a('v_mul_f32', v(out[k5]), fl(1/640), v(out[k5]))
    return out
for _ka in range(16): assert (65*_ka) - ((65*_ka*205) >> 14)*80 == (65*_ka) % 80

def row_offsets(a, R, sbase, pitch_rows):
    o = [R.alloc() for _ in range(3)]; t = R.alloc()
    a('v_lshlrev_b32', v(t), 4, 'v0')
    a('v_add_u32', v(o[0]), sbase, v(t))
    a('v_add_u32', v(o[1]), pitch_rows - 24*16 - 1024, v(o[0]))
    a('v_cmp_gt_u32', 'vcc', 24, 'v0')
    a('v_cndmask_b32', v(o[1]), v(o[1]), v(o[0]), 'vcc')
    a('v_min_u32', v(t), 39*16, v(t))
    a('v_add_u32', v(t), pitch_rows + 40*16 - 2048, v(t))
    a('v_add_u32', v(o[2]), sbase, v(t))
    return o

def d1_addrs(a, R, va, vbase):
    t = R.alloc(); u = R.alloc(); out = [R.alloc() for _ in range(5)]
    a('v_mul_u32_u24', v(t), 5, v(va))
    for e in range(5):
        if e:
            a('v_add_u32', v(t), 16, v(t)); a('v_subrev_u32', v(u), 80, v(t)); a('v_min_u32', v(t), v(t), v(u))
        a('v_lshl_add_u32', v(out[e]), v(t), 4, v(vbase))
    return out

def ei_addrs(a, R, pitch, dup):
    a0 = R.alloc(); a1 = R.alloc(); t = R.alloc(); u = R.alloc()
    a('s_mul_i32', 's8', 's3', pitch); a('s_add_u32', 's8', 's8', L_EI)
    a('v_lshl_add_u32', v(a0), 'v0', 4, 's8')
    a('v_and_b32', v(t), 15, 'v0'); a('v_lshrrev_b32', v(u), 4, 'v0')
    a('v_cmp_gt_u32', 'vcc', 9, v(t))
    if dup:
        a('v_subrev_u32', v(a1), 8, v(t)); a('v_cndmask_b32', v(t), v(a1), v(t), 'vcc')
    a('v_mad_u32_u24', v(t), v(u), 9, v(t))
    a('s_add_u32', 's8', 's8', 2048)
    a('v_lshl_add_u32', v(a1), v(t), 4, 's8')
    if not dup:
        a('v_lshlrev_b32', v(t), 4, 'v0'); a('v_add_u32', v(t), L_EI + 8*2640, v(t))
        a('v_cndmask_b32', v(a1), v(t), v(a1), 'vcc')
    return a0, a1

def role_A1(a, stflags=''):
    R = RegAlloc(1, 168)
    a('s_lshl_b32', 's9', 's3', 7); a('s_add_u32', 's9', 's9', 's7')
    a('s_mul_i32', 's10', 's9', 1280)
    vo = row_offsets(a, R, 's10', 1024*1280)
    a('s_mul_i32', 's11', 's3', 3072); a('s_add_u32', 's11', 's11', L_XR)
    a('s_mov_b32', 'm0', 's11')
    for t in range(3): a('global_load_lds_dwordx4', v(vo[t]), X_, mods=f'offset:{1024*t}')
    va = R.alloc(); vb = R.alloc(); t = R.alloc()
    a('v_lshrrev_b32', v(va), 2, 'v0')
    a('v_bfe_u32', v(vb), 'v0', 1, 1); a('v_mul_u32_u24', v(vb), 1408, v(vb))
    a('v_and_b32', v(t), 1, 'v0'); a('v_lshl_add_u32', v(vb), v(t), 3, v(vb)); a('v_add_u32', v(vb), 's11', v(vb))
    tra = d1_addrs(a, R, va, vb)
    ka = R.alloc(); q = R.alloc(); kaf = R.alloc(); qf = R.alloc(); bf = R.alloc()
    a('v_and_b32', v(ka), 15, 'v0'); a('v_lshrrev_b32', v(q), 4, 'v0')
    a('v_cvt_f32_u32', v(kaf), v(ka)); a('v_cvt_f32_u32', v(qf), v(q))
    a('v_and_b32', v(bf), 1, v(q)); a('v_lshlrev_b32', v(bf), 2, v(bf)); a('v_cvt_f32_u32', v(bf), v(bf))
    SEQ = [1, 2, 4, 1, 3, 4, 0, 0]
    Hs = R.alloc(16); Gs = R.alloc(16)
    ang = [R.alloc() for _ in range(4)]; an2 = [R.alloc() for _ in range(4)]
    cs = [R.alloc() for _ in range(8)]
    a('v_mul_f32', v(t), 0.5, v(kaf)); a('v_mul_f32', v(t), 0.5, v(t))
    a('v_mul_f32', v(ang[0]), v(t), v(qf))
    for al in range(1, 4): a('v_fmamk_f32', v(ang[al]), v(kaf), fl(al/16), v(ang[0]))
    for tt in range(5):
        src = ang
        if tt:
            for al in range(4): a('v_add_f32', v(an2[al]), fl(tt/5), v(ang[al]))
            src = an2
        for al in range(4): sincos(a, src[al], cs[al], cs[4+al])
        for pos in [i for i, x in enumerate(SEQ) if x == tt]:
            for h in range(2):
                a('v_cvt_pk_bf16_f32', v(Hs + 2*pos + h), v(cs[2*h]), v(cs[2*h+1]))
                a('v_cvt_pk_bf16_f32', v(Gs + 2*pos + h), '-' + v(cs[4+2*h]), '-' + v(cs[4+2*h+1]))
    k1 = k1_regs(a, R, ka)
    TC = R.alloc(12); TS = R.alloc(12)
    for k5 in range(3):
        a('v_mul_f32', v(ang[0]), v(k1[k5]), v(bf))
        for r in range(1, 4): a('v_add_f32', v(ang[r]), v(ang[r-1]), v(k1[k5]))
        for r in range(4): sincos(a, ang[r], TC + 4*k5 + r, TS + 4*k5 + r)
    Mre = R.alloc(4); Mim = R.alloc(4)
    u2 = R.alloc(); f1f = R.alloc()
    a('v_and_b32', v(u2), 7, 'v0'); a('v_cvt_f32_u32', v(u2), v(u2)); a('v_mul_f32', v(u2), fl(1/8), v(u2))
    a('v_bfe_u32', v(f1f), 'v0', 3, 1)
    a('v_lshrrev_b32', v(t), 5, 'v0'); a('v_lshl_add_u32', v(t), v(t), 10, 's9')
    a('v_mul_u32_u24', v(t), v(t), v(f1f)); a('v_cvt_f32_u32', v(t), v(t)); a('v_mul_f32', v(t), fl(1/2048), v(t))
    a('v_fma_f32', v(ang[0]), v(u2), v(bf), v(t))
    for r in range(1, 4): a('v_add_f32', v(ang[r]), v(ang[r-1]), v(u2))
    for r in range(4): sincos(a, ang[r], cs[r], cs[4+r])
    for r in range(4):
        a('v_cvt_pk_bf16_f32', v(Mre + r), v(cs[r]), v(cs[4+r]))
        a('v_cvt_pk_bf16_f32', v(Mim + r), '-' + v(cs[4+r]), v(cs[r]))
    ea0, ea1 = ei_addrs(a, R, 2624, dup=False)
    tr2 = R.alloc(); go = R.alloc()
    a('v_bfe_u32', v(tr2), 'v0', 2, 2); a('v_mul_u32_u24', v(tr2), 2624, v(tr2))
    a('v_and_b32', v(t), 3, 'v0'); a('v_lshl_add_u32', v(tr2), v(t), 3, v(tr2))
    a('v_lshl_add_u32', v(tr2), v(q), 5, v(tr2))
    a('s_lshl_b32', 's8', 's3', 7); a('s_add_u32', 's8', 's8', L_EI); a('v_add_u32', v(tr2), 's8', v(tr2))
    a('s_mul_i32', 's8', 's7', TBLK); a('s_lshl_b32', 's12', 's3', 10); a('s_add_u32', 's8', 's8', 's12')
    a('v_lshl_add_u32', v(go), 'v0', 4, 's8')
    Dr = R.alloc(10)
    a.wait(vm=0)
    for e in (0, 1, 2, 3, 4): a('ds_read_b64_tr_b16', v(Dr + 2*((e + 4) % 5), 2), v(tra[e]))
    P0 = R.alloc(8); A1 = R.alloc(24); PK = R.alloc(12)
    a('v_mfma_f32_16x16x16_bf16', v(P0, 4), v(Dr+8, 2), v(Hs+12, 2), 0)
    a('v_mfma_f32_16x16x16_bf16', v(P0+4, 4), v(Dr+8, 2), v(Gs+12, 2), 0)
    PAIR = {1: (0, 4), 2: (1, 3), 0: (6, 6)}
    for k5 in (1, 2, 0):
        for ri, M in enumerate((Hs, Gs)):
            a('v_mfma_f32_16x16x32_bf16', v(A1+8*k5+4*ri, 4), v(Dr, 4), v(M + 2*PAIR[k5][0], 4), v(P0+4*ri, 4))
        for ri, M in enumerate((Hs, Gs)):
            a('v_mfma_f32_16x16x32_bf16', v(A1+8*k5+4*ri, 4), v(Dr+4, 4), v(M + 2*PAIR[k5][1], 4), v(A1+8*k5+4*ri, 4))
    A2 = Hs; assert Gs == Hs + 16
    for k5 in (1, 2, 0):
        for r in range(4):
            re, im, c, s_ = A1+8*k5+r, A1+8*k5+4+r, TC+4*k5+r, TS+4*k5+r
            a('v_mul_f32', v(cs[r]), v(re), v(c)); a('v_mul_f32', v(cs[4+r]), v(im), v(c))
            a('v_fmac_f32', v(cs[r]), v(im), v(s_)); a('v_fma_f32', v(cs[4+r]), '-' + v(re), v(s_), v(cs[4+r]))
            a('v_cvt_pk_bf16_f32', v(PK+4*k5+r), v(cs[r]), v(cs[4+r]))
        a('v_mfma_f32_16x16x32_bf16', v(A2+8*k5, 4), v(Mre, 4), v(PK+4*k5, 4), 0)
        a('v_mfma_f32_16x16x32_bf16', v(A2+8*k5+4, 4), v(Mim, 4), v(PK+4*k5, 4), 0)
    for k5 in (1, 2, 0):
        for r in range(4): a('v_cvt_pk_bf16_f32', v(PK+4*k5+r), v(A2+8*k5+r), v(A2+8*k5+4+r))
        if k5: a('ds_write_b128', v(ea0), v(PK+4*k5, 4), mods=f'offset:{1024*(k5-1)}')
        else: a('ds_write_b128', v(ea1), v(PK, 4))
    subbar(a, 0, 8, cs[0], cs[1])
    O = A1
    for it in range(3):
        if it == 2:
            skip = newlabel('La1s'); a('s_cmp_gt_u32', 's3', 4); a('s_cbranch_scc1', skip)
        a('ds_read_b64_tr_b16', v(O+4*it, 2), v(tr2), mods=f'offset:{1024*it}')
        a('ds_read_b64_tr_b16', v(O+4*it+2, 2), v(tr2), mods=f'offset:{1024*it + 4*2624}')
        if it == 1:
            a('global_store_dwordx4', v(go), v(O, 4), WS_, mods=stflags)
            a('v_add_u32', v(go), 8192, v(go))
            a('global_store_dwordx4', v(go), v(O+4, 4), WS_, mods=stflags)
            a('v_add_u32', v(go), 8192, v(go))
    a('s_cmp_lt_u32', 's3', 4); a('s_cselect_b32', 'exec_hi', -1, 0)
    a('global_store_dwordx4', v(go), v(O+8, 4), WS_, mods=stflags)
    a('s_mov_b64', 'exec', -1)
    a.label(skip)
    return R.next

def srd(a, sd, base_lo, base_hi, nbytes):
    a('s_mov_b32', s(sd), base_lo); a('s_and_b32', s(sd+1), base_hi, 0xffff)
    a('s_mov_b32', s(sd+2), nbytes); a('s_mov_b32', s(sd+3), 0x20000)

def role_W1(a, stflags=''):
    R = RegAlloc(1, 168)
    WB = 2048*321*2
    srd(a, 44, 's18', 's19', WB); srd(a, 48, 's20', 's21', WB)
    a('s_sub_u32', 's9', 's3', 8)
    vo = R.alloc(); t = R.alloc(); u = R.alloc()
    a('v_lshlrev_b32', v(vo), 4, 'v0')
    a('s_mul_i32', 's10', 's7', 1284)
    a('s_mul_i32', 's11', 's9', 2*256*642); a('s_add_u32', 's10', 's10', 's11')
    a('s_mul_i32', 's11', 's9', 2*1296); a('s_add_u32', 's11', 's11', L_A2 + 1296)
    def slot(soff, m0v_s, add):
        for pl, sd in enumerate((44, 48)):
            a('s_add_u32', 'm0', m0v_s, add + pl*11664)
            a('buffer_load_dwordx4', v(vo), s(sd, 4), soff, mods='offen lds')
            a('s_mov_b64', 'exec', 0x1ffff)
            a('buffer_load_dwordx4', v(vo), s(sd, 4), soff, mods='offen offset:1024 lds')
            a('s_mov_b64', 'exec', -1)
    slot('s10', 's11', 0)
    a('s_add_u32', 's10', 's10', 256*642)
    slot('s10', 's11', 1296)
    sk = newlabel('Lw1s')
    a('s_cmp_lg_u32', 's7', 127); a('s_cbranch_scc1', sk)
    a('s_cmp_lg_u32', 's9', 3); a('s_cbranch_scc1', sk)
    a('s_mov_b32', 's11', L_A2)
    slot('s10', 's11', 0)
    a.label(sk)
    k0 = R.alloc(); vc = R.alloc(); go = R.alloc(); go2 = R.alloc()
    a('v_lshrrev_b32', v(t), 3, 'v0')
    a('v_mul_u32_u24', v(k0), 65, v(t))
    a('v_mul_u32_u24', v(u), 205, v(k0)); a('v_lshrrev_b32', v(u), 14, v(u))
    a('v_mul_u32_u24', v(u), 80, v(u)); a('v_sub_u32', v(k0), v(k0), v(u))
    a('s_and_b32', 's12', 's9', 1)
    a('s_lshr_b32', 's13', 's9', 1)
    a('s_cmp_eq_u32', 's12', 0)
    a('s_cselect_b32', 's14', 2, -2)
    a('s_cselect_b32', 's15', 0, 640)
    a('s_mul_i32', 's8', 's13', 642); a('s_add_u32', 's15', 's15', 's8')
    a('s_add_u32', 's15', 's15', L_A2 + 1296)
    a('s_cmp_eq_u32', 's9', 3); a('s_cselect_b32', 's8', 1, 0)
    a('s_add_u32', 's8', 's8', 's7')
    a('s_cmp_eq_u32', 's8', 128); a('s_cselect_b32', 's41', 1296, 0); a('s_sub_u32', 's15', 's15', 's41')
    a('s_and_b32', 's8', 's8', 127)
    a('v_bfe_u32', v(t), 'v0', 1, 2); a('v_mul_u32_u24', v(t), 80, v(t))
    a('v_and_b32', v(u), 1, 'v0'); a('v_mul_u32_u24', v(u), 11664, v(u)); a('v_add_u32', v(u), 's15', v(u))
    a('v_mad_i32_i24', v(vc), v(t), 's14', v(u))
    a('s_mul_i32', 's8', 's8', TBLK); a('s_add_u32', 's8', 's8', WS_W)
    a('s_lshl_b32', 's41', 's9', 11); a('s_add_u32', 's41', 's41', 's8')
    a('v_add_u32', v(go), 's41', v(vo))
    a('s_mul_i32', 's41', 's9', 9*128); a('s_add_u32', 's41', 's41', 's8'); a('s_add_u32', 's41', 's41', 128*128)
    a('v_add_u32', v(go2), 's41', v(vo))
    ads = [R.alloc() for _ in range(6)]
    for it, C in enumerate((16, 56, 32, 72, 0, 40)):
        if C:
            a('v_add_u32', v(t), C, v(k0)); a('v_subrev_u32', v(u), 80, v(t)); a('v_min_u32', v(t), v(t), v(u))
            a('v_mad_i32_i24', v(ads[it]), v(t), 's14', v(vc))
        else:
            a('v_mad_i32_i24', v(ads[it]), v(k0), 's14', v(vc))
    O = R.alloc(24); Hh = R.alloc(24)
    subbar(a, 1, 4, t, u, vm=True)
    def comb(it):
        for k in range(4): a('v_lshl_or_b32', v(O+4*it+k), v(Hh+4*it+k), 16, v(O+4*it+k))
    for it in range(6):
        for i in range(8):
            a('ds_read_u16', v((Hh if i & 1 else O) + 4*it + (i >> 1)), v(ads[it]), mods=f'offset:{1296*i}')
        if it: comb(it - 1)
        if it == 2:
            for k in range(2): a('global_store_dwordx4', v(go), v(O+4*k, 4), WS_, mods=f'offset:{1024*k} {stflags}')
            a('v_add_u32', v(go), 8192, v(go))
        if it == 4:
            for k in range(2): a('global_store_dwordx4', v(go), v(O+8+4*k, 4), WS_, mods=f'offset:{1024*k} {stflags}')
    comb(5)
    a('global_store_dwordx4', v(go2), v(O+16, 4), WS_, mods=stflags)
    a('s_mov_b64', 'exec', 0xff)
    a('global_store_dwordx4', v(go2), v(O+20, 4), WS_, mods=f'offset:1024 {stflags}')
    a('s_mov_b64', 'exec', -1)
    return R.next

def role_A2(a, ldflags='', stflags=''):
    R = RegAlloc(1, 168)
    t = R.alloc(); u = R.alloc(); go = R.alloc(4); lw = R.alloc(); lr0 = R.alloc(); lr1 = R.alloc()
    a('s_sub_u32', 's10', 's3', 8)
    a('v_lshrrev_b32', v(t), 3, 'v0'); a('v_lshl_add_u32', v(t), 's10', 3, v(t))
    a('s_mov_b32', 's8', TBLK); a('v_mul_lo_u32', v(go), v(t), 's8')
    a('v_and_b32', v(u), 7, 'v0'); a('v_lshl_add_u32', v(go), v(u), 4, v(go))
    a('s_lshl_b32', 's8', 's9', 7); a('v_add_u32', v(go), 's8', v(go))
    for it in range(1, 4): a('v_add_u32', v(go+it), 32*TBLK*it, v(go))
    ST = R.alloc(32); SW = ST + 16
    a('s_add_u32', 's12', 's38', WS_W); a('s_addc_u32', 's13', 's39', 0)
    for it in range(4): a('global_load_dwordx4', v(ST+4*it, 4), v(go+it), WS_, mods=ldflags)
    for it in range(4): a('global_load_dwordx4', v(SW+4*it, 4), v(go+it), 's[12:13]', mods=ldflags)
    def swz(dst, line, piece, tmp):
        a('v_lshrrev_b32', v(dst), 1, v(line)); a('v_lshlrev_b32', v(tmp), 2, v(line)); a('v_xor_b32', v(dst), v(dst), v(tmp))
        a('v_xor_b32', v(dst), piece, v(dst)); a('v_and_b32', v(dst), 7, v(dst)); a('v_lshlrev_b32', v(dst), 4, v(dst))
        a('v_lshl_add_u32', v(dst), v(line), 7, v(dst)); a('v_add_u32', v(dst), L_A2, v(dst))
    t2 = R.alloc()
    swz(lw, t, v(u), t2)
    o = R.alloc(); h = R.alloc(); of = R.alloc(); hf = R.alloc()
    a('v_bfe_u32', v(o), 'v0', 3, 2); a('v_and_b32', v(t), 3, 'v0'); a('v_lshl_add_u32', v(o), v(o), 2, v(t))
    a('v_bfe_u32', v(t), 'v0', 2, 1); a('v_lshl_add_u32', v(o), v(o), 1, v(t))
    a('v_lshrrev_b32', v(h), 5, 'v0')
    a('v_lshl_add_u32', v(t), v(h), 5, v(o))
    a('s_lshl_b32', 's8', 's10', 1)
    swz(lr0, t, 's8', t2); a('v_xor_b32', v(lr1), 16, v(lr0))
    a('s_sub_u32', 's8', 's9', 128); a('s_mul_i32', 's8', 's8', 57); a('s_lshr_b32', 's8', 's8', 9)
    a('s_lshr_b32', 's11', 's9', 4); a('s_cmp_lt_u32', 's9', 128); a('s_cselect_b32', 's8', 's11', 's8')
    a('s_and_b32', 's8', 's8', 1); a('s_cmp_eq_u32', 's8', 0)
    a('s_cselect_b32', 's14', 0, 0x80008000); a('s_lshl_b32', 's11', 's8', 31); a('s_or_b32', 's11', 's11', fl(1/32))
    a('v_cvt_f32_u32', v(of), v(o)); a('v_mul_f32', v(of), 's11', v(of))
    a('v_cvt_f32_u32', v(hf), v(h)); a('v_mul_f32', v(hf), v(hf), v(of))
    C = R.alloc(8); Sm = R.alloc(8); N = R.alloc(8); TC = R.alloc(16); TS = R.alloc(16)
    X = R.alloc(8)
    for kap in range(2):
        for jj in range(4):
            for e in range(2):
                idx = 2*kap + 4*(2*jj + e)
                if idx: a('v_fmamk_f32', v(X+e), v(of), fl(float(idx)), v(hf)); src = X+e
                else: src = hf
                sincos(a, src, X+2+e, X+4+e)
                vv = 2*(2*jj + e) + kap
                a('v_mul_f32', v(X+6+e), fl(1/32), v(src))
                sincos(a, X+6+e, TC+vv, TS+vv)
            a('v_cvt_pk_bf16_f32', v(C+4*kap+jj), v(X+2), v(X+3))
            a('v_cvt_pk_bf16_f32', v(Sm+4*kap+jj), v(X+4), v(X+5))
            a('v_cvt_pk_bf16_f32', v(N+4*kap+jj), '-' + v(X+4), '-' + v(X+5))
    for it in range(4): a('ds_write_b128', v(lw), v(ST+4*it, 4), mods=f'offset:{4096*it}')
    for it in range(4): a('ds_write_b128', v(lw), v(SW+4*it, 4), mods=f'offset:{16384+4096*it}')
    subbar(a, 2, 4, t, u)
    Z = R.alloc(16); Wp = R.alloc(16)
    for kap in range(2):
        for ri, ad in enumerate((lr0, lr1)): a('ds_read_b128', v(Z+8*kap+4*ri, 4), v(ad), mods=f'offset:{8192*kap}')
    for kap in range(2):
        for ri, ad in enumerate((lr0, lr1)): a('ds_read_b128', v(Wp+8*kap+4*ri, 4), v(ad), mods=f'offset:{16384+8192*kap}')
    ACC = [ST, None]; ACC[1] = None
    AR, AI = ST, ST+16
    BR = None
    MF = 'v_mfma_f32_32x32x16_bf16'
    def mm(kap, dataA, inv, dR, dI):
        zr, zi = v(Z+8*kap, 4), v(Z+8*kap+4, 4)
        c, p, n = v(C+4*kap, 4), v(Sm+4*kap, 4), v(N+4*kap, 4)
        if inv: p, n = n, p
        for k, (d, z, m) in enumerate(((dR, zr, c), (dI, zi, c), (dR, zi, p), (dI, zr, n))):
            cin = 0 if (kap == 0 and k < 2) else v(d, 16)
            if dataA: a(MF, v(d, 16), z, m, cin)
            else: a(MF, v(d, 16), m, z, cin)
    A2R = R.alloc(32) if R.next + 32 <= 168 else None
    bufs = [(AR, AI), (A2R, A2R+16)] if A2R else [(AR, AI), (AR, AI)]
    mm(0, True, False, *bufs[0]); mm(1, True, False, *bufs[0])
    for i in range(8): a('v_xor_b32', v(Wp + (i >> 2)*8 + 4 + (i & 3)), 's14', v(Wp + (i >> 2)*8 + 4 + (i & 3)))
    msk = t2; a('v_mov_b32', v(msk), 0xffff0000)
    for st in range(3):
        sR, sI = bufs[st & 1]; dR, dI = bufs[(st + 1) & 1]
        for kap in range(2):
            for jj in range(4):
                for e in range(2):
                    vv = 2*(2*jj + e) + kap
                    re, im = sR+vv, sI+vv
                    if st == 1:
                        c, s_ = X+4, X+5
                        for dst, pl in ((c, 0), (s_, 1)):
                            src = Wp + 8*kap + 4*pl + jj
                            if e: a('v_and_b32', v(dst), v(msk), v(src))
                            else: a('v_lshlrev_b32', v(dst), 16, v(src))
                    else: c, s_ = TC+vv, TS+vv
                    a('v_mul_f32', v(X+e), v(re), v(c)); a('v_mul_f32', v(X+2+e), v(im), v(c))
                    if st == 0:
                        a('v_fmac_f32', v(X+e), v(im), v(s_)); a('v_fma_f32', v(X+2+e), '-' + v(re), v(s_), v(X+2+e))
                    else:
                        a('v_fma_f32', v(X+e), '-' + v(im), v(s_), v(X+e)); a('v_fmac_f32', v(X+2+e), v(re), v(s_))
                a('v_cvt_pk_bf16_f32', v(Z+8*kap+jj), v(X), v(X+1))
                a('v_cvt_pk_bf16_f32', v(Z+8*kap+4+jj), v(X+2), v(X+3))
            if A2R or kap == 1:
                if not A2R: mm(0, st == 1, st >= 1, dR, dI)
                mm(kap, st == 1, st >= 1, dR, dI)
    sR, sI = bufs[1]
    for kap in range(2):
        for ih, ad in enumerate((lr0, lr1)):
            for x in range(4):
                vv = 2*(4*ih + x) + kap
                a('v_cvt_pk_bf16_f32', v(Z+8*kap+4*ih+x), v(sR+vv), v(sI+vv))
            a('ds_write_b128', v(ad), v(Z+8*kap+4*ih, 4), mods=f'offset:{8192*kap}')
    subbar(a, 3, 4, t, u)
    for it in range(4): a('ds_read_b128', v(Wp+4*it, 4), v(lw), mods=f'offset:{4096*it}')
    for it in range(4): a('global_store_dwordx4', v(go+it), v(Wp+4*it, 4), WS_, mods=stflags)
    return R.next

def role_A3(a, ldflags=''):
    R = RegAlloc(1, 168)
    PIT = 2640
    t = R.alloc(); u = R.alloc(); go = R.alloc(); lw = R.alloc()
    IN = R.alloc(12)
    a('s_mul_i32', 's8', 's7', TBLK); a('s_lshl_b32', 's12', 's3', 10); a('s_add_u32', 's8', 's8', 's12')
    a('v_lshl_add_u32', v(go), 'v0', 4, 's8')
    a('global_load_dwordx4', v(IN, 4), v(go), WS_, mods=ldflags)
    a('v_add_u32', v(t), 8192, v(go))
    a('global_load_dwordx4', v(IN+4, 4), v(t), WS_, mods=ldflags)
    a('s_mul_i32', 's8', 's7', TBLK); a('s_add_u32', 's8', 's8', TBLK - 16)
    a('v_add_u32', v(t), 16384, v(go)); a('v_min_u32', v(t), 's8', v(t))
    a('global_load_dwordx4', v(IN+8, 4), v(t), WS_, mods=ldflags)
    a('v_and_b32', v(t), 1, 'v0'); a('v_mul_u32_u24', v(lw), 4*PIT, v(t))
    a('v_lshrrev_b32', v(t), 1, 'v0'); a('v_lshl_add_u32', v(lw), v(t), 2, v(lw))
    a('s_lshl_b32', 's8', 's3', 7); a('s_add_u32', 's8', 's8', L_EI); a('v_add_u32', v(lw), 's8', v(lw))
    ea0, ea1 = ei_addrs(a, R, PIT, dup=True)
    a('s_lshl_b32', 's9', 's3', 7); a('s_add_u32', 's9', 's9', 's7')
    a('s_mul_i32', 's10', 's9', 2560)
    vo = row_offsets(a, R, 's10', 1024*2560)
    n = R.alloc(); q = R.alloc(); nf = R.alloc(); qf = R.alloc(); bf = R.alloc(); k2f = R.alloc()
    a('v_and_b32', v(n), 15, 'v0'); a('v_lshrrev_b32', v(q), 4, 'v0')
    a('v_cvt_f32_u32', v(nf), v(n)); a('v_cvt_f32_u32', v(qf), v(q))
    a('v_and_b32', v(bf), 7, 'v0'); a('v_cvt_f32_u32', v(bf), v(bf))
    ang = [R.alloc() for _ in range(4)]; an2 = [R.alloc() for _ in range(4)]; cs = [R.alloc() for _ in range(8)]
    Mre = R.alloc(4); Mim = R.alloc(4); u2 = R.alloc()
    a('v_mul_f32', v(u2), fl(1/8), v(bf))
    a('v_and_b32', v(k2f), 1, v(q)); a('v_lshlrev_b32', v(k2f), 2, v(k2f)); a('v_cvt_f32_u32', v(k2f), v(k2f))
    a('v_bfe_u32', v(t), 'v0', 3, 1); a('v_lshl_add_u32', v(t), v(t), 10, 's9')
    a('v_lshrrev_b32', v(u), 5, 'v0'); a('v_mul_u32_u24', v(t), v(t), v(u))
    a('v_cvt_f32_u32', v(t), v(t)); a('v_mul_f32', v(t), fl(1/2048), v(t))
    a('v_fma_f32', v(ang[0]), v(u2), v(k2f), v(t))
    for r in range(1, 4): a('v_add_f32', v(ang[r]), v(ang[r-1]), v(u2))
    for r in range(4): sincos(a, ang[r], cs[r], cs[4+r])
    for r in range(4):
        a('v_cvt_pk_bf16_f32', v(Mre+r), v(cs[r]), '-' + v(cs[4+r]))
        a('v_cvt_pk_bf16_f32', v(Mim+r), v(cs[4+r]), v(cs[r]))
    TC = R.alloc(12); TS = R.alloc(12); kar = R.alloc(); wt = R.alloc()
    NRM = 1.0/(2048*640)
    for r in range(4):
        mk = R.mark()
        a('v_lshl_add_u32', v(kar), v(q), 2, r)
        k1 = k1_regs(a, R, kar)
        for k5 in range(3):
            a('v_mul_f32', v(k1[k5]), v(k1[k5]), v(bf))
            sincos(a, k1[k5], TC+4*k5+r, TS+4*k5+r)
        a('v_mov_b32', v(wt), fl(2*NRM))
        for k5 in (1, 2):
            a('v_mul_f32', v(TC+4*k5+r), v(wt), v(TC+4*k5+r)); a('v_mul_f32', v(TS+4*k5+r), v(wt), v(TS+4*k5+r))
        a('v_cmp_gt_u32', 'vcc', 9, v(kar)); a('v_cndmask_b32', v(wt), 0, v(wt), 'vcc')
        if r == 0:
            a('v_and_b32', v(t), 7, v(kar)); a('v_cmp_eq_u32', 'vcc', 0, v(t))
            a('v_mov_b32', v(t), fl(NRM)); a('v_cndmask_b32', v(wt), v(wt), v(t), 'vcc')
        a('v_mul_f32', v(TC+r), v(wt), v(TC+r)); a('v_mul_f32', v(TS+r), v(wt), v(TS+r))
        R.release(mk)
    F = R.alloc(20)
    a('v_mul_f32', v(t), 0.5, v(nf)); a('v_mul_f32', v(t), 0.5, v(t))
    a('v_mul_f32', v(ang[0]), v(t), v(qf))
    for r in range(1, 4): a('v_fmamk_f32', v(ang[r]), v(nf), fl(r/16), v(ang[0]))
    for tt in range(5):
        src = ang
        if tt:
            for r in range(4): a('v_add_f32', v(an2[r]), fl(tt/5), v(ang[r]))
            src = an2
        for r in range(4): sincos(a, src[r], cs[r], cs[4+r])
        for r in range(4): a('v_cvt_pk_bf16_f32', v(F+4*tt+r), v(cs[r]), '-' + v(cs[4+r]))
    vb = R.alloc(); rd = R.alloc()
    a('s_mul_i32', 's11', 's3', 3072); a('s_add_u32', 's11', 's11', L_XR)
    a('v_lshrrev_b32', v(vb), 5, 'v0'); a('v_mul_u32_u24', v(vb), 1408, v(vb))
    a('v_and_b32', v(t), 1, v(q)); a('v_lshl_add_u32', v(vb), v(t), 3, v(vb)); a('v_add_u32', v(vb), 's11', v(vb))
    wa = d1_addrs(a, R, n, vb)
    a('v_lshl_add_u32', v(rd), 'v0', 4, 's11')
    for it in range(3):
        if it == 2:
            skip = newlabel('La3s'); a('s_cmp_gt_u32', 's3', 4); a('s_cbranch_scc1', skip)
            a('s_cmp_lt_u32', 's3', 4); a('s_cselect_b32', 'exec_hi', -1, 0)
        for x in range(4): a('ds_write_b32', v(lw), v(IN+4*it+x), mods=f'offset:{1024*it + PIT*x}')
    a('s_mov_b64', 'exec', -1)
    a.label(skip)
    subbar(a, 4, 8, t, u, vm=True)
    Z = IN; A1 = R.alloc(24); PK = Z; Y = R.alloc(20); P0 = R.alloc(4)
    a('ds_read_b128', v(Z, 4), v(ea1))
    a('ds_read_b128', v(Z+4, 4), v(ea0)); a('ds_read_b128', v(Z+8, 4), v(ea0), mods='offset:1024')
    MF = 'v_mfma_f32_16x16x32_bf16'
    for k5 in range(3):
        a(MF, v(A1+8*k5, 4), v(Z+4*k5, 4), v(Mre, 4), 0); a(MF, v(A1+8*k5+4, 4), v(Z+4*k5, 4), v(Mim, 4), 0)
    for k5 in range(3):
        for r in range(4):
            re, im, c, s_ = A1+8*k5+r, A1+8*k5+4+r, TC+4*k5+r, TS+4*k5+r
            a('v_mul_f32', v(cs[r]), v(re), v(c)); a('v_mul_f32', v(cs[4+r]), v(im), v(c))
            a('v_fma_f32', v(cs[r]), '-' + v(im), v(s_), v(cs[r])); a('v_fmac_f32', v(cs[4+r]), v(re), v(s_))
            a('v_cvt_pk_bf16_f32', v(PK+4*k5+r), v(cs[r]), v(cs[4+r]))
        if k5 == 0: a(MF, v(P0, 4), v(PK, 4), v(F, 4), 0)
        else:
            for e in range(5):
                a(MF, v(Y+4*e, 4), v(PK+4*k5, 4), v(F+4*((e*k5) % 5), 4), v(P0, 4) if k5 == 1 else v(Y+4*e, 4))
    for e in range(5):
        a('v_cvt_pk_bf16_f32', v(A1+2*e), v(Y+4*e), v(Y+4*e+1)); a('v_cvt_pk_bf16_f32', v(A1+2*e+1), v(Y+4*e+2), v(Y+4*e+3))
        a('ds_write_b64', v(wa[e]), v(A1+2*e, 2))
    for k in range(3): a('ds_read_b128', v(Z+4*k, 4), v(rd), mods=f'offset:{1024*k}')
    a('global_store_dwordx4', v(vo[0]), v(Z, 4), OUT_)
    a('s_mov_b32', 'exec_lo', 0xff00ffff)
    a('global_store_dwordx4', v(vo[1]), v(Z+4, 4), OUT_, mods='offset:1024')
    a('s_mov_b32', 'exec_lo', -1); a('s_mov_b32', 'exec_hi', 0xff)
    a('global_store_dwordx4', v(vo[2]), v(Z+8, 4), OUT_, mods='offset:2048')
    a('s_mov_b64', 'exec', -1)
    return R.next

def quad_voff(a, R):
    vo = R.alloc(); t = R.alloc()
    a('v_mul_u32_u24', v(t), 26, 'v0'); a('v_lshrrev_b32', v(t), 8, v(t))
    a('v_mul_u32_u24', v(vo), 1280 - 160, v(t)); a('v_lshl_add_u32', v(vo), 'v0', 4, v(vo))
    return vo

def tile_dma(a, vo, sd, lds_img, stray='s8'):
    a('s_mul_i32', 's11', 's3', 16*1280); a('s_add_u32', 's11', 's11', 's10')
    a('s_mul_i32', 's12', 's3', 2*1296)
    for k in range(4):
        a('s_add_u32', 'm0', 's12', lds_img + (k >> 1)*1296 + (k & 1)*640)
        a('buffer_load_dwordx4', v(vo), s(sd, 4), 's11', mods='offen lds')
        if k < 3: a('s_add_u32', 's11', 's11', 4*1280)

def b13_lane(a, R, wsbase):
    lb = R.alloc(); uo = R.alloc(); pr = R.alloc(); od = R.alloc()
    a('s_cmp_ge_u32', 's3', 5); a('s_cselect_b32', 's13', 1, 0)
    a('s_mul_i32', 's14', 's13', 5); a('s_sub_u32', 's14', 's3', 's14')
    a('v_lshrrev_b32', v(pr), 3, 'v0'); a('v_lshl_add_u32', v(pr), 's14', 3, v(pr))
    a('v_and_b32', v(od), 7, 'v0'); a('s_lshl_b32', 's15', 's13', 3); a('s_add_u32', 's15', 's15', 7)
    a('v_sub_u32', v(od), 's15', v(od))
    a('v_mul_u32_u24', v(lb), 1296, v(od)); a('v_lshl_add_u32', v(lb), v(pr), 2, v(lb)); a('v_add_u32', v(lb), L_KI, v(lb))
    a('s_mul_i32', 's15', 's4', 80*4096); a('s_add_u32', 's15', 's15', wsbase + 4080)
    a('s_lshl_b32', 's8', 's6', 8); a('s_sub_u32', 's15', 's15', 's8')
    a('v_lshl_add_u32', v(uo), v(pr), 13, 's15');
    t = R.alloc(); a('v_lshlrev_b32', v(t), 4, v(od)); a('v_sub_u32', v(uo), v(uo), v(t))
    return lb, uo, pr, od

def role_B1(a, endlabel, stflags=''):
    R = RegAlloc(1, 168)
    a('s_cmp_ge_u32', 's3', 10); a('s_cbranch_scc1', endlabel)
    NB = 2048*1280
    srd(a, 44, 's24', 's25', NB); srd(a, 48, 's26', 's27', NB)
    vo = quad_voff(a, R)
    a('s_mul_i32', 's10', 's6', 128*1280); a('s_mul_i32', 's8', 's4', 160); a('s_add_u32', 's10', 's10', 's8')
    t = R.alloc(); u = R.alloc()
    a('s_sub_u32', 's8', 's10', 4*1280); a('v_add_u32', v(t), 's8', v(vo))
    a('s_mov_b32', 'exec_hi', 0xff)
    l8 = newlabel('Lb1'); l9 = newlabel('Lb1')
    a('s_cmp_ge_u32', 's3', 8); a('s_cbranch_scc1', l8)
    tile_dma(a, vo, 44, L_KI + 1296); tile_dma(a, vo, 48, L_VI)
    a('s_branch', l9)
    a.label(l8)
    a('s_mov_b32', 'm0', L_KI + 640)
    a('buffer_load_dwordx4', v(t), 's[44:47]', 0, mods='offen lds')
    a.label(l9)
    a('s_mov_b64', 'exec', -1)
    lb, uo, pr, od = b13_lane(a, R, WS_U)
    CF = R.alloc(4); C = R.alloc(8)
    a('s_mul_i32', 's8', 's4', 640); a('v_lshl_add_u32', v(t), v(pr), 4, 's8')
    a('global_load_dwordx4', v(CF, 4), v(t), SK_)
    msk = R.alloc(); a('v_mov_b32', v(msk), 0xffff0000)
    for ch in range(2):
        for j in range(4):
            src = CF + 2*ch + (j >> 1)
            if j & 1: a('v_and_b32', v(C+4*ch+j), v(msk), v(src))
            else: a('v_lshlrev_b32', v(C+4*ch+j), 16, v(src))
    subbar(a, 5, 10, t, u, vm=True)
    Kd = R.alloc(11); Vd = R.alloc(8); Kf = [R.alloc(11), R.alloc(11)]; T = R.alloc(4); O = R.alloc(8)
    for i in range(11): a('ds_read_b32', v(Kd+i), v(lb), mods=f'offset:{(800 + 160*i if i < 3 else 1296 + 160*(i-3))}')
    for i in range(8): a('ds_read_b32', v(Vd+i), v(lb), mods=f'offset:{L_VI - L_KI + 160*i}')
    def unp(i):
        a('v_lshlrev_b32', v(Kf[0]+i), 16, v(Kd+i)); a('v_and_b32', v(Kf[1]+i), v(msk), v(Kd+i))
    for i in range(3): unp(i)
    res = R.alloc(4)
    for i in range(8):
        unp(i+3)
        for ch in range(2):
            acc = T + ch; dst = res + 2*ch + (i & 1)
            a('v_mul_f32', v(acc), v(Kf[ch]+i), v(C+4*ch+3))
            for j in (2, 1, 0): a('v_fmac_f32', v(acc), v(Kf[ch]+i+3-j), v(C+4*ch+j))
            if ch: a('v_and_b32', v(T+2+ch), v(msk), v(Vd+i))
            else: a('v_lshlrev_b32', v(T+2+ch), 16, v(Vd+i))
            a('v_mul_f32', v(dst), v(acc), v(T+2+ch))
        if i & 1:
            for ch in range(2): a('v_cvt_pk_bf16_f32', v(O+4*ch+3-(i >> 1)), v(res+2*ch+1), v(res+2*ch))
    a('global_store_dwordx4', v(uo), v(O, 4), WS_, mods=stflags)
    a('v_add_u32', v(uo), 4096, v(uo))
    a('global_store_dwordx4', v(uo), v(O+4, 4), WS_, mods=stflags)
    return R.next

def role_B3(a, endlabel, ldflags=''):
    R = RegAlloc(1, 168)
    a('s_cmp_ge_u32', 's3', 10); a('s_cbranch_scc1', endlabel)
    NB = 2048*1280
    srd(a, 44, 's22', 's23', NB)
    lb, uo, pr, od = b13_lane(a, R, WS_Z)
    Z = R.alloc(8); t = R.alloc(); u = R.alloc()
    a('global_load_dwordx4', v(Z, 4), v(uo), WS_, mods=ldflags)
    a('v_add_u32', v(uo), 4096, v(uo))
    a('global_load_dwordx4', v(Z+4, 4), v(uo), WS_, mods=ldflags)
    vo = quad_voff(a, R)
    a('s_mul_i32', 's10', 's6', 128*1280); a('s_mul_i32', 's8', 's4', 160); a('s_add_u32', 's10', 's10', 's8')
    l8 = newlabel('Lb3')
    a('s_cmp_ge_u32', 's3', 8); a('s_cbranch_scc1', l8)
    a('s_mov_b32', 'exec_hi', 0xff)
    tile_dma(a, vo, 44, L_VI)
    a('s_mov_b64', 'exec', -1)
    a.label(l8)
    oo = R.alloc(); msk = R.alloc(); a('v_mov_b32', v(msk), 0xffff0000)
    a('s_mul_i32', 's8', 's6', 128*2560); a('s_mul_i32', 's9', 's4', 160); a('s_add_u32', 's8', 's8', 's9'); a('s_add_u32', 's8', 's8', 1280)
    a('v_mul_u32_u24', v(oo), 8*2560, v(od)); a('v_lshl_add_u32', v(oo), v(pr), 2, v(oo)); a('v_add_u32', v(oo), 's8', v(oo))
    subbar(a, 6, 10, t, u, vm=True)
    Qd = R.alloc(8); T = R.alloc(4); O = R.alloc(8)
    for i in range(8): a('ds_read_b32', v(Qd+i), v(lb), mods=f'offset:{L_VI - L_KI + 160*i}')
    for i in range(8):
        for ch in range(2):
            src = Z + 4*ch + 3 - (i >> 1)
            if i & 1: a('v_lshlrev_b32', v(T+ch), 16, v(src))
            else: a('v_and_b32', v(T+ch), v(msk), v(src))
            if ch: a('v_and_b32', v(T+2+ch), v(msk), v(Qd+i))
            else: a('v_lshlrev_b32', v(T+2+ch), 16, v(Qd+i))
            a('v_mul_f32', v(T+ch), v(T+ch), v(T+2+ch))
        a('v_cvt_pk_bf16_f32', v(O+i), v(T), v(T+1))
        if i & 1:
            a('global_store_dword', v(oo), v(O+i-1), OUT_)
            a('global_store_dword', v(oo), v(O+i), OUT_, mods='offset:2560')
            if i < 7: a('v_add_u32', v(oo), 5120, v(oo))
    return R.next

def chan_of_lc(a, dst, lc_s_or_int):
    a('s_mul_i32', dst, 's4', 80); a('s_mul_i32', 's41', 's6', 5); a('s_add_u32', dst, dst, 's41')
    if isinstance(lc_s_or_int, int):
        lc = lc_s_or_int
        if lc == 2: a('s_add_u32', dst, dst, 2)
        else:
            a('s_mul_i32', 's41', 's5', 3); a('s_add_u32', dst, dst, 's41')
            if lc: a('s_add_u32', dst, dst, lc)
    else:
        a('s_mul_i32', 's41', 's5', 3); a('s_cmp_eq_u32', lc_s_or_int, 2); a('s_cselect_b32', 's41', 0, 's41')
        a('s_add_u32', dst, dst, 's41'); a('s_add_u32', dst, dst, lc_s_or_int)

def B2_himg(a, R):
    vo = R.alloc(); t = R.alloc(); u = R.alloc(); Hd = R.alloc(4)
    a('s_lshr_b32', 's9', 's3', 1)
    a('s_and_b32', 's10', 's3', 1)
    a('s_lshl_b32', 's8', 's9', 1); a('s_add_u32', 's8', 's8', 2); a('s_lshl_b32', 's11', 's10', 11); a('s_add_u32', 's8', 's8', 's11')
    a('v_lshl_add_u32', v(vo), 'v0', 4, 's8')
    a('s_and_b32', 's12', 's9', 1); a('s_mul_i32', 's12', 's12', 529*16); a('s_lshr_b32', 's13', 's9', 1); a('s_mul_i32', 's13', 's13', 264*16)
    a('s_add_u32', 's12', 's12', 's13'); a('s_add_u32', 's12', 's12', 's11')
    for lc in range(3):
        chan_of_lc(a, 's8', lc); a('s_lshl_b32', 's8', 's8', 12)
        a('s_add_u32', 's44', 's30', 's8'); a('s_addc_u32', 's45', 's31', 0); a('s_and_b32', 's45', 's45', 0xffff)
        a('s_mov_b32', 's46', 4096); a('s_mov_b32', 's47', 0x20000)
        a('s_add_u32', 'm0', 's12', L_H + lc*HSZ + 128)
        a('buffer_load_dwordx4', v(vo), 's[44:47]', 0, mods='offen lds')
        a('buffer_load_dwordx4', v(vo), 's[44:47]', 0, mods='offen offset:1024 lds')
    sk = newlabel('Lh')
    a('s_cmp_ge_u32', 's3', 3); a('s_cbranch_scc1', sk)
    chan_of_lc(a, 's8', 's3'); a('s_lshl_b32', 's8', 's8', 12); a('v_mov_b32', v(t), 's8')
    a('global_load_dwordx2', v(Hd+2, 2), v(t), H_)
    Zr = R.alloc(4)
    for k in range(4): a('v_mov_b32', v(Zr+k), 0)
    a('s_mul_i32', 's8', 's3', USZ); a('s_add_u32', 's8', 's8', L_U + 32*144)
    a('v_lshl_add_u32', v(u), 'v0', 4, 's8')
    a('ds_write_b128', v(u), v(Zr, 4)); a('ds_write_b128', v(u), v(Zr, 4), mods='offset:1024')
    a('s_mov_b64', 'exec', 0x7f); a('ds_write_b128', v(u), v(Zr, 4), mods='offset:2048'); a('s_mov_b64', 'exec', -1)
    a('v_bfe_u32', v(t), 'v0', 3, 2)
    a('v_and_b32', v(u), 1, v(t)); a('v_mul_u32_u24', v(u), 529*16, v(u))
    a('v_lshrrev_b32', v(Hd), 1, v(t)); a('v_mul_u32_u24', v(Hd), 264*16, v(Hd)); a('v_add_u32', v(u), v(u), v(Hd))
    a('v_and_b32', v(Hd), 7, 'v0'); a('v_lshl_add_u32', v(u), v(Hd), 4, v(u))
    a('s_mul_i32', 's8', 's3', HSZ); a('s_add_u32', 's8', 's8', L_H); a('v_add_u32', v(u), 's8', v(u))
    a('v_cmp_eq_u32', 'vcc', 7, v(Hd))
    a('v_lshlrev_b32', v(t), 4, v(t)); a('v_sub_u32', v(t), 48, v(t))
    a('v_lshlrev_b64', v(Hd+2, 2), v(t), v(Hd+2, 2))
    a('v_cndmask_b32', v(Hd+2), 0, v(Hd+2), 'vcc'); a('v_cndmask_b32', v(Hd+3), 0, v(Hd+3), 'vcc')
    a('v_mov_b32', v(Hd), 0); a('v_mov_b32', v(Hd+1), 0)
    a('s_mov_b32', 'exec_hi', 0)
    a('ds_write_b128', v(u), v(Hd, 4))
    a('s_mov_b64', 'exec', -1)
    a.label(sk)

def B2_uload(a, R, ldflags):
    t = R.alloc(); lw = R.alloc(); U = R.alloc(8); go = R.alloc()
    a('s_lshr_b32', 's9', 's3', 2); a('s_and_b32', 's10', 's3', 3)
    a('v_lshrrev_b32', v(t), 3, 'v0'); a('v_lshlrev_b32', v(t), 4, v(t)); a('v_lshl_add_u32', v(lw), 'v0', 4, v(t))
    a('s_mul_i32', 's11', 's10', 8*144); a('s_add_u32', 's11', 's11', L_U); a('v_add_u32', v(lw), 's11', v(lw))
    a('s_lshl_b32', 's12', 's10', 10); a('s_add_u32', 's12', 's12', WS_U)
    chan_of_lc(a, 's8', 's9'); a('s_lshl_b32', 's8', 's8', 12); a('s_add_u32', 's8', 's8', 's12')
    a('v_lshl_add_u32', v(go), 'v0', 4, 's8')
    a('global_load_dwordx4', v(U, 4), v(go), WS_, mods=ldflags)
    chan_of_lc(a, 's8', 2); a('s_lshl_b32', 's8', 's8', 12); a('s_add_u32', 's8', 's8', 's12')
    a('v_lshl_add_u32', v(go), 'v0', 4, 's8')
    a('global_load_dwordx4', v(U+4, 4), v(go), WS_, mods=ldflags)
    a('s_mul_i32', 's8', 's9', USZ); a('v_add_u32', v(t), 's8', v(lw))
    return t, lw, U

def role_B2(a, endlabel, ldflags='', stflags=''):
    R = RegAlloc(1, 168)
    t1, lw, U = B2_uload(a, R, ldflags)
    mk = R.mark(); B2_himg(a, R); R.release(mk)
    t = R.alloc(); u = R.alloc()
    a('s_mul_i32', 's9', 's3', 11); a('s_lshr_b32', 's9', 's9', 5)
    a('s_mul_i32', 's10', 's9', 3); a('s_sub_u32', 's10', 's3', 's10')
    a('s_xor_b32', 's8', 's5', 1); a('s_cmp_eq_u32', 's9', 2); a('s_cselect_b32', 's8', 's8', 0); a('s_add_u32', 's10', 's10', 's8')
    a('s_min_u32', 's11', 's10', 1)
    a('s_lshr_b32', 's12', 's10', 1)
    chan_of_lc(a, 's13', 's9')
    Dv = R.alloc()
    a('s_lshl_b32', 's8', 's13', 1); a('v_mov_b32', v(t), 's8')
    a('global_load_ushort', v(Dv), v(t), D_)
    n = R.alloc(); q = R.alloc(); aa = R.alloc(); ba = R.alloc(); ia = R.alloc()
    a('v_and_b32', v(n), 15, 'v0'); a('v_lshrrev_b32', v(q), 4, 'v0')
    a('v_and_b32', v(t), 1, 'v0'); a('v_mul_u32_u24', v(aa), 529*16, v(t))
    a('v_bfe_u32', v(t), 'v0', 1, 1); a('v_mul_u32_u24', v(t), 264*16, v(t)); a('v_add_u32', v(aa), v(aa), v(t))
    a('v_bfe_u32', v(t), 'v0', 2, 2); a('v_lshl_add_u32', v(aa), v(t), 5, v(aa)); a('v_lshl_add_u32', v(aa), v(q), 9, v(aa))
    a('s_mul_i32', 's8', 's9', HSZ); a('s_lshl_b32', 's14', 's12', 11); a('s_add_u32', 's8', 's8', 's14'); a('s_add_u32', 's8', 's8', L_H)
    a('v_add_u32', v(aa), 's8', v(aa))
    a('s_sub_u32', 's14', 's12', 's11'); a('s_lshl_b32', 's14', 's14', 4); a('s_add_u32', 's14', 's14', 31)
    a('s_mul_i32', 's15', 's9', USZ); a('s_add_u32', 's15', 's15', L_U)
    a('v_lshlrev_b32', v(t), 2, v(q)); a('v_sub_u32', v(t), v(t), v(n)); a('v_add_u32', v(t), 's14', v(t))
    a('v_mul_u32_u24', v(ba), 144, v(t)); a('v_add_u32', v(ba), 's15', v(ba))
    a('s_lshl_b32', 's14', 's11', 4); a('s_sub_u32', 's14', 31, 's14')
    a('v_sub_u32', v(t), 's14', v(n)); a('v_mul_u32_u24', v(ia), 144, v(t)); a('v_add_u32', v(ia), 's15', v(ia))
    a('v_lshlrev_b32', v(t), 5, v(q)); a('v_sub_u32', v(ia), v(ia), v(t))
    a('ds_write_b128', v(t1), v(U, 4)); a('ds_write_b128', v(lw), v(U+4, 4), mods=f'offset:{2*USZ}')
    a('v_lshlrev_b32', v(Dv), 16, v(Dv))
    a('s_cmp_eq_u32', 's12', 0); a('s_cselect_b32', 's8', -1, 0); a('v_and_b32', v(Dv), 's8', v(Dv))
    subbar(a, 7, 8, t, u, vm=True)
    a('s_lshl_b32', 's8', 's5', 3); a('s_add_u32', 's8', 's8', 's3'); a('s_cmp_eq_u32', 's8', 15); a('s_cbranch_scc1', endlabel)
    ACC = R.alloc(16); RA = R.alloc(66); RB = R.alloc(32); msk = R.alloc()
    a('ds_read_b128', v(U, 4), v(ia), mods='offset:96'); a('ds_read_b128', v(U+4, 4), v(ia), mods='offset:112')
    PD = 5
    def rdA(w):
        if w > 33: return
        a('ds_read_b128', v(RA + 4*(w % 16), 4), v(aa), mods=f'offset:{16*w}')
        if w and w % 16 == 0: a('ds_read_b64', v(RA+64, 2), v(aa), mods=f'offset:{16*w}')
    def rdB(tau):
        if tau > 31: return
        a('ds_read_b128', v(RB + 4*(tau % 8), 4), v(ba), mods=f'offset:{144*(tau >> 3) + 16*(tau & 7)}')
    rdA(0); rdA(1)
    for k in range(PD): rdB(k); rdA(k+2)
    a('v_mov_b32', v(msk), 0xffff0000)
    for x in range(16):
        e = 15 - x
        if e & 1: a('v_and_b32', v(ACC+x), v(msk), v(U + (e >> 1)))
        else: a('v_lshlrev_b32', v(ACC+x), 16, v(U + (e >> 1)))
        a('v_mul_f32', v(ACC+x), v(Dv), v(ACC+x))
    for tau in range(32):
        for tt in range(4):
            d = (4*tau + 2*tt) % 64
            a('v_mfma_f32_16x16x32_bf16', v(ACC+4*tt, 4), v(RA+d, 4), v(RB + 4*(tau % 8), 4), v(ACC+4*tt, 4))
            if tt == 0: rdB(tau + PD)
            if tt == 2: rdA(tau + PD + 2)
    ra = R.alloc()
    a('s_lshl_b32', 's8', 's9', 12); a('s_add_u32', 's8', 's8', L_RED); a('v_lshl_add_u32', v(ra), 'v0', 4, 's8')
    lj = newlabel('Lb2'); lf = newlabel('Lb2')
    a('s_lshl_b32', 's14', 's9', 2); a('s_add_u32', 's14', 's14', L_CNT + 4*8); a('v_mov_b32', v(t), 's14'); a('v_mov_b32', v(u), 1)
    a.settle()
    a('s_cmp_eq_u32', 's12', 0); a('s_cbranch_scc1', lj)
    for tt in range(4): a('ds_write_b128', v(ra), v(ACC+4*tt, 4), mods=f'offset:{1024*tt}')
    a.wait(lgkm=0)
    a('s_mov_b64', 'exec', 1); a('ds_add_u32', v(t), v(u)); a('s_mov_b64', 'exec', -1)
    a('s_branch', endlabel)
    a.label(lj); a.forget()
    a('s_cmp_eq_u32', 's10', 0); a('s_cbranch_scc1', lf)
    lp = newlabel('Lb2')
    a.label(lp)
    a('ds_read_b32', v(u), v(t)); a('v_readfirstlane_b32', 's40', v(u)); a('s_cmp_eq_u32', 's40', 0); a('s_cbranch_scc1', lp)
    for tt in range(4): a('ds_read_b128', v(RB+4*tt, 4), v(ra), mods=f'offset:{1024*tt}')
    for x in range(16): a('v_add_f32', v(ACC+x), v(ACC+x), v(RB+x))
    a.label(lf)
    for jj in range(8): a('v_cvt_pk_bf16_f32', v(U+jj), v(ACC+15-2*jj), v(ACC+14-2*jj))
    sa = ra; sr = aa
    a('s_lshl_b32', 's8', 's3', 11); a('s_add_u32', 's8', 's8', L_P1)
    a('v_sub_u32', v(t), 15, v(n)); a('v_lshlrev_b32', v(u), 1, v(q)); a('v_sub_u32', v(u), 6, v(u))
    a('v_xor_b32', v(u), v(t), v(u)); a('v_and_b32', v(u), 7, v(u)); a('v_lshlrev_b32', v(u), 4, v(u))
    a('v_lshl_add_u32', v(sa), v(t), 7, v(u)); a('v_add_u32', v(sa), 's8', v(sa)); a('v_xor_b32', v(u), 16, v(sa))
    a('ds_write_b128', v(sa), v(U, 4)); a('ds_write_b128', v(u), v(U+4, 4))
    a('v_lshrrev_b32', v(t), 3, 'v0'); a('v_xor_b32', v(u), v(t), 'v0'); a('v_and_b32', v(u), 7, v(u)); a('v_lshlrev_b32', v(u), 4, v(u))
    a('v_lshl_add_u32', v(sr), v(t), 7, v(u)); a('v_add_u32', v(sr), 's8', v(sr))
    a('ds_read_b128', v(RB, 4), v(sr)); a('ds_read_b128', v(RB+4, 4), v(sr), mods='offset:1024')
    a('s_lshl_b32', 's8', 's13', 12); a('s_lshl_b32', 's14', 's11', 11); a('s_sub_u32', 's8', 's8', 's14'); a('s_add_u32', 's8', 's8', WS_Z + 2048)
    a('v_lshl_add_u32', v(t), 'v0', 4, 's8')
    a('global_store_dwordx4', v(t), v(RB, 4), WS_, mods=stflags)
    a('global_store_dwordx4', v(t), v(RB+4, 4), WS_, mods=f'offset:1024 {stflags}')
    return R.next
```

```python
import sys
from asmlib import *
from roles import *
def build(withB=False):
    a = Asm()
    for k in (1, 2, 3): a.raw(f"; @launch kernel=k{k}_kernel grid=(256,1,1) block=(768,1,1) lds={LDS_TOTAL}")
    a.raw('.amdgcn_target "amdgcn-amd-amdhsa--gfx950"\n.text')
    prologue(a, 'k1_kernel', 'Lend1')
    a('s_cmp_lg_u32', 's5', 0); a('s_cbranch_scc1', 'L1O')
    a('s_cmp_ge_u32', 's3', 8); a('s_cbranch_scc1', 'L1W')
    print('A1', role_A1(a)); a('s_endpgm'); a.forget()
    a.label('L1W'); print('W1', role_W1(a)); a('s_endpgm'); a.forget()
    a.label('L1O')
    if withB:
        print('B1', role_B1(a, 'Lend1'))
    a.label('Lend1'); a('s_endpgm'); a.forget()
    a.raw(kernel_desc('k1_kernel', 168, 64))
    prologue(a, 'k2_kernel', 'Lend2')
    a('s_cmp_ge_u32', 's3', 8); a('s_cbranch_scc1', 'L2A')
    if withB:
        print('B2', role_B2(a, 'Lend2'))
    a('s_endpgm'); a.forget()
    a.label('L2A')
    a('s_add_u32', 's9', 's7', 128); a('s_cmp_lg_u32', 's5', 0); a('s_cselect_b32', 's9', 's7', 's9')
    a('s_cmp_ge_u32', 's9', 164); a('s_cbranch_scc1', 'Lend2')
    print('A2', role_A2(a))
    a.label('Lend2'); a('s_endpgm'); a.forget()
    a.raw(kernel_desc('k2_kernel', 168, 64))
    prologue(a, 'k3_kernel', 'Lend3')
    a('s_cmp_lg_u32', 's5', 0); a('s_cbranch_scc1', 'L3O')
    a('s_cmp_ge_u32', 's3', 8); a('s_cbranch_scc1', 'Lend3')
    print('A3', role_A3(a)); a('s_endpgm'); a.forget()
    a.label('L3O')
    if withB:
        print('B3', role_B3(a, 'Lend3'))
    a.label('Lend3'); a('s_endpgm')
    a.raw(kernel_desc('k3_kernel', 168, 64))
    print("instrs", a.nins)
    return a.text()
open('t_k3.s', 'w').write(build(len(sys.argv) > 1))
```

```python
import re

REG_RE = re.compile(r'^(-|\|)?(?:abs\()?([vsa])(?:(\d+)|\[(\d+):(\d+)\])\)?\|?$')

def regs_of(op):
    if not isinstance(op, str): return set()
    op = op.strip()
    if op == 'vcc': return {('s', 106), ('s', 107)}
    if op == 'vcc_lo': return {('s', 106)}
    if op == 'vcc_hi': return {('s', 107)}
    if op == 'exec': return {('s', 126), ('s', 127)}
    if op == 'exec_lo': return {('s', 126)}
    if op == 'exec_hi': return {('s', 127)}
    if op == 'm0': return {('s', 124)}
    m = REG_RE.match(op)
    if not m: return set()
    k = m.group(2)
    if m.group(3) is not None: return {(k, int(m.group(3)))}
    return {(k, i) for i in range(int(m.group(4)), int(m.group(5)) + 1)}

def v(n, cnt=1):
    return f"v{n}" if cnt == 1 else f"v[{n}:{n+cnt-1}]"
def s(n, cnt=1):
    return f"s{n}" if cnt == 1 else f"s[{n}:{n+cnt-1}]"

TRANS = ('v_exp_', 'v_log_', 'v_rcp_', 'v_rsq_', 'v_sqrt_', 'v_sin_', 'v_cos_')
VCC = {('s', 106), ('s', 107)}

def mfma_passes(op):
    if '32x32x16' in op or '32x32x8' in op: return 8
    if '16x16x32' in op or '16x16x16' in op: return 4
    raise ValueError(op)

class Ins:
    __slots__ = ('op', 'args', 'mods', 'kind', 'defs', 'uses', 'srcC', 'srcAB', 'passes', 'ws', 'text', 'wide_data', 'comment')
    def __init__(self, op, args, mods):
        self.op, self.args, self.mods = op, [str(a) for a in args], mods
        self.defs, self.uses, self.srcC, self.srcAB = set(), set(), set(), set()
        self.passes = 0; self.ws = 1; self.wide_data = set()
        a = self.args
        R = lambda xs: set().union(*[regs_of(x) for x in xs]) if xs else set()
        if op.startswith('v_mfma'):
            self.kind = 'mfma'; self.passes = mfma_passes(op)
            self.defs = R(a[:1]); self.srcAB = R(a[1:3]); self.srcC = R(a[3:4]); self.uses = self.srcAB | self.srcC
        elif op.startswith('v_'):
            self.kind = 'trans' if op.startswith(TRANS) else 'valu'
            if op.startswith('v_permlane') and 'swap' in op:
                self.defs = R(a[:2]); self.uses = R(a[:2])
            elif op.startswith(('v_add_co', 'v_sub_co', 'v_subrev_co', 'v_addc_co', 'v_subb_co', 'v_mad_u64')):
                self.defs = R(a[:2]); self.uses = R(a[2:])
            else:
                self.defs = R(a[:1]); self.uses = R(a[1:])
                if op.startswith(('v_fmac', 'v_pk_fmac', 'v_dot2c', 'v_writelane')) or 'mixlo' in op or 'mixhi' in op:
                    self.uses |= self.defs
                if 'dpp' in op or 'row_' in mods or 'quad_perm' in mods: self.uses |= self.defs
        elif op.startswith('ds_'):
            self.kind = 'ds'
            if op.startswith(('ds_read', 'ds_bpermute', 'ds_permute', 'ds_swizzle')) or '_rtn_' in op:
                self.defs = R(a[:1]); self.uses = R(a[1:])
                if 'd16' in op: self.uses |= self.defs
            else:
                self.uses = R(a)
        elif op.startswith(('global_', 'buffer_')):
            self.kind = 'vmem'
            lds = ('_lds_' in op) or (' lds' in ' ' + mods)
            if lds:
                self.uses = R(a) | {('s', 124)}
            elif '_load' in op or ('atomic' in op and 'sc0' in mods):
                self.defs = R(a[:1]); self.uses = R(a[1:])
                if 'd16' in op: self.uses |= self.defs
                if 'atomic' in op and op.startswith('buffer_'): self.uses |= self.defs
            else:
                self.uses = R(a)
                if 'x4' in op or 'x3' in op:
                    self.wide_data = R([a[1] if op.startswith('global_') else a[0]])
        elif op.startswith(('s_load', 's_memtime', 's_memrealtime', 's_buffer_load')):
            self.kind = 'smem'; self.defs = R(a[:1]); self.uses = R(a[1:])
        elif op.startswith('s_'):
            self.kind = 'salu'
            if op == 's_nop': self.ws = int(a[0]) + 1
            elif op.startswith(('s_cmp', 's_cbranch', 's_branch', 's_waitcnt', 's_barrier', 's_sleep', 's_setprio', 's_endpgm', 's_bitcmp', 's_setreg', 's_setpc')):
                self.uses = R(a)
            else:
                self.defs = R(a[:1]); self.uses = R(a[1:])
                if 'saveexec' in op: self.defs |= regs_of('exec'); self.uses |= regs_of('exec')
                if op in ('s_addk_i32', 's_mulk_i32'): self.uses |= self.defs
        else:
            raise ValueError(op)
        self.text = op + (' ' + ', '.join(self.args) if self.args else '') + (' ' + mods if mods else '')

INLINE_F = {'0.5', '-0.5', '1.0', '-1.0', '2.0', '-2.0', '4.0', '-4.0'}
def _is_lit(x):
    x = x.strip()
    if regs_of(x) or x in INLINE_F: return False
    try: val = int(x, 0)
    except ValueError: return False
    return not (-16 <= val <= 64)
VOP3_ONLY = ('v_fma_f32', 'v_cvt_pk', 'v_mad_', 'v_lshl_add', 'v_add3', 'v_bfe', 'v_mul_lo', 'v_mul_hi', 'v_and_or', 'v_or3', 'v_lshl_or', 'v_perm', 'v_alignbit',
             'v_pk_', 'v_fma_mix', 'v_lshlrev_b64', 'v_max3', 'v_min3', 'v_add_lshl', 'v_bfi', 'v_bitop3', 'v_readlane', 'v_writelane', 'v_xad', 'v_med3', 'v_fmamk', 'v_fmaak', 'v_dot2_')
def est_size(i):
    if i.kind in ('mfma', 'ds', 'vmem', 'smem'): return 8
    if i.kind == 'salu':
        if i.op.startswith(('s_waitcnt', 's_nop', 's_cbranch', 's_branch', 's_barrier', 's_sleep', 's_setprio', 's_endpgm')): return 4
        return 8 if any(_is_lit(x) for x in i.args) else 4
    if i.op.startswith(VOP3_ONLY) or i.mods: return 8
    if any(x.startswith(('-v', '-s', 'abs', '|')) for x in i.args): return 8
    if len(i.args) >= 3 and not i.args[2].startswith('v'): return 8
    if i.op.startswith('v_cmp') and i.args[0] != 'vcc': return 8
    return 8 if any(_is_lit(x) for x in i.args) else 4

class Asm:
    def __init__(self):
        self.bytes = 0; self.pad_role = None; self.pad_last = 0; self.pads = {}; self.pad_spacing = 832
        self.lines = []
        self.hist = []
        self.vm = []
        self.lg = []
        self.maxv = 0; self.maxs = 0
        self.nins = 0
        self.nopad = False
        self.snap = {}
        self.dead = False
    def raw(self, t): self.lines.append(t)
    def comment(self, t): self.lines.append('    ; ' + t)
    def label(self, name, keep=False):
        if not keep and not self.dead:
            self.settle()
        self.hist = []
        states = self.snap.pop(name, [])
        if not self.dead: states = states + [(self.vm, self.lg)]
        if len(states) == 1:
            self.vm, self.lg = list(states[0][0]), list(states[0][1])
        else:
            same_v = all(x[0] == states[0][0] for x in states); same_l = all(x[1] == states[0][1] for x in states)
            if states and same_v: self.vm = list(states[0][0])
            else:
                un = set().union(*[d for x in states for d in x[0]]) if any(x[0] for x in states) else None
                self.vm = [un] if un is not None else []
            if states and same_l: self.lg = list(states[0][1])
            else:
                anyl = any(x[1] for x in states)
                un = set().union(*[d[0] for x in states for d in x[1]]) if anyl else None
                self.lg = [(un, any(d[1] for x in states for d in x[1]))] if anyl else []
        self.dead = False
        self.lines.append(name + ':')
    def settle(self, keep_hist=False, minus=0):
        need = 0; dist = minus
        for p in reversed(self.hist):
            if p.kind == 'mfma': need = max(need, {4: 8, 8: 12}[p.passes] - dist)
            elif p.kind in ('valu', 'trans'):
                need = max(need, (5 if any(r[0] == 's' and r[1] != 40 for r in p.defs) else (2 if any(r[0] == 'v' for r in p.defs) else 0)) - dist)
            elif p.wide_data: need = max(need, 2 - dist)
            elif ('s', 124) in p.defs: need = max(need, 1 - dist)
            dist += p.ws
            if dist > 20: break
        if need > 0: self._nop(need)
        if not keep_hist: self.hist = []
    def _nop(self, n):
        while n > 0:
            k = min(n, 16)
            i = Ins('s_nop', [k - 1], ''); self.hist.append(i); self.lines.append('    ' + i.text); self.nins += 1; self.bytes += 4
            n -= k
    def pad_begin(self, role):
        self.pad_role = role; self.pads[role] = []; self._pad()
    def pad_end(self): self.pad_role = None
    def _pad(self):
        name = f"Pad_{self.pad_role}_{len(self.pads[self.pad_role])}"
        self.pads[self.pad_role].append(name)
        self.lines.append(name + ':')
        i = Ins('s_cbranch_execz', ['Ltramp'], ''); self.hist.append(i); self.lines.append('    ' + i.text); self.nins += 1
        self.pad_last = self.bytes; self.bytes += 4
    def _emit(self, i):
        self.bytes += est_size(i)
        self.hist.append(i); self.lines.append('    ' + i.text); self.nins += 1
        if len(self.hist) > 64: self.hist = self.hist[-40:]
    def wait(self, vm=None, lgkm=None):
        parts = []
        if vm is not None:
            vm = min(vm, 63); parts.append(f'vmcnt({vm})'); self.vm = self.vm[len(self.vm) - vm:] if vm < len(self.vm) else self.vm
            if vm == 0: self.vm = []
        if lgkm is not None:
            lgkm = min(lgkm, 15); parts.append(f'lgkmcnt({lgkm})'); self.lg = self.lg[len(self.lg) - lgkm:] if lgkm < len(self.lg) else self.lg
            if lgkm == 0: self.lg = []
        self._emit(Ins('s_waitcnt', [' '.join(parts)], ''))
    def forget(self):
        self.vm = []; self.lg = []
    def __call__(self, op, *args, mods=''):
        i = Ins(op, args, mods)
        if self.pad_role and self.bytes - self.pad_last >= self.pad_spacing and not self.nopad and not self.dead: self._pad()
        touch = i.defs | i.uses
        for r in touch:
            if r[0] == 'v': self.maxv = max(self.maxv, r[1])
            elif r[0] == 's' and r[1] < 102: self.maxs = max(self.maxs, r[1])
        wv = wl = None
        for k in range(len(self.vm) - 1, -1, -1):
            if self.vm[k] & touch:
                if i.kind == 'vmem' and 'd16' in op and not (self.vm[k] & (i.uses - i.defs)): continue
                wv = len(self.vm) - 1 - k; break
        for k in range(len(self.lg) - 1, -1, -1):
            if self.lg[k][0] & touch:
                if i.kind == 'ds' and 'd16' in op and not (self.lg[k][0] & (i.uses - i.defs)): continue
                wl = len(self.lg) - 1 - k; break
        if wl is not None and any(x[1] for x in self.lg): wl = 0
        if wv is not None or wl is not None: self.wait(wv, wl)
        need = 0; dist = 0
        isv = i.kind in ('valu', 'trans')
        for p in reversed(self.hist):
            n = 0
            if p.kind in ('valu', 'trans'):
                pv = {r for r in p.defs if r[0] != 's'}; ps = {r for r in p.defs if r[0] == 's'}
                if i.kind == 'mfma' and pv & i.uses: n = max(n, 2)
                if p.kind == 'trans' and i.kind == 'valu' and pv & i.uses: n = max(n, 1)
                if isv and pv & i.uses:
                    if op.startswith(('v_readlane', 'v_readfirstlane')): n = max(n, 1)
                    if op.startswith('v_permlane') or 'row_' in mods or 'quad_perm' in mods or 'dpp' in op: n = max(n, 2)
                if ('op_sel' in p.mods and ('mixhi' in p.op or 'mixlo' in p.op or 'sdwa' in p.op)) and isv and pv & touch: n = max(n, 1)
                if ps & i.uses:
                    if isv: n = max(n, 4 if op.startswith(('v_readlane', 'v_writelane', 'v_div_fmas')) else 2)
                    if i.kind == 'vmem': n = max(n, 5)
                    if i.kind == 'mfma': n = max(n, 4)
            elif p.kind == 'mfma':
                big = {4: 8, 8: 12}[p.passes]
                if i.kind == 'mfma':
                    if p.defs & i.srcAB: n = max(n, big)
                    if p.defs & i.srcC:
                        if not (p.defs == i.srcC and p.op == i.op): n = max(n, big - 2)
                    elif p.defs & i.defs and p.passes != i.passes: n = max(n, big - 2)
                elif i.kind in ('valu', 'trans', 'vmem', 'ds'):
                    if p.defs & touch: n = max(n, big)
                    if isv and p.srcC & i.defs: n = max(n, {4: 3, 8: 7}[p.passes])
            elif p.kind == 'vmem':
                if p.wide_data & i.defs: n = max(n, 2)
            elif p.kind == 'salu':
                if ('s', 124) in p.defs and ('s', 124) in i.uses and i.kind in ('vmem', 'ds'): n = max(n, 1)
            need = max(need, n - dist)
            dist += p.ws
            if dist > 20: break
        if need > 0: self._nop(need)
        if op.startswith(('s_cbranch', 's_branch')):
            self.settle(keep_hist=True, minus=1)
            self.snap.setdefault(str(args[0]), []).append((list(self.vm), list(self.lg)))
        self._emit(i)
        if op in ('s_branch', 's_endpgm', 's_setpc_b64'): self.dead = True
        if i.kind == 'vmem': self.vm.append(set(i.defs))
        elif i.kind == 'ds': self.lg.append((set(i.defs), False))
        elif i.kind == 'smem': self.lg.append((set(i.defs), True))
        return i
    def text(self): return '\n'.join(self.lines) + '\n'

class RegAlloc:
    def __init__(self, start=0, limit=256):
        self.next = start; self.limit = limit; self.free_list = []
    def alloc(self, n=1, align=None):
        if align is None: align = 1 if n == 1 else 2
        b = (self.next + align - 1) // align * align
        self.next = b + n
        assert self.next <= self.limit, f"out of registers ({self.next} > {self.limit})"
        return b
    def mark(self): return self.next
    def release(self, m): self.next = m

def kernel_desc(name, vgpr, sgpr):
    vg = max(8, (vgpr + 3) // 4 * 4)
    return f""".section .rodata,"a"
.p2align 6
.amdhsa_kernel {name}
  .amdhsa_next_free_vgpr {vg}
  .amdhsa_next_free_sgpr {sgpr}
  .amdhsa_accum_offset {vg}
  .amdhsa_group_segment_fixed_size 0
  .amdhsa_float_denorm_mode_32 3
  .amdhsa_kernarg_size 96
  .amdhsa_user_sgpr_count 2
  .amdhsa_user_sgpr_kernarg_segment_ptr 1
  .amdhsa_system_sgpr_workgroup_id_x 1
.end_amdhsa_kernel
.text
"""
import struct
def f2u(x): return struct.unpack('<I', struct.pack('<f', x))[0]
def fl(x): return f"0x{f2u(x):08x}"
```

```python
from asmlib import *
import math
X_, WR_, WI_, Q_, K_, V_, SK_, H_, D_, OUT_, DBG_, WS_ = [f"s[{16+2*i}:{17+2*i}]" for i in range(12)]
WS_T, WS_W, WS_U, WS_Z, WS_F = 0, 0x300000, 0x600000, 0x900000, 0xC00000
TBLK = 20992
L_CNT = 0
L_H = 256
HSZ = 16912
L_U = L_H + 3*HSZ
USZ = 6768
L_RED = L_U + 3*USZ
L_P1 = L_RED + 3*4096
L_XR = L_P1
L_EI = L_XR + 8*3072
L_KI = L_P1
L_VI = L_KI + 17*1296
P1SZ = max(8*3072 + 8*2640 + 1024, 33*1296)
L_A2 = L_P1 + P1SZ
LDS_TOTAL = L_A2 + 32768
assert LDS_TOTAL <= 163840, LDS_TOTAL
for x in (L_H, L_U, L_RED, L_P1, L_EI, L_VI, L_A2): assert x % 16 == 0
assert L_XR % 256 == 0 or True

_lbl = [0]
def newlabel(p='L'):
    _lbl[0] += 1; return f"{p}{_lbl[0]}"

STAMPS = [False]
WS_ST = 0xD00000
def stamp(a, i):
    if STAMPS[0]: a.raw(f"    s_memrealtime s[{64+2*i}:{65+2*i}]")
def stamp_flush(a, kern, waitmem=True):
    if not STAMPS[0]: return
    if waitmem: a.wait(vm=0); stamp(a, 15)
    a.wait(lgkm=0)
    a('s_mul_i32', 's8', 's2', 12); a('s_add_u32', 's8', 's8', 's3'); a('s_add_u32', 's8', 's8', kern*256*12)
    a('s_lshl_b32', 's8', 's8', 6); a('s_add_u32', 's8', 's8', WS_ST)
    a('s_mov_b64', 'exec', 1); a('v_mov_b32', 'v1', 's8')
    for i in range(16): a('v_mov_b32', v(4+i), s(64+2*i))
    for i in range(4): a('global_store_dwordx4', 'v1', v(4+4*i, 4), WS_, mods=f'offset:{16*i}')

def prologue(a, name, endlabel):
    a.raw(f".globl {name}\n.p2align 8\n.type {name},@function\n{name}:")
    a.dead = False
    a('s_cmp_ge_u32', 's2', 256); a('s_cbranch_scc1', endlabel)
    if STAMPS[0]:
        for i in range(1, 16): a('s_mov_b32', s(64+2*i), 0)
    stamp(a, 0)
    a('s_load_dwordx16', 's[16:31]', 's[0:1]', 0)
    a('s_load_dwordx8', 's[32:39]', 's[0:1]', 64)
    a('v_lshrrev_b32', 'v1', 6, 'v0')
    a('v_and_b32', 'v0', 63, 'v0')
    a('v_readfirstlane_b32', 's3', 'v1')
    a('s_and_b32', 's4', 's2', 7)
    a('s_bfe_u32', 's5', 's2', (1 << 16) | 3)
    a('s_lshr_b32', 's6', 's2', 4)
    a('s_lshl3_add_u32', 's7', 's6', 's4')
    a('v_lshlrev_b32', 'v1', 2, 'v0'); a('v_mov_b32', 'v2', 0)
    a('ds_write_b32', 'v1', 'v2', mods=f'offset:{L_CNT}')
    a.wait(lgkm=0)
    stamp(a, 1)
    a('s_barrier')
    stamp(a, 2)

def subbar(a, cid, n, va, vb, vm=False):
    a('v_mov_b32', v(va), L_CNT + 4*cid); a('v_mov_b32', v(vb), 1)
    a.wait(vm=0 if vm else None, lgkm=0)
    a('s_mov_b64', 'exec', 1)
    a('ds_add_rtn_u32', v(vb), v(va), v(vb))
    a('s_mov_b64', 'exec', -1)
    a('v_readfirstlane_b32', 's40', v(vb))
    done = newlabel('Lbd'); loop = newlabel('Lbl')
    a('s_cmp_ge_u32', 's40', n - 1); a('s_cbranch_scc1', done)
    a.label(loop)
    a('ds_read_b32', v(vb), v(va))
    a('v_readfirstlane_b32', 's40', v(vb))
    a('s_cmp_lt_u32', 's40', n); a('s_cbranch_scc1', loop)
    a.label(done)

def arrive(a, cid, va, vb, vm=False):
    a('v_mov_b32', v(va), L_CNT + 4*cid); a('v_mov_b32', v(vb), 1)
    a.wait(vm=0 if vm else None, lgkm=0)
    a('s_mov_b64', 'exec', 1)
    a('ds_add_u32', v(va), v(vb))
    a('s_mov_b64', 'exec', -1)

def await_cnt(a, cid, n, va, vb):
    a('v_mov_b32', v(va), L_CNT + 4*cid)
    loop = newlabel('Lbl')
    a.label(loop)
    a('ds_read_b32', v(vb), v(va))
    a('v_readfirstlane_b32', 's40', v(vb))
    a('s_cmp_lt_u32', 's40', n); a('s_cbranch_scc1', loop)
    a.label(newlabel('Lbd'))

def sincos(a, ang, c, s_):
    a('v_cos_f32', v(c), v(ang)); a('v_sin_f32', v(s_), v(ang))

def k1_regs(a, R, vka):
    t = R.alloc(); u = R.alloc(); out = [R.alloc() for _ in range(3)]
    a('v_mul_u32_u24', v(t), 65, v(vka))
    a('v_mul_u32_u24', v(u), 205, v(t)); a('v_lshrrev_b32', v(u), 14, v(u))
    a('v_mul_u32_u24', v(u), 80, v(u)); a('v_sub_u32', v(t), v(t), v(u))
    for k5 in range(3):
        if k5:
            a('v_add_u32', v(t), 16, v(t)); a('v_subrev_u32', v(u), 80, v(t)); a('v_min_u32', v(t), v(t), v(u))
        a('v_cvt_f32_u32', v(out[k5]), v(t)); a('v_mul_f32', v(out[k5]), fl(1/640), v(out[k5]))
    return out
for _ka in range(16): assert (65*_ka) - ((65*_ka*205) >> 14)*80 == (65*_ka) % 80

def row_offsets(a, R, sbase, pitch_rows):
    o = [R.alloc() for _ in range(3)]; t = R.alloc()
    a('v_lshlrev_b32', v(t), 4, 'v0')
    a('v_add_u32', v(o[0]), sbase, v(t))
    a('v_add_u32', v(o[1]), pitch_rows - 24*16 - 1024, v(o[0]))
    a('v_cmp_gt_u32', 'vcc', 24, 'v0')
    a('v_cndmask_b32', v(o[1]), v(o[1]), v(o[0]), 'vcc')
    a('v_min_u32', v(t), 39*16, v(t))
    a('v_add_u32', v(t), pitch_rows + 40*16 - 2048, v(t))
    a('v_add_u32', v(o[2]), sbase, v(t))
    return o

def d1_addrs(a, R, va, vbase):
    t = R.alloc(); u = R.alloc(); out = [R.alloc() for _ in range(5)]
    a('v_mul_u32_u24', v(t), 5, v(va))
    for e in range(5):
        if e:
            a('v_add_u32', v(t), 16, v(t)); a('v_subrev_u32', v(u), 80, v(t)); a('v_min_u32', v(t), v(t), v(u))
        a('v_lshl_add_u32', v(out[e]), v(t), 4, v(vbase))
    return out

def ei_addrs(a, R, pitch, dup):
    a0 = R.alloc(); a1 = R.alloc(); t = R.alloc(); u = R.alloc()
    a('s_mul_i32', 's8', 's3', pitch); a('s_add_u32', 's8', 's8', L_EI)
    a('v_lshl_add_u32', v(a0), 'v0', 4, 's8')
    a('v_and_b32', v(t), 15, 'v0'); a('v_lshrrev_b32', v(u), 4, 'v0')
    a('v_cmp_gt_u32', 'vcc', 9, v(t))
    if dup:
        a('v_subrev_u32', v(a1), 8, v(t)); a('v_cndmask_b32', v(t), v(a1), v(t), 'vcc')
    a('v_mad_u32_u24', v(t), v(u), 9, v(t))
    a('s_add_u32', 's8', 's8', 2048)
    a('v_lshl_add_u32', v(a1), v(t), 4, 's8')
    if not dup:
        a('v_lshlrev_b32', v(t), 4, 'v0'); a('v_add_u32', v(t), L_EI + 8*2640, v(t))
        a('v_cndmask_b32', v(a1), v(t), v(a1), 'vcc')
    return a0, a1

def role_A1(a, stflags=''):
    R = RegAlloc(1, 168)
    a('s_lshl_b32', 's9', 's3', 7); a('s_add_u32', 's9', 's9', 's7')
    a('s_mul_i32', 's10', 's9', 1280)
    vo = row_offsets(a, R, 's10', 1024*1280)
    a('s_mul_i32', 's11', 's3', 3072); a('s_add_u32', 's11', 's11', L_XR)
    a('s_mov_b32', 'm0', 's11')
    for t in range(3): a('global_load_lds_dwordx4', v(vo[t]), X_, mods=f'offset:{1024*t}')
    va = R.alloc(); vb = R.alloc(); t = R.alloc()
    a('v_lshrrev_b32', v(va), 2, 'v0')
    a('v_bfe_u32', v(vb), 'v0', 1, 1); a('v_mul_u32_u24', v(vb), 1408, v(vb))
    a('v_and_b32', v(t), 1, 'v0'); a('v_lshl_add_u32', v(vb), v(t), 3, v(vb)); a('v_add_u32', v(vb), 's11', v(vb))
    tra = d1_addrs(a, R, va, vb)
    ka = R.alloc(); q = R.alloc(); kaf = R.alloc(); qf = R.alloc(); bf = R.alloc()
    a('v_and_b32', v(ka), 15, 'v0'); a('v_lshrrev_b32', v(q), 4, 'v0')
    a('v_cvt_f32_u32', v(kaf), v(ka)); a('v_cvt_f32_u32', v(qf), v(q))
    a('v_and_b32', v(bf), 1, v(q)); a('v_lshlrev_b32', v(bf), 2, v(bf)); a('v_cvt_f32_u32', v(bf), v(bf))
    SEQ = [1, 2, 4, 1, 3, 4, 0, 0]
    Hs = R.alloc(16); Gs = R.alloc(16)
    ang = [R.alloc() for _ in range(4)]; an2 = [R.alloc() for _ in range(4)]
    cs = [R.alloc() for _ in range(8)]
    a('v_mul_f32', v(t), 0.5, v(kaf)); a('v_mul_f32', v(t), 0.5, v(t))
    a('v_mul_f32', v(ang[0]), v(t), v(qf))
    for al in range(1, 4): a('v_fmamk_f32', v(ang[al]), v(kaf), fl(al/16), v(ang[0]))
    for tt in range(5):
        src = ang
        if tt:
            for al in range(4): a('v_add_f32', v(an2[al]), fl(tt/5), v(ang[al]))
            src = an2
        for al in range(4): sincos(a, src[al], cs[al], cs[4+al])
        for pos in [i for i, x in enumerate(SEQ) if x == tt]:
            for h in range(2):
                a('v_cvt_pk_bf16_f32', v(Hs + 2*pos + h), v(cs[2*h]), v(cs[2*h+1]))
                a('v_cvt_pk_bf16_f32', v(Gs + 2*pos + h), '-' + v(cs[4+2*h]), '-' + v(cs[4+2*h+1]))
    k1 = k1_regs(a, R, ka)
    TC = R.alloc(12); TS = R.alloc(12)
    for k5 in range(3):
        a('v_mul_f32', v(ang[0]), v(k1[k5]), v(bf))
        for r in range(1, 4): a('v_add_f32', v(ang[r]), v(ang[r-1]), v(k1[k5]))
        for r in range(4): sincos(a, ang[r], TC + 4*k5 + r, TS + 4*k5 + r)
    Mre = R.alloc(4); Mim = R.alloc(4)
    u2 = R.alloc(); f1f = R.alloc()
    a('v_and_b32', v(u2), 7, 'v0'); a('v_cvt_f32_u32', v(u2), v(u2)); a('v_mul_f32', v(u2), fl(1/8), v(u2))
    a('v_bfe_u32', v(f1f), 'v0', 3, 1)
    a('v_lshrrev_b32', v(t), 5, 'v0'); a('v_lshl_add_u32', v(t), v(t), 10, 's9')
    a('v_mul_u32_u24', v(t), v(t), v(f1f)); a('v_cvt_f32_u32', v(t), v(t)); a('v_mul_f32', v(t), fl(1/2048), v(t))
    a('v_fma_f32', v(ang[0]), v(u2), v(bf), v(t))
    for r in range(1, 4): a('v_add_f32', v(ang[r]), v(ang[r-1]), v(u2))
    for r in range(4): sincos(a, ang[r], cs[r], cs[4+r])
    for r in range(4):
        a('v_cvt_pk_bf16_f32', v(Mre + r), v(cs[r]), v(cs[4+r]))
        a('v_cvt_pk_bf16_f32', v(Mim + r), '-' + v(cs[4+r]), v(cs[r]))
    ea0, ea1 = ei_addrs(a, R, 2624, dup=False)
    tr2 = R.alloc(); go = R.alloc()
    a('v_bfe_u32', v(tr2), 'v0', 2, 2); a('v_mul_u32_u24', v(tr2), 2624, v(tr2))
    a('v_and_b32', v(t), 3, 'v0'); a('v_lshl_add_u32', v(tr2), v(t), 3, v(tr2))
    a('v_lshl_add_u32', v(tr2), v(q), 5, v(tr2))
    a('s_lshl_b32', 's8', 's3', 7); a('s_add_u32', 's8', 's8', L_EI); a('v_add_u32', v(tr2), 's8', v(tr2))
    a('s_mul_i32', 's8', 's7', TBLK); a('s_lshl_b32', 's12', 's3', 10); a('s_add_u32', 's8', 's8', 's12')
    a('v_lshl_add_u32', v(go), 'v0', 4, 's8')
    Dr = R.alloc(10)
    stamp(a, 3)
    a.wait(vm=0)
    stamp(a, 4)
    for e in (0, 1, 2, 3, 4): a('ds_read_b64_tr_b16', v(Dr + 2*((e + 4) % 5), 2), v(tra[e]))
    P0 = R.alloc(8); A1 = R.alloc(24); PK = R.alloc(12)
    a('v_mfma_f32_16x16x16_bf16', v(P0, 4), v(Dr+8, 2), v(Hs+12, 2), 0)
    a('v_mfma_f32_16x16x16_bf16', v(P0+4, 4), v(Dr+8, 2), v(Gs+12, 2), 0)
    PAIR = {1: (0, 4), 2: (1, 3), 0: (6, 6)}
    for k5 in (1, 2, 0):
        for ri, M in enumerate((Hs, Gs)):
            a('v_mfma_f32_16x16x32_bf16', v(A1+8*k5+4*ri, 4), v(Dr, 4), v(M + 2*PAIR[k5][0], 4), v(P0+4*ri, 4))
        for ri, M in enumerate((Hs, Gs)):
            a('v_mfma_f32_16x16x32_bf16', v(A1+8*k5+4*ri, 4), v(Dr+4, 4), v(M + 2*PAIR[k5][1], 4), v(A1+8*k5+4*ri, 4))
    A2 = Hs; assert Gs == Hs + 16
    for k5 in (1, 2, 0):
        for r in range(4):
            re, im, c, s_ = A1+8*k5+r, A1+8*k5+4+r, TC+4*k5+r, TS+4*k5+r
            a('v_mul_f32', v(cs[r]), v(re), v(c)); a('v_mul_f32', v(cs[4+r]), v(im), v(c))
            a('v_fmac_f32', v(cs[r]), v(im), v(s_)); a('v_fma_f32', v(cs[4+r]), '-' + v(re), v(s_), v(cs[4+r]))
            a('v_cvt_pk_bf16_f32', v(PK+4*k5+r), v(cs[r]), v(cs[4+r]))
        a('v_mfma_f32_16x16x32_bf16', v(A2+8*k5, 4), v(Mre, 4), v(PK+4*k5, 4), 0)
        a('v_mfma_f32_16x16x32_bf16', v(A2+8*k5+4, 4), v(Mim, 4), v(PK+4*k5, 4), 0)
    for k5 in (1, 2, 0):
        for r in range(4): a('v_cvt_pk_bf16_f32', v(PK+4*k5+r), v(A2+8*k5+r), v(A2+8*k5+4+r))
        if k5: a('ds_write_b128', v(ea0), v(PK+4*k5, 4), mods=f'offset:{1024*(k5-1)}')
        else: a('ds_write_b128', v(ea1), v(PK, 4))
    stamp(a, 5)
    subbar(a, 0, 8, cs[0], cs[1])
    stamp(a, 6)
    O = A1
    for it in range(3):
        if it == 2:
            skip = newlabel('La1s'); a('s_cmp_gt_u32', 's3', 4); a('s_cbranch_scc1', skip)
        a('ds_read_b64_tr_b16', v(O+4*it, 2), v(tr2), mods=f'offset:{1024*it}')
        a('ds_read_b64_tr_b16', v(O+4*it+2, 2), v(tr2), mods=f'offset:{1024*it + 4*2624}')
        if it == 1:
            a('global_store_dwordx4', v(go), v(O, 4), WS_, mods=stflags)
            a('v_add_u32', v(go), 8192, v(go))
            a('global_store_dwordx4', v(go), v(O+4, 4), WS_, mods=stflags)
            a('v_add_u32', v(go), 8192, v(go))
    a('s_cmp_lt_u32', 's3', 4); a('s_cselect_b32', 'exec_hi', -1, 0)
    a('global_store_dwordx4', v(go), v(O+8, 4), WS_, mods=stflags)
    a('s_mov_b64', 'exec', -1)
    a.label(skip)
    return R.next

def srd(a, sd, base_lo, base_hi, nbytes):
    a('s_mov_b32', s(sd), base_lo); a('s_and_b32', s(sd+1), base_hi, 0xffff)
    a('s_mov_b32', s(sd+2), nbytes); a('s_mov_b32', s(sd+3), 0x20000)

def role_W1(a, stflags=''):
    R = RegAlloc(1, 168)
    WB = 2048*321*2
    srd(a, 44, 's18', 's19', WB); srd(a, 48, 's20', 's21', WB)
    a('s_sub_u32', 's9', 's3', 8)
    vo = R.alloc(); t = R.alloc(); u = R.alloc()
    a('v_lshlrev_b32', v(vo), 4, 'v0')
    a('s_mul_i32', 's10', 's7', 1284)
    a('s_mul_i32', 's11', 's9', 2*256*642); a('s_add_u32', 's10', 's10', 's11')
    a('s_mul_i32', 's11', 's9', 2*1296); a('s_add_u32', 's11', 's11', L_A2 + 1296)
    def slot(soff, m0v_s, add):
        for pl, sd in enumerate((44, 48)):
            a('s_add_u32', 'm0', m0v_s, add + pl*11664)
            a('buffer_load_dwordx4', v(vo), s(sd, 4), soff, mods='offen lds')
            a('s_mov_b64', 'exec', 0x1ffff)
            a('buffer_load_dwordx4', v(vo), s(sd, 4), soff, mods='offen offset:1024 lds')
            a('s_mov_b64', 'exec', -1)
    slot('s10', 's11', 0)
    a('s_add_u32', 's10', 's10', 256*642)
    slot('s10', 's11', 1296)
    sk = newlabel('Lw1s')
    a('s_cmp_lg_u32', 's7', 127); a('s_cbranch_scc1', sk)
    a('s_cmp_lg_u32', 's9', 3); a('s_cbranch_scc1', sk)
    a('s_mov_b32', 's11', L_A2)
    slot('s10', 's11', 0)
    a.label(sk)
    k0 = R.alloc(); vc = R.alloc(); go = R.alloc(); go2 = R.alloc()
    a('v_lshrrev_b32', v(t), 3, 'v0')
    a('v_mul_u32_u24', v(k0), 65, v(t))
    a('v_mul_u32_u24', v(u), 205, v(k0)); a('v_lshrrev_b32', v(u), 14, v(u))
    a('v_mul_u32_u24', v(u), 80, v(u)); a('v_sub_u32', v(k0), v(k0), v(u))
    a('s_and_b32', 's12', 's9', 1)
    a('s_lshr_b32', 's13', 's9', 1)
    a('s_cmp_eq_u32', 's12', 0)
    a('s_cselect_b32', 's14', 2, -2)
    a('s_cselect_b32', 's15', 0, 640)
    a('s_mul_i32', 's8', 's13', 642); a('s_add_u32', 's15', 's15', 's8')
    a('s_add_u32', 's15', 's15', L_A2 + 1296)
    a('s_cmp_eq_u32', 's9', 3); a('s_cselect_b32', 's8', 1, 0)
    a('s_add_u32', 's8', 's8', 's7')
    a('s_cmp_eq_u32', 's8', 128); a('s_cselect_b32', 's41', 1296, 0); a('s_sub_u32', 's15', 's15', 's41')
    a('s_and_b32', 's8', 's8', 127)
    a('v_bfe_u32', v(t), 'v0', 1, 2); a('v_mul_u32_u24', v(t), 80, v(t))
    a('v_and_b32', v(u), 1, 'v0'); a('v_mul_u32_u24', v(u), 11664, v(u)); a('v_add_u32', v(u), 's15', v(u))
    a('v_mad_i32_i24', v(vc), v(t), 's14', v(u))
    a('s_mul_i32', 's8', 's8', TBLK); a('s_add_u32', 's8', 's8', WS_W)
    a('s_lshl_b32', 's41', 's9', 11); a('s_add_u32', 's41', 's41', 's8')
    a('v_add_u32', v(go), 's41', v(vo))
    a('s_mul_i32', 's41', 's9', 9*128); a('s_add_u32', 's41', 's41', 's8'); a('s_add_u32', 's41', 's41', 128*128)
    a('v_add_u32', v(go2), 's41', v(vo))
    ads = [R.alloc() for _ in range(6)]
    for it, C in enumerate((16, 56, 32, 72, 0, 40)):
        if C:
            a('v_add_u32', v(t), C, v(k0)); a('v_subrev_u32', v(u), 80, v(t)); a('v_min_u32', v(t), v(t), v(u))
            a('v_mad_i32_i24', v(ads[it]), v(t), 's14', v(vc))
        else:
            a('v_mad_i32_i24', v(ads[it]), v(k0), 's14', v(vc))
    O = R.alloc(24); Hh = R.alloc(24)
    stamp(a, 3)
    subbar(a, 1, 4, t, u, vm=True)
    stamp(a, 4)
    def comb(it):
        for k in range(4): a('v_lshl_or_b32', v(O+4*it+k), v(Hh+4*it+k), 16, v(O+4*it+k))
    for it in range(6):
        for i in range(8):
            a('ds_read_u16', v((Hh if i & 1 else O) + 4*it + (i >> 1)), v(ads[it]), mods=f'offset:{1296*i}')
        if it: comb(it - 1)
        if it == 2:
            for k in range(2): a('global_store_dwordx4', v(go), v(O+4*k, 4), WS_, mods=f'offset:{1024*k} {stflags}')
            a('v_add_u32', v(go), 8192, v(go))
        if it == 4:
            for k in range(2): a('global_store_dwordx4', v(go), v(O+8+4*k, 4), WS_, mods=f'offset:{1024*k} {stflags}')
    comb(5)
    a('global_store_dwordx4', v(go2), v(O+16, 4), WS_, mods=stflags)
    a('s_mov_b64', 'exec', 0xff)
    a('global_store_dwordx4', v(go2), v(O+20, 4), WS_, mods=f'offset:1024 {stflags}')
    a('s_mov_b64', 'exec', -1)
    return R.next

def role_A2(a, ldflags='', stflags=''):
    R = RegAlloc(1, 168)
    t = R.alloc(); u = R.alloc(); go = R.alloc(4); lw = R.alloc(); lr0 = R.alloc(); lr1 = R.alloc()
    a('s_sub_u32', 's10', 's3', 8)
    a('v_lshrrev_b32', v(t), 3, 'v0'); a('v_lshl_add_u32', v(t), 's10', 3, v(t))
    a('s_mov_b32', 's8', TBLK); a('v_mul_lo_u32', v(go), v(t), 's8')
    a('v_and_b32', v(u), 7, 'v0'); a('v_lshl_add_u32', v(go), v(u), 4, v(go))
    a('s_lshl_b32', 's8', 's9', 7); a('v_add_u32', v(go), 's8', v(go))
    for it in range(1, 4): a('v_add_u32', v(go+it), 32*TBLK*it, v(go))
    ST = R.alloc(32); SW = ST + 16
    a('s_add_u32', 's12', 's38', WS_W); a('s_addc_u32', 's13', 's39', 0)
    for it in range(4): a('global_load_dwordx4', v(ST+4*it, 4), v(go+it), WS_, mods=ldflags)
    for it in range(4): a('global_load_dwordx4', v(SW+4*it, 4), v(go+it), 's[12:13]', mods=ldflags)
    def swz(dst, line, piece, tmp):
        a('v_lshrrev_b32', v(dst), 1, v(line)); a('v_lshlrev_b32', v(tmp), 2, v(line)); a('v_xor_b32', v(dst), v(dst), v(tmp))
        a('v_xor_b32', v(dst), piece, v(dst)); a('v_and_b32', v(dst), 7, v(dst)); a('v_lshlrev_b32', v(dst), 4, v(dst))
        a('v_lshl_add_u32', v(dst), v(line), 7, v(dst)); a('v_add_u32', v(dst), L_A2, v(dst))
    t2 = R.alloc()
    swz(lw, t, v(u), t2)
    o = R.alloc(); h = R.alloc(); of = R.alloc(); hf = R.alloc()
    a('v_bfe_u32', v(o), 'v0', 3, 2); a('v_and_b32', v(t), 3, 'v0'); a('v_lshl_add_u32', v(o), v(o), 2, v(t))
    a('v_bfe_u32', v(t), 'v0', 2, 1); a('v_lshl_add_u32', v(o), v(o), 1, v(t))
    a('v_lshrrev_b32', v(h), 5, 'v0')
    a('v_lshl_add_u32', v(t), v(h), 5, v(o))
    a('s_lshl_b32', 's8', 's10', 1)
    swz(lr0, t, 's8', t2); a('v_xor_b32', v(lr1), 16, v(lr0))
    a('s_sub_u32', 's8', 's9', 128); a('s_mul_i32', 's8', 's8', 57); a('s_lshr_b32', 's8', 's8', 9)
    a('s_lshr_b32', 's11', 's9', 4); a('s_cmp_lt_u32', 's9', 128); a('s_cselect_b32', 's8', 's11', 's8')
    a('s_and_b32', 's8', 's8', 1); a('s_cmp_eq_u32', 's8', 0)
    a('s_cselect_b32', 's14', 0, 0x80008000); a('s_lshl_b32', 's11', 's8', 31); a('s_or_b32', 's11', 's11', fl(1/32))
    a('v_cvt_f32_u32', v(of), v(o)); a('v_mul_f32', v(of), 's11', v(of))
    a('v_cvt_f32_u32', v(hf), v(h)); a('v_mul_f32', v(hf), v(hf), v(of))
    C = R.alloc(8); Sm = R.alloc(8); N = R.alloc(8); TC = R.alloc(16); TS = R.alloc(16)
    X = R.alloc(8)
    for kap in range(2):
        for jj in range(4):
            for e in range(2):
                idx = 2*kap + 4*(2*jj + e)
                if idx: a('v_fmamk_f32', v(X+e), v(of), fl(float(idx)), v(hf)); src = X+e
                else: src = hf
                sincos(a, src, X+2+e, X+4+e)
                vv = 2*(2*jj + e) + kap
                a('v_mul_f32', v(X+6+e), fl(1/32), v(src))
                sincos(a, X+6+e, TC+vv, TS+vv)
            a('v_cvt_pk_bf16_f32', v(C+4*kap+jj), v(X+2), v(X+3))
            a('v_cvt_pk_bf16_f32', v(Sm+4*kap+jj), v(X+4), v(X+5))
            a('v_cvt_pk_bf16_f32', v(N+4*kap+jj), '-' + v(X+4), '-' + v(X+5))
    stamp(a, 3)
    for it in range(4): a('ds_write_b128', v(lw), v(ST+4*it, 4), mods=f'offset:{4096*it}')
    for it in range(4): a('ds_write_b128', v(lw), v(SW+4*it, 4), mods=f'offset:{16384+4096*it}')
    stamp(a, 4)
    subbar(a, 2, 4, t, u)
    stamp(a, 5)
    Z = R.alloc(16); Wp = R.alloc(16)
    for kap in range(2):
        for ri, ad in enumerate((lr0, lr1)): a('ds_read_b128', v(Z+8*kap+4*ri, 4), v(ad), mods=f'offset:{8192*kap}')
    for kap in range(2):
        for ri, ad in enumerate((lr0, lr1)): a('ds_read_b128', v(Wp+8*kap+4*ri, 4), v(ad), mods=f'offset:{16384+8192*kap}')
    ACC = [ST, None]; ACC[1] = None
    AR, AI = ST, ST+16
    BR = None
    MF = 'v_mfma_f32_32x32x16_bf16'
    def mm(kap, dataA, inv, dR, dI):
        zr, zi = v(Z+8*kap, 4), v(Z+8*kap+4, 4)
        c, p, n = v(C+4*kap, 4), v(Sm+4*kap, 4), v(N+4*kap, 4)
        if inv: p, n = n, p
        for k, (d, z, m) in enumerate(((dR, zr, c), (dI, zi, c), (dR, zi, p), (dI, zr, n))):
            cin = 0 if (kap == 0 and k < 2) else v(d, 16)
            if dataA: a(MF, v(d, 16), z, m, cin)
            else: a(MF, v(d, 16), m, z, cin)
    A2R = R.alloc(32) if R.next + 32 <= 168 else None
    bufs = [(AR, AI), (A2R, A2R+16)] if A2R else [(AR, AI), (AR, AI)]
    mm(0, True, False, *bufs[0]); mm(1, True, False, *bufs[0])
    for i in range(8): a('v_xor_b32', v(Wp + (i >> 2)*8 + 4 + (i & 3)), 's14', v(Wp + (i >> 2)*8 + 4 + (i & 3)))
    msk = t2; a('v_mov_b32', v(msk), 0xffff0000)
    for st in range(3):
        sR, sI = bufs[st & 1]; dR, dI = bufs[(st + 1) & 1]
        for kap in range(2):
            for jj in range(4):
                for e in range(2):
                    vv = 2*(2*jj + e) + kap
                    re, im = sR+vv, sI+vv
                    if st == 1:
                        c, s_ = X+4, X+5
                        for dst, pl in ((c, 0), (s_, 1)):
                            src = Wp + 8*kap + 4*pl + jj
                            if e: a('v_and_b32', v(dst), v(msk), v(src))
                            else: a('v_lshlrev_b32', v(dst), 16, v(src))
                    else: c, s_ = TC+vv, TS+vv
                    a('v_mul_f32', v(X+e), v(re), v(c)); a('v_mul_f32', v(X+2+e), v(im), v(c))
                    if st == 0:
                        a('v_fmac_f32', v(X+e), v(im), v(s_)); a('v_fma_f32', v(X+2+e), '-' + v(re), v(s_), v(X+2+e))
                    else:
                        a('v_fma_f32', v(X+e), '-' + v(im), v(s_), v(X+e)); a('v_fmac_f32', v(X+2+e), v(re), v(s_))
                a('v_cvt_pk_bf16_f32', v(Z+8*kap+jj), v(X), v(X+1))
                a('v_cvt_pk_bf16_f32', v(Z+8*kap+4+jj), v(X+2), v(X+3))
            if A2R or kap == 1:
                if not A2R: mm(0, st == 1, st >= 1, dR, dI)
                mm(kap, st == 1, st >= 1, dR, dI)
    sR, sI = bufs[1]
    for kap in range(2):
        for ih, ad in enumerate((lr0, lr1)):
            for x in range(4):
                vv = 2*(4*ih + x) + kap
                a('v_cvt_pk_bf16_f32', v(Z+8*kap+4*ih+x), v(sR+vv), v(sI+vv))
            a('ds_write_b128', v(ad), v(Z+8*kap+4*ih, 4), mods=f'offset:{8192*kap}')
    stamp(a, 6)
    subbar(a, 3, 4, t, u)
    stamp(a, 7)
    for it in range(4): a('ds_read_b128', v(Wp+4*it, 4), v(lw), mods=f'offset:{4096*it}')
    for it in range(4): a('global_store_dwordx4', v(go+it), v(Wp+4*it, 4), WS_, mods=stflags)
    return R.next

def role_A3(a, ldflags=''):
    R = RegAlloc(1, 168)
    PIT = 2640
    t = R.alloc(); u = R.alloc(); go = R.alloc(); lw = R.alloc()
    IN = R.alloc(12)
    a('s_mul_i32', 's8', 's7', TBLK); a('s_lshl_b32', 's12', 's3', 10); a('s_add_u32', 's8', 's8', 's12')
    a('v_lshl_add_u32', v(go), 'v0', 4, 's8')
    a('global_load_dwordx4', v(IN, 4), v(go), WS_, mods=ldflags)
    a('v_add_u32', v(t), 8192, v(go))
    a('global_load_dwordx4', v(IN+4, 4), v(t), WS_, mods=ldflags)
    a('s_mul_i32', 's8', 's7', TBLK); a('s_add_u32', 's8', 's8', TBLK - 16)
    a('v_add_u32', v(t), 16384, v(go)); a('v_min_u32', v(t), 's8', v(t))
    a('global_load_dwordx4', v(IN+8, 4), v(t), WS_, mods=ldflags)
    a('v_and_b32', v(t), 1, 'v0'); a('v_mul_u32_u24', v(lw), 4*PIT, v(t))
    a('v_lshrrev_b32', v(t), 1, 'v0'); a('v_lshl_add_u32', v(lw), v(t), 2, v(lw))
    a('s_lshl_b32', 's8', 's3', 7); a('s_add_u32', 's8', 's8', L_EI); a('v_add_u32', v(lw), 's8', v(lw))
    ea0, ea1 = ei_addrs(a, R, PIT, dup=True)
    a('s_lshl_b32', 's9', 's3', 7); a('s_add_u32', 's9', 's9', 's7')
    a('s_mul_i32', 's10', 's9', 2560)
    vo = row_offsets(a, R, 's10', 1024*2560)
    n = R.alloc(); q = R.alloc(); nf = R.alloc(); qf = R.alloc(); bf = R.alloc(); k2f = R.alloc()
    a('v_and_b32', v(n), 15, 'v0'); a('v_lshrrev_b32', v(q), 4, 'v0')
    a('v_cvt_f32_u32', v(nf), v(n)); a('v_cvt_f32_u32', v(qf), v(q))
    a('v_and_b32', v(bf), 7, 'v0'); a('v_cvt_f32_u32', v(bf), v(bf))
    ang = [R.alloc() for _ in range(4)]; an2 = [R.alloc() for _ in range(4)]; cs = [R.alloc() for _ in range(8)]
    Mre = R.alloc(4); Mim = R.alloc(4); u2 = R.alloc()
    a('v_mul_f32', v(u2), fl(1/8), v(bf))
    a('v_and_b32', v(k2f), 1, v(q)); a('v_lshlrev_b32', v(k2f), 2, v(k2f)); a('v_cvt_f32_u32', v(k2f), v(k2f))
    a('v_bfe_u32', v(t), 'v0', 3, 1); a('v_lshl_add_u32', v(t), v(t), 10, 's9')
    a('v_lshrrev_b32', v(u), 5, 'v0'); a('v_mul_u32_u24', v(t), v(t), v(u))
    a('v_cvt_f32_u32', v(t), v(t)); a('v_mul_f32', v(t), fl(1/2048), v(t))
    a('v_fma_f32', v(ang[0]), v(u2), v(k2f), v(t))
    for r in range(1, 4): a('v_add_f32', v(ang[r]), v(ang[r-1]), v(u2))
    for r in range(4): sincos(a, ang[r], cs[r], cs[4+r])
    for r in range(4):
        a('v_cvt_pk_bf16_f32', v(Mre+r), v(cs[r]), '-' + v(cs[4+r]))
        a('v_cvt_pk_bf16_f32', v(Mim+r), v(cs[4+r]), v(cs[r]))
    TC = R.alloc(12); TS = R.alloc(12); kar = R.alloc(); wt = R.alloc()
    NRM = 1.0/(2048*640)
    for r in range(4):
        mk = R.mark()
        a('v_lshl_add_u32', v(kar), v(q), 2, r)
        k1 = k1_regs(a, R, kar)
        for k5 in range(3):
            a('v_mul_f32', v(k1[k5]), v(k1[k5]), v(bf))
            sincos(a, k1[k5], TC+4*k5+r, TS+4*k5+r)
        a('v_mov_b32', v(wt), fl(2*NRM))
        for k5 in (1, 2):
            a('v_mul_f32', v(TC+4*k5+r), v(wt), v(TC+4*k5+r)); a('v_mul_f32', v(TS+4*k5+r), v(wt), v(TS+4*k5+r))
        a('v_cmp_gt_u32', 'vcc', 9, v(kar)); a('v_cndmask_b32', v(wt), 0, v(wt), 'vcc')
        if r == 0:
            a('v_and_b32', v(t), 7, v(kar)); a('v_cmp_eq_u32', 'vcc', 0, v(t))
            a('v_mov_b32', v(t), fl(NRM)); a('v_cndmask_b32', v(wt), v(wt), v(t), 'vcc')
        a('v_mul_f32', v(TC+r), v(wt), v(TC+r)); a('v_mul_f32', v(TS+r), v(wt), v(TS+r))
        R.release(mk)
    F = R.alloc(20)
    a('v_mul_f32', v(t), 0.5, v(nf)); a('v_mul_f32', v(t), 0.5, v(t))
    a('v_mul_f32', v(ang[0]), v(t), v(qf))
    for r in range(1, 4): a('v_fmamk_f32', v(ang[r]), v(nf), fl(r/16), v(ang[0]))
    for tt in range(5):
        src = ang
        if tt:
            for r in range(4): a('v_add_f32', v(an2[r]), fl(tt/5), v(ang[r]))
            src = an2
        for r in range(4): sincos(a, src[r], cs[r], cs[4+r])
        for r in range(4): a('v_cvt_pk_bf16_f32', v(F+4*tt+r), v(cs[r]), '-' + v(cs[4+r]))
    vb = R.alloc(); rd = R.alloc()
    a('s_mul_i32', 's11', 's3', 3072); a('s_add_u32', 's11', 's11', L_XR)
    a('v_lshrrev_b32', v(vb), 5, 'v0'); a('v_mul_u32_u24', v(vb), 1408, v(vb))
    a('v_and_b32', v(t), 1, v(q)); a('v_lshl_add_u32', v(vb), v(t), 3, v(vb)); a('v_add_u32', v(vb), 's11', v(vb))
    wa = d1_addrs(a, R, n, vb)
    a('v_lshl_add_u32', v(rd), 'v0', 4, 's11')
    stamp(a, 3)
    for it in range(3):
        if it == 2:
            skip = newlabel('La3s'); a('s_cmp_gt_u32', 's3', 4); a('s_cbranch_scc1', skip)
            a('s_cmp_lt_u32', 's3', 4); a('s_cselect_b32', 'exec_hi', -1, 0)
        for x in range(4): a('ds_write_b32', v(lw), v(IN+4*it+x), mods=f'offset:{1024*it + PIT*x}')
    a('s_mov_b64', 'exec', -1)
    a.label(skip)
    stamp(a, 4)
    subbar(a, 4, 8, t, u, vm=True)
    stamp(a, 5)
    Z = IN; A1 = R.alloc(24); PK = Z; Y = R.alloc(20); P0 = R.alloc(4)
    a('ds_read_b128', v(Z, 4), v(ea1))
    a('ds_read_b128', v(Z+4, 4), v(ea0)); a('ds_read_b128', v(Z+8, 4), v(ea0), mods='offset:1024')
    MF = 'v_mfma_f32_16x16x32_bf16'
    for k5 in range(3):
        a(MF, v(A1+8*k5, 4), v(Z+4*k5, 4), v(Mre, 4), 0); a(MF, v(A1+8*k5+4, 4), v(Z+4*k5, 4), v(Mim, 4), 0)
    for k5 in range(3):
        for r in range(4):
            re, im, c, s_ = A1+8*k5+r, A1+8*k5+4+r, TC+4*k5+r, TS+4*k5+r
            a('v_mul_f32', v(cs[r]), v(re), v(c)); a('v_mul_f32', v(cs[4+r]), v(im), v(c))
            a('v_fma_f32', v(cs[r]), '-' + v(im), v(s_), v(cs[r])); a('v_fmac_f32', v(cs[4+r]), v(re), v(s_))
            a('v_cvt_pk_bf16_f32', v(PK+4*k5+r), v(cs[r]), v(cs[4+r]))
        if k5 == 0: a(MF, v(P0, 4), v(PK, 4), v(F, 4), 0)
        else:
            for e in range(5):
                a(MF, v(Y+4*e, 4), v(PK+4*k5, 4), v(F+4*((e*k5) % 5), 4), v(P0, 4) if k5 == 1 else v(Y+4*e, 4))
    for e in range(5):
        a('v_cvt_pk_bf16_f32', v(A1+2*e), v(Y+4*e), v(Y+4*e+1)); a('v_cvt_pk_bf16_f32', v(A1+2*e+1), v(Y+4*e+2), v(Y+4*e+3))
        a('ds_write_b64', v(wa[e]), v(A1+2*e, 2))
    for k in range(3): a('ds_read_b128', v(Z+4*k, 4), v(rd), mods=f'offset:{1024*k}')
    stamp(a, 6)
    a('global_store_dwordx4', v(vo[0]), v(Z, 4), OUT_)
    a('s_mov_b32', 'exec_lo', 0xff00ffff)
    a('global_store_dwordx4', v(vo[1]), v(Z+4, 4), OUT_, mods='offset:1024')
    a('s_mov_b32', 'exec_lo', -1); a('s_mov_b32', 'exec_hi', 0xff)
    a('global_store_dwordx4', v(vo[2]), v(Z+8, 4), OUT_, mods='offset:2048')
    a('s_mov_b64', 'exec', -1)
    return R.next

def quad_voff(a, R):
    vo = R.alloc(); t = R.alloc()
    a('v_mul_u32_u24', v(t), 26, 'v0'); a('v_lshrrev_b32', v(t), 8, v(t))
    a('v_mul_u32_u24', v(vo), 1280 - 160, v(t)); a('v_lshl_add_u32', v(vo), 'v0', 4, v(vo))
    return vo

def tile_dma(a, vo, sd, lds_img, stray='s8'):
    a('s_mul_i32', 's11', 's3', 16*1280); a('s_add_u32', 's11', 's11', 's10')
    a('s_mul_i32', 's12', 's3', 2*1296)
    for k in range(4):
        a('s_add_u32', 'm0', 's12', lds_img + (k >> 1)*1296 + (k & 1)*640)
        a('buffer_load_dwordx4', v(vo), s(sd, 4), 's11', mods='offen lds')
        if k < 3: a('s_add_u32', 's11', 's11', 4*1280)

def b13_lane(a, R, wsbase):
    lb = R.alloc(); uo = R.alloc(); pr = R.alloc(); od = R.alloc()
    a('s_cmp_ge_u32', 's3', 5); a('s_cselect_b32', 's13', 1, 0)
    a('s_mul_i32', 's14', 's13', 5); a('s_sub_u32', 's14', 's3', 's14')
    a('v_lshrrev_b32', v(pr), 3, 'v0'); a('v_lshl_add_u32', v(pr), 's14', 3, v(pr))
    a('v_and_b32', v(od), 7, 'v0'); a('s_lshl_b32', 's15', 's13', 3); a('s_add_u32', 's15', 's15', 7)
    a('v_sub_u32', v(od), 's15', v(od))
    a('v_mul_u32_u24', v(lb), 1296, v(od)); a('v_lshl_add_u32', v(lb), v(pr), 2, v(lb)); a('v_add_u32', v(lb), L_KI, v(lb))
    a('s_mul_i32', 's15', 's4', 80*4096); a('s_add_u32', 's15', 's15', wsbase + 4080)
    a('s_lshl_b32', 's8', 's6', 8); a('s_sub_u32', 's15', 's15', 's8')
    a('v_lshl_add_u32', v(uo), v(pr), 13, 's15');
    t = R.alloc(); a('v_lshlrev_b32', v(t), 4, v(od)); a('v_sub_u32', v(uo), v(uo), v(t))
    return lb, uo, pr, od

def role_B1(a, endlabel, stflags=''):
    R = RegAlloc(1, 168)
    a('s_cmp_ge_u32', 's3', 10); a('s_cbranch_scc1', endlabel)
    NB = 2048*1280
    srd(a, 44, 's24', 's25', NB); srd(a, 48, 's26', 's27', NB)
    vo = quad_voff(a, R)
    a('s_mul_i32', 's10', 's6', 128*1280); a('s_mul_i32', 's8', 's4', 160); a('s_add_u32', 's10', 's10', 's8')
    t = R.alloc(); u = R.alloc()
    a('s_sub_u32', 's8', 's10', 4*1280); a('v_add_u32', v(t), 's8', v(vo))
    a('s_mov_b32', 'exec_hi', 0xff)
    l8 = newlabel('Lb1'); l9 = newlabel('Lb1')
    a('s_cmp_ge_u32', 's3', 8); a('s_cbranch_scc1', l8)
    tile_dma(a, vo, 44, L_KI + 1296); tile_dma(a, vo, 48, L_VI)
    a('s_branch', l9)
    a.label(l8)
    a('s_mov_b32', 'm0', L_KI + 640)
    a('buffer_load_dwordx4', v(t), 's[44:47]', 0, mods='offen lds')
    a.label(l9)
    a('s_mov_b64', 'exec', -1)
    lb, uo, pr, od = b13_lane(a, R, WS_U)
    CF = R.alloc(4); C = R.alloc(8)
    a('s_mul_i32', 's8', 's4', 640); a('v_lshl_add_u32', v(t), v(pr), 4, 's8')
    a('global_load_dwordx4', v(CF, 4), v(t), SK_)
    msk = R.alloc(); a('v_mov_b32', v(msk), 0xffff0000)
    for ch in range(2):
        for j in range(4):
            src = CF + 2*ch + (j >> 1)
            if j & 1: a('v_and_b32', v(C+4*ch+j), v(msk), v(src))
            else: a('v_lshlrev_b32', v(C+4*ch+j), 16, v(src))
    stamp(a, 3)
    subbar(a, 5, 10, t, u, vm=True)
    stamp(a, 4)
    Kd = R.alloc(11); Vd = R.alloc(8); Kf = [R.alloc(11), R.alloc(11)]; T = R.alloc(4); O = R.alloc(8)
    for i in range(11): a('ds_read_b32', v(Kd+i), v(lb), mods=f'offset:{(800 + 160*i if i < 3 else 1296 + 160*(i-3))}')
    for i in range(8): a('ds_read_b32', v(Vd+i), v(lb), mods=f'offset:{L_VI - L_KI + 160*i}')
    def unp(i):
        a('v_lshlrev_b32', v(Kf[0]+i), 16, v(Kd+i)); a('v_and_b32', v(Kf[1]+i), v(msk), v(Kd+i))
    for i in range(3): unp(i)
    res = R.alloc(4)
    for i in range(8):
        unp(i+3)
        for ch in range(2):
            acc = T + ch; dst = res + 2*ch + (i & 1)
            a('v_mul_f32', v(acc), v(Kf[ch]+i), v(C+4*ch+3))
            for j in (2, 1, 0): a('v_fmac_f32', v(acc), v(Kf[ch]+i+3-j), v(C+4*ch+j))
            if ch: a('v_and_b32', v(T+2+ch), v(msk), v(Vd+i))
            else: a('v_lshlrev_b32', v(T+2+ch), 16, v(Vd+i))
            a('v_mul_f32', v(dst), v(acc), v(T+2+ch))
        if i & 1:
            for ch in range(2): a('v_cvt_pk_bf16_f32', v(O+4*ch+3-(i >> 1)), v(res+2*ch+1), v(res+2*ch))
    stamp(a, 5)
    a('global_store_dwordx4', v(uo), v(O, 4), WS_, mods=stflags)
    a('v_add_u32', v(uo), 4096, v(uo))
    a('global_store_dwordx4', v(uo), v(O+4, 4), WS_, mods=stflags)
    return R.next

def role_B3(a, endlabel, ldflags=''):
    R = RegAlloc(1, 168)
    a('s_cmp_ge_u32', 's3', 10); a('s_cbranch_scc1', endlabel)
    NB = 2048*1280
    srd(a, 44, 's22', 's23', NB)
    lb, uo, pr, od = b13_lane(a, R, WS_Z)
    Z = R.alloc(8); t = R.alloc(); u = R.alloc()
    a('global_load_dwordx4', v(Z, 4), v(uo), WS_, mods=ldflags)
    a('v_add_u32', v(uo), 4096, v(uo))
    a('global_load_dwordx4', v(Z+4, 4), v(uo), WS_, mods=ldflags)
    vo = quad_voff(a, R)
    a('s_mul_i32', 's10', 's6', 128*1280); a('s_mul_i32', 's8', 's4', 160); a('s_add_u32', 's10', 's10', 's8')
    l8 = newlabel('Lb3')
    a('s_cmp_ge_u32', 's3', 8); a('s_cbranch_scc1', l8)
    a('s_mov_b32', 'exec_hi', 0xff)
    tile_dma(a, vo, 44, L_VI)
    a('s_mov_b64', 'exec', -1)
    a.label(l8)
    oo = R.alloc(); msk = R.alloc(); a('v_mov_b32', v(msk), 0xffff0000)
    a('s_mul_i32', 's8', 's6', 128*2560); a('s_mul_i32', 's9', 's4', 160); a('s_add_u32', 's8', 's8', 's9'); a('s_add_u32', 's8', 's8', 1280)
    a('v_mul_u32_u24', v(oo), 8*2560, v(od)); a('v_lshl_add_u32', v(oo), v(pr), 2, v(oo)); a('v_add_u32', v(oo), 's8', v(oo))
    stamp(a, 3)
    subbar(a, 6, 10, t, u, vm=True)
    stamp(a, 4)
    Qd = R.alloc(8); T = R.alloc(4); O = R.alloc(8)
    for i in range(8): a('ds_read_b32', v(Qd+i), v(lb), mods=f'offset:{L_VI - L_KI + 160*i}')
    for i in range(8):
        for ch in range(2):
            src = Z + 4*ch + 3 - (i >> 1)
            if i & 1: a('v_lshlrev_b32', v(T+ch), 16, v(src))
            else: a('v_and_b32', v(T+ch), v(msk), v(src))
            if ch: a('v_and_b32', v(T+2+ch), v(msk), v(Qd+i))
            else: a('v_lshlrev_b32', v(T+2+ch), 16, v(Qd+i))
            a('v_mul_f32', v(T+ch), v(T+ch), v(T+2+ch))
        a('v_cvt_pk_bf16_f32', v(O+i), v(T), v(T+1))
        if i & 1:
            a('global_store_dword', v(oo), v(O+i-1), OUT_)
            a('global_store_dword', v(oo), v(O+i), OUT_, mods='offset:2560')
            if i < 7: a('v_add_u32', v(oo), 5120, v(oo))
    return R.next

def chan_of_lc(a, dst, lc_s_or_int):
    a('s_mul_i32', dst, 's4', 80); a('s_mul_i32', 's41', 's6', 5); a('s_add_u32', dst, dst, 's41')
    if isinstance(lc_s_or_int, int):
        lc = lc_s_or_int
        if lc == 2: a('s_add_u32', dst, dst, 2)
        else:
            a('s_mul_i32', 's41', 's5', 3); a('s_add_u32', dst, dst, 's41')
            if lc: a('s_add_u32', dst, dst, lc)
    else:
        a('s_mul_i32', 's41', 's5', 3); a('s_cmp_eq_u32', lc_s_or_int, 2); a('s_cselect_b32', 's41', 0, 's41')
        a('s_add_u32', dst, dst, 's41'); a('s_add_u32', dst, dst, lc_s_or_int)

def B2_himg(a, R):
    vo = R.alloc(); t = R.alloc(); u = R.alloc(); Hd = R.alloc(4)
    a('s_lshr_b32', 's9', 's3', 1)
    a('s_and_b32', 's10', 's3', 1)
    a('s_lshl_b32', 's8', 's9', 1); a('s_add_u32', 's8', 's8', 2); a('s_lshl_b32', 's11', 's10', 11); a('s_add_u32', 's8', 's8', 's11')
    a('v_lshl_add_u32', v(vo), 'v0', 4, 's8')
    a('s_and_b32', 's12', 's9', 1); a('s_mul_i32', 's12', 's12', 529*16); a('s_lshr_b32', 's13', 's9', 1); a('s_mul_i32', 's13', 's13', 264*16)
    a('s_add_u32', 's12', 's12', 's13'); a('s_add_u32', 's12', 's12', 's11')
    for lc in range(3):
        chan_of_lc(a, 's8', lc); a('s_lshl_b32', 's8', 's8', 12)
        a('s_add_u32', 's44', 's30', 's8'); a('s_addc_u32', 's45', 's31', 0); a('s_and_b32', 's45', 's45', 0xffff)
        a('s_mov_b32', 's46', 4096); a('s_mov_b32', 's47', 0x20000)
        a('s_add_u32', 'm0', 's12', L_H + lc*HSZ + 128)
        a('buffer_load_dwordx4', v(vo), 's[44:47]', 0, mods='offen lds')
        a('buffer_load_dwordx4', v(vo), 's[44:47]', 0, mods='offen offset:1024 lds')
    sk = newlabel('Lh')
    a('s_cmp_ge_u32', 's3', 3); a('s_cbranch_scc1', sk)
    chan_of_lc(a, 's8', 's3'); a('s_lshl_b32', 's8', 's8', 12); a('v_mov_b32', v(t), 's8')
    a('global_load_dwordx2', v(Hd+2, 2), v(t), H_)
    Zr = R.alloc(4)
    for k in range(4): a('v_mov_b32', v(Zr+k), 0)
    a('s_mul_i32', 's8', 's3', USZ); a('s_add_u32', 's8', 's8', L_U + 32*144)
    a('v_lshl_add_u32', v(u), 'v0', 4, 's8')
    a('ds_write_b128', v(u), v(Zr, 4)); a('ds_write_b128', v(u), v(Zr, 4), mods='offset:1024')
    a('s_mov_b64', 'exec', 0x7f); a('ds_write_b128', v(u), v(Zr, 4), mods='offset:2048'); a('s_mov_b64', 'exec', -1)
    a('v_bfe_u32', v(t), 'v0', 3, 2)
    a('v_and_b32', v(u), 1, v(t)); a('v_mul_u32_u24', v(u), 529*16, v(u))
    a('v_lshrrev_b32', v(Hd), 1, v(t)); a('v_mul_u32_u24', v(Hd), 264*16, v(Hd)); a('v_add_u32', v(u), v(u), v(Hd))
    a('v_and_b32', v(Hd), 7, 'v0'); a('v_lshl_add_u32', v(u), v(Hd), 4, v(u))
    a('s_mul_i32', 's8', 's3', HSZ); a('s_add_u32', 's8', 's8', L_H); a('v_add_u32', v(u), 's8', v(u))
    a('v_cmp_eq_u32', 'vcc', 7, v(Hd))
    a('v_lshlrev_b32', v(t), 4, v(t)); a('v_sub_u32', v(t), 48, v(t))
    a('v_lshlrev_b64', v(Hd+2, 2), v(t), v(Hd+2, 2))
    a('v_cndmask_b32', v(Hd+2), 0, v(Hd+2), 'vcc'); a('v_cndmask_b32', v(Hd+3), 0, v(Hd+3), 'vcc')
    a('v_mov_b32', v(Hd), 0); a('v_mov_b32', v(Hd+1), 0)
    a('s_mov_b32', 'exec_hi', 0)
    a('ds_write_b128', v(u), v(Hd, 4))
    a('s_mov_b64', 'exec', -1)
    a.label(sk)

def B2_uload(a, R, ldflags):
    t = R.alloc(); lw = R.alloc(); U = R.alloc(8); go = R.alloc()
    a('s_lshr_b32', 's9', 's3', 2); a('s_and_b32', 's10', 's3', 3)
    a('v_lshrrev_b32', v(t), 3, 'v0'); a('v_lshlrev_b32', v(t), 4, v(t)); a('v_lshl_add_u32', v(lw), 'v0', 4, v(t))
    a('s_mul_i32', 's11', 's10', 8*144); a('s_add_u32', 's11', 's11', L_U); a('v_add_u32', v(lw), 's11', v(lw))
    a('s_lshl_b32', 's12', 's10', 10); a('s_add_u32', 's12', 's12', WS_U)
    chan_of_lc(a, 's8', 's9'); a('s_lshl_b32', 's8', 's8', 12); a('s_add_u32', 's8', 's8', 's12')
    a('v_lshl_add_u32', v(go), 'v0', 4, 's8')
    a('global_load_dwordx4', v(U, 4), v(go), WS_, mods=ldflags)
    chan_of_lc(a, 's8', 2); a('s_lshl_b32', 's8', 's8', 12); a('s_add_u32', 's8', 's8', 's12')
    a('v_lshl_add_u32', v(go), 'v0', 4, 's8')
    a('global_load_dwordx4', v(U+4, 4), v(go), WS_, mods=ldflags)
    a('s_mul_i32', 's8', 's9', USZ); a('v_add_u32', v(t), 's8', v(lw))
    return t, lw, U

def role_B2(a, endlabel, ldflags='', stflags=''):
    R = RegAlloc(1, 168)
    t1, lw, U = B2_uload(a, R, ldflags)
    mk = R.mark(); B2_himg(a, R); R.release(mk)
    t = R.alloc(); u = R.alloc()
    a('s_mul_i32', 's9', 's3', 11); a('s_lshr_b32', 's9', 's9', 5)
    a('s_mul_i32', 's10', 's9', 3); a('s_sub_u32', 's10', 's3', 's10')
    a('s_xor_b32', 's8', 's5', 1); a('s_cmp_eq_u32', 's9', 2); a('s_cselect_b32', 's8', 's8', 0); a('s_add_u32', 's10', 's10', 's8')
    a('s_min_u32', 's11', 's10', 1)
    a('s_lshr_b32', 's12', 's10', 1)
    chan_of_lc(a, 's13', 's9')
    Dv = R.alloc()
    a('s_lshl_b32', 's8', 's13', 1); a('v_mov_b32', v(t), 's8')
    a('global_load_ushort', v(Dv), v(t), D_)
    n = R.alloc(); q = R.alloc(); aa = R.alloc(); ba = R.alloc(); ia = R.alloc()
    a('v_and_b32', v(n), 15, 'v0'); a('v_lshrrev_b32', v(q), 4, 'v0')
    a('v_and_b32', v(t), 1, 'v0'); a('v_mul_u32_u24', v(aa), 529*16, v(t))
    a('v_bfe_u32', v(t), 'v0', 1, 1); a('v_mul_u32_u24', v(t), 264*16, v(t)); a('v_add_u32', v(aa), v(aa), v(t))
    a('v_bfe_u32', v(t), 'v0', 2, 2); a('v_lshl_add_u32', v(aa), v(t), 5, v(aa)); a('v_lshl_add_u32', v(aa), v(q), 9, v(aa))
    a('s_mul_i32', 's8', 's9', HSZ); a('s_lshl_b32', 's14', 's12', 11); a('s_add_u32', 's8', 's8', 's14'); a('s_add_u32', 's8', 's8', L_H)
    a('v_add_u32', v(aa), 's8', v(aa))
    a('s_sub_u32', 's14', 's12', 's11'); a('s_lshl_b32', 's14', 's14', 4); a('s_add_u32', 's14', 's14', 31)
    a('s_mul_i32', 's15', 's9', USZ); a('s_add_u32', 's15', 's15', L_U)
    a('v_lshlrev_b32', v(t), 2, v(q)); a('v_sub_u32', v(t), v(t), v(n)); a('v_add_u32', v(t), 's14', v(t))
    a('v_mul_u32_u24', v(ba), 144, v(t)); a('v_add_u32', v(ba), 's15', v(ba))
    a('s_lshl_b32', 's14', 's11', 4); a('s_sub_u32', 's14', 31, 's14')
    a('v_sub_u32', v(t), 's14', v(n)); a('v_mul_u32_u24', v(ia), 144, v(t)); a('v_add_u32', v(ia), 's15', v(ia))
    a('v_lshlrev_b32', v(t), 5, v(q)); a('v_sub_u32', v(ia), v(ia), v(t))
    a('ds_write_b128', v(t1), v(U, 4)); a('ds_write_b128', v(lw), v(U+4, 4), mods=f'offset:{2*USZ}')
    a('v_lshlrev_b32', v(Dv), 16, v(Dv))
    a('s_cmp_eq_u32', 's12', 0); a('s_cselect_b32', 's8', -1, 0); a('v_and_b32', v(Dv), 's8', v(Dv))
    stamp(a, 3)
    subbar(a, 7, 8, t, u, vm=True)
    stamp(a, 4)
    a('s_lshl_b32', 's8', 's5', 3); a('s_add_u32', 's8', 's8', 's3'); a('s_cmp_eq_u32', 's8', 15); a('s_cbranch_scc1', endlabel)
    ACC = R.alloc(16); RA = R.alloc(66); RB = R.alloc(32); msk = R.alloc()
    a('ds_read_b128', v(U, 4), v(ia), mods='offset:96'); a('ds_read_b128', v(U+4, 4), v(ia), mods='offset:112')
    PD = 5
    def rdA(w):
        if w > 33: return
        a('ds_read_b128', v(RA + 4*(w % 16), 4), v(aa), mods=f'offset:{16*w}')
        if w and w % 16 == 0: a('ds_read_b64', v(RA+64, 2), v(aa), mods=f'offset:{16*w}')
    def rdB(tau):
        if tau > 31: return
        a('ds_read_b128', v(RB + 4*(tau % 8), 4), v(ba), mods=f'offset:{144*(tau >> 3) + 16*(tau & 7)}')
    rdA(0); rdA(1)
    for k in range(PD): rdB(k); rdA(k+2)
    a('v_mov_b32', v(msk), 0xffff0000)
    for x in range(16):
        e = 15 - x
        if e & 1: a('v_and_b32', v(ACC+x), v(msk), v(U + (e >> 1)))
        else: a('v_lshlrev_b32', v(ACC+x), 16, v(U + (e >> 1)))
        a('v_mul_f32', v(ACC+x), v(Dv), v(ACC+x))
    stamp(a, 5)
    for tau in range(32):
        for tt in range(4):
            d = (4*tau + 2*tt) % 64
            a('v_mfma_f32_16x16x32_bf16', v(ACC+4*tt, 4), v(RA+d, 4), v(RB + 4*(tau % 8), 4), v(ACC+4*tt, 4))
            if tt == 0: rdB(tau + PD)
            if tt == 2: rdA(tau + PD + 2)
    stamp(a, 6)
    ra = R.alloc()
    a('s_lshl_b32', 's8', 's9', 12); a('s_add_u32', 's8', 's8', L_RED); a('v_lshl_add_u32', v(ra), 'v0', 4, 's8')
    lj = newlabel('Lb2'); lf = newlabel('Lb2')
    a('s_lshl_b32', 's14', 's9', 2); a('s_add_u32', 's14', 's14', L_CNT + 4*8); a('v_mov_b32', v(t), 's14'); a('v_mov_b32', v(u), 1)
    a.settle()
    a('s_cmp_eq_u32', 's12', 0); a('s_cbranch_scc1', lj)
    for tt in range(4): a('ds_write_b128', v(ra), v(ACC+4*tt, 4), mods=f'offset:{1024*tt}')
    a.wait(lgkm=0)
    a('s_mov_b64', 'exec', 1); a('ds_add_u32', v(t), v(u)); a('s_mov_b64', 'exec', -1)
    a('s_branch', endlabel)
    a.label(lj); a.forget()
    a('s_cmp_eq_u32', 's10', 0); a('s_cbranch_scc1', lf)
    lp = newlabel('Lb2')
    a.label(lp)
    a('ds_read_b32', v(u), v(t)); a('v_readfirstlane_b32', 's40', v(u)); a('s_cmp_eq_u32', 's40', 0); a('s_cbranch_scc1', lp)
    for tt in range(4): a('ds_read_b128', v(RB+4*tt, 4), v(ra), mods=f'offset:{1024*tt}')
    for x in range(16): a('v_add_f32', v(ACC+x), v(ACC+x), v(RB+x))
    a.label(lf)
    stamp(a, 7)
    for jj in range(8): a('v_cvt_pk_bf16_f32', v(U+jj), v(ACC+15-2*jj), v(ACC+14-2*jj))
    sa = ra; sr = aa
    a('s_lshl_b32', 's8', 's3', 11); a('s_add_u32', 's8', 's8', L_P1)
    a('v_sub_u32', v(t), 15, v(n)); a('v_lshlrev_b32', v(u), 1, v(q)); a('v_sub_u32', v(u), 6, v(u))
    a('v_xor_b32', v(u), v(t), v(u)); a('v_and_b32', v(u), 7, v(u)); a('v_lshlrev_b32', v(u), 4, v(u))
    a('v_lshl_add_u32', v(sa), v(t), 7, v(u)); a('v_add_u32', v(sa), 's8', v(sa)); a('v_xor_b32', v(u), 16, v(sa))
    a('ds_write_b128', v(sa), v(U, 4)); a('ds_write_b128', v(u), v(U+4, 4))
    a('v_lshrrev_b32', v(t), 3, 'v0'); a('v_xor_b32', v(u), v(t), 'v0'); a('v_and_b32', v(u), 7, v(u)); a('v_lshlrev_b32', v(u), 4, v(u))
    a('v_lshl_add_u32', v(sr), v(t), 7, v(u)); a('v_add_u32', v(sr), 's8', v(sr))
    a('ds_read_b128', v(RB, 4), v(sr)); a('ds_read_b128', v(RB+4, 4), v(sr), mods='offset:1024')
    a('s_lshl_b32', 's8', 's13', 12); a('s_lshl_b32', 's14', 's11', 11); a('s_sub_u32', 's8', 's8', 's14'); a('s_add_u32', 's8', 's8', WS_Z + 2048)
    a('v_lshl_add_u32', v(t), 'v0', 4, 's8')
    a('global_store_dwordx4', v(t), v(RB, 4), WS_, mods=stflags)
    a('global_store_dwordx4', v(t), v(RB+4, 4), WS_, mods=f'offset:1024 {stflags}')
    return R.next
```

```python
import sys
from asmlib import *
import roles
from roles import *

KNAME = "concat_heads__spectral_gfnet__ssm_conv_h3__prompt_kernel"
WS_Z2 = 0x900000
F_A, F_W, F_B = WS_F, WS_F + 128*128, WS_F + 256*128
L_EP = L_CNT + 4*32
C_A1, C_A1D, C_W1, C_W1D, C_A2a, C_A2b, C_A3, C_B1, C_B1D, C_U, C_H, C_RED, C_Q = 0, 1, 2, 3, 4, 5, 6, 7, 8, 9, 10, 12, 16
SPIN = 1 << 15
SC = 'sc1'

def touch(a, pads, first):
    pads = [p for p in pads]
    if not pads: return
    ret = newlabel('Lt'); here = newlabel('Lt')
    a.settle(); a.nopad = True
    a('s_getpc_b64', 's[42:43]')
    a.raw(here + ':')
    a('s_add_u32', 's42', 's42', f'{ret}-{here}'); a.bytes += 4
    a('s_addc_u32', 's43', 's43', 0)
    a('s_mov_b64', 'exec', 0)
    for k, p in enumerate(pads):
        a('s_cmp_eq_u32', 's3', first + k); a.raw(f'    s_cbranch_scc1 {p}'); a.bytes += 4
    a.raw(ret + ':')
    a('s_mov_b64', 'exec', -1)
    a.nopad = False

def get_epoch(a, va, vb):
    a('v_mov_b32', v(va), L_EP)
    lp = newlabel('Le'); a.label(lp)
    a('ds_read_b32', v(vb), v(va)); a('v_readfirstlane_b32', 's52', v(vb))
    a('s_cmp_eq_u32', 's52', 0); a('s_cbranch_scc1', lp)

def publish(a, cid, n, flag_s, va, vb):
    a('v_mov_b32', v(va), L_CNT + 4*cid); a('v_mov_b32', v(vb), 1)
    a.wait(vm=0, lgkm=0)
    a('s_mov_b64', 'exec', 1)
    a('ds_add_rtn_u32', v(vb), v(va), v(vb))
    a('v_readfirstlane_b32', 's40', v(vb))
    sk = newlabel('Lp')
    a('s_cmp_lg_u32', 's40', n - 1); a('s_cbranch_scc1', sk)
    a('v_mov_b32', v(va), flag_s); a('v_mov_b32', v(vb), 's52')
    a('global_store_dword', v(va), v(vb), WS_, mods=SC)
    a.label(sk)
    a('s_mov_b64', 'exec', -1)

def poll_flags(a, vaddr, vt):
    lp = newlabel('Lf'); dn = newlabel('Lf')
    a('s_mov_b32', 's41', SPIN)
    a.label(lp)
    a('global_load_dword', v(vt), v(vaddr), WS_, mods=SC)
    a('s_sub_u32', 's41', 's41', 1)
    a.wait(vm=0)
    a('v_cmp_ne_u32', 'vcc', 's52', v(vt))
    a('s_cbranch_scc1', dn)
    a('s_cbranch_vccnz', lp)
    a.label(dn)

def poll_tagged(a, loads, regs, vt):
    lp = newlabel('Lg'); dn = newlabel('Lg')
    a('s_mov_b32', 's41', SPIN)
    a.label(lp)
    loads()
    a('s_sub_u32', 's41', 's41', 1)
    a('v_and_b32', v(vt), v(regs[0]), v(regs[1]))
    for k in range(2, len(regs), 2): a('v_bitop3_b32', v(vt), v(vt), v(regs[k]), v(regs[k+1]), mods='bitop3:0x80')
    a('v_and_b32', v(vt), 1, v(vt))
    a('v_cmp_ne_u32', 'vcc', 1, v(vt))
    a('s_cbranch_scc1', dn)
    a('s_cbranch_vccnz', lp)
    a.label(dn)

def entry(a, P):
    a.raw(f".globl {KNAME}\n.p2align 8\n.type {KNAME},@function\n{KNAME}:")
    a('s_cmp_ge_u32', 's2', 256); a('s_cbranch_scc1', 'Lexit')
    if STAMPS[0]:
        for i in range(1, 16): a('s_mov_b32', s(64+2*i), 0)
    stamp(a, 0)
    a('s_load_dwordx16', 's[16:31]', 's[0:1]', 0)
    a('s_load_dwordx8', 's[32:39]', 's[0:1]', 64)
    a('v_lshrrev_b32', 'v1', 6, 'v0'); a('v_and_b32', 'v0', 63, 'v0')
    a('v_readfirstlane_b32', 's3', 'v1')
    a('s_and_b32', 's4', 's2', 7); a('s_bfe_u32', 's5', 's2', (1 << 16) | 3); a('s_lshr_b32', 's6', 's2', 4)
    a('s_lshl3_add_u32', 's7', 's6', 's4')
    a('v_lshlrev_b32', 'v1', 2, 'v0'); a('v_mov_b32', 'v2', 0)
    a('ds_write_b32', 'v1', 'v2', mods=f'offset:{L_CNT}')
    a('s_cmp_lg_u32', 's5', 0); a('s_cbranch_scc1', 'LentO')
    a('s_cmp_ge_u32', 's3', 8); a('s_cbranch_scc1', 'Lbar0')
    R = RegAlloc(1, 168)
    a('s_lshl_b32', 's9', 's3', 7); a('s_add_u32', 's9', 's9', 's7'); a('s_mul_i32', 's10', 's9', 1280)
    vo = row_offsets(a, R, 's10', 1024*1280)
    a('s_mul_i32', 's11', 's3', 3072); a('s_add_u32', 's11', 's11', L_XR); a('s_mov_b32', 'm0', 's11')
    for t in range(3): a('global_load_lds_dwordx4', v(vo[t]), X_, mods=f'offset:{1024*t}')
    a('s_branch', 'Lbar0')
    a.label('LentO')
    a('s_cmp_ge_u32', 's3', 9); a('s_cbranch_scc1', 'Lbar0')
    R = RegAlloc(1, 168)
    vo = quad_voff(a, R); t = R.alloc()
    a('s_mul_i32', 's10', 's6', 128*1280); a('s_mul_i32', 's8', 's4', 160); a('s_add_u32', 's10', 's10', 's8')
    a('s_sub_u32', 's8', 's10', 4*1280); a('v_add_u32', v(t), 's8', v(vo))
    NB = 2048*1280
    srd(a, 44, 's24', 's25', NB); srd(a, 48, 's26', 's27', NB)
    a('s_mov_b32', 'exec_hi', 0xff)
    a('s_cmp_eq_u32', 's3', 8); a('s_cbranch_scc1', 'LentH')
    a('s_mul_i32', 's11', 's3', 16*1280); a('s_add_u32', 's11', 's11', 's10')
    a('s_mul_i32', 's12', 's3', 2*1296); a('s_add_u32', 's12', 's12', L_KI + 1296)
    for k in range(4):
        a('s_mov_b32', 'm0', 's12')
        a('buffer_load_dwordx4', v(vo), 's[44:47]', 's11', mods='offen lds')
        a('s_add_u32', 'm0', 's12', L_VI - L_KI - 1296)
        a('buffer_load_dwordx4', v(vo), 's[48:51]', 's11', mods='offen lds')
        if k < 3:
            a('s_addk_i32', 's11', 4*1280); a('s_addk_i32', 's12', 640 if k != 1 else 656)
    a('s_branch', 'LentX')
    a.label('LentH')
    a('s_mov_b32', 'm0', L_KI + 640)
    a('buffer_load_dwordx4', v(t), 's[44:47]', 0, mods='offen lds')
    a.label('LentX')
    a('s_mov_b64', 'exec', -1)
    a.label('Lbar0')
    a.wait(lgkm=0)
    stamp(a, 1)
    a('s_barrier')
    a('s_cmp_ge_u32', 's3', 8); a('s_cbranch_scc1', 'Laux')
    a('s_cmp_lg_u32', 's5', 0); a('s_cbranch_scc1', 'LB1t')
    touch(a, (P('A1')[1:] + P('A3c') + P('B2'))[:8], 0)
    a('s_branch', 'LA1')
    a.label('LB1t')
    touch(a, (P('B1') + P('B2') + P('B3'))[:8], 0)
    a('s_branch', 'LB1')
    a.label('Ltramp')
    a('s_setpc_b64', 's[42:43]')
    a.label('Lexit')
    a('s_endpgm')

def pk_A1(a, P):
    a.label('LA1'); a.pad_begin('A1')
    a.vm = [set()]
    R = RegAlloc(1, 168)
    va = R.alloc(); vb = R.alloc(); t = R.alloc()
    a('v_lshrrev_b32', v(va), 2, 'v0')
    a('v_bfe_u32', v(vb), 'v0', 1, 1); a('v_mul_u32_u24', v(vb), 1408, v(vb))
    a('v_and_b32', v(t), 1, 'v0'); a('v_lshl_add_u32', v(vb), v(t), 3, v(vb)); a('v_add_u32', v(vb), 's11', v(vb))
    tra = d1_addrs(a, R, va, vb)
    ka = R.alloc(); q = R.alloc(); kaf = R.alloc(); qf = R.alloc(); bf = R.alloc()
    a('v_and_b32', v(ka), 15, 'v0'); a('v_lshrrev_b32', v(q), 4, 'v0')
    a('v_cvt_f32_u32', v(kaf), v(ka)); a('v_cvt_f32_u32', v(qf), v(q))
    a('v_and_b32', v(bf), 1, v(q)); a('v_lshlrev_b32', v(bf), 2, v(bf)); a('v_cvt_f32_u32', v(bf), v(bf))
    SEQ = [1, 2, 4, 1, 3, 4, 0, 0]
    Hs = R.alloc(16); Gs = R.alloc(16)
    ang = [R.alloc() for _ in range(4)]; an2 = [R.alloc() for _ in range(4)]; cs = [R.alloc() for _ in range(8)]
    a('v_mul_f32', v(t), 0.5, v(kaf)); a('v_mul_f32', v(t), 0.5, v(t))
    a('v_mul_f32', v(ang[0]), v(t), v(qf))
    for al in range(1, 4): a('v_fmamk_f32', v(ang[al]), v(kaf), fl(al/16), v(ang[0]))
    for tt in range(5):
        src = ang
        if tt:
            for al in range(4): a('v_add_f32', v(an2[al]), fl(tt/5), v(ang[al]))
            src = an2
        for al in range(4): sincos(a, src[al], cs[al], cs[4+al])
        poss = [i for i, x in enumerate(SEQ) if x == tt]
        for h in range(2):
            a('v_cvt_pk_bf16_f32', v(Hs + 2*poss[0] + h), v(cs[2*h]), v(cs[2*h+1]))
            a('v_cvt_pk_bf16_f32', v(Gs + 2*poss[0] + h), '-' + v(cs[4+2*h]), '-' + v(cs[4+2*h+1]))
        for pos in poss[1:]:
            for h in range(2):
                a('v_mov_b32', v(Hs + 2*pos + h), v(Hs + 2*poss[0] + h)); a('v_mov_b32', v(Gs + 2*pos + h), v(Gs + 2*poss[0] + h))
    k1 = k1_regs(a, R, ka)
    TC = R.alloc(12); TS = R.alloc(12)
    for k5 in range(3):
        a('v_mul_f32', v(ang[0]), v(k1[k5]), v(bf))
        for r in range(1, 4): a('v_add_f32', v(ang[r]), v(ang[r-1]), v(k1[k5]))
        for r in range(4): sincos(a, ang[r], TC + 4*k5 + r, TS + 4*k5 + r)
    Mre = R.alloc(4); Mim = R.alloc(4); u2 = R.alloc(); f1f = R.alloc()
    a('v_and_b32', v(u2), 7, 'v0'); a('v_cvt_f32_u32', v(u2), v(u2)); a('v_mul_f32', v(u2), fl(1/8), v(u2))
    a('v_bfe_u32', v(f1f), 'v0', 3, 1)
    a('v_lshrrev_b32', v(t), 5, 'v0'); a('v_lshl_add_u32', v(t), v(t), 10, 's9')
    a('v_mul_u32_u24', v(t), v(t), v(f1f)); a('v_cvt_f32_u32', v(t), v(t)); a('v_mul_f32', v(t), fl(1/2048), v(t))
    a('v_fma_f32', v(ang[0]), v(u2), v(bf), v(t))
    for r in range(1, 4): a('v_add_f32', v(ang[r]), v(ang[r-1]), v(u2))
    for r in range(4): sincos(a, ang[r], cs[r], cs[4+r])
    for r in range(4):
        a('v_cvt_pk_bf16_f32', v(Mre + r), v(cs[r]), v(cs[4+r]))
        a('v_cvt_pk_bf16_f32', v(Mim + r), '-' + v(cs[4+r]), v(cs[r]))
    ea0, ea1 = ei_addrs(a, R, 2624, dup=False)
    tr2 = R.alloc(); go = R.alloc()
    a('v_bfe_u32', v(tr2), 'v0', 2, 2); a('v_mul_u32_u24', v(tr2), 2624, v(tr2))
    a('v_and_b32', v(t), 3, 'v0'); a('v_lshl_add_u32', v(tr2), v(t), 3, v(tr2))
    a('v_lshl_add_u32', v(tr2), v(q), 5, v(tr2))
    a('s_lshl_b32', 's8', 's3', 7); a('s_add_u32', 's8', 's8', L_EI); a('v_add_u32', v(tr2), 's8', v(tr2))
    a('s_mul_i32', 's8', 's7', TBLK); a('s_lshl_b32', 's12', 's3', 10); a('s_add_u32', 's8', 's8', 's12')
    a('v_lshl_add_u32', v(go), 'v0', 4, 's8')
    a('s_bitcmp0_b32', 's3', 0); a('s_cselect_b32', 's13', 0xfffefffe, -1)
    Dr = R.alloc(10)
    stamp(a, 2)
    a.wait(vm=0)
    stamp(a, 3)
    for e in (0, 1, 2, 3, 4): a('ds_read_b64_tr_b16', v(Dr + 2*((e + 4) % 5), 2), v(tra[e]))
    P0 = R.alloc(8); A1 = R.alloc(24); PK = R.alloc(12)
    a('v_mfma_f32_16x16x16_bf16', v(P0, 4), v(Dr+8, 2), v(Hs+12, 2), 0)
    a('v_mfma_f32_16x16x16_bf16', v(P0+4, 4), v(Dr+8, 2), v(Gs+12, 2), 0)
    PAIR = {1: (0, 4), 2: (1, 3), 0: (6, 6)}
    for k5 in (1, 2, 0):
        for ri, M in enumerate((Hs, Gs)):
            a('v_mfma_f32_16x16x32_bf16', v(A1+8*k5+4*ri, 4), v(Dr, 4), v(M + 2*PAIR[k5][0], 4), v(P0+4*ri, 4))
        for ri, M in enumerate((Hs, Gs)):
            a('v_mfma_f32_16x16x32_bf16', v(A1+8*k5+4*ri, 4), v(Dr+4, 4), v(M + 2*PAIR[k5][1], 4), v(A1+8*k5+4*ri, 4))
    A2 = Hs
    for k5 in (1, 2, 0):
        for r in range(4):
            re, im, c, s_ = A1+8*k5+r, A1+8*k5+4+r, TC+4*k5+r, TS+4*k5+r
            a('v_mul_f32', v(cs[r]), v(re), v(c)); a('v_mul_f32', v(cs[4+r]), v(im), v(c))
            a('v_fmac_f32', v(cs[r]), v(im), v(s_)); a('v_fma_f32', v(cs[4+r]), '-' + v(re), v(s_), v(cs[4+r]))
            a('v_cvt_pk_bf16_f32', v(PK+4*k5+r), v(cs[r]), v(cs[4+r]))
        a('v_mfma_f32_16x16x32_bf16', v(A2+8*k5, 4), v(Mre, 4), v(PK+4*k5, 4), 0)
        a('v_mfma_f32_16x16x32_bf16', v(A2+8*k5+4, 4), v(Mim, 4), v(PK+4*k5, 4), 0)
    for k5 in (1, 2, 0):
        for r in range(4): a('v_cvt_pk_bf16_f32', v(PK+4*k5+r), v(A2+8*k5+r), v(A2+8*k5+4+r))
        for r in range(4): a('v_and_b32', v(PK+4*k5+r), 's13', v(PK+4*k5+r))
        if k5: a('ds_write_b128', v(ea0), v(PK+4*k5, 4), mods=f'offset:{1024*(k5-1)}')
        else: a('ds_write_b128', v(ea1), v(PK, 4))
    stamp(a, 4)
    subbar(a, C_A1, 8, cs[0], cs[1])
    O = A1
    for it in range(3):
        if it == 2:
            skip = newlabel('La1s'); a('s_cmp_gt_u32', 's3', 4); a('s_cbranch_scc1', skip)
        a('ds_read_b64_tr_b16', v(O+4*it, 2), v(tr2), mods=f'offset:{1024*it}')
        a('ds_read_b64_tr_b16', v(O+4*it+2, 2), v(tr2), mods=f'offset:{1024*it + 4*2624}')
        if it == 1:
            a('global_store_dwordx4', v(go), v(O, 4), WS_, mods=SC)
            a('v_add_u32', v(go), 8192, v(go))
            a('global_store_dwordx4', v(go), v(O+4, 4), WS_, mods=SC)
            a('v_add_u32', v(go), 8192, v(go))
    a('s_cmp_lt_u32', 's3', 4); a('s_cselect_b32', 'exec_hi', -1, 0)
    a('global_store_dwordx4', v(go), v(O+8, 4), WS_, mods=SC)
    a('s_mov_b64', 'exec', -1)
    a.label(skip)
    stamp(a, 5)
    get_epoch(a, cs[0], cs[1])
    a('s_lshl_b32', 's8', 's7', 7); a('s_add_u32', 's8', 's8', F_A)
    publish(a, C_A1D, 8, 's8', cs[0], cs[1])
    stamp(a, 6)
    done = (P('A1')[1:] + P('A3c') + P('B2'))[:8]
    touch(a, [p for p in P('B2') + P('A3') if p not in done][:8], 0)
    a.pad_end()

class A3K: pass
def pk_A3c(a):
    a.pad_begin('A3c')
    K = A3K(); PIT = 2640
    R = RegAlloc(100, 168); T = RegAlloc(1, 100)
    t = T.alloc(); u = T.alloc()
    K.go = R.alloc(); K.go3 = R.alloc(); K.lw = R.alloc()
    a('s_mul_i32', 's8', 's7', TBLK); a('s_lshl_b32', 's12', 's3', 10); a('s_add_u32', 's12', 's8', 's12')
    a('v_lshl_add_u32', v(K.go), 'v0', 4, 's12')
    a('s_add_u32', 's8', 's8', TBLK - 16)
    a('v_add_u32', v(K.go3), 16384, v(K.go)); a('v_min_u32', v(K.go3), 's8', v(K.go3))
    a('v_and_b32', v(t), 1, 'v0'); a('v_mul_u32_u24', v(K.lw), 4*PIT, v(t))
    a('v_lshrrev_b32', v(t), 1, 'v0'); a('v_lshl_add_u32', v(K.lw), v(t), 2, v(K.lw))
    a('s_lshl_b32', 's8', 's3', 7); a('s_add_u32', 's8', 's8', L_EI); a('v_add_u32', v(K.lw), 's8', v(K.lw))
    e0, e1 = ei_addrs(a, T, PIT, dup=True)
    K.ea0 = R.alloc(); K.ea1 = R.alloc(); a('v_mov_b32', v(K.ea0), v(e0)); a('v_mov_b32', v(K.ea1), v(e1))
    a('s_lshl_b32', 's9', 's3', 7); a('s_add_u32', 's9', 's9', 's7'); a('s_mul_i32', 's10', 's9', 2560)
    vo = row_offsets(a, T, 's10', 1024*2560)
    K.vo = [R.alloc() for _ in range(3)]
    for k in range(3): a('v_mov_b32', v(K.vo[k]), v(vo[k]))
    n = T.alloc(); q = T.alloc(); nf = T.alloc(); qf = T.alloc(); bf = T.alloc(); k2f = T.alloc()
    a('v_and_b32', v(n), 15, 'v0'); a('v_lshrrev_b32', v(q), 4, 'v0')
    a('v_cvt_f32_u32', v(nf), v(n)); a('v_cvt_f32_u32', v(qf), v(q))
    a('v_and_b32', v(bf), 7, 'v0'); a('v_cvt_f32_u32', v(bf), v(bf))
    ang = [T.alloc() for _ in range(4)]; an2 = [T.alloc() for _ in range(4)]; cs = [T.alloc() for _ in range(8)]
    K.Mre = R.alloc(4); K.Mim = R.alloc(4); u2 = T.alloc()
    a('v_mul_f32', v(u2), fl(1/8), v(bf))
    a('v_and_b32', v(k2f), 1, v(q)); a('v_lshlrev_b32', v(k2f), 2, v(k2f)); a('v_cvt_f32_u32', v(k2f), v(k2f))
    a('v_bfe_u32', v(t), 'v0', 3, 1); a('v_lshl_add_u32', v(t), v(t), 10, 's9')
    a('v_lshrrev_b32', v(u), 5, 'v0'); a('v_mul_u32_u24', v(t), v(t), v(u))
    a('v_cvt_f32_u32', v(t), v(t)); a('v_mul_f32', v(t), fl(1/2048), v(t))
    a('v_fma_f32', v(ang[0]), v(u2), v(k2f), v(t))
    for r in range(1, 4): a('v_add_f32', v(ang[r]), v(ang[r-1]), v(u2))
    for r in range(4): sincos(a, ang[r], cs[r], cs[4+r])
    for r in range(4):
        a('v_cvt_pk_bf16_f32', v(K.Mre+r), v(cs[r]), '-' + v(cs[4+r]))
        a('v_cvt_pk_bf16_f32', v(K.Mim+r), v(cs[4+r]), v(cs[r]))
    K.TC = R.alloc(12); K.TS = R.alloc(12); kar = T.alloc(); wt = T.alloc()
    NRM = 1.0/(2048*640)
    for r in range(4):
        mk = T.mark()
        a('v_lshl_add_u32', v(kar), v(q), 2, r)
        k1 = k1_regs(a, T, kar)
        for k5 in range(3):
            a('v_mul_f32', v(k1[k5]), v(k1[k5]), v(bf))
            sincos(a, k1[k5], K.TC+4*k5+r, K.TS+4*k5+r)
        a('v_mov_b32', v(wt), fl(2*NRM))
        for k5 in (1, 2):
            a('v_mul_f32', v(K.TC+4*k5+r), v(wt), v(K.TC+4*k5+r)); a('v_mul_f32', v(K.TS+4*k5+r), v(wt), v(K.TS+4*k5+r))
        a('v_cmp_gt_u32', 'vcc', 9, v(kar)); a('v_cndmask_b32', v(wt), 0, v(wt), 'vcc')
        if r == 0:
            a('v_and_b32', v(t), 7, v(kar)); a('v_cmp_eq_u32', 'vcc', 0, v(t))
            a('v_mov_b32', v(t), fl(NRM)); a('v_cndmask_b32', v(wt), v(wt), v(t), 'vcc')
        a('v_mul_f32', v(K.TC+r), v(wt), v(K.TC+r)); a('v_mul_f32', v(K.TS+r), v(wt), v(K.TS+r))
        T.release(mk)
    K.F = R.alloc(20)
    a('v_mul_f32', v(t), 0.5, v(nf)); a('v_mul_f32', v(t), 0.5, v(t))
    a('v_mul_f32', v(ang[0]), v(t), v(qf))
    for r in range(1, 4): a('v_fmamk_f32', v(ang[r]), v(nf), fl(r/16), v(ang[0]))
    for tt in range(5):
        src = ang
        if tt:
            for r in range(4): a('v_add_f32', v(an2[r]), fl(tt/5), v(ang[r]))
            src = an2
        for r in range(4): sincos(a, src[r], cs[r], cs[4+r])
        for r in range(4): a('v_cvt_pk_bf16_f32', v(K.F+4*tt+r), v(cs[r]), '-' + v(cs[4+r]))
    vb = T.alloc(); K.rd = R.alloc()
    a('s_mul_i32', 's11', 's3', 3072); a('s_add_u32', 's11', 's11', L_XR)
    a('v_lshrrev_b32', v(vb), 5, 'v0'); a('v_mul_u32_u24', v(vb), 1408, v(vb))
    a('v_and_b32', v(t), 1, v(q)); a('v_lshl_add_u32', v(vb), v(t), 3, v(vb)); a('v_add_u32', v(vb), 's11', v(vb))
    wa = d1_addrs(a, T, n, vb)
    K.wa = [R.alloc() for _ in range(5)]
    for k in range(5): a('v_mov_b32', v(K.wa[k]), v(wa[k]))
    a('v_lshl_add_u32', v(K.rd), 'v0', 4, 's11')
    a.pad_end()
    return K

def pk_A3(a, K):
    a.label('LA3'); a.pad_begin('A3')
    PIT = 2640
    R = RegAlloc(1, 100)
    t = R.alloc(); u = R.alloc(); g2 = R.alloc(); IN = R.alloc(12); cs = [R.alloc() for _ in range(8)]
    a('v_add_u32', v(g2), 8192, v(K.go))
    def loads():
        a('global_load_dwordx4', v(IN, 4), v(K.go), WS_, mods=SC)
        a('global_load_dwordx4', v(IN+4, 4), v(g2), WS_, mods=SC)
        a('global_load_dwordx4', v(IN+8, 4), v(K.go3), WS_, mods=SC)
    stamp(a, 11)
    a.wait(vm=0)
    poll_tagged(a, loads, list(range(IN, IN+12)), t)
    stamp(a, 12)
    for it in range(3):
        if it == 2:
            skip = newlabel('La3s'); a('s_cmp_gt_u32', 's3', 4); a('s_cbranch_scc1', skip)
            a('s_cmp_lt_u32', 's3', 4); a('s_cselect_b32', 'exec_hi', -1, 0)
        for x in range(4): a('ds_write_b32', v(K.lw), v(IN+4*it+x), mods=f'offset:{1024*it + PIT*x}')
    a('s_mov_b64', 'exec', -1)
    a.label(skip)
    subbar(a, C_A3, 8, t, u)
    stamp(a, 13)
    Z = IN; A1 = R.alloc(24); PK = Z; Y = R.alloc(20); P0 = R.alloc(4)
    a('ds_read_b128', v(Z, 4), v(K.ea1))
    a('ds_read_b128', v(Z+4, 4), v(K.ea0)); a('ds_read_b128', v(Z+8, 4), v(K.ea0), mods='offset:1024')
    MF = 'v_mfma_f32_16x16x32_bf16'
    for k5 in range(3):
        a(MF, v(A1+8*k5, 4), v(Z+4*k5, 4), v(K.Mre, 4), 0); a(MF, v(A1+8*k5+4, 4), v(Z+4*k5, 4), v(K.Mim, 4), 0)
    for k5 in range(3):
        for r in range(4):
            re, im, c, s_ = A1+8*k5+r, A1+8*k5+4+r, K.TC+4*k5+r, K.TS+4*k5+r
            a('v_mul_f32', v(cs[r]), v(re), v(c)); a('v_mul_f32', v(cs[4+r]), v(im), v(c))
            a('v_fma_f32', v(cs[r]), '-' + v(im), v(s_), v(cs[r])); a('v_fmac_f32', v(cs[4+r]), v(re), v(s_))
            a('v_cvt_pk_bf16_f32', v(PK+4*k5+r), v(cs[r]), v(cs[4+r]))
        if k5 == 0: a(MF, v(P0, 4), v(PK, 4), v(K.F, 4), 0)
        else:
            for e in range(5):
                a(MF, v(Y+4*e, 4), v(PK+4*k5, 4), v(K.F+4*((e*k5) % 5), 4), v(P0, 4) if k5 == 1 else v(Y+4*e, 4))
    for e in range(5):
        a('v_cvt_pk_bf16_f32', v(A1+2*e), v(Y+4*e), v(Y+4*e+1)); a('v_cvt_pk_bf16_f32', v(A1+2*e+1), v(Y+4*e+2), v(Y+4*e+3))
        a('ds_write_b64', v(K.wa[e]), v(A1+2*e, 2))
    for k in range(3): a('ds_read_b128', v(Z+4*k, 4), v(K.rd), mods=f'offset:{1024*k}')
    a('global_store_dwordx4', v(K.vo[0]), v(Z, 4), OUT_)
    a('s_mov_b32', 'exec_lo', 0xff00ffff)
    a('global_store_dwordx4', v(K.vo[1]), v(Z+4, 4), OUT_, mods='offset:1024')
    a('s_mov_b32', 'exec_lo', -1); a('s_mov_b32', 'exec_hi', 0xff)
    a('global_store_dwordx4', v(K.vo[2]), v(Z+8, 4), OUT_, mods='offset:2048')
    a('s_mov_b64', 'exec', -1)
    stamp(a, 14)
    a.pad_end()

def z_addrs(a, R, uo, pr):
    za = [R.alloc(), R.alloc()]; t = R.alloc(); u = R.alloc(); w = R.alloc()
    a('v_and_b32', v(w), 2047, v(uo))
    a('s_lshl_b32', 's8', 's4', 15); a('s_add_u32', 's8', 's8', WS_Z2); a('v_add_u32', v(w), 's8', v(w))
    a('s_cmp_lt_u32', 's6', 8); a('s_cselect_b32', 's9', 2, 7)
    for ch in range(2):
        a('v_lshl_add_u32', v(t), v(pr), 1, ch)
        a('v_mul_u32_u24', v(u), 205, v(t)); a('v_lshrrev_b32', v(u), 10, v(u))
        a('v_mul_u32_u24', v(za[ch]), 5, v(u)); a('v_sub_u32', v(t), v(t), v(za[ch]))
        a('v_cmp_eq_u32', 'vcc', 's9', v(t))
        a('v_lshl_add_u32', v(u), v(u), 11, v(w))
        a('v_add_u32', v(za[ch]), 4096*ch, v(uo))
        a('v_cndmask_b32', v(za[ch]), v(za[ch]), v(u), 'vcc')
    return za
for _c in range(80): assert (_c*205) >> 10 == _c // 5

def pk_B1(a, P):
    a.label('LB1'); a.pad_begin('B1')
    a.vm = [set()]
    R = RegAlloc(1, 168)
    t = R.alloc(); u = R.alloc()
    lb, uo, pr, od = b13_lane(a, R, WS_U)
    CF = R.alloc(4); C = R.alloc(8)
    a('s_mul_i32', 's8', 's4', 640); a('v_lshl_add_u32', v(t), v(pr), 4, 's8')
    a('global_load_dwordx4', v(CF, 4), v(t), SK_)
    za = z_addrs(a, R, uo, pr)
    Zr = R.alloc(4)
    for k in range(4): a('v_mov_b32', v(Zr+k), 0)
    for ch in range(2):
        sk = newlabel('Lz')
        a('v_cmp_le_u32', 'vcc', WS_Z2, v(za[ch])); a('s_and_saveexec_b64', 's[54:55]', 'vcc'); a.nopad = True
        a('s_cbranch_execz', sk)
        a('global_store_dwordx4', v(za[ch]), v(Zr, 4), WS_, mods=SC)
        a.label(sk); a('s_mov_b64', 'exec', -1); a.nopad = False
    msk = R.alloc(); a('v_mov_b32', v(msk), 0xffff0000)
    stamp(a, 2)
    return R, t, u, lb, uo, pr, od, CF, C, msk

def pk_B1b(a, P, st):
    R, t, u, lb, uo, pr, od, CF, C, msk = st
    for ch in range(2):
        for j in range(4):
            src = CF + 2*ch + (j >> 1)
            if j & 1: a('v_and_b32', v(C+4*ch+j), v(msk), v(src))
            else: a('v_lshlrev_b32', v(C+4*ch+j), 16, v(src))
    subbar(a, C_B1, 10, t, u, vm=True)
    stamp(a, 3)
    Kd = R.alloc(11); Vd = R.alloc(8); Kf = [R.alloc(11), R.alloc(11)]; T = R.alloc(4); O = R.alloc(8)
    for i in range(11): a('ds_read_b32', v(Kd+i), v(lb), mods=f'offset:{(800 + 160*i if i < 3 else 1296 + 160*(i-3))}')
    for i in range(8): a('ds_read_b32', v(Vd+i), v(lb), mods=f'offset:{L_VI - L_KI + 160*i}')
    def unp(i):
        a('v_lshlrev_b32', v(Kf[0]+i), 16, v(Kd+i)); a('v_and_b32', v(Kf[1]+i), v(msk), v(Kd+i))
    for i in range(3): unp(i)
    res = R.alloc(4)
    for i in range(8):
        unp(i+3)
        for ch in range(2):
            acc = T + ch; dst = res + 2*ch + (i & 1)
            a('v_mul_f32', v(acc), v(Kf[ch]+i), v(C+4*ch+3))
            for j in (2, 1, 0): a('v_fmac_f32', v(acc), v(Kf[ch]+i+3-j), v(C+4*ch+j))
            if ch: a('v_and_b32', v(T+2+ch), v(msk), v(Vd+i))
            else: a('v_lshlrev_b32', v(T+2+ch), 16, v(Vd+i))
            a('v_mul_f32', v(dst), v(acc), v(T+2+ch))
        if i & 1:
            for ch in range(2):
                d = O+4*ch+3-(i >> 1)
                a('v_cvt_pk_bf16_f32', v(d), v(res+2*ch+1), v(res+2*ch)); a('v_and_b32', v(d), -2, v(d))
    stamp(a, 4)
    a('global_store_dwordx4', v(uo), v(O, 4), WS_, mods=SC)
    a('v_add_u32', v(uo), 4096, v(uo))
    a('global_store_dwordx4', v(uo), v(O+4, 4), WS_, mods=SC)
    stamp(a, 5)
    get_epoch(a, t, u)
    a('s_lshl_b32', 's8', 's4', 4); a('s_add_u32', 's8', 's8', 's6'); a('s_lshl_b32', 's8', 's8', 7); a('s_add_u32', 's8', 's8', F_B)
    publish(a, C_B1D, 10, 's8', t, u)
    stamp(a, 6)
    a('s_cmp_ge_u32', 's3', 8); a('s_cbranch_scc1', 'LauxH')
    await_cnt(a, C_B1D, 10, t, u)
    srd(a, 44, 's22', 's23', 2048*1280)
    vo = quad_voff(a, R)
    a('s_mul_i32', 's10', 's6', 128*1280); a('s_mul_i32', 's8', 's4', 160); a('s_add_u32', 's10', 's10', 's8')
    a('s_mov_b32', 'exec_hi', 0xff)
    tile_dma(a, vo, 44, L_VI)
    a('s_mov_b64', 'exec', -1)
    done = (P('B1') + P('B2') + P('B3'))[:8]
    touch(a, [p for p in P('B2') + P('B3') if p not in done][:8], 0)
    a.pad_end()
    a('s_branch', 'LB2')

def pk_B3(a):
    a.label('LB3'); a.pad_begin('B3')
    R = RegAlloc(1, 168)
    t = R.alloc(); u = R.alloc()
    lb, uo, pr, od = b13_lane(a, R, WS_U)
    za = z_addrs(a, R, uo, pr)
    Z = R.alloc(8); oo = R.alloc(); msk = R.alloc(); a('v_mov_b32', v(msk), 0xffff0000)
    a('s_mul_i32', 's8', 's6', 128*2560); a('s_mul_i32', 's9', 's4', 160); a('s_add_u32', 's8', 's8', 's9'); a('s_add_u32', 's8', 's8', 1280)
    a('v_mul_u32_u24', v(oo), 8*2560, v(od)); a('v_lshl_add_u32', v(oo), v(pr), 2, v(oo)); a('v_add_u32', v(oo), 's8', v(oo))
    await_cnt(a, C_U, 8, t, u)
    Qd = R.alloc(8); Qf = R.alloc(16); T = R.alloc(4); O = R.alloc(8)
    for i in range(8): a('ds_read_b32', v(Qd+i), v(lb), mods=f'offset:{L_VI - L_KI + 160*i}')
    for i in range(8):
        a('v_lshlrev_b32', v(Qf+2*i), 16, v(Qd+i)); a('v_and_b32', v(Qf+2*i+1), v(msk), v(Qd+i))
    def loads():
        for ch in range(2): a('global_load_dwordx4', v(Z+4*ch, 4), v(za[ch]), WS_, mods=SC)
    stamp(a, 11)
    a.wait(vm=0)
    poll_tagged(a, loads, list(range(Z, Z+8)), t)
    stamp(a, 12)
    for i in range(8):
        for ch in range(2):
            src = Z + 4*ch + 3 - (i >> 1)
            if i & 1: a('v_lshlrev_b32', v(T+ch), 16, v(src))
            else: a('v_and_b32', v(T+ch), v(msk), v(src))
            a('v_mul_f32', v(T+ch), v(T+ch), v(Qf+2*i+ch))
        a('v_cvt_pk_bf16_f32', v(O+i), v(T), v(T+1))
        if i & 1:
            a('global_store_dword', v(oo), v(O+i-1), OUT_)
            a('global_store_dword', v(oo), v(O+i), OUT_, mods='offset:2560')
            if i < 7: a('v_add_u32', v(oo), 5120, v(oo))
    stamp(a, 14)
    a.pad_end()

def pk_B2(a):
    a.label('LB2'); a.pad_begin('B2')
    R = RegAlloc(1, 100)
    t = R.alloc(); u = R.alloc(); lw = R.alloc(); lw1 = R.alloc(); U = R.alloc(8); go = R.alloc(); go2 = R.alloc(); fa = R.alloc()
    a('s_lshr_b32', 's9', 's3', 2); a('s_and_b32', 's10', 's3', 3)
    a('v_lshrrev_b32', v(t), 3, 'v0'); a('v_lshlrev_b32', v(t), 4, v(t)); a('v_lshl_add_u32', v(lw), 'v0', 4, v(t))
    a('s_mul_i32', 's11', 's10', 8*144); a('s_add_u32', 's11', 's11', L_U); a('v_add_u32', v(lw), 's11', v(lw))
    a('s_lshl_b32', 's12', 's10', 10); a('s_add_u32', 's12', 's12', WS_U)
    chan_of_lc(a, 's8', 's9'); a('s_lshl_b32', 's8', 's8', 12); a('s_add_u32', 's8', 's8', 's12')
    a('v_lshl_add_u32', v(go), 'v0', 4, 's8')
    chan_of_lc(a, 's8', 2); a('s_lshl_b32', 's8', 's8', 12); a('s_add_u32', 's8', 's8', 's12')
    a('v_lshl_add_u32', v(go2), 'v0', 4, 's8')
    a('s_mul_i32', 's8', 's9', USZ); a('v_add_u32', v(lw1), 's8', v(lw))
    a('s_lshl_b32', 's8', 's4', 4); a('s_add_u32', 's8', 's8', 15); a('s_lshl_b32', 's14', 's10', 2); a('s_sub_u32', 's8', 's8', 's14')
    a('v_and_b32', v(t), 3, 'v0'); a('v_sub_u32', v(t), 's8', v(t)); a('v_lshlrev_b32', v(fa), 7, v(t)); a('v_add_u32', v(fa), F_B, v(fa))
    a('s_lshl_b32', 's8', 's5', 1); a('s_cmp_ge_u32', 's3', 's8'); a('s_cselect_b32', 's53', 1, 0)
    a('s_cmp_lt_u32', 's3', 4); a('s_cselect_b32', 's53', 's53', 0)
    a('s_mul_i32', 's9', 's3', 11); a('s_lshr_b32', 's9', 's9', 5)
    a('s_mul_i32', 's10', 's9', 3); a('s_sub_u32', 's10', 's3', 's10')
    a('s_xor_b32', 's8', 's5', 1); a('s_cmp_eq_u32', 's9', 2); a('s_cselect_b32', 's8', 's8', 0); a('s_add_u32', 's10', 's10', 's8')
    a('s_min_u32', 's11', 's10', 1); a('s_lshr_b32', 's12', 's10', 1)
    chan_of_lc(a, 's13', 's9')
    Dv = R.alloc()
    a('s_lshl_b32', 's8', 's13', 1); a('v_mov_b32', v(t), 's8')
    a('global_load_ushort', v(Dv), v(t), D_)
    n = R.alloc(); q = R.alloc(); aa = R.alloc(); ba = R.alloc(); ia = R.alloc()
    a('v_and_b32', v(n), 15, 'v0'); a('v_lshrrev_b32', v(q), 4, 'v0')
    a('v_and_b32', v(t), 1, 'v0'); a('v_mul_u32_u24', v(aa), 529*16, v(t))
    a('v_bfe_u32', v(t), 'v0', 1, 1); a('v_mul_u32_u24', v(t), 264*16, v(t)); a('v_add_u32', v(aa), v(aa), v(t))
    a('v_bfe_u32', v(t), 'v0', 2, 2); a('v_lshl_add_u32', v(aa), v(t), 5, v(aa)); a('v_lshl_add_u32', v(aa), v(q), 9, v(aa))
    a('s_mul_i32', 's8', 's9', HSZ); a('s_lshl_b32', 's14', 's12', 11); a('s_add_u32', 's8', 's8', 's14'); a('s_add_u32', 's8', 's8', L_H)
    a('v_add_u32', v(aa), 's8', v(aa))
    a('s_sub_u32', 's14', 's12', 's11'); a('s_lshl_b32', 's14', 's14', 4); a('s_add_u32', 's14', 's14', 31)
    a('s_mul_i32', 's15', 's9', USZ); a('s_add_u32', 's15', 's15', L_U)
    a('v_lshlrev_b32', v(t), 2, v(q)); a('v_sub_u32', v(t), v(t), v(n)); a('v_add_u32', v(t), 's14', v(t))
    a('v_mul_u32_u24', v(ba), 144, v(t)); a('v_add_u32', v(ba), 's15', v(ba))
    a('s_lshl_b32', 's14', 's11', 4); a('s_sub_u32', 's14', 31, 's14')
    a('v_sub_u32', v(t), 's14', v(n)); a('v_mul_u32_u24', v(ia), 144, v(t)); a('v_add_u32', v(ia), 's15', v(ia))
    a('v_lshlrev_b32', v(t), 5, v(q)); a('v_sub_u32', v(ia), v(ia), v(t))
    a('v_lshlrev_b32', v(Dv), 16, v(Dv))
    a('s_cmp_eq_u32', 's12', 0); a('s_cselect_b32', 's8', -1, 0); a('v_and_b32', v(Dv), 's8', v(Dv))
    ACC = R.alloc(16); NW = 8; RA = R.alloc(4*NW + 2); NBR = 6; RB = R.alloc(4*NBR); msk = R.alloc()
    a('v_mov_b32', v(msk), 0xffff0000)
    await_cnt(a, C_H, 4, t, u)
    PD = 4
    def rdA(w):
        if w > 33: return
        a('ds_read_b128', v(RA + 4*(w % NW), 4), v(aa), mods=f'offset:{16*w}')
        if w and w % NW == 0: a('ds_read_b64', v(RA+4*NW, 2), v(aa), mods=f'offset:{16*w}')
    def rdB(tau):
        if tau > 31: return
        a('ds_read_b128', v(RB + 4*(tau % NBR), 4), v(ba), mods=f'offset:{144*(tau >> 3) + 16*(tau & 7)}')
    for w in range(PD + 2): rdA(w)
    stamp(a, 7)
    poll_flags(a, fa, t)
    a('global_load_dwordx4', v(U, 4), v(go), WS_, mods=SC)
    sk = newlabel('Lu')
    a('s_cmp_eq_u32', 's53', 0); a('s_cbranch_scc1', sk)
    a('global_load_dwordx4', v(U+4, 4), v(go2), WS_, mods=SC)
    a('ds_write_b128', v(lw), v(U+4, 4), mods=f'offset:{2*USZ}')
    a.label(sk)
    a('ds_write_b128', v(lw1), v(U, 4))
    stamp(a, 8)
    subbar(a, C_U, 8, t, u, vm=True)
    a('s_lshl_b32', 's8', 's5', 3); a('s_add_u32', 's8', 's8', 's3'); a('s_cmp_eq_u32', 's8', 15); a('s_cbranch_scc1', 'LB2end')
    a('ds_read_b128', v(U, 4), v(ia), mods='offset:96'); a('ds_read_b128', v(U+4, 4), v(ia), mods='offset:112')
    for k in range(PD): rdB(k)
    for x in range(16):
        e = 15 - x
        if e & 1: a('v_and_b32', v(ACC+x), v(msk), v(U + (e >> 1)))
        else: a('v_lshlrev_b32', v(ACC+x), 16, v(U + (e >> 1)))
        a('v_mul_f32', v(ACC+x), v(Dv), v(ACC+x))
    stamp(a, 9)
    for tau in range(32):
        for tt in range(4):
            d = (4*tau + 2*tt) % (4*NW)
            a('v_mfma_f32_16x16x32_bf16', v(ACC+4*tt, 4), v(RA+d, 4), v(RB + 4*(tau % NBR), 4), v(ACC+4*tt, 4))
            if tt == 0: rdB(tau + PD)
            if tt == 2: rdA(tau + PD + 2)
    stamp(a, 10)
    ra = lw
    a('s_lshl_b32', 's8', 's9', 12); a('s_add_u32', 's8', 's8', L_RED); a('v_lshl_add_u32', v(ra), 'v0', 4, 's8')
    lj = newlabel('Lb2'); lf = newlabel('Lb2')
    a('s_lshl_b32', 's14', 's9', 2); a('s_add_u32', 's14', 's14', L_CNT + 4*C_RED); a('v_mov_b32', v(t), 's14'); a('v_mov_b32', v(u), 1)
    a('s_cmp_eq_u32', 's12', 0); a('s_cbranch_scc1', lj)
    for tt in range(4): a('ds_write_b128', v(ra), v(ACC+4*tt, 4), mods=f'offset:{1024*tt}')
    a.wait(lgkm=0)
    a('s_mov_b64', 'exec', 1); a('ds_add_u32', v(t), v(u)); a('s_mov_b64', 'exec', -1)
    a('s_branch', 'LB2end')
    a.label(lj)
    a('s_cmp_eq_u32', 's10', 0); a('s_cbranch_scc1', lf)
    lp = newlabel('Lb2'); a.label(lp)
    a('ds_read_b32', v(u), v(t)); a('v_readfirstlane_b32', 's40', v(u)); a('s_cmp_eq_u32', 's40', 0); a('s_cbranch_scc1', lp)
    for tt in range(4): a('ds_read_b128', v(RB+4*tt, 4), v(ra), mods=f'offset:{1024*tt}')
    for x in range(16): a('v_add_f32', v(ACC+x), v(ACC+x), v(RB+x))
    a.label(lf)
    for jj in range(8):
        a('v_cvt_pk_bf16_f32', v(U+jj), v(ACC+15-2*jj), v(ACC+14-2*jj)); a('v_or_b32', v(U+jj), 1, v(U+jj))
    sa = ra; sr = aa
    a('s_lshl_b32', 's8', 's3', 11); a('s_add_u32', 's8', 's8', L_P1)
    a('v_sub_u32', v(t), 15, v(n)); a('v_lshlrev_b32', v(u), 1, v(q)); a('v_sub_u32', v(u), 6, v(u))
    a('v_xor_b32', v(u), v(t), v(u)); a('v_and_b32', v(u), 7, v(u)); a('v_lshlrev_b32', v(u), 4, v(u))
    a('v_lshl_add_u32', v(sa), v(t), 7, v(u)); a('v_add_u32', v(sa), 's8', v(sa)); a('v_xor_b32', v(u), 16, v(sa))
    a('ds_write_b128', v(sa), v(U, 4)); a('ds_write_b128', v(u), v(U+4, 4))
    a('v_lshrrev_b32', v(t), 3, 'v0'); a('v_xor_b32', v(u), v(t), 'v0'); a('v_and_b32', v(u), 7, v(u)); a('v_lshlrev_b32', v(u), 4, v(u))
    a('v_lshl_add_u32', v(sr), v(t), 7, v(u)); a('v_add_u32', v(sr), 's8', v(sr))
    a('ds_read_b128', v(RB, 4), v(sr)); a('ds_read_b128', v(RB+4, 4), v(sr), mods='offset:1024')
    a('s_lshl_b32', 's8', 's13', 12); a('s_lshl_b32', 's14', 's11', 11); a('s_sub_u32', 's8', 's8', 's14'); a('s_add_u32', 's8', 's8', WS_U + 2048)
    a('s_lshl_b32', 's14', 's4', 4); a('s_add_u32', 's14', 's14', 's6'); a('s_lshl_b32', 's14', 's14', 11); a('s_add_u32', 's14', 's14', WS_Z2)
    a('s_lshl_b32', 's15', 's9', 2); a('s_add_u32', 's15', 's15', 's10'); a('s_cmp_eq_u32', 's15', 8); a('s_cselect_b32', 's8', 's14', 's8')
    a('v_lshl_add_u32', v(t), 'v0', 4, 's8')
    a('global_store_dwordx4', v(t), v(RB, 4), WS_, mods=SC)
    a('global_store_dwordx4', v(t), v(RB+4, 4), WS_, mods=f'offset:1024 {SC}')
    a.label('LB2end')
    a.pad_end()
    a('s_cmp_lg_u32', 's5', 0); a('s_cbranch_scc1', 'LB3')
    return R.next

def h_dma(a, R):
    vo = R.alloc()
    a('s_sub_u32', 's9', 's3', 8)
    a('s_lshl_b32', 's8', 's9', 1); a('s_add_u32', 's8', 's8', 2); a('v_lshl_add_u32', v(vo), 'v0', 4, 's8')
    a('s_and_b32', 's12', 's9', 1); a('s_mul_i32', 's12', 's12', 529*16); a('s_lshr_b32', 's13', 's9', 1); a('s_mul_i32', 's13', 's13', 264*16)
    a('s_add_u32', 's12', 's12', 's13'); a('s_add_u32', 's12', 's12', L_H)
    a('s_mov_b32', 's46', 4096); a('s_mov_b32', 's47', 0x20000)
    for lc in range(3):
        chan_of_lc(a, 's8', lc); a('s_lshl_b32', 's8', 's8', 12)
        a('s_load_dwordx2', s(56+2*lc, 2), H_, 's8')
        a('s_add_u32', 's44', 's30', 's8'); a('s_addc_u32', 's45', 's31', 0); a('s_and_b32', 's45', 's45', 0xffff)
        a('s_add_u32', 'm0', 's12', lc*HSZ + 128)
        for b in range(4): a('buffer_load_dwordx4', v(vo), 's[44:47]', 0, mods=f'offen offset:{1024*b} lds')

def h_head(a, R):
    Hd = R.alloc(4); t = R.alloc(); u = R.alloc()
    for k in range(4): a('v_mov_b32', v(Hd+k), 0)
    sk = newlabel('Lh')
    a('s_cmp_eq_u32', 's9', 3); a('s_cbranch_scc1', sk)
    a('s_mul_i32', 's8', 's9', USZ); a('s_add_u32', 's8', 's8', L_U + 32*144)
    a('v_lshl_add_u32', v(u), 'v0', 4, 's8')
    a('ds_write_b128', v(u), v(Hd, 4)); a('ds_write_b128', v(u), v(Hd, 4), mods='offset:1024')
    a('s_mov_b64', 'exec', 0x7f); a('ds_write_b128', v(u), v(Hd, 4), mods='offset:2048'); a('s_mov_b64', 'exec', -1)
    a.label(sk)
    a('s_lshl_b32', 's8', 's9', 4); a('s_sub_u32', 's8', 48, 's8')
    a.wait(lgkm=0)
    for lc in range(3):
        a('s_lshl_b64', s(56+2*lc, 2), s(56+2*lc, 2), 's8')
        a('v_writelane_b32', v(Hd+2), s(56+2*lc), 8*lc + 7); a('v_writelane_b32', v(Hd+3), s(57+2*lc), 8*lc + 7)
    a('v_lshrrev_b32', v(t), 3, 'v0'); a('v_mul_u32_u24', v(t), HSZ - 128, v(t)); a('v_lshl_add_u32', v(t), 'v0', 4, v(t)); a('v_add_u32', v(t), 's12', v(t))
    a('s_mov_b64', 'exec', 0xffffff)
    a('ds_write_b128', v(t), v(Hd, 4))
    a('s_mov_b64', 'exec', -1)

def epoch_fetch(a, R):
    t = R.alloc(); F = R.alloc(6); z = R.alloc()
    sk = newlabel('Lep'); n0 = newlabel('Lep')
    a('s_cmp_lg_u32', 's3', 11); a('s_cbranch_scc1', sk)
    a('v_mov_b32', v(z), 0)
    a('s_cmp_lg_u32', 's2', 0); a('s_cbranch_scc1', n0)
    a('v_lshlrev_b32', v(t), 7, 'v0'); a('v_add_u32', v(t), WS_F, v(t))
    for k in range(6):
        a('global_load_dword', v(F+k), v(t), WS_, mods=SC)
        if k < 5: a('v_add_u32', v(t), 8192, v(t))
    for k in range(6): a('v_and_b32', v(F+k), 0x7fffffff, v(F+k))
    a('v_max3_u32', v(F), v(F), v(F+1), v(F+2)); a('v_max3_u32', v(F+3), v(F+3), v(F+4), v(F+5)); a('v_max_u32', v(F), v(F), v(F+3))
    a('v_mov_b32', v(t), L_EP + 4)
    a('ds_max_u32', v(t), v(F))
    a('ds_read_b32', v(F), v(t))
    a('v_add_u32', v(F), 1, v(F))
    a('s_mov_b64', 'exec', 1)
    a('global_store_dword', v(z), v(F), DBG_, mods=SC)
    a('s_mov_b64', 'exec', -1)
    a.label(n0)
    lp = newlabel('Lep'); dn = newlabel('Lep')
    a('s_mov_b32', 's41', SPIN)
    a.label(lp)
    a('global_load_dword', v(F), v(z), DBG_, mods=SC)
    a('s_sub_u32', 's41', 's41', 1)
    a.wait(vm=0)
    a('v_cmp_eq_u32', 'vcc', 0, v(F))
    a('s_cbranch_scc1', dn)
    a('s_cbranch_vccnz', lp)
    a.label(dn)
    a('v_or_b32', v(t), 1, v(F)); a('v_cndmask_b32', v(F), v(F), v(t), 'vcc')
    a('v_mov_b32', v(t), L_EP)
    a('ds_write_b32', v(t), v(F))
    a.label(sk)

def pk_aux(a, P):
    a.label('Laux'); a.pad_begin('AUX')
    a.vm = [set()]
    touch(a, (P('AUX')[1:] + P('A2'))[:4], 8)
    R = RegAlloc(1, 168)
    epoch_fetch(a, R)
    a('s_cmp_eq_u32', 's5', 0); a('s_cbranch_scc1', 'LauxE')
    a('s_cmp_lt_u32', 's3', 10); a('s_cbranch_scc1', 'LB1')
    a.label('LauxH')
    R = RegAlloc(1, 168)
    h_dma(a, R); h_head(a, R)
    t = R.alloc(); u = R.alloc()
    arrive(a, C_H, t, u, vm=True)
    a('s_mov_b32', 's9', 's7')
    a('s_branch', 'LA2')
    a.label('LauxE')
    R = RegAlloc(1, 168)
    WB = 2048*321*2
    srd(a, 44, 's18', 's19', WB); srd(a, 48, 's20', 's21', WB)
    a('s_sub_u32', 's9', 's3', 8)
    vo = R.alloc(); t = R.alloc(); u = R.alloc()
    a('v_lshlrev_b32', v(vo), 4, 'v0')
    a('s_mul_i32', 's10', 's7', 1284)
    a('s_mul_i32', 's11', 's9', 2*256*642); a('s_add_u32', 's10', 's10', 's11')
    a('s_mul_i32', 's11', 's9', 2*1296); a('s_add_u32', 's11', 's11', L_A2 + 1296)
    def slot(soff, m0v_s, add):
        for pl, sd in enumerate((44, 48)):
            a('s_add_u32', 'm0', m0v_s, add + pl*11664)
            a('buffer_load_dwordx4', v(vo), s(sd, 4), soff, mods='offen lds')
            a('s_mov_b64', 'exec', 0x1ffff)
            a('buffer_load_dwordx4', v(vo), s(sd, 4), soff, mods='offen offset:1024 lds')
            a('s_mov_b64', 'exec', -1)
    slot('s10', 's11', 0)
    a('s_add_u32', 's10', 's10', 256*642)
    slot('s10', 's11', 1296)
    sk = newlabel('Lw1s')
    a('s_cmp_lg_u32', 's7', 127); a('s_cbranch_scc1', sk)
    a('s_cmp_lg_u32', 's9', 3); a('s_cbranch_scc1', sk)
    a('s_mov_b32', 's11', L_A2)
    slot('s10', 's11', 0)
    a.label(sk)
    h_dma(a, R); h_head(a, R)
    k0 = R.alloc(); vc = R.alloc(); go = R.alloc(); go2 = R.alloc()
    a('v_lshrrev_b32', v(t), 3, 'v0')
    a('v_mul_u32_u24', v(k0), 65, v(t))
    a('v_mul_u32_u24', v(u), 205, v(k0)); a('v_lshrrev_b32', v(u), 14, v(u))
    a('v_mul_u32_u24', v(u), 80, v(u)); a('v_sub_u32', v(k0), v(k0), v(u))
    a('s_and_b32', 's12', 's9', 1); a('s_lshr_b32', 's13', 's9', 1)
    a('s_cmp_eq_u32', 's12', 0)
    a('s_cselect_b32', 's14', 2, -2); a('s_cselect_b32', 's15', 0, 640)
    a('s_mul_i32', 's8', 's13', 642); a('s_add_u32', 's15', 's15', 's8'); a('s_add_u32', 's15', 's15', L_A2 + 1296)
    a('s_cmp_eq_u32', 's9', 3); a('s_cselect_b32', 's8', 1, 0); a('s_add_u32', 's8', 's8', 's7')
    a('s_cmp_eq_u32', 's8', 128); a('s_cselect_b32', 's41', 1296, 0); a('s_sub_u32', 's15', 's15', 's41')
    a('s_and_b32', 's8', 's8', 127)
    a('v_bfe_u32', v(t), 'v0', 1, 2); a('v_mul_u32_u24', v(t), 80, v(t))
    a('v_and_b32', v(u), 1, 'v0'); a('v_mul_u32_u24', v(u), 11664, v(u)); a('v_add_u32', v(u), 's15', v(u))
    a('v_mad_i32_i24', v(vc), v(t), 's14', v(u))
    a('s_mul_i32', 's8', 's8', TBLK); a('s_add_u32', 's8', 's8', WS_W)
    a('s_lshl_b32', 's41', 's9', 11); a('s_add_u32', 's41', 's41', 's8')
    a('v_add_u32', v(go), 's41', v(vo))
    a('s_mul_i32', 's41', 's9', 9*128); a('s_add_u32', 's41', 's41', 's8'); a('s_add_u32', 's41', 's41', 128*128)
    a('v_add_u32', v(go2), 's41', v(vo))
    ads = [R.alloc() for _ in range(6)]
    for it, C in enumerate((16, 56, 32, 72, 0, 40)):
        if C:
            a('v_add_u32', v(t), C, v(k0)); a('v_subrev_u32', v(u), 80, v(t)); a('v_min_u32', v(t), v(t), v(u))
            a('v_mad_i32_i24', v(ads[it]), v(t), 's14', v(vc))
        else: a('v_mad_i32_i24', v(ads[it]), v(k0), 's14', v(vc))
    O = R.alloc(24); Hh = R.alloc(24)
    stamp(a, 2)
    a.wait(vm=12)
    subbar(a, C_W1, 4, t, u)
    stamp(a, 3)
    def comb(it):
        for k in range(4): a('v_lshl_or_b32', v(O+4*it+k), v(Hh+4*it+k), 16, v(O+4*it+k))
    for it in range(6):
        for i in range(8): a('ds_read_u16', v((Hh if i & 1 else O) + 4*it + (i >> 1)), v(ads[it]), mods=f'offset:{1296*i}')
        if it: comb(it - 1)
        if it == 2:
            for k in range(2): a('global_store_dwordx4', v(go), v(O+4*k, 4), WS_, mods=f'offset:{1024*k} {SC}')
            a('v_add_u32', v(go), 8192, v(go))
        if it == 4:
            for k in range(2): a('global_store_dwordx4', v(go), v(O+8+4*k, 4), WS_, mods=f'offset:{1024*k} {SC}')
    comb(5)
    a('global_store_dwordx4', v(go2), v(O+16, 4), WS_, mods=SC)
    a('s_mov_b64', 'exec', 0xff)
    a('global_store_dwordx4', v(go2), v(O+20, 4), WS_, mods=f'offset:1024 {SC}')
    a('s_mov_b64', 'exec', -1)
    stamp(a, 4)
    a.wait(vm=6); arrive(a, C_H, t, u)
    get_epoch(a, t, u)
    a('s_lshl_b32', 's8', 's7', 7); a('s_add_u32', 's8', 's8', F_W)
    publish(a, C_W1D, 4, 's8', t, u)
    stamp(a, 6)
    a('s_add_u32', 's9', 's7', 128)
    a('s_cmp_ge_u32', 's9', 164); a('s_cbranch_scc1', 'Lfin')
    await_cnt(a, C_W1D, 4, t, u)
    a.pad_end()

def pk_A2(a, P):
    a.label('LA2'); a.pad_begin('A2')
    done = (P('AUX')[1:] + P('A2'))[:4]
    touch(a, [p for p in P('A2')[1:] if p not in done][:4], 8)
    R = RegAlloc(1, 168)
    t = R.alloc(); u = R.alloc(); go = R.alloc(4); lw = R.alloc(); lr0 = R.alloc(); lr1 = R.alloc(); fa = R.alloc(); fw = R.alloc()
    a('s_sub_u32', 's10', 's3', 8)
    a('v_lshrrev_b32', v(t), 3, 'v0'); a('v_lshl_add_u32', v(t), 's10', 3, v(t))
    a('s_mov_b32', 's8', TBLK); a('v_mul_lo_u32', v(go), v(t), 's8')
    a('v_and_b32', v(u), 7, 'v0'); a('v_lshl_add_u32', v(go), v(u), 4, v(go))
    a('s_lshl_b32', 's8', 's9', 7); a('v_add_u32', v(go), 's8', v(go))
    for it in range(1, 4): a('v_add_u32', v(go+it), 32*TBLK*it, v(go))
    ST = R.alloc(32); SW = ST + 16
    a('s_add_u32', 's12', 's38', WS_W); a('s_addc_u32', 's13', 's39', 0)
    def swz(dst, line, piece, tmp):
        a('v_lshrrev_b32', v(dst), 1, v(line)); a('v_lshlrev_b32', v(tmp), 2, v(line)); a('v_xor_b32', v(dst), v(dst), v(tmp))
        a('v_xor_b32', v(dst), piece, v(dst)); a('v_and_b32', v(dst), 7, v(dst)); a('v_lshlrev_b32', v(dst), 4, v(dst))
        a('v_lshl_add_u32', v(dst), v(line), 7, v(dst)); a('v_add_u32', v(dst), L_A2, v(dst))
    t2 = R.alloc()
    swz(lw, t, v(u), t2)
    a('s_sub_u32', 's8', 's9', 128); a('s_mul_i32', 's8', 's8', 57); a('s_lshr_b32', 's8', 's8', 9)
    a('s_bfe_u32', 's11', 's9', (2 << 16) | 4); a('s_cmp_lt_u32', 's9', 128); a('s_cselect_b32', 's8', 's11', 's8')
    a('v_and_b32', v(u), 3, 'v0'); a('v_lshl_add_u32', v(u), v(u), 5, v(t))
    a('v_lshlrev_b32', v(fa), 7, v(u)); a('v_add_u32', v(fa), F_A, v(fa))
    a('s_cmp_eq_u32', 's8', 3); a('s_cselect_b32', 's11', 127, 0)
    a('v_add_u32', v(u), 's11', v(u)); a('v_and_b32', v(u), 127, v(u)); a('v_lshlrev_b32', v(fw), 7, v(u)); a('v_add_u32', v(fw), F_W, v(fw))
    a('s_and_b32', 's8', 's8', 1); a('s_cmp_eq_u32', 's8', 0)
    a('s_cselect_b32', 's14', 0, 0x80008000); a('s_lshl_b32', 's11', 's8', 31); a('s_or_b32', 's11', 's11', fl(1/32))
    o = R.alloc(); h = R.alloc(); of = R.alloc(); hf = R.alloc()
    a('v_bfe_u32', v(o), 'v0', 3, 2); a('v_and_b32', v(t), 3, 'v0'); a('v_lshl_add_u32', v(o), v(o), 2, v(t))
    a('v_bfe_u32', v(t), 'v0', 2, 1); a('v_lshl_add_u32', v(o), v(o), 1, v(t))
    a('v_lshrrev_b32', v(h), 5, 'v0')
    a('v_lshl_add_u32', v(t), v(h), 5, v(o))
    a('s_lshl_b32', 's8', 's10', 1)
    swz(lr0, t, 's8', t2); a('v_xor_b32', v(lr1), 16, v(lr0))
    a('v_cvt_f32_u32', v(of), v(o)); a('v_mul_f32', v(of), 's11', v(of))
    a('v_cvt_f32_u32', v(hf), v(h)); a('v_mul_f32', v(hf), v(hf), v(of))
    C = R.alloc(8); Sm = R.alloc(8); N = R.alloc(8); TC = R.alloc(16); TS = R.alloc(16); X = R.alloc(8)
    for kap in range(2):
        for jj in range(4):
            for e in range(2):
                idx = 2*kap + 4*(2*jj + e)
                if idx: a('v_fmamk_f32', v(X+e), v(of), fl(float(idx)), v(hf)); src = X+e
                else: src = hf
                sincos(a, src, X+2+e, X+4+e)
                vv = 2*(2*jj + e) + kap
                a('v_mul_f32', v(X+6+e), fl(1/32), v(src))
                sincos(a, X+6+e, TC+vv, TS+vv)
            a('v_cvt_pk_bf16_f32', v(C+4*kap+jj), v(X+2), v(X+3))
            a('v_cvt_pk_bf16_f32', v(Sm+4*kap+jj), v(X+4), v(X+5))
            a('v_cvt_pk_bf16_f32', v(N+4*kap+jj), '-' + v(X+4), '-' + v(X+5))
    get_epoch(a, t, u)
    a('s_setprio', 2)
    stamp(a, 7)
    poll_flags(a, fa, t)
    for it in range(4): a('global_load_dwordx4', v(ST+4*it, 4), v(go+it), WS_, mods=SC)
    stamp(a, 8)
    poll_flags(a, fw, t)
    for it in range(4): a('global_load_dwordx4', v(SW+4*it, 4), v(go+it), 's[12:13]', mods=SC)
    for it in range(4): a('ds_write_b128', v(lw), v(ST+4*it, 4), mods=f'offset:{4096*it}')
    for it in range(4): a('ds_write_b128', v(lw), v(SW+4*it, 4), mods=f'offset:{16384+4096*it}')
    stamp(a, 9)
    subbar(a, C_A2a, 4, t, u)
    Z = R.alloc(16); Wp = R.alloc(16)
    for kap in range(2):
        for ri, ad in enumerate((lr0, lr1)): a('ds_read_b128', v(Z+8*kap+4*ri, 4), v(ad), mods=f'offset:{8192*kap}')
    for kap in range(2):
        for ri, ad in enumerate((lr0, lr1)): a('ds_read_b128', v(Wp+8*kap+4*ri, 4), v(ad), mods=f'offset:{16384+8192*kap}')
    AR, AI = ST, ST+16
    MF = 'v_mfma_f32_32x32x16_bf16'
    def mm(kap, dataA, inv, dR, dI):
        zr, zi = v(Z+8*kap, 4), v(Z+8*kap+4, 4)
        c, p, n = v(C+4*kap, 4), v(Sm+4*kap, 4), v(N+4*kap, 4)
        if inv: p, n = n, p
        for k, (d, z, m) in enumerate(((dR, zr, c), (dI, zi, c), (dR, zi, p), (dI, zr, n))):
            cin = 0 if (kap == 0 and k < 2) else v(d, 16)
            if dataA: a(MF, v(d, 16), z, m, cin)
            else: a(MF, v(d, 16), m, z, cin)
    mm(0, True, False, AR, AI); mm(1, True, False, AR, AI)
    for i in range(8): a('v_xor_b32', v(Wp + (i >> 2)*8 + 4 + (i & 3)), 's14', v(Wp + (i >> 2)*8 + 4 + (i & 3)))
    msk = t2; a('v_mov_b32', v(msk), 0xffff0000)
    for st in range(3):
        for kap in range(2):
            for jj in range(4):
                for e in range(2):
                    vv = 2*(2*jj + e) + kap
                    re, im = AR+vv, AI+vv
                    if st == 1:
                        c, s_ = X+4, X+5
                        for dst, pl in ((c, 0), (s_, 1)):
                            src = Wp + 8*kap + 4*pl + jj
                            if e: a('v_and_b32', v(dst), v(msk), v(src))
                            else: a('v_lshlrev_b32', v(dst), 16, v(src))
                    else: c, s_ = TC+vv, TS+vv
                    a('v_mul_f32', v(X+e), v(re), v(c)); a('v_mul_f32', v(X+2+e), v(im), v(c))
                    if st == 0:
                        a('v_fmac_f32', v(X+e), v(im), v(s_)); a('v_fma_f32', v(X+2+e), '-' + v(re), v(s_), v(X+2+e))
                    else:
                        a('v_fma_f32', v(X+e), '-' + v(im), v(s_), v(X+e)); a('v_fmac_f32', v(X+2+e), v(re), v(s_))
                a('v_cvt_pk_bf16_f32', v(Z+8*kap+jj), v(X), v(X+1))
                a('v_cvt_pk_bf16_f32', v(Z+8*kap+4+jj), v(X+2), v(X+3))
        mm(0, st == 1, st >= 1, AR, AI); mm(1, st == 1, st >= 1, AR, AI)
    for kap in range(2):
        for ih, ad in enumerate((lr0, lr1)):
            for x in range(4):
                vv = 2*(4*ih + x) + kap
                a('v_cvt_pk_bf16_f32', v(Z+8*kap+4*ih+x), v(AR+vv), v(AI+vv)); a('v_or_b32', v(Z+8*kap+4*ih+x), 1, v(Z+8*kap+4*ih+x))
            a('ds_write_b128', v(ad), v(Z+8*kap+4*ih, 4), mods=f'offset:{8192*kap}')
    stamp(a, 10)
    subbar(a, C_A2b, 4, t, u)
    for it in range(4): a('ds_read_b128', v(Wp+4*it, 4), v(lw), mods=f'offset:{4096*it}')
    for it in range(4): a('global_store_dwordx4', v(go+it), v(Wp+4*it, 4), WS_, mods=SC)
    a('s_setprio', 0)
    stamp(a, 13)
    a.pad_end()
    a('s_cmp_eq_u32', 's5', 0); a('s_cbranch_scc1', 'Lfin')
    a('s_cmp_lt_u32', 's3', 10); a('s_cbranch_scc1', 'LB3')
    a('s_branch', 'Lfin')

def build(stamps=False):
    roles.STAMPS[0] = stamps
    pads = {}
    for it in range(4):
        roles._lbl[0] = 0
        P = lambda r: pads.get(r, [])
        a = Asm()
        a.raw(f"; @launch grid=(256,1,1) block=(768,1,1) lds={LDS_TOTAL}")
        a.raw('.amdgcn_target "amdgcn-amd-amdhsa--gfx950"\n.text')
        entry(a, P)
        pk_A1(a, P)
        K = pk_A3c(a)
        pk_B2(a)
        pk_A3(a, K); a('s_branch', 'Lfin')
        st = pk_B1(a, P); pk_B1b(a, P, st)
        pk_aux(a, P)
        pk_A2(a, P)
        pk_B3(a)
        a.label('Lfin'); stamp_flush(a, 0); a('s_endpgm')
        a.raw(kernel_desc(KNAME, 168, 100))
        if a.pads == pads: break
        pads = a.pads
    print({k: len(x) for k, x in pads.items()}, 'est bytes', a.bytes, 'instrs', a.nins)
    return a.text()

if __name__ == '__main__':
    open('pk.s', 'w').write(build(False))
    open('pkst.s', 'w').write(build(True))
```

```python
from asmlib import *
import math
X_, WR_, WI_, Q_, K_, V_, SK_, H_, D_, OUT_, DBG_, WS_ = [f"s[{16+2*i}:{17+2*i}]" for i in range(12)]
WS_T, WS_W, WS_U, WS_Z, WS_F = 0, 0x300000, 0x600000, 0x900000, 0xC00000
TBLK = 20992
L_CNT = 0
L_H = 256
HSZ = 16912
L_U = L_H + 3*HSZ
USZ = 6768
L_RED = L_U + 3*USZ
L_P1 = L_RED + 3*4096
L_XR = L_P1
L_EI = L_XR + 8*3072
L_KI = L_P1
L_VI = L_KI + 17*1296
P1SZ = max(8*3072 + 8*2640 + 1024, 33*1296)
L_A2 = L_P1 + P1SZ
LDS_TOTAL = L_A2 + 32768
assert LDS_TOTAL <= 163840, LDS_TOTAL
for x in (L_H, L_U, L_RED, L_P1, L_EI, L_VI, L_A2): assert x % 16 == 0
assert L_XR % 256 == 0 or True

_lbl = [0]
def newlabel(p='L'):
    _lbl[0] += 1; return f"{p}{_lbl[0]}"

STAMPS = [False]
WS_ST = 0xD00000
def stamp(a, i):
    if STAMPS[0]: a.raw(f"    s_memrealtime s[{64+2*i}:{65+2*i}]")
def stamp_flush(a, kern, waitmem=True):
    if not STAMPS[0]: return
    if waitmem: a.wait(vm=0); stamp(a, 15)
    a.wait(lgkm=0)
    a('s_mul_i32', 's8', 's2', 12); a('s_add_u32', 's8', 's8', 's3'); a('s_add_u32', 's8', 's8', kern*256*12)
    a('s_lshl_b32', 's8', 's8', 6); a('s_add_u32', 's8', 's8', WS_ST)
    a('s_not_b32', 's9', 's64'); a('v_mov_b32', 'v2', 0); a('v_writelane_b32', 'v2', 's9', 1)
    for i in range(2, 16): a('v_writelane_b32', 'v2', s(64+2*i), i)
    a('v_lshlrev_b32', 'v3', 2, 'v0')
    a('s_mov_b64', 'exec', 0xfffe)
    a('global_atomic_umax', 'v3', 'v2', DBG_)
    a('s_mov_b64', 'exec', 1); a('v_mov_b32', 'v1', 's8')
    for i in range(16): a('v_mov_b32', v(4+i), s(64+2*i))
    for i in range(4): a('global_store_dwordx4', 'v1', v(4+4*i, 4), WS_, mods=f'offset:{16*i}')

def prologue(a, name, endlabel):
    a.raw(f".globl {name}\n.p2align 8\n.type {name},@function\n{name}:")
    a.dead = False
    a('s_cmp_ge_u32', 's2', 256); a('s_cbranch_scc1', endlabel)
    if STAMPS[0]:
        for i in range(1, 16): a('s_mov_b32', s(64+2*i), 0)
    stamp(a, 0)
    a('s_load_dwordx16', 's[16:31]', 's[0:1]', 0)
    a('s_load_dwordx8', 's[32:39]', 's[0:1]', 64)
    a('v_lshrrev_b32', 'v1', 6, 'v0')
    a('v_and_b32', 'v0', 63, 'v0')
    a('v_readfirstlane_b32', 's3', 'v1')
    a('s_and_b32', 's4', 's2', 7)
    a('s_bfe_u32', 's5', 's2', (1 << 16) | 3)
    a('s_lshr_b32', 's6', 's2', 4)
    a('s_lshl3_add_u32', 's7', 's6', 's4')
    a('v_lshlrev_b32', 'v1', 2, 'v0'); a('v_mov_b32', 'v2', 0)
    a('ds_write_b32', 'v1', 'v2', mods=f'offset:{L_CNT}')
    a.wait(lgkm=0)
    stamp(a, 1)
    a('s_barrier')
    stamp(a, 2)

def subbar(a, cid, n, va, vb, vm=False):
    a('v_mov_b32', v(va), L_CNT + 4*cid); a('v_mov_b32', v(vb), 1)
    a.wait(vm=0 if vm else None, lgkm=0)
    a('s_mov_b64', 'exec', 1)
    a('ds_add_rtn_u32', v(vb), v(va), v(vb))
    a('s_mov_b64', 'exec', -1)
    a('v_readfirstlane_b32', 's40', v(vb))
    done = newlabel('Lbd'); loop = newlabel('Lbl')
    a('s_cmp_ge_u32', 's40', n - 1); a('s_cbranch_scc1', done)
    a.label(loop)
    a('ds_read_b32', v(vb), v(va))
    a('v_readfirstlane_b32', 's40', v(vb))
    a('s_cmp_lt_u32', 's40', n); a('s_cbranch_scc1', loop)
    a.label(done)

def arrive(a, cid, va, vb, vm=False):
    a('v_mov_b32', v(va), L_CNT + 4*cid); a('v_mov_b32', v(vb), 1)
    a.wait(vm=0 if vm else None, lgkm=0)
    a('s_mov_b64', 'exec', 1)
    a('ds_add_u32', v(va), v(vb))
    a('s_mov_b64', 'exec', -1)

def await_cnt(a, cid, n, va, vb):
    a('v_mov_b32', v(va), L_CNT + 4*cid)
    loop = newlabel('Lbl')
    a.label(loop)
    a('ds_read_b32', v(vb), v(va))
    a('v_readfirstlane_b32', 's40', v(vb))
    a('s_cmp_lt_u32', 's40', n); a('s_cbranch_scc1', loop)
    a.label(newlabel('Lbd'))

def sincos(a, ang, c, s_):
    a('v_cos_f32', v(c), v(ang)); a('v_sin_f32', v(s_), v(ang))

def k1_regs(a, R, vka):
    t = R.alloc(); u = R.alloc(); out = [R.alloc() for _ in range(3)]
    a('v_mul_u32_u24', v(t), 65, v(vka))
    a('v_mul_u32_u24', v(u), 205, v(t)); a('v_lshrrev_b32', v(u), 14, v(u))
    a('v_mul_u32_u24', v(u), 80, v(u)); a('v_sub_u32', v(t), v(t), v(u))
    for k5 in range(3):
        if k5:
            a('v_add_u32', v(t), 16, v(t)); a('v_subrev_u32', v(u), 80, v(t)); a('v_min_u32', v(t), v(t), v(u))
        a('v_cvt_f32_u32', v(out[k5]), v(t)); a('v_mul_f32', v(out[k5]), fl(1/640), v(out[k5]))
    return out
for _ka in range(16): assert (65*_ka) - ((65*_ka*205) >> 14)*80 == (65*_ka) % 80

def row_offsets(a, R, sbase, pitch_rows):
    o = [R.alloc() for _ in range(3)]; t = R.alloc()
    a('v_lshlrev_b32', v(t), 4, 'v0')
    a('v_add_u32', v(o[0]), sbase, v(t))
    a('v_add_u32', v(o[1]), pitch_rows - 24*16 - 1024, v(o[0]))
    a('v_cmp_gt_u32', 'vcc', 24, 'v0')
    a('v_cndmask_b32', v(o[1]), v(o[1]), v(o[0]), 'vcc')
    a('v_min_u32', v(t), 39*16, v(t))
    a('v_add_u32', v(t), pitch_rows + 40*16 - 2048, v(t))
    a('v_add_u32', v(o[2]), sbase, v(t))
    return o

def d1_addrs(a, R, va, vbase):
    t = R.alloc(); u = R.alloc(); out = [R.alloc() for _ in range(5)]
    a('v_mul_u32_u24', v(t), 5, v(va))
    for e in range(5):
        if e:
            a('v_add_u32', v(t), 16, v(t)); a('v_subrev_u32', v(u), 80, v(t)); a('v_min_u32', v(t), v(t), v(u))
        a('v_lshl_add_u32', v(out[e]), v(t), 4, v(vbase))
    return out

def ei_addrs(a, R, pitch, dup):
    a0 = R.alloc(); a1 = R.alloc(); t = R.alloc(); u = R.alloc()
    a('s_mul_i32', 's8', 's3', pitch); a('s_add_u32', 's8', 's8', L_EI)
    a('v_lshl_add_u32', v(a0), 'v0', 4, 's8')
    a('v_and_b32', v(t), 15, 'v0'); a('v_lshrrev_b32', v(u), 4, 'v0')
    a('v_cmp_gt_u32', 'vcc', 9, v(t))
    if dup:
        a('v_subrev_u32', v(a1), 8, v(t)); a('v_cndmask_b32', v(t), v(a1), v(t), 'vcc')
    a('v_mad_u32_u24', v(t), v(u), 9, v(t))
    a('s_add_u32', 's8', 's8', 2048)
    a('v_lshl_add_u32', v(a1), v(t), 4, 's8')
    if not dup:
        a('v_lshlrev_b32', v(t), 4, 'v0'); a('v_add_u32', v(t), L_EI + 8*2640, v(t))
        a('v_cndmask_b32', v(a1), v(t), v(a1), 'vcc')
    return a0, a1

def role_A1(a, stflags=''):
    R = RegAlloc(1, 168)
    a('s_lshl_b32', 's9', 's3', 7); a('s_add_u32', 's9', 's9', 's7')
    a('s_mul_i32', 's10', 's9', 1280)
    vo = row_offsets(a, R, 's10', 1024*1280)
    a('s_mul_i32', 's11', 's3', 3072); a('s_add_u32', 's11', 's11', L_XR)
    a('s_mov_b32', 'm0', 's11')
    for t in range(3): a('global_load_lds_dwordx4', v(vo[t]), X_, mods=f'offset:{1024*t}')
    va = R.alloc(); vb = R.alloc(); t = R.alloc()
    a('v_lshrrev_b32', v(va), 2, 'v0')
    a('v_bfe_u32', v(vb), 'v0', 1, 1); a('v_mul_u32_u24', v(vb), 1408, v(vb))
    a('v_and_b32', v(t), 1, 'v0'); a('v_lshl_add_u32', v(vb), v(t), 3, v(vb)); a('v_add_u32', v(vb), 's11', v(vb))
    tra = d1_addrs(a, R, va, vb)
    ka = R.alloc(); q = R.alloc(); kaf = R.alloc(); qf = R.alloc(); bf = R.alloc()
    a('v_and_b32', v(ka), 15, 'v0'); a('v_lshrrev_b32', v(q), 4, 'v0')
    a('v_cvt_f32_u32', v(kaf), v(ka)); a('v_cvt_f32_u32', v(qf), v(q))
    a('v_and_b32', v(bf), 1, v(q)); a('v_lshlrev_b32', v(bf), 2, v(bf)); a('v_cvt_f32_u32', v(bf), v(bf))
    SEQ = [1, 2, 4, 1, 3, 4, 0, 0]
    Hs = R.alloc(16); Gs = R.alloc(16)
    ang = [R.alloc() for _ in range(4)]; an2 = [R.alloc() for _ in range(4)]
    cs = [R.alloc() for _ in range(8)]
    a('v_mul_f32', v(t), 0.5, v(kaf)); a('v_mul_f32', v(t), 0.5, v(t))
    a('v_mul_f32', v(ang[0]), v(t), v(qf))
    for al in range(1, 4): a('v_fmamk_f32', v(ang[al]), v(kaf), fl(al/16), v(ang[0]))
    for tt in range(5):
        src = ang
        if tt:
            for al in range(4): a('v_add_f32', v(an2[al]), fl(tt/5), v(ang[al]))
            src = an2
        for al in range(4): sincos(a, src[al], cs[al], cs[4+al])
        for pos in [i for i, x in enumerate(SEQ) if x == tt]:
            for h in range(2):
                a('v_cvt_pk_bf16_f32', v(Hs + 2*pos + h), v(cs[2*h]), v(cs[2*h+1]))
                a('v_cvt_pk_bf16_f32', v(Gs + 2*pos + h), '-' + v(cs[4+2*h]), '-' + v(cs[4+2*h+1]))
    k1 = k1_regs(a, R, ka)
    TC = R.alloc(12); TS = R.alloc(12)
    for k5 in range(3):
        a('v_mul_f32', v(ang[0]), v(k1[k5]), v(bf))
        for r in range(1, 4): a('v_add_f32', v(ang[r]), v(ang[r-1]), v(k1[k5]))
        for r in range(4): sincos(a, ang[r], TC + 4*k5 + r, TS + 4*k5 + r)
    Mre = R.alloc(4); Mim = R.alloc(4)
    u2 = R.alloc(); f1f = R.alloc()
    a('v_and_b32', v(u2), 7, 'v0'); a('v_cvt_f32_u32', v(u2), v(u2)); a('v_mul_f32', v(u2), fl(1/8), v(u2))
    a('v_bfe_u32', v(f1f), 'v0', 3, 1)
    a('v_lshrrev_b32', v(t), 5, 'v0'); a('v_lshl_add_u32', v(t), v(t), 10, 's9')
    a('v_mul_u32_u24', v(t), v(t), v(f1f)); a('v_cvt_f32_u32', v(t), v(t)); a('v_mul_f32', v(t), fl(1/2048), v(t))
    a('v_fma_f32', v(ang[0]), v(u2), v(bf), v(t))
    for r in range(1, 4): a('v_add_f32', v(ang[r]), v(ang[r-1]), v(u2))
    for r in range(4): sincos(a, ang[r], cs[r], cs[4+r])
    for r in range(4):
        a('v_cvt_pk_bf16_f32', v(Mre + r), v(cs[r]), v(cs[4+r]))
        a('v_cvt_pk_bf16_f32', v(Mim + r), '-' + v(cs[4+r]), v(cs[r]))
    ea0, ea1 = ei_addrs(a, R, 2624, dup=False)
    tr2 = R.alloc(); go = R.alloc()
    a('v_bfe_u32', v(tr2), 'v0', 2, 2); a('v_mul_u32_u24', v(tr2), 2624, v(tr2))
    a('v_and_b32', v(t), 3, 'v0'); a('v_lshl_add_u32', v(tr2), v(t), 3, v(tr2))
    a('v_lshl_add_u32', v(tr2), v(q), 5, v(tr2))
    a('s_lshl_b32', 's8', 's3', 7); a('s_add_u32', 's8', 's8', L_EI); a('v_add_u32', v(tr2), 's8', v(tr2))
    a('s_mul_i32', 's8', 's7', TBLK); a('s_lshl_b32', 's12', 's3', 10); a('s_add_u32', 's8', 's8', 's12')
    a('v_lshl_add_u32', v(go), 'v0', 4, 's8')
    Dr = R.alloc(10)
    stamp(a, 3)
    a.wait(vm=0)
    stamp(a, 4)
    for e in (0, 1, 2, 3, 4): a('ds_read_b64_tr_b16', v(Dr + 2*((e + 4) % 5), 2), v(tra[e]))
    P0 = R.alloc(8); A1 = R.alloc(24); PK = R.alloc(12)
    a('v_mfma_f32_16x16x16_bf16', v(P0, 4), v(Dr+8, 2), v(Hs+12, 2), 0)
    a('v_mfma_f32_16x16x16_bf16', v(P0+4, 4), v(Dr+8, 2), v(Gs+12, 2), 0)
    PAIR = {1: (0, 4), 2: (1, 3), 0: (6, 6)}
    for k5 in (1, 2, 0):
        for ri, M in enumerate((Hs, Gs)):
            a('v_mfma_f32_16x16x32_bf16', v(A1+8*k5+4*ri, 4), v(Dr, 4), v(M + 2*PAIR[k5][0], 4), v(P0+4*ri, 4))
        for ri, M in enumerate((Hs, Gs)):
            a('v_mfma_f32_16x16x32_bf16', v(A1+8*k5+4*ri, 4), v(Dr+4, 4), v(M + 2*PAIR[k5][1], 4), v(A1+8*k5+4*ri, 4))
    A2 = Hs; assert Gs == Hs + 16
    for k5 in (1, 2, 0):
        for r in range(4):
            re, im, c, s_ = A1+8*k5+r, A1+8*k5+4+r, TC+4*k5+r, TS+4*k5+r
            a('v_mul_f32', v(cs[r]), v(re), v(c)); a('v_mul_f32', v(cs[4+r]), v(im), v(c))
            a('v_fmac_f32', v(cs[r]), v(im), v(s_)); a('v_fma_f32', v(cs[4+r]), '-' + v(re), v(s_), v(cs[4+r]))
            a('v_cvt_pk_bf16_f32', v(PK+4*k5+r), v(cs[r]), v(cs[4+r]))
        a('v_mfma_f32_16x16x32_bf16', v(A2+8*k5, 4), v(Mre, 4), v(PK+4*k5, 4), 0)
        a('v_mfma_f32_16x16x32_bf16', v(A2+8*k5+4, 4), v(Mim, 4), v(PK+4*k5, 4), 0)
    for k5 in (1, 2, 0):
        for r in range(4): a('v_cvt_pk_bf16_f32', v(PK+4*k5+r), v(A2+8*k5+r), v(A2+8*k5+4+r))
        if k5: a('ds_write_b128', v(ea0), v(PK+4*k5, 4), mods=f'offset:{1024*(k5-1)}')
        else: a('ds_write_b128', v(ea1), v(PK, 4))
    stamp(a, 5)
    subbar(a, 0, 8, cs[0], cs[1])
    stamp(a, 6)
    O = A1
    for it in range(3):
        if it == 2:
            skip = newlabel('La1s'); a('s_cmp_gt_u32', 's3', 4); a('s_cbranch_scc1', skip)
        a('ds_read_b64_tr_b16', v(O+4*it, 2), v(tr2), mods=f'offset:{1024*it}')
        a('ds_read_b64_tr_b16', v(O+4*it+2, 2), v(tr2), mods=f'offset:{1024*it + 4*2624}')
        if it == 1:
            a('global_store_dwordx4', v(go), v(O, 4), WS_, mods=stflags)
            a('v_add_u32', v(go), 8192, v(go))
            a('global_store_dwordx4', v(go), v(O+4, 4), WS_, mods=stflags)
            a('v_add_u32', v(go), 8192, v(go))
    a('s_cmp_lt_u32', 's3', 4); a('s_cselect_b32', 'exec_hi', -1, 0)
    a('global_store_dwordx4', v(go), v(O+8, 4), WS_, mods=stflags)
    a('s_mov_b64', 'exec', -1)
    a.label(skip)
    return R.next

def srd(a, sd, base_lo, base_hi, nbytes):
    a('s_mov_b32', s(sd), base_lo); a('s_and_b32', s(sd+1), base_hi, 0xffff)
    a('s_mov_b32', s(sd+2), nbytes); a('s_mov_b32', s(sd+3), 0x20000)

def role_W1(a, stflags=''):
    R = RegAlloc(1, 168)
    WB = 2048*321*2
    srd(a, 44, 's18', 's19', WB); srd(a, 48, 's20', 's21', WB)
    a('s_sub_u32', 's9', 's3', 8)
    vo = R.alloc(); t = R.alloc(); u = R.alloc()
    a('v_lshlrev_b32', v(vo), 4, 'v0')
    a('s_mul_i32', 's10', 's7', 1284)
    a('s_mul_i32', 's11', 's9', 2*256*642); a('s_add_u32', 's10', 's10', 's11')
    a('s_mul_i32', 's11', 's9', 2*1296); a('s_add_u32', 's11', 's11', L_A2 + 1296)
    def slot(soff, m0v_s, add):
        for pl, sd in enumerate((44, 48)):
            a('s_add_u32', 'm0', m0v_s, add + pl*11664)
            a('buffer_load_dwordx4', v(vo), s(sd, 4), soff, mods='offen lds')
            a('s_mov_b64', 'exec', 0x1ffff)
            a('buffer_load_dwordx4', v(vo), s(sd, 4), soff, mods='offen offset:1024 lds')
            a('s_mov_b64', 'exec', -1)
    slot('s10', 's11', 0)
    a('s_add_u32', 's10', 's10', 256*642)
    slot('s10', 's11', 1296)
    sk = newlabel('Lw1s')
    a('s_cmp_lg_u32', 's7', 127); a('s_cbranch_scc1', sk)
    a('s_cmp_lg_u32', 's9', 3); a('s_cbranch_scc1', sk)
    a('s_mov_b32', 's11', L_A2)
    slot('s10', 's11', 0)
    a.label(sk)
    k0 = R.alloc(); vc = R.alloc(); go = R.alloc(); go2 = R.alloc()
    a('v_lshrrev_b32', v(t), 3, 'v0')
    a('v_mul_u32_u24', v(k0), 65, v(t))
    a('v_mul_u32_u24', v(u), 205, v(k0)); a('v_lshrrev_b32', v(u), 14, v(u))
    a('v_mul_u32_u24', v(u), 80, v(u)); a('v_sub_u32', v(k0), v(k0), v(u))
    a('s_and_b32', 's12', 's9', 1)
    a('s_lshr_b32', 's13', 's9', 1)
    a('s_cmp_eq_u32', 's12', 0)
    a('s_cselect_b32', 's14', 2, -2)
    a('s_cselect_b32', 's15', 0, 640)
    a('s_mul_i32', 's8', 's13', 642); a('s_add_u32', 's15', 's15', 's8')
    a('s_add_u32', 's15', 's15', L_A2 + 1296)
    a('s_cmp_eq_u32', 's9', 3); a('s_cselect_b32', 's8', 1, 0)
    a('s_add_u32', 's8', 's8', 's7')
    a('s_cmp_eq_u32', 's8', 128); a('s_cselect_b32', 's41', 1296, 0); a('s_sub_u32', 's15', 's15', 's41')
    a('s_and_b32', 's8', 's8', 127)
    a('v_bfe_u32', v(t), 'v0', 1, 2); a('v_mul_u32_u24', v(t), 80, v(t))
    a('v_and_b32', v(u), 1, 'v0'); a('v_mul_u32_u24', v(u), 11664, v(u)); a('v_add_u32', v(u), 's15', v(u))
    a('v_mad_i32_i24', v(vc), v(t), 's14', v(u))
    a('s_mul_i32', 's8', 's8', TBLK); a('s_add_u32', 's8', 's8', WS_W)
    a('s_lshl_b32', 's41', 's9', 11); a('s_add_u32', 's41', 's41', 's8')
    a('v_add_u32', v(go), 's41', v(vo))
    a('s_mul_i32', 's41', 's9', 9*128); a('s_add_u32', 's41', 's41', 's8'); a('s_add_u32', 's41', 's41', 128*128)
    a('v_add_u32', v(go2), 's41', v(vo))
    ads = [R.alloc() for _ in range(6)]
    for it, C in enumerate((16, 56, 32, 72, 0, 40)):
        if C:
            a('v_add_u32', v(t), C, v(k0)); a('v_subrev_u32', v(u), 80, v(t)); a('v_min_u32', v(t), v(t), v(u))
            a('v_mad_i32_i24', v(ads[it]), v(t), 's14', v(vc))
        else:
            a('v_mad_i32_i24', v(ads[it]), v(k0), 's14', v(vc))
    O = R.alloc(24); Hh = R.alloc(24)
    stamp(a, 3)
    subbar(a, 1, 4, t, u, vm=True)
    stamp(a, 4)
    def comb(it):
        for k in range(4): a('v_lshl_or_b32', v(O+4*it+k), v(Hh+4*it+k), 16, v(O+4*it+k))
    for it in range(6):
        for i in range(8):
            a('ds_read_u16', v((Hh if i & 1 else O) + 4*it + (i >> 1)), v(ads[it]), mods=f'offset:{1296*i}')
        if it: comb(it - 1)
        if it == 2:
            for k in range(2): a('global_store_dwordx4', v(go), v(O+4*k, 4), WS_, mods=f'offset:{1024*k} {stflags}')
            a('v_add_u32', v(go), 8192, v(go))
        if it == 4:
            for k in range(2): a('global_store_dwordx4', v(go), v(O+8+4*k, 4), WS_, mods=f'offset:{1024*k} {stflags}')
    comb(5)
    a('global_store_dwordx4', v(go2), v(O+16, 4), WS_, mods=stflags)
    a('s_mov_b64', 'exec', 0xff)
    a('global_store_dwordx4', v(go2), v(O+20, 4), WS_, mods=f'offset:1024 {stflags}')
    a('s_mov_b64', 'exec', -1)
    return R.next

def role_A2(a, ldflags='', stflags=''):
    R = RegAlloc(1, 168)
    t = R.alloc(); u = R.alloc(); go = R.alloc(4); lw = R.alloc(); lr0 = R.alloc(); lr1 = R.alloc()
    a('s_sub_u32', 's10', 's3', 8)
    a('v_lshrrev_b32', v(t), 3, 'v0'); a('v_lshl_add_u32', v(t), 's10', 3, v(t))
    a('s_mov_b32', 's8', TBLK); a('v_mul_lo_u32', v(go), v(t), 's8')
    a('v_and_b32', v(u), 7, 'v0'); a('v_lshl_add_u32', v(go), v(u), 4, v(go))
    a('s_lshl_b32', 's8', 's9', 7); a('v_add_u32', v(go), 's8', v(go))
    for it in range(1, 4): a('v_add_u32', v(go+it), 32*TBLK*it, v(go))
    ST = R.alloc(32); SW = ST + 16
    a('s_add_u32', 's12', 's38', WS_W); a('s_addc_u32', 's13', 's39', 0)
    for it in range(4): a('global_load_dwordx4', v(ST+4*it, 4), v(go+it), WS_, mods=ldflags)
    for it in range(4): a('global_load_dwordx4', v(SW+4*it, 4), v(go+it), 's[12:13]', mods=ldflags)
    def swz(dst, line, piece, tmp):
        a('v_lshrrev_b32', v(dst), 1, v(line)); a('v_lshlrev_b32', v(tmp), 2, v(line)); a('v_xor_b32', v(dst), v(dst), v(tmp))
        a('v_xor_b32', v(dst), piece, v(dst)); a('v_and_b32', v(dst), 7, v(dst)); a('v_lshlrev_b32', v(dst), 4, v(dst))
        a('v_lshl_add_u32', v(dst), v(line), 7, v(dst)); a('v_add_u32', v(dst), L_A2, v(dst))
    t2 = R.alloc()
    swz(lw, t, v(u), t2)
    o = R.alloc(); h = R.alloc(); of = R.alloc(); hf = R.alloc()
    a('v_bfe_u32', v(o), 'v0', 3, 2); a('v_and_b32', v(t), 3, 'v0'); a('v_lshl_add_u32', v(o), v(o), 2, v(t))
    a('v_bfe_u32', v(t), 'v0', 2, 1); a('v_lshl_add_u32', v(o), v(o), 1, v(t))
    a('v_lshrrev_b32', v(h), 5, 'v0')
    a('v_lshl_add_u32', v(t), v(h), 5, v(o))
    a('s_lshl_b32', 's8', 's10', 1)
    swz(lr0, t, 's8', t2); a('v_xor_b32', v(lr1), 16, v(lr0))
    a('s_sub_u32', 's8', 's9', 128); a('s_mul_i32', 's8', 's8', 57); a('s_lshr_b32', 's8', 's8', 9)
    a('s_lshr_b32', 's11', 's9', 4); a('s_cmp_lt_u32', 's9', 128); a('s_cselect_b32', 's8', 's11', 's8')
    a('s_and_b32', 's8', 's8', 1); a('s_cmp_eq_u32', 's8', 0)
    a('s_cselect_b32', 's14', 0, 0x80008000); a('s_lshl_b32', 's11', 's8', 31); a('s_or_b32', 's11', 's11', fl(1/32))
    a('v_cvt_f32_u32', v(of), v(o)); a('v_mul_f32', v(of), 's11', v(of))
    a('v_cvt_f32_u32', v(hf), v(h)); a('v_mul_f32', v(hf), v(hf), v(of))
    C = R.alloc(8); Sm = R.alloc(8); N = R.alloc(8); TC = R.alloc(16); TS = R.alloc(16)
    X = R.alloc(8)
    for kap in range(2):
        for jj in range(4):
            for e in range(2):
                idx = 2*kap + 4*(2*jj + e)
                if idx: a('v_fmamk_f32', v(X+e), v(of), fl(float(idx)), v(hf)); src = X+e
                else: src = hf
                sincos(a, src, X+2+e, X+4+e)
                vv = 2*(2*jj + e) + kap
                a('v_mul_f32', v(X+6+e), fl(1/32), v(src))
                sincos(a, X+6+e, TC+vv, TS+vv)
            a('v_cvt_pk_bf16_f32', v(C+4*kap+jj), v(X+2), v(X+3))
            a('v_cvt_pk_bf16_f32', v(Sm+4*kap+jj), v(X+4), v(X+5))
            a('v_cvt_pk_bf16_f32', v(N+4*kap+jj), '-' + v(X+4), '-' + v(X+5))
    stamp(a, 3)
    for it in range(4): a('ds_write_b128', v(lw), v(ST+4*it, 4), mods=f'offset:{4096*it}')
    for it in range(4): a('ds_write_b128', v(lw), v(SW+4*it, 4), mods=f'offset:{16384+4096*it}')
    stamp(a, 4)
    subbar(a, 2, 4, t, u)
    stamp(a, 5)
    Z = R.alloc(16); Wp = R.alloc(16)
    for kap in range(2):
        for ri, ad in enumerate((lr0, lr1)): a('ds_read_b128', v(Z+8*kap+4*ri, 4), v(ad), mods=f'offset:{8192*kap}')
    for kap in range(2):
        for ri, ad in enumerate((lr0, lr1)): a('ds_read_b128', v(Wp+8*kap+4*ri, 4), v(ad), mods=f'offset:{16384+8192*kap}')
    ACC = [ST, None]; ACC[1] = None
    AR, AI = ST, ST+16
    BR = None
    MF = 'v_mfma_f32_32x32x16_bf16'
    def mm(kap, dataA, inv, dR, dI):
        zr, zi = v(Z+8*kap, 4), v(Z+8*kap+4, 4)
        c, p, n = v(C+4*kap, 4), v(Sm+4*kap, 4), v(N+4*kap, 4)
        if inv: p, n = n, p
        for k, (d, z, m) in enumerate(((dR, zr, c), (dI, zi, c), (dR, zi, p), (dI, zr, n))):
            cin = 0 if (kap == 0 and k < 2) else v(d, 16)
            if dataA: a(MF, v(d, 16), z, m, cin)
            else: a(MF, v(d, 16), m, z, cin)
    A2R = R.alloc(32) if R.next + 32 <= 168 else None
    bufs = [(AR, AI), (A2R, A2R+16)] if A2R else [(AR, AI), (AR, AI)]
    mm(0, True, False, *bufs[0]); mm(1, True, False, *bufs[0])
    for i in range(8): a('v_xor_b32', v(Wp + (i >> 2)*8 + 4 + (i & 3)), 's14', v(Wp + (i >> 2)*8 + 4 + (i & 3)))
    msk = t2; a('v_mov_b32', v(msk), 0xffff0000)
    for st in range(3):
        sR, sI = bufs[st & 1]; dR, dI = bufs[(st + 1) & 1]
        for kap in range(2):
            for jj in range(4):
                for e in range(2):
                    vv = 2*(2*jj + e) + kap
                    re, im = sR+vv, sI+vv
                    if st == 1:
                        c, s_ = X+4, X+5
                        for dst, pl in ((c, 0), (s_, 1)):
                            src = Wp + 8*kap + 4*pl + jj
                            if e: a('v_and_b32', v(dst), v(msk), v(src))
                            else: a('v_lshlrev_b32', v(dst), 16, v(src))
                    else: c, s_ = TC+vv, TS+vv
                    a('v_mul_f32', v(X+e), v(re), v(c)); a('v_mul_f32', v(X+2+e), v(im), v(c))
                    if st == 0:
                        a('v_fmac_f32', v(X+e), v(im), v(s_)); a('v_fma_f32', v(X+2+e), '-' + v(re), v(s_), v(X+2+e))
                    else:
                        a('v_fma_f32', v(X+e), '-' + v(im), v(s_), v(X+e)); a('v_fmac_f32', v(X+2+e), v(re), v(s_))
                a('v_cvt_pk_bf16_f32', v(Z+8*kap+jj), v(X), v(X+1))
                a('v_cvt_pk_bf16_f32', v(Z+8*kap+4+jj), v(X+2), v(X+3))
            if A2R or kap == 1:
                if not A2R: mm(0, st == 1, st >= 1, dR, dI)
                mm(kap, st == 1, st >= 1, dR, dI)
    sR, sI = bufs[1]
    for kap in range(2):
        for ih, ad in enumerate((lr0, lr1)):
            for x in range(4):
                vv = 2*(4*ih + x) + kap
                a('v_cvt_pk_bf16_f32', v(Z+8*kap+4*ih+x), v(sR+vv), v(sI+vv))
            a('ds_write_b128', v(ad), v(Z+8*kap+4*ih, 4), mods=f'offset:{8192*kap}')
    stamp(a, 6)
    subbar(a, 3, 4, t, u)
    stamp(a, 7)
    for it in range(4): a('ds_read_b128', v(Wp+4*it, 4), v(lw), mods=f'offset:{4096*it}')
    for it in range(4): a('global_store_dwordx4', v(go+it), v(Wp+4*it, 4), WS_, mods=stflags)
    return R.next

def role_A3(a, ldflags=''):
    R = RegAlloc(1, 168)
    PIT = 2640
    t = R.alloc(); u = R.alloc(); go = R.alloc(); lw = R.alloc()
    IN = R.alloc(12)
    a('s_mul_i32', 's8', 's7', TBLK); a('s_lshl_b32', 's12', 's3', 10); a('s_add_u32', 's8', 's8', 's12')
    a('v_lshl_add_u32', v(go), 'v0', 4, 's8')
    a('global_load_dwordx4', v(IN, 4), v(go), WS_, mods=ldflags)
    a('v_add_u32', v(t), 8192, v(go))
    a('global_load_dwordx4', v(IN+4, 4), v(t), WS_, mods=ldflags)
    a('s_mul_i32', 's8', 's7', TBLK); a('s_add_u32', 's8', 's8', TBLK - 16)
    a('v_add_u32', v(t), 16384, v(go)); a('v_min_u32', v(t), 's8', v(t))
    a('global_load_dwordx4', v(IN+8, 4), v(t), WS_, mods=ldflags)
    a('v_and_b32', v(t), 1, 'v0'); a('v_mul_u32_u24', v(lw), 4*PIT, v(t))
    a('v_lshrrev_b32', v(t), 1, 'v0'); a('v_lshl_add_u32', v(lw), v(t), 2, v(lw))
    a('s_lshl_b32', 's8', 's3', 7); a('s_add_u32', 's8', 's8', L_EI); a('v_add_u32', v(lw), 's8', v(lw))
    ea0, ea1 = ei_addrs(a, R, PIT, dup=True)
    a('s_lshl_b32', 's9', 's3', 7); a('s_add_u32', 's9', 's9', 's7')
    a('s_mul_i32', 's10', 's9', 2560)
    vo = row_offsets(a, R, 's10', 1024*2560)
    n = R.alloc(); q = R.alloc(); nf = R.alloc(); qf = R.alloc(); bf = R.alloc(); k2f = R.alloc()
    a('v_and_b32', v(n), 15, 'v0'); a('v_lshrrev_b32', v(q), 4, 'v0')
    a('v_cvt_f32_u32', v(nf), v(n)); a('v_cvt_f32_u32', v(qf), v(q))
    a('v_and_b32', v(bf), 7, 'v0'); a('v_cvt_f32_u32', v(bf), v(bf))
    ang = [R.alloc() for _ in range(4)]; an2 = [R.alloc() for _ in range(4)]; cs = [R.alloc() for _ in range(8)]
    Mre = R.alloc(4); Mim = R.alloc(4); u2 = R.alloc()
    a('v_mul_f32', v(u2), fl(1/8), v(bf))
    a('v_and_b32', v(k2f), 1, v(q)); a('v_lshlrev_b32', v(k2f), 2, v(k2f)); a('v_cvt_f32_u32', v(k2f), v(k2f))
    a('v_bfe_u32', v(t), 'v0', 3, 1); a('v_lshl_add_u32', v(t), v(t), 10, 's9')
    a('v_lshrrev_b32', v(u), 5, 'v0'); a('v_mul_u32_u24', v(t), v(t), v(u))
    a('v_cvt_f32_u32', v(t), v(t)); a('v_mul_f32', v(t), fl(1/2048), v(t))
    a('v_fma_f32', v(ang[0]), v(u2), v(k2f), v(t))
    for r in range(1, 4): a('v_add_f32', v(ang[r]), v(ang[r-1]), v(u2))
    for r in range(4): sincos(a, ang[r], cs[r], cs[4+r])
    for r in range(4):
        a('v_cvt_pk_bf16_f32', v(Mre+r), v(cs[r]), '-' + v(cs[4+r]))
        a('v_cvt_pk_bf16_f32', v(Mim+r), v(cs[4+r]), v(cs[r]))
    TC = R.alloc(12); TS = R.alloc(12); kar = R.alloc(); wt = R.alloc()
    NRM = 1.0/(2048*640)
    for r in range(4):
        mk = R.mark()
        a('v_lshl_add_u32', v(kar), v(q), 2, r)
        k1 = k1_regs(a, R, kar)
        for k5 in range(3):
            a('v_mul_f32', v(k1[k5]), v(k1[k5]), v(bf))
            sincos(a, k1[k5], TC+4*k5+r, TS+4*k5+r)
        a('v_mov_b32', v(wt), fl(2*NRM))
        for k5 in (1, 2):
            a('v_mul_f32', v(TC+4*k5+r), v(wt), v(TC+4*k5+r)); a('v_mul_f32', v(TS+4*k5+r), v(wt), v(TS+4*k5+r))
        a('v_cmp_gt_u32', 'vcc', 9, v(kar)); a('v_cndmask_b32', v(wt), 0, v(wt), 'vcc')
        if r == 0:
            a('v_and_b32', v(t), 7, v(kar)); a('v_cmp_eq_u32', 'vcc', 0, v(t))
            a('v_mov_b32', v(t), fl(NRM)); a('v_cndmask_b32', v(wt), v(wt), v(t), 'vcc')
        a('v_mul_f32', v(TC+r), v(wt), v(TC+r)); a('v_mul_f32', v(TS+r), v(wt), v(TS+r))
        R.release(mk)
    F = R.alloc(20)
    a('v_mul_f32', v(t), 0.5, v(nf)); a('v_mul_f32', v(t), 0.5, v(t))
    a('v_mul_f32', v(ang[0]), v(t), v(qf))
    for r in range(1, 4): a('v_fmamk_f32', v(ang[r]), v(nf), fl(r/16), v(ang[0]))
    for tt in range(5):
        src = ang
        if tt:
            for r in range(4): a('v_add_f32', v(an2[r]), fl(tt/5), v(ang[r]))
            src = an2
        for r in range(4): sincos(a, src[r], cs[r], cs[4+r])
        for r in range(4): a('v_cvt_pk_bf16_f32', v(F+4*tt+r), v(cs[r]), '-' + v(cs[4+r]))
    vb = R.alloc(); rd = R.alloc()
    a('s_mul_i32', 's11', 's3', 3072); a('s_add_u32', 's11', 's11', L_XR)
    a('v_lshrrev_b32', v(vb), 5, 'v0'); a('v_mul_u32_u24', v(vb), 1408, v(vb))
    a('v_and_b32', v(t), 1, v(q)); a('v_lshl_add_u32', v(vb), v(t), 3, v(vb)); a('v_add_u32', v(vb), 's11', v(vb))
    wa = d1_addrs(a, R, n, vb)
    a('v_lshl_add_u32', v(rd), 'v0', 4, 's11')
    stamp(a, 3)
    for it in range(3):
        if it == 2:
            skip = newlabel('La3s'); a('s_cmp_gt_u32', 's3', 4); a('s_cbranch_scc1', skip)
            a('s_cmp_lt_u32', 's3', 4); a('s_cselect_b32', 'exec_hi', -1, 0)
        for x in range(4): a('ds_write_b32', v(lw), v(IN+4*it+x), mods=f'offset:{1024*it + PIT*x}')
    a('s_mov_b64', 'exec', -1)
    a.label(skip)
    stamp(a, 4)
    subbar(a, 4, 8, t, u, vm=True)
    stamp(a, 5)
    Z = IN; A1 = R.alloc(24); PK = Z; Y = R.alloc(20); P0 = R.alloc(4)
    a('ds_read_b128', v(Z, 4), v(ea1))
    a('ds_read_b128', v(Z+4, 4), v(ea0)); a('ds_read_b128', v(Z+8, 4), v(ea0), mods='offset:1024')
    MF = 'v_mfma_f32_16x16x32_bf16'
    for k5 in range(3):
        a(MF, v(A1+8*k5, 4), v(Z+4*k5, 4), v(Mre, 4), 0); a(MF, v(A1+8*k5+4, 4), v(Z+4*k5, 4), v(Mim, 4), 0)
    for k5 in range(3):
        for r in range(4):
            re, im, c, s_ = A1+8*k5+r, A1+8*k5+4+r, TC+4*k5+r, TS+4*k5+r
            a('v_mul_f32', v(cs[r]), v(re), v(c)); a('v_mul_f32', v(cs[4+r]), v(im), v(c))
            a('v_fma_f32', v(cs[r]), '-' + v(im), v(s_), v(cs[r])); a('v_fmac_f32', v(cs[4+r]), v(re), v(s_))
            a('v_cvt_pk_bf16_f32', v(PK+4*k5+r), v(cs[r]), v(cs[4+r]))
        if k5 == 0: a(MF, v(P0, 4), v(PK, 4), v(F, 4), 0)
        else:
            for e in range(5):
                a(MF, v(Y+4*e, 4), v(PK+4*k5, 4), v(F+4*((e*k5) % 5), 4), v(P0, 4) if k5 == 1 else v(Y+4*e, 4))
    for e in range(5):
        a('v_cvt_pk_bf16_f32', v(A1+2*e), v(Y+4*e), v(Y+4*e+1)); a('v_cvt_pk_bf16_f32', v(A1+2*e+1), v(Y+4*e+2), v(Y+4*e+3))
        a('ds_write_b64', v(wa[e]), v(A1+2*e, 2))
    for k in range(3): a('ds_read_b128', v(Z+4*k, 4), v(rd), mods=f'offset:{1024*k}')
    stamp(a, 6)
    a('global_store_dwordx4', v(vo[0]), v(Z, 4), OUT_)
    a('s_mov_b32', 'exec_lo', 0xff00ffff)
    a('global_store_dwordx4', v(vo[1]), v(Z+4, 4), OUT_, mods='offset:1024')
    a('s_mov_b32', 'exec_lo', -1); a('s_mov_b32', 'exec_hi', 0xff)
    a('global_store_dwordx4', v(vo[2]), v(Z+8, 4), OUT_, mods='offset:2048')
    a('s_mov_b64', 'exec', -1)
    return R.next

def quad_voff(a, R):
    vo = R.alloc(); t = R.alloc()
    a('v_mul_u32_u24', v(t), 26, 'v0'); a('v_lshrrev_b32', v(t), 8, v(t))
    a('v_mul_u32_u24', v(vo), 1280 - 160, v(t)); a('v_lshl_add_u32', v(vo), 'v0', 4, v(vo))
    return vo

def tile_dma(a, vo, sd, lds_img, stray='s8'):
    a('s_mul_i32', 's11', 's3', 16*1280); a('s_add_u32', 's11', 's11', 's10')
    a('s_mul_i32', 's12', 's3', 2*1296)
    for k in range(4):
        a('s_add_u32', 'm0', 's12', lds_img + (k >> 1)*1296 + (k & 1)*640)
        a('buffer_load_dwordx4', v(vo), s(sd, 4), 's11', mods='offen lds')
        if k < 3: a('s_add_u32', 's11', 's11', 4*1280)

def b13_lane(a, R, wsbase):
    lb = R.alloc(); uo = R.alloc(); pr = R.alloc(); od = R.alloc()
    a('s_cmp_ge_u32', 's3', 5); a('s_cselect_b32', 's13', 1, 0)
    a('s_mul_i32', 's14', 's13', 5); a('s_sub_u32', 's14', 's3', 's14')
    a('v_lshrrev_b32', v(pr), 3, 'v0'); a('v_lshl_add_u32', v(pr), 's14', 3, v(pr))
    a('v_and_b32', v(od), 7, 'v0'); a('s_lshl_b32', 's15', 's13', 3); a('s_add_u32', 's15', 's15', 7)
    a('v_sub_u32', v(od), 's15', v(od))
    a('v_mul_u32_u24', v(lb), 1296, v(od)); a('v_lshl_add_u32', v(lb), v(pr), 2, v(lb)); a('v_add_u32', v(lb), L_KI, v(lb))
    a('s_mul_i32', 's15', 's4', 80*4096); a('s_add_u32', 's15', 's15', wsbase + 4080)
    a('s_lshl_b32', 's8', 's6', 8); a('s_sub_u32', 's15', 's15', 's8')
    a('v_lshl_add_u32', v(uo), v(pr), 13, 's15');
    t = R.alloc(); a('v_lshlrev_b32', v(t), 4, v(od)); a('v_sub_u32', v(uo), v(uo), v(t))
    return lb, uo, pr, od

def role_B1(a, endlabel, stflags=''):
    R = RegAlloc(1, 168)
    a('s_cmp_ge_u32', 's3', 10); a('s_cbranch_scc1', endlabel)
    NB = 2048*1280
    srd(a, 44, 's24', 's25', NB); srd(a, 48, 's26', 's27', NB)
    vo = quad_voff(a, R)
    a('s_mul_i32', 's10', 's6', 128*1280); a('s_mul_i32', 's8', 's4', 160); a('s_add_u32', 's10', 's10', 's8')
    t = R.alloc(); u = R.alloc()
    a('s_sub_u32', 's8', 's10', 4*1280); a('v_add_u32', v(t), 's8', v(vo))
    a('s_mov_b32', 'exec_hi', 0xff)
    l8 = newlabel('Lb1'); l9 = newlabel('Lb1')
    a('s_cmp_ge_u32', 's3', 8); a('s_cbranch_scc1', l8)
    tile_dma(a, vo, 44, L_KI + 1296); tile_dma(a, vo, 48, L_VI)
    a('s_branch', l9)
    a.label(l8)
    a('s_mov_b32', 'm0', L_KI + 640)
    a('buffer_load_dwordx4', v(t), 's[44:47]', 0, mods='offen lds')
    a.label(l9)
    a('s_mov_b64', 'exec', -1)
    lb, uo, pr, od = b13_lane(a, R, WS_U)
    CF = R.alloc(4); C = R.alloc(8)
    a('s_mul_i32', 's8', 's4', 640); a('v_lshl_add_u32', v(t), v(pr), 4, 's8')
    a('global_load_dwordx4', v(CF, 4), v(t), SK_)
    msk = R.alloc(); a('v_mov_b32', v(msk), 0xffff0000)
    for ch in range(2):
        for j in range(4):
            src = CF + 2*ch + (j >> 1)
            if j & 1: a('v_and_b32', v(C+4*ch+j), v(msk), v(src))
            else: a('v_lshlrev_b32', v(C+4*ch+j), 16, v(src))
    stamp(a, 3)
    subbar(a, 5, 10, t, u, vm=True)
    stamp(a, 4)
    Kd = R.alloc(11); Vd = R.alloc(8); Kf = [R.alloc(11), R.alloc(11)]; T = R.alloc(4); O = R.alloc(8)
    for i in range(11): a('ds_read_b32', v(Kd+i), v(lb), mods=f'offset:{(800 + 160*i if i < 3 else 1296 + 160*(i-3))}')
    for i in range(8): a('ds_read_b32', v(Vd+i), v(lb), mods=f'offset:{L_VI - L_KI + 160*i}')
    def unp(i):
        a('v_lshlrev_b32', v(Kf[0]+i), 16, v(Kd+i)); a('v_and_b32', v(Kf[1]+i), v(msk), v(Kd+i))
    for i in range(3): unp(i)
    res = R.alloc(4)
    for i in range(8):
        unp(i+3)
        for ch in range(2):
            acc = T + ch; dst = res + 2*ch + (i & 1)
            a('v_mul_f32', v(acc), v(Kf[ch]+i), v(C+4*ch+3))
            for j in (2, 1, 0): a('v_fmac_f32', v(acc), v(Kf[ch]+i+3-j), v(C+4*ch+j))
            if ch: a('v_and_b32', v(T+2+ch), v(msk), v(Vd+i))
            else: a('v_lshlrev_b32', v(T+2+ch), 16, v(Vd+i))
            a('v_mul_f32', v(dst), v(acc), v(T+2+ch))
        if i & 1:
            for ch in range(2): a('v_cvt_pk_bf16_f32', v(O+4*ch+3-(i >> 1)), v(res+2*ch+1), v(res+2*ch))
    stamp(a, 5)
    a('global_store_dwordx4', v(uo), v(O, 4), WS_, mods=stflags)
    a('v_add_u32', v(uo), 4096, v(uo))
    a('global_store_dwordx4', v(uo), v(O+4, 4), WS_, mods=stflags)
    return R.next

def role_B3(a, endlabel, ldflags=''):
    R = RegAlloc(1, 168)
    a('s_cmp_ge_u32', 's3', 10); a('s_cbranch_scc1', endlabel)
    NB = 2048*1280
    srd(a, 44, 's22', 's23', NB)
    lb, uo, pr, od = b13_lane(a, R, WS_Z)
    Z = R.alloc(8); t = R.alloc(); u = R.alloc()
    a('global_load_dwordx4', v(Z, 4), v(uo), WS_, mods=ldflags)
    a('v_add_u32', v(uo), 4096, v(uo))
    a('global_load_dwordx4', v(Z+4, 4), v(uo), WS_, mods=ldflags)
    vo = quad_voff(a, R)
    a('s_mul_i32', 's10', 's6', 128*1280); a('s_mul_i32', 's8', 's4', 160); a('s_add_u32', 's10', 's10', 's8')
    l8 = newlabel('Lb3')
    a('s_cmp_ge_u32', 's3', 8); a('s_cbranch_scc1', l8)
    a('s_mov_b32', 'exec_hi', 0xff)
    tile_dma(a, vo, 44, L_VI)
    a('s_mov_b64', 'exec', -1)
    a.label(l8)
    oo = R.alloc(); msk = R.alloc(); a('v_mov_b32', v(msk), 0xffff0000)
    a('s_mul_i32', 's8', 's6', 128*2560); a('s_mul_i32', 's9', 's4', 160); a('s_add_u32', 's8', 's8', 's9'); a('s_add_u32', 's8', 's8', 1280)
    a('v_mul_u32_u24', v(oo), 8*2560, v(od)); a('v_lshl_add_u32', v(oo), v(pr), 2, v(oo)); a('v_add_u32', v(oo), 's8', v(oo))
    stamp(a, 3)
    subbar(a, 6, 10, t, u, vm=True)
    stamp(a, 4)
    Qd = R.alloc(8); T = R.alloc(4); O = R.alloc(8)
    for i in range(8): a('ds_read_b32', v(Qd+i), v(lb), mods=f'offset:{L_VI - L_KI + 160*i}')
    for i in range(8):
        for ch in range(2):
            src = Z + 4*ch + 3 - (i >> 1)
            if i & 1: a('v_lshlrev_b32', v(T+ch), 16, v(src))
            else: a('v_and_b32', v(T+ch), v(msk), v(src))
            if ch: a('v_and_b32', v(T+2+ch), v(msk), v(Qd+i))
            else: a('v_lshlrev_b32', v(T+2+ch), 16, v(Qd+i))
            a('v_mul_f32', v(T+ch), v(T+ch), v(T+2+ch))
        a('v_cvt_pk_bf16_f32', v(O+i), v(T), v(T+1))
        if i & 1:
            a('global_store_dword', v(oo), v(O+i-1), OUT_)
            a('global_store_dword', v(oo), v(O+i), OUT_, mods='offset:2560')
            if i < 7: a('v_add_u32', v(oo), 5120, v(oo))
    return R.next

def chan_of_lc(a, dst, lc_s_or_int):
    a('s_mul_i32', dst, 's4', 80); a('s_mul_i32', 's41', 's6', 5); a('s_add_u32', dst, dst, 's41')
    if isinstance(lc_s_or_int, int):
        lc = lc_s_or_int
        if lc == 2: a('s_add_u32', dst, dst, 2)
        else:
            a('s_mul_i32', 's41', 's5', 3); a('s_add_u32', dst, dst, 's41')
            if lc: a('s_add_u32', dst, dst, lc)
    else:
        a('s_mul_i32', 's41', 's5', 3); a('s_cmp_eq_u32', lc_s_or_int, 2); a('s_cselect_b32', 's41', 0, 's41')
        a('s_add_u32', dst, dst, 's41'); a('s_add_u32', dst, dst, lc_s_or_int)

def B2_himg(a, R):
    vo = R.alloc(); t = R.alloc(); u = R.alloc(); Hd = R.alloc(4)
    a('s_lshr_b32', 's9', 's3', 1)
    a('s_and_b32', 's10', 's3', 1)
    a('s_lshl_b32', 's8', 's9', 1); a('s_add_u32', 's8', 's8', 2); a('s_lshl_b32', 's11', 's10', 11); a('s_add_u32', 's8', 's8', 's11')
    a('v_lshl_add_u32', v(vo), 'v0', 4, 's8')
    a('s_and_b32', 's12', 's9', 1); a('s_mul_i32', 's12', 's12', 529*16); a('s_lshr_b32', 's13', 's9', 1); a('s_mul_i32', 's13', 's13', 264*16)
    a('s_add_u32', 's12', 's12', 's13'); a('s_add_u32', 's12', 's12', 's11')
    for lc in range(3):
        chan_of_lc(a, 's8', lc); a('s_lshl_b32', 's8', 's8', 12)
        a('s_add_u32', 's44', 's30', 's8'); a('s_addc_u32', 's45', 's31', 0); a('s_and_b32', 's45', 's45', 0xffff)
        a('s_mov_b32', 's46', 4096); a('s_mov_b32', 's47', 0x20000)
        a('s_add_u32', 'm0', 's12', L_H + lc*HSZ + 128)
        a('buffer_load_dwordx4', v(vo), 's[44:47]', 0, mods='offen lds')
        a('buffer_load_dwordx4', v(vo), 's[44:47]', 0, mods='offen offset:1024 lds')
    sk = newlabel('Lh')
    a('s_cmp_ge_u32', 's3', 3); a('s_cbranch_scc1', sk)
    chan_of_lc(a, 's8', 's3'); a('s_lshl_b32', 's8', 's8', 12); a('v_mov_b32', v(t), 's8')
    a('global_load_dwordx2', v(Hd+2, 2), v(t), H_)
    Zr = R.alloc(4)
    for k in range(4): a('v_mov_b32', v(Zr+k), 0)
    a('s_mul_i32', 's8', 's3', USZ); a('s_add_u32', 's8', 's8', L_U + 32*144)
    a('v_lshl_add_u32', v(u), 'v0', 4, 's8')
    a('ds_write_b128', v(u), v(Zr, 4)); a('ds_write_b128', v(u), v(Zr, 4), mods='offset:1024')
    a('s_mov_b64', 'exec', 0x7f); a('ds_write_b128', v(u), v(Zr, 4), mods='offset:2048'); a('s_mov_b64', 'exec', -1)
    a('v_bfe_u32', v(t), 'v0', 3, 2)
    a('v_and_b32', v(u), 1, v(t)); a('v_mul_u32_u24', v(u), 529*16, v(u))
    a('v_lshrrev_b32', v(Hd), 1, v(t)); a('v_mul_u32_u24', v(Hd), 264*16, v(Hd)); a('v_add_u32', v(u), v(u), v(Hd))
    a('v_and_b32', v(Hd), 7, 'v0'); a('v_lshl_add_u32', v(u), v(Hd), 4, v(u))
    a('s_mul_i32', 's8', 's3', HSZ); a('s_add_u32', 's8', 's8', L_H); a('v_add_u32', v(u), 's8', v(u))
    a('v_cmp_eq_u32', 'vcc', 7, v(Hd))
    a('v_lshlrev_b32', v(t), 4, v(t)); a('v_sub_u32', v(t), 48, v(t))
    a('v_lshlrev_b64', v(Hd+2, 2), v(t), v(Hd+2, 2))
    a('v_cndmask_b32', v(Hd+2), 0, v(Hd+2), 'vcc'); a('v_cndmask_b32', v(Hd+3), 0, v(Hd+3), 'vcc')
    a('v_mov_b32', v(Hd), 0); a('v_mov_b32', v(Hd+1), 0)
    a('s_mov_b32', 'exec_hi', 0)
    a('ds_write_b128', v(u), v(Hd, 4))
    a('s_mov_b64', 'exec', -1)
    a.label(sk)

def B2_uload(a, R, ldflags):
    t = R.alloc(); lw = R.alloc(); U = R.alloc(8); go = R.alloc()
    a('s_lshr_b32', 's9', 's3', 2); a('s_and_b32', 's10', 's3', 3)
    a('v_lshrrev_b32', v(t), 3, 'v0'); a('v_lshlrev_b32', v(t), 4, v(t)); a('v_lshl_add_u32', v(lw), 'v0', 4, v(t))
    a('s_mul_i32', 's11', 's10', 8*144); a('s_add_u32', 's11', 's11', L_U); a('v_add_u32', v(lw), 's11', v(lw))
    a('s_lshl_b32', 's12', 's10', 10); a('s_add_u32', 's12', 's12', WS_U)
    chan_of_lc(a, 's8', 's9'); a('s_lshl_b32', 's8', 's8', 12); a('s_add_u32', 's8', 's8', 's12')
    a('v_lshl_add_u32', v(go), 'v0', 4, 's8')
    a('global_load_dwordx4', v(U, 4), v(go), WS_, mods=ldflags)
    chan_of_lc(a, 's8', 2); a('s_lshl_b32', 's8', 's8', 12); a('s_add_u32', 's8', 's8', 's12')
    a('v_lshl_add_u32', v(go), 'v0', 4, 's8')
    a('global_load_dwordx4', v(U+4, 4), v(go), WS_, mods=ldflags)
    a('s_mul_i32', 's8', 's9', USZ); a('v_add_u32', v(t), 's8', v(lw))
    return t, lw, U

def role_B2(a, endlabel, ldflags='', stflags=''):
    R = RegAlloc(1, 168)
    t1, lw, U = B2_uload(a, R, ldflags)
    mk = R.mark(); B2_himg(a, R); R.release(mk)
    t = R.alloc(); u = R.alloc()
    a('s_mul_i32', 's9', 's3', 11); a('s_lshr_b32', 's9', 's9', 5)
    a('s_mul_i32', 's10', 's9', 3); a('s_sub_u32', 's10', 's3', 's10')
    a('s_xor_b32', 's8', 's5', 1); a('s_cmp_eq_u32', 's9', 2); a('s_cselect_b32', 's8', 's8', 0); a('s_add_u32', 's10', 's10', 's8')
    a('s_min_u32', 's11', 's10', 1)
    a('s_lshr_b32', 's12', 's10', 1)
    chan_of_lc(a, 's13', 's9')
    Dv = R.alloc()
    a('s_lshl_b32', 's8', 's13', 1); a('v_mov_b32', v(t), 's8')
    a('global_load_ushort', v(Dv), v(t), D_)
    n = R.alloc(); q = R.alloc(); aa = R.alloc(); ba = R.alloc(); ia = R.alloc()
    a('v_and_b32', v(n), 15, 'v0'); a('v_lshrrev_b32', v(q), 4, 'v0')
    a('v_and_b32', v(t), 1, 'v0'); a('v_mul_u32_u24', v(aa), 529*16, v(t))
    a('v_bfe_u32', v(t), 'v0', 1, 1); a('v_mul_u32_u24', v(t), 264*16, v(t)); a('v_add_u32', v(aa), v(aa), v(t))
    a('v_bfe_u32', v(t), 'v0', 2, 2); a('v_lshl_add_u32', v(aa), v(t), 5, v(aa)); a('v_lshl_add_u32', v(aa), v(q), 9, v(aa))
    a('s_mul_i32', 's8', 's9', HSZ); a('s_lshl_b32', 's14', 's12', 11); a('s_add_u32', 's8', 's8', 's14'); a('s_add_u32', 's8', 's8', L_H)
    a('v_add_u32', v(aa), 's8', v(aa))
    a('s_sub_u32', 's14', 's12', 's11'); a('s_lshl_b32', 's14', 's14', 4); a('s_add_u32', 's14', 's14', 31)
    a('s_mul_i32', 's15', 's9', USZ); a('s_add_u32', 's15', 's15', L_U)
    a('v_lshlrev_b32', v(t), 2, v(q)); a('v_sub_u32', v(t), v(t), v(n)); a('v_add_u32', v(t), 's14', v(t))
    a('v_mul_u32_u24', v(ba), 144, v(t)); a('v_add_u32', v(ba), 's15', v(ba))
    a('s_lshl_b32', 's14', 's11', 4); a('s_sub_u32', 's14', 31, 's14')
    a('v_sub_u32', v(t), 's14', v(n)); a('v_mul_u32_u24', v(ia), 144, v(t)); a('v_add_u32', v(ia), 's15', v(ia))
    a('v_lshlrev_b32', v(t), 5, v(q)); a('v_sub_u32', v(ia), v(ia), v(t))
    a('ds_write_b128', v(t1), v(U, 4)); a('ds_write_b128', v(lw), v(U+4, 4), mods=f'offset:{2*USZ}')
    a('v_lshlrev_b32', v(Dv), 16, v(Dv))
    a('s_cmp_eq_u32', 's12', 0); a('s_cselect_b32', 's8', -1, 0); a('v_and_b32', v(Dv), 's8', v(Dv))
    stamp(a, 3)
    subbar(a, 7, 8, t, u, vm=True)
    stamp(a, 4)
    a('s_lshl_b32', 's8', 's5', 3); a('s_add_u32', 's8', 's8', 's3'); a('s_cmp_eq_u32', 's8', 15); a('s_cbranch_scc1', endlabel)
    ACC = R.alloc(16); RA = R.alloc(66); RB = R.alloc(32); msk = R.alloc()
    a('ds_read_b128', v(U, 4), v(ia), mods='offset:96'); a('ds_read_b128', v(U+4, 4), v(ia), mods='offset:112')
    PD = 5
    def rdA(w):
        if w > 33: return
        a('ds_read_b128', v(RA + 4*(w % 16), 4), v(aa), mods=f'offset:{16*w}')
        if w and w % 16 == 0: a('ds_read_b64', v(RA+64, 2), v(aa), mods=f'offset:{16*w}')
    def rdB(tau):
        if tau > 31: return
        a('ds_read_b128', v(RB + 4*(tau % 8), 4), v(ba), mods=f'offset:{144*(tau >> 3) + 16*(tau & 7)}')
    rdA(0); rdA(1)
    for k in range(PD): rdB(k); rdA(k+2)
    a('v_mov_b32', v(msk), 0xffff0000)
    for x in range(16):
        e = 15 - x
        if e & 1: a('v_and_b32', v(ACC+x), v(msk), v(U + (e >> 1)))
        else: a('v_lshlrev_b32', v(ACC+x), 16, v(U + (e >> 1)))
        a('v_mul_f32', v(ACC+x), v(Dv), v(ACC+x))
    stamp(a, 5)
    for tau in range(32):
        for tt in range(4):
            d = (4*tau + 2*tt) % 64
            a('v_mfma_f32_16x16x32_bf16', v(ACC+4*tt, 4), v(RA+d, 4), v(RB + 4*(tau % 8), 4), v(ACC+4*tt, 4))
            if tt == 0: rdB(tau + PD)
            if tt == 2: rdA(tau + PD + 2)
    stamp(a, 6)
    ra = R.alloc()
    a('s_lshl_b32', 's8', 's9', 12); a('s_add_u32', 's8', 's8', L_RED); a('v_lshl_add_u32', v(ra), 'v0', 4, 's8')
    lj = newlabel('Lb2'); lf = newlabel('Lb2')
    a('s_lshl_b32', 's14', 's9', 2); a('s_add_u32', 's14', 's14', L_CNT + 4*8); a('v_mov_b32', v(t), 's14'); a('v_mov_b32', v(u), 1)
    a.settle()
    a('s_cmp_eq_u32', 's12', 0); a('s_cbranch_scc1', lj)
    for tt in range(4): a('ds_write_b128', v(ra), v(ACC+4*tt, 4), mods=f'offset:{1024*tt}')
    a.wait(lgkm=0)
    a('s_mov_b64', 'exec', 1); a('ds_add_u32', v(t), v(u)); a('s_mov_b64', 'exec', -1)
    a('s_branch', endlabel)
    a.label(lj); a.forget()
    a('s_cmp_eq_u32', 's10', 0); a('s_cbranch_scc1', lf)
    lp = newlabel('Lb2')
    a.label(lp)
    a('ds_read_b32', v(u), v(t)); a('v_readfirstlane_b32', 's40', v(u)); a('s_cmp_eq_u32', 's40', 0); a('s_cbranch_scc1', lp)
    for tt in range(4): a('ds_read_b128', v(RB+4*tt, 4), v(ra), mods=f'offset:{1024*tt}')
    for x in range(16): a('v_add_f32', v(ACC+x), v(ACC+x), v(RB+x))
    a.label(lf)
    stamp(a, 7)
    for jj in range(8): a('v_cvt_pk_bf16_f32', v(U+jj), v(ACC+15-2*jj), v(ACC+14-2*jj))
    sa = ra; sr = aa
    a('s_lshl_b32', 's8', 's3', 11); a('s_add_u32', 's8', 's8', L_P1)
    a('v_sub_u32', v(t), 15, v(n)); a('v_lshlrev_b32', v(u), 1, v(q)); a('v_sub_u32', v(u), 6, v(u))
    a('v_xor_b32', v(u), v(t), v(u)); a('v_and_b32', v(u), 7, v(u)); a('v_lshlrev_b32', v(u), 4, v(u))
    a('v_lshl_add_u32', v(sa), v(t), 7, v(u)); a('v_add_u32', v(sa), 's8', v(sa)); a('v_xor_b32', v(u), 16, v(sa))
    a('ds_write_b128', v(sa), v(U, 4)); a('ds_write_b128', v(u), v(U+4, 4))
    a('v_lshrrev_b32', v(t), 3, 'v0'); a('v_xor_b32', v(u), v(t), 'v0'); a('v_and_b32', v(u), 7, v(u)); a('v_lshlrev_b32', v(u), 4, v(u))
    a('v_lshl_add_u32', v(sr), v(t), 7, v(u)); a('v_add_u32', v(sr), 's8', v(sr))
    a('ds_read_b128', v(RB, 4), v(sr)); a('ds_read_b128', v(RB+4, 4), v(sr), mods='offset:1024')
    a('s_lshl_b32', 's8', 's13', 12); a('s_lshl_b32', 's14', 's11', 11); a('s_sub_u32', 's8', 's8', 's14'); a('s_add_u32', 's8', 's8', WS_Z + 2048)
    a('v_lshl_add_u32', v(t), 'v0', 4, 's8')
    a('global_store_dwordx4', v(t), v(RB, 4), WS_, mods=stflags)
    a('global_store_dwordx4', v(t), v(RB+4, 4), WS_, mods=f'offset:1024 {stflags}')
    return R.next
```

```python
import pk, re
base = pk.build(False)
def variant(name, sbase, off, per_wave_kb, total_limit):
    code = ["    s_waitcnt lgkmcnt(0)", "    s_cmp_ge_u32 s3, 8", "    s_cbranch_scc1 Lpbx",
            f"    s_mul_i32 s8, s2, {8*per_wave_kb*1024}", f"    s_mul_i32 s9, s3, {per_wave_kb*1024}", "    s_add_u32 s8, s8, s9", f"    s_add_u32 s8, s8, {off}",
            "    v_lshlrev_b32 v3, 4, v0", "    v_add_u32 v3, s8, v3"]
    for k in range(per_wave_kb):
        code.append(f"    global_load_dwordx4 v[{8+4*k}:{11+4*k}], v3, {sbase} offset:{1024*(k%4)}")
        if k % 4 == 3: code.append("    v_add_u32 v3, 4096, v3")
    code += ["    s_waitcnt vmcnt(0)", "Lpbx:", "    s_barrier"]
    assert 256*8*per_wave_kb*1024 + off <= total_limit
    s = base.replace("    s_cmp_lg_u32 s5, 0\n    s_cbranch_scc1 LentO\n", "\n".join(code) + "\n    s_cmp_lg_u32 s5, 0\n    s_cbranch_scc1 LentO\n", 1)
    open(f'dev/{name}.s', 'w').write(s)
variant('pb_ws32', 's[38:39]', 32 << 20, 4, 256 << 20)
variant('pb_ws240', 's[38:39]', 240 << 20, 4, 256 << 20)
variant('pb_q', 's[22:23]', 0, 1, 2621440)
variant('pb_ws32s', 's[38:39]', 32 << 20, 1, 256 << 20)
variant('pb_out', 's[34:35]', 0, 2, 5242880)
```

```python
from asmlib import *
import math
X_, WR_, WI_, Q_, K_, V_, SK_, H_, D_, OUT_, DBG_, WS_ = [f"s[{16+2*i}:{17+2*i}]" for i in range(12)]
WS_T, WS_W, WS_U, WS_Z, WS_F = 0, 0x300000, 0x600000, 0x900000, 0xC00000
TBLK = 20992
L_CNT = 0
L_H = 256
HSZ = 16912
L_U = L_H + 3*HSZ
USZ = 6768
L_RED = L_U + 3*USZ
L_P1 = L_RED + 3*4096
L_XR = L_P1
L_EI = L_XR + 8*3072
L_KI = L_P1
L_VI = L_KI + 17*1296
P1SZ = max(8*3072 + 8*2640 + 1024, 33*1296)
L_A2 = L_P1 + P1SZ
LDS_TOTAL = L_A2 + 32768
assert LDS_TOTAL <= 163840, LDS_TOTAL
for x in (L_H, L_U, L_RED, L_P1, L_EI, L_VI, L_A2): assert x % 16 == 0
assert L_XR % 256 == 0 or True

_lbl = [0]
def newlabel(p='L'):
    _lbl[0] += 1; return f"{p}{_lbl[0]}"

STAMPS = [False]
AMP = [None]
WS_ST = 0xD00000
def stamp(a, i):
    if STAMPS[0]: a.raw(f"    s_memrealtime s[{64+2*i}:{65+2*i}]"); a.bytes += 8
def stamp_flush(a, kern, waitmem=True):
    if not STAMPS[0]: return
    if waitmem: a.wait(vm=0); stamp(a, 15)
    a.wait(lgkm=0)
    a('s_mul_i32', 's8', 's2', 12); a('s_add_u32', 's8', 's8', 's3'); a('s_add_u32', 's8', 's8', kern*256*12)
    a('s_lshl_b32', 's8', 's8', 6); a('s_add_u32', 's8', 's8', WS_ST)
    if AMP[0] is not None:
        a('s_add_u32', 's10', 's64', 4000)
        if AMP[0] > 0:
            a('s_sub_u32', 's11', s(64+2*AMP[0]), 's64'); a('s_lshl_b32', 's11', 's11', 2)
            a('s_cmp_eq_u32', s(64+2*AMP[0]), 0); a('s_cselect_b32', 's11', 0, 's11'); a('s_add_u32', 's10', 's10', 's11')
        a.label('Lamp')
        a('s_sleep', 8); a('s_memrealtime', 's[12:13]'); a.wait(lgkm=0)
        a('s_sub_u32', 's11', 's12', 's10'); a('s_cmp_lt_i32', 's11', 0); a('s_cbranch_scc1', 'Lamp')
        return
    a('s_mov_b64', 'exec', 1); a('v_mov_b32', 'v1', 's8')
    for i in range(16): a('v_mov_b32', v(4+i), s(64+2*i))
    for i in range(4): a('global_store_dwordx4', 'v1', v(4+4*i, 4), WS_, mods=f'offset:{16*i}')

def prologue(a, name, endlabel):
    a.raw(f".globl {name}\n.p2align 8\n.type {name},@function\n{name}:")
    a.dead = False
    a('s_cmp_ge_u32', 's2', 256); a('s_cbranch_scc1', endlabel)
    if STAMPS[0]:
        for i in range(1, 16): a('s_mov_b32', s(64+2*i), 0)
    stamp(a, 0)
    a('s_load_dwordx16', 's[16:31]', 's[0:1]', 0)
    a('s_load_dwordx8', 's[32:39]', 's[0:1]', 64)
    a('v_lshrrev_b32', 'v1', 6, 'v0')
    a('v_and_b32', 'v0', 63, 'v0')
    a('v_readfirstlane_b32', 's3', 'v1')
    a('s_and_b32', 's4', 's2', 7)
    a('s_bfe_u32', 's5', 's2', (1 << 16) | 3)
    a('s_lshr_b32', 's6', 's2', 4)
    a('s_lshl3_add_u32', 's7', 's6', 's4')
    a('v_lshlrev_b32', 'v1', 2, 'v0'); a('v_mov_b32', 'v2', 0)
    a('ds_write_b32', 'v1', 'v2', mods=f'offset:{L_CNT}')
    a.wait(lgkm=0)
    stamp(a, 1)
    a('s_barrier')
    stamp(a, 2)

def subbar(a, cid, n, va, vb, vm=False):
    a('v_mov_b32', v(va), L_CNT + 4*cid); a('v_mov_b32', v(vb), 1)
    a.wait(vm=0 if vm else None, lgkm=0)
    a('s_mov_b64', 'exec', 1)
    a('ds_add_rtn_u32', v(vb), v(va), v(vb))
    a('s_mov_b64', 'exec', -1)
    a('v_readfirstlane_b32', 's40', v(vb))
    done = newlabel('Lbd'); loop = newlabel('Lbl')
    a('s_cmp_ge_u32', 's40', n - 1); a('s_cbranch_scc1', done)
    a.label(loop)
    a('ds_read_b32', v(vb), v(va))
    a('v_readfirstlane_b32', 's40', v(vb))
    a('s_cmp_lt_u32', 's40', n); a('s_cbranch_scc1', loop)
    a.label(done)

def arrive(a, cid, va, vb, vm=False):
    a('v_mov_b32', v(va), L_CNT + 4*cid); a('v_mov_b32', v(vb), 1)
    a.wait(vm=0 if vm else None, lgkm=0)
    a('s_mov_b64', 'exec', 1)
    a('ds_add_u32', v(va), v(vb))
    a('s_mov_b64', 'exec', -1)

def await_cnt(a, cid, n, va, vb):
    a('v_mov_b32', v(va), L_CNT + 4*cid)
    loop = newlabel('Lbl')
    a.label(loop)
    a('ds_read_b32', v(vb), v(va))
    a('v_readfirstlane_b32', 's40', v(vb))
    a('s_cmp_lt_u32', 's40', n); a('s_cbranch_scc1', loop)
    a.label(newlabel('Lbd'))

def sincos(a, ang, c, s_):
    a('v_cos_f32', v(c), v(ang)); a('v_sin_f32', v(s_), v(ang))

def k1_regs(a, R, vka):
    t = R.alloc(); u = R.alloc(); out = [R.alloc() for _ in range(3)]
    a('v_mul_u32_u24', v(t), 65, v(vka))
    a('v_mul_u32_u24', v(u), 205, v(t)); a('v_lshrrev_b32', v(u), 14, v(u))
    a('v_mul_u32_u24', v(u), 80, v(u)); a('v_sub_u32', v(t), v(t), v(u))
    for k5 in range(3):
        if k5:
            a('v_add_u32', v(t), 16, v(t)); a('v_subrev_u32', v(u), 80, v(t)); a('v_min_u32', v(t), v(t), v(u))
        a('v_cvt_f32_u32', v(out[k5]), v(t)); a('v_mul_f32', v(out[k5]), fl(1/640), v(out[k5]))
    return out
for _ka in range(16): assert (65*_ka) - ((65*_ka*205) >> 14)*80 == (65*_ka) % 80

def row_offsets(a, R, sbase, pitch_rows):
    o = [R.alloc() for _ in range(3)]; t = R.alloc()
    a('v_lshlrev_b32', v(t), 4, 'v0')
    a('v_add_u32', v(o[0]), sbase, v(t))
    a('v_add_u32', v(o[1]), pitch_rows - 24*16 - 1024, v(o[0]))
    a('v_cmp_gt_u32', 'vcc', 24, 'v0')
    a('v_cndmask_b32', v(o[1]), v(o[1]), v(o[0]), 'vcc')
    a('v_min_u32', v(t), 39*16, v(t))
    a('v_add_u32', v(t), pitch_rows + 40*16 - 2048, v(t))
    a('v_add_u32', v(o[2]), sbase, v(t))
    return o

def d1_addrs(a, R, va, vbase):
    t = R.alloc(); u = R.alloc(); out = [R.alloc() for _ in range(5)]
    a('v_mul_u32_u24', v(t), 5, v(va))
    for e in range(5):
        if e:
            a('v_add_u32', v(t), 16, v(t)); a('v_subrev_u32', v(u), 80, v(t)); a('v_min_u32', v(t), v(t), v(u))
        a('v_lshl_add_u32', v(out[e]), v(t), 4, v(vbase))
    return out

def ei_addrs(a, R, pitch, dup):
    a0 = R.alloc(); a1 = R.alloc(); t = R.alloc(); u = R.alloc()
    a('s_mul_i32', 's8', 's3', pitch); a('s_add_u32', 's8', 's8', L_EI)
    a('v_lshl_add_u32', v(a0), 'v0', 4, 's8')
    a('v_and_b32', v(t), 15, 'v0'); a('v_lshrrev_b32', v(u), 4, 'v0')
    a('v_cmp_gt_u32', 'vcc', 9, v(t))
    if dup:
        a('v_subrev_u32', v(a1), 8, v(t)); a('v_cndmask_b32', v(t), v(a1), v(t), 'vcc')
    a('v_mad_u32_u24', v(t), v(u), 9, v(t))
    a('s_add_u32', 's8', 's8', 2048)
    a('v_lshl_add_u32', v(a1), v(t), 4, 's8')
    if not dup:
        a('v_lshlrev_b32', v(t), 4, 'v0'); a('v_add_u32', v(t), L_EI + 8*2640, v(t))
        a('v_cndmask_b32', v(a1), v(t), v(a1), 'vcc')
    return a0, a1

def role_A1(a, stflags=''):
    R = RegAlloc(1, 168)
    a('s_lshl_b32', 's9', 's3', 7); a('s_add_u32', 's9', 's9', 's7')
    a('s_mul_i32', 's10', 's9', 1280)
    vo = row_offsets(a, R, 's10', 1024*1280)
    a('s_mul_i32', 's11', 's3', 3072); a('s_add_u32', 's11', 's11', L_XR)
    a('s_mov_b32', 'm0', 's11')
    for t in range(3): a('global_load_lds_dwordx4', v(vo[t]), X_, mods=f'offset:{1024*t}')
    va = R.alloc(); vb = R.alloc(); t = R.alloc()
    a('v_lshrrev_b32', v(va), 2, 'v0')
    a('v_bfe_u32', v(vb), 'v0', 1, 1); a('v_mul_u32_u24', v(vb), 1408, v(vb))
    a('v_and_b32', v(t), 1, 'v0'); a('v_lshl_add_u32', v(vb), v(t), 3, v(vb)); a('v_add_u32', v(vb), 's11', v(vb))
    tra = d1_addrs(a, R, va, vb)
    ka = R.alloc(); q = R.alloc(); kaf = R.alloc(); qf = R.alloc(); bf = R.alloc()
    a('v_and_b32', v(ka), 15, 'v0'); a('v_lshrrev_b32', v(q), 4, 'v0')
    a('v_cvt_f32_u32', v(kaf), v(ka)); a('v_cvt_f32_u32', v(qf), v(q))
    a('v_and_b32', v(bf), 1, v(q)); a('v_lshlrev_b32', v(bf), 2, v(bf)); a('v_cvt_f32_u32', v(bf), v(bf))
    SEQ = [1, 2, 4, 1, 3, 4, 0, 0]
    Hs = R.alloc(16); Gs = R.alloc(16)
    ang = [R.alloc() for _ in range(4)]; an2 = [R.alloc() for _ in range(4)]
    cs = [R.alloc() for _ in range(8)]
    a('v_mul_f32', v(t), 0.5, v(kaf)); a('v_mul_f32', v(t), 0.5, v(t))
    a('v_mul_f32', v(ang[0]), v(t), v(qf))
    for al in range(1, 4): a('v_fmamk_f32', v(ang[al]), v(kaf), fl(al/16), v(ang[0]))
    for tt in range(5):
        src = ang
        if tt:
            for al in range(4): a('v_add_f32', v(an2[al]), fl(tt/5), v(ang[al]))
            src = an2
        for al in range(4): sincos(a, src[al], cs[al], cs[4+al])
        for pos in [i for i, x in enumerate(SEQ) if x == tt]:
            for h in range(2):
                a('v_cvt_pk_bf16_f32', v(Hs + 2*pos + h), v(cs[2*h]), v(cs[2*h+1]))
                a('v_cvt_pk_bf16_f32', v(Gs + 2*pos + h), '-' + v(cs[4+2*h]), '-' + v(cs[4+2*h+1]))
    k1 = k1_regs(a, R, ka)
    TC = R.alloc(12); TS = R.alloc(12)
    for k5 in range(3):
        a('v_mul_f32', v(ang[0]), v(k1[k5]), v(bf))
        for r in range(1, 4): a('v_add_f32', v(ang[r]), v(ang[r-1]), v(k1[k5]))
        for r in range(4): sincos(a, ang[r], TC + 4*k5 + r, TS + 4*k5 + r)
    Mre = R.alloc(4); Mim = R.alloc(4)
    u2 = R.alloc(); f1f = R.alloc()
    a('v_and_b32', v(u2), 7, 'v0'); a('v_cvt_f32_u32', v(u2), v(u2)); a('v_mul_f32', v(u2), fl(1/8), v(u2))
    a('v_bfe_u32', v(f1f), 'v0', 3, 1)
    a('v_lshrrev_b32', v(t), 5, 'v0'); a('v_lshl_add_u32', v(t), v(t), 10, 's9')
    a('v_mul_u32_u24', v(t), v(t), v(f1f)); a('v_cvt_f32_u32', v(t), v(t)); a('v_mul_f32', v(t), fl(1/2048), v(t))
    a('v_fma_f32', v(ang[0]), v(u2), v(bf), v(t))
    for r in range(1, 4): a('v_add_f32', v(ang[r]), v(ang[r-1]), v(u2))
    for r in range(4): sincos(a, ang[r], cs[r], cs[4+r])
    for r in range(4):
        a('v_cvt_pk_bf16_f32', v(Mre + r), v(cs[r]), v(cs[4+r]))
        a('v_cvt_pk_bf16_f32', v(Mim + r), '-' + v(cs[4+r]), v(cs[r]))
    ea0, ea1 = ei_addrs(a, R, 2624, dup=False)
    tr2 = R.alloc(); go = R.alloc()
    a('v_bfe_u32', v(tr2), 'v0', 2, 2); a('v_mul_u32_u24', v(tr2), 2624, v(tr2))
    a('v_and_b32', v(t), 3, 'v0'); a('v_lshl_add_u32', v(tr2), v(t), 3, v(tr2))
    a('v_lshl_add_u32', v(tr2), v(q), 5, v(tr2))
    a('s_lshl_b32', 's8', 's3', 7); a('s_add_u32', 's8', 's8', L_EI); a('v_add_u32', v(tr2), 's8', v(tr2))
    a('s_mul_i32', 's8', 's7', TBLK); a('s_lshl_b32', 's12', 's3', 10); a('s_add_u32', 's8', 's8', 's12')
    a('v_lshl_add_u32', v(go), 'v0', 4, 's8')
    Dr = R.alloc(10)
    stamp(a, 3)
    a.wait(vm=0)
    stamp(a, 4)
    for e in (0, 1, 2, 3, 4): a('ds_read_b64_tr_b16', v(Dr + 2*((e + 4) % 5), 2), v(tra[e]))
    P0 = R.alloc(8); A1 = R.alloc(24); PK = R.alloc(12)
    a('v_mfma_f32_16x16x16_bf16', v(P0, 4), v(Dr+8, 2), v(Hs+12, 2), 0)
    a('v_mfma_f32_16x16x16_bf16', v(P0+4, 4), v(Dr+8, 2), v(Gs+12, 2), 0)
    PAIR = {1: (0, 4), 2: (1, 3), 0: (6, 6)}
    for k5 in (1, 2, 0):
        for ri, M in enumerate((Hs, Gs)):
            a('v_mfma_f32_16x16x32_bf16', v(A1+8*k5+4*ri, 4), v(Dr, 4), v(M + 2*PAIR[k5][0], 4), v(P0+4*ri, 4))
        for ri, M in enumerate((Hs, Gs)):
            a('v_mfma_f32_16x16x32_bf16', v(A1+8*k5+4*ri, 4), v(Dr+4, 4), v(M + 2*PAIR[k5][1], 4), v(A1+8*k5+4*ri, 4))
    A2 = Hs; assert Gs == Hs + 16
    for k5 in (1, 2, 0):
        for r in range(4):
            re, im, c, s_ = A1+8*k5+r, A1+8*k5+4+r, TC+4*k5+r, TS+4*k5+r
            a('v_mul_f32', v(cs[r]), v(re), v(c)); a('v_mul_f32', v(cs[4+r]), v(im), v(c))
            a('v_fmac_f32', v(cs[r]), v(im), v(s_)); a('v_fma_f32', v(cs[4+r]), '-' + v(re), v(s_), v(cs[4+r]))
            a('v_cvt_pk_bf16_f32', v(PK+4*k5+r), v(cs[r]), v(cs[4+r]))
        a('v_mfma_f32_16x16x32_bf16', v(A2+8*k5, 4), v(Mre, 4), v(PK+4*k5, 4), 0)
        a('v_mfma_f32_16x16x32_bf16', v(A2+8*k5+4, 4), v(Mim, 4), v(PK+4*k5, 4), 0)
    for k5 in (1, 2, 0):
        for r in range(4): a('v_cvt_pk_bf16_f32', v(PK+4*k5+r), v(A2+8*k5+r), v(A2+8*k5+4+r))
        if k5: a('ds_write_b128', v(ea0), v(PK+4*k5, 4), mods=f'offset:{1024*(k5-1)}')
        else: a('ds_write_b128', v(ea1), v(PK, 4))
    stamp(a, 5)
    subbar(a, 0, 8, cs[0], cs[1])
    stamp(a, 6)
    O = A1
    for it in range(3):
        if it == 2:
            skip = newlabel('La1s'); a('s_cmp_gt_u32', 's3', 4); a('s_cbranch_scc1', skip)
        a('ds_read_b64_tr_b16', v(O+4*it, 2), v(tr2), mods=f'offset:{1024*it}')
        a('ds_read_b64_tr_b16', v(O+4*it+2, 2), v(tr2), mods=f'offset:{1024*it + 4*2624}')
        if it == 1:
            a('global_store_dwordx4', v(go), v(O, 4), WS_, mods=stflags)
            a('v_add_u32', v(go), 8192, v(go))
            a('global_store_dwordx4', v(go), v(O+4, 4), WS_, mods=stflags)
            a('v_add_u32', v(go), 8192, v(go))
    a('s_cmp_lt_u32', 's3', 4); a('s_cselect_b32', 'exec_hi', -1, 0)
    a('global_store_dwordx4', v(go), v(O+8, 4), WS_, mods=stflags)
    a('s_mov_b64', 'exec', -1)
    a.label(skip)
    return R.next

def srd(a, sd, base_lo, base_hi, nbytes):
    a('s_mov_b32', s(sd), base_lo); a('s_and_b32', s(sd+1), base_hi, 0xffff)
    a('s_mov_b32', s(sd+2), nbytes); a('s_mov_b32', s(sd+3), 0x20000)

def role_W1(a, stflags=''):
    R = RegAlloc(1, 168)
    WB = 2048*321*2
    srd(a, 44, 's18', 's19', WB); srd(a, 48, 's20', 's21', WB)
    a('s_sub_u32', 's9', 's3', 8)
    vo = R.alloc(); t = R.alloc(); u = R.alloc()
    a('v_lshlrev_b32', v(vo), 4, 'v0')
    a('s_mul_i32', 's10', 's7', 1284)
    a('s_mul_i32', 's11', 's9', 2*256*642); a('s_add_u32', 's10', 's10', 's11')
    a('s_mul_i32', 's11', 's9', 2*1296); a('s_add_u32', 's11', 's11', L_A2 + 1296)
    def slot(soff, m0v_s, add):
        for pl, sd in enumerate((44, 48)):
            a('s_add_u32', 'm0', m0v_s, add + pl*11664)
            a('buffer_load_dwordx4', v(vo), s(sd, 4), soff, mods='offen lds')
            a('s_mov_b64', 'exec', 0x1ffff)
            a('buffer_load_dwordx4', v(vo), s(sd, 4), soff, mods='offen offset:1024 lds')
            a('s_mov_b64', 'exec', -1)
    slot('s10', 's11', 0)
    a('s_add_u32', 's10', 's10', 256*642)
    slot('s10', 's11', 1296)
    sk = newlabel('Lw1s')
    a('s_cmp_lg_u32', 's7', 127); a('s_cbranch_scc1', sk)
    a('s_cmp_lg_u32', 's9', 3); a('s_cbranch_scc1', sk)
    a('s_mov_b32', 's11', L_A2)
    slot('s10', 's11', 0)
    a.label(sk)
    k0 = R.alloc(); vc = R.alloc(); go = R.alloc(); go2 = R.alloc()
    a('v_lshrrev_b32', v(t), 3, 'v0')
    a('v_mul_u32_u24', v(k0), 65, v(t))
    a('v_mul_u32_u24', v(u), 205, v(k0)); a('v_lshrrev_b32', v(u), 14, v(u))
    a('v_mul_u32_u24', v(u), 80, v(u)); a('v_sub_u32', v(k0), v(k0), v(u))
    a('s_and_b32', 's12', 's9', 1)
    a('s_lshr_b32', 's13', 's9', 1)
    a('s_cmp_eq_u32', 's12', 0)
    a('s_cselect_b32', 's14', 2, -2)
    a('s_cselect_b32', 's15', 0, 640)
    a('s_mul_i32', 's8', 's13', 642); a('s_add_u32', 's15', 's15', 's8')
    a('s_add_u32', 's15', 's15', L_A2 + 1296)
    a('s_cmp_eq_u32', 's9', 3); a('s_cselect_b32', 's8', 1, 0)
    a('s_add_u32', 's8', 's8', 's7')
    a('s_cmp_eq_u32', 's8', 128); a('s_cselect_b32', 's41', 1296, 0); a('s_sub_u32', 's15', 's15', 's41')
    a('s_and_b32', 's8', 's8', 127)
    a('v_bfe_u32', v(t), 'v0', 1, 2); a('v_mul_u32_u24', v(t), 80, v(t))
    a('v_and_b32', v(u), 1, 'v0'); a('v_mul_u32_u24', v(u), 11664, v(u)); a('v_add_u32', v(u), 's15', v(u))
    a('v_mad_i32_i24', v(vc), v(t), 's14', v(u))
    a('s_mul_i32', 's8', 's8', TBLK); a('s_add_u32', 's8', 's8', WS_W)
    a('s_lshl_b32', 's41', 's9', 11); a('s_add_u32', 's41', 's41', 's8')
    a('v_add_u32', v(go), 's41', v(vo))
    a('s_mul_i32', 's41', 's9', 9*128); a('s_add_u32', 's41', 's41', 's8'); a('s_add_u32', 's41', 's41', 128*128)
    a('v_add_u32', v(go2), 's41', v(vo))
    ads = [R.alloc() for _ in range(6)]
    for it, C in enumerate((16, 56, 32, 72, 0, 40)):
        if C:
            a('v_add_u32', v(t), C, v(k0)); a('v_subrev_u32', v(u), 80, v(t)); a('v_min_u32', v(t), v(t), v(u))
            a('v_mad_i32_i24', v(ads[it]), v(t), 's14', v(vc))
        else:
            a('v_mad_i32_i24', v(ads[it]), v(k0), 's14', v(vc))
    O = R.alloc(24); Hh = R.alloc(24)
    stamp(a, 3)
    subbar(a, 1, 4, t, u, vm=True)
    stamp(a, 4)
    def comb(it):
        for k in range(4): a('v_lshl_or_b32', v(O+4*it+k), v(Hh+4*it+k), 16, v(O+4*it+k))
    for it in range(6):
        for i in range(8):
            a('ds_read_u16', v((Hh if i & 1 else O) + 4*it + (i >> 1)), v(ads[it]), mods=f'offset:{1296*i}')
        if it: comb(it - 1)
        if it == 2:
            for k in range(2): a('global_store_dwordx4', v(go), v(O+4*k, 4), WS_, mods=f'offset:{1024*k} {stflags}')
            a('v_add_u32', v(go), 8192, v(go))
        if it == 4:
            for k in range(2): a('global_store_dwordx4', v(go), v(O+8+4*k, 4), WS_, mods=f'offset:{1024*k} {stflags}')
    comb(5)
    a('global_store_dwordx4', v(go2), v(O+16, 4), WS_, mods=stflags)
    a('s_mov_b64', 'exec', 0xff)
    a('global_store_dwordx4', v(go2), v(O+20, 4), WS_, mods=f'offset:1024 {stflags}')
    a('s_mov_b64', 'exec', -1)
    return R.next

def role_A2(a, ldflags='', stflags=''):
    R = RegAlloc(1, 168)
    t = R.alloc(); u = R.alloc(); go = R.alloc(4); lw = R.alloc(); lr0 = R.alloc(); lr1 = R.alloc()
    a('s_sub_u32', 's10', 's3', 8)
    a('v_lshrrev_b32', v(t), 3, 'v0'); a('v_lshl_add_u32', v(t), 's10', 3, v(t))
    a('s_mov_b32', 's8', TBLK); a('v_mul_lo_u32', v(go), v(t), 's8')
    a('v_and_b32', v(u), 7, 'v0'); a('v_lshl_add_u32', v(go), v(u), 4, v(go))
    a('s_lshl_b32', 's8', 's9', 7); a('v_add_u32', v(go), 's8', v(go))
    for it in range(1, 4): a('v_add_u32', v(go+it), 32*TBLK*it, v(go))
    ST = R.alloc(32); SW = ST + 16
    a('s_add_u32', 's12', 's38', WS_W); a('s_addc_u32', 's13', 's39', 0)
    for it in range(4): a('global_load_dwordx4', v(ST+4*it, 4), v(go+it), WS_, mods=ldflags)
    for it in range(4): a('global_load_dwordx4', v(SW+4*it, 4), v(go+it), 's[12:13]', mods=ldflags)
    def swz(dst, line, piece, tmp):
        a('v_lshrrev_b32', v(dst), 1, v(line)); a('v_lshlrev_b32', v(tmp), 2, v(line)); a('v_xor_b32', v(dst), v(dst), v(tmp))
        a('v_xor_b32', v(dst), piece, v(dst)); a('v_and_b32', v(dst), 7, v(dst)); a('v_lshlrev_b32', v(dst), 4, v(dst))
        a('v_lshl_add_u32', v(dst), v(line), 7, v(dst)); a('v_add_u32', v(dst), L_A2, v(dst))
    t2 = R.alloc()
    swz(lw, t, v(u), t2)
    o = R.alloc(); h = R.alloc(); of = R.alloc(); hf = R.alloc()
    a('v_bfe_u32', v(o), 'v0', 3, 2); a('v_and_b32', v(t), 3, 'v0'); a('v_lshl_add_u32', v(o), v(o), 2, v(t))
    a('v_bfe_u32', v(t), 'v0', 2, 1); a('v_lshl_add_u32', v(o), v(o), 1, v(t))
    a('v_lshrrev_b32', v(h), 5, 'v0')
    a('v_lshl_add_u32', v(t), v(h), 5, v(o))
    a('s_lshl_b32', 's8', 's10', 1)
    swz(lr0, t, 's8', t2); a('v_xor_b32', v(lr1), 16, v(lr0))
    a('s_sub_u32', 's8', 's9', 128); a('s_mul_i32', 's8', 's8', 57); a('s_lshr_b32', 's8', 's8', 9)
    a('s_lshr_b32', 's11', 's9', 4); a('s_cmp_lt_u32', 's9', 128); a('s_cselect_b32', 's8', 's11', 's8')
    a('s_and_b32', 's8', 's8', 1); a('s_cmp_eq_u32', 's8', 0)
    a('s_cselect_b32', 's14', 0, 0x80008000); a('s_lshl_b32', 's11', 's8', 31); a('s_or_b32', 's11', 's11', fl(1/32))
    a('v_cvt_f32_u32', v(of), v(o)); a('v_mul_f32', v(of), 's11', v(of))
    a('v_cvt_f32_u32', v(hf), v(h)); a('v_mul_f32', v(hf), v(hf), v(of))
    C = R.alloc(8); Sm = R.alloc(8); N = R.alloc(8); TC = R.alloc(16); TS = R.alloc(16)
    X = R.alloc(8)
    for kap in range(2):
        for jj in range(4):
            for e in range(2):
                idx = 2*kap + 4*(2*jj + e)
                if idx: a('v_fmamk_f32', v(X+e), v(of), fl(float(idx)), v(hf)); src = X+e
                else: src = hf
                sincos(a, src, X+2+e, X+4+e)
                vv = 2*(2*jj + e) + kap
                a('v_mul_f32', v(X+6+e), fl(1/32), v(src))
                sincos(a, X+6+e, TC+vv, TS+vv)
            a('v_cvt_pk_bf16_f32', v(C+4*kap+jj), v(X+2), v(X+3))
            a('v_cvt_pk_bf16_f32', v(Sm+4*kap+jj), v(X+4), v(X+5))
            a('v_cvt_pk_bf16_f32', v(N+4*kap+jj), '-' + v(X+4), '-' + v(X+5))
    stamp(a, 3)
    for it in range(4): a('ds_write_b128', v(lw), v(ST+4*it, 4), mods=f'offset:{4096*it}')
    for it in range(4): a('ds_write_b128', v(lw), v(SW+4*it, 4), mods=f'offset:{16384+4096*it}')
    stamp(a, 4)
    subbar(a, 2, 4, t, u)
    stamp(a, 5)
    Z = R.alloc(16); Wp = R.alloc(16)
    for kap in range(2):
        for ri, ad in enumerate((lr0, lr1)): a('ds_read_b128', v(Z+8*kap+4*ri, 4), v(ad), mods=f'offset:{8192*kap}')
    for kap in range(2):
        for ri, ad in enumerate((lr0, lr1)): a('ds_read_b128', v(Wp+8*kap+4*ri, 4), v(ad), mods=f'offset:{16384+8192*kap}')
    ACC = [ST, None]; ACC[1] = None
    AR, AI = ST, ST+16
    BR = None
    MF = 'v_mfma_f32_32x32x16_bf16'
    def mm(kap, dataA, inv, dR, dI):
        zr, zi = v(Z+8*kap, 4), v(Z+8*kap+4, 4)
        c, p, n = v(C+4*kap, 4), v(Sm+4*kap, 4), v(N+4*kap, 4)
        if inv: p, n = n, p
        for k, (d, z, m) in enumerate(((dR, zr, c), (dI, zi, c), (dR, zi, p), (dI, zr, n))):
            cin = 0 if (kap == 0 and k < 2) else v(d, 16)
            if dataA: a(MF, v(d, 16), z, m, cin)
            else: a(MF, v(d, 16), m, z, cin)
    A2R = R.alloc(32) if R.next + 32 <= 168 else None
    bufs = [(AR, AI), (A2R, A2R+16)] if A2R else [(AR, AI), (AR, AI)]
    mm(0, True, False, *bufs[0]); mm(1, True, False, *bufs[0])
    for i in range(8): a('v_xor_b32', v(Wp + (i >> 2)*8 + 4 + (i & 3)), 's14', v(Wp + (i >> 2)*8 + 4 + (i & 3)))
    msk = t2; a('v_mov_b32', v(msk), 0xffff0000)
    for st in range(3):
        sR, sI = bufs[st & 1]; dR, dI = bufs[(st + 1) & 1]
        for kap in range(2):
            for jj in range(4):
                for e in range(2):
                    vv = 2*(2*jj + e) + kap
                    re, im = sR+vv, sI+vv
                    if st == 1:
                        c, s_ = X+4, X+5
                        for dst, pl in ((c, 0), (s_, 1)):
                            src = Wp + 8*kap + 4*pl + jj
                            if e: a('v_and_b32', v(dst), v(msk), v(src))
                            else: a('v_lshlrev_b32', v(dst), 16, v(src))
                    else: c, s_ = TC+vv, TS+vv
                    a('v_mul_f32', v(X+e), v(re), v(c)); a('v_mul_f32', v(X+2+e), v(im), v(c))
                    if st == 0:
                        a('v_fmac_f32', v(X+e), v(im), v(s_)); a('v_fma_f32', v(X+2+e), '-' + v(re), v(s_), v(X+2+e))
                    else:
                        a('v_fma_f32', v(X+e), '-' + v(im), v(s_), v(X+e)); a('v_fmac_f32', v(X+2+e), v(re), v(s_))
                a('v_cvt_pk_bf16_f32', v(Z+8*kap+jj), v(X), v(X+1))
                a('v_cvt_pk_bf16_f32', v(Z+8*kap+4+jj), v(X+2), v(X+3))
            if A2R or kap == 1:
                if not A2R: mm(0, st == 1, st >= 1, dR, dI)
                mm(kap, st == 1, st >= 1, dR, dI)
    sR, sI = bufs[1]
    for kap in range(2):
        for ih, ad in enumerate((lr0, lr1)):
            for x in range(4):
                vv = 2*(4*ih + x) + kap
                a('v_cvt_pk_bf16_f32', v(Z+8*kap+4*ih+x), v(sR+vv), v(sI+vv))
            a('ds_write_b128', v(ad), v(Z+8*kap+4*ih, 4), mods=f'offset:{8192*kap}')
    stamp(a, 6)
    subbar(a, 3, 4, t, u)
    stamp(a, 7)
    for it in range(4): a('ds_read_b128', v(Wp+4*it, 4), v(lw), mods=f'offset:{4096*it}')
    for it in range(4): a('global_store_dwordx4', v(go+it), v(Wp+4*it, 4), WS_, mods=stflags)
    return R.next

def role_A3(a, ldflags=''):
    R = RegAlloc(1, 168)
    PIT = 2640
    t = R.alloc(); u = R.alloc(); go = R.alloc(); lw = R.alloc()
    IN = R.alloc(12)
    a('s_mul_i32', 's8', 's7', TBLK); a('s_lshl_b32', 's12', 's3', 10); a('s_add_u32', 's8', 's8', 's12')
    a('v_lshl_add_u32', v(go), 'v0', 4, 's8')
    a('global_load_dwordx4', v(IN, 4), v(go), WS_, mods=ldflags)
    a('v_add_u32', v(t), 8192, v(go))
    a('global_load_dwordx4', v(IN+4, 4), v(t), WS_, mods=ldflags)
    a('s_mul_i32', 's8', 's7', TBLK); a('s_add_u32', 's8', 's8', TBLK - 16)
    a('v_add_u32', v(t), 16384, v(go)); a('v_min_u32', v(t), 's8', v(t))
    a('global_load_dwordx4', v(IN+8, 4), v(t), WS_, mods=ldflags)
    a('v_and_b32', v(t), 1, 'v0'); a('v_mul_u32_u24', v(lw), 4*PIT, v(t))
    a('v_lshrrev_b32', v(t), 1, 'v0'); a('v_lshl_add_u32', v(lw), v(t), 2, v(lw))
    a('s_lshl_b32', 's8', 's3', 7); a('s_add_u32', 's8', 's8', L_EI); a('v_add_u32', v(lw), 's8', v(lw))
    ea0, ea1 = ei_addrs(a, R, PIT, dup=True)
    a('s_lshl_b32', 's9', 's3', 7); a('s_add_u32', 's9', 's9', 's7')
    a('s_mul_i32', 's10', 's9', 2560)
    vo = row_offsets(a, R, 's10', 1024*2560)
    n = R.alloc(); q = R.alloc(); nf = R.alloc(); qf = R.alloc(); bf = R.alloc(); k2f = R.alloc()
    a('v_and_b32', v(n), 15, 'v0'); a('v_lshrrev_b32', v(q), 4, 'v0')
    a('v_cvt_f32_u32', v(nf), v(n)); a('v_cvt_f32_u32', v(qf), v(q))
    a('v_and_b32', v(bf), 7, 'v0'); a('v_cvt_f32_u32', v(bf), v(bf))
    ang = [R.alloc() for _ in range(4)]; an2 = [R.alloc() for _ in range(4)]; cs = [R.alloc() for _ in range(8)]
    Mre = R.alloc(4); Mim = R.alloc(4); u2 = R.alloc()
    a('v_mul_f32', v(u2), fl(1/8), v(bf))
    a('v_and_b32', v(k2f), 1, v(q)); a('v_lshlrev_b32', v(k2f), 2, v(k2f)); a('v_cvt_f32_u32', v(k2f), v(k2f))
    a('v_bfe_u32', v(t), 'v0', 3, 1); a('v_lshl_add_u32', v(t), v(t), 10, 's9')
    a('v_lshrrev_b32', v(u), 5, 'v0'); a('v_mul_u32_u24', v(t), v(t), v(u))
    a('v_cvt_f32_u32', v(t), v(t)); a('v_mul_f32', v(t), fl(1/2048), v(t))
    a('v_fma_f32', v(ang[0]), v(u2), v(k2f), v(t))
    for r in range(1, 4): a('v_add_f32', v(ang[r]), v(ang[r-1]), v(u2))
    for r in range(4): sincos(a, ang[r], cs[r], cs[4+r])
    for r in range(4):
        a('v_cvt_pk_bf16_f32', v(Mre+r), v(cs[r]), '-' + v(cs[4+r]))
        a('v_cvt_pk_bf16_f32', v(Mim+r), v(cs[4+r]), v(cs[r]))
    TC = R.alloc(12); TS = R.alloc(12); kar = R.alloc(); wt = R.alloc()
    NRM = 1.0/(2048*640)
    for r in range(4):
        mk = R.mark()
        a('v_lshl_add_u32', v(kar), v(q), 2, r)
        k1 = k1_regs(a, R, kar)
        for k5 in range(3):
            a('v_mul_f32', v(k1[k5]), v(k1[k5]), v(bf))
            sincos(a, k1[k5], TC+4*k5+r, TS+4*k5+r)
        a('v_mov_b32', v(wt), fl(2*NRM))
        for k5 in (1, 2):
            a('v_mul_f32', v(TC+4*k5+r), v(wt), v(TC+4*k5+r)); a('v_mul_f32', v(TS+4*k5+r), v(wt), v(TS+4*k5+r))
        a('v_cmp_gt_u32', 'vcc', 9, v(kar)); a('v_cndmask_b32', v(wt), 0, v(wt), 'vcc')
        if r == 0:
            a('v_and_b32', v(t), 7, v(kar)); a('v_cmp_eq_u32', 'vcc', 0, v(t))
            a('v_mov_b32', v(t), fl(NRM)); a('v_cndmask_b32', v(wt), v(wt), v(t), 'vcc')
        a('v_mul_f32', v(TC+r), v(wt), v(TC+r)); a('v_mul_f32', v(TS+r), v(wt), v(TS+r))
        R.release(mk)
    F = R.alloc(20)
    a('v_mul_f32', v(t), 0.5, v(nf)); a('v_mul_f32', v(t), 0.5, v(t))
    a('v_mul_f32', v(ang[0]), v(t), v(qf))
    for r in range(1, 4): a('v_fmamk_f32', v(ang[r]), v(nf), fl(r/16), v(ang[0]))
    for tt in range(5):
        src = ang
        if tt:
            for r in range(4): a('v_add_f32', v(an2[r]), fl(tt/5), v(ang[r]))
            src = an2
        for r in range(4): sincos(a, src[r], cs[r], cs[4+r])
        for r in range(4): a('v_cvt_pk_bf16_f32', v(F+4*tt+r), v(cs[r]), '-' + v(cs[4+r]))
    vb = R.alloc(); rd = R.alloc()
    a('s_mul_i32', 's11', 's3', 3072); a('s_add_u32', 's11', 's11', L_XR)
    a('v_lshrrev_b32', v(vb), 5, 'v0'); a('v_mul_u32_u24', v(vb), 1408, v(vb))
    a('v_and_b32', v(t), 1, v(q)); a('v_lshl_add_u32', v(vb), v(t), 3, v(vb)); a('v_add_u32', v(vb), 's11', v(vb))
    wa = d1_addrs(a, R, n, vb)
    a('v_lshl_add_u32', v(rd), 'v0', 4, 's11')
    stamp(a, 3)
    for it in range(3):
        if it == 2:
            skip = newlabel('La3s'); a('s_cmp_gt_u32', 's3', 4); a('s_cbranch_scc1', skip)
            a('s_cmp_lt_u32', 's3', 4); a('s_cselect_b32', 'exec_hi', -1, 0)
        for x in range(4): a('ds_write_b32', v(lw), v(IN+4*it+x), mods=f'offset:{1024*it + PIT*x}')
    a('s_mov_b64', 'exec', -1)
    a.label(skip)
    stamp(a, 4)
    subbar(a, 4, 8, t, u, vm=True)
    stamp(a, 5)
    Z = IN; A1 = R.alloc(24); PK = Z; Y = R.alloc(20); P0 = R.alloc(4)
    a('ds_read_b128', v(Z, 4), v(ea1))
    a('ds_read_b128', v(Z+4, 4), v(ea0)); a('ds_read_b128', v(Z+8, 4), v(ea0), mods='offset:1024')
    MF = 'v_mfma_f32_16x16x32_bf16'
    for k5 in range(3):
        a(MF, v(A1+8*k5, 4), v(Z+4*k5, 4), v(Mre, 4), 0); a(MF, v(A1+8*k5+4, 4), v(Z+4*k5, 4), v(Mim, 4), 0)
    for k5 in range(3):
        for r in range(4):
            re, im, c, s_ = A1+8*k5+r, A1+8*k5+4+r, TC+4*k5+r, TS+4*k5+r
            a('v_mul_f32', v(cs[r]), v(re), v(c)); a('v_mul_f32', v(cs[4+r]), v(im), v(c))
            a('v_fma_f32', v(cs[r]), '-' + v(im), v(s_), v(cs[r])); a('v_fmac_f32', v(cs[4+r]), v(re), v(s_))
            a('v_cvt_pk_bf16_f32', v(PK+4*k5+r), v(cs[r]), v(cs[4+r]))
        if k5 == 0: a(MF, v(P0, 4), v(PK, 4), v(F, 4), 0)
        else:
            for e in range(5):
                a(MF, v(Y+4*e, 4), v(PK+4*k5, 4), v(F+4*((e*k5) % 5), 4), v(P0, 4) if k5 == 1 else v(Y+4*e, 4))
    for e in range(5):
        a('v_cvt_pk_bf16_f32', v(A1+2*e), v(Y+4*e), v(Y+4*e+1)); a('v_cvt_pk_bf16_f32', v(A1+2*e+1), v(Y+4*e+2), v(Y+4*e+3))
        a('ds_write_b64', v(wa[e]), v(A1+2*e, 2))
    for k in range(3): a('ds_read_b128', v(Z+4*k, 4), v(rd), mods=f'offset:{1024*k}')
    stamp(a, 6)
    a('global_store_dwordx4', v(vo[0]), v(Z, 4), OUT_)
    a('s_mov_b32', 'exec_lo', 0xff00ffff)
    a('global_store_dwordx4', v(vo[1]), v(Z+4, 4), OUT_, mods='offset:1024')
    a('s_mov_b32', 'exec_lo', -1); a('s_mov_b32', 'exec_hi', 0xff)
    a('global_store_dwordx4', v(vo[2]), v(Z+8, 4), OUT_, mods='offset:2048')
    a('s_mov_b64', 'exec', -1)
    return R.next

def quad_voff(a, R):
    vo = R.alloc(); t = R.alloc()
    a('v_mul_u32_u24', v(t), 26, 'v0'); a('v_lshrrev_b32', v(t), 8, v(t))
    a('v_mul_u32_u24', v(vo), 1280 - 160, v(t)); a('v_lshl_add_u32', v(vo), 'v0', 4, v(vo))
    return vo

def tile_dma(a, vo, sd, lds_img, stray='s8'):
    a('s_mul_i32', 's11', 's3', 16*1280); a('s_add_u32', 's11', 's11', 's10')
    a('s_mul_i32', 's12', 's3', 2*1296)
    for k in range(4):
        a('s_add_u32', 'm0', 's12', lds_img + (k >> 1)*1296 + (k & 1)*640)
        a('buffer_load_dwordx4', v(vo), s(sd, 4), 's11', mods='offen lds')
        if k < 3: a('s_add_u32', 's11', 's11', 4*1280)

def b13_lane(a, R, wsbase):
    lb = R.alloc(); uo = R.alloc(); pr = R.alloc(); od = R.alloc()
    a('s_cmp_ge_u32', 's3', 5); a('s_cselect_b32', 's13', 1, 0)
    a('s_mul_i32', 's14', 's13', 5); a('s_sub_u32', 's14', 's3', 's14')
    a('v_lshrrev_b32', v(pr), 3, 'v0'); a('v_lshl_add_u32', v(pr), 's14', 3, v(pr))
    a('v_and_b32', v(od), 7, 'v0'); a('s_lshl_b32', 's15', 's13', 3); a('s_add_u32', 's15', 's15', 7)
    a('v_sub_u32', v(od), 's15', v(od))
    a('v_mul_u32_u24', v(lb), 1296, v(od)); a('v_lshl_add_u32', v(lb), v(pr), 2, v(lb)); a('v_add_u32', v(lb), L_KI, v(lb))
    a('s_mul_i32', 's15', 's4', 80*4096); a('s_add_u32', 's15', 's15', wsbase + 4080)
    a('s_lshl_b32', 's8', 's6', 8); a('s_sub_u32', 's15', 's15', 's8')
    a('v_lshl_add_u32', v(uo), v(pr), 13, 's15');
    t = R.alloc(); a('v_lshlrev_b32', v(t), 4, v(od)); a('v_sub_u32', v(uo), v(uo), v(t))
    return lb, uo, pr, od

def role_B1(a, endlabel, stflags=''):
    R = RegAlloc(1, 168)
    a('s_cmp_ge_u32', 's3', 10); a('s_cbranch_scc1', endlabel)
    NB = 2048*1280
    srd(a, 44, 's24', 's25', NB); srd(a, 48, 's26', 's27', NB)
    vo = quad_voff(a, R)
    a('s_mul_i32', 's10', 's6', 128*1280); a('s_mul_i32', 's8', 's4', 160); a('s_add_u32', 's10', 's10', 's8')
    t = R.alloc(); u = R.alloc()
    a('s_sub_u32', 's8', 's10', 4*1280); a('v_add_u32', v(t), 's8', v(vo))
    a('s_mov_b32', 'exec_hi', 0xff)
    l8 = newlabel('Lb1'); l9 = newlabel('Lb1')
    a('s_cmp_ge_u32', 's3', 8); a('s_cbranch_scc1', l8)
    tile_dma(a, vo, 44, L_KI + 1296); tile_dma(a, vo, 48, L_VI)
    a('s_branch', l9)
    a.label(l8)
    a('s_mov_b32', 'm0', L_KI + 640)
    a('buffer_load_dwordx4', v(t), 's[44:47]', 0, mods='offen lds')
    a.label(l9)
    a('s_mov_b64', 'exec', -1)
    lb, uo, pr, od = b13_lane(a, R, WS_U)
    CF = R.alloc(4); C = R.alloc(8)
    a('s_mul_i32', 's8', 's4', 640); a('v_lshl_add_u32', v(t), v(pr), 4, 's8')
    a('global_load_dwordx4', v(CF, 4), v(t), SK_)
    msk = R.alloc(); a('v_mov_b32', v(msk), 0xffff0000)
    for ch in range(2):
        for j in range(4):
            src = CF + 2*ch + (j >> 1)
            if j & 1: a('v_and_b32', v(C+4*ch+j), v(msk), v(src))
            else: a('v_lshlrev_b32', v(C+4*ch+j), 16, v(src))
    stamp(a, 3)
    subbar(a, 5, 10, t, u, vm=True)
    stamp(a, 4)
    Kd = R.alloc(11); Vd = R.alloc(8); Kf = [R.alloc(11), R.alloc(11)]; T = R.alloc(4); O = R.alloc(8)
    for i in range(11): a('ds_read_b32', v(Kd+i), v(lb), mods=f'offset:{(800 + 160*i if i < 3 else 1296 + 160*(i-3))}')
    for i in range(8): a('ds_read_b32', v(Vd+i), v(lb), mods=f'offset:{L_VI - L_KI + 160*i}')
    def unp(i):
        a('v_lshlrev_b32', v(Kf[0]+i), 16, v(Kd+i)); a('v_and_b32', v(Kf[1]+i), v(msk), v(Kd+i))
    for i in range(3): unp(i)
    res = R.alloc(4)
    for i in range(8):
        unp(i+3)
        for ch in range(2):
            acc = T + ch; dst = res + 2*ch + (i & 1)
            a('v_mul_f32', v(acc), v(Kf[ch]+i), v(C+4*ch+3))
            for j in (2, 1, 0): a('v_fmac_f32', v(acc), v(Kf[ch]+i+3-j), v(C+4*ch+j))
            if ch: a('v_and_b32', v(T+2+ch), v(msk), v(Vd+i))
            else: a('v_lshlrev_b32', v(T+2+ch), 16, v(Vd+i))
            a('v_mul_f32', v(dst), v(acc), v(T+2+ch))
        if i & 1:
            for ch in range(2): a('v_cvt_pk_bf16_f32', v(O+4*ch+3-(i >> 1)), v(res+2*ch+1), v(res+2*ch))
    stamp(a, 5)
    a('global_store_dwordx4', v(uo), v(O, 4), WS_, mods=stflags)
    a('v_add_u32', v(uo), 4096, v(uo))
    a('global_store_dwordx4', v(uo), v(O+4, 4), WS_, mods=stflags)
    return R.next

def role_B3(a, endlabel, ldflags=''):
    R = RegAlloc(1, 168)
    a('s_cmp_ge_u32', 's3', 10); a('s_cbranch_scc1', endlabel)
    NB = 2048*1280
    srd(a, 44, 's22', 's23', NB)
    lb, uo, pr, od = b13_lane(a, R, WS_Z)
    Z = R.alloc(8); t = R.alloc(); u = R.alloc()
    a('global_load_dwordx4', v(Z, 4), v(uo), WS_, mods=ldflags)
    a('v_add_u32', v(uo), 4096, v(uo))
    a('global_load_dwordx4', v(Z+4, 4), v(uo), WS_, mods=ldflags)
    vo = quad_voff(a, R)
    a('s_mul_i32', 's10', 's6', 128*1280); a('s_mul_i32', 's8', 's4', 160); a('s_add_u32', 's10', 's10', 's8')
    l8 = newlabel('Lb3')
    a('s_cmp_ge_u32', 's3', 8); a('s_cbranch_scc1', l8)
    a('s_mov_b32', 'exec_hi', 0xff)
    tile_dma(a, vo, 44, L_VI)
    a('s_mov_b64', 'exec', -1)
    a.label(l8)
    oo = R.alloc(); msk = R.alloc(); a('v_mov_b32', v(msk), 0xffff0000)
    a('s_mul_i32', 's8', 's6', 128*2560); a('s_mul_i32', 's9', 's4', 160); a('s_add_u32', 's8', 's8', 's9'); a('s_add_u32', 's8', 's8', 1280)
    a('v_mul_u32_u24', v(oo), 8*2560, v(od)); a('v_lshl_add_u32', v(oo), v(pr), 2, v(oo)); a('v_add_u32', v(oo), 's8', v(oo))
    stamp(a, 3)
    subbar(a, 6, 10, t, u, vm=True)
    stamp(a, 4)
    Qd = R.alloc(8); T = R.alloc(4); O = R.alloc(8)
    for i in range(8): a('ds_read_b32', v(Qd+i), v(lb), mods=f'offset:{L_VI - L_KI + 160*i}')
    for i in range(8):
        for ch in range(2):
            src = Z + 4*ch + 3 - (i >> 1)
            if i & 1: a('v_lshlrev_b32', v(T+ch), 16, v(src))
            else: a('v_and_b32', v(T+ch), v(msk), v(src))
            if ch: a('v_and_b32', v(T+2+ch), v(msk), v(Qd+i))
            else: a('v_lshlrev_b32', v(T+2+ch), 16, v(Qd+i))
            a('v_mul_f32', v(T+ch), v(T+ch), v(T+2+ch))
        a('v_cvt_pk_bf16_f32', v(O+i), v(T), v(T+1))
        if i & 1:
            a('global_store_dword', v(oo), v(O+i-1), OUT_)
            a('global_store_dword', v(oo), v(O+i), OUT_, mods='offset:2560')
            if i < 7: a('v_add_u32', v(oo), 5120, v(oo))
    return R.next

def chan_of_lc(a, dst, lc_s_or_int):
    a('s_mul_i32', dst, 's4', 80); a('s_mul_i32', 's41', 's6', 5); a('s_add_u32', dst, dst, 's41')
    if isinstance(lc_s_or_int, int):
        lc = lc_s_or_int
        if lc == 2: a('s_add_u32', dst, dst, 2)
        else:
            a('s_mul_i32', 's41', 's5', 3); a('s_add_u32', dst, dst, 's41')
            if lc: a('s_add_u32', dst, dst, lc)
    else:
        a('s_mul_i32', 's41', 's5', 3); a('s_cmp_eq_u32', lc_s_or_int, 2); a('s_cselect_b32', 's41', 0, 's41')
        a('s_add_u32', dst, dst, 's41'); a('s_add_u32', dst, dst, lc_s_or_int)

def B2_himg(a, R):
    vo = R.alloc(); t = R.alloc(); u = R.alloc(); Hd = R.alloc(4)
    a('s_lshr_b32', 's9', 's3', 1)
    a('s_and_b32', 's10', 's3', 1)
    a('s_lshl_b32', 's8', 's9', 1); a('s_add_u32', 's8', 's8', 2); a('s_lshl_b32', 's11', 's10', 11); a('s_add_u32', 's8', 's8', 's11')
    a('v_lshl_add_u32', v(vo), 'v0', 4, 's8')
    a('s_and_b32', 's12', 's9', 1); a('s_mul_i32', 's12', 's12', 529*16); a('s_lshr_b32', 's13', 's9', 1); a('s_mul_i32', 's13', 's13', 264*16)
    a('s_add_u32', 's12', 's12', 's13'); a('s_add_u32', 's12', 's12', 's11')
    for lc in range(3):
        chan_of_lc(a, 's8', lc); a('s_lshl_b32', 's8', 's8', 12)
        a('s_add_u32', 's44', 's30', 's8'); a('s_addc_u32', 's45', 's31', 0); a('s_and_b32', 's45', 's45', 0xffff)
        a('s_mov_b32', 's46', 4096); a('s_mov_b32', 's47', 0x20000)
        a('s_add_u32', 'm0', 's12', L_H + lc*HSZ + 128)
        a('buffer_load_dwordx4', v(vo), 's[44:47]', 0, mods='offen lds')
        a('buffer_load_dwordx4', v(vo), 's[44:47]', 0, mods='offen offset:1024 lds')
    sk = newlabel('Lh')
    a('s_cmp_ge_u32', 's3', 3); a('s_cbranch_scc1', sk)
    chan_of_lc(a, 's8', 's3'); a('s_lshl_b32', 's8', 's8', 12); a('v_mov_b32', v(t), 's8')
    a('global_load_dwordx2', v(Hd+2, 2), v(t), H_)
    Zr = R.alloc(4)
    for k in range(4): a('v_mov_b32', v(Zr+k), 0)
    a('s_mul_i32', 's8', 's3', USZ); a('s_add_u32', 's8', 's8', L_U + 32*144)
    a('v_lshl_add_u32', v(u), 'v0', 4, 's8')
    a('ds_write_b128', v(u), v(Zr, 4)); a('ds_write_b128', v(u), v(Zr, 4), mods='offset:1024')
    a('s_mov_b64', 'exec', 0x7f); a('ds_write_b128', v(u), v(Zr, 4), mods='offset:2048'); a('s_mov_b64', 'exec', -1)
    a('v_bfe_u32', v(t), 'v0', 3, 2)
    a('v_and_b32', v(u), 1, v(t)); a('v_mul_u32_u24', v(u), 529*16, v(u))
    a('v_lshrrev_b32', v(Hd), 1, v(t)); a('v_mul_u32_u24', v(Hd), 264*16, v(Hd)); a('v_add_u32', v(u), v(u), v(Hd))
    a('v_and_b32', v(Hd), 7, 'v0'); a('v_lshl_add_u32', v(u), v(Hd), 4, v(u))
    a('s_mul_i32', 's8', 's3', HSZ); a('s_add_u32', 's8', 's8', L_H); a('v_add_u32', v(u), 's8', v(u))
    a('v_cmp_eq_u32', 'vcc', 7, v(Hd))
    a('v_lshlrev_b32', v(t), 4, v(t)); a('v_sub_u32', v(t), 48, v(t))
    a('v_lshlrev_b64', v(Hd+2, 2), v(t), v(Hd+2, 2))
    a('v_cndmask_b32', v(Hd+2), 0, v(Hd+2), 'vcc'); a('v_cndmask_b32', v(Hd+3), 0, v(Hd+3), 'vcc')
    a('v_mov_b32', v(Hd), 0); a('v_mov_b32', v(Hd+1), 0)
    a('s_mov_b32', 'exec_hi', 0)
    a('ds_write_b128', v(u), v(Hd, 4))
    a('s_mov_b64', 'exec', -1)
    a.label(sk)

def B2_uload(a, R, ldflags):
    t = R.alloc(); lw = R.alloc(); U = R.alloc(8); go = R.alloc()
    a('s_lshr_b32', 's9', 's3', 2); a('s_and_b32', 's10', 's3', 3)
    a('v_lshrrev_b32', v(t), 3, 'v0'); a('v_lshlrev_b32', v(t), 4, v(t)); a('v_lshl_add_u32', v(lw), 'v0', 4, v(t))
    a('s_mul_i32', 's11', 's10', 8*144); a('s_add_u32', 's11', 's11', L_U); a('v_add_u32', v(lw), 's11', v(lw))
    a('s_lshl_b32', 's12', 's10', 10); a('s_add_u32', 's12', 's12', WS_U)
    chan_of_lc(a, 's8', 's9'); a('s_lshl_b32', 's8', 's8', 12); a('s_add_u32', 's8', 's8', 's12')
    a('v_lshl_add_u32', v(go), 'v0', 4, 's8')
    a('global_load_dwordx4', v(U, 4), v(go), WS_, mods=ldflags)
    chan_of_lc(a, 's8', 2); a('s_lshl_b32', 's8', 's8', 12); a('s_add_u32', 's8', 's8', 's12')
    a('v_lshl_add_u32', v(go), 'v0', 4, 's8')
    a('global_load_dwordx4', v(U+4, 4), v(go), WS_, mods=ldflags)
    a('s_mul_i32', 's8', 's9', USZ); a('v_add_u32', v(t), 's8', v(lw))
    return t, lw, U

def role_B2(a, endlabel, ldflags='', stflags=''):
    R = RegAlloc(1, 168)
    t1, lw, U = B2_uload(a, R, ldflags)
    mk = R.mark(); B2_himg(a, R); R.release(mk)
    t = R.alloc(); u = R.alloc()
    a('s_mul_i32', 's9', 's3', 11); a('s_lshr_b32', 's9', 's9', 5)
    a('s_mul_i32', 's10', 's9', 3); a('s_sub_u32', 's10', 's3', 's10')
    a('s_xor_b32', 's8', 's5', 1); a('s_cmp_eq_u32', 's9', 2); a('s_cselect_b32', 's8', 's8', 0); a('s_add_u32', 's10', 's10', 's8')
    a('s_min_u32', 's11', 's10', 1)
    a('s_lshr_b32', 's12', 's10', 1)
    chan_of_lc(a, 's13', 's9')
    Dv = R.alloc()
    a('s_lshl_b32', 's8', 's13', 1); a('v_mov_b32', v(t), 's8')
    a('global_load_ushort', v(Dv), v(t), D_)
    n = R.alloc(); q = R.alloc(); aa = R.alloc(); ba = R.alloc(); ia = R.alloc()
    a('v_and_b32', v(n), 15, 'v0'); a('v_lshrrev_b32', v(q), 4, 'v0')
    a('v_and_b32', v(t), 1, 'v0'); a('v_mul_u32_u24', v(aa), 529*16, v(t))
    a('v_bfe_u32', v(t), 'v0', 1, 1); a('v_mul_u32_u24', v(t), 264*16, v(t)); a('v_add_u32', v(aa), v(aa), v(t))
    a('v_bfe_u32', v(t), 'v0', 2, 2); a('v_lshl_add_u32', v(aa), v(t), 5, v(aa)); a('v_lshl_add_u32', v(aa), v(q), 9, v(aa))
    a('s_mul_i32', 's8', 's9', HSZ); a('s_lshl_b32', 's14', 's12', 11); a('s_add_u32', 's8', 's8', 's14'); a('s_add_u32', 's8', 's8', L_H)
    a('v_add_u32', v(aa), 's8', v(aa))
    a('s_sub_u32', 's14', 's12', 's11'); a('s_lshl_b32', 's14', 's14', 4); a('s_add_u32', 's14', 's14', 31)
    a('s_mul_i32', 's15', 's9', USZ); a('s_add_u32', 's15', 's15', L_U)
    a('v_lshlrev_b32', v(t), 2, v(q)); a('v_sub_u32', v(t), v(t), v(n)); a('v_add_u32', v(t), 's14', v(t))
    a('v_mul_u32_u24', v(ba), 144, v(t)); a('v_add_u32', v(ba), 's15', v(ba))
    a('s_lshl_b32', 's14', 's11', 4); a('s_sub_u32', 's14', 31, 's14')
    a('v_sub_u32', v(t), 's14', v(n)); a('v_mul_u32_u24', v(ia), 144, v(t)); a('v_add_u32', v(ia), 's15', v(ia))
    a('v_lshlrev_b32', v(t), 5, v(q)); a('v_sub_u32', v(ia), v(ia), v(t))
    a('ds_write_b128', v(t1), v(U, 4)); a('ds_write_b128', v(lw), v(U+4, 4), mods=f'offset:{2*USZ}')
    a('v_lshlrev_b32', v(Dv), 16, v(Dv))
    a('s_cmp_eq_u32', 's12', 0); a('s_cselect_b32', 's8', -1, 0); a('v_and_b32', v(Dv), 's8', v(Dv))
    stamp(a, 3)
    subbar(a, 7, 8, t, u, vm=True)
    stamp(a, 4)
    a('s_lshl_b32', 's8', 's5', 3); a('s_add_u32', 's8', 's8', 's3'); a('s_cmp_eq_u32', 's8', 15); a('s_cbranch_scc1', endlabel)
    ACC = R.alloc(16); RA = R.alloc(66); RB = R.alloc(32); msk = R.alloc()
    a('ds_read_b128', v(U, 4), v(ia), mods='offset:96'); a('ds_read_b128', v(U+4, 4), v(ia), mods='offset:112')
    PD = 5
    def rdA(w):
        if w > 33: return
        a('ds_read_b128', v(RA + 4*(w % 16), 4), v(aa), mods=f'offset:{16*w}')
        if w and w % 16 == 0: a('ds_read_b64', v(RA+64, 2), v(aa), mods=f'offset:{16*w}')
    def rdB(tau):
        if tau > 31: return
        a('ds_read_b128', v(RB + 4*(tau % 8), 4), v(ba), mods=f'offset:{144*(tau >> 3) + 16*(tau & 7)}')
    rdA(0); rdA(1)
    for k in range(PD): rdB(k); rdA(k+2)
    a('v_mov_b32', v(msk), 0xffff0000)
    for x in range(16):
        e = 15 - x
        if e & 1: a('v_and_b32', v(ACC+x), v(msk), v(U + (e >> 1)))
        else: a('v_lshlrev_b32', v(ACC+x), 16, v(U + (e >> 1)))
        a('v_mul_f32', v(ACC+x), v(Dv), v(ACC+x))
    stamp(a, 5)
    for tau in range(32):
        for tt in range(4):
            d = (4*tau + 2*tt) % 64
            a('v_mfma_f32_16x16x32_bf16', v(ACC+4*tt, 4), v(RA+d, 4), v(RB + 4*(tau % 8), 4), v(ACC+4*tt, 4))
            if tt == 0: rdB(tau + PD)
            if tt == 2: rdA(tau + PD + 2)
    stamp(a, 6)
    ra = R.alloc()
    a('s_lshl_b32', 's8', 's9', 12); a('s_add_u32', 's8', 's8', L_RED); a('v_lshl_add_u32', v(ra), 'v0', 4, 's8')
    lj = newlabel('Lb2'); lf = newlabel('Lb2')
    a('s_lshl_b32', 's14', 's9', 2); a('s_add_u32', 's14', 's14', L_CNT + 4*8); a('v_mov_b32', v(t), 's14'); a('v_mov_b32', v(u), 1)
    a.settle()
    a('s_cmp_eq_u32', 's12', 0); a('s_cbranch_scc1', lj)
    for tt in range(4): a('ds_write_b128', v(ra), v(ACC+4*tt, 4), mods=f'offset:{1024*tt}')
    a.wait(lgkm=0)
    a('s_mov_b64', 'exec', 1); a('ds_add_u32', v(t), v(u)); a('s_mov_b64', 'exec', -1)
    a('s_branch', endlabel)
    a.label(lj); a.forget()
    a('s_cmp_eq_u32', 's10', 0); a('s_cbranch_scc1', lf)
    lp = newlabel('Lb2')
    a.label(lp)
    a('ds_read_b32', v(u), v(t)); a('v_readfirstlane_b32', 's40', v(u)); a('s_cmp_eq_u32', 's40', 0); a('s_cbranch_scc1', lp)
    for tt in range(4): a('ds_read_b128', v(RB+4*tt, 4), v(ra), mods=f'offset:{1024*tt}')
    for x in range(16): a('v_add_f32', v(ACC+x), v(ACC+x), v(RB+x))
    a.label(lf)
    stamp(a, 7)
    for jj in range(8): a('v_cvt_pk_bf16_f32', v(U+jj), v(ACC+15-2*jj), v(ACC+14-2*jj))
    sa = ra; sr = aa
    a('s_lshl_b32', 's8', 's3', 11); a('s_add_u32', 's8', 's8', L_P1)
    a('v_sub_u32', v(t), 15, v(n)); a('v_lshlrev_b32', v(u), 1, v(q)); a('v_sub_u32', v(u), 6, v(u))
    a('v_xor_b32', v(u), v(t), v(u)); a('v_and_b32', v(u), 7, v(u)); a('v_lshlrev_b32', v(u), 4, v(u))
    a('v_lshl_add_u32', v(sa), v(t), 7, v(u)); a('v_add_u32', v(sa), 's8', v(sa)); a('v_xor_b32', v(u), 16, v(sa))
    a('ds_write_b128', v(sa), v(U, 4)); a('ds_write_b128', v(u), v(U+4, 4))
    a('v_lshrrev_b32', v(t), 3, 'v0'); a('v_xor_b32', v(u), v(t), 'v0'); a('v_and_b32', v(u), 7, v(u)); a('v_lshlrev_b32', v(u), 4, v(u))
    a('v_lshl_add_u32', v(sr), v(t), 7, v(u)); a('v_add_u32', v(sr), 's8', v(sr))
    a('ds_read_b128', v(RB, 4), v(sr)); a('ds_read_b128', v(RB+4, 4), v(sr), mods='offset:1024')
    a('s_lshl_b32', 's8', 's13', 12); a('s_lshl_b32', 's14', 's11', 11); a('s_sub_u32', 's8', 's8', 's14'); a('s_add_u32', 's8', 's8', WS_Z + 2048)
    a('v_lshl_add_u32', v(t), 'v0', 4, 's8')
    a('global_store_dwordx4', v(t), v(RB, 4), WS_, mods=stflags)
    a('global_store_dwordx4', v(t), v(RB+4, 4), WS_, mods=f'offset:1024 {stflags}')
    return R.next
```

```python
import sys
from asmlib import *
import roles
from roles import *

KNAME = "concat_heads__spectral_gfnet__ssm_conv_h3__prompt_kernel"
WS_Z2 = 0x900000
F_A, F_W, F_B = WS_F, WS_F + 128*128, WS_F + 256*128
WS_EP = WS_F + 384*128
C_A1, C_A1D, C_W1, C_W1D, C_A2a, C_A2b, C_A3, C_B1, C_B1D, C_U, C_H, C_RED, C_Q = 0, 1, 2, 3, 4, 5, 6, 7, 8, 9, 10, 12, 16
SPIN = 1 << 15
SC = 'sc1'

def touch(a, pads, first):
    pads = [p for p in pads]
    if not pads: return
    ret = newlabel('Lt'); here = newlabel('Lt')
    a.settle(); a.nopad = True
    a('s_getpc_b64', 's[42:43]')
    a.raw(here + ':')
    a('s_add_u32', 's42', 's42', f'{ret}-{here}'); a.bytes += 4
    a('s_addc_u32', 's43', 's43', 0)
    a('s_mov_b64', 'exec', 0)
    for k, p in enumerate(pads):
        a('s_cmp_eq_u32', 's3', first + k); a.raw(f'    s_cbranch_scc1 {p}'); a.bytes += 4
    a.raw(ret + ':')
    a('s_mov_b64', 'exec', -1)
    a.nopad = False

def get_epoch(a, va, vb):
    pass

def publish(a, cid, n, flag_s, va, vb):
    a('v_mov_b32', v(va), L_CNT + 4*cid); a('v_mov_b32', v(vb), 1)
    a.wait(vm=0, lgkm=0)
    a('s_mov_b64', 'exec', 1)
    a('ds_add_rtn_u32', v(vb), v(va), v(vb))
    a('v_readfirstlane_b32', 's40', v(vb))
    sk = newlabel('Lp')
    a('s_cmp_lg_u32', 's40', n - 1); a('s_cbranch_scc1', sk)
    a('v_mov_b32', v(va), flag_s); a('v_mov_b32', v(vb), 's52')
    a('global_store_dword', v(va), v(vb), WS_, mods=SC)
    a.label(sk)
    a('s_mov_b64', 'exec', -1)

def poll_flags(a, vaddr, vt):
    lp = newlabel('Lf'); dn = newlabel('Lf')
    a('s_mov_b32', 's41', SPIN)
    a.label(lp)
    a('global_load_dword', v(vt), v(vaddr), WS_, mods=SC)
    a('s_sub_u32', 's41', 's41', 1)
    a.wait(vm=0)
    a('v_cmp_ne_u32', 'vcc', 's52', v(vt))
    a('s_cbranch_scc1', dn)
    a('s_cbranch_vccnz', lp)
    a.label(dn)

def poll_tagged(a, loads, regs, vt):
    lp = newlabel('Lg'); dn = newlabel('Lg')
    a('s_mov_b32', 's41', SPIN)
    a.label(lp)
    loads()
    a('s_sub_u32', 's41', 's41', 1)
    a('v_and_b32', v(vt), v(regs[0]), v(regs[1]))
    for k in range(2, len(regs), 2): a('v_bitop3_b32', v(vt), v(vt), v(regs[k]), v(regs[k+1]), mods='bitop3:0x80')
    a('v_and_b32', v(vt), 1, v(vt))
    a('v_cmp_ne_u32', 'vcc', 1, v(vt))
    a('s_cbranch_scc1', dn)
    a('s_cbranch_vccnz', lp)
    a.label(dn)

def R1E(P): return (P('A1') + P('AUX') + P('A3c') + P('B2'))[:12]
def R1O(P): return (P('B1') + P('AUX')[:2] + P('B2') + P('A2'))[:12]
def epoch_ready(a):
    a.wait(lgkm=0); a('s_add_u32', 's52', 's52', 1)

def entry(a, P):
    a.raw(f".globl {KNAME}\n.p2align 8\n.type {KNAME},@function\n{KNAME}:")
    a('s_cmp_ge_u32', 's2', 256); a('s_cbranch_scc1', 'Lexit')
    if STAMPS[0]:
        for i in range(1, 16): a('s_mov_b32', s(64+2*i), 0)
    stamp(a, 0)
    a('s_load_dwordx16', 's[16:31]', 's[0:1]', 0)
    a('s_load_dwordx8', 's[32:39]', 's[0:1]', 64)
    a('v_lshrrev_b32', 'v1', 6, 'v0'); a('v_and_b32', 'v0', 63, 'v0')
    a('v_readfirstlane_b32', 's3', 'v1')
    a('s_and_b32', 's4', 's2', 7); a('s_bfe_u32', 's5', 's2', (1 << 16) | 3); a('s_lshr_b32', 's6', 's2', 4)
    a('s_lshl3_add_u32', 's7', 's6', 's4')
    a('v_lshlrev_b32', 'v1', 2, 'v0'); a('v_mov_b32', 'v2', 0)
    a('ds_write_b32', 'v1', 'v2', mods=f'offset:{L_CNT}')
    a('s_cmp_lg_u32', 's5', 0); a('s_cbranch_scc1', 'LentO')
    touch(a, R1E(P), 0)
    a('s_cmp_ge_u32', 's3', 8); a('s_cbranch_scc1', 'Lbar0')
    R = RegAlloc(1, 168)
    a('s_lshl_b32', 's9', 's3', 7); a('s_add_u32', 's9', 's9', 's7'); a('s_mul_i32', 's10', 's9', 1280)
    vo = row_offsets(a, R, 's10', 1024*1280)
    a('s_mul_i32', 's11', 's3', 3072); a('s_add_u32', 's11', 's11', L_XR); a('s_mov_b32', 'm0', 's11')
    for t in range(3): a('global_load_lds_dwordx4', v(vo[t]), X_, mods=f'offset:{1024*t}')
    a('s_branch', 'Lbar0')
    a.label('LentO')
    touch(a, R1O(P), 0)
    a('s_cmp_ge_u32', 's3', 9); a('s_cbranch_scc1', 'Lbar0')
    R = RegAlloc(1, 168)
    vo = quad_voff(a, R); t = R.alloc()
    a('s_mul_i32', 's10', 's6', 128*1280); a('s_mul_i32', 's8', 's4', 160); a('s_add_u32', 's10', 's10', 's8')
    a('s_sub_u32', 's8', 's10', 4*1280); a('v_add_u32', v(t), 's8', v(vo))
    NB = 2048*1280
    srd(a, 44, 's24', 's25', NB); srd(a, 48, 's26', 's27', NB)
    a('s_mov_b32', 'exec_hi', 0xff)
    a('s_cmp_eq_u32', 's3', 8); a('s_cbranch_scc1', 'LentH')
    a('s_mul_i32', 's11', 's3', 16*1280); a('s_add_u32', 's11', 's11', 's10')
    a('s_mul_i32', 's12', 's3', 2*1296); a('s_add_u32', 's12', 's12', L_KI + 1296)
    for k in range(4):
        a('s_mov_b32', 'm0', 's12')
        a('buffer_load_dwordx4', v(vo), 's[44:47]', 's11', mods='offen lds')
        a('s_add_u32', 'm0', 's12', L_VI - L_KI - 1296)
        a('buffer_load_dwordx4', v(vo), 's[48:51]', 's11', mods='offen lds')
        if k < 3:
            a('s_addk_i32', 's11', 4*1280); a('s_addk_i32', 's12', 640 if k != 1 else 656)
    a('s_branch', 'LentX')
    a.label('LentH')
    a('s_mov_b32', 'm0', L_KI + 640)
    a('buffer_load_dwordx4', v(t), 's[44:47]', 0, mods='offen lds')
    a.label('LentX')
    a('s_mov_b64', 'exec', -1)
    a.label('Lbar0')
    a.wait(lgkm=0)
    a('s_add_u32', 's54', 's38', WS_EP); a('s_addc_u32', 's55', 's39', 0)
    a('s_load_dword', 's52', 's[54:55]', 0)
    stamp(a, 1)
    a('s_barrier')
    a('s_cmp_ge_u32', 's3', 8); a('s_cbranch_scc1', 'Laux')
    a('s_cmp_lg_u32', 's5', 0); a('s_cbranch_scc1', 'LB1')
    a('s_branch', 'LA1')
    a.label('Ltramp')
    a('s_setpc_b64', 's[42:43]')
    a.label('Lexit')
    a('s_endpgm')

def pk_A1(a, P):
    a.label('LA1'); a.pad_begin('A1')
    a.vm = [set()]
    R = RegAlloc(1, 168)
    va = R.alloc(); vb = R.alloc(); t = R.alloc()
    a('v_lshrrev_b32', v(va), 2, 'v0')
    a('v_bfe_u32', v(vb), 'v0', 1, 1); a('v_mul_u32_u24', v(vb), 1408, v(vb))
    a('v_and_b32', v(t), 1, 'v0'); a('v_lshl_add_u32', v(vb), v(t), 3, v(vb)); a('v_add_u32', v(vb), 's11', v(vb))
    tra = d1_addrs(a, R, va, vb)
    ka = R.alloc(); q = R.alloc(); kaf = R.alloc(); qf = R.alloc(); bf = R.alloc()
    a('v_and_b32', v(ka), 15, 'v0'); a('v_lshrrev_b32', v(q), 4, 'v0')
    a('v_cvt_f32_u32', v(kaf), v(ka)); a('v_cvt_f32_u32', v(qf), v(q))
    a('v_and_b32', v(bf), 1, v(q)); a('v_lshlrev_b32', v(bf), 2, v(bf)); a('v_cvt_f32_u32', v(bf), v(bf))
    SEQ = [1, 2, 4, 1, 3, 4, 0, 0]
    Hs = R.alloc(16); Gs = R.alloc(16)
    ang = [R.alloc() for _ in range(4)]; an2 = [R.alloc() for _ in range(4)]; cs = [R.alloc() for _ in range(8)]
    a('v_mul_f32', v(t), 0.5, v(kaf)); a('v_mul_f32', v(t), 0.5, v(t))
    a('v_mul_f32', v(ang[0]), v(t), v(qf))
    for al in range(1, 4): a('v_fmamk_f32', v(ang[al]), v(kaf), fl(al/16), v(ang[0]))
    for tt in range(5):
        src = ang
        if tt:
            for al in range(4): a('v_add_f32', v(an2[al]), fl(tt/5), v(ang[al]))
            src = an2
        for al in range(4): sincos(a, src[al], cs[al], cs[4+al])
        poss = [i for i, x in enumerate(SEQ) if x == tt]
        for h in range(2):
            a('v_cvt_pk_bf16_f32', v(Hs + 2*poss[0] + h), v(cs[2*h]), v(cs[2*h+1]))
            a('v_cvt_pk_bf16_f32', v(Gs + 2*poss[0] + h), '-' + v(cs[4+2*h]), '-' + v(cs[4+2*h+1]))
        for pos in poss[1:]:
            for h in range(2):
                a('v_mov_b32', v(Hs + 2*pos + h), v(Hs + 2*poss[0] + h)); a('v_mov_b32', v(Gs + 2*pos + h), v(Gs + 2*poss[0] + h))
    k1 = k1_regs(a, R, ka)
    TC = R.alloc(12); TS = R.alloc(12)
    for k5 in range(3):
        a('v_mul_f32', v(ang[0]), v(k1[k5]), v(bf))
        for r in range(1, 4): a('v_add_f32', v(ang[r]), v(ang[r-1]), v(k1[k5]))
        for r in range(4): sincos(a, ang[r], TC + 4*k5 + r, TS + 4*k5 + r)
    Mre = R.alloc(4); Mim = R.alloc(4); u2 = R.alloc(); f1f = R.alloc()
    a('v_and_b32', v(u2), 7, 'v0'); a('v_cvt_f32_u32', v(u2), v(u2)); a('v_mul_f32', v(u2), fl(1/8), v(u2))
    a('v_bfe_u32', v(f1f), 'v0', 3, 1)
    a('v_lshrrev_b32', v(t), 5, 'v0'); a('v_lshl_add_u32', v(t), v(t), 10, 's9')
    a('v_mul_u32_u24', v(t), v(t), v(f1f)); a('v_cvt_f32_u32', v(t), v(t)); a('v_mul_f32', v(t), fl(1/2048), v(t))
    a('v_fma_f32', v(ang[0]), v(u2), v(bf), v(t))
    for r in range(1, 4): a('v_add_f32', v(ang[r]), v(ang[r-1]), v(u2))
    for r in range(4): sincos(a, ang[r], cs[r], cs[4+r])
    for r in range(4):
        a('v_cvt_pk_bf16_f32', v(Mre + r), v(cs[r]), v(cs[4+r]))
        a('v_cvt_pk_bf16_f32', v(Mim + r), '-' + v(cs[4+r]), v(cs[r]))
    ea0, ea1 = ei_addrs(a, R, 2624, dup=False)
    tr2 = R.alloc(); go = R.alloc()
    a('v_bfe_u32', v(tr2), 'v0', 2, 2); a('v_mul_u32_u24', v(tr2), 2624, v(tr2))
    a('v_and_b32', v(t), 3, 'v0'); a('v_lshl_add_u32', v(tr2), v(t), 3, v(tr2))
    a('v_lshl_add_u32', v(tr2), v(q), 5, v(tr2))
    a('s_lshl_b32', 's8', 's3', 7); a('s_add_u32', 's8', 's8', L_EI); a('v_add_u32', v(tr2), 's8', v(tr2))
    a('s_mul_i32', 's8', 's7', TBLK); a('s_lshl_b32', 's12', 's3', 10); a('s_add_u32', 's8', 's8', 's12')
    a('v_lshl_add_u32', v(go), 'v0', 4, 's8')
    a('s_bitcmp0_b32', 's3', 0); a('s_cselect_b32', 's13', 0xfffefffe, -1)
    Dr = R.alloc(10)
    epoch_ready(a)
    stamp(a, 2)
    a.wait(vm=0)
    stamp(a, 3)
    for e in (0, 1, 2, 3, 4): a('ds_read_b64_tr_b16', v(Dr + 2*((e + 4) % 5), 2), v(tra[e]))
    P0 = R.alloc(8); A1 = R.alloc(24); PK = R.alloc(12)
    a('v_mfma_f32_16x16x16_bf16', v(P0, 4), v(Dr+8, 2), v(Hs+12, 2), 0)
    a('v_mfma_f32_16x16x16_bf16', v(P0+4, 4), v(Dr+8, 2), v(Gs+12, 2), 0)
    PAIR = {1: (0, 4), 2: (1, 3), 0: (6, 6)}
    for k5 in (1, 2, 0):
        for ri, M in enumerate((Hs, Gs)):
            a('v_mfma_f32_16x16x32_bf16', v(A1+8*k5+4*ri, 4), v(Dr, 4), v(M + 2*PAIR[k5][0], 4), v(P0+4*ri, 4))
        for ri, M in enumerate((Hs, Gs)):
            a('v_mfma_f32_16x16x32_bf16', v(A1+8*k5+4*ri, 4), v(Dr+4, 4), v(M + 2*PAIR[k5][1], 4), v(A1+8*k5+4*ri, 4))
    A2 = Hs
    for k5 in (1, 2, 0):
        for r in range(4):
            re, im, c, s_ = A1+8*k5+r, A1+8*k5+4+r, TC+4*k5+r, TS+4*k5+r
            a('v_mul_f32', v(cs[r]), v(re), v(c)); a('v_mul_f32', v(cs[4+r]), v(im), v(c))
            a('v_fmac_f32', v(cs[r]), v(im), v(s_)); a('v_fma_f32', v(cs[4+r]), '-' + v(re), v(s_), v(cs[4+r]))
            a('v_cvt_pk_bf16_f32', v(PK+4*k5+r), v(cs[r]), v(cs[4+r]))
        a('v_mfma_f32_16x16x32_bf16', v(A2+8*k5, 4), v(Mre, 4), v(PK+4*k5, 4), 0)
        a('v_mfma_f32_16x16x32_bf16', v(A2+8*k5+4, 4), v(Mim, 4), v(PK+4*k5, 4), 0)
    for k5 in (1, 2, 0):
        for r in range(4): a('v_cvt_pk_bf16_f32', v(PK+4*k5+r), v(A2+8*k5+r), v(A2+8*k5+4+r))
        for r in range(4): a('v_and_b32', v(PK+4*k5+r), 's13', v(PK+4*k5+r))
        if k5: a('ds_write_b128', v(ea0), v(PK+4*k5, 4), mods=f'offset:{1024*(k5-1)}')
        else: a('ds_write_b128', v(ea1), v(PK, 4))
    stamp(a, 4)
    subbar(a, C_A1, 8, cs[0], cs[1])
    O = A1
    for it in range(3):
        if it == 2:
            skip = newlabel('La1s'); a('s_cmp_gt_u32', 's3', 4); a('s_cbranch_scc1', skip)
        a('ds_read_b64_tr_b16', v(O+4*it, 2), v(tr2), mods=f'offset:{1024*it}')
        a('ds_read_b64_tr_b16', v(O+4*it+2, 2), v(tr2), mods=f'offset:{1024*it + 4*2624}')
        if it == 1:
            a('global_store_dwordx4', v(go), v(O, 4), WS_, mods=SC)
            a('v_add_u32', v(go), 8192, v(go))
            a('global_store_dwordx4', v(go), v(O+4, 4), WS_, mods=SC)
            a('v_add_u32', v(go), 8192, v(go))
    a('s_cmp_lt_u32', 's3', 4); a('s_cselect_b32', 'exec_hi', -1, 0)
    a('global_store_dwordx4', v(go), v(O+8, 4), WS_, mods=SC)
    a('s_mov_b64', 'exec', -1)
    a.label(skip)
    stamp(a, 5)
    get_epoch(a, cs[0], cs[1])
    a('s_lshl_b32', 's8', 's7', 7); a('s_add_u32', 's8', 's8', F_A)
    publish(a, C_A1D, 8, 's8', cs[0], cs[1])
    stamp(a, 6)
    touch(a, [p for p in P('B2') + P('A3') if p not in R1E(P)][:8], 0)
    a.pad_end()

class A3K: pass
def pk_A3c(a):
    a.pad_begin('A3c')
    K = A3K(); PIT = 2640
    R = RegAlloc(100, 168); T = RegAlloc(1, 100)
    t = T.alloc(); u = T.alloc()
    K.go = R.alloc(); K.go3 = R.alloc(); K.lw = R.alloc()
    a('s_mul_i32', 's8', 's7', TBLK); a('s_lshl_b32', 's12', 's3', 10); a('s_add_u32', 's12', 's8', 's12')
    a('v_lshl_add_u32', v(K.go), 'v0', 4, 's12')
    a('s_add_u32', 's8', 's8', TBLK - 16)
    a('v_add_u32', v(K.go3), 16384, v(K.go)); a('v_min_u32', v(K.go3), 's8', v(K.go3))
    a('v_and_b32', v(t), 1, 'v0'); a('v_mul_u32_u24', v(K.lw), 4*PIT, v(t))
    a('v_lshrrev_b32', v(t), 1, 'v0'); a('v_lshl_add_u32', v(K.lw), v(t), 2, v(K.lw))
    a('s_lshl_b32', 's8', 's3', 7); a('s_add_u32', 's8', 's8', L_EI); a('v_add_u32', v(K.lw), 's8', v(K.lw))
    e0, e1 = ei_addrs(a, T, PIT, dup=True)
    K.ea0 = R.alloc(); K.ea1 = R.alloc(); a('v_mov_b32', v(K.ea0), v(e0)); a('v_mov_b32', v(K.ea1), v(e1))
    a('s_lshl_b32', 's9', 's3', 7); a('s_add_u32', 's9', 's9', 's7'); a('s_mul_i32', 's10', 's9', 2560)
    vo = row_offsets(a, T, 's10', 1024*2560)
    K.vo = [R.alloc() for _ in range(3)]
    for k in range(3): a('v_mov_b32', v(K.vo[k]), v(vo[k]))
    n = T.alloc(); q = T.alloc(); nf = T.alloc(); qf = T.alloc(); bf = T.alloc(); k2f = T.alloc()
    a('v_and_b32', v(n), 15, 'v0'); a('v_lshrrev_b32', v(q), 4, 'v0')
    a('v_cvt_f32_u32', v(nf), v(n)); a('v_cvt_f32_u32', v(qf), v(q))
    a('v_and_b32', v(bf), 7, 'v0'); a('v_cvt_f32_u32', v(bf), v(bf))
    ang = [T.alloc() for _ in range(4)]; an2 = [T.alloc() for _ in range(4)]; cs = [T.alloc() for _ in range(8)]
    K.Mre = R.alloc(4); K.Mim = R.alloc(4); u2 = T.alloc()
    a('v_mul_f32', v(u2), fl(1/8), v(bf))
    a('v_and_b32', v(k2f), 1, v(q)); a('v_lshlrev_b32', v(k2f), 2, v(k2f)); a('v_cvt_f32_u32', v(k2f), v(k2f))
    a('v_bfe_u32', v(t), 'v0', 3, 1); a('v_lshl_add_u32', v(t), v(t), 10, 's9')
    a('v_lshrrev_b32', v(u), 5, 'v0'); a('v_mul_u32_u24', v(t), v(t), v(u))
    a('v_cvt_f32_u32', v(t), v(t)); a('v_mul_f32', v(t), fl(1/2048), v(t))
    a('v_fma_f32', v(ang[0]), v(u2), v(k2f), v(t))
    for r in range(1, 4): a('v_add_f32', v(ang[r]), v(ang[r-1]), v(u2))
    for r in range(4): sincos(a, ang[r], cs[r], cs[4+r])
    for r in range(4):
        a('v_cvt_pk_bf16_f32', v(K.Mre+r), v(cs[r]), '-' + v(cs[4+r]))
        a('v_cvt_pk_bf16_f32', v(K.Mim+r), v(cs[4+r]), v(cs[r]))
    K.TC = R.alloc(12); K.TS = R.alloc(12); kar = T.alloc(); wt = T.alloc()
    NRM = 1.0/(2048*640)
    for r in range(4):
        mk = T.mark()
        a('v_lshl_add_u32', v(kar), v(q), 2, r)
        k1 = k1_regs(a, T, kar)
        for k5 in range(3):
            a('v_mul_f32', v(k1[k5]), v(k1[k5]), v(bf))
            sincos(a, k1[k5], K.TC+4*k5+r, K.TS+4*k5+r)
        a('v_mov_b32', v(wt), fl(2*NRM))
        for k5 in (1, 2):
            a('v_mul_f32', v(K.TC+4*k5+r), v(wt), v(K.TC+4*k5+r)); a('v_mul_f32', v(K.TS+4*k5+r), v(wt), v(K.TS+4*k5+r))
        a('v_cmp_gt_u32', 'vcc', 9, v(kar)); a('v_cndmask_b32', v(wt), 0, v(wt), 'vcc')
        if r == 0:
            a('v_and_b32', v(t), 7, v(kar)); a('v_cmp_eq_u32', 'vcc', 0, v(t))
            a('v_mov_b32', v(t), fl(NRM)); a('v_cndmask_b32', v(wt), v(wt), v(t), 'vcc')
        a('v_mul_f32', v(K.TC+r), v(wt), v(K.TC+r)); a('v_mul_f32', v(K.TS+r), v(wt), v(K.TS+r))
        T.release(mk)
    K.F = R.alloc(20)
    a('v_mul_f32', v(t), 0.5, v(nf)); a('v_mul_f32', v(t), 0.5, v(t))
    a('v_mul_f32', v(ang[0]), v(t), v(qf))
    for r in range(1, 4): a('v_fmamk_f32', v(ang[r]), v(nf), fl(r/16), v(ang[0]))
    for tt in range(5):
        src = ang
        if tt:
            for r in range(4): a('v_add_f32', v(an2[r]), fl(tt/5), v(ang[r]))
            src = an2
        for r in range(4): sincos(a, src[r], cs[r], cs[4+r])
        for r in range(4): a('v_cvt_pk_bf16_f32', v(K.F+4*tt+r), v(cs[r]), '-' + v(cs[4+r]))
    vb = T.alloc(); K.rd = R.alloc()
    a('s_mul_i32', 's11', 's3', 3072); a('s_add_u32', 's11', 's11', L_XR)
    a('v_lshrrev_b32', v(vb), 5, 'v0'); a('v_mul_u32_u24', v(vb), 1408, v(vb))
    a('v_and_b32', v(t), 1, v(q)); a('v_lshl_add_u32', v(vb), v(t), 3, v(vb)); a('v_add_u32', v(vb), 's11', v(vb))
    wa = d1_addrs(a, T, n, vb)
    K.wa = [R.alloc() for _ in range(5)]
    for k in range(5): a('v_mov_b32', v(K.wa[k]), v(wa[k]))
    a('v_lshl_add_u32', v(K.rd), 'v0', 4, 's11')
    a.pad_end()
    return K

def pk_A3(a, K):
    a.label('LA3'); a.pad_begin('A3')
    PIT = 2640
    R = RegAlloc(1, 100)
    t = R.alloc(); u = R.alloc(); g2 = R.alloc(); IN = R.alloc(12); cs = [R.alloc() for _ in range(8)]
    a('v_add_u32', v(g2), 8192, v(K.go))
    def loads():
        a('global_load_dwordx4', v(IN, 4), v(K.go), WS_, mods=SC)
        a('global_load_dwordx4', v(IN+4, 4), v(g2), WS_, mods=SC)
        a('global_load_dwordx4', v(IN+8, 4), v(K.go3), WS_, mods=SC)
    stamp(a, 11)
    a.wait(vm=0)
    poll_tagged(a, loads, list(range(IN, IN+12)), t)
    stamp(a, 12)
    for it in range(3):
        if it == 2:
            skip = newlabel('La3s'); a('s_cmp_gt_u32', 's3', 4); a('s_cbranch_scc1', skip)
            a('s_cmp_lt_u32', 's3', 4); a('s_cselect_b32', 'exec_hi', -1, 0)
        for x in range(4): a('ds_write_b32', v(K.lw), v(IN+4*it+x), mods=f'offset:{1024*it + PIT*x}')
    a('s_mov_b64', 'exec', -1)
    a.label(skip)
    subbar(a, C_A3, 8, t, u)
    stamp(a, 13)
    ske = newlabel('Lep')
    a('s_or_b32', 's8', 's2', 's3'); a('s_cmp_lg_u32', 's8', 0); a('s_cbranch_scc1', ske)
    a('v_mov_b32', v(t), WS_EP); a('v_mov_b32', v(u), 's52'); a('s_mov_b64', 'exec', 1)
    a('global_store_dword', v(t), v(u), WS_); a('s_mov_b64', 'exec', -1)
    a.label(ske)
    Z = IN; A1 = R.alloc(24); PK = Z; Y = R.alloc(20); P0 = R.alloc(4)
    a('ds_read_b128', v(Z, 4), v(K.ea1))
    a('ds_read_b128', v(Z+4, 4), v(K.ea0)); a('ds_read_b128', v(Z+8, 4), v(K.ea0), mods='offset:1024')
    MF = 'v_mfma_f32_16x16x32_bf16'
    for k5 in range(3):
        a(MF, v(A1+8*k5, 4), v(Z+4*k5, 4), v(K.Mre, 4), 0); a(MF, v(A1+8*k5+4, 4), v(Z+4*k5, 4), v(K.Mim, 4), 0)
    for k5 in range(3):
        for r in range(4):
            re, im, c, s_ = A1+8*k5+r, A1+8*k5+4+r, K.TC+4*k5+r, K.TS+4*k5+r
            a('v_mul_f32', v(cs[r]), v(re), v(c)); a('v_mul_f32', v(cs[4+r]), v(im), v(c))
            a('v_fma_f32', v(cs[r]), '-' + v(im), v(s_), v(cs[r])); a('v_fmac_f32', v(cs[4+r]), v(re), v(s_))
            a('v_cvt_pk_bf16_f32', v(PK+4*k5+r), v(cs[r]), v(cs[4+r]))
        if k5 == 0: a(MF, v(P0, 4), v(PK, 4), v(K.F, 4), 0)
        else:
            for e in range(5):
                a(MF, v(Y+4*e, 4), v(PK+4*k5, 4), v(K.F+4*((e*k5) % 5), 4), v(P0, 4) if k5 == 1 else v(Y+4*e, 4))
    for e in range(5):
        a('v_cvt_pk_bf16_f32', v(A1+2*e), v(Y+4*e), v(Y+4*e+1)); a('v_cvt_pk_bf16_f32', v(A1+2*e+1), v(Y+4*e+2), v(Y+4*e+3))
        a('ds_write_b64', v(K.wa[e]), v(A1+2*e, 2))
    for k in range(3): a('ds_read_b128', v(Z+4*k, 4), v(K.rd), mods=f'offset:{1024*k}')
    a('global_store_dwordx4', v(K.vo[0]), v(Z, 4), OUT_)
    a('s_mov_b32', 'exec_lo', 0xff00ffff)
    a('global_store_dwordx4', v(K.vo[1]), v(Z+4, 4), OUT_, mods='offset:1024')
    a('s_mov_b32', 'exec_lo', -1); a('s_mov_b32', 'exec_hi', 0xff)
    a('global_store_dwordx4', v(K.vo[2]), v(Z+8, 4), OUT_, mods='offset:2048')
    a('s_mov_b64', 'exec', -1)
    stamp(a, 14)
    a.pad_end()

def z_addrs(a, R, uo, pr):
    za = [R.alloc(), R.alloc()]; t = R.alloc(); u = R.alloc(); w = R.alloc()
    a('v_and_b32', v(w), 2047, v(uo))
    a('s_lshl_b32', 's8', 's4', 15); a('s_add_u32', 's8', 's8', WS_Z2); a('v_add_u32', v(w), 's8', v(w))
    a('s_cmp_lt_u32', 's6', 8); a('s_cselect_b32', 's9', 2, 7)
    for ch in range(2):
        a('v_lshl_add_u32', v(t), v(pr), 1, ch)
        a('v_mul_u32_u24', v(u), 205, v(t)); a('v_lshrrev_b32', v(u), 10, v(u))
        a('v_mul_u32_u24', v(za[ch]), 5, v(u)); a('v_sub_u32', v(t), v(t), v(za[ch]))
        a('v_cmp_eq_u32', 'vcc', 's9', v(t))
        a('v_lshl_add_u32', v(u), v(u), 11, v(w))
        a('v_add_u32', v(za[ch]), 4096*ch, v(uo))
        a('v_cndmask_b32', v(za[ch]), v(za[ch]), v(u), 'vcc')
    return za
for _c in range(80): assert (_c*205) >> 10 == _c // 5

def pk_B1(a, P):
    a.label('LB1'); a.pad_begin('B1')
    a.vm = [set()]
    R = RegAlloc(1, 168)
    t = R.alloc(); u = R.alloc()
    lb, uo, pr, od = b13_lane(a, R, WS_U)
    CF = R.alloc(4); C = R.alloc(8)
    a('s_mul_i32', 's8', 's4', 640); a('v_lshl_add_u32', v(t), v(pr), 4, 's8')
    a('global_load_dwordx4', v(CF, 4), v(t), SK_)
    za = z_addrs(a, R, uo, pr)
    Zr = R.alloc(4)
    for k in range(4): a('v_mov_b32', v(Zr+k), 0)
    for ch in range(2):
        sk = newlabel('Lz')
        a('v_cmp_le_u32', 'vcc', WS_Z2, v(za[ch])); a('s_and_saveexec_b64', 's[56:57]', 'vcc'); a.nopad = True
        a('s_cbranch_execz', sk)
        a('global_store_dwordx4', v(za[ch]), v(Zr, 4), WS_, mods=SC)
        a.label(sk); a('s_mov_b64', 'exec', -1); a.nopad = False
    msk = R.alloc(); a('v_mov_b32', v(msk), 0xffff0000)
    epoch_ready(a)
    stamp(a, 2)
    return R, t, u, lb, uo, pr, od, CF, C, msk

def pk_B1b(a, P, st):
    R, t, u, lb, uo, pr, od, CF, C, msk = st
    for ch in range(2):
        for j in range(4):
            src = CF + 2*ch + (j >> 1)
            if j & 1: a('v_and_b32', v(C+4*ch+j), v(msk), v(src))
            else: a('v_lshlrev_b32', v(C+4*ch+j), 16, v(src))
    subbar(a, C_B1, 10, t, u, vm=True)
    stamp(a, 3)
    Kd = R.alloc(11); Vd = R.alloc(8); Kf = [R.alloc(11), R.alloc(11)]; T = R.alloc(4); O = R.alloc(8)
    for i in range(11): a('ds_read_b32', v(Kd+i), v(lb), mods=f'offset:{(800 + 160*i if i < 3 else 1296 + 160*(i-3))}')
    for i in range(8): a('ds_read_b32', v(Vd+i), v(lb), mods=f'offset:{L_VI - L_KI + 160*i}')
    def unp(i):
        a('v_lshlrev_b32', v(Kf[0]+i), 16, v(Kd+i)); a('v_and_b32', v(Kf[1]+i), v(msk), v(Kd+i))
    for i in range(3): unp(i)
    res = R.alloc(4)
    for i in range(8):
        unp(i+3)
        for ch in range(2):
            acc = T + ch; dst = res + 2*ch + (i & 1)
            a('v_mul_f32', v(acc), v(Kf[ch]+i), v(C+4*ch+3))
            for j in (2, 1, 0): a('v_fmac_f32', v(acc), v(Kf[ch]+i+3-j), v(C+4*ch+j))
            if ch: a('v_and_b32', v(T+2+ch), v(msk), v(Vd+i))
            else: a('v_lshlrev_b32', v(T+2+ch), 16, v(Vd+i))
            a('v_mul_f32', v(dst), v(acc), v(T+2+ch))
        if i & 1:
            for ch in range(2):
                d = O+4*ch+3-(i >> 1)
                a('v_cvt_pk_bf16_f32', v(d), v(res+2*ch+1), v(res+2*ch)); a('v_and_b32', v(d), -2, v(d))
    stamp(a, 4)
    a('global_store_dwordx4', v(uo), v(O, 4), WS_, mods=SC)
    a('v_add_u32', v(uo), 4096, v(uo))
    a('global_store_dwordx4', v(uo), v(O+4, 4), WS_, mods=SC)
    stamp(a, 5)
    get_epoch(a, t, u)
    a('s_lshl_b32', 's8', 's4', 4); a('s_add_u32', 's8', 's8', 's6'); a('s_lshl_b32', 's8', 's8', 7); a('s_add_u32', 's8', 's8', F_B)
    publish(a, C_B1D, 10, 's8', t, u)
    stamp(a, 6)
    a('s_cmp_ge_u32', 's3', 8); a('s_cbranch_scc1', 'LauxH')
    await_cnt(a, C_B1D, 10, t, u)
    srd(a, 44, 's22', 's23', 2048*1280)
    vo = quad_voff(a, R)
    a('s_mul_i32', 's10', 's6', 128*1280); a('s_mul_i32', 's8', 's4', 160); a('s_add_u32', 's10', 's10', 's8')
    a('s_mov_b32', 'exec_hi', 0xff)
    tile_dma(a, vo, 44, L_VI)
    a('s_mov_b64', 'exec', -1)
    touch(a, [p for p in P('B2') + P('B3') if p not in R1O(P)][:8], 0)
    for r_ in (100, 101, 105, 106, 107): a('v_mov_b32', v(r_), 0)
    a.pad_end()
    a('s_branch', 'LB2')

def pk_B3(a):
    a.label('LB3'); a.pad_begin('B3')
    R = RegAlloc(1, 168)
    t = R.alloc(); u = R.alloc()
    lb, uo, pr, od = b13_lane(a, R, WS_U)
    za = z_addrs(a, R, uo, pr)
    Z = R.alloc(8); oo = R.alloc(); msk = R.alloc(); a('v_mov_b32', v(msk), 0xffff0000)
    a('s_mul_i32', 's8', 's6', 128*2560); a('s_mul_i32', 's9', 's4', 160); a('s_add_u32', 's8', 's8', 's9'); a('s_add_u32', 's8', 's8', 1280)
    a('v_mul_u32_u24', v(oo), 8*2560, v(od)); a('v_lshl_add_u32', v(oo), v(pr), 2, v(oo)); a('v_add_u32', v(oo), 's8', v(oo))
    await_cnt(a, C_U, 8, t, u)
    Qd = R.alloc(8); Qf = R.alloc(16); T = R.alloc(4); O = R.alloc(8)
    for i in range(8): a('ds_read_b32', v(Qd+i), v(lb), mods=f'offset:{L_VI - L_KI + 160*i}')
    for i in range(8):
        a('v_lshlrev_b32', v(Qf+2*i), 16, v(Qd+i)); a('v_and_b32', v(Qf+2*i+1), v(msk), v(Qd+i))
    def loads():
        for ch in range(2): a('global_load_dwordx4', v(Z+4*ch, 4), v(za[ch]), WS_, mods=SC)
    stamp(a, 11)
    a.wait(vm=0)
    poll_tagged(a, loads, list(range(Z, Z+8)), t)
    stamp(a, 12)
    for i in range(8):
        for ch in range(2):
            src = Z + 4*ch + 3 - (i >> 1)
            if i & 1: a('v_lshlrev_b32', v(T+ch), 16, v(src))
            else: a('v_and_b32', v(T+ch), v(msk), v(src))
            a('v_mul_f32', v(T+ch), v(T+ch), v(Qf+2*i+ch))
        a('v_cvt_pk_bf16_f32', v(O+i), v(T), v(T+1))
        if i & 1:
            a('global_store_dword', v(oo), v(O+i-1), OUT_)
            a('global_store_dword', v(oo), v(O+i), OUT_, mods='offset:2560')
            if i < 7: a('v_add_u32', v(oo), 5120, v(oo))
    stamp(a, 14)
    a.pad_end()

def pk_B2(a):
    a.label('LB2'); a.pad_begin('B2')
    R = RegAlloc(1, 100)
    t = R.alloc(); u = R.alloc(); lw = R.alloc(); lw1 = R.alloc(); U = R.alloc(8); go = R.alloc(); go2 = R.alloc(); fa = R.alloc()
    a('s_lshr_b32', 's9', 's3', 2); a('s_and_b32', 's10', 's3', 3)
    a('v_lshrrev_b32', v(t), 3, 'v0'); a('v_lshlrev_b32', v(t), 4, v(t)); a('v_lshl_add_u32', v(lw), 'v0', 4, v(t))
    a('s_mul_i32', 's11', 's10', 8*144); a('s_add_u32', 's11', 's11', L_U); a('v_add_u32', v(lw), 's11', v(lw))
    a('s_lshl_b32', 's12', 's10', 10); a('s_add_u32', 's12', 's12', WS_U)
    chan_of_lc(a, 's8', 's9'); a('s_lshl_b32', 's8', 's8', 12); a('s_add_u32', 's8', 's8', 's12')
    a('v_lshl_add_u32', v(go), 'v0', 4, 's8')
    chan_of_lc(a, 's8', 2); a('s_lshl_b32', 's8', 's8', 12); a('s_add_u32', 's8', 's8', 's12')
    a('v_lshl_add_u32', v(go2), 'v0', 4, 's8')
    a('s_mul_i32', 's8', 's9', USZ); a('v_add_u32', v(lw1), 's8', v(lw))
    a('s_lshl_b32', 's8', 's4', 4); a('s_add_u32', 's8', 's8', 15); a('s_lshl_b32', 's14', 's10', 2); a('s_sub_u32', 's8', 's8', 's14')
    a('v_and_b32', v(t), 3, 'v0'); a('v_sub_u32', v(t), 's8', v(t)); a('v_lshlrev_b32', v(fa), 7, v(t)); a('v_add_u32', v(fa), F_B, v(fa))
    a('s_lshl_b32', 's8', 's5', 1); a('s_cmp_ge_u32', 's3', 's8'); a('s_cselect_b32', 's53', 1, 0)
    a('s_cmp_lt_u32', 's3', 4); a('s_cselect_b32', 's53', 's53', 0)
    a('s_mul_i32', 's9', 's3', 11); a('s_lshr_b32', 's9', 's9', 5)
    a('s_mul_i32', 's10', 's9', 3); a('s_sub_u32', 's10', 's3', 's10')
    a('s_xor_b32', 's8', 's5', 1); a('s_cmp_eq_u32', 's9', 2); a('s_cselect_b32', 's8', 's8', 0); a('s_add_u32', 's10', 's10', 's8')
    a('s_min_u32', 's11', 's10', 1); a('s_lshr_b32', 's12', 's10', 1)
    chan_of_lc(a, 's13', 's9')
    Dv = R.alloc()
    a('s_lshl_b32', 's8', 's13', 1); a('v_mov_b32', v(t), 's8')
    a('global_load_ushort', v(Dv), v(t), D_)
    n = R.alloc(); q = R.alloc(); aa = R.alloc(); ba = R.alloc(); ia = R.alloc()
    a('v_and_b32', v(n), 15, 'v0'); a('v_lshrrev_b32', v(q), 4, 'v0')
    a('v_and_b32', v(t), 1, 'v0'); a('v_mul_u32_u24', v(aa), 529*16, v(t))
    a('v_bfe_u32', v(t), 'v0', 1, 1); a('v_mul_u32_u24', v(t), 264*16, v(t)); a('v_add_u32', v(aa), v(aa), v(t))
    a('v_bfe_u32', v(t), 'v0', 2, 2); a('v_lshl_add_u32', v(aa), v(t), 5, v(aa)); a('v_lshl_add_u32', v(aa), v(q), 9, v(aa))
    a('s_mul_i32', 's8', 's9', HSZ); a('s_lshl_b32', 's14', 's12', 11); a('s_add_u32', 's8', 's8', 's14'); a('s_add_u32', 's8', 's8', L_H)
    a('v_add_u32', v(aa), 's8', v(aa))
    a('s_sub_u32', 's14', 's12', 's11'); a('s_lshl_b32', 's14', 's14', 4); a('s_add_u32', 's14', 's14', 31)
    a('s_mul_i32', 's15', 's9', USZ); a('s_add_u32', 's15', 's15', L_U)
    a('v_lshlrev_b32', v(t), 2, v(q)); a('v_sub_u32', v(t), v(t), v(n)); a('v_add_u32', v(t), 's14', v(t))
    a('v_mul_u32_u24', v(ba), 144, v(t)); a('v_add_u32', v(ba), 's15', v(ba))
    a('s_lshl_b32', 's14', 's11', 4); a('s_sub_u32', 's14', 31, 's14')
    a('v_sub_u32', v(t), 's14', v(n)); a('v_mul_u32_u24', v(ia), 144, v(t)); a('v_add_u32', v(ia), 's15', v(ia))
    a('v_lshlrev_b32', v(t), 5, v(q)); a('v_sub_u32', v(ia), v(ia), v(t))
    a('v_lshlrev_b32', v(Dv), 16, v(Dv))
    a('s_cmp_eq_u32', 's12', 0); a('s_cselect_b32', 's8', -1, 0); a('v_and_b32', v(Dv), 's8', v(Dv))
    ACC = R.alloc(16); NW = 8; RA = R.alloc(4*NW + 2); NBR = 6; RB = R.alloc(4*NBR); msk = R.alloc()
    a('v_mov_b32', v(msk), 0xffff0000)
    await_cnt(a, C_H, 4, t, u)
    PD = 4
    def rdA(w):
        if w > 33: return
        a('ds_read_b128', v(RA + 4*(w % NW), 4), v(aa), mods=f'offset:{16*w}')
        if w and w % NW == 0: a('ds_read_b64', v(RA+4*NW, 2), v(aa), mods=f'offset:{16*w}')
    def rdB(tau):
        if tau > 31: return
        a('ds_read_b128', v(RB + 4*(tau % NBR), 4), v(ba), mods=f'offset:{144*(tau >> 3) + 16*(tau & 7)}')
    for w in range(PD + 2): rdA(w)
    stamp(a, 7)
    poll_flags(a, fa, t)
    a('global_load_dwordx4', v(U, 4), v(go), WS_, mods=SC)
    sk = newlabel('Lu')
    a('s_cmp_eq_u32', 's53', 0); a('s_cbranch_scc1', sk)
    a('global_load_dwordx4', v(U+4, 4), v(go2), WS_, mods=SC)
    a('ds_write_b128', v(lw), v(U+4, 4), mods=f'offset:{2*USZ}')
    a.label(sk)
    a('ds_write_b128', v(lw1), v(U, 4))
    stamp(a, 8)
    subbar(a, C_U, 8, t, u, vm=True)
    a('s_lshl_b32', 's8', 's5', 3); a('s_add_u32', 's8', 's8', 's3'); a('s_cmp_eq_u32', 's8', 15); a('s_cbranch_scc1', 'LB2end')
    a('ds_read_b128', v(U, 4), v(ia), mods='offset:96'); a('ds_read_b128', v(U+4, 4), v(ia), mods='offset:112')
    for k in range(PD): rdB(k)
    for x in range(16):
        e = 15 - x
        if e & 1: a('v_and_b32', v(ACC+x), v(msk), v(U + (e >> 1)))
        else: a('v_lshlrev_b32', v(ACC+x), 16, v(U + (e >> 1)))
        a('v_mul_f32', v(ACC+x), v(Dv), v(ACC+x))
    stamp(a, 9)
    for tau in range(32):
        for tt in range(4):
            d = (4*tau + 2*tt) % (4*NW)
            a('v_mfma_f32_16x16x32_bf16', v(ACC+4*tt, 4), v(RA+d, 4), v(RB + 4*(tau % NBR), 4), v(ACC+4*tt, 4))
            if tt == 0: rdB(tau + PD)
            if tt == 2: rdA(tau + PD + 2)
    stamp(a, 10)
    ra = lw
    a('s_lshl_b32', 's8', 's9', 12); a('s_add_u32', 's8', 's8', L_RED); a('v_lshl_add_u32', v(ra), 'v0', 4, 's8')
    lj = newlabel('Lb2'); lf = newlabel('Lb2')
    a('s_lshl_b32', 's14', 's9', 2); a('s_add_u32', 's14', 's14', L_CNT + 4*C_RED); a('v_mov_b32', v(t), 's14'); a('v_mov_b32', v(u), 1)
    a('s_cmp_eq_u32', 's12', 0); a('s_cbranch_scc1', lj)
    for tt in range(4): a('ds_write_b128', v(ra), v(ACC+4*tt, 4), mods=f'offset:{1024*tt}')
    a.wait(lgkm=0)
    a('s_mov_b64', 'exec', 1); a('ds_add_u32', v(t), v(u)); a('s_mov_b64', 'exec', -1)
    a('s_branch', 'LB2end')
    a.label(lj)
    a('s_cmp_eq_u32', 's10', 0); a('s_cbranch_scc1', lf)
    lp = newlabel('Lb2'); a.label(lp)
    a('ds_read_b32', v(u), v(t)); a('v_readfirstlane_b32', 's40', v(u)); a('s_cmp_eq_u32', 's40', 0); a('s_cbranch_scc1', lp)
    for tt in range(4): a('ds_read_b128', v(RB+4*tt, 4), v(ra), mods=f'offset:{1024*tt}')
    for x in range(16): a('v_add_f32', v(ACC+x), v(ACC+x), v(RB+x))
    a.label(lf)
    for jj in range(8):
        a('v_cvt_pk_bf16_f32', v(U+jj), v(ACC+15-2*jj), v(ACC+14-2*jj)); a('v_or_b32', v(U+jj), 1, v(U+jj))
    sa = ra; sr = aa
    a('s_lshl1_add_u32', 's8', 's9', 's11'); a('s_min_u32', 's8', 's8', 4); a('s_lshl_b32', 's8', 's8', 11); a('s_add_u32', 's8', 's8', L_P1)
    a('v_sub_u32', v(t), 15, v(n)); a('v_lshlrev_b32', v(u), 1, v(q)); a('v_sub_u32', v(u), 6, v(u))
    a('v_xor_b32', v(u), v(t), v(u)); a('v_and_b32', v(u), 7, v(u)); a('v_lshlrev_b32', v(u), 4, v(u))
    a('v_lshl_add_u32', v(sa), v(t), 7, v(u)); a('v_add_u32', v(sa), 's8', v(sa)); a('v_xor_b32', v(u), 16, v(sa))
    a('ds_write_b128', v(sa), v(U, 4)); a('ds_write_b128', v(u), v(U+4, 4))
    a('v_lshrrev_b32', v(t), 3, 'v0'); a('v_xor_b32', v(u), v(t), 'v0'); a('v_and_b32', v(u), 7, v(u)); a('v_lshlrev_b32', v(u), 4, v(u))
    a('v_lshl_add_u32', v(sr), v(t), 7, v(u)); a('v_add_u32', v(sr), 's8', v(sr))
    a('ds_read_b128', v(RB, 4), v(sr)); a('ds_read_b128', v(RB+4, 4), v(sr), mods='offset:1024')
    a('s_lshl_b32', 's8', 's13', 12); a('s_lshl_b32', 's14', 's11', 11); a('s_sub_u32', 's8', 's8', 's14'); a('s_add_u32', 's8', 's8', WS_U + 2048)
    a('s_lshl_b32', 's14', 's4', 4); a('s_add_u32', 's14', 's14', 's6'); a('s_lshl_b32', 's14', 's14', 11); a('s_add_u32', 's14', 's14', WS_Z2)
    a('s_lshl_b32', 's15', 's9', 2); a('s_add_u32', 's15', 's15', 's10'); a('s_cmp_eq_u32', 's15', 8); a('s_cselect_b32', 's8', 's14', 's8')
    a('v_lshl_add_u32', v(t), 'v0', 4, 's8')
    a('global_store_dwordx4', v(t), v(RB, 4), WS_, mods=SC)
    a('global_store_dwordx4', v(t), v(RB+4, 4), WS_, mods=f'offset:1024 {SC}')
    a.label('LB2end')
    a.pad_end()
    a('s_cmp_lg_u32', 's5', 0); a('s_cbranch_scc1', 'LB3')
    return R.next

def h_dma(a, R):
    vo = R.alloc()
    a('s_sub_u32', 's9', 's3', 8)
    a('s_lshl_b32', 's8', 's9', 1); a('s_add_u32', 's8', 's8', 2); a('v_lshl_add_u32', v(vo), 'v0', 4, 's8')
    a('s_and_b32', 's12', 's9', 1); a('s_mul_i32', 's12', 's12', 529*16); a('s_lshr_b32', 's13', 's9', 1); a('s_mul_i32', 's13', 's13', 264*16)
    a('s_add_u32', 's12', 's12', 's13'); a('s_add_u32', 's12', 's12', L_H)
    a('s_mov_b32', 's46', 4096); a('s_mov_b32', 's47', 0x20000)
    for lc in range(3):
        chan_of_lc(a, 's8', lc); a('s_lshl_b32', 's8', 's8', 12)
        a('s_load_dwordx2', s(56+2*lc, 2), H_, 's8')
        a('s_add_u32', 's44', 's30', 's8'); a('s_addc_u32', 's45', 's31', 0); a('s_and_b32', 's45', 's45', 0xffff)
        a('s_add_u32', 'm0', 's12', lc*HSZ + 128)
        for b in range(4): a('buffer_load_dwordx4', v(vo), 's[44:47]', 0, mods=f'offen offset:{1024*b} lds')

def h_head(a, R):
    Hd = R.alloc(4); t = R.alloc(); u = R.alloc()
    for k in range(4): a('v_mov_b32', v(Hd+k), 0)
    sk = newlabel('Lh')
    a('s_cmp_eq_u32', 's9', 3); a('s_cbranch_scc1', sk)
    a('s_mul_i32', 's8', 's9', USZ); a('s_add_u32', 's8', 's8', L_U + 32*144)
    a('v_lshl_add_u32', v(u), 'v0', 4, 's8')
    a('ds_write_b128', v(u), v(Hd, 4)); a('ds_write_b128', v(u), v(Hd, 4), mods='offset:1024')
    a('s_mov_b64', 'exec', 0x7f); a('ds_write_b128', v(u), v(Hd, 4), mods='offset:2048'); a('s_mov_b64', 'exec', -1)
    a.label(sk)
    a('s_lshl_b32', 's8', 's9', 4); a('s_sub_u32', 's8', 48, 's8')
    a.wait(lgkm=0)
    for lc in range(3):
        a('s_lshl_b64', s(56+2*lc, 2), s(56+2*lc, 2), 's8')
        a('v_writelane_b32', v(Hd+2), s(56+2*lc), 8*lc + 7); a('v_writelane_b32', v(Hd+3), s(57+2*lc), 8*lc + 7)
    a('v_lshrrev_b32', v(t), 3, 'v0'); a('v_mul_u32_u24', v(t), HSZ - 128, v(t)); a('v_lshl_add_u32', v(t), 'v0', 4, v(t)); a('v_add_u32', v(t), 's12', v(t))
    a('s_mov_b64', 'exec', 0xffffff)
    a('ds_write_b128', v(t), v(Hd, 4))
    a('s_mov_b64', 'exec', -1)

def pk_aux(a, P):
    a.label('Laux'); a.pad_begin('AUX')
    a.vm = [set()]
    R = RegAlloc(1, 168)
    a('s_cmp_eq_u32', 's5', 0); a('s_cbranch_scc1', 'LauxE')
    a('s_cmp_lt_u32', 's3', 10); a('s_cbranch_scc1', 'LB1')
    epoch_ready(a)
    a.label('LauxH')
    R = RegAlloc(1, 168)
    h_dma(a, R); h_head(a, R)
    t = R.alloc(); u = R.alloc()
    arrive(a, C_H, t, u, vm=True)
    a('s_mov_b32', 's9', 's7')
    a('s_branch', 'LA2')
    a.label('LauxE')
    R = RegAlloc(1, 168)
    WB = 2048*321*2
    srd(a, 44, 's18', 's19', WB); srd(a, 48, 's20', 's21', WB)
    a('s_sub_u32', 's9', 's3', 8)
    vo = R.alloc(); t = R.alloc(); u = R.alloc()
    a('v_lshlrev_b32', v(vo), 4, 'v0')
    a('s_mul_i32', 's10', 's7', 1284)
    a('s_mul_i32', 's11', 's9', 2*256*642); a('s_add_u32', 's10', 's10', 's11')
    a('s_mul_i32', 's11', 's9', 2*1296); a('s_add_u32', 's11', 's11', L_A2 + 1296)
    def slot(soff, m0v_s, add):
        for pl, sd in enumerate((44, 48)):
            a('s_add_u32', 'm0', m0v_s, add + pl*11664)
            a('buffer_load_dwordx4', v(vo), s(sd, 4), soff, mods='offen lds')
            a('s_mov_b64', 'exec', 0x1ffff)
            a('buffer_load_dwordx4', v(vo), s(sd, 4), soff, mods='offen offset:1024 lds')
            a('s_mov_b64', 'exec', -1)
    slot('s10', 's11', 0)
    a('s_add_u32', 's10', 's10', 256*642)
    slot('s10', 's11', 1296)
    sk = newlabel('Lw1s')
    a('s_cmp_lg_u32', 's7', 127); a('s_cbranch_scc1', sk)
    a('s_cmp_lg_u32', 's9', 3); a('s_cbranch_scc1', sk)
    a('s_mov_b32', 's11', L_A2)
    slot('s10', 's11', 0)
    a.label(sk)
    epoch_ready(a)
    h_dma(a, R); h_head(a, R)
    k0 = R.alloc(); vc = R.alloc(); go = R.alloc(); go2 = R.alloc()
    a('v_lshrrev_b32', v(t), 3, 'v0')
    a('v_mul_u32_u24', v(k0), 65, v(t))
    a('v_mul_u32_u24', v(u), 205, v(k0)); a('v_lshrrev_b32', v(u), 14, v(u))
    a('v_mul_u32_u24', v(u), 80, v(u)); a('v_sub_u32', v(k0), v(k0), v(u))
    a('s_and_b32', 's12', 's9', 1); a('s_lshr_b32', 's13', 's9', 1)
    a('s_cmp_eq_u32', 's12', 0)
    a('s_cselect_b32', 's14', 2, -2); a('s_cselect_b32', 's15', 0, 640)
    a('s_mul_i32', 's8', 's13', 642); a('s_add_u32', 's15', 's15', 's8'); a('s_add_u32', 's15', 's15', L_A2 + 1296)
    a('s_cmp_eq_u32', 's9', 3); a('s_cselect_b32', 's8', 1, 0); a('s_add_u32', 's8', 's8', 's7')
    a('s_cmp_eq_u32', 's8', 128); a('s_cselect_b32', 's41', 1296, 0); a('s_sub_u32', 's15', 's15', 's41')
    a('s_and_b32', 's8', 's8', 127)
    a('v_bfe_u32', v(t), 'v0', 1, 2); a('v_mul_u32_u24', v(t), 80, v(t))
    a('v_and_b32', v(u), 1, 'v0'); a('v_mul_u32_u24', v(u), 11664, v(u)); a('v_add_u32', v(u), 's15', v(u))
    a('v_mad_i32_i24', v(vc), v(t), 's14', v(u))
    a('s_mul_i32', 's8', 's8', TBLK); a('s_add_u32', 's8', 's8', WS_W)
    a('s_lshl_b32', 's41', 's9', 11); a('s_add_u32', 's41', 's41', 's8')
    a('v_add_u32', v(go), 's41', v(vo))
    a('s_mul_i32', 's41', 's9', 9*128); a('s_add_u32', 's41', 's41', 's8'); a('s_add_u32', 's41', 's41', 128*128)
    a('v_add_u32', v(go2), 's41', v(vo))
    ads = [R.alloc() for _ in range(6)]
    for it, C in enumerate((16, 56, 32, 72, 0, 40)):
        if C:
            a('v_add_u32', v(t), C, v(k0)); a('v_subrev_u32', v(u), 80, v(t)); a('v_min_u32', v(t), v(t), v(u))
            a('v_mad_i32_i24', v(ads[it]), v(t), 's14', v(vc))
        else: a('v_mad_i32_i24', v(ads[it]), v(k0), 's14', v(vc))
    O = R.alloc(24); Hh = R.alloc(24)
    stamp(a, 2)
    a.wait(vm=12)
    subbar(a, C_W1, 4, t, u)
    stamp(a, 3)
    def comb(it):
        for k in range(4): a('v_lshl_or_b32', v(O+4*it+k), v(Hh+4*it+k), 16, v(O+4*it+k))
    for it in range(6):
        for i in range(8): a('ds_read_u16', v((Hh if i & 1 else O) + 4*it + (i >> 1)), v(ads[it]), mods=f'offset:{1296*i}')
        if it: comb(it - 1)
        if it == 2:
            for k in range(2): a('global_store_dwordx4', v(go), v(O+4*k, 4), WS_, mods=f'offset:{1024*k} {SC}')
            a('v_add_u32', v(go), 8192, v(go))
        if it == 4:
            for k in range(2): a('global_store_dwordx4', v(go), v(O+8+4*k, 4), WS_, mods=f'offset:{1024*k} {SC}')
    comb(5)
    a('global_store_dwordx4', v(go2), v(O+16, 4), WS_, mods=SC)
    a('s_mov_b64', 'exec', 0xff)
    a('global_store_dwordx4', v(go2), v(O+20, 4), WS_, mods=f'offset:1024 {SC}')
    a('s_mov_b64', 'exec', -1)
    stamp(a, 4)
    a.wait(vm=6); arrive(a, C_H, t, u)
    get_epoch(a, t, u)
    a('s_lshl_b32', 's8', 's7', 7); a('s_add_u32', 's8', 's8', F_W)
    publish(a, C_W1D, 4, 's8', t, u)
    stamp(a, 6)
    a('s_add_u32', 's9', 's7', 128)
    a('s_cmp_ge_u32', 's9', 164); a('s_cbranch_scc1', 'Lfin')
    await_cnt(a, C_W1D, 4, t, u)
    a.pad_end()

def pk_A2(a, P):
    a.label('LA2'); a.pad_begin('A2')
    touch(a, P('A2')[1:5], 8)
    R = RegAlloc(1, 168)
    t = R.alloc(); u = R.alloc(); go = R.alloc(4); lw = R.alloc(); lr0 = R.alloc(); lr1 = R.alloc(); fa = R.alloc(); fw = R.alloc()
    a('s_sub_u32', 's10', 's3', 8)
    a('v_lshrrev_b32', v(t), 3, 'v0'); a('v_lshl_add_u32', v(t), 's10', 3, v(t))
    a('s_mov_b32', 's8', TBLK); a('v_mul_lo_u32', v(go), v(t), 's8')
    a('v_and_b32', v(u), 7, 'v0'); a('v_lshl_add_u32', v(go), v(u), 4, v(go))
    a('s_lshl_b32', 's8', 's9', 7); a('v_add_u32', v(go), 's8', v(go))
    for it in range(1, 4): a('v_add_u32', v(go+it), 32*TBLK*it, v(go))
    ST = R.alloc(32); SW = ST + 16
    a('s_add_u32', 's12', 's38', WS_W); a('s_addc_u32', 's13', 's39', 0)
    def swz(dst, line, piece, tmp):
        a('v_lshrrev_b32', v(dst), 1, v(line)); a('v_lshlrev_b32', v(tmp), 2, v(line)); a('v_xor_b32', v(dst), v(dst), v(tmp))
        a('v_xor_b32', v(dst), piece, v(dst)); a('v_and_b32', v(dst), 7, v(dst)); a('v_lshlrev_b32', v(dst), 4, v(dst))
        a('v_lshl_add_u32', v(dst), v(line), 7, v(dst)); a('v_add_u32', v(dst), L_A2, v(dst))
    t2 = R.alloc()
    swz(lw, t, v(u), t2)
    a('s_sub_u32', 's8', 's9', 128); a('s_mul_i32', 's8', 's8', 57); a('s_lshr_b32', 's8', 's8', 9)
    a('s_bfe_u32', 's11', 's9', (2 << 16) | 4); a('s_cmp_lt_u32', 's9', 128); a('s_cselect_b32', 's8', 's11', 's8')
    a('v_and_b32', v(u), 3, 'v0'); a('v_lshl_add_u32', v(u), v(u), 5, v(t))
    a('v_lshlrev_b32', v(fa), 7, v(u)); a('v_add_u32', v(fa), F_A, v(fa))
    a('s_cmp_eq_u32', 's8', 3); a('s_cselect_b32', 's11', 127, 0)
    a('v_add_u32', v(u), 's11', v(u)); a('v_and_b32', v(u), 127, v(u)); a('v_lshlrev_b32', v(fw), 7, v(u)); a('v_add_u32', v(fw), F_W, v(fw))
    a('s_and_b32', 's8', 's8', 1); a('s_cmp_eq_u32', 's8', 0)
    a('s_cselect_b32', 's14', 0, 0x80008000); a('s_lshl_b32', 's11', 's8', 31); a('s_or_b32', 's11', 's11', fl(1/32))
    o = R.alloc(); h = R.alloc(); of = R.alloc(); hf = R.alloc()
    a('v_bfe_u32', v(o), 'v0', 3, 2); a('v_and_b32', v(t), 3, 'v0'); a('v_lshl_add_u32', v(o), v(o), 2, v(t))
    a('v_bfe_u32', v(t), 'v0', 2, 1); a('v_lshl_add_u32', v(o), v(o), 1, v(t))
    a('v_lshrrev_b32', v(h), 5, 'v0')
    a('v_lshl_add_u32', v(t), v(h), 5, v(o))
    a('s_lshl_b32', 's8', 's10', 1)
    swz(lr0, t, 's8', t2); a('v_xor_b32', v(lr1), 16, v(lr0))
    a('v_cvt_f32_u32', v(of), v(o)); a('v_mul_f32', v(of), 's11', v(of))
    a('v_cvt_f32_u32', v(hf), v(h)); a('v_mul_f32', v(hf), v(hf), v(of))
    C = R.alloc(8); Sm = R.alloc(8); N = R.alloc(8); TC = R.alloc(16); TS = R.alloc(16); X = R.alloc(8)
    for kap in range(2):
        for jj in range(4):
            for e in range(2):
                idx = 2*kap + 4*(2*jj + e)
                if idx: a('v_fmamk_f32', v(X+e), v(of), fl(float(idx)), v(hf)); src = X+e
                else: src = hf
                sincos(a, src, X+2+e, X+4+e)
                vv = 2*(2*jj + e) + kap
                a('v_mul_f32', v(X+6+e), fl(1/32), v(src))
                sincos(a, X+6+e, TC+vv, TS+vv)
            a('v_cvt_pk_bf16_f32', v(C+4*kap+jj), v(X+2), v(X+3))
            a('v_cvt_pk_bf16_f32', v(Sm+4*kap+jj), v(X+4), v(X+5))
            a('v_cvt_pk_bf16_f32', v(N+4*kap+jj), '-' + v(X+4), '-' + v(X+5))
    get_epoch(a, t, u)
    a('s_setprio', 2)
    stamp(a, 7)
    poll_flags(a, fa, t)
    for it in range(4): a('global_load_dwordx4', v(ST+4*it, 4), v(go+it), WS_, mods=SC)
    stamp(a, 8)
    poll_flags(a, fw, t)
    for it in range(4): a('global_load_dwordx4', v(SW+4*it, 4), v(go+it), 's[12:13]', mods=SC)
    for it in range(4): a('ds_write_b128', v(lw), v(ST+4*it, 4), mods=f'offset:{4096*it}')
    for it in range(4): a('ds_write_b128', v(lw), v(SW+4*it, 4), mods=f'offset:{16384+4096*it}')
    stamp(a, 9)
    subbar(a, C_A2a, 4, t, u)
    Z = R.alloc(16); Wp = R.alloc(16)
    for kap in range(2):
        for ri, ad in enumerate((lr0, lr1)): a('ds_read_b128', v(Z+8*kap+4*ri, 4), v(ad), mods=f'offset:{8192*kap}')
    for kap in range(2):
        for ri, ad in enumerate((lr0, lr1)): a('ds_read_b128', v(Wp+8*kap+4*ri, 4), v(ad), mods=f'offset:{16384+8192*kap}')
    AR, AI = ST, ST+16
    MF = 'v_mfma_f32_32x32x16_bf16'
    def mm(kap, dataA, inv, dR, dI):
        zr, zi = v(Z+8*kap, 4), v(Z+8*kap+4, 4)
        c, p, n = v(C+4*kap, 4), v(Sm+4*kap, 4), v(N+4*kap, 4)
        if inv: p, n = n, p
        for k, (d, z, m) in enumerate(((dR, zr, c), (dI, zi, c), (dR, zi, p), (dI, zr, n))):
            cin = 0 if (kap == 0 and k < 2) else v(d, 16)
            if dataA: a(MF, v(d, 16), z, m, cin)
            else: a(MF, v(d, 16), m, z, cin)
    mm(0, True, False, AR, AI); mm(1, True, False, AR, AI)
    for i in range(8): a('v_xor_b32', v(Wp + (i >> 2)*8 + 4 + (i & 3)), 's14', v(Wp + (i >> 2)*8 + 4 + (i & 3)))
    msk = t2; a('v_mov_b32', v(msk), 0xffff0000)
    for st in range(3):
        for kap in range(2):
            for jj in range(4):
                for e in range(2):
                    vv = 2*(2*jj + e) + kap
                    re, im = AR+vv, AI+vv
                    if st == 1:
                        c, s_ = X+4, X+5
                        for dst, pl in ((c, 0), (s_, 1)):
                            src = Wp + 8*kap + 4*pl + jj
                            if e: a('v_and_b32', v(dst), v(msk), v(src))
                            else: a('v_lshlrev_b32', v(dst), 16, v(src))
                    else: c, s_ = TC+vv, TS+vv
                    a('v_mul_f32', v(X+e), v(re), v(c)); a('v_mul_f32', v(X+2+e), v(im), v(c))
                    if st == 0:
                        a('v_fmac_f32', v(X+e), v(im), v(s_)); a('v_fma_f32', v(X+2+e), '-' + v(re), v(s_), v(X+2+e))
                    else:
                        a('v_fma_f32', v(X+e), '-' + v(im), v(s_), v(X+e)); a('v_fmac_f32', v(X+2+e), v(re), v(s_))
                a('v_cvt_pk_bf16_f32', v(Z+8*kap+jj), v(X), v(X+1))
                a('v_cvt_pk_bf16_f32', v(Z+8*kap+4+jj), v(X+2), v(X+3))
        mm(0, st == 1, st >= 1, AR, AI); mm(1, st == 1, st >= 1, AR, AI)
    for kap in range(2):
        for ih, ad in enumerate((lr0, lr1)):
            for x in range(4):
                vv = 2*(4*ih + x) + kap
                a('v_cvt_pk_bf16_f32', v(Z+8*kap+4*ih+x), v(AR+vv), v(AI+vv)); a('v_or_b32', v(Z+8*kap+4*ih+x), 1, v(Z+8*kap+4*ih+x))
            a('ds_write_b128', v(ad), v(Z+8*kap+4*ih, 4), mods=f'offset:{8192*kap}')
    stamp(a, 10)
    subbar(a, C_A2b, 4, t, u)
    for it in range(4): a('ds_read_b128', v(Wp+4*it, 4), v(lw), mods=f'offset:{4096*it}')
    for it in range(4): a('global_store_dwordx4', v(go+it), v(Wp+4*it, 4), WS_, mods=SC)
    a('s_setprio', 0)
    stamp(a, 13)
    a.pad_end()
    a('s_cmp_eq_u32', 's5', 0); a('s_cbranch_scc1', 'Lfin')
    a('s_cmp_lt_u32', 's3', 10); a('s_cbranch_scc1', 'LB3')
    a('s_branch', 'Lfin')

def build(stamps=False):
    roles.STAMPS[0] = stamps
    pads = {}
    for it in range(4):
        roles._lbl[0] = 0
        P = lambda r: pads.get(r, [])
        a = Asm()
        a.raw(f"; @launch grid=(256,1,1) block=(768,1,1) lds={LDS_TOTAL}")
        a.raw('.amdgcn_target "amdgcn-amd-amdhsa--gfx950"\n.text')
        entry(a, P)
        pk_A1(a, P)
        K = pk_A3c(a)
        pk_B2(a)
        pk_A3(a, K); a('s_branch', 'Lfin')
        st = pk_B1(a, P); pk_B1b(a, P, st)
        pk_aux(a, P)
        pk_A2(a, P)
        pk_B3(a)
        a.label('Lfin'); stamp_flush(a, 0); a('s_endpgm')
        a.raw(kernel_desc(KNAME, 168, 100))
        if a.pads == pads: break
        pads = a.pads
    print({k: len(x) for k, x in pads.items()}, 'est bytes', a.bytes, 'instrs', a.nins)
    return a.text()

if __name__ == '__main__':
    open('pk.s', 'w').write(build(False))
    open('pkst.s', 'w').write(build(True))
    for k in sys.argv[1:]:
        roles.AMP[0] = int(k); open(f'pkamp{k}.s', 'w').write(build(True))
```

```python
import re

REG_RE = re.compile(r'^(-|\|)?(?:abs\()?([vsa])(?:(\d+)|\[(\d+):(\d+)\])\)?\|?$')

def regs_of(op):
    if not isinstance(op, str): return set()
    op = op.strip()
    if op == 'vcc': return {('s', 106), ('s', 107)}
    if op == 'vcc_lo': return {('s', 106)}
    if op == 'vcc_hi': return {('s', 107)}
    if op == 'exec': return {('s', 126), ('s', 127)}
    if op == 'exec_lo': return {('s', 126)}
    if op == 'exec_hi': return {('s', 127)}
    if op == 'm0': return {('s', 124)}
    m = REG_RE.match(op)
    if not m: return set()
    k = m.group(2)
    if m.group(3) is not None: return {(k, int(m.group(3)))}
    return {(k, i) for i in range(int(m.group(4)), int(m.group(5)) + 1)}

def v(n, cnt=1):
    return f"v{n}" if cnt == 1 else f"v[{n}:{n+cnt-1}]"
def s(n, cnt=1):
    return f"s{n}" if cnt == 1 else f"s[{n}:{n+cnt-1}]"

TRANS = ('v_exp_', 'v_log_', 'v_rcp_', 'v_rsq_', 'v_sqrt_', 'v_sin_', 'v_cos_')
VCC = {('s', 106), ('s', 107)}

def mfma_passes(op):
    if '32x32x16' in op or '32x32x8' in op: return 8
    if '16x16x32' in op or '16x16x16' in op: return 4
    raise ValueError(op)

class Ins:
    __slots__ = ('op', 'args', 'mods', 'kind', 'defs', 'uses', 'srcC', 'srcAB', 'passes', 'ws', 'text', 'wide_data', 'comment')
    def __init__(self, op, args, mods):
        self.op, self.args, self.mods = op, [str(a) for a in args], mods
        self.defs, self.uses, self.srcC, self.srcAB = set(), set(), set(), set()
        self.passes = 0; self.ws = 1; self.wide_data = set()
        a = self.args
        R = lambda xs: set().union(*[regs_of(x) for x in xs]) if xs else set()
        if op.startswith('v_mfma'):
            self.kind = 'mfma'; self.passes = mfma_passes(op)
            self.defs = R(a[:1]); self.srcAB = R(a[1:3]); self.srcC = R(a[3:4]); self.uses = self.srcAB | self.srcC
        elif op.startswith('v_'):
            self.kind = 'trans' if op.startswith(TRANS) else 'valu'
            if op.startswith('v_permlane') and 'swap' in op:
                self.defs = R(a[:2]); self.uses = R(a[:2])
            elif op.startswith(('v_add_co', 'v_sub_co', 'v_subrev_co', 'v_addc_co', 'v_subb_co', 'v_mad_u64')):
                self.defs = R(a[:2]); self.uses = R(a[2:])
            else:
                self.defs = R(a[:1]); self.uses = R(a[1:])
                if op.startswith(('v_fmac', 'v_pk_fmac', 'v_dot2c', 'v_writelane')) or 'mixlo' in op or 'mixhi' in op:
                    self.uses |= self.defs
                if 'dpp' in op or 'row_' in mods or 'quad_perm' in mods: self.uses |= self.defs
        elif op.startswith('ds_'):
            self.kind = 'ds'
            if op.startswith(('ds_read', 'ds_bpermute', 'ds_permute', 'ds_swizzle')) or '_rtn_' in op:
                self.defs = R(a[:1]); self.uses = R(a[1:])
                if 'd16' in op: self.uses |= self.defs
            else:
                self.uses = R(a)
        elif op.startswith(('global_', 'buffer_')):
            self.kind = 'vmem'
            lds = ('_lds_' in op) or (' lds' in ' ' + mods)
            if lds:
                self.uses = R(a) | {('s', 124)}
            elif '_load' in op or ('atomic' in op and 'sc0' in mods):
                self.defs = R(a[:1]); self.uses = R(a[1:])
                if 'd16' in op: self.uses |= self.defs
                if 'atomic' in op and op.startswith('buffer_'): self.uses |= self.defs
            else:
                self.uses = R(a)
                if 'x4' in op or 'x3' in op:
                    self.wide_data = R([a[1] if op.startswith('global_') else a[0]])
        elif op.startswith(('s_load', 's_memtime', 's_memrealtime', 's_buffer_load')):
            self.kind = 'smem'; self.defs = R(a[:1]); self.uses = R(a[1:])
        elif op.startswith('s_'):
            self.kind = 'salu'
            if op == 's_nop': self.ws = int(a[0]) + 1
            elif op.startswith(('s_cmp', 's_cbranch', 's_branch', 's_waitcnt', 's_barrier', 's_sleep', 's_setprio', 's_endpgm', 's_bitcmp', 's_setreg', 's_setpc')):
                self.uses = R(a)
            else:
                self.defs = R(a[:1]); self.uses = R(a[1:])
                if 'saveexec' in op: self.defs |= regs_of('exec'); self.uses |= regs_of('exec')
                if op in ('s_addk_i32', 's_mulk_i32'): self.uses |= self.defs
        else:
            raise ValueError(op)
        self.text = op + (' ' + ', '.join(self.args) if self.args else '') + (' ' + mods if mods else '')

INLINE_F = {'0.5', '-0.5', '1.0', '-1.0', '2.0', '-2.0', '4.0', '-4.0'}
def _is_lit(x):
    x = x.strip()
    if regs_of(x) or x in INLINE_F: return False
    try: val = int(x, 0)
    except ValueError: return False
    return not (-16 <= val <= 64)
VOP3_ONLY = ('v_fma_f32', 'v_cvt_pk', 'v_mad_', 'v_lshl_add', 'v_add3', 'v_bfe', 'v_mul_lo', 'v_mul_hi', 'v_and_or', 'v_or3', 'v_lshl_or', 'v_perm', 'v_alignbit',
             'v_pk_', 'v_fma_mix', 'v_lshlrev_b64', 'v_max3', 'v_min3', 'v_add_lshl', 'v_bfi', 'v_bitop3', 'v_readlane', 'v_writelane', 'v_xad', 'v_med3', 'v_fmamk', 'v_fmaak', 'v_dot2_')
def est_size(i):
    if i.kind in ('mfma', 'ds', 'vmem', 'smem'): return 8
    if i.kind == 'salu':
        if i.op.startswith(('s_waitcnt', 's_nop', 's_cbranch', 's_branch', 's_barrier', 's_sleep', 's_setprio', 's_endpgm', 's_addk', 's_movk', 's_mulk')): return 4
        return 8 if any(_is_lit(x) for x in i.args) else 4
    if i.op.startswith(VOP3_ONLY) or i.mods: return 8
    if any(x.startswith(('-v', '-s', 'abs', '|')) for x in i.args): return 8
    if len(i.args) >= 3 and not i.args[2].startswith('v'): return 8
    if i.op.startswith('v_cmp') and i.args[0] != 'vcc': return 8
    return 8 if any(_is_lit(x) for x in i.args) else 4

class Asm:
    def __init__(self):
        self.bytes = 0; self.pad_role = None; self.pad_last = 0; self.pads = {}; self.pad_on = False
        self.lines = []
        self.hist = []
        self.vm = []
        self.lg = []
        self.maxv = 0; self.maxs = 0
        self.nins = 0
        self.nopad = False
        self.snap = {}
        self.dead = False
    def raw(self, t): self.lines.append(t)
    def comment(self, t): self.lines.append('    ; ' + t)
    def label(self, name, keep=False):
        if not keep and not self.dead:
            self.settle()
        self.hist = []
        states = self.snap.pop(name, [])
        if not self.dead: states = states + [(self.vm, self.lg)]
        if len(states) == 1:
            self.vm, self.lg = list(states[0][0]), list(states[0][1])
        else:
            same_v = all(x[0] == states[0][0] for x in states); same_l = all(x[1] == states[0][1] for x in states)
            if states and same_v: self.vm = list(states[0][0])
            else:
                un = set().union(*[d for x in states for d in x[0]]) if any(x[0] for x in states) else None
                self.vm = [un] if un is not None else []
            if states and same_l: self.lg = list(states[0][1])
            else:
                anyl = any(x[1] for x in states)
                un = set().union(*[d[0] for x in states for d in x[1]]) if anyl else None
                self.lg = [(un, any(d[1] for x in states for d in x[1]))] if anyl else []
        self.dead = False
        self.lines.append(name + ':')
    def settle(self, keep_hist=False, minus=0):
        need = 0; dist = minus
        for p in reversed(self.hist):
            if p.kind == 'mfma': need = max(need, {4: 8, 8: 12}[p.passes] - dist)
            elif p.kind in ('valu', 'trans'):
                need = max(need, (5 if any(r[0] == 's' and r[1] != 40 for r in p.defs) else (2 if any(r[0] == 'v' for r in p.defs) else 0)) - dist)
            elif p.wide_data: need = max(need, 2 - dist)
            elif ('s', 124) in p.defs: need = max(need, 1 - dist)
            dist += p.ws
            if dist > 20: break
        if need > 0: self._nop(need)
        if not keep_hist: self.hist = []
    def _nop(self, n):
        while n > 0:
            k = min(n, 16)
            i = Ins('s_nop', [k - 1], ''); self.hist.append(i); self.lines.append('    ' + i.text); self.nins += 1; self.bytes += 4
            n -= k
    def cell(self, b):
        return (b >> 12)*4 + min(((b & 4095) >> 6)//17, 3)
    def pad_begin(self, role):
        self.pad_role = role; self.pads[role] = [f"Pad{self.cell(self.bytes)}"] if self.cell(self.bytes) else []
    def pad_end(self): self.pad_role = None
    def _pad(self):
        c = self.cell(self.bytes); self.pad_last = c
        name = f"Pad{c}"
        if self.pad_role and name not in self.pads[self.pad_role]: self.pads[self.pad_role].append(name)
        self.lines.append(name + ':')
        i = Ins('s_cbranch_execz', ['Ltramp'], ''); self.hist.append(i); self.lines.append('    ' + i.text); self.nins += 1
        self.bytes += 4
    def _emit(self, i):
        self.bytes += est_size(i)
        self.hist.append(i); self.lines.append('    ' + i.text); self.nins += 1
        if len(self.hist) > 64: self.hist = self.hist[-40:]
    def wait(self, vm=None, lgkm=None):
        parts = []
        if vm is not None:
            vm = min(vm, 63); parts.append(f'vmcnt({vm})'); self.vm = self.vm[len(self.vm) - vm:] if vm < len(self.vm) else self.vm
            if vm == 0: self.vm = []
        if lgkm is not None:
            lgkm = min(lgkm, 15); parts.append(f'lgkmcnt({lgkm})'); self.lg = self.lg[len(self.lg) - lgkm:] if lgkm < len(self.lg) else self.lg
            if lgkm == 0: self.lg = []
        self._emit(Ins('s_waitcnt', [' '.join(parts)], ''))
    def forget(self):
        self.vm = []; self.lg = []
    def __call__(self, op, *args, mods=''):
        i = Ins(op, args, mods)
        if self.pad_on and self.cell(self.bytes) != self.pad_last and not self.nopad and not self.dead: self._pad()
        touch = i.defs | i.uses
        for r in touch:
            if r[0] == 'v': self.maxv = max(self.maxv, r[1])
            elif r[0] == 's' and r[1] < 102: self.maxs = max(self.maxs, r[1])
        wv = wl = None
        for k in range(len(self.vm) - 1, -1, -1):
            if self.vm[k] & touch:
                if i.kind == 'vmem' and 'd16' in op and not (self.vm[k] & (i.uses - i.defs)): continue
                wv = len(self.vm) - 1 - k; break
        for k in range(len(self.lg) - 1, -1, -1):
            if self.lg[k][0] & touch:
                if i.kind == 'ds' and 'd16' in op and not (self.lg[k][0] & (i.uses - i.defs)): continue
                wl = len(self.lg) - 1 - k; break
        if wl is not None and any(x[1] for x in self.lg): wl = 0
        if wv is not None or wl is not None: self.wait(wv, wl)
        need = 0; dist = 0
        isv = i.kind in ('valu', 'trans')
        for p in reversed(self.hist):
            n = 0
            if p.kind in ('valu', 'trans'):
                pv = {r for r in p.defs if r[0] != 's'}; ps = {r for r in p.defs if r[0] == 's'}
                if i.kind == 'mfma' and pv & i.uses: n = max(n, 2)
                if p.kind == 'trans' and i.kind == 'valu' and pv & i.uses: n = max(n, 1)
                if isv and pv & i.uses:
                    if op.startswith(('v_readlane', 'v_readfirstlane')): n = max(n, 1)
                    if op.startswith('v_permlane') or 'row_' in mods or 'quad_perm' in mods or 'dpp' in op: n = max(n, 2)
                if ('op_sel' in p.mods and ('mixhi' in p.op or 'mixlo' in p.op or 'sdwa' in p.op)) and isv and pv & touch: n = max(n, 1)
                if ps & i.uses:
                    if isv: n = max(n, 4 if op.startswith(('v_readlane', 'v_writelane', 'v_div_fmas')) else 2)
                    if i.kind == 'vmem': n = max(n, 5)
                    if i.kind == 'mfma': n = max(n, 4)
            elif p.kind == 'mfma':
                big = {4: 8, 8: 12}[p.passes]
                if i.kind == 'mfma':
                    if p.defs & i.srcAB: n = max(n, big)
                    if p.defs & i.srcC:
                        if not (p.defs == i.srcC and p.op == i.op): n = max(n, big - 2)
                    elif p.defs & i.defs and p.passes != i.passes: n = max(n, big - 2)
                elif i.kind in ('valu', 'trans', 'vmem', 'ds'):
                    if p.defs & touch: n = max(n, big)
                    if isv and p.srcC & i.defs: n = max(n, {4: 3, 8: 7}[p.passes])
            elif p.kind == 'vmem':
                if p.wide_data & i.defs: n = max(n, 2)
            elif p.kind == 'salu':
                if ('s', 124) in p.defs and ('s', 124) in i.uses and i.kind in ('vmem', 'ds'): n = max(n, 1)
            need = max(need, n - dist)
            dist += p.ws
            if dist > 20: break
        if need > 0: self._nop(need)
        if op.startswith(('s_cbranch', 's_branch')):
            self.settle(keep_hist=True, minus=1)
            self.snap.setdefault(str(args[0]), []).append((list(self.vm), list(self.lg)))
        self._emit(i)
        if op in ('s_branch', 's_endpgm', 's_setpc_b64'): self.dead = True
        if i.kind == 'vmem': self.vm.append(set(i.defs))
        elif i.kind == 'ds': self.lg.append((set(i.defs), False))
        elif i.kind == 'smem': self.lg.append((set(i.defs), True))
        return i
    def text(self): return '\n'.join(self.lines) + '\n'

class RegAlloc:
    def __init__(self, start=0, limit=256):
        self.next = start; self.limit = limit; self.free_list = []
    def alloc(self, n=1, align=None):
        if align is None: align = 1 if n == 1 else 2
        b = (self.next + align - 1) // align * align
        self.next = b + n
        assert self.next <= self.limit, f"out of registers ({self.next} > {self.limit})"
        return b
    def mark(self): return self.next
    def release(self, m): self.next = m

def kernel_desc(name, vgpr, sgpr):
    vg = max(8, (vgpr + 3) // 4 * 4)
    return f""".section .rodata,"a"
.p2align 6
.amdhsa_kernel {name}
  .amdhsa_next_free_vgpr {vg}
  .amdhsa_next_free_sgpr {sgpr}
  .amdhsa_accum_offset {vg}
  .amdhsa_group_segment_fixed_size 0
  .amdhsa_float_denorm_mode_32 3
  .amdhsa_kernarg_size 96
  .amdhsa_user_sgpr_count 2
  .amdhsa_user_sgpr_kernarg_segment_ptr 1
  .amdhsa_system_sgpr_workgroup_id_x 1
.end_amdhsa_kernel
.text
"""
import struct
def f2u(x): return struct.unpack('<I', struct.pack('<f', x))[0]
def fl(x): return f"0x{f2u(x):08x}"
```

```python
import sys
from asmlib import *
import roles
from roles import *
from pk import touch, publish, poll_flags, z_addrs, KNAME, WS_Z2, F_A, F_W, F_B, WS_EP, SPIN, SC, epoch_ready
from pk import C_A1, C_A1D, C_W1, C_W1D, C_A2a, C_A2b, C_A3, C_B1, C_B1D, C_U, C_H, C_RED, C_Q

L_TAB = L_A2 + 23552
L_TABH = L_A2 + 24576
L_TW = L_RED

def poll_tagged(a, loads, regs, vt, sleep=0):
    lp = newlabel('Lg'); dn = newlabel('Lg')
    a('s_mov_b32', 's41', SPIN)
    a.label(lp)
    loads()
    a('s_sub_u32', 's41', 's41', 1)
    a('v_and_b32', v(vt), v(regs[0]), v(regs[1]))
    for k in range(2, len(regs), 2): a('v_bitop3_b32', v(vt), v(vt), v(regs[k]), v(regs[k+1]), mods='bitop3:0x80')
    a('v_and_b32', v(vt), 1, v(vt))
    a('v_cmp_ne_u32', 'vcc', 1, v(vt))
    a('s_cbranch_scc1', dn)
    if sleep:
        a('s_cbranch_vccz', dn); a('s_sleep', sleep); a('s_branch', lp)
    else: a('s_cbranch_vccnz', lp)
    a.label(dn)

SEQ = [1, 2, 4, 1, 3, 4, 0, 0]
def coop_tables(a, R, tabH, tabW, a3):
    n = R.alloc(); q = R.alloc(); nf = R.alloc(); t = R.alloc(); u = R.alloc(); ad = R.alloc()
    ang = R.alloc(4); C = R.alloc(4); S = R.alloc(4); PKd = R.alloc(4)
    a('v_and_b32', v(n), 15, 'v0'); a('v_lshrrev_b32', v(q), 4, 'v0')
    ltw = newlabel('Lc'); ldone = newlabel('Lc')
    a('s_cmp_ge_u32', 's3', 5); a('s_cbranch_scc1', ltw)
    a('v_cvt_f32_u32', v(nf), v(n)); a('v_mul_f32', v(nf), fl(1/16), v(nf))
    a('v_lshlrev_b32', v(t), 2, v(q)); a('v_cvt_f32_u32', v(t), v(t))
    a('v_cvt_f32_u32', v(u), 's3'); a('v_mul_f32', v(u), fl(0.2), v(u))
    a('v_fma_f32', v(ang), v(nf), v(t), v(u))
    for r in range(1, 4): a('v_add_f32', v(ang+r), v(ang+r-1), v(nf))
    for r in range(4): sincos(a, ang+r, C+r, S+r)
    for h in range(2):
        a('v_cvt_pk_bf16_f32', v(PKd+h), v(C+2*h), v(C+2*h+1))
        a('v_cvt_pk_bf16_f32', v(PKd+2+h), '-' + v(S+2*h), '-' + v(S+2*h+1))
    if a3:
        a('s_lshl_b32', 's8', 's3', 10); a('s_add_u32', 's8', 's8', tabH); a('v_lshl_add_u32', v(ad), 'v0', 4, 's8')
        a('ds_write_b128', v(ad), v(PKd, 4))
    else:
        code = 0
        for tt in range(5):
            ps = [i for i, x in enumerate(SEQ) if x == tt]; ps = (ps + ps)[:2]
            code |= (ps[0] | ps[1] << 3) << (6*tt)
        a('s_mul_i32', 's8', 's3', 6); a('s_lshr_b32', 's8', code, 's8')
        a('v_lshlrev_b32', v(t), 4, 'v0')
        for k in range(2):
            a('s_bfe_u32', 's12', 's8', (2 << 16) | (3*k + 1)); a('s_lshl_b32', 's12', 's12', 10)
            a('s_bfe_u32', 's13', 's8', (1 << 16) | (3*k)); a('s_lshl3_add_u32', 's12', 's13', 's12'); a('s_add_u32', 's12', 's12', tabH)
            a('v_add_u32', v(ad), 's12', v(t))
            a('ds_write_b64', v(ad), v(PKd, 2)); a('ds_write_b64', v(ad), v(PKd+2, 2), mods='offset:4096')
    a('s_branch', ldone)
    a.label(ltw)
    a('s_sub_u32', 's8', 's3', 5); a('s_lshl_b32', 's12', 's8', 4)
    def k1f(dst, vka):
        a('v_mul_u32_u24', v(dst), 65, v(vka)); a('v_add_u32', v(dst), 's12', v(dst))
        a('v_mul_u32_u24', v(u), 205, v(dst)); a('v_lshrrev_b32', v(u), 14, v(u))
        a('v_mul_u32_u24', v(u), 80, v(u)); a('v_sub_u32', v(dst), v(dst), v(u)); a('v_cvt_f32_u32', v(dst), v(dst))
    if a3:
        a('v_and_b32', v(nf), 7, 'v0'); a('v_cvt_f32_u32', v(nf), v(nf)); a('v_mul_f32', v(nf), fl(1/640), v(nf))
        for r in range(4):
            a('v_lshl_add_u32', v(t), v(q), 2, r); k1f(ang+r, t); a('v_mul_f32', v(ang+r), v(ang+r), v(nf))
        for r in range(4): sincos(a, ang+r, C+r, S+r)
        lw_ = newlabel('Lc'); a('s_cmp_lg_u32', 's8', 0); a('s_cbranch_scc1', lw_)
        a('v_cmp_gt_u32', 'vcc', 2, v(q)); a('v_cndmask_b32', v(t), 0, 1.0, 'vcc')
        for r in range(1, 4): a('v_mul_f32', v(C+r), v(t), v(C+r)); a('v_mul_f32', v(S+r), v(t), v(S+r))
        a('v_and_b32', v(u), 1, v(q)); a('v_cmp_eq_u32', 'vcc', 0, v(u)); a('v_cndmask_b32', v(t), v(t), 0.5, 'vcc')
        a('v_mul_f32', v(C), v(t), v(C)); a('v_mul_f32', v(S), v(t), v(S))
        a.label(lw_)
    else:
        k1f(nf, n); a('v_mul_f32', v(nf), fl(1/640), v(nf))
        a('v_and_b32', v(t), 1, v(q)); a('v_lshlrev_b32', v(t), 2, v(t)); a('v_cvt_f32_u32', v(t), v(t))
        a('v_mul_f32', v(ang), v(nf), v(t))
        for r in range(1, 4): a('v_add_f32', v(ang+r), v(ang+r-1), v(nf))
        for r in range(4): sincos(a, ang+r, C+r, S+r)
    a('s_lshl_b32', 's8', 's8', 11); a('s_add_u32', 's8', 's8', tabW); a('v_lshl_add_u32', v(ad), 'v0', 4, 's8')
    a('ds_write_b128', v(ad), v(C, 4)); a('ds_write_b128', v(ad), v(S, 4), mods='offset:1024')
    a.label(ldone)
for _k in range(16):
    for _5 in range(3): assert ((65*_k+16*_5)*205) >> 14 == (65*_k+16*_5)//80

def R1E(P): return uniq(P('A1') + P('B2') + P('A3'))[:8]
def R1O(P): return uniq(P('B1') + P('HH') + P('B2') + P('A2') + P('B3'))[:12]

CODE_HI = [6144]
TOUCH = [True]
def uniq(l):
    o = []
    for x in l:
        if x not in o: o.append(x)
    return o
def entry(a, P):
    a.raw(f".globl {KNAME}\n.p2align 12\n.type {KNAME},@function\n{KNAME}:")
    a.pad_on = True
    a('s_cmp_ge_u32', 's2', 256); a('s_cbranch_scc1', 'Lexit')
    if STAMPS[0]:
        for i in range(1, 16): a('s_mov_b32', s(64+2*i), 0)
    stamp(a, 0)
    a('s_load_dwordx16', 's[16:31]', 's[0:1]', 0)
    a('s_load_dwordx8', 's[32:39]', 's[0:1]', 64)
    a('s_getpc_b64', 's[42:43]'); a('s_and_b32', 's42', 's42', 0xfffff000)
    a('s_bitcmp1_b32', 's2', 3); a('s_cselect_b32', 's8', CODE_HI[0], 0); a('s_add_u32', 's42', 's42', 's8'); a('s_addc_u32', 's43', 's43', 0)
    a('v_lshlrev_b32', 'v2', 4, 'v0'); a('v_mov_b32', 'v3', 's43')
    a('v_add_co_u32', 'v2', 'vcc', 's42', 'v2'); a('v_addc_co_u32', 'v3', 'vcc', 0, 'v3', 'vcc')
    a('global_load_dwordx4', 'v[160:163]', 'v[2:3]', 'off')
    a('v_lshrrev_b32', 'v1', 6, 'v0'); a('v_and_b32', 'v0', 63, 'v0')
    a('v_readfirstlane_b32', 's3', 'v1')
    a('s_and_b32', 's4', 's2', 7); a('s_bfe_u32', 's5', 's2', (1 << 16) | 3); a('s_lshr_b32', 's6', 's2', 4)
    a('s_lshl3_add_u32', 's7', 's6', 's4')
    a('v_lshlrev_b32', 'v1', 2, 'v0'); a('v_mov_b32', 'v2', 0)
    a('ds_write_b32', 'v1', 'v2', mods=f'offset:{L_CNT}')
    a('s_cmp_lg_u32', 's5', 0); a('s_cbranch_scc1', 'LentO')
    a('s_cmp_ge_u32', 's3', 8); a('s_cbranch_scc1', 'LauxE')
    R = RegAlloc(1, 168)
    a('s_lshl_b32', 's9', 's3', 7); a('s_add_u32', 's9', 's9', 's7'); a('s_mul_i32', 's10', 's9', 1280)
    vo = row_offsets(a, R, 's10', 1024*1280)
    a('s_mul_i32', 's11', 's3', 3072); a('s_add_u32', 's11', 's11', L_XR); a('s_mov_b32', 'm0', 's11')
    for t in range(3): a('global_load_lds_dwordx4', v(vo[t]), X_, mods=f'offset:{1024*t}')
    if TOUCH[0]: touch(a, R1E(P), 0)
    a('s_branch', 'LA1')
    a.label('LentO')
    a('s_cmp_ge_u32', 's3', 9); a('s_cbranch_scc1', 'Lbar0')
    R = RegAlloc(1, 168)
    vo = quad_voff(a, R); t = R.alloc()
    a('s_mul_i32', 's10', 's6', 128*1280); a('s_mul_i32', 's8', 's4', 160); a('s_add_u32', 's10', 's10', 's8')
    a('s_sub_u32', 's8', 's10', 4*1280); a('v_add_u32', v(t), 's8', v(vo))
    NB = 2048*1280
    srd(a, 44, 's24', 's25', NB); srd(a, 48, 's26', 's27', NB)
    a('s_mov_b32', 'exec_hi', 0xff)
    a('s_cmp_eq_u32', 's3', 8); a('s_cbranch_scc1', 'LentH')
    a('s_mul_i32', 's11', 's3', 16*1280); a('s_add_u32', 's11', 's11', 's10')
    a('s_mul_i32', 's12', 's3', 2*1296); a('s_add_u32', 's12', 's12', L_KI + 1296)
    for k in range(4):
        a('s_mov_b32', 'm0', 's12')
        a('buffer_load_dwordx4', v(vo), 's[44:47]', 's11', mods='offen lds')
        a('s_add_u32', 'm0', 's12', L_VI - L_KI - 1296)
        a('buffer_load_dwordx4', v(vo), 's[48:51]', 's11', mods='offen lds')
        if k < 3:
            a('s_addk_i32', 's11', 4*1280); a('s_addk_i32', 's12', 640 if k != 1 else 656)
    a('s_branch', 'LentX')
    a.label('LentH')
    a('s_mov_b32', 'm0', L_KI + 640)
    a('buffer_load_dwordx4', v(t), 's[44:47]', 0, mods='offen lds')
    a.label('LentX')
    a('s_mov_b64', 'exec', -1)
    a.label('Lbar0')
    if TOUCH[0]: touch(a, R1O(P), 0)
    bar0(a)
    a('s_cmp_ge_u32', 's3', 10); a('s_cbranch_scc1', 'LauxO')
    a('s_branch', 'LB1')
    a.label('Ltramp')
    a('s_setpc_b64', 's[42:43]')
    a.label('Lexit')
    a('s_endpgm')

def ep_load(a):
    a.wait(lgkm=0)
    a('s_add_u32', 's54', 's38', WS_EP); a('s_addc_u32', 's55', 's39', 0)
    a('s_load_dword', 's52', 's[54:55]', 0)
def bar0(a):
    ep_load(a)
    stamp(a, 1)
    a('s_barrier')

def m2_mats(a, R, inv, scale):
    Mre = R.alloc(4); Mim = R.alloc(4)
    mk = R.mark()
    u2 = R.alloc(); t = R.alloc(); u = R.alloc(); ang = R.alloc(4); C = R.alloc(4); S = R.alloc(4)
    a('v_and_b32', v(u2), 7, 'v0'); a('v_cvt_f32_u32', v(u2), v(u2)); a('v_mul_f32', v(u2), fl(1/8), v(u2))
    a('v_bfe_u32', v(t if inv else u), 'v0', 3, 1); a('v_lshrrev_b32', v(u if inv else t), 5, 'v0')
    a('v_lshl_add_u32', v(t), v(t), 10, 's9'); a('v_mul_u32_u24', v(t), v(t), v(u))
    a('v_cvt_f32_u32', v(t), v(t)); a('v_mul_f32', v(t), fl(1/2048), v(t))
    a('v_bfe_u32', v(u), 'v0', 4, 1); a('v_lshlrev_b32', v(u), 2, v(u)); a('v_cvt_f32_u32', v(u), v(u))
    a('v_fma_f32', v(ang), v(u2), v(u), v(t))
    for r in range(1, 4): a('v_add_f32', v(ang+r), v(ang+r-1), v(u2))
    for r in range(4): sincos(a, ang+r, C+r, S+r)
    if scale:
        for r in range(8): a('v_mul_f32', v(C+r), fl(scale), v(C+r))
    assert S == C + 4
    for r in range(4):
        a('v_cvt_pk_bf16_f32', v(Mre+r), v(C+r), ('-' if inv else '') + v(S+r))
        a('v_cvt_pk_bf16_f32', v(Mim+r), ('' if inv else '-') + v(S+r), v(C+r))
    R.release(mk)
    return Mre, Mim

def cmul_pk(a, dre, dim, re, im, c, s_, conj):
    a('v_pk_mul_f32', v(dre, 2), v(re, 2), v(c, 2)); a('v_pk_mul_f32', v(dim, 2), v(im, 2), v(c, 2))
    neg = 'neg_lo:[1,0,0] neg_hi:[1,0,0]'
    a('v_pk_fma_f32', v(dre, 2), v(im, 2), v(s_, 2), v(dre, 2), mods='' if conj else neg)
    a('v_pk_fma_f32', v(dim, 2), v(re, 2), v(s_, 2), v(dim, 2), mods=neg if conj else '')

def pk_A1(a, P):
    a.label('LA1'); a.pad_begin('A1')
    a('s_setprio', 2)
    R = RegAlloc(1, 168)
    coop_tables(a, R, L_TABH, L_TW, a3=False)
    bar0(a)
    R = RegAlloc(1, 168)
    rd = R.alloc(); va = R.alloc(); vb = R.alloc(); t = R.alloc(); q = R.alloc()
    Hs = R.alloc(16); Gs = R.alloc(16); TW = R.alloc(24)
    a('v_lshlrev_b32', v(rd), 4, 'v0'); a('v_add_u32', v(t), L_TABH, v(rd)); a('v_add_u32', v(rd), L_TW, v(rd))
    Mre, Mim = m2_mats(a, R, False, None)
    epoch_ready(a)
    for k in (3, 0, 1, 2):
        a('ds_read_b128', v(Hs+4*k, 4), v(t), mods=f'offset:{1024*k}'); a('ds_read_b128', v(Gs+4*k, 4), v(t), mods=f'offset:{4096+1024*k}')
    for k in (2, 3, 4, 5, 0, 1): a('ds_read_b128', v(TW+4*k, 4), v(rd), mods=f'offset:{1024*k}')
    a('v_lshrrev_b32', v(va), 2, 'v0'); a('v_lshrrev_b32', v(q), 4, 'v0')
    a('v_bfe_u32', v(vb), 'v0', 1, 1); a('v_mul_u32_u24', v(vb), 1408, v(vb))
    a('v_and_b32', v(t), 1, 'v0'); a('v_lshl_add_u32', v(vb), v(t), 3, v(vb)); a('v_add_u32', v(vb), 's11', v(vb))
    tra = d1_addrs(a, R, va, vb)
    Dr = R.alloc(10)
    stamp(a, 2)
    a.wait(vm=0)
    stamp(a, 3)
    for e in (0, 1, 2, 3, 4): a('ds_read_b64_tr_b16', v(Dr + 2*((e + 4) % 5), 2), v(tra[e]))
    ea0, ea1 = ei_addrs(a, R, 2624, dup=False)
    P0 = R.alloc(8); A1 = R.alloc(24); PK = R.alloc(12); X = R.alloc(8)
    a('v_mfma_f32_16x16x16_bf16', v(P0, 4), v(Dr+8, 2), v(Hs+12, 2), 0)
    a('v_mfma_f32_16x16x16_bf16', v(P0+4, 4), v(Dr+8, 2), v(Gs+12, 2), 0)
    tr2 = R.alloc(); go = R.alloc()
    a('v_bfe_u32', v(tr2), 'v0', 2, 2); a('v_mul_u32_u24', v(tr2), 2624, v(tr2))
    a('v_and_b32', v(t), 3, 'v0'); a('v_lshl_add_u32', v(tr2), v(t), 3, v(tr2))
    a('v_lshl_add_u32', v(tr2), v(q), 5, v(tr2))
    PAIR = {1: (0, 4), 2: (1, 3), 0: (6, 6)}
    for k5 in (1, 2, 0):
        for ri, M in enumerate((Hs, Gs)):
            a('v_mfma_f32_16x16x32_bf16', v(A1+8*k5+4*ri, 4), v(Dr, 4), v(M + 2*PAIR[k5][0], 4), v(P0+4*ri, 4))
        for ri, M in enumerate((Hs, Gs)):
            a('v_mfma_f32_16x16x32_bf16', v(A1+8*k5+4*ri, 4), v(Dr+4, 4), v(M + 2*PAIR[k5][1], 4), v(A1+8*k5+4*ri, 4))
        if k5 == 1:
            a('s_lshl_b32', 's8', 's3', 7); a('s_add_u32', 's8', 's8', L_EI); a('v_add_u32', v(tr2), 's8', v(tr2))
            a('s_mul_i32', 's8', 's7', TBLK); a('s_lshl_b32', 's12', 's3', 10); a('s_add_u32', 's8', 's8', 's12')
            a('v_lshl_add_u32', v(go), 'v0', 4, 's8')
            a('s_bitcmp0_b32', 's3', 0); a('s_cselect_b32', 's13', 0xfffefffe, -1)
    A2 = Hs
    for k5 in (1, 2, 0):
        for r in range(4):
            re, im, c, s_ = A1+8*k5+r, A1+8*k5+4+r, TW+8*k5+r, TW+8*k5+4+r
            a('v_mul_f32', v(X+r), v(re), v(c)); a('v_mul_f32', v(X+4+r), v(im), v(c))
            a('v_fmac_f32', v(X+r), v(im), v(s_)); a('v_fma_f32', v(X+4+r), '-' + v(re), v(s_), v(X+4+r))
            a('v_cvt_pk_bf16_f32', v(PK+4*k5+r), v(X+r), v(X+4+r))
        a('v_mfma_f32_16x16x32_bf16', v(A2+8*k5, 4), v(Mre, 4), v(PK+4*k5, 4), 0)
        a('v_mfma_f32_16x16x32_bf16', v(A2+8*k5+4, 4), v(Mim, 4), v(PK+4*k5, 4), 0)
    for k5 in (1, 2, 0):
        for r in range(4): a('v_cvt_pk_bf16_f32', v(PK+4*k5+r), v(A2+8*k5+r), v(A2+8*k5+4+r))
        for r in range(4): a('v_and_b32', v(PK+4*k5+r), 's13', v(PK+4*k5+r))
        if k5: a('ds_write_b128', v(ea0), v(PK+4*k5, 4), mods=f'offset:{1024*(k5-1)}')
        else: a('ds_write_b128', v(ea1), v(PK, 4))
    stamp(a, 4)
    subbar(a, C_A1, 8, X, X+1)
    O = A1
    for it in range(3):
        if it == 2:
            skip = newlabel('La1s'); a('s_cmp_gt_u32', 's3', 4); a('s_cbranch_scc1', skip)
        a('ds_read_b64_tr_b16', v(O+4*it, 2), v(tr2), mods=f'offset:{1024*it}')
        a('ds_read_b64_tr_b16', v(O+4*it+2, 2), v(tr2), mods=f'offset:{1024*it + 4*2624}')
        if it == 1:
            a('global_store_dwordx4', v(go), v(O, 4), WS_, mods=SC)
            a('v_add_u32', v(go), 8192, v(go))
            a('global_store_dwordx4', v(go), v(O+4, 4), WS_, mods=SC)
            a('v_add_u32', v(go), 8192, v(go))
    a('s_cmp_lt_u32', 's3', 4); a('s_cselect_b32', 'exec_hi', -1, 0)
    a('global_store_dwordx4', v(go), v(O+8, 4), WS_, mods=SC)
    a('s_mov_b64', 'exec', -1)
    a.label(skip)
    stamp(a, 5)
    a('s_lshl_b32', 's8', 's7', 7); a('s_add_u32', 's8', 's8', F_A)
    publish(a, C_A1D, 8, 's8', X, X+1)
    stamp(a, 6)
    a('s_setprio', 0)
    if TOUCH[0]: touch(a, uniq([p for p in P('B2') + P('A3') if p not in R1E(P)])[:8], 0)
    R = RegAlloc(1, 100)
    coop_tables(a, R, L_T3H, L_T3W, a3=True)
    K = gen_A3_regs(a)
    a.pad_end()
    return K

L_T3H = L_XR + 10240
L_T3W = L_XR + 15360
class A3K: pass
def gen_A3_regs(a):
    K = A3K(); PIT = 2640
    R = RegAlloc(100, 168); T = RegAlloc(1, 100)
    t = T.alloc(); n = T.alloc(); q = T.alloc(); vb = T.alloc()
    K.go = R.alloc(); K.go2 = R.alloc(); K.go3 = R.alloc(); K.lw = R.alloc()
    a('s_mul_i32', 's8', 's7', TBLK); a('s_lshl_b32', 's12', 's3', 10); a('s_add_u32', 's12', 's8', 's12')
    a('v_lshl_add_u32', v(K.go), 'v0', 4, 's12'); a('v_add_u32', v(K.go2), 8192, v(K.go))
    a('s_add_u32', 's8', 's8', TBLK - 16)
    a('v_add_u32', v(K.go3), 16384, v(K.go)); a('v_min_u32', v(K.go3), 's8', v(K.go3))
    a('v_and_b32', v(t), 1, 'v0'); a('v_mul_u32_u24', v(K.lw), 4*PIT, v(t))
    a('v_lshrrev_b32', v(t), 1, 'v0'); a('v_lshl_add_u32', v(K.lw), v(t), 2, v(K.lw))
    a('s_lshl_b32', 's8', 's3', 7); a('s_add_u32', 's8', 's8', L_EI); a('v_add_u32', v(K.lw), 's8', v(K.lw))
    K.ea0, K.ea1 = ei_addrs(a, R, PIT, dup=True)
    a('s_mul_i32', 's10', 's9', 2560)
    K.vo = row_offsets(a, R, 's10', 1024*2560)
    K.Mre, K.Mim = m2_mats(a, R, True, 2.0/(2048*640))
    K.rd = R.alloc()
    a('v_and_b32', v(n), 15, 'v0'); a('v_lshrrev_b32', v(q), 4, 'v0')
    a('v_lshrrev_b32', v(vb), 5, 'v0'); a('v_mul_u32_u24', v(vb), 1408, v(vb))
    a('v_and_b32', v(t), 1, v(q)); a('v_lshl_add_u32', v(vb), v(t), 3, v(vb)); a('v_add_u32', v(vb), 's11', v(vb))
    K.wa = d1_addrs(a, R, n, vb)
    a('v_lshl_add_u32', v(K.rd), 'v0', 4, 's11')
    K.addr_regs = [K.go, K.go2, K.go3] + K.vo
    K.TW = R.alloc(24)
    return K

def pk_A3(a, K):
    a.label('LA3'); a.pad_begin('A3')
    PIT = 2640
    R = RegAlloc(1, 100)
    t = R.alloc(); u = R.alloc(); IN = R.alloc(12); X = R.alloc(8); F = R.alloc(20)
    a('v_lshlrev_b32', v(t), 4, 'v0'); a('v_add_u32', v(t), L_T3H, v(t))
    for k in range(5): a('ds_read_b128', v(F+4*k, 4), v(t), mods=f'offset:{1024*k}')
    for k in range(6): a('ds_read_b128', v(K.TW+4*k, 4), v(t), mods=f'offset:{5120+1024*k}')
    stamp(a, 11)
    a.wait(vm=0)
    a('s_setprio', 2)
    poll_tagged(a, lambda: a('global_load_dwordx4', v(IN, 4), v(K.go), WS_, mods=SC), list(range(IN, IN+4)), t, sleep=LSLEEP)
    def loads():
        a('global_load_dwordx4', v(IN+4, 4), v(K.go2), WS_, mods=SC)
        a('global_load_dwordx4', v(IN+8, 4), v(K.go3), WS_, mods=SC)
    first = [True]
    def loads1():
        loads()
    for x in range(4): a('ds_write_b32', v(K.lw), v(IN+x), mods=f'offset:{PIT*x}')
    poll_tagged(a, loads1, list(range(IN+4, IN+12)), t)
    stamp(a, 12)
    for it in range(1, 3):
        if it == 2:
            skip = newlabel('La3s'); a('s_cmp_gt_u32', 's3', 4); a('s_cbranch_scc1', skip)
            a('s_cmp_lt_u32', 's3', 4); a('s_cselect_b32', 'exec_hi', -1, 0)
        for x in range(4): a('ds_write_b32', v(K.lw), v(IN+4*it+x), mods=f'offset:{1024*it + PIT*x}')
    a('s_mov_b64', 'exec', -1)
    a.label(skip)
    subbar(a, C_A3, 8, t, u)
    stamp(a, 13)
    Z = IN; A1 = R.alloc(24); PK = Z; Y = R.alloc(20); P0 = R.alloc(4)
    a('ds_read_b128', v(Z, 4), v(K.ea1))
    a('ds_read_b128', v(Z+4, 4), v(K.ea0)); a('ds_read_b128', v(Z+8, 4), v(K.ea0), mods='offset:1024')
    MF = 'v_mfma_f32_16x16x32_bf16'
    for k5 in range(3):
        a(MF, v(A1+8*k5, 4), v(Z+4*k5, 4), v(K.Mre, 4), 0); a(MF, v(A1+8*k5+4, 4), v(Z+4*k5, 4), v(K.Mim, 4), 0)
    for k5 in range(3):
        for r in range(4):
            re, im, c, s_ = A1+8*k5+r, A1+8*k5+4+r, K.TW+8*k5+r, K.TW+8*k5+4+r
            a('v_mul_f32', v(X+r), v(re), v(c)); a('v_mul_f32', v(X+4+r), v(im), v(c))
            a('v_fma_f32', v(X+r), '-' + v(im), v(s_), v(X+r)); a('v_fmac_f32', v(X+4+r), v(re), v(s_))
            if r & 1:
                a('v_cvt_pk_bf16_f32', v(PK+4*k5+(r >> 1)), v(X+r-1), v(X+r))
                a('v_cvt_pk_bf16_f32', v(PK+4*k5+2+(r >> 1)), v(X+4+r-1), v(X+4+r))
        if k5 == 0: a(MF, v(P0, 4), v(PK, 4), v(F, 4), 0)
        else:
            for e in range(5):
                a(MF, v(Y+4*e, 4), v(PK+4*k5, 4), v(F+4*((e*k5) % 5), 4), v(P0, 4) if k5 == 1 else v(Y+4*e, 4))
    for e in range(5):
        a('v_cvt_pk_bf16_f32', v(A1+2*e), v(Y+4*e), v(Y+4*e+1)); a('v_cvt_pk_bf16_f32', v(A1+2*e+1), v(Y+4*e+2), v(Y+4*e+3))
        a('ds_write_b64', v(K.wa[e]), v(A1+2*e, 2))
    for k in range(3): a('ds_read_b128', v(Z+4*k, 4), v(K.rd), mods=f'offset:{1024*k}')
    a('global_store_dwordx4', v(K.vo[0]), v(Z, 4), OUT_)
    a('s_mov_b32', 'exec_lo', 0xff00ffff)
    a('global_store_dwordx4', v(K.vo[1]), v(Z+4, 4), OUT_, mods='offset:1024')
    a('s_mov_b32', 'exec_lo', -1); a('s_mov_b32', 'exec_hi', 0xff)
    a('global_store_dwordx4', v(K.vo[2]), v(Z+8, 4), OUT_, mods='offset:2048')
    stamp(a, 14)
    ske = newlabel('Lep')
    a('s_mov_b64', 'exec', 1)
    a('s_or_b32', 's8', 's2', 's3'); a('s_cmp_lg_u32', 's8', 0); a('s_cbranch_scc1', ske)
    a('v_mov_b32', v(t), WS_EP); a('v_mov_b32', v(u), 's52')
    a('global_store_dword', v(t), v(u), WS_)
    a.label(ske)
    a('s_mov_b64', 'exec', -1)
    a.pad_end()

def pk_B1(a, P, K):
    a.label('LB1'); a.pad_begin('B1')
    a('s_setprio', 2)
    R = RegAlloc(1, 168)
    t = R.alloc(); u = R.alloc()
    lb, uo, pr, od = b13_lane(a, R, WS_U)
    CF = R.alloc(4); C = R.alloc(8)
    a('s_mul_i32', 's8', 's4', 640); a('v_lshl_add_u32', v(t), v(pr), 4, 's8')
    a('global_load_dwordx4', v(CF, 4), v(t), SK_)
    za = z_addrs(a, R, uo, pr)
    Zr = R.alloc(4)
    for k in range(4): a('v_mov_b32', v(Zr+k), 0)
    for ch in range(2):
        sk = newlabel('Lz')
        a('v_cmp_le_u32', 'vcc', WS_Z2, v(za[ch])); a('s_and_saveexec_b64', 's[56:57]', 'vcc'); a.nopad = True
        a('s_cbranch_execz', sk)
        a('global_store_dwordx4', v(za[ch]), v(Zr, 4), WS_, mods=SC)
        a.label(sk); a('s_mov_b64', 'exec', -1); a.nopad = False
    msk = R.alloc(); a('v_mov_b32', v(msk), 0xffff0000)
    epoch_ready(a)
    stamp(a, 2)
    for j in range(4):
        for ch in range(2):
            src = CF + 2*ch + (j >> 1)
            if j & 1: a('v_and_b32', v(C+2*j+ch), v(msk), v(src))
            else: a('v_lshlrev_b32', v(C+2*j+ch), 16, v(src))
    subbar(a, C_B1, 10, t, u, vm=True)
    stamp(a, 3)
    Kd = R.alloc(12); Vd = R.alloc(8); Kf = R.alloc(22); T = R.alloc(4); O = R.alloc(8); res = R.alloc(4)
    for i in range(11): a('ds_read_b32', v(Kd+i), v(lb), mods=f'offset:{(800 + 160*i if i < 3 else 1296 + 160*(i-3))}')
    for i in range(8): a('ds_read_b32', v(Vd+i), v(lb), mods=f'offset:{L_VI - L_KI + 160*i}')
    def unp(i):
        a('v_lshlrev_b32', v(Kf+2*i), 16, v(Kd+i)); a('v_and_b32', v(Kf+2*i+1), v(msk), v(Kd+i))
    for i in range(3): unp(i)
    for i in range(8):
        unp(i+3)
        for ch in range(2):
            acc = T + ch; dst = res + 2*(i & 1) + ch
            a('v_mul_f32', v(acc), v(Kf+2*i+ch), v(C+6+ch))
            for j in (2, 1, 0): a('v_fmac_f32', v(acc), v(Kf+2*(i+3-j)+ch), v(C+2*j+ch))
            if ch: a('v_and_b32', v(T+2+ch), v(msk), v(Vd+i))
            else: a('v_lshlrev_b32', v(T+2+ch), 16, v(Vd+i))
            a('v_mul_f32', v(dst), v(acc), v(T+2+ch))
        if i & 1:
            for ch in range(2):
                d = O+4*ch+3-(i >> 1)
                a('v_cvt_pk_bf16_f32', v(d), v(res+2+ch), v(res+ch)); a('v_and_b32', v(d), -2, v(d))
    stamp(a, 4)
    a('global_store_dwordx4', v(uo), v(O, 4), WS_, mods=SC)
    a('v_add_u32', v(uo), 4096, v(uo))
    a('global_store_dwordx4', v(uo), v(O+4, 4), WS_, mods=SC)
    stamp(a, 5)
    a('s_lshl_b32', 's8', 's4', 4); a('s_add_u32', 's8', 's8', 's6'); a('s_lshl_b32', 's8', 's8', 7); a('s_add_u32', 's8', 's8', F_B)
    publish(a, C_B1D, 10, 's8', t, u)
    stamp(a, 6)
    a('s_setprio', 0)
    a('s_mov_b32', 's9', 's7')
    a('s_cmp_ge_u32', 's3', 8); a('s_cbranch_scc1', 'LA2')
    await_cnt(a, C_B1D, 10, t, u)
    srd(a, 44, 's22', 's23', 2048*1280)
    vo = quad_voff(a, R)
    a('s_mul_i32', 's10', 's6', 128*1280); a('s_mul_i32', 's8', 's4', 160); a('s_add_u32', 's10', 's10', 's8')
    a('s_mov_b32', 'exec_hi', 0xff)
    tile_dma(a, vo, 44, L_VI)
    a('s_mov_b64', 'exec', -1)
    if TOUCH[0]: touch(a, uniq([p for p in P('B2') + P('B3') + P('A2') if p not in R1O(P)])[:8], 0)
    for r_ in K.addr_regs: a('v_mov_b32', v(r_), 0)
    a.pad_end()
    a('s_branch', 'LB2')

def pk_B3(a):
    a.label('LB3'); a.pad_begin('B3')
    R = RegAlloc(1, 168)
    t = R.alloc(); u = R.alloc()
    lb, uo, pr, od = b13_lane(a, R, WS_U)
    za = z_addrs(a, R, uo, pr)
    Z = R.alloc(8); oo = R.alloc(); rd = R.alloc(); msk = R.alloc(); a('v_mov_b32', v(msk), 0xffff0000)
    a('v_mul_u32_u24', v(t), 26, 'v0'); a('v_lshrrev_b32', v(t), 8, v(t))
    a('v_mul_u32_u24', v(oo), 2560 - 160, v(t)); a('v_lshl_add_u32', v(oo), 'v0', 4, v(oo))
    a('s_lshl_b32', 's8', 's6', 3); a('s_add_u32', 's8', 's8', 's3'); a('s_mul_i32', 's8', 's8', 16*2560)
    a('s_mul_i32', 's9', 's4', 160); a('s_add_u32', 's8', 's8', 's9'); a('s_add_u32', 's8', 's8', 1280); a('v_add_u32', v(oo), 's8', v(oo))
    a('s_mul_i32', 's8', 's3', 2*1296); a('s_add_u32', 's8', 's8', L_VI); a('v_lshl_add_u32', v(rd), 'v0', 4, 's8')
    await_cnt(a, C_U, 8, t, u)
    Qd = R.alloc(8); Qf = R.alloc(16); T = R.alloc(4); O = R.alloc(16)
    for i in range(8): a('ds_read_b32', v(Qd+i), v(lb), mods=f'offset:{L_VI - L_KI + 160*i}')
    for i in range(8):
        a('v_lshlrev_b32', v(Qf+2*i), 16, v(Qd+i)); a('v_and_b32', v(Qf+2*i+1), v(msk), v(Qd+i))
    def loads():
        for ch in range(2): a('global_load_dwordx4', v(Z+4*ch, 4), v(za[ch]), WS_, mods=SC)
    stamp(a, 11)
    a.wait(vm=0)
    a('s_setprio', 2)
    poll_tagged(a, loads, list(range(Z, Z+8)), t, sleep=LSLEEP)
    stamp(a, 12)
    for i in range(8):
        for ch in range(2):
            src = Z + 4*ch + 3 - (i >> 1)
            if i & 1: a('v_lshlrev_b32', v(T+ch), 16, v(src))
            else: a('v_and_b32', v(T+ch), v(msk), v(src))
            a('v_mul_f32', v(T+ch), v(T+ch), v(Qf+2*i+ch))
        a('v_cvt_pk_bf16_f32', v(Qd+i), v(T), v(T+1))
        a('ds_write_b32', v(lb), v(Qd+i), mods=f'offset:{L_VI - L_KI + 160*i}')
    subbar(a, C_Q, 10, t, u)
    stamp(a, 13)
    a('s_cmp_ge_u32', 's3', 8); a('s_cbranch_scc1', 'Lfin')
    a('s_mov_b32', 'exec_hi', 0xff)
    for k in range(4): a('ds_read_b128', v(O+4*k, 4), v(rd), mods=f'offset:{(k >> 1)*1296 + (k & 1)*640}')
    for k in range(4):
        a('global_store_dwordx4', v(oo), v(O+4*k, 4), OUT_)
        if k < 3: a('v_add_u32', v(oo), 4*2560, v(oo))
    a('s_mov_b64', 'exec', -1)
    stamp(a, 14)
    a.pad_end()

def h_copy(a, R, cs):
    vo = R.alloc(); Hd = R.alloc(4); t = R.alloc()
    a('s_lshl_b32', 's8', cs, 1); a('s_add_u32', 's8', 's8', 2); a('v_lshl_add_u32', v(vo), 'v0', 4, 's8')
    a('s_and_b32', 's12', cs, 1); a('s_mul_i32', 's12', 's12', 529*16); a('s_lshr_b32', 's13', cs, 1); a('s_mul_i32', 's13', 's13', 264*16)
    a('s_add_u32', 's12', 's12', 's13'); a('s_add_u32', 's12', 's12', L_H)
    a('s_mov_b32', 's46', 4096); a('s_mov_b32', 's47', 0x20000)
    for lc in range(3):
        chan_of_lc(a, 's8', lc); a('s_lshl_b32', 's8', 's8', 12)
        a('s_load_dwordx2', s(56+2*lc, 2), H_, 's8')
        a('s_add_u32', 's44', 's30', 's8'); a('s_addc_u32', 's45', 's31', 0); a('s_and_b32', 's45', 's45', 0xffff)
        a('s_add_u32', 'm0', 's12', lc*HSZ + 128)
        for b in range(4): a('buffer_load_dwordx4', v(vo), 's[44:47]', 0, mods=f'offen offset:{1024*b} lds')
    for k in range(4): a('v_mov_b32', v(Hd+k), 0)
    sk = newlabel('Lh')
    a('s_cmp_eq_u32', cs, 3); a('s_cbranch_scc1', sk)
    a('s_mul_i32', 's8', cs, USZ); a('s_add_u32', 's8', 's8', L_U + 32*144)
    a('v_lshl_add_u32', v(t), 'v0', 4, 's8')
    a('ds_write_b128', v(t), v(Hd, 4)); a('ds_write_b128', v(t), v(Hd, 4), mods='offset:1024')
    a('s_mov_b64', 'exec', 0x7f); a('ds_write_b128', v(t), v(Hd, 4), mods='offset:2048'); a('s_mov_b64', 'exec', -1)
    a.label(sk)
    a('s_lshl_b32', 's8', cs, 4); a('s_sub_u32', 's8', 48, 's8')
    a.wait(lgkm=0)
    for lc in range(3):
        a('s_lshl_b64', s(56+2*lc, 2), s(56+2*lc, 2), 's8')
        a('v_writelane_b32', v(Hd+2), s(56+2*lc), 8*lc + 7); a('v_writelane_b32', v(Hd+3), s(57+2*lc), 8*lc + 7)
    a('v_lshrrev_b32', v(t), 3, 'v0'); a('v_mul_u32_u24', v(t), HSZ - 128, v(t)); a('v_lshl_add_u32', v(t), 'v0', 4, v(t)); a('v_add_u32', v(t), 's12', v(t))
    a('s_mov_b64', 'exec', 0xffffff)
    a('ds_write_b128', v(t), v(Hd, 4))
    a('s_mov_b64', 'exec', -1)

def pk_HH(a):
    a.label('LauxO')
    a.pad_begin('HH')
    R = RegAlloc(120, 168); t = R.alloc(); u = R.alloc()
    epoch_ready(a)
    await_cnt(a, C_B1, 10, t, u)
    a('s_sub_u32', 's62', 's3', 10); a('s_lshl_b32', 's62', 's62', 1); a('s_add_u32', 's63', 's62', 2)
    a.label('Lhh')
    h_copy(a, R, 's62')
    a('s_add_u32', 's62', 's62', 1); a('s_cmp_lt_u32', 's62', 's63'); a('s_cbranch_scc1', 'Lhh')
    a('s_cmp_eq_u32', 's5', 0); a('s_cbranch_scc1', 'LhhE')
    a('v_mov_b32', v(t), L_CNT + 4*C_H); a('v_mov_b32', v(u), 2)
    a.wait(vm=0, lgkm=0)
    a('s_mov_b64', 'exec', 1); a('ds_add_u32', v(t), v(u)); a('s_mov_b64', 'exec', -1)
    stamp(a, 6)
    a('s_mov_b32', 's9', 's7')
    a.pad_end()
    a('s_branch', 'LA2')

def pk_auxE(a, P):
    a.label('LauxE'); a.pad_begin('AUXE')
    R = RegAlloc(1, 120)
    WB = 2048*321*2
    a('s_sub_u32', 's9', 's3', 8)
    vo = R.alloc(); t = R.alloc(); u = R.alloc()
    a('v_lshlrev_b32', v(vo), 4, 'v0')
    a('s_mul_i32', 's10', 's7', 1284)
    a('s_mul_i32', 's11', 's9', 2*256*642); a('s_add_u32', 's10', 's10', 's11')
    a('s_mul_i32', 's11', 's9', 2*1296); a('s_add_u32', 's11', 's11', L_A2 + 1296)
    srd(a, 44, 's18', 's19', WB); srd(a, 48, 's20', 's21', WB)
    def slot(soff, m0v_s, add):
        for pl, sd in enumerate((44, 48)):
            a('s_add_u32', 'm0', m0v_s, add + pl*11664)
            a('buffer_load_dwordx4', v(vo), s(sd, 4), soff, mods='offen lds')
            a('s_mov_b64', 'exec', 0x1ffff)
            a('buffer_load_dwordx4', v(vo), s(sd, 4), soff, mods='offen offset:1024 lds')
            a('s_mov_b64', 'exec', -1)
    slot('s10', 's11', 0)
    a('s_add_u32', 's10', 's10', 256*642)
    slot('s10', 's11', 1296)
    sk = newlabel('Lw1s')
    a('s_cmp_lg_u32', 's7', 127); a('s_cbranch_scc1', sk)
    a('s_cmp_lg_u32', 's9', 3); a('s_cbranch_scc1', sk)
    a('s_mov_b32', 's11', L_A2)
    slot('s10', 's11', 0)
    a.label(sk)
    if TOUCH[0]: touch(a, uniq(P('AUXE')[1:] + P('HH'))[:4], 8)
    bar0(a)
    k0 = R.alloc(); vc = R.alloc(); go = R.alloc(); go2 = R.alloc()
    a('v_lshrrev_b32', v(t), 3, 'v0')
    a('v_mul_u32_u24', v(k0), 65, v(t))
    a('v_mul_u32_u24', v(u), 205, v(k0)); a('v_lshrrev_b32', v(u), 14, v(u))
    a('v_mul_u32_u24', v(u), 80, v(u)); a('v_sub_u32', v(k0), v(k0), v(u))
    a('s_and_b32', 's12', 's9', 1); a('s_lshr_b32', 's13', 's9', 1)
    a('s_cmp_eq_u32', 's12', 0)
    a('s_cselect_b32', 's14', 2, -2); a('s_cselect_b32', 's15', 0, 640)
    a('s_mul_i32', 's8', 's13', 642); a('s_add_u32', 's15', 's15', 's8'); a('s_add_u32', 's15', 's15', L_A2 + 1296)
    a('s_cmp_eq_u32', 's9', 3); a('s_cselect_b32', 's8', 1, 0); a('s_add_u32', 's8', 's8', 's7')
    a('s_cmp_eq_u32', 's8', 128); a('s_cselect_b32', 's41', 1296, 0); a('s_sub_u32', 's15', 's15', 's41')
    a('s_and_b32', 's8', 's8', 127)
    a('v_bfe_u32', v(t), 'v0', 1, 2); a('v_mul_u32_u24', v(t), 80, v(t))
    a('v_and_b32', v(u), 1, 'v0'); a('v_mul_u32_u24', v(u), 11664, v(u)); a('v_add_u32', v(u), 's15', v(u))
    a('v_mad_i32_i24', v(vc), v(t), 's14', v(u))
    a('s_mul_i32', 's8', 's8', TBLK); a('s_add_u32', 's8', 's8', WS_W)
    a('s_lshl_b32', 's41', 's9', 11); a('s_add_u32', 's41', 's41', 's8')
    a('v_add_u32', v(go), 's41', v(vo))
    a('s_mul_i32', 's41', 's9', 9*128); a('s_add_u32', 's41', 's41', 's8'); a('s_add_u32', 's41', 's41', 128*128)
    a('v_add_u32', v(go2), 's41', v(vo))
    ads = [R.alloc() for _ in range(6)]
    for it, C in enumerate((16, 56, 32, 72, 0, 40)):
        if C:
            a('v_add_u32', v(t), C, v(k0)); a('v_subrev_u32', v(u), 80, v(t)); a('v_min_u32', v(t), v(t), v(u))
            a('v_mad_i32_i24', v(ads[it]), v(t), 's14', v(vc))
        else: a('v_mad_i32_i24', v(ads[it]), v(k0), 's14', v(vc))
    O = R.alloc(24); Hh = R.alloc(24)
    epoch_ready(a)
    stamp(a, 2)
    subbar(a, C_W1, 4, t, u, vm=True)
    stamp(a, 3)
    def comb(it):
        for k in range(4): a('v_lshl_or_b32', v(O+4*it+k), v(Hh+4*it+k), 16, v(O+4*it+k))
    for it in range(6):
        for i in range(8): a('ds_read_u16', v((Hh if i & 1 else O) + 4*it + (i >> 1)), v(ads[it]), mods=f'offset:{1296*i}')
        if it: comb(it - 1)
        if it == 2:
            for k in range(2): a('global_store_dwordx4', v(go), v(O+4*k, 4), WS_, mods=f'offset:{1024*k} {SC}')
            a('v_add_u32', v(go), 8192, v(go))
        if it == 4:
            for k in range(2): a('global_store_dwordx4', v(go), v(O+8+4*k, 4), WS_, mods=f'offset:{1024*k} {SC}')
    comb(5)
    a('global_store_dwordx4', v(go2), v(O+16, 4), WS_, mods=SC)
    a('s_mov_b64', 'exec', 0xff)
    a('global_store_dwordx4', v(go2), v(O+20, 4), WS_, mods=f'offset:1024 {SC}')
    a('s_mov_b64', 'exec', -1)
    stamp(a, 4)
    a('s_lshl_b32', 's8', 's7', 7); a('s_add_u32', 's8', 's8', F_W)
    publish(a, C_W1D, 4, 's8', t, u)
    stamp(a, 5)
    a('s_mov_b32', 's62', 's9'); a('s_add_u32', 's63', 's9', 1)
    a('s_branch', 'Lhh')
    a.label('LhhE')
    arrive(a, C_H, t, u, vm=True)
    stamp(a, 6)
    a('s_add_u32', 's9', 's7', 128)
    a('s_cmp_ge_u32', 's9', 164); a('s_cbranch_scc1', 'Lfin')
    await_cnt(a, C_W1D, 4, t, u)
    await_cnt(a, C_A1, 8, t, u)
    a.pad_end()

def pk_A2(a, P):
    a.label('LA2'); a.pad_begin('A2')
    if TOUCH[0]: touch(a, P('A2')[1:5], 8)
    R = RegAlloc(1, 168)
    t = R.alloc(); u = R.alloc(); go = R.alloc(); lw = R.alloc(); lr0 = R.alloc(); lr1 = R.alloc(); msk = R.alloc()
    X = R.alloc(8)
    B0 = R.alloc(32); B1 = R.alloc(32); Z = R.alloc(16); Wp = R.alloc(16)
    C = R.alloc(8); Sm = R.alloc(8); N = R.alloc(8); TC = R.alloc(16); TS = R.alloc(16)
    fa, fw, o, h, of, hf, t2 = [Z + k for k in range(7)]
    a('s_sub_u32', 's10', 's3', 8)
    a('v_lshrrev_b32', v(t), 3, 'v0'); a('v_lshl_add_u32', v(t), 's10', 3, v(t))
    a('s_mov_b32', 's8', TBLK); a('v_mul_lo_u32', v(go), v(t), 's8')
    a('v_and_b32', v(u), 7, 'v0'); a('v_lshl_add_u32', v(go), v(u), 4, v(go))
    a('s_lshl_b32', 's8', 's9', 7); a('v_add_u32', v(go), 's8', v(go))
    for it in range(4):
        a('s_add_u32', s(44+2*it), 's38', 32*TBLK*it); a('s_addc_u32', s(45+2*it), 's39', 0)
        a('s_add_u32', s(56+2*it), 's38', WS_W + 32*TBLK*it); a('s_addc_u32', s(57+2*it), 's39', 0)
    def swz(dst, line, piece):
        a('v_lshrrev_b32', v(dst), 1, v(line)); a('v_and_b32', v(t2), 1, v(line)); a('v_xor_b32', v(dst), v(dst), v(t2))
        a('v_xor_b32', v(dst), piece, v(dst)); a('v_and_b32', v(dst), 7, v(dst)); a('v_lshlrev_b32', v(dst), 4, v(dst))
        a('v_lshl_add_u32', v(dst), v(line), 7, v(dst)); a('v_add_u32', v(dst), L_A2, v(dst))
    swz(lw, t, v(u))
    a('s_sub_u32', 's8', 's9', 128); a('s_mul_i32', 's8', 's8', 57); a('s_lshr_b32', 's8', 's8', 9)
    a('s_bfe_u32', 's11', 's9', (2 << 16) | 4); a('s_cmp_lt_u32', 's9', 128); a('s_cselect_b32', 's8', 's11', 's8')
    a('v_and_b32', v(u), 3, 'v0'); a('v_lshl_add_u32', v(u), v(u), 5, v(t))
    a('v_lshlrev_b32', v(fa), 7, v(u)); a('v_add_u32', v(fa), F_A, v(fa))
    a('s_cmp_eq_u32', 's8', 3); a('s_cselect_b32', 's11', 127, 0)
    a('v_add_u32', v(u), 's11', v(u)); a('v_and_b32', v(u), 127, v(u)); a('v_lshlrev_b32', v(fw), 7, v(u)); a('v_add_u32', v(fw), F_W, v(fw))
    a('v_and_b32', v(u), 4, 'v0'); a('v_cmp_eq_u32', 'vcc', 0, v(u)); a('v_cndmask_b32', v(fa), v(fw), v(fa), 'vcc')
    a('s_and_b32', 's8', 's8', 1); a('s_cmp_eq_u32', 's8', 0)
    a('s_cselect_b32', 's14', 0, 0x80008000); a('s_lshl_b32', 's11', 's8', 31); a('s_or_b32', 's11', 's11', fl(1/32))
    a('v_bfe_u32', v(o), 'v0', 3, 1); a('v_and_b32', v(t), 3, 'v0'); a('v_lshl_add_u32', v(o), v(o), 2, v(t))
    a('v_bfe_u32', v(t), 'v0', 4, 1); a('v_lshl_add_u32', v(o), v(o), 1, v(t))
    a('v_bfe_u32', v(t), 'v0', 2, 1); a('v_lshl_add_u32', v(o), v(o), 1, v(t))
    a('v_lshrrev_b32', v(h), 5, 'v0')
    a('v_lshl_add_u32', v(t), v(h), 5, v(o))
    a('s_lshl_b32', 's8', 's10', 1)
    swz(lr0, t, 's8'); a('v_xor_b32', v(lr1), 16, v(lr0))
    a('v_cvt_f32_u32', v(of), v(o)); a('v_mul_f32', v(of), 's11', v(of))
    a('v_cvt_f32_u32', v(hf), v(h)); a('v_mul_f32', v(hf), v(hf), v(of))
    for kap in range(2):
        for jj in range(4):
            for e in range(2):
                idx = 2*kap + 4*(2*jj + e)
                if idx: a('v_fmamk_f32', v(X+e), v(of), fl(float(idx)), v(hf)); src = X+e
                else: src = hf
                sincos(a, src, X+2+e, X+4+e)
                vv = 8*kap + 2*jj + e
                a('v_mul_f32', v(X+6+e), fl(1/32), v(src))
                sincos(a, X+6+e, TC+vv, TS+vv)
            a('v_cvt_pk_bf16_f32', v(C+4*kap+jj), v(X+2), v(X+3))
            a('v_cvt_pk_bf16_f32', v(Sm+4*kap+jj), v(X+4), v(X+5))
            a('v_xor_b32', v(N+4*kap+jj), 0x80008000, v(Sm+4*kap+jj))
    a('v_mov_b32', v(msk), 0xffff0000)
    a('s_setprio', 3)
    stamp(a, 7)
    poll_flags(a, fa, t)
    ST, SW = B0, B1
    for it in range(4): a('global_load_dwordx4', v(ST+4*it, 4), v(go), s(44+2*it, 2), mods=SC)
    for it in range(4): a('global_load_dwordx4', v(SW+4*it, 4), v(go), s(56+2*it, 2), mods=SC)
    stamp(a, 8)
    for it in range(4): a('ds_write_b128', v(lw), v(ST+4*it, 4), mods=f'offset:{4096*it}')
    for it in range(4): a('ds_write_b128', v(lw), v(SW+4*it, 4), mods=f'offset:{16384+4096*it}')
    stamp(a, 9)
    subbar(a, C_A2a, 4, t, u)
    for kap in range(2):
        for ri, ad in enumerate((lr0, lr1)): a('ds_read_b128', v(Z+8*kap+4*ri, 4), v(ad), mods=f'offset:{8192*kap}')
    for kap in range(2):
        for ri, ad in enumerate((lr0, lr1)): a('ds_read_b128', v(Wp+8*kap+4*ri, 4), v(ad), mods=f'offset:{16384+8192*kap}')
    MF = 'v_mfma_f32_32x32x16_bf16'
    def mm(kap, dataA, inv, d):
        dR, dI = d, d+16
        zr, zi = v(Z+8*kap, 4), v(Z+8*kap+4, 4)
        c, p, n = v(C+4*kap, 4), v(Sm+4*kap, 4), v(N+4*kap, 4)
        if inv: p, n = n, p
        for k, (dd, z, m) in enumerate(((dR, zr, c), (dI, zi, c), (dR, zi, p), (dI, zr, n))):
            cin = 0 if (kap == 0 and k < 2) else v(dd, 16)
            if dataA: a(MF, v(dd, 16), z, m, cin)
            else: a(MF, v(dd, 16), m, z, cin)
    mm(0, True, False, B0); mm(1, True, False, B0)
    for i in range(8): a('v_xor_b32', v(Wp + (i >> 2)*8 + 4 + (i & 3)), 's14', v(Wp + (i >> 2)*8 + 4 + (i & 3)))
    bufs = [B0, B1]
    for st in range(3):
        sb, db = bufs[st & 1], bufs[(st + 1) & 1]
        for kap in range(2):
            for jj in range(4):
                vv = 8*kap + 2*jj
                if st == 1:
                    c, s_ = X+4, X+6
                    for dst, pl in ((c, 0), (s_, 1)):
                        src = Wp + 8*kap + 4*pl + jj
                        a('v_lshlrev_b32', v(dst), 16, v(src)); a('v_and_b32', v(dst+1), v(msk), v(src))
                else: c, s_ = TC+vv, TS+vv
                cmul_pk(a, X, X+2, sb+vv, sb+16+vv, c, s_, st == 0)
                a('v_cvt_pk_bf16_f32', v(Z+8*kap+jj), v(X), v(X+1))
                a('v_cvt_pk_bf16_f32', v(Z+8*kap+4+jj), v(X+2), v(X+3))
            mm(kap, st == 1, st >= 1, db)
    sb = bufs[1]
    for kap in range(2):
        for ih, ad in enumerate((lr0, lr1)):
            for x in range(4):
                vv = 8*kap + 4*ih + x
                a('v_cvt_pk_bf16_f32', v(Z+vv), v(sb+vv), v(sb+16+vv)); a('v_or_b32', v(Z+vv), 1, v(Z+vv))
            a('ds_write_b128', v(ad), v(Z+8*kap+4*ih, 4), mods=f'offset:{8192*kap}')
    stamp(a, 10)
    subbar(a, C_A2b, 4, t, u)
    for it in range(4): a('ds_read_b128', v(Wp+4*it, 4), v(lw), mods=f'offset:{4096*it}')
    for it in range(4): a('global_store_dwordx4', v(go), v(Wp+4*it, 4), s(44+2*it, 2), mods=SC)
    a('s_setprio', 0)
    stamp(a, 13)
    a.pad_end()
    a('s_cmp_eq_u32', 's5', 0); a('s_cbranch_scc1', 'Lfin')
    a('s_cmp_lt_u32', 's3', 10); a('s_cbranch_scc1', 'LB3')
    a('s_branch', 'Lfin')

import pk
LSLEEP = 4
def pk_B2(a, K):
    return pk.pk_B2(a)

def build(stamps=False):
    roles.STAMPS[0] = stamps
    pads = {}
    for it in range(8):
        roles._lbl[0] = 0
        P = lambda r: pads.get(r, [])
        a = Asm()
        a.raw(f"; @launch grid=(256,1,1) block=(768,1,1) lds={LDS_TOTAL}")
        a.raw('.amdgcn_target "amdgcn-amd-amdhsa--gfx950"\n.text')
        entry(a, P)
        K = pk_A1(a, P)
        pk_B2(a, K)
        pk_A3(a, K); a('s_branch', 'Lfin')
        pk_B1(a, P, K)
        pk_HH(a)
        pk_auxE(a, P)
        pk_A2(a, P)
        pk_B3(a)
        a.label('Lfin'); stamp_flush(a, 0); a('s_endpgm')
        a.raw('.p2align 10')
        a.raw(kernel_desc(KNAME, 168, 100))
        hi = max(0, (a.bytes + 1023)//1024*1024 - 12288)
        if a.pads == pads and hi == CODE_HI[0]: break
        pads = a.pads; CODE_HI[0] = hi
    print({k: len(x) for k, x in pads.items()}, 'est bytes', a.bytes, 'instrs', a.nins)
    return a.text()

if __name__ == '__main__':
    open('pk2.s', 'w').write(build(False))
    open('pk2st.s', 'w').write(build(True))
    TOUCH[0] = False
    open('pk2nt.s', 'w').write(build(False)); open('pk2ntst.s', 'w').write(build(True))
    TOUCH[0] = True
    for k in sys.argv[1:]:
        roles.AMP[0] = int(k); open(f'pk2amp{k}.s', 'w').write(build(True))
```

```python
import sys
from asmlib import *
import roles
from roles import (X_, WR_, WI_, Q_, K_, V_, SK_, H_, D_, OUT_, DBG_, WS_, WS_T, WS_W, WS_U, WS_F, TBLK, HSZ, newlabel, stamp, stamp_flush,
                   sincos, row_offsets, d1_addrs, srd, quad_voff, STAMPS)
KNAME = "concat_heads__spectral_gfnet__ssm_conv_h3__prompt_kernel"
F_A, F_W, F_B = WS_F, WS_F + 1024*128, WS_F + 2048*128
WS_EP = WS_F + 2176*128
SPIN = 1 << 15
SC = 'sc1'
L_CNT = 0
L_H = 256
USZ = 40*144
L_U = L_H + 3*HSZ
L_RED = (L_U + 3*USZ + 127)//128*128
REDSZ = 8192
L_P1 = L_RED + 3*REDSZ - 8192 + 8192
L_P1 = (L_P1 + 255)//256*256
L_XR = L_P1; L_EI = L_XR + 8*3072; L_KI = L_P1; L_VI = L_KI + 17*1296
P1SZ = max(8*3072 + 8*2640 + 1024, 33*1296)
L_A2 = (L_P1 + P1SZ + 255)//256*256
A2SZ = 23552
LDS_TOTAL = L_A2 + A2SZ
assert LDS_TOTAL <= 163840, LDS_TOTAL
L_A2T = L_A2
L_A2W = (L_H + 2*HSZ + 255)//256*256
assert L_A2W + 16384 + 0 <= L_H + 3*HSZ + 0, (L_A2W, L_H + 3*HSZ)
L_TABH = L_RED + 2*REDSZ
L_TW = L_RED
L_T3H = L_U + 2*USZ
L_T3W = L_RED + 2*REDSZ
L_STG_E = L_A2 + 16384
roles.L_CNT, roles.L_EI, roles.L_KI, roles.L_VI, roles.L_XR = L_CNT, L_EI, L_KI, L_VI, L_XR
from roles import subbar, arrive, await_cnt, ei_addrs, b13_lane, tile_dma
C_A1, C_A1D, C_W1, C_W1D, C_A3, C_B1, C_B1D, C_H, C_Q, C_QL = 0, 1, 2, 3, 4, 5, 6, 7, 8, 9
C_A2 = 10
C_U = 20
C_X = 23
C_H0 = 18
C_RED = 24
import pk2
pk2.STAMPS = STAMPS
from pk2 import coop_tables, m2_mats, SEQ, A3K
XDELAY = [0]
WGATE = [8]
HGATE = [1]
GATE = [False]
ZGATE = [True]
LSLEEP = [4]
FSLEEP = [0, 0]
ONEPOLL = [True]

def lds_cnt_add(a, va, vb, rtn=False):
    a('s_mov_b64', 'exec', 1)
    if rtn: a('ds_add_rtn_u32', v(vb), v(va), v(vb))
    else: a('ds_add_u32', v(va), v(vb))
    a('s_mov_b64', 'exec', -1)

def subbar_s(a, saddr, n, va, vb, vm=False):
    a('v_mov_b32', v(va), saddr); a('v_mov_b32', v(vb), 1)
    a.wait(vm=0 if vm else None, lgkm=0)
    lds_cnt_add(a, va, vb, True)
    a('v_readfirstlane_b32', 's40', v(vb))
    done = newlabel('Lbd'); loop = newlabel('Lbl')
    a('s_cmp_ge_u32', 's40', n - 1); a('s_cbranch_scc1', done)
    a.label(loop)
    a('ds_read_b32', v(vb), v(va)); a('v_readfirstlane_b32', 's40', v(vb))
    a('s_cmp_lt_u32', 's40', n); a('s_cbranch_scc1', loop)
    a.label(done)

def publish(a, cid, n, flag_s, va, vb, ep='s52'):
    a('v_mov_b32', v(va), L_CNT + 4*cid); a('v_mov_b32', v(vb), 1)
    a.wait(vm=0, lgkm=0)
    a('s_mov_b64', 'exec', 1)
    a('ds_add_rtn_u32', v(vb), v(va), v(vb))
    a('v_readfirstlane_b32', 's40', v(vb))
    sk = newlabel('Lp')
    a('s_cmp_lg_u32', 's40', n - 1); a('s_cbranch_scc1', sk)
    if ep == 's52':
        a('s_mov_b64', 'exec', 0xff)
        a('v_lshl_add_u32', v(va), 'v0', 14, flag_s)
    else: a('v_mov_b32', v(va), flag_s)
    a('v_mov_b32', v(vb), ep)
    a('global_store_dword', v(va), v(vb), WS_, mods=SC)
    a.label(sk)
    a('s_mov_b64', 'exec', -1)

def poll_flags(a, vaddr, vt, ep='s52'):
    lp = newlabel('Lf'); dn = newlabel('Lf')
    a('s_mov_b32', 's41', SPIN)
    a.label(lp)
    a('global_load_dword', v(vt), v(vaddr), WS_, mods=SC)
    a('s_sub_u32', 's41', 's41', 1)
    a.wait(vm=0)
    a('v_cmp_ne_u32', 'vcc', ep, v(vt))
    a('s_cbranch_scc1', dn)
    sl = FSLEEP[0] if ep == 's52' else FSLEEP[1]
    if sl:
        a('s_cbranch_vccz', dn); a('s_sleep', sl); a('s_branch', lp)
    else: a('s_cbranch_vccnz', lp)
    a.label(dn)
S_M, S_C = 's100', 's101'
def tag_consts(a):
    a('s_mov_b32', S_M, 0xfffeffff); a('s_mov_b32', S_C, 0x10000)
def tag1(a, r, j):
    if j == 0: a('v_and_b32', v(r), 0xfffefffe, v(r))
    elif j == 1: a('v_and_or_b32', v(r), v(r), S_M, 1)
    elif j == 2: a('v_and_or_b32', v(r), v(r), -2, S_C)
    else: a('v_or_b32', v(r), 0x10001, v(r))
def tag2(a, r, j):
    if j & 1: a('v_and_b32', v(r), -2, v(r))
    else: a('v_or_b32', v(r), 1, v(r))
def poll_tags(a, loads, regs, vt, kind, sleep, tagsg=None, pre=False):
    lp = newlabel('Lg'); dn = newlabel('Lg')
    a('s_mov_b32', 's41', SPIN)
    if pre:
        ck = newlabel('Lg'); a('s_branch', ck); a.dead = False
    a.label(lp)
    loads()
    if pre: a.label(ck)
    a('s_sub_u32', 's41', 's41', 1)
    first = True
    for b in regs:
        if kind == 2:
            if first: a('v_bitop3_b32', v(vt), v(b), v(b+1), v(b+1), mods='bitop3:0xcf')
            else: a('v_bitop3_b32', v(vt), v(vt), v(b), v(b+1), mods='bitop3:0xfb')
            a('v_bitop3_b32', v(vt), v(vt), v(b+2), v(b+3), mods='bitop3:0xfb')
        elif kind == 1:
            if first: a('v_bitop3_b32', v(vt), v(b+3), v(b), v(b), mods='bitop3:0xcf')
            else: a('v_bitop3_b32', v(vt), v(vt), v(b+3), v(b), mods='bitop3:0xfb')
            a('v_bitop3_b32', v(vt), v(vt), v(b+1), 1, mods='bitop3:0xf6')
            a('v_bitop3_b32', v(vt), v(vt), v(b+2), S_C, mods='bitop3:0xf6')
        else:
            for j in range(4):
                if first and j == 0: a('v_xor_b32', v(vt), s(tagsg), v(b))
                else: a('v_bitop3_b32', v(vt), v(vt), v(b+j), s(tagsg+j), mods='bitop3:0xf6')
        first = False
    a('v_and_b32', v(vt), 1 if kind == 2 else 0x10001, v(vt))
    a('v_cmp_ne_u32', 'vcc', 0, v(vt))
    a('s_cbranch_scc1', dn)
    a('s_cbranch_vccz', dn); a('s_sleep', sleep); a('s_branch', lp)
    a.label(dn)
def wtag_regs(a, base):
    for j in range(4):
        a('s_add_u32', 's8', 's52', j); a('s_and_b32', s(base+j), 's8', 1); a('s_bitcmp1_b32', 's8', 1)
        a('s_cselect_b32', 's8', S_C, 0); a('s_or_b32', s(base+j), s(base+j), 's8')
def drained(a, cid, va, vb):
    arrive(a, cid, va, vb, vm=True)
TAGX = [False, False]
XSLEEP = [4]
def poll_tag0(a, loads, regs, vt, sleep=0):
    lp = newlabel('Lg'); dn = newlabel('Lg')
    a('s_mov_b32', 's41', SPIN)
    a.label(lp)
    loads()
    a('s_sub_u32', 's41', 's41', 1)
    a('v_or_b32', v(vt), v(regs[0]), v(regs[1]))
    for k in range(2, len(regs), 2): a('v_or3_b32', v(vt), v(vt), v(regs[k]), v(regs[k+1]))
    a('v_and_b32', v(vt), 1, v(vt))
    a('v_cmp_ne_u32', 'vcc', 0, v(vt))
    a('s_cbranch_scc1', dn)
    if sleep:
        a('s_cbranch_vccz', dn); a('s_sleep', sleep); a('s_branch', lp)
    else: a('s_cbranch_vccnz', lp)
    a.label(dn)

def epoch_ready(a):
    a.wait(lgkm=0); a('s_add_u32', 's52', 's52', 1)
def bar0(a):
    a.wait(lgkm=0)
    a('s_add_u32', 's54', 's38', WS_EP); a('s_addc_u32', 's55', 's39', 0)
    a('s_load_dword', 's52', 's[54:55]', 0)
    stamp(a, 1)
    a('s_barrier')

CODE_HI = [6144]
def entry(a):
    a.raw(f".globl {KNAME}\n.p2align 12\n.type {KNAME},@function\n{KNAME}:")
    a('s_cmp_ge_u32', 's2', 256); a('s_cbranch_scc1', 'Lexit')
    if STAMPS[0]:
        for i in range(1, 16): a('s_mov_b32', s(64+2*i), 0)
    stamp(a, 0)
    a('s_load_dwordx16', 's[16:31]', 's[0:1]', 0)
    a('s_load_dwordx8', 's[32:39]', 's[0:1]', 64)
    a('s_getpc_b64', 's[42:43]'); a('s_and_b32', 's42', 's42', 0xfffff000)
    a('s_bitcmp1_b32', 's2', 3); a('s_cselect_b32', 's8', CODE_HI[0], 0); a('s_add_u32', 's42', 's42', 's8'); a('s_addc_u32', 's43', 's43', 0)
    a('v_lshlrev_b32', 'v2', 4, 'v0'); a('v_mov_b32', 'v3', 's43')
    a('v_add_co_u32', 'v2', 'vcc', 's42', 'v2'); a('v_addc_co_u32', 'v3', 'vcc', 0, 'v3', 'vcc')
    a('global_load_dwordx4', 'v[164:167]', 'v[2:3]', 'off')
    a('v_lshrrev_b32', 'v1', 6, 'v0'); a('v_and_b32', 'v0', 63, 'v0')
    a('v_readfirstlane_b32', 's3', 'v1')
    a('s_and_b32', 's4', 's2', 7); a('s_bfe_u32', 's5', 's2', (1 << 16) | 3); a('s_lshr_b32', 's6', 's2', 4)
    a('s_lshl3_add_u32', 's7', 's6', 's4')
    tag_consts(a)
    a('s_mul_i32', 's53', 's4', 80); a('s_mul_i32', 's8', 's6', 5); a('s_add_u32', 's53', 's53', 's8'); a('s_lshl1_add_u32', 's53', 's5', 's53')
    a('v_lshlrev_b32', 'v1', 2, 'v0'); a('v_mov_b32', 'v2', 0)
    a('ds_write_b32', 'v1', 'v2', mods=f'offset:{L_CNT}')
    a('s_cmp_lg_u32', 's5', 0); a('s_cbranch_scc1', 'LentO')
    a('s_cmp_ge_u32', 's3', 8); a('s_cbranch_scc1', 'LauxE')
    R = RegAlloc(1, 160)
    a('s_lshl_b32', 's9', 's3', 7); a('s_add_u32', 's9', 's9', 's7'); a('s_mul_i32', 's10', 's9', 1280)
    vo = row_offsets(a, R, 's10', 1024*1280)
    a('s_mul_i32', 's11', 's3', 3072); a('s_add_u32', 's11', 's11', L_XR); a('s_mov_b32', 'm0', 's11')
    if XDELAY[0]: a('s_sleep', XDELAY[0])
    for t in range(3): a('global_load_lds_dwordx4', v(vo[t]), X_, mods=f'offset:{1024*t}')
    a('s_branch', 'LA1')
    a.label('LentO')
    a('s_cmp_ge_u32', 's3', 9); a('s_cbranch_scc1', 'Lbar0')
    R = RegAlloc(1, 160)
    vo = quad_voff(a, R); t = R.alloc()
    a('s_mul_i32', 's10', 's6', 128*1280); a('s_mul_i32', 's8', 's4', 160); a('s_add_u32', 's10', 's10', 's8')
    a('s_sub_u32', 's8', 's10', 4*1280); a('v_add_u32', v(t), 's8', v(vo))
    NB = 2048*1280
    srd(a, 44, 's24', 's25', NB); srd(a, 48, 's26', 's27', NB)
    a('s_mov_b32', 'exec_hi', 0xff)
    a('s_cmp_eq_u32', 's3', 8); a('s_cbranch_scc1', 'LentH')
    a('s_mul_i32', 's11', 's3', 16*1280); a('s_add_u32', 's11', 's11', 's10')
    a('s_mul_i32', 's12', 's3', 2*1296); a('s_add_u32', 's12', 's12', L_KI + 1296)
    for k in range(4):
        a('s_mov_b32', 'm0', 's12')
        a('buffer_load_dwordx4', v(vo), 's[44:47]', 's11', mods='offen lds')
        a('s_add_u32', 'm0', 's12', L_VI - L_KI - 1296)
        a('buffer_load_dwordx4', v(vo), 's[48:51]', 's11', mods='offen lds')
        if k < 3:
            a('s_addk_i32', 's11', 4*1280); a('s_addk_i32', 's12', 640 if k != 1 else 656)
    a('s_branch', 'LentX')
    a.label('LentH')
    a('s_mov_b32', 'm0', L_KI + 640)
    a('buffer_load_dwordx4', v(t), 's[44:47]', 0, mods='offen lds')
    a.label('LentX')
    a('s_mov_b64', 'exec', -1)
    a.label('Lbar0')
    bar0(a)
    a('s_cmp_ge_u32', 's3', 10); a('s_cbranch_scc1', 'LauxO')
    a('s_branch', 'LB1')
    a.label('Lexit')
    a('s_endpgm')

def h_copy(a, R, slc, sc):
    mk = R.mark()
    vo = R.alloc(); Hd = R.alloc(4); t = R.alloc()
    a('s_lshl_b32', 's8', sc, 1); a('s_add_u32', 's8', 's8', 2); a('v_lshl_add_u32', v(vo), 'v0', 4, 's8')
    a('s_and_b32', 's12', sc, 1); a('s_mul_i32', 's12', 's12', 529*16); a('s_lshr_b32', 's13', sc, 1); a('s_mul_i32', 's13', 's13', 264*16)
    a('s_add_u32', 's12', 's12', 's13'); a('s_mul_i32', 's13', slc, HSZ); a('s_add_u32', 's12', 's12', 's13'); a('s_add_u32', 's12', 's12', L_H)
    a('s_add_u32', 's8', 's53', slc); a('s_lshl_b32', 's8', 's8', 12)
    a('s_load_dwordx2', 's[56:57]', H_, 's8')
    a('s_add_u32', 's44', 's30', 's8'); a('s_addc_u32', 's45', 's31', 0); a('s_and_b32', 's45', 's45', 0xffff)
    a('s_mov_b32', 's46', 4096); a('s_mov_b32', 's47', 0x20000)
    a('s_add_u32', 'm0', 's12', 128)
    for b in range(4): a('buffer_load_dwordx4', v(vo), 's[44:47]', 0, mods=f'offen offset:{1024*b} lds')
    for k in range(4): a('v_mov_b32', v(Hd+k), 0)
    sk = newlabel('Lh')
    a('s_cmp_lg_u32', sc, 0); a('s_cbranch_scc1', sk)
    a('s_mul_i32', 's8', slc, USZ); a('s_add_u32', 's8', 's8', L_U + 32*144)
    a('v_lshl_add_u32', v(t), 'v0', 4, 's8')
    a('ds_write_b128', v(t), v(Hd, 4))
    a('s_mov_b64', 'exec', 0xff); a('ds_write_b128', v(t), v(Hd, 4), mods='offset:1024'); a('s_mov_b64', 'exec', -1)
    a.label(sk)
    a('s_lshl_b32', 's8', sc, 4); a('s_sub_u32', 's8', 48, 's8')
    a('v_lshl_add_u32', v(t), 'v0', 4, 's12')
    a.wait(lgkm=0)
    a('s_lshl_b64', 's[56:57]', 's[56:57]', 's8')
    a('v_writelane_b32', v(Hd+2), 's56', 7); a('v_writelane_b32', v(Hd+3), 's57', 7)
    a('s_mov_b64', 'exec', 0xff)
    a('ds_write_b128', v(t), v(Hd, 4))
    a('s_mov_b64', 'exec', -1)
    R.release(mk)

def h_srd(a, slc):
    a('s_add_u32', 's8', 's53', slc); a('s_lshl_b32', 's8', 's8', 12)
    a('s_add_u32', 's44', 's30', 's8'); a('s_addc_u32', 's45', 's31', 0); a('s_and_b32', 's45', 's45', 0xffff)
    a('s_mov_b32', 's46', 4096); a('s_mov_b32', 's47', 0x20000)
def h_load(a, D, vo, vo2, imm):
    a('buffer_load_dwordx4', v(D, 4), v(vo), 's[44:47]', 0, mods=f'offen offset:{imm}')
    a('buffer_load_dwordx2', v(D+4, 2), v(vo2), 's[44:47]', 0, mods=f'offen offset:{imm}')
def h_expand(a, D, T, wa, imm):
    CB = [0, 529*16, 264*16, 793*16]
    for i in range(4): a('v_alignbit_b32', v(T+i), v(D+i+1), v(D+i), 16)
    a('ds_write_b128', v(wa), v(T, 4), mods=f'offset:{imm + CB[0]}')
    for i in range(4): a('v_alignbit_b32', v(T+4+i), v(D+i+2), v(D+i+1), 16)
    a('ds_write_b128', v(wa), v(T+4, 4), mods=f'offset:{imm + CB[2]}')
    a('ds_write_b128', v(wa), v(D+2, 4), mods=f'offset:{imm + CB[3]}')
    for i in range(4): a('v_mov_b32', v(T+8+i), v(D+i+1))
    a('ds_write_b128', v(wa), v(T+8, 4), mods=f'offset:{imm + CB[1]}')
def u_pad(a, slc, Zr, t):
    a('s_mul_i32', 's8', slc, USZ); a('s_add_u32', 's8', 's8', L_U + 32*144)
    a('v_lshl_add_u32', v(t), 'v0', 4, 's8')
    a('ds_write_b128', v(t), v(Zr, 4))
    a('s_mov_b64', 'exec', 0xff); a('ds_write_b128', v(t), v(Zr, 4), mods='offset:1024'); a('s_mov_b64', 'exec', -1)

def pk_A1(a):
    a.label('LA1')
    a('s_setprio', 2)
    R = RegAlloc(1, 150)
    coop_tables(a, R, L_TABH, L_TW, a3=False)
    bar0(a)
    HE = 152
    R = RegAlloc(1, 152)
    rd = R.alloc(); va = R.alloc(); vb = R.alloc(); t = R.alloc(); q = R.alloc()
    Hs = R.alloc(16); Gs = R.alloc(16); TW = R.alloc(24)
    a('v_lshlrev_b32', v(rd), 4, 'v0'); a('v_add_u32', v(t), L_TABH, v(rd)); a('v_add_u32', v(rd), L_TW, v(rd))
    Mre, Mim = m2_mats(a, R, False, None)
    epoch_ready(a)
    for k in (3, 0, 1, 2):
        a('ds_read_b128', v(Hs+4*k, 4), v(t), mods=f'offset:{1024*k}'); a('ds_read_b128', v(Gs+4*k, 4), v(t), mods=f'offset:{4096+1024*k}')
    for k in (2, 3, 4, 5, 0, 1): a('ds_read_b128', v(TW+4*k, 4), v(rd), mods=f'offset:{1024*k}')
    a('v_lshrrev_b32', v(va), 2, 'v0'); a('v_lshrrev_b32', v(q), 4, 'v0')
    a('v_bfe_u32', v(vb), 'v0', 1, 1); a('v_mul_u32_u24', v(vb), 1408, v(vb))
    a('v_and_b32', v(t), 1, 'v0'); a('v_lshl_add_u32', v(vb), v(t), 3, v(vb)); a('v_add_u32', v(vb), 's11', v(vb))
    tra = d1_addrs(a, R, va, vb)
    Dr = R.alloc(10)
    a('s_lshr_b32', 's14', 's3', 2); a('s_and_b32', 's15', 's3', 3); h_srd(a, 's14')
    a('s_lshl_b32', 's8', 's15', 10); a('v_lshl_add_u32', v(Dr), 'v0', 4, 's8'); a('v_lshlrev_b32', v(Dr+1), 4, 'v0')
    a('v_subrev_u32', v(Dr+2), 128, v(Dr+1)); a('v_subrev_u32', v(Dr+3), 112, v(Dr+1))
    a('buffer_load_dwordx4', v(HE, 4), v(Dr), 's[44:47]', 0, mods='offen'); a('buffer_load_dwordx2', v(HE+4, 2), v(Dr), 's[44:47]', 0, mods='offen offset:16')
    h_load(a, HE+6, Dr+2, Dr+3, 0)
    a('v_mov_b32', v(va), L_CNT + 4*C_X); a('v_mov_b32', v(vb), 1)
    stamp(a, 2)
    a.wait(vm=4)
    stamp(a, 3)
    for e in (0, 1, 2, 3, 4): a('ds_read_b64_tr_b16', v(Dr + 2*((e + 4) % 5), 2), v(tra[e]))
    lds_cnt_add(a, va, vb)
    ea0, ea1 = ei_addrs(a, R, 2624, dup=False)
    P0 = R.alloc(8); A1 = R.alloc(24); PK = R.alloc(12); X = R.alloc(8)
    a('v_mfma_f32_16x16x16_bf16', v(P0, 4), v(Dr+8, 2), v(Hs+12, 2), 0)
    a('v_mfma_f32_16x16x16_bf16', v(P0+4, 4), v(Dr+8, 2), v(Gs+12, 2), 0)
    tr2 = R.alloc(); go = R.alloc()
    a('v_bfe_u32', v(tr2), 'v0', 2, 2); a('v_mul_u32_u24', v(tr2), 2624, v(tr2))
    a('v_and_b32', v(t), 3, 'v0'); a('v_lshl_add_u32', v(tr2), v(t), 3, v(tr2))
    a('v_lshl_add_u32', v(tr2), v(q), 5, v(tr2))
    PAIR = {1: (0, 4), 2: (1, 3), 0: (6, 6)}
    for k5 in (1, 2, 0):
        for ri, M in enumerate((Hs, Gs)):
            a('v_mfma_f32_16x16x32_bf16', v(A1+8*k5+4*ri, 4), v(Dr, 4), v(M + 2*PAIR[k5][0], 4), v(P0+4*ri, 4))
        for ri, M in enumerate((Hs, Gs)):
            a('v_mfma_f32_16x16x32_bf16', v(A1+8*k5+4*ri, 4), v(Dr+4, 4), v(M + 2*PAIR[k5][1], 4), v(A1+8*k5+4*ri, 4))
        if k5 == 1:
            a('s_lshl_b32', 's8', 's3', 7); a('s_add_u32', 's8', 's8', L_EI); a('v_add_u32', v(tr2), 's8', v(tr2))
            a('s_mul_i32', 's8', 's7', TBLK); a('s_lshl_b32', 's12', 's3', 10); a('s_add_u32', 's8', 's8', 's12')
            a('v_lshl_add_u32', v(go), 'v0', 4, 's8')
    A2 = Hs
    for k5 in (1, 2, 0):
        for r in range(4):
            re, im, c, s_ = A1+8*k5+r, A1+8*k5+4+r, TW+8*k5+r, TW+8*k5+4+r
            a('v_mul_f32', v(X+r), v(re), v(c)); a('v_mul_f32', v(X+4+r), v(im), v(c))
            a('v_fmac_f32', v(X+r), v(im), v(s_)); a('v_fma_f32', v(X+4+r), '-' + v(re), v(s_), v(X+4+r))
            a('v_cvt_pk_bf16_f32', v(PK+4*k5+r), v(X+r), v(X+4+r))
        a('v_mfma_f32_16x16x32_bf16', v(A2+8*k5, 4), v(Mre, 4), v(PK+4*k5, 4), 0)
        a('v_mfma_f32_16x16x32_bf16', v(A2+8*k5+4, 4), v(Mim, 4), v(PK+4*k5, 4), 0)
    for k5 in (1, 2, 0):
        for r in range(4): a('v_cvt_pk_bf16_f32', v(PK+4*k5+r), v(A2+8*k5+r), v(A2+8*k5+4+r))
        if k5: a('ds_write_b128', v(ea0), v(PK+4*k5, 4), mods=f'offset:{1024*(k5-1)}')
        else: a('ds_write_b128', v(ea1), v(PK, 4))
    stamp(a, 4)
    subbar(a, C_A1, 8, X, X+1)
    O = A1
    for it in range(3):
        if it == 2:
            skip = newlabel('La1s'); a('s_cmp_gt_u32', 's3', 4); a('s_cbranch_scc1', skip)
        a('ds_read_b64_tr_b16', v(O+4*it, 2), v(tr2), mods=f'offset:{1024*it}')
        a('ds_read_b64_tr_b16', v(O+4*it+2, 2), v(tr2), mods=f'offset:{1024*it + 4*2624}')
        if it == 1:
            for j in range(4): tag1(a, O+j, j)
            a('global_store_dwordx4', v(go), v(O, 4), WS_, mods=SC)
            a('v_add_u32', v(go), 8192, v(go))
            for j in range(4): tag1(a, O+4+j, j)
            a('global_store_dwordx4', v(go), v(O+4, 4), WS_, mods=SC)
            a('v_add_u32', v(go), 8192, v(go))
    for j in range(4): tag1(a, O+8+j, j)
    a('s_cmp_lt_u32', 's3', 4); a('s_cselect_b32', 'exec_hi', -1, 0)
    a('global_store_dwordx4', v(go), v(O+8, 4), WS_, mods=SC)
    a('s_mov_b64', 'exec', -1)
    a.label(skip)
    stamp(a, 5)
    a('s_setprio', 0)
    R = RegAlloc(1, 60)
    coop_tables(a, R, L_T3H, L_T3W, a3=True)
    drained(a, C_A1D, 1, 2)
    stamp(a, 6)
    R = RegAlloc(1, 60)
    T = R.alloc(12); wa = R.alloc(); tt = R.alloc()
    a('s_lshr_b32', 's14', 's3', 2); a('s_and_b32', 's15', 's3', 3)
    a('s_mul_i32', 's8', 's14', HSZ); a('s_add_u32', 's8', 's8', L_H); a('v_lshl_add_u32', v(tt), 'v0', 4, 's8')
    a('s_lshl_b32', 's8', 's15', 10); a('v_add_u32', v(wa), 's8', v(tt))
    h_expand(a, HE, T, wa, 128)
    skh = newlabel('Lh'); a('s_cmp_lg_u32', 's15', 0); a('s_cbranch_scc1', skh)
    a('s_mov_b64', 'exec', 0xff)
    h_expand(a, HE+6, T, tt, 0)
    a('s_mov_b64', 'exec', -1)
    for k in range(4): a('v_mov_b32', v(T+k), 0)
    u_pad(a, 's14', T, wa)
    a.label(skh)
    a('s_cmp_ge_u32', 's7', 36); a('s_cbranch_scc1', 'LB2')
    a('s_cmp_ge_u32', 's3', 4); a('s_cbranch_scc1', 'LB2')
    arrive(a, C_H0, 1, 2)
    a('s_add_u32', 's9', 's7', 128); a('s_mov_b32', 's10', 's3')
    a('s_mov_b32', 's62', L_P1); a('s_mov_b32', 's63', L_P1 + 16384); a('s_mov_b32', 's61', L_CNT + 4*(C_A2+4))
    a('s_branch', 'LA2c')

def gen_A3_regs(a):
    K = A3K(); PIT = 2640
    R = RegAlloc(100, 164); T = RegAlloc(1, 100)
    t = T.alloc(); n = T.alloc(); q = T.alloc(); vb = T.alloc()
    K.go = R.alloc(); K.go2 = R.alloc(); K.go3 = R.alloc(); K.lw = R.alloc()
    a('s_mul_i32', 's8', 's7', TBLK); a('s_lshl_b32', 's12', 's3', 10); a('s_add_u32', 's12', 's8', 's12')
    a('v_lshl_add_u32', v(K.go), 'v0', 4, 's12'); a('v_add_u32', v(K.go2), 8192, v(K.go))
    a('s_add_u32', 's8', 's8', TBLK - 16)
    a('v_add_u32', v(K.go3), 16384, v(K.go)); a('v_min_u32', v(K.go3), 's8', v(K.go3))
    a('v_and_b32', v(t), 1, 'v0'); a('v_mul_u32_u24', v(K.lw), 4*PIT, v(t))
    a('v_lshrrev_b32', v(t), 1, 'v0'); a('v_lshl_add_u32', v(K.lw), v(t), 2, v(K.lw))
    a('s_lshl_b32', 's8', 's3', 7); a('s_add_u32', 's8', 's8', L_EI); a('v_add_u32', v(K.lw), 's8', v(K.lw))
    K.ea0, K.ea1 = ei_addrs(a, R, PIT, dup=True)
    a('s_lshl_b32', 's9', 's3', 7); a('s_add_u32', 's9', 's9', 's7'); a('s_mul_i32', 's10', 's9', 2560)
    a('s_mul_i32', 's11', 's3', 3072); a('s_add_u32', 's11', 's11', L_XR)
    K.vo = row_offsets(a, R, 's10', 1024*2560)
    K.Mre, K.Mim = m2_mats(a, R, True, 2.0/(2048*640))
    K.rd = R.alloc()
    a('v_and_b32', v(n), 15, 'v0'); a('v_lshrrev_b32', v(q), 4, 'v0')
    a('v_lshrrev_b32', v(vb), 5, 'v0'); a('v_mul_u32_u24', v(vb), 1408, v(vb))
    a('v_and_b32', v(t), 1, v(q)); a('v_lshl_add_u32', v(vb), v(t), 3, v(vb)); a('v_add_u32', v(vb), 's11', v(vb))
    K.wa = d1_addrs(a, R, n, vb)
    a('v_lshl_add_u32', v(K.rd), 'v0', 4, 's11')
    K.TW = R.alloc(24)
    return K

def pk_A3(a):
    a.label('LA3')
    K = gen_A3_regs(a)
    PIT = 2640
    R = RegAlloc(1, 100)
    t = R.alloc(); u = R.alloc(); IN = R.alloc(12); X = R.alloc(8); F = R.alloc(20)
    await_cnt(a, C_A1D, 8, t, u)
    sk2 = newlabel('La3w'); a('s_cmp_ge_u32', 's7', 36); a('s_cbranch_scc1', sk2)
    await_cnt(a, C_A2+4+3, 4, t, u)
    a.label(sk2)
    a('v_lshlrev_b32', v(t), 4, 'v0'); a('v_add_u32', v(u), L_T3W, v(t)); a('v_add_u32', v(t), L_T3H, v(t))
    for k in range(5): a('ds_read_b128', v(F+4*k, 4), v(t), mods=f'offset:{1024*k}')
    for k in range(6): a('ds_read_b128', v(K.TW+4*k, 4), v(u), mods=f'offset:{1024*k}')
    stamp(a, 11)
    a.wait(vm=0)
    a('s_setprio', 2)
    def loads():
        a('global_load_dwordx4', v(IN, 4), v(K.go), WS_, mods=SC)
        a('global_load_dwordx4', v(IN+4, 4), v(K.go2), WS_, mods=SC)
        a('global_load_dwordx4', v(IN+8, 4), v(K.go3), WS_, mods=SC)
    poll_tags(a, loads, [IN, IN+4, IN+8], t, 2, LSLEEP[0])
    stamp(a, 12)
    for it in range(3):
        if it == 2:
            skip = newlabel('La3s'); a('s_cmp_gt_u32', 's3', 4); a('s_cbranch_scc1', skip)
            a('s_cmp_lt_u32', 's3', 4); a('s_cselect_b32', 'exec_hi', -1, 0)
        for x in range(4): a('ds_write_b32', v(K.lw), v(IN+4*it+x), mods=f'offset:{1024*it + PIT*x}')
    a('s_mov_b64', 'exec', -1)
    a.label(skip)
    subbar(a, C_A3, 8, t, u)
    stamp(a, 13)
    Z = IN; A1 = R.alloc(24); PK = Z; Y = R.alloc(20); P0 = R.alloc(4)
    a('ds_read_b128', v(Z, 4), v(K.ea1))
    a('ds_read_b128', v(Z+4, 4), v(K.ea0)); a('ds_read_b128', v(Z+8, 4), v(K.ea0), mods='offset:1024')
    MF = 'v_mfma_f32_16x16x32_bf16'
    for k5 in range(3):
        a(MF, v(A1+8*k5, 4), v(Z+4*k5, 4), v(K.Mre, 4), 0); a(MF, v(A1+8*k5+4, 4), v(Z+4*k5, 4), v(K.Mim, 4), 0)
    for k5 in range(3):
        for r in range(4):
            re, im, c, s_ = A1+8*k5+r, A1+8*k5+4+r, K.TW+8*k5+r, K.TW+8*k5+4+r
            a('v_mul_f32', v(X+r), v(re), v(c)); a('v_mul_f32', v(X+4+r), v(im), v(c))
            a('v_fma_f32', v(X+r), '-' + v(im), v(s_), v(X+r)); a('v_fmac_f32', v(X+4+r), v(re), v(s_))
            if r & 1:
                a('v_cvt_pk_bf16_f32', v(PK+4*k5+(r >> 1)), v(X+r-1), v(X+r))
                a('v_cvt_pk_bf16_f32', v(PK+4*k5+2+(r >> 1)), v(X+4+r-1), v(X+4+r))
        if k5 == 0: a(MF, v(P0, 4), v(PK, 4), v(F, 4), 0)
        else:
            for e in range(5):
                a(MF, v(Y+4*e, 4), v(PK+4*k5, 4), v(F+4*((e*k5) % 5), 4), v(P0, 4) if k5 == 1 else v(Y+4*e, 4))
    for e in range(5):
        a('v_cvt_pk_bf16_f32', v(A1+2*e), v(Y+4*e), v(Y+4*e+1)); a('v_cvt_pk_bf16_f32', v(A1+2*e+1), v(Y+4*e+2), v(Y+4*e+3))
        a('ds_write_b64', v(K.wa[e]), v(A1+2*e, 2))
    for k in range(3): a('ds_read_b128', v(Z+4*k, 4), v(K.rd), mods=f'offset:{1024*k}')
    a('global_store_dwordx4', v(K.vo[0]), v(Z, 4), OUT_)
    a('s_mov_b32', 'exec_lo', 0xff00ffff)
    a('global_store_dwordx4', v(K.vo[1]), v(Z+4, 4), OUT_, mods='offset:1024')
    a('s_mov_b32', 'exec_lo', -1); a('s_mov_b32', 'exec_hi', 0xff)
    a('global_store_dwordx4', v(K.vo[2]), v(Z+8, 4), OUT_, mods='offset:2048')
    stamp(a, 14)
    ske = newlabel('Lep')
    a('s_mov_b64', 'exec', 1)
    a('s_or_b32', 's8', 's2', 's3'); a('s_cmp_lg_u32', 's8', 0); a('s_cbranch_scc1', ske)
    a('v_mov_b32', v(t), WS_EP); a('v_mov_b32', v(u), 's52')
    a('global_store_dword', v(t), v(u), WS_)
    a.label(ske)
    a('s_mov_b64', 'exec', -1)

def pk_B1(a):
    a.label('LB1')
    a('s_setprio', 2)
    R = RegAlloc(1, 160)
    t = R.alloc(); u = R.alloc()
    lb, uo, pr, od = b13_lane(a, R, WS_U)
    CF = R.alloc(4); C = R.alloc(8)
    a('s_mul_i32', 's8', 's4', 640); a('v_lshl_add_u32', v(t), v(pr), 4, 's8')
    a('global_load_dwordx4', v(CF, 4), v(t), SK_)
    msk = R.alloc(); a('v_mov_b32', v(msk), 0xffff0000)
    epoch_ready(a)
    stamp(a, 2)
    for j in range(4):
        for ch in range(2):
            src = CF + 2*ch + (j >> 1)
            if j & 1: a('v_and_b32', v(C+2*j+ch), v(msk), v(src))
            else: a('v_lshlrev_b32', v(C+2*j+ch), 16, v(src))
    subbar(a, C_B1, 10, t, u, vm=True)
    stamp(a, 3)
    Kd = R.alloc(12); Vd = R.alloc(8); Kf = R.alloc(22); T = R.alloc(4); O = R.alloc(8); res = R.alloc(4); uo2 = R.alloc()
    for i in range(11): a('ds_read_b32', v(Kd+i), v(lb), mods=f'offset:{(800 + 160*i if i < 3 else 1296 + 160*(i-3))}')
    for i in range(8): a('ds_read_b32', v(Vd+i), v(lb), mods=f'offset:{L_VI - L_KI + 160*i}')
    a('v_add_u32', v(uo2), 4096, v(uo))
    def unp(i):
        a('v_lshlrev_b32', v(Kf+2*i), 16, v(Kd+i)); a('v_and_b32', v(Kf+2*i+1), v(msk), v(Kd+i))
    for i in range(3): unp(i)
    for i in range(8):
        unp(i+3)
        for ch in range(2):
            acc = T + ch; dst = res + 2*(i & 1) + ch
            a('v_mul_f32', v(acc), v(Kf+2*i+ch), v(C+6+ch))
            for j in (2, 1, 0): a('v_fmac_f32', v(acc), v(Kf+2*(i+3-j)+ch), v(C+2*j+ch))
            if ch: a('v_and_b32', v(T+2+ch), v(msk), v(Vd+i))
            else: a('v_lshlrev_b32', v(T+2+ch), 16, v(Vd+i))
            a('v_mul_f32', v(dst), v(acc), v(T+2+ch))
        if i & 1:
            for ch in range(2):
                d = O+4*ch+3-(i >> 1)
                a('v_cvt_pk_bf16_f32', v(d), v(res+2+ch), v(res+ch)); tag1(a, d, 3-(i >> 1))
    stamp(a, 4)
    a('global_store_dwordx4', v(uo), v(O, 4), WS_, mods=SC)
    a('global_store_dwordx4', v(uo2), v(O+4, 4), WS_, mods=SC)
    stamp(a, 5)
    drained(a, C_B1D, t, u)
    stamp(a, 6)
    a('s_setprio', 0)
    a('s_branch', 'LB2')

def pk_auxO(a):
    a.label('LauxO')
    R = RegAlloc(1, 120); t = R.alloc(); u = R.alloc(); vo = R.alloc(); vh = R.alloc(); vh2 = R.alloc(); wa = R.alloc(); wh = R.alloc()
    T = R.alloc(12); D = R.alloc(54)
    a('s_sub_u32', 's62', 's3', 10); a('s_lshl_b32', 's62', 's62', 11)
    a('v_lshlrev_b32', v(t), 4, 'v0'); a('v_add_u32', v(vo), 's62', v(t)); a('v_subrev_u32', v(vh), 128, v(t)); a('v_subrev_u32', v(vh2), 112, v(t))
    a('v_add_u32', v(wh), L_H, v(t)); a('v_add_u32', v(wa), 's62', v(wh))
    if HGATE[0]: await_cnt(a, C_B1, HGATE[0], t, u)
    a('v_lshlrev_b32', v(t), 4, 'v0')
    for lc in range(3):
        h_srd(a, lc)
        for b in range(2):
            a('buffer_load_dwordx4', v(D+18*lc+6*b, 4), v(vo), 's[44:47]', 0, mods=f'offen offset:{1024*b}')
            a('buffer_load_dwordx2', v(D+18*lc+6*b+4, 2), v(vo), 's[44:47]', 0, mods=f'offen offset:{1024*b+16}')
        h_load(a, D+18*lc+12, vh, vh2, 0)
    epoch_ready(a)
    for k in range(4): a('v_mov_b32', v(T+k), 0)
    for lc in range(3): u_pad(a, lc, T, t)
    for lc in range(3):
        for b in range(2): h_expand(a, D+18*lc+6*b, T, wa, lc*HSZ + 128 + 1024*b)
        a('s_mov_b64', 'exec', 0xff)
        h_expand(a, D+18*lc+12, T, wh, lc*HSZ)
        a('s_mov_b64', 'exec', -1)
    arrive(a, C_H, t, u)
    stamp(a, 6)
    a('s_branch', 'LB2')

def pk_B3(a):
    a.label('LB3')
    a('s_cmp_ge_u32', 's3', 10); a('s_cbranch_scc1', 'Lfin')
    R = RegAlloc(1, 160)
    t = R.alloc(); u = R.alloc()
    lb, uo, pr, od = b13_lane(a, R, WS_U)
    uo2 = R.alloc(); a('v_add_u32', v(uo2), 4096, v(uo))
    Z = R.alloc(8); oo = R.alloc(); rd = R.alloc(); msk = R.alloc(); a('v_mov_b32', v(msk), 0xffff0000)
    a('v_mul_u32_u24', v(t), 26, 'v0'); a('v_lshrrev_b32', v(t), 8, v(t))
    a('v_mul_u32_u24', v(oo), 2560 - 160, v(t)); a('v_lshl_add_u32', v(oo), 'v0', 4, v(oo))
    a('s_lshl_b32', 's8', 's6', 3); a('s_add_u32', 's8', 's8', 's3'); a('s_mul_i32', 's8', 's8', 16*2560)
    a('s_mul_i32', 's9', 's4', 160); a('s_add_u32', 's8', 's8', 's9'); a('s_add_u32', 's8', 's8', 1280); a('v_add_u32', v(oo), 's8', v(oo))
    a('s_mul_i32', 's8', 's3', 2*1296); a('s_add_u32', 's8', 's8', L_VI); a('v_lshl_add_u32', v(rd), 'v0', 4, 's8')
    await_cnt(a, C_QL, 8, t, u)
    Qd = R.alloc(8); Qf = R.alloc(16); T = R.alloc(4); O = R.alloc(16)
    for i in range(8): a('ds_read_b32', v(Qd+i), v(lb), mods=f'offset:{L_VI - L_KI + 160*i}')
    for i in range(8):
        a('v_lshlrev_b32', v(Qf+2*i), 16, v(Qd+i)); a('v_and_b32', v(Qf+2*i+1), v(msk), v(Qd+i))
    def loads():
        a('global_load_dwordx4', v(Z, 4), v(uo), WS_, mods=SC); a('global_load_dwordx4', v(Z+4, 4), v(uo2), WS_, mods=SC)
    if ZGATE[0]:
        a('v_mov_b32', v(t), L_CNT + 4*30)
        lq = newlabel('Lb3'); a.label(lq)
        a('s_sleep', 1); a('ds_read_b32', v(u), v(t)); a('v_readfirstlane_b32', 's40', v(u)); a('s_cmp_lt_u32', 's40', 6); a('s_cbranch_scc1', lq)
    stamp(a, 11)
    a.wait(vm=0)
    a('s_setprio', 2)
    poll_tags(a, loads, [Z, Z+4], t, 2, LSLEEP[0])
    stamp(a, 12)
    for i in range(8):
        for ch in range(2):
            src = Z + 4*ch + 3 - (i >> 1)
            if i & 1: a('v_lshlrev_b32', v(T+ch), 16, v(src))
            else: a('v_and_b32', v(T+ch), v(msk), v(src))
            a('v_mul_f32', v(T+ch), v(T+ch), v(Qf+2*i+ch))
        a('v_cvt_pk_bf16_f32', v(Qd+i), v(T), v(T+1))
        a('ds_write_b32', v(lb), v(Qd+i), mods=f'offset:{L_VI - L_KI + 160*i}')
    subbar(a, C_Q, 10, t, u)
    stamp(a, 13)
    a('s_cmp_ge_u32', 's3', 8); a('s_cbranch_scc1', 'Lfin')
    a('s_mov_b32', 'exec_hi', 0xff)
    for k in range(4): a('ds_read_b128', v(O+4*k, 4), v(rd), mods=f'offset:{(k >> 1)*1296 + (k & 1)*640}')
    for k in range(4):
        a('global_store_dwordx4', v(oo), v(O+4*k, 4), OUT_)
        if k < 3: a('v_add_u32', v(oo), 4*2560, v(oo))
    stamp(a, 14)
    a('s_mov_b64', 'exec', -1)

def pk_B2(a):
    a.label('LB2')
    a('s_mov_b32', 's99', 's3')
    a('s_cmp_lt_u32', 's7', 36); a('s_cselect_b32', 's63', 1, 0); a('s_cmp_eq_u32', 's5', 0); a('s_cselect_b32', 's63', 's63', 0)
    a.label('LB2p')
    R = RegAlloc(1, 120)
    t = R.alloc(); u = R.alloc(); lw = R.alloc(); U = R.alloc(8); go = R.alloc(); fa = R.alloc(); Dv = R.alloc(); msk = R.alloc()
    n = R.alloc(); q = R.alloc(); aa = R.alloc(); ba = R.alloc(); ba2 = R.alloc(); ia = R.alloc(); ra = R.alloc()
    a('s_lshr_b32', 's9', 's99', 2); a('s_and_b32', 's10', 's99', 3)
    a('s_sub_u32', 's11', 's10', 's9'); a('s_and_b32', 's11', 's11', 3)
    a('s_add_u32', 's13', 's53', 's9')
    a('s_lshl_b32', 's8', 's13', 1); a('s_and_b32', 's8', 's8', -4)
    a('s_load_dword', 's58', D_, 's8')
    a('s_mul_i32', 's15', 's9', USZ); a('s_add_u32', 's15', 's15', L_U)
    a('v_lshrrev_b32', v(t), 3, 'v0'); a('v_lshlrev_b32', v(t), 4, v(t)); a('v_lshl_add_u32', v(lw), 'v0', 4, v(t))
    a('s_mul_i32', 's8', 's10', 8*144); a('s_add_u32', 's8', 's8', 's15'); a('v_add_u32', v(lw), 's8', v(lw))
    a('s_lshl_b32', 's8', 's13', 12); a('s_lshl_b32', 's12', 's10', 10); a('s_add_u32', 's8', 's8', 's12'); a('s_add_u32', 's8', 's8', WS_U)
    a('v_lshl_add_u32', v(go), 'v0', 4, 's8')
    a('v_and_b32', v(n), 15, 'v0'); a('v_lshrrev_b32', v(q), 4, 'v0')
    a('v_mov_b32', v(msk), 0xffff0000)
    a('v_and_b32', v(t), 1, 'v0'); a('v_mul_u32_u24', v(aa), 529*16, v(t))
    a('v_bfe_u32', v(t), 'v0', 1, 1); a('v_mul_u32_u24', v(t), 264*16, v(t)); a('v_add_u32', v(aa), v(aa), v(t))
    a('v_bfe_u32', v(t), 'v0', 2, 2); a('v_lshl_add_u32', v(aa), v(t), 5, v(aa))
    a('s_cmp_eq_u32', 's11', 0); a('s_cselect_b32', 's12', 1, 0)
    a('s_add_u32', 's14', 's12', 8); a('v_lshl_add_u32', v(aa), v(q), 's14', v(aa))
    a('s_cmp_eq_u32', 's11', 1); a('s_cselect_b32', 's14', 2048, 0)
    a('s_cmp_eq_u32', 's11', 3); a('s_cselect_b32', 's14', 1040, 's14')
    a('s_mul_i32', 's8', 's9', HSZ); a('s_add_u32', 's8', 's8', 's14'); a('s_add_u32', 's8', 's8', L_H)
    a('v_add_u32', v(aa), 's8', v(aa))
    a('s_add_u32', 's14', 's12', 1); a('v_lshlrev_b32', v(t), 's14', v(q)); a('v_sub_u32', v(t), v(t), v(n))
    a('s_lshl_b32', 's14', 's12', 4); a('s_sub_u32', 's14', 31, 's14'); a('v_add_u32', v(t), 's14', v(t))
    a('v_mul_u32_u24', v(ba), 144, v(t)); a('v_add_u32', v(ba), 's15', v(ba))
    a('v_sub_u32', v(t), 's14', v(n)); a('v_mul_u32_u24', v(ia), 144, v(t)); a('v_add_u32', v(ia), 's15', v(ia))
    a('v_lshlrev_b32', v(t), 5, v(q)); a('v_sub_u32', v(ia), v(ia), v(t))
    a('s_mul_i32', 's59', 's9', REDSZ); a('s_add_u32', 's59', 's59', L_RED); a('v_lshl_add_u32', v(ra), 'v0', 4, 's59')
    lnh = newlabel('Lb2'); a('s_cmp_lg_u32', 's11', 3); a('s_cbranch_scc1', lnh)
    a('v_and_b32', v(t), 7, 'v0'); a('v_lshlrev_b32', v(u), 1, v(q)); a('v_sub_u32', v(u), v(u), v(t)); a('v_add_u32', v(u), 31, v(u))
    a('v_mul_u32_u24', v(ba), 144, v(u)); a('v_add_u32', v(ba), 's15', v(ba))
    a('v_and_b32', v(u), 8, 'v0'); a('v_xor_b32', v(u), 8, v(u)); a('v_lshl_add_u32', v(ba), v(u), 1, v(ba)); a('v_lshl_add_u32', v(ba2), v(u), 1, v(ba))
    a('v_lshl_add_u32', v(t), v(q), 3, v(t)); a('v_lshlrev_b32', v(t), 4, v(t)); a('v_and_b32', v(u), 8, 'v0'); a('v_lshl_add_u32', v(t), v(u), 7, v(t))
    a('v_add_u32', v(ra), 's59', v(t))
    a.label(lnh)
    a.wait(lgkm=0)
    a('s_bitcmp1_b32', 's13', 0); a('s_cselect_b32', 's8', 0, 16); a('s_lshl_b32', 's58', 's58', 's8'); a('s_and_b32', 's58', 's58', 0xffff0000)
    a('s_bitcmp1_b32', 's11', 0); a('s_cselect_b32', 's58', 0, 's58')
    a('s_cmp_gt_u32', 's3', 5); a('s_cselect_b32', 's98', 2, 1); a('s_sub_u32', 's98', 's3', 's98'); a('s_min_u32', 's98', 's98', 8)
    a('s_cmp_lg_u32', 's12', 0); a('s_cselect_b32', 's98', 8, 's98'); a('s_cmp_eq_u32', 's5', 0); a('s_cselect_b32', 's98', 8, 's98')
    ACC = R.alloc(16); NW = 6; RA = R.alloc(4*NW + 2); RA2 = R.alloc(4*NW + 2); NBR = 6; RB = R.alloc(4*NBR)
    a('s_cmp_lg_u32', 's99', 's3'); a('s_cbranch_scc1', 'LB2go')
    stamp(a, 7)
    a('s_cmp_lg_u32', 's5', 0); a('s_cselect_b32', 's8', L_CNT + 4*C_B1D, L_CNT + 4*C_A2); a('s_cselect_b32', 's14', 10, 4)
    a('v_mov_b32', v(t), 's8')
    lq = newlabel('Lb2'); a.label(lq)
    a('s_sleep', 1); a('ds_read_b32', v(u), v(t)); a('v_readfirstlane_b32', 's40', v(u)); a('s_cmp_lt_u32', 's40', 's14'); a('s_cbranch_scc1', lq)
    stamp(a, 2)
    a('s_lshl_b32', 's8', 's63', 12); a('v_subrev_u32', v(fa), 's8', v(go))
    def ul():
        a('global_load_dwordx4', v(U, 4), v(go), WS_, mods=SC); a('global_load_dwordx4', v(U+4, 4), v(fa), WS_, mods=SC)
    poll_tags(a, ul, [U, U+4], t, 1, XSLEEP[0])
    sk2 = newlabel('Lb2'); a('s_cmp_eq_u32', 's63', 0); a('s_cbranch_scc1', sk2)
    await_cnt(a, C_H0, 4, t, u)
    a('v_subrev_u32', v(t), USZ, v(lw))
    a('ds_write_b128', v(t), v(U+4, 4))
    a.label(sk2)
    sko = newlabel('Lb2'); a('s_cmp_eq_u32', 's5', 0); a('s_cbranch_scc1', sko)
    await_cnt(a, C_H, 2, t, u)
    a.label(sko)
    a('ds_write_b128', v(lw), v(U, 4))
    stamp(a, 8)
    a('s_lshl_b32', 's8', 's9', 2); a('s_add_u32', 's8', 's8', L_CNT + 4*C_U)
    subbar_s(a, 's8', 4, t, u, vm=True)
    skq = newlabel('Lb2')
    a('s_cmp_eq_u32', 's98', 8); a('s_cbranch_scc1', skq)
    await_cnt(a, C_B1D, 10, t, u)
    srd(a, 44, 's22', 's23', 2048*1280)
    a('v_mul_u32_u24', v(t), 26, 'v0'); a('v_lshrrev_b32', v(t), 8, v(t)); a('v_mul_u32_u24', v(u), 1280 - 160, v(t)); a('v_lshl_add_u32', v(u), 'v0', 4, v(u))
    a('s_lshl_b32', 's8', 's6', 3); a('s_add_u32', 's8', 's8', 's98'); a('s_mul_i32', 's8', 's8', 16*1280); a('s_mul_i32', 's14', 's4', 160); a('s_add_u32', 's8', 's8', 's14')
    a('s_mul_i32', 's14', 's98', 2*1296); a('s_mov_b32', 'exec_hi', 0xff)
    for k in range(4):
        a('s_add_u32', 'm0', 's14', L_VI + (k >> 1)*1296 + (k & 1)*640)
        a('buffer_load_dwordx4', v(u), 's[44:47]', 's8', mods='offen lds')
        if k < 3: a('s_addk_i32', 's8', 4*1280)
    a('s_mov_b64', 'exec', -1)
    a.label(skq)
    if GATE[0]:
        lg = newlabel('Lb2'); a('s_cmp_lg_u32', 's5', 0); a('s_cbranch_scc1', lg)
        a('v_mov_b32', v(t), L_CNT + 4*(C_A2+2))
        lq = newlabel('Lb2'); a.label(lq)
        a('s_sleep', 2); a('ds_read_b32', v(u), v(t)); a('v_readfirstlane_b32', 's40', v(u)); a('s_cmp_lt_u32', 's40', 4); a('s_cbranch_scc1', lq)
        a('s_cmp_ge_u32', 's7', 36); a('s_cbranch_scc1', lg)
        lq = newlabel('Lb2'); a.label(lq)
        a('s_sleep', 2); a('ds_read_b32', v(u), v(t), mods='offset:16'); a('v_readfirstlane_b32', 's40', v(u)); a('s_cmp_lt_u32', 's40', 4); a('s_cbranch_scc1', lq)
        a.label(lg)
    a.label('LB2go')
    MF = 'v_mfma_f32_16x16x32_bf16'
    PD = 3
    def rdA(ring, w, off, last):
        if w > last: return
        a('ds_read_b128', v(ring + 4*(w % NW), 4), v(aa), mods=f'offset:{off + 16*w}')
        if w and w % NW == 0: a('ds_read_b64', v(ring+4*NW, 2), v(aa), mods=f'offset:{off + 16*w}')
    def rdB(tau, last, hi=False):
        if tau > last: return
        a('ds_read_b128', v(RB + 4*(tau % NBR), 4), v(ba2 if (hi and tau % 8 == 7) else ba), mods=f'offset:{144*(tau >> 3) + 16*(tau & 7)}')
    a('s_cmp_eq_u32', 's11', 3); a('s_cbranch_scc1', 'LB2hi')
    a('s_cmp_lg_u32', 's11', 0); lp_ = newlabel('Lb2'); a('s_cbranch_scc0', lp_); a('s_setprio', 1); a.label(lp_)
    a('ds_read_b128', v(U, 4), v(ia), mods='offset:96'); a('ds_read_b128', v(U+4, 4), v(ia), mods='offset:112')
    rdB(0, 32); rdA(RA, 1, 0, 33)
    for k in range(PD): rdB(k+1, 32); rdA(RA, k+2, 0, 33)
    for x in range(16):
        e = 15 - x
        if e & 1: a('v_and_b32', v(ACC+x), v(msk), v(U + (e >> 1)))
        else: a('v_lshlrev_b32', v(ACC+x), 16, v(U + (e >> 1)))
        a('v_mul_f32', v(ACC+x), 's58', v(ACC+x))
    stamp(a, 9)
    for tau in range(32):
        if tau == 16:
            a.raw('    s_cmp_eq_u32 s12, 0'); a.raw('    s_cbranch_scc1 LB2r'); a.bytes += 8
            a.snap.setdefault('LB2r', []).append((list(a.vm), list(a.lg)))
        d0 = (4*(tau+1)) % (4*NW)
        for k, (acc, dd, bt) in enumerate(((2, d0, tau), (3, d0+2, tau), (0, d0, tau+1), (1, d0+2, tau+1))):
            a(MF, v(ACC+4*acc, 4), v(RA+dd, 4), v(RB + 4*(bt % NBR), 4), v(ACC+4*acc, 4))
            if k == 1: rdB(tau + PD + 1, 32)
            if k == 3: rdA(RA, tau + PD + 2, 0, 33)
    a.label('LB2r'); a._nop(8)
    stamp(a, 10)
    lf = newlabel('Lb2')
    a('s_lshl_b32', 's14', 's9', 3); a('s_add_u32', 's14', 's14', L_CNT + 4*C_RED); a('v_mov_b32', v(t), 's14'); a('v_mov_b32', v(u), 1)
    a('s_cmp_lg_u32', 's11', 1); a('s_cbranch_scc1', lf)
    for tt in range(4): a('ds_write_b128', v(ra), v(ACC+4*tt, 4), mods=f'offset:{1024*tt}')
    a.wait(lgkm=0); lds_cnt_add(a, t, u)
    a('s_branch', 'LB2end')
    a.label('LB2hi')
    a('s_setprio', 1)
    rdA(RA, 0, 0, 16); rdA(RA2, 0, 2048, 16)
    for k in range(PD): rdB(k, 15, True); rdA(RA, k+1, 0, 16); rdA(RA2, k+1, 2048, 16)
    stamp(a, 9)
    for tau in range(16):
        d0 = (4*tau) % (4*NW)
        for k, (acc, ring, dd) in enumerate(((0, RA, d0), (1, RA, d0+2), (2, RA2, d0), (3, RA2, d0+2))):
            a(MF, v(ACC+4*acc, 4), v(ring+dd, 4), v(RB + 4*(tau % NBR), 4), 0 if tau == 0 else v(ACC+4*acc, 4))
            if k == 0: rdB(tau + PD, 15, True)
            if k == 1: rdA(RA, tau + PD + 1, 0, 16)
            if k == 3: rdA(RA2, tau + PD + 1, 2048, 16)
    stamp(a, 10)
    a('s_lshl_b32', 's14', 's9', 3); a('s_add_u32', 's14', 's14', L_CNT + 4*C_RED); a('v_mov_b32', v(t), 's14'); a('v_mov_b32', v(u), 1)
    for acc in range(4): a('ds_write_b128', v(ra), v(ACC+4*acc, 4), mods=f'offset:{4096 + 2048*(acc >> 1) + 512*(acc & 1)}')
    a.wait(lgkm=0)
    a('s_mov_b64', 'exec', 1); a('ds_add_u32', v(t), v(u)); a('ds_add_u32', v(t), v(u), mods='offset:4'); a('s_mov_b64', 'exec', -1)
    a('s_branch', 'LB2end')
    a.label(lf)
    a('s_lshl_b32', 's8', 's11', 1); a('v_add_u32', v(t), 's8', v(t)); a('s_add_u32', 's14', 's12', 1)
    a('v_and_b32', v(u), 7, 'v0'); a('v_lshl_add_u32', v(u), v(q), 3, v(u)); a('s_lshl_b32', 's8', 's12', 11); a('s_add_u32', 's8', 's8', 's59')
    a('v_lshl_add_u32', v(ia), v(u), 4, 's8')
    lp = newlabel('Lb2'); a.label(lp)
    a('ds_read_b32', v(u), v(t)); a('v_readfirstlane_b32', 's40', v(u)); a('s_cmp_lt_u32', 's40', 's14'); a('s_cbranch_scc1', lp)
    for tt in range(4): a('ds_read_b128', v(RA+4*tt, 4), v(ia), mods=f'offset:{4096 + 512*tt}')
    ls = newlabel('Lb2'); a('s_cmp_eq_u32', 's12', 0); a('s_cbranch_scc1', ls)
    for tt in range(4): a('ds_read_b128', v(RB+4*tt, 4), v(ra), mods=f'offset:{1024*tt}')
    for x in range(16): a('v_add_f32', v(ACC+x), v(ACC+x), v(RB+x))
    a.label(ls)
    a('s_mov_b32', 'exec_lo', 0xff00ff00); a('s_mov_b32', 'exec_hi', 0xff00ff00)
    for x in range(16): a('v_add_f32', v(ACC+x), v(ACC+x), v(RA+x))
    a('s_mov_b64', 'exec', -1)
    for jj in range(8):
        a('v_cvt_pk_bf16_f32', v(U+jj), v(ACC+15-2*jj), v(ACC+14-2*jj)); tag2(a, U+jj, jj)
    sa = ra; sr = aa
    a('s_add_u32', 's8', 's8', 4096)
    a('v_sub_u32', v(t), 15, v(n)); a('v_lshlrev_b32', v(u), 1, v(q)); a('v_sub_u32', v(u), 6, v(u))
    a('v_xor_b32', v(u), v(t), v(u)); a('v_and_b32', v(u), 7, v(u)); a('v_lshlrev_b32', v(u), 4, v(u))
    a('v_lshl_add_u32', v(sa), v(t), 7, v(u)); a('v_add_u32', v(sa), 's8', v(sa)); a('v_xor_b32', v(u), 16, v(sa))
    a('ds_write_b128', v(sa), v(U, 4)); a('ds_write_b128', v(u), v(U+4, 4))
    a('v_lshrrev_b32', v(t), 3, 'v0'); a('v_xor_b32', v(u), v(t), 'v0'); a('v_and_b32', v(u), 7, v(u)); a('v_lshlrev_b32', v(u), 4, v(u))
    a('v_lshl_add_u32', v(sr), v(t), 7, v(u)); a('v_add_u32', v(sr), 's8', v(sr))
    a('ds_read_b128', v(RB, 4), v(sr)); a('ds_read_b128', v(RB+4, 4), v(sr), mods='offset:1024')
    a('s_lshl_b32', 's8', 's13', 12); a('s_lshl_b32', 's14', 's12', 11); a('s_sub_u32', 's8', 's8', 's14'); a('s_add_u32', 's8', 's8', WS_U + 2048)
    a('v_lshl_add_u32', v(t), 'v0', 4, 's8')
    a('global_store_dwordx4', v(t), v(RB, 4), WS_, mods=SC)
    a('global_store_dwordx4', v(t), v(RB+4, 4), WS_, mods=f'offset:1024 {SC}')
    if ZGATE[0]:
        a('s_cmp_eq_u32', 's5', 0); a('s_cbranch_scc1', 'LB2end')
        arrive(a, 30, t, u, vm=True)
    a.label('LB2end')
    a('s_setprio', 0)
    l1p = newlabel('Lb2'); a('s_cmp_eq_u32', 's63', 0); a('s_cbranch_scc1', l1p)
    a('s_mov_b32', 's63', 0); a('s_sub_u32', 's99', 's3', 4); a.wait(lgkm=0); a('s_branch', 'LB2p')
    a.label(l1p)
    a('s_cmp_eq_u32', 's5', 0); a('s_cbranch_scc1', 'LA3')
    a('s_cmp_eq_u32', 's98', 8); a('s_cbranch_scc1', 'LB3')
    arrive(a, C_QL, t, u, vm=True)
    a('s_branch', 'LB3')

class A2R: pass
def a2_regs():
    K = A2R(); R = RegAlloc(1, 168)
    K.t = R.alloc(); K.u = R.alloc(); K.go = R.alloc(); K.lw = R.alloc(); K.lr0 = R.alloc(); K.lr1 = R.alloc(); K.msk = R.alloc()
    K.X = R.alloc(8)
    K.C = R.alloc(8); K.Sm = R.alloc(8); K.N = R.alloc(8); K.TC = R.alloc(16); K.TS = R.alloc(16)
    K.Z = R.alloc(16); K.Wp = R.alloc(16); K.B0 = R.alloc(32); K.B1 = R.alloc(32)
    K.fa, K.fw, K.o, K.h, K.of, K.hf, K.t2 = [K.Wp + k for k in range(7)]
    return K

def A2_consts(a, K):
    t, u, go, X = K.t, K.u, K.go, K.X
    a('v_lshrrev_b32', v(t), 3, 'v0'); a('v_lshl_add_u32', v(t), 's10', 3, v(t))
    a('s_mov_b32', 's8', TBLK); a('v_mul_lo_u32', v(go), v(t), 's8')
    a('v_and_b32', v(u), 7, 'v0'); a('v_lshl_add_u32', v(go), v(u), 4, v(go))
    a('s_lshl_b32', 's8', 's9', 7); a('v_add_u32', v(go), 's8', v(go))
    def swz(dst, line, piece):
        a('v_lshrrev_b32', v(dst), 1, v(line)); a('v_and_b32', v(K.t2), 1, v(line)); a('v_xor_b32', v(dst), v(dst), v(K.t2))
        a('v_xor_b32', v(dst), piece, v(dst)); a('v_and_b32', v(dst), 7, v(dst)); a('v_lshlrev_b32', v(dst), 4, v(dst))
        a('v_lshl_add_u32', v(dst), v(line), 7, v(dst)); a('v_add_u32', v(dst), 's62', v(dst))
    swz(K.lw, t, v(u))
    a('s_sub_u32', 's8', 's9', 128); a('s_mul_i32', 's8', 's8', 57); a('s_lshr_b32', 's8', 's8', 9)
    a('s_bfe_u32', 's11', 's9', (2 << 16) | 4); a('s_cmp_lt_u32', 's9', 128); a('s_cselect_b32', 's8', 's11', 's8')
    a('s_and_b32', 's8', 's8', 1); a('s_cmp_eq_u32', 's8', 0)
    a('s_cselect_b32', 's60', 0, 0x80008000); a('s_lshl_b32', 's11', 's8', 31); a('s_or_b32', 's11', 's11', fl(1/32))
    o, h, of, hf = K.o, K.h, K.of, K.hf
    a('v_bfe_u32', v(o), 'v0', 3, 1); a('v_and_b32', v(t), 3, 'v0'); a('v_lshl_add_u32', v(o), v(o), 2, v(t))
    a('v_bfe_u32', v(t), 'v0', 4, 1); a('v_lshl_add_u32', v(o), v(o), 1, v(t))
    a('v_bfe_u32', v(t), 'v0', 2, 1); a('v_lshl_add_u32', v(o), v(o), 1, v(t))
    a('v_lshrrev_b32', v(h), 5, 'v0')
    a('v_lshl_add_u32', v(t), v(h), 5, v(o))
    a('s_lshl_b32', 's8', 's10', 1)
    swz(K.lr0, t, 's8'); a('v_xor_b32', v(K.lr1), 16, v(K.lr0))
    a('v_cvt_f32_u32', v(of), v(o)); a('v_mul_f32', v(of), 's11', v(of))
    a('v_cvt_f32_u32', v(hf), v(h)); a('v_mul_f32', v(hf), v(hf), v(of))
    for kap in range(2):
        for jj in range(4):
            for e in range(2):
                idx = 2*kap + 4*(2*jj + e)
                if idx: a('v_fmamk_f32', v(X+e), v(of), fl(float(idx)), v(hf)); src = X+e
                else: src = hf
                sincos(a, src, X+2+e, X+4+e)
                vv = 8*kap + 2*jj + e
                a('v_mul_f32', v(X+6+e), fl(1/32), v(src))
                sincos(a, X+6+e, K.TC+vv, K.TS+vv)
            a('v_cvt_pk_bf16_f32', v(K.C+4*kap+jj), v(X+2), v(X+3))
            a('v_cvt_pk_bf16_f32', v(K.Sm+4*kap+jj), v(X+4), v(X+5))
            a('v_xor_b32', v(K.N+4*kap+jj), 0x80008000, v(K.Sm+4*kap+jj))
    a('v_mov_b32', v(K.msk), 0xffff0000)

def pk_auxE(a):
    K = a2_regs()
    a.label('LauxE')
    R = RegAlloc(K.B0, 164)
    WB = 2048*321*2
    bar0(a)
    a('s_sub_u32', 's10', 's3', 8)
    vo = R.alloc(); t = K.t; u = K.u
    a('v_lshlrev_b32', v(vo), 4, 'v0')
    def w_dma():
        a('s_mul_i32', 's14', 's7', 1284)
        a('s_mul_i32', 's11', 's10', 2*256*642); a('s_add_u32', 's14', 's14', 's11')
        a('s_mul_i32', 's11', 's10', 2*1296); a('s_add_u32', 's11', 's11', L_A2 + 1296)
        srd(a, 44, 's18', 's19', WB); srd(a, 48, 's20', 's21', WB)
        def slot(soff, m0v_s, add):
            for pl, sd in enumerate((44, 48)):
                a('s_add_u32', 'm0', m0v_s, add + pl*11664)
                a('buffer_load_dwordx4', v(vo), s(sd, 4), soff, mods='offen lds')
                a('s_mov_b64', 'exec', 0x1ffff)
                a('buffer_load_dwordx4', v(vo), s(sd, 4), soff, mods='offen offset:1024 lds')
                a('s_mov_b64', 'exec', -1)
        slot('s14', 's11', 0)
        a('s_add_u32', 's14', 's14', 256*642)
        slot('s14', 's11', 1296)
        sk = newlabel('Lw1s')
        a('s_cmp_lg_u32', 's7', 127); a('s_cbranch_scc1', sk)
        a('s_cmp_lg_u32', 's10', 3); a('s_cbranch_scc1', sk)
        a('s_mov_b32', 's11', L_A2)
        slot('s14', 's11', 0)
        a.label(sk)
    k0 = R.alloc(); vc = R.alloc(); go = R.alloc(); go2 = R.alloc()
    a('v_lshrrev_b32', v(t), 3, 'v0')
    a('v_mul_u32_u24', v(k0), 65, v(t))
    a('v_mul_u32_u24', v(u), 205, v(k0)); a('v_lshrrev_b32', v(u), 14, v(u))
    a('v_mul_u32_u24', v(u), 80, v(u)); a('v_sub_u32', v(k0), v(k0), v(u))
    a('s_and_b32', 's12', 's10', 1); a('s_lshr_b32', 's13', 's10', 1)
    a('s_cmp_eq_u32', 's12', 0)
    a('s_cselect_b32', 's14', 2, -2); a('s_cselect_b32', 's15', 0, 640)
    a('s_mul_i32', 's8', 's13', 642); a('s_add_u32', 's15', 's15', 's8'); a('s_add_u32', 's15', 's15', L_A2 + 1296)
    a('s_cmp_eq_u32', 's10', 3); a('s_cselect_b32', 's8', 1, 0); a('s_add_u32', 's8', 's8', 's7')
    a('s_cmp_eq_u32', 's8', 128); a('s_cselect_b32', 's41', 1296, 0); a('s_sub_u32', 's15', 's15', 's41')
    a('s_and_b32', 's8', 's8', 127)
    a('v_bfe_u32', v(t), 'v0', 1, 2); a('v_mul_u32_u24', v(t), 80, v(t))
    a('v_and_b32', v(u), 1, 'v0'); a('v_mul_u32_u24', v(u), 11664, v(u)); a('v_add_u32', v(u), 's15', v(u))
    a('v_mad_i32_i24', v(vc), v(t), 's14', v(u))
    a('s_mul_i32', 's8', 's8', TBLK); a('s_add_u32', 's8', 's8', WS_W)
    a('s_lshl_b32', 's41', 's10', 11); a('s_add_u32', 's41', 's41', 's8')
    a('v_add_u32', v(go), 's41', v(vo))
    a('s_mul_i32', 's41', 's10', 9*128); a('s_add_u32', 's41', 's41', 's8'); a('s_add_u32', 's41', 's41', 128*128)
    a('v_add_u32', v(go2), 's41', v(vo))
    ads = [R.alloc() for _ in range(6)]
    for it, C in enumerate((16, 56, 32, 72, 0, 40)):
        if C:
            a('v_add_u32', v(t), C, v(k0)); a('v_subrev_u32', v(u), 80, v(t)); a('v_min_u32', v(t), v(t), v(u))
            a('v_mad_i32_i24', v(ads[it]), v(t), 's14', v(vc))
        else: a('v_mad_i32_i24', v(ads[it]), v(k0), 's14', v(vc))
    O = R.alloc(24); Hh = R.alloc(24)
    epoch_ready(a)
    await_cnt(a, C_X, WGATE[0], t, u)
    w_dma()
    a('s_mov_b32', 's9', 's7'); a('s_mov_b32', 's62', L_A2T); a('s_mov_b32', 's63', L_A2W); a('s_mov_b32', 's61', L_CNT + 4*C_A2)
    a.label('LA2c')
    A2_consts(a, K)
    wtag_regs(a, 56)
    a('s_cmp_lt_u32', 's3', 8); a('s_cbranch_scc1', 'LA2w')
    stamp(a, 2)
    a('s_setprio', 1)
    a('v_mov_b32', v(vo), 0xfffefffe)
    subbar(a, C_W1, 4, t, u, vm=True)
    stamp(a, 3)
    def comb(it):
        for k in range(4): a('v_lshl_or_b32', v(O+4*it+k), v(Hh+4*it+k), 16, v(O+4*it+k))
        for k in range(4): a('v_and_or_b32', v(O+4*it+k), v(O+4*it+k), v(vo), s(56+k))
    for it in range(6):
        for i in range(8): a('ds_read_u16', v((Hh if i & 1 else O) + 4*it + (i >> 1)), v(ads[it]), mods=f'offset:{1296*i}')
        if it: comb(it - 1)
        if it == 2:
            for k in range(2): a('global_store_dwordx4', v(go), v(O+4*k, 4), WS_, mods=f'offset:{1024*k} {SC}')
            a('v_add_u32', v(go), 8192, v(go))
        if it == 4:
            for k in range(2): a('global_store_dwordx4', v(go), v(O+8+4*k, 4), WS_, mods=f'offset:{1024*k} {SC}')
    comb(5)
    a('global_store_dwordx4', v(go2), v(O+16, 4), WS_, mods=SC)
    a('s_mov_b64', 'exec', 0xff)
    a('global_store_dwordx4', v(go2), v(O+20, 4), WS_, mods=f'offset:1024 {SC}')
    a('s_mov_b64', 'exec', -1)
    stamp(a, 4)
    arrive(a, C_W1D, t, u)
    stamp(a, 5)
    a.label('LA2w')
    await_cnt(a, C_A1D, 8, t, u)
    await_cnt(a, C_W1D, 4, t, u)
    a.label('LA2')
    pk_A2(a, K)

def pk_A2(a, K):
    t, u, go, lw, lr0, lr1, msk, X, Z, Wp, B0, B1 = K.t, K.u, K.go, K.lw, K.lr0, K.lr1, K.msk, K.X, K.Z, K.Wp, K.B0, K.B1
    for it in range(4):
        a('s_add_u32', s(44+2*it), 's38', 32*TBLK*it); a('s_addc_u32', s(45+2*it), 's39', 0)
    a('s_sub_u32', 's63', 's63', 's62')
    a('s_setprio', 3)
    stamp(a, 7)
    ST, SW = B0, B1
    def tl():
        for it in range(4): a('global_load_dwordx4', v(ST+4*it, 4), v(go), s(44+2*it, 2), mods=SC)
    poll_tags(a, tl, [ST+4*i for i in range(4)], t, 1, XSLEEP[0])
    a('v_add_u32', v(Wp), WS_W, v(go)); a('v_add_u32', v(X+2), 's63', v(lw))
    def wl():
        for it in range(4): a('global_load_dwordx4', v(SW+4*it, 4), v(Wp), s(44+2*it, 2), mods=SC)
    wl()
    stamp(a, 8)
    for it in range(4): a('ds_write_b128', v(lw), v(ST+4*it, 4), mods=f'offset:{4096*it}')
    stamp(a, 6)
    a('v_mov_b32', v(X), 's61'); a('v_mov_b32', v(X+1), 1)
    a.wait(lgkm=0); lds_cnt_add(a, X, X+1)
    lp = newlabel('La2'); a.label(lp)
    a('ds_read_b32', v(X+1), v(X)); a('v_readfirstlane_b32', 's40', v(X+1)); a('s_cmp_lt_u32', 's40', 4); a('s_cbranch_scc1', lp)
    stamp(a, 9)
    for kap in range(2):
        for ri, ad in enumerate((lr0, lr1)): a('ds_read_b128', v(Z+8*kap+4*ri, 4), v(ad), mods=f'offset:{8192*kap}')
    MF = 'v_mfma_f32_32x32x16_bf16'
    def mm(kap, dataA, inv, d):
        dR, dI = d, d+16
        zr, zi = v(Z+8*kap, 4), v(Z+8*kap+4, 4)
        c, p, n = v(K.C+4*kap, 4), v(K.Sm+4*kap, 4), v(K.N+4*kap, 4)
        if inv: p, n = n, p
        for k, (dd, z, m) in enumerate(((dR, zr, c), (dI, zi, c), (dR, zi, p), (dI, zr, n))):
            cin = 0 if (kap == 0 and k < 2) else v(dd, 16)
            if dataA: a(MF, v(dd, 16), z, m, cin)
            else: a(MF, v(dd, 16), m, z, cin)
    mm(0, True, False, B0); mm(1, True, False, B0)
    poll_tags(a, wl, [SW+4*i for i in range(4)], t, 3, XSLEEP[0], tagsg=56, pre=True)
    for it in range(4): a('ds_write_b128', v(X+2), v(SW+4*it, 4), mods=f'offset:{4096*it}')
    stamp(a, 12)
    a('v_mov_b32', v(u), 1); a('v_mov_b32', v(t), 's61')
    a.wait(lgkm=0)
    a('s_mov_b64', 'exec', 1); a('ds_add_u32', v(t), v(u), mods='offset:4'); a('s_mov_b64', 'exec', -1)
    bufs = [B0, B1]
    for st in range(3):
        sb, db = bufs[st & 1], bufs[(st + 1) & 1]
        if st == 1:
            lp = newlabel('La2'); a.label(lp, keep=True) if False else None
            a.settle(keep_hist=True) if False else None
            hist = list(a.hist)
            a.raw(lp + ':')
            a('ds_read_b32', v(u), v(t), mods='offset:4'); a('v_readfirstlane_b32', 's40', v(u)); a('s_cmp_lt_u32', 's40', 4)
            a.raw(f'    s_cbranch_scc1 {lp}'); a.bytes += 4
            stamp(a, 14)
            a('v_add_u32', v(t), 's63', v(lr0)); a('v_add_u32', v(u), 's63', v(lr1))
            for kap in range(2):
                for ri, ad in enumerate((t, u)): a('ds_read_b128', v(Wp+8*kap+4*ri, 4), v(ad), mods=f'offset:{8192*kap}')
            for i in range(8): a('v_xor_b32', v(Wp + (i >> 2)*8 + 4 + (i & 3)), 's60', v(Wp + (i >> 2)*8 + 4 + (i & 3)))
        for kap in range(2):
            for jj in range(4):
                for e in range(2):
                    vv = 8*kap + 2*jj + e
                    re, im = sb+vv, sb+16+vv
                    if st == 1:
                        c, s_ = X+4, X+5
                        for dst, pl in ((c, 0), (s_, 1)):
                            src = Wp + 8*kap + 4*pl + jj
                            if e: a('v_and_b32', v(dst), v(msk), v(src))
                            else: a('v_lshlrev_b32', v(dst), 16, v(src))
                    else: c, s_ = K.TC+vv, K.TS+vv
                    a('v_mul_f32', v(X+e), v(re), v(c)); a('v_mul_f32', v(X+2+e), v(im), v(c))
                    if st == 0:
                        a('v_fmac_f32', v(X+e), v(im), v(s_)); a('v_fma_f32', v(X+2+e), '-' + v(re), v(s_), v(X+2+e))
                    else:
                        a('v_fma_f32', v(X+e), '-' + v(im), v(s_), v(X+e)); a('v_fmac_f32', v(X+2+e), v(re), v(s_))
                a('v_cvt_pk_bf16_f32', v(Z+8*kap+jj), v(X), v(X+1))
                a('v_cvt_pk_bf16_f32', v(Z+8*kap+4+jj), v(X+2), v(X+3))
            mm(kap, st == 1, st >= 1, db)
    sb = bufs[1]
    for kap in range(2):
        for ih, ad in enumerate((lr0, lr1)):
            for x in range(4):
                vv = 8*kap + 4*ih + x
                a('v_cvt_pk_bf16_f32', v(Z+vv), v(sb+vv), v(sb+16+vv)); tag2(a, Z+vv, x)
            a('ds_write_b128', v(ad), v(Z+8*kap+4*ih, 4), mods=f'offset:{8192*kap}')
    stamp(a, 10)
    a('s_add_u32', 's8', 's61', 8)
    subbar_s(a, 's8', 4, t, u)
    for it in range(4): a('ds_read_b128', v(Wp+4*it, 4), v(lw), mods=f'offset:{4096*it}')
    for it in range(4): a('global_store_dwordx4', v(go), v(Wp+4*it, 4), s(44+2*it, 2), mods=SC)
    a('s_setprio', 0)
    stamp(a, 13)
    a('s_cmp_ge_u32', 's3', 8); a('s_cbranch_scc1', 'Lfin')
    a('v_mov_b32', v(u), 1); a('v_mov_b32', v(t), 's61')
    a('s_mov_b64', 'exec', 1); a('ds_add_u32', v(t), v(u), mods='offset:12'); a('s_mov_b64', 'exec', -1)
    a('s_branch', 'LA3')

def epoch_store(a):
    pass

def build(stamps=False):
    STAMPS[0] = stamps
    for it in range(4):
        roles._lbl[0] = 0
        a = Asm()
        a.raw(f"; @launch grid=(256,1,1) block=(768,1,1) lds={LDS_TOTAL}")
        a.raw('.amdgcn_target "amdgcn-amd-amdhsa--gfx950"\n.text')
        entry(a)
        pk_A1(a)
        pk_auxE(a)
        pk_B1(a)
        pk_auxO(a)
        pk_B2(a)
        pk_A3(a); a('s_branch', 'Lfin')
        pk_B3(a)
        a.label('Lfin'); stamp_flush(a, 0); a('s_endpgm')
        a.raw('.p2align 10')
        a.raw(kernel_desc(KNAME, 168, 102))
        hi = max(0, (a.bytes + 1023)//1024*1024 - 12288)
        if hi == CODE_HI[0]: break
        CODE_HI[0] = hi
    print('est bytes', a.bytes, 'instrs', a.nins, 'lds', LDS_TOTAL)
    return a.text()

if __name__ == '__main__':
    open('pk4.s', 'w').write(build(False))
    open('pk4st.s', 'w').write(build(True))
    for k in sys.argv[1:]:
        roles.AMP[0] = int(k); open(f'pk4amp{k}.s', 'w').write(build(True))
```

```python
import sys
from asmlib import *
import roles
from roles import (X_, WR_, WI_, Q_, K_, V_, SK_, H_, D_, OUT_, DBG_, WS_, WS_T, WS_W, WS_U, WS_F, TBLK, HSZ, newlabel, stamp, stamp_flush,
                   sincos, row_offsets, d1_addrs, srd, quad_voff, STAMPS)
KNAME = "concat_heads__spectral_gfnet__ssm_conv_h3__prompt_kernel"
H_T, H_W, H_U, H_Z, H_T2 = WS_F, WS_F + 128*128, WS_F + 256*128, WS_F + 384*128, WS_F + 640*128
WS_EP = WS_F + 832*128
SPIN = 1 << 15
SC = 'sc1'
L_CNT = 0
L_H = 256
USZ = 40*144
L_U = L_H + 3*HSZ
L_RED = (L_U + 3*USZ + 127)//128*128
REDSZ = 8192
L_P1 = L_RED + 3*REDSZ - 8192 + 8192
L_P1 = (L_P1 + 255)//256*256
L_XR = L_P1; L_EI = L_XR + 8*3072; L_KI = L_P1; L_VI = L_KI + 17*1296
P1SZ = max(8*3072 + 8*2640 + 1024, 33*1296)
L_A2 = (L_P1 + P1SZ + 255)//256*256
A2SZ = 23552
LDS_TOTAL = L_A2 + A2SZ
assert LDS_TOTAL <= 163840, LDS_TOTAL
L_A2T = L_A2
L_A2W = (L_H + 2*HSZ + 255)//256*256
assert L_A2W + 16384 + 0 <= L_H + 3*HSZ + 0, (L_A2W, L_H + 3*HSZ)
L_TABH = L_RED + 2*REDSZ
L_TW = L_RED
L_T3H = L_U + 2*USZ
L_T3W = L_RED + 2*REDSZ
L_STG_E = L_A2 + 16384
roles.L_CNT, roles.L_EI, roles.L_KI, roles.L_VI, roles.L_XR = L_CNT, L_EI, L_KI, L_VI, L_XR
from roles import subbar, arrive, await_cnt, ei_addrs, b13_lane, tile_dma
C_A1, C_A1D, C_W1, C_W1D, C_A3, C_B1, C_B1D, C_H, C_Q, C_QL = 0, 1, 2, 3, 4, 5, 6, 7, 8, 9
C_A2 = 10
C_U = 20
C_X = 23
C_H0 = 18
C_RED = 24
import pk2
pk2.STAMPS = STAMPS
from pk2 import coop_tables, m2_mats, SEQ, A3K
XDELAY = [0]
WGATE = [8]
HGATE = [1]
GATE = [False]
ZGATE = [True]
LSLEEP = [4]
FSLEEP = [0, 0]
ONEPOLL = [True]

def lds_cnt_add(a, va, vb, rtn=False):
    a('s_mov_b64', 'exec', 1)
    if rtn: a('ds_add_rtn_u32', v(vb), v(va), v(vb))
    else: a('ds_add_u32', v(va), v(vb))
    a('s_mov_b64', 'exec', -1)

def subbar_s(a, saddr, n, va, vb, vm=False):
    a('v_mov_b32', v(va), saddr); a('v_mov_b32', v(vb), 1)
    a.wait(vm=0 if vm else None, lgkm=0)
    lds_cnt_add(a, va, vb, True)
    a('v_readfirstlane_b32', 's40', v(vb))
    done = newlabel('Lbd'); loop = newlabel('Lbl')
    a('s_cmp_ge_u32', 's40', n - 1); a('s_cbranch_scc1', done)
    a.label(loop)
    a('ds_read_b32', v(vb), v(va)); a('v_readfirstlane_b32', 's40', v(vb))
    a('s_cmp_lt_u32', 's40', n); a('s_cbranch_scc1', loop)
    a.label(done)

def publish(a, cid, n, flag_s, va, vb, ep='s52'):
    a('v_mov_b32', v(va), L_CNT + 4*cid); a('v_mov_b32', v(vb), 1)
    a.wait(vm=0, lgkm=0)
    a('s_mov_b64', 'exec', 1)
    a('ds_add_rtn_u32', v(vb), v(va), v(vb))
    a('v_readfirstlane_b32', 's40', v(vb))
    sk = newlabel('Lp')
    a('s_cmp_lg_u32', 's40', n - 1); a('s_cbranch_scc1', sk)
    if ep == 's52':
        a('s_mov_b64', 'exec', 0xff)
        a('v_lshl_add_u32', v(va), 'v0', 14, flag_s)
    else: a('v_mov_b32', v(va), flag_s)
    a('v_mov_b32', v(vb), ep)
    a('global_store_dword', v(va), v(vb), WS_, mods=SC)
    a.label(sk)
    a('s_mov_b64', 'exec', -1)

def poll_flags(a, vaddr, vt, ep='s52'):
    lp = newlabel('Lf'); dn = newlabel('Lf')
    a('s_mov_b32', 's41', SPIN)
    a.label(lp)
    a('global_load_dword', v(vt), v(vaddr), WS_, mods=SC)
    a('s_sub_u32', 's41', 's41', 1)
    a.wait(vm=0)
    a('v_cmp_ne_u32', 'vcc', ep, v(vt))
    a('s_cbranch_scc1', dn)
    sl = FSLEEP[0] if ep == 's52' else FSLEEP[1]
    if sl:
        a('s_cbranch_vccz', dn); a('s_sleep', sl); a('s_branch', lp)
    else: a('s_cbranch_vccnz', lp)
    a.label(dn)
S_M, S_C = 's100', 's101'
def tag_consts(a):
    a('s_mov_b32', S_M, 0xfffeffff); a('s_mov_b32', S_C, 0x10000)
def tag1(a, r, j):
    if j == 0: a('v_and_b32', v(r), 0xfffefffe, v(r))
    elif j == 1: a('v_and_or_b32', v(r), v(r), S_M, 1)
    elif j == 2: a('v_and_or_b32', v(r), v(r), -2, S_C)
    else: a('v_or_b32', v(r), 0x10001, v(r))
def tag2(a, r, j):
    if j & 1: a('v_and_b32', v(r), -2, v(r))
    else: a('v_or_b32', v(r), 1, v(r))
def poll_tags(a, loads, regs, vt, kind, sleep, tagsg=None, pre=False):
    lp = newlabel('Lg'); dn = newlabel('Lg')
    a('s_mov_b32', 's41', SPIN)
    if pre:
        ck = newlabel('Lg'); a('s_branch', ck); a.dead = False
    a.label(lp)
    loads()
    if pre: a.label(ck)
    a('s_sub_u32', 's41', 's41', 1)
    first = True
    for b in regs:
        if kind == 2:
            if first: a('v_bitop3_b32', v(vt), v(b), v(b+1), v(b+1), mods='bitop3:0xcf')
            else: a('v_bitop3_b32', v(vt), v(vt), v(b), v(b+1), mods='bitop3:0xfb')
            a('v_bitop3_b32', v(vt), v(vt), v(b+2), v(b+3), mods='bitop3:0xfb')
        elif kind == 1:
            if first: a('v_bitop3_b32', v(vt), v(b+3), v(b), v(b), mods='bitop3:0xcf')
            else: a('v_bitop3_b32', v(vt), v(vt), v(b+3), v(b), mods='bitop3:0xfb')
            a('v_bitop3_b32', v(vt), v(vt), v(b+1), 1, mods='bitop3:0xf6')
            a('v_bitop3_b32', v(vt), v(vt), v(b+2), S_C, mods='bitop3:0xf6')
        else:
            for j in range(4):
                if first and j == 0: a('v_xor_b32', v(vt), s(tagsg), v(b))
                else: a('v_bitop3_b32', v(vt), v(vt), v(b+j), s(tagsg+j), mods='bitop3:0xf6')
        first = False
    a('v_and_b32', v(vt), 1 if kind == 2 else 0x10001, v(vt))
    a('v_cmp_ne_u32', 'vcc', 0, v(vt))
    a('s_cbranch_scc1', dn)
    a('s_cbranch_vccz', dn); a('s_sleep', sleep); a('s_branch', lp)
    a.label(dn)
def wtag_regs(a, base):
    for j in range(4):
        a('s_add_u32', 's8', 's52', j); a('s_and_b32', s(base+j), 's8', 1); a('s_bitcmp1_b32', 's8', 1)
        a('s_cselect_b32', 's8', S_C, 0); a('s_or_b32', s(base+j), s(base+j), 's8')
def hint(a, caddr, n, flag_s, va, vb, ep):
    a('v_mov_b32', v(va), caddr); a('v_mov_b32', v(vb), 1)
    a('s_mov_b64', 'exec', 1)
    a('ds_add_rtn_u32', v(vb), v(va), v(vb))
    a('v_readfirstlane_b32', 's40', v(vb))
    sk = newlabel('Lp')
    a('s_add_u32', 's40', 's40', 1); a('s_cmp_lg_u32', 's40', n); a('s_cbranch_scc1', sk)
    a('v_mov_b32', v(va), flag_s); a('v_mov_b32', v(vb), ep)
    a('global_store_dword', v(va), v(vb), WS_, mods=SC)
    a.label(sk)
    a('s_mov_b64', 'exec', -1)
def poll_hints(a, vaddr, vt, vz, ep, nlanes):
    lp = newlabel('Lf'); dn = newlabel('Lf')
    a('s_mov_b32', 's41', SPIN); a('v_mov_b32', v(vz), 0)
    if nlanes < 32: a('s_mov_b64', 'exec', (1 << nlanes) - 1)
    else: a('s_mov_b32', 'exec_hi', 0)
    a.label(lp)
    a('global_atomic_add', v(vt), v(vaddr), v(vz), WS_, mods='sc0 sc1')
    a('s_sub_u32', 's41', 's41', 1)
    a.wait(vm=0)
    a('v_cmp_ne_u32', 'vcc', ep, v(vt))
    a('s_cbranch_scc1', dn)
    a('s_cbranch_vccnz', lp)
    a.label(dn)
    a('s_mov_b64', 'exec', -1)
def wait_lds(a, cid, n, t, u):
    a('v_mov_b32', v(t), L_CNT + 4*cid)
    lq = newlabel('Lw'); a.label(lq)
    a('s_sleep', 1); a('ds_read_b32', v(u), v(t)); a('v_readfirstlane_b32', 's40', v(u)); a('s_cmp_lt_u32', 's40', n); a('s_cbranch_scc1', lq)
C_HT, C_HU, C_HZ, C_GU, C_GZ, C_GT2 = 32, 33, 34, 35, 36, 37
NS = [8]
UH = [False]
TWOPASS = [True]
UMARG = [0]
ZDRAIN = [True]
A3ALL = [0]
EG = [0]
def drained(a, cid, va, vb):
    arrive(a, cid, va, vb, vm=True)
TAGX = [False, False]
XSLEEP = [4]
def poll_tag0(a, loads, regs, vt, sleep=0):
    lp = newlabel('Lg'); dn = newlabel('Lg')
    a('s_mov_b32', 's41', SPIN)
    a.label(lp)
    loads()
    a('s_sub_u32', 's41', 's41', 1)
    a('v_or_b32', v(vt), v(regs[0]), v(regs[1]))
    for k in range(2, len(regs), 2): a('v_or3_b32', v(vt), v(vt), v(regs[k]), v(regs[k+1]))
    a('v_and_b32', v(vt), 1, v(vt))
    a('v_cmp_ne_u32', 'vcc', 0, v(vt))
    a('s_cbranch_scc1', dn)
    if sleep:
        a('s_cbranch_vccz', dn); a('s_sleep', sleep); a('s_branch', lp)
    else: a('s_cbranch_vccnz', lp)
    a.label(dn)

def epoch_ready(a):
    a.wait(lgkm=0); a('s_add_u32', 's52', 's52', 1)
def bar0(a):
    a.wait(lgkm=0)
    a('s_add_u32', 's54', 's38', WS_EP); a('s_addc_u32', 's55', 's39', 0)
    a('s_load_dword', 's52', 's[54:55]', 0)
    stamp(a, 1)
    a('s_barrier')

CODE_HI = [6144]
def entry(a):
    a.raw(f".globl {KNAME}\n.p2align 12\n.type {KNAME},@function\n{KNAME}:")
    a('s_cmp_ge_u32', 's2', 256); a('s_cbranch_scc1', 'Lexit')
    if STAMPS[0]:
        for i in range(1, 16): a('s_mov_b32', s(64+2*i), 0)
    stamp(a, 0)
    a('s_load_dwordx16', 's[16:31]', 's[0:1]', 0)
    a('s_load_dwordx8', 's[32:39]', 's[0:1]', 64)
    a('s_getpc_b64', 's[42:43]'); a('s_and_b32', 's42', 's42', 0xfffff000)
    a('s_bitcmp1_b32', 's2', 3); a('s_cselect_b32', 's8', CODE_HI[0], 0); a('s_add_u32', 's42', 's42', 's8'); a('s_addc_u32', 's43', 's43', 0)
    a('v_lshlrev_b32', 'v2', 4, 'v0'); a('v_mov_b32', 'v3', 's43')
    a('v_add_co_u32', 'v2', 'vcc', 's42', 'v2'); a('v_addc_co_u32', 'v3', 'vcc', 0, 'v3', 'vcc')
    a('global_load_dwordx4', 'v[164:167]', 'v[2:3]', 'off')
    a('v_lshrrev_b32', 'v1', 6, 'v0'); a('v_and_b32', 'v0', 63, 'v0')
    a('v_readfirstlane_b32', 's3', 'v1')
    a('s_and_b32', 's4', 's2', 7); a('s_bfe_u32', 's5', 's2', (1 << 16) | 3); a('s_lshr_b32', 's6', 's2', 4)
    a('s_lshl3_add_u32', 's7', 's6', 's4')
    tag_consts(a)
    a('s_mul_i32', 's53', 's4', 80); a('s_mul_i32', 's8', 's6', 5); a('s_add_u32', 's53', 's53', 's8'); a('s_lshl1_add_u32', 's53', 's5', 's53')
    a('v_lshlrev_b32', 'v1', 2, 'v0'); a('v_mov_b32', 'v2', 0)
    a('ds_write_b32', 'v1', 'v2', mods=f'offset:{L_CNT}')
    a('s_cmp_lg_u32', 's5', 0); a('s_cbranch_scc1', 'LentO')
    a('s_cmp_ge_u32', 's3', 8); a('s_cbranch_scc1', 'LauxE')
    R = RegAlloc(1, 160)
    a('s_lshl_b32', 's9', 's3', 7); a('s_add_u32', 's9', 's9', 's7'); a('s_mul_i32', 's10', 's9', 1280)
    vo = row_offsets(a, R, 's10', 1024*1280)
    a('s_mul_i32', 's11', 's3', 3072); a('s_add_u32', 's11', 's11', L_XR); a('s_mov_b32', 'm0', 's11')
    if XDELAY[0]: a('s_sleep', XDELAY[0])
    for t in range(3): a('global_load_lds_dwordx4', v(vo[t]), X_, mods=f'offset:{1024*t}')
    a('s_branch', 'LA1')
    a.label('LentO')
    a('s_cmp_ge_u32', 's3', 9); a('s_cbranch_scc1', 'Lbar0')
    R = RegAlloc(1, 160)
    vo = quad_voff(a, R); t = R.alloc()
    a('s_mul_i32', 's10', 's6', 128*1280); a('s_mul_i32', 's8', 's4', 160); a('s_add_u32', 's10', 's10', 's8')
    a('s_sub_u32', 's8', 's10', 4*1280); a('v_add_u32', v(t), 's8', v(vo))
    NB = 2048*1280
    srd(a, 44, 's24', 's25', NB); srd(a, 48, 's26', 's27', NB)
    a('s_mov_b32', 'exec_hi', 0xff)
    a('s_cmp_eq_u32', 's3', 8); a('s_cbranch_scc1', 'LentH')
    a('s_mul_i32', 's11', 's3', 16*1280); a('s_add_u32', 's11', 's11', 's10')
    a('s_mul_i32', 's12', 's3', 2*1296); a('s_add_u32', 's12', 's12', L_KI + 1296)
    for k in range(4):
        a('s_mov_b32', 'm0', 's12')
        a('buffer_load_dwordx4', v(vo), 's[44:47]', 's11', mods='offen lds')
        a('s_add_u32', 'm0', 's12', L_VI - L_KI - 1296)
        a('buffer_load_dwordx4', v(vo), 's[48:51]', 's11', mods='offen lds')
        if k < 3:
            a('s_addk_i32', 's11', 4*1280); a('s_addk_i32', 's12', 640 if k != 1 else 656)
    a('s_branch', 'LentX')
    a.label('LentH')
    a('s_mov_b32', 'm0', L_KI + 640)
    a('buffer_load_dwordx4', v(t), 's[44:47]', 0, mods='offen lds')
    a.label('LentX')
    a('s_mov_b64', 'exec', -1)
    a.label('Lbar0')
    bar0(a)
    a('s_cmp_ge_u32', 's3', 10); a('s_cbranch_scc1', 'LauxO')
    a('s_branch', 'LB1')
    a.label('Lexit')
    a('s_endpgm')

def h_copy(a, R, slc, sc):
    mk = R.mark()
    vo = R.alloc(); Hd = R.alloc(4); t = R.alloc()
    a('s_lshl_b32', 's8', sc, 1); a('s_add_u32', 's8', 's8', 2); a('v_lshl_add_u32', v(vo), 'v0', 4, 's8')
    a('s_and_b32', 's12', sc, 1); a('s_mul_i32', 's12', 's12', 529*16); a('s_lshr_b32', 's13', sc, 1); a('s_mul_i32', 's13', 's13', 264*16)
    a('s_add_u32', 's12', 's12', 's13'); a('s_mul_i32', 's13', slc, HSZ); a('s_add_u32', 's12', 's12', 's13'); a('s_add_u32', 's12', 's12', L_H)
    a('s_add_u32', 's8', 's53', slc); a('s_lshl_b32', 's8', 's8', 12)
    a('s_load_dwordx2', 's[56:57]', H_, 's8')
    a('s_add_u32', 's44', 's30', 's8'); a('s_addc_u32', 's45', 's31', 0); a('s_and_b32', 's45', 's45', 0xffff)
    a('s_mov_b32', 's46', 4096); a('s_mov_b32', 's47', 0x20000)
    a('s_add_u32', 'm0', 's12', 128)
    for b in range(4): a('buffer_load_dwordx4', v(vo), 's[44:47]', 0, mods=f'offen offset:{1024*b} lds')
    for k in range(4): a('v_mov_b32', v(Hd+k), 0)
    sk = newlabel('Lh')
    a('s_cmp_lg_u32', sc, 0); a('s_cbranch_scc1', sk)
    a('s_mul_i32', 's8', slc, USZ); a('s_add_u32', 's8', 's8', L_U + 32*144)
    a('v_lshl_add_u32', v(t), 'v0', 4, 's8')
    a('ds_write_b128', v(t), v(Hd, 4))
    a('s_mov_b64', 'exec', 0xff); a('ds_write_b128', v(t), v(Hd, 4), mods='offset:1024'); a('s_mov_b64', 'exec', -1)
    a.label(sk)
    a('s_lshl_b32', 's8', sc, 4); a('s_sub_u32', 's8', 48, 's8')
    a('v_lshl_add_u32', v(t), 'v0', 4, 's12')
    a.wait(lgkm=0)
    a('s_lshl_b64', 's[56:57]', 's[56:57]', 's8')
    a('v_writelane_b32', v(Hd+2), 's56', 7); a('v_writelane_b32', v(Hd+3), 's57', 7)
    a('s_mov_b64', 'exec', 0xff)
    a('ds_write_b128', v(t), v(Hd, 4))
    a('s_mov_b64', 'exec', -1)
    R.release(mk)

def h_srd(a, slc):
    a('s_add_u32', 's8', 's53', slc); a('s_lshl_b32', 's8', 's8', 12)
    a('s_add_u32', 's44', 's30', 's8'); a('s_addc_u32', 's45', 's31', 0); a('s_and_b32', 's45', 's45', 0xffff)
    a('s_mov_b32', 's46', 4096); a('s_mov_b32', 's47', 0x20000)
def h_load(a, D, vo, vo2, imm):
    a('buffer_load_dwordx4', v(D, 4), v(vo), 's[44:47]', 0, mods=f'offen offset:{imm}')
    a('buffer_load_dwordx2', v(D+4, 2), v(vo2), 's[44:47]', 0, mods=f'offen offset:{imm}')
def h_expand(a, D, T, wa, imm):
    CB = [0, 529*16, 264*16, 793*16]
    for i in range(4): a('v_alignbit_b32', v(T+i), v(D+i+1), v(D+i), 16)
    a('ds_write_b128', v(wa), v(T, 4), mods=f'offset:{imm + CB[0]}')
    for i in range(4): a('v_alignbit_b32', v(T+4+i), v(D+i+2), v(D+i+1), 16)
    a('ds_write_b128', v(wa), v(T+4, 4), mods=f'offset:{imm + CB[2]}')
    a('ds_write_b128', v(wa), v(D+2, 4), mods=f'offset:{imm + CB[3]}')
    for i in range(4): a('v_mov_b32', v(T+8+i), v(D+i+1))
    a('ds_write_b128', v(wa), v(T+8, 4), mods=f'offset:{imm + CB[1]}')
def u_pad(a, slc, Zr, t):
    a('s_mul_i32', 's8', slc, USZ); a('s_add_u32', 's8', 's8', L_U + 32*144)
    a('v_lshl_add_u32', v(t), 'v0', 4, 's8')
    a('ds_write_b128', v(t), v(Zr, 4))
    a('s_mov_b64', 'exec', 0xff); a('ds_write_b128', v(t), v(Zr, 4), mods='offset:1024'); a('s_mov_b64', 'exec', -1)

def pk_A1(a):
    a.label('LA1')
    a('s_setprio', 2)
    R = RegAlloc(1, 150)
    coop_tables(a, R, L_TABH, L_TW, a3=False)
    bar0(a)
    HE = 152
    R = RegAlloc(1, 152)
    rd = R.alloc(); va = R.alloc(); vb = R.alloc(); t = R.alloc(); q = R.alloc()
    Hs = R.alloc(16); Gs = R.alloc(16); TW = R.alloc(24)
    a('v_lshlrev_b32', v(rd), 4, 'v0'); a('v_add_u32', v(t), L_TABH, v(rd)); a('v_add_u32', v(rd), L_TW, v(rd))
    Mre, Mim = m2_mats(a, R, False, None)
    epoch_ready(a)
    for k in (3, 0, 1, 2):
        a('ds_read_b128', v(Hs+4*k, 4), v(t), mods=f'offset:{1024*k}'); a('ds_read_b128', v(Gs+4*k, 4), v(t), mods=f'offset:{4096+1024*k}')
    for k in (2, 3, 4, 5, 0, 1): a('ds_read_b128', v(TW+4*k, 4), v(rd), mods=f'offset:{1024*k}')
    a('v_lshrrev_b32', v(va), 2, 'v0'); a('v_lshrrev_b32', v(q), 4, 'v0')
    a('v_bfe_u32', v(vb), 'v0', 1, 1); a('v_mul_u32_u24', v(vb), 1408, v(vb))
    a('v_and_b32', v(t), 1, 'v0'); a('v_lshl_add_u32', v(vb), v(t), 3, v(vb)); a('v_add_u32', v(vb), 's11', v(vb))
    tra = d1_addrs(a, R, va, vb)
    Dr = R.alloc(10)
    a('s_lshr_b32', 's14', 's3', 2); a('s_and_b32', 's15', 's3', 3); h_srd(a, 's14')
    a('s_lshl_b32', 's8', 's15', 10); a('v_lshl_add_u32', v(Dr), 'v0', 4, 's8'); a('v_lshlrev_b32', v(Dr+1), 4, 'v0')
    a('v_subrev_u32', v(Dr+2), 128, v(Dr+1)); a('v_subrev_u32', v(Dr+3), 112, v(Dr+1))
    a('buffer_load_dwordx4', v(HE, 4), v(Dr), 's[44:47]', 0, mods='offen'); a('buffer_load_dwordx2', v(HE+4, 2), v(Dr), 's[44:47]', 0, mods='offen offset:16')
    h_load(a, HE+6, Dr+2, Dr+3, 0)
    a('v_mov_b32', v(va), L_CNT + 4*C_X); a('v_mov_b32', v(vb), 1)
    stamp(a, 2)
    a.wait(vm=4)
    stamp(a, 3)
    for e in (0, 1, 2, 3, 4): a('ds_read_b64_tr_b16', v(Dr + 2*((e + 4) % 5), 2), v(tra[e]))
    lds_cnt_add(a, va, vb)
    ea0, ea1 = ei_addrs(a, R, 2624, dup=False)
    P0 = R.alloc(8); A1 = R.alloc(24); PK = R.alloc(12); X = R.alloc(8)
    a('v_mfma_f32_16x16x16_bf16', v(P0, 4), v(Dr+8, 2), v(Hs+12, 2), 0)
    a('v_mfma_f32_16x16x16_bf16', v(P0+4, 4), v(Dr+8, 2), v(Gs+12, 2), 0)
    tr2 = R.alloc(); go = R.alloc()
    a('v_bfe_u32', v(tr2), 'v0', 2, 2); a('v_mul_u32_u24', v(tr2), 2624, v(tr2))
    a('v_and_b32', v(t), 3, 'v0'); a('v_lshl_add_u32', v(tr2), v(t), 3, v(tr2))
    a('v_lshl_add_u32', v(tr2), v(q), 5, v(tr2))
    PAIR = {1: (0, 4), 2: (1, 3), 0: (6, 6)}
    for k5 in (1, 2, 0):
        for ri, M in enumerate((Hs, Gs)):
            a('v_mfma_f32_16x16x32_bf16', v(A1+8*k5+4*ri, 4), v(Dr, 4), v(M + 2*PAIR[k5][0], 4), v(P0+4*ri, 4))
        for ri, M in enumerate((Hs, Gs)):
            a('v_mfma_f32_16x16x32_bf16', v(A1+8*k5+4*ri, 4), v(Dr+4, 4), v(M + 2*PAIR[k5][1], 4), v(A1+8*k5+4*ri, 4))
        if k5 == 1:
            a('s_lshl_b32', 's8', 's3', 7); a('s_add_u32', 's8', 's8', L_EI); a('v_add_u32', v(tr2), 's8', v(tr2))
            a('s_mul_i32', 's8', 's7', TBLK); a('s_lshl_b32', 's12', 's3', 10); a('s_add_u32', 's8', 's8', 's12')
            a('v_lshl_add_u32', v(go), 'v0', 4, 's8')
    A2 = Hs
    for k5 in (1, 2, 0):
        for r in range(4):
            re, im, c, s_ = A1+8*k5+r, A1+8*k5+4+r, TW+8*k5+r, TW+8*k5+4+r
            a('v_mul_f32', v(X+r), v(re), v(c)); a('v_mul_f32', v(X+4+r), v(im), v(c))
            a('v_fmac_f32', v(X+r), v(im), v(s_)); a('v_fma_f32', v(X+4+r), '-' + v(re), v(s_), v(X+4+r))
            a('v_cvt_pk_bf16_f32', v(PK+4*k5+r), v(X+r), v(X+4+r))
        a('v_mfma_f32_16x16x32_bf16', v(A2+8*k5, 4), v(Mre, 4), v(PK+4*k5, 4), 0)
        a('v_mfma_f32_16x16x32_bf16', v(A2+8*k5+4, 4), v(Mim, 4), v(PK+4*k5, 4), 0)
    for k5 in (1, 2, 0):
        for r in range(4): a('v_cvt_pk_bf16_f32', v(PK+4*k5+r), v(A2+8*k5+r), v(A2+8*k5+4+r))
        if k5: a('ds_write_b128', v(ea0), v(PK+4*k5, 4), mods=f'offset:{1024*(k5-1)}')
        else: a('ds_write_b128', v(ea1), v(PK, 4))
    stamp(a, 4)
    subbar(a, C_A1, 8, X, X+1)
    O = A1
    for it in range(3):
        if it == 2:
            skip = newlabel('La1s'); a('s_cmp_gt_u32', 's3', 4); a('s_cbranch_scc1', skip)
        a('ds_read_b64_tr_b16', v(O+4*it, 2), v(tr2), mods=f'offset:{1024*it}')
        a('ds_read_b64_tr_b16', v(O+4*it+2, 2), v(tr2), mods=f'offset:{1024*it + 4*2624}')
        if it == 1:
            for j in range(4): tag1(a, O+j, j)
            a('global_store_dwordx4', v(go), v(O, 4), WS_, mods=SC)
            a('v_add_u32', v(go), 8192, v(go))
            for j in range(4): tag1(a, O+4+j, j)
            a('global_store_dwordx4', v(go), v(O+4, 4), WS_, mods=SC)
            a('v_add_u32', v(go), 8192, v(go))
    for j in range(4): tag1(a, O+8+j, j)
    a('s_cmp_lt_u32', 's3', 4); a('s_cselect_b32', 'exec_hi', -1, 0)
    a('global_store_dwordx4', v(go), v(O+8, 4), WS_, mods=SC)
    a('s_mov_b64', 'exec', -1)
    a.label(skip)
    stamp(a, 5)
    a('s_setprio', 0)
    R = RegAlloc(1, 60)
    coop_tables(a, R, L_T3H, L_T3W, a3=True)
    drained(a, C_A1D, 1, 2)
    stamp(a, 6)
    R = RegAlloc(1, 60)
    T = R.alloc(12); wa = R.alloc(); tt = R.alloc()
    a('s_lshr_b32', 's14', 's3', 2); a('s_and_b32', 's15', 's3', 3)
    a('s_mul_i32', 's8', 's14', HSZ); a('s_add_u32', 's8', 's8', L_H); a('v_lshl_add_u32', v(tt), 'v0', 4, 's8')
    a('s_lshl_b32', 's8', 's15', 10); a('v_add_u32', v(wa), 's8', v(tt))
    h_expand(a, HE, T, wa, 128)
    skh = newlabel('Lh'); a('s_cmp_lg_u32', 's15', 0); a('s_cbranch_scc1', skh)
    a('s_mov_b64', 'exec', 0xff)
    h_expand(a, HE+6, T, tt, 0)
    a('s_mov_b64', 'exec', -1)
    for k in range(4): a('v_mov_b32', v(T+k), 0)
    u_pad(a, 's14', T, wa)
    a.label(skh)
    a('s_cmp_ge_u32', 's7', 36); a('s_cbranch_scc1', 'LB2')
    a('s_cmp_ge_u32', 's3', 4); a('s_cbranch_scc1', 'LB2')
    arrive(a, C_H0, 1, 2)
    a('s_add_u32', 's9', 's7', 128); a('s_mov_b32', 's10', 's3')
    a('s_mov_b32', 's62', L_P1); a('s_mov_b32', 's63', L_P1 + 16384); a('s_mov_b32', 's61', L_CNT + 4*(C_A2+4))
    a('s_branch', 'LA2c')

def gen_A3_regs(a):
    K = A3K(); PIT = 2640
    R = RegAlloc(100, 164); T = RegAlloc(1, 100)
    t = T.alloc(); n = T.alloc(); q = T.alloc(); vb = T.alloc()
    K.go = R.alloc(); K.go2 = R.alloc(); K.go3 = R.alloc(); K.lw = R.alloc()
    a('s_mul_i32', 's8', 's7', TBLK); a('s_lshl_b32', 's12', 's3', 10); a('s_add_u32', 's12', 's8', 's12')
    a('v_lshl_add_u32', v(K.go), 'v0', 4, 's12'); a('v_add_u32', v(K.go2), 8192, v(K.go))
    a('s_add_u32', 's8', 's8', TBLK - 16)
    a('v_add_u32', v(K.go3), 16384, v(K.go)); a('v_min_u32', v(K.go3), 's8', v(K.go3))
    a('v_and_b32', v(t), 1, 'v0'); a('v_mul_u32_u24', v(K.lw), 4*PIT, v(t))
    a('v_lshrrev_b32', v(t), 1, 'v0'); a('v_lshl_add_u32', v(K.lw), v(t), 2, v(K.lw))
    a('s_lshl_b32', 's8', 's3', 7); a('s_add_u32', 's8', 's8', L_EI); a('v_add_u32', v(K.lw), 's8', v(K.lw))
    K.ea0, K.ea1 = ei_addrs(a, R, PIT, dup=True)
    a('s_lshl_b32', 's9', 's3', 7); a('s_add_u32', 's9', 's9', 's7'); a('s_mul_i32', 's10', 's9', 2560)
    a('s_mul_i32', 's11', 's3', 3072); a('s_add_u32', 's11', 's11', L_XR)
    K.vo = row_offsets(a, R, 's10', 1024*2560)
    K.Mre, K.Mim = m2_mats(a, R, True, 2.0/(2048*640))
    K.rd = R.alloc()
    a('v_and_b32', v(n), 15, 'v0'); a('v_lshrrev_b32', v(q), 4, 'v0')
    a('v_lshrrev_b32', v(vb), 5, 'v0'); a('v_mul_u32_u24', v(vb), 1408, v(vb))
    a('v_and_b32', v(t), 1, v(q)); a('v_lshl_add_u32', v(vb), v(t), 3, v(vb)); a('v_add_u32', v(vb), 's11', v(vb))
    K.wa = d1_addrs(a, R, n, vb)
    a('v_lshl_add_u32', v(K.rd), 'v0', 4, 's11')
    K.TW = R.alloc(24)
    return K

def pk_A3(a):
    a.label('LA3')
    K = gen_A3_regs(a)
    PIT = 2640
    R = RegAlloc(1, 100)
    t = R.alloc(); u = R.alloc(); IN = R.alloc(12); X = R.alloc(8); F = R.alloc(20)
    await_cnt(a, C_A1D, 8, t, u)
    sk2 = newlabel('La3w'); a('s_cmp_ge_u32', 's7', 36); a('s_cbranch_scc1', sk2)
    await_cnt(a, C_A2+4+3, 4, t, u)
    a.label(sk2)
    a('v_lshlrev_b32', v(t), 4, 'v0'); a('v_add_u32', v(u), L_T3W, v(t)); a('v_add_u32', v(t), L_T3H, v(t))
    for k in range(5): a('ds_read_b128', v(F+4*k, 4), v(t), mods=f'offset:{1024*k}')
    for k in range(6): a('ds_read_b128', v(K.TW+4*k, 4), v(u), mods=f'offset:{1024*k}')
    wait_lds(a, C_A2+3, 4, t, u)
    if A3ALL[0]:
        arrive(a, C_GT2, t, u); wait_lds(a, C_GT2, A3ALL[0], t, u)
    stamp(a, 11)
    a.wait(vm=0)
    a('s_setprio', 2)
    def loads():
        a('global_load_dwordx4', v(IN, 4), v(K.go), WS_, mods=SC)
        a('global_load_dwordx4', v(IN+4, 4), v(K.go2), WS_, mods=SC)
        a('global_load_dwordx4', v(IN+8, 4), v(K.go3), WS_, mods=SC)
    poll_tags(a, loads, [IN, IN+4, IN+8], t, 2, LSLEEP[0])
    stamp(a, 12)
    for it in range(3):
        if it == 2:
            skip = newlabel('La3s'); a('s_cmp_gt_u32', 's3', 4); a('s_cbranch_scc1', skip)
            a('s_cmp_lt_u32', 's3', 4); a('s_cselect_b32', 'exec_hi', -1, 0)
        for x in range(4): a('ds_write_b32', v(K.lw), v(IN+4*it+x), mods=f'offset:{1024*it + PIT*x}')
    a('s_mov_b64', 'exec', -1)
    a.label(skip)
    subbar(a, C_A3, 8, t, u)
    stamp(a, 13)
    Z = IN; A1 = R.alloc(24); PK = Z; Y = R.alloc(20); P0 = R.alloc(4)
    a('ds_read_b128', v(Z, 4), v(K.ea1))
    a('ds_read_b128', v(Z+4, 4), v(K.ea0)); a('ds_read_b128', v(Z+8, 4), v(K.ea0), mods='offset:1024')
    MF = 'v_mfma_f32_16x16x32_bf16'
    for k5 in range(3):
        a(MF, v(A1+8*k5, 4), v(Z+4*k5, 4), v(K.Mre, 4), 0); a(MF, v(A1+8*k5+4, 4), v(Z+4*k5, 4), v(K.Mim, 4), 0)
    for k5 in range(3):
        for r in range(4):
            re, im, c, s_ = A1+8*k5+r, A1+8*k5+4+r, K.TW+8*k5+r, K.TW+8*k5+4+r
            a('v_mul_f32', v(X+r), v(re), v(c)); a('v_mul_f32', v(X+4+r), v(im), v(c))
            a('v_fma_f32', v(X+r), '-' + v(im), v(s_), v(X+r)); a('v_fmac_f32', v(X+4+r), v(re), v(s_))
            if r & 1:
                a('v_cvt_pk_bf16_f32', v(PK+4*k5+(r >> 1)), v(X+r-1), v(X+r))
                a('v_cvt_pk_bf16_f32', v(PK+4*k5+2+(r >> 1)), v(X+4+r-1), v(X+4+r))
        if k5 == 0: a(MF, v(P0, 4), v(PK, 4), v(F, 4), 0)
        else:
            for e in range(5):
                a(MF, v(Y+4*e, 4), v(PK+4*k5, 4), v(F+4*((e*k5) % 5), 4), v(P0, 4) if k5 == 1 else v(Y+4*e, 4))
    for e in range(5):
        a('v_cvt_pk_bf16_f32', v(A1+2*e), v(Y+4*e), v(Y+4*e+1)); a('v_cvt_pk_bf16_f32', v(A1+2*e+1), v(Y+4*e+2), v(Y+4*e+3))
        a('ds_write_b64', v(K.wa[e]), v(A1+2*e, 2))
    for k in range(3): a('ds_read_b128', v(Z+4*k, 4), v(K.rd), mods=f'offset:{1024*k}')
    a('global_store_dwordx4', v(K.vo[0]), v(Z, 4), OUT_, mods=SC)
    a('s_mov_b32', 'exec_lo', 0xff00ffff)
    a('global_store_dwordx4', v(K.vo[1]), v(Z+4, 4), OUT_, mods='offset:1024 sc1')
    a('s_mov_b32', 'exec_lo', -1); a('s_mov_b32', 'exec_hi', 0xff)
    a('global_store_dwordx4', v(K.vo[2]), v(Z+8, 4), OUT_, mods='offset:2048 sc1')
    stamp(a, 14)
    ske = newlabel('Lep')
    a('s_mov_b64', 'exec', 1)
    a('s_or_b32', 's8', 's2', 's3'); a('s_cmp_lg_u32', 's8', 0); a('s_cbranch_scc1', ske)
    a('v_mov_b32', v(t), WS_EP); a('v_mov_b32', v(u), 's52')
    a('global_store_dword', v(t), v(u), WS_, mods=SC)
    a.label(ske)
    a('s_mov_b64', 'exec', -1)

def pk_B1(a):
    a.label('LB1')
    a('s_setprio', 2)
    R = RegAlloc(1, 160)
    t = R.alloc(); u = R.alloc()
    lb, uo, pr, od = b13_lane(a, R, WS_U)
    CF = R.alloc(4); C = R.alloc(8)
    a('s_mul_i32', 's8', 's4', 640); a('v_lshl_add_u32', v(t), v(pr), 4, 's8')
    a('global_load_dwordx4', v(CF, 4), v(t), SK_)
    msk = R.alloc(); a('v_mov_b32', v(msk), 0xffff0000)
    epoch_ready(a)
    stamp(a, 2)
    for j in range(4):
        for ch in range(2):
            src = CF + 2*ch + (j >> 1)
            if j & 1: a('v_and_b32', v(C+2*j+ch), v(msk), v(src))
            else: a('v_lshlrev_b32', v(C+2*j+ch), 16, v(src))
    subbar(a, C_B1, 10, t, u, vm=True)
    stamp(a, 3)
    Kd = R.alloc(12); Vd = R.alloc(8); Kf = R.alloc(22); T = R.alloc(4); O = R.alloc(8); res = R.alloc(4); uo2 = R.alloc()
    for i in range(11): a('ds_read_b32', v(Kd+i), v(lb), mods=f'offset:{(800 + 160*i if i < 3 else 1296 + 160*(i-3))}')
    for i in range(8): a('ds_read_b32', v(Vd+i), v(lb), mods=f'offset:{L_VI - L_KI + 160*i}')
    a('v_add_u32', v(uo2), 4096, v(uo))
    def unp(i):
        a('v_lshlrev_b32', v(Kf+2*i), 16, v(Kd+i)); a('v_and_b32', v(Kf+2*i+1), v(msk), v(Kd+i))
    for i in range(3): unp(i)
    for i in range(8):
        unp(i+3)
        for ch in range(2):
            acc = T + ch; dst = res + 2*(i & 1) + ch
            a('v_mul_f32', v(acc), v(Kf+2*i+ch), v(C+6+ch))
            for j in (2, 1, 0): a('v_fmac_f32', v(acc), v(Kf+2*(i+3-j)+ch), v(C+2*j+ch))
            if ch: a('v_and_b32', v(T+2+ch), v(msk), v(Vd+i))
            else: a('v_lshlrev_b32', v(T+2+ch), 16, v(Vd+i))
            a('v_mul_f32', v(dst), v(acc), v(T+2+ch))
        if i & 1:
            for ch in range(2):
                d = O+4*ch+3-(i >> 1)
                a('v_cvt_pk_bf16_f32', v(d), v(res+2+ch), v(res+ch)); tag1(a, d, 3-(i >> 1))
    stamp(a, 4)
    a('global_store_dwordx4', v(uo), v(O, 4), WS_, mods=SC)
    a('global_store_dwordx4', v(uo2), v(O+4, 4), WS_, mods=SC)
    if UH[0]: hint(a, L_CNT + 4*C_HU, 10, 's8', t, u, 's96')
    stamp(a, 5)
    drained(a, C_B1D, t, u)
    stamp(a, 6)
    a('s_setprio', 0)
    a('s_branch', 'LB2')

def pk_auxO(a):
    a.label('LauxO')
    R = RegAlloc(1, 120); t = R.alloc(); u = R.alloc(); vo = R.alloc(); vh = R.alloc(); vh2 = R.alloc(); wa = R.alloc(); wh = R.alloc()
    T = R.alloc(12); D = R.alloc(54)
    a('s_sub_u32', 's62', 's3', 10); a('s_lshl_b32', 's62', 's62', 11)
    a('v_lshlrev_b32', v(t), 4, 'v0'); a('v_add_u32', v(vo), 's62', v(t)); a('v_subrev_u32', v(vh), 128, v(t)); a('v_subrev_u32', v(vh2), 112, v(t))
    a('v_add_u32', v(wh), L_H, v(t)); a('v_add_u32', v(wa), 's62', v(wh))
    if HGATE[0]: await_cnt(a, C_B1, HGATE[0], t, u)
    a('v_lshlrev_b32', v(t), 4, 'v0')
    for lc in range(3):
        h_srd(a, lc)
        for b in range(2):
            a('buffer_load_dwordx4', v(D+18*lc+6*b, 4), v(vo), 's[44:47]', 0, mods=f'offen offset:{1024*b}')
            a('buffer_load_dwordx2', v(D+18*lc+6*b+4, 2), v(vo), 's[44:47]', 0, mods=f'offen offset:{1024*b+16}')
        h_load(a, D+18*lc+12, vh, vh2, 0)
    epoch_ready(a)
    for k in range(4): a('v_mov_b32', v(T+k), 0)
    for lc in range(3): u_pad(a, lc, T, t)
    for lc in range(3):
        for b in range(2): h_expand(a, D+18*lc+6*b, T, wa, lc*HSZ + 128 + 1024*b)
        a('s_mov_b64', 'exec', 0xff)
        h_expand(a, D+18*lc+12, T, wh, lc*HSZ)
        a('s_mov_b64', 'exec', -1)
    arrive(a, C_H, t, u)
    stamp(a, 6)
    a('s_branch', 'LB2')

def pk_B3(a):
    a.label('LB3')
    a('s_cmp_ge_u32', 's3', 10); a('s_cbranch_scc1', 'Lfin')
    R = RegAlloc(1, 160)
    t = R.alloc(); u = R.alloc()
    lb, uo, pr, od = b13_lane(a, R, WS_U)
    uo2 = R.alloc(); a('v_add_u32', v(uo2), 4096, v(uo))
    Z = R.alloc(8); oo = R.alloc(); rd = R.alloc(); msk = R.alloc(); a('v_mov_b32', v(msk), 0xffff0000)
    a('v_mul_u32_u24', v(t), 26, 'v0'); a('v_lshrrev_b32', v(t), 8, v(t))
    a('v_mul_u32_u24', v(oo), 2560 - 160, v(t)); a('v_lshl_add_u32', v(oo), 'v0', 4, v(oo))
    a('s_lshl_b32', 's8', 's6', 3); a('s_add_u32', 's8', 's8', 's3'); a('s_mul_i32', 's8', 's8', 16*2560)
    a('s_mul_i32', 's9', 's4', 160); a('s_add_u32', 's8', 's8', 's9'); a('s_add_u32', 's8', 's8', 1280); a('v_add_u32', v(oo), 's8', v(oo))
    a('s_mul_i32', 's8', 's3', 2*1296); a('s_add_u32', 's8', 's8', L_VI); a('v_lshl_add_u32', v(rd), 'v0', 4, 's8')
    await_cnt(a, C_QL, 8, t, u)
    Qd = R.alloc(8); Qf = R.alloc(16); T = R.alloc(4); O = R.alloc(16)
    for i in range(8): a('ds_read_b32', v(Qd+i), v(lb), mods=f'offset:{L_VI - L_KI + 160*i}')
    for i in range(8):
        a('v_lshlrev_b32', v(Qf+2*i), 16, v(Qd+i)); a('v_and_b32', v(Qf+2*i+1), v(msk), v(Qd+i))
    def loads():
        a('global_load_dwordx4', v(Z, 4), v(uo), WS_, mods=SC); a('global_load_dwordx4', v(Z+4, 4), v(uo2), WS_, mods=SC)
    wait_lds(a, C_HZ, 6, t, u)
    stamp(a, 11)
    a.wait(vm=0)
    a('s_setprio', 2)
    poll_tags(a, loads, [Z, Z+4], t, 2, LSLEEP[0])
    stamp(a, 12)
    for i in range(8):
        for ch in range(2):
            src = Z + 4*ch + 3 - (i >> 1)
            if i & 1: a('v_lshlrev_b32', v(T+ch), 16, v(src))
            else: a('v_and_b32', v(T+ch), v(msk), v(src))
            a('v_mul_f32', v(T+ch), v(T+ch), v(Qf+2*i+ch))
        a('v_cvt_pk_bf16_f32', v(Qd+i), v(T), v(T+1))
        a('ds_write_b32', v(lb), v(Qd+i), mods=f'offset:{L_VI - L_KI + 160*i}')
    subbar(a, C_Q, 10, t, u)
    stamp(a, 13)
    a('s_cmp_ge_u32', 's3', 8); a('s_cbranch_scc1', 'Lfin')
    a('s_mov_b32', 'exec_hi', 0xff)
    for k in range(4): a('ds_read_b128', v(O+4*k, 4), v(rd), mods=f'offset:{(k >> 1)*1296 + (k & 1)*640}')
    for k in range(4):
        a('global_store_dwordx4', v(oo), v(O+4*k, 4), OUT_, mods=SC)
        if k < 3: a('v_add_u32', v(oo), 4*2560, v(oo))
    stamp(a, 14)
    a('s_mov_b64', 'exec', -1)

def pk_B2(a):
    a.label('LB2')
    R = RegAlloc(1, 120)
    t = R.alloc(); u = R.alloc(); lw = R.alloc(); U = R.alloc(8); go = R.alloc(); fa = R.alloc(); Dv = R.alloc(); msk = R.alloc()
    n = R.alloc(); q = R.alloc(); aa = R.alloc(); ba = R.alloc(); ba2 = R.alloc(); ia = R.alloc(); ra = R.alloc()
    a('s_lshr_b32', 's9', 's3', 2); a('s_and_b32', 's10', 's3', 3)
    a('s_mul_i32', 's15', 's9', USZ); a('s_add_u32', 's15', 's15', L_U)
    a('v_lshrrev_b32', v(t), 3, 'v0'); a('v_lshlrev_b32', v(t), 4, v(t)); a('v_lshl_add_u32', v(lw), 'v0', 4, v(t))
    a('s_mul_i32', 's8', 's10', 8*144); a('s_add_u32', 's8', 's8', 's15'); a('v_add_u32', v(lw), 's8', v(lw))
    a('s_add_u32', 's13', 's53', 's9')
    a('s_lshl_b32', 's8', 's13', 12); a('s_lshl_b32', 's12', 's10', 10); a('s_add_u32', 's8', 's8', 's12'); a('s_add_u32', 's8', 's8', WS_U)
    a('v_lshl_add_u32', v(go), 'v0', 4, 's8')
    a('s_lshl_b32', 's60', 's9', 2); a('s_add_u32', 's60', 's60', L_CNT + 4*C_U)
    a('s_sub_u32', 's11', 's10', 's9'); a('s_and_b32', 's11', 's11', 3); a('s_lshl2_add_u32', 's99', 's9', 's11'); a('s_or_b32', 's99', 's99', 16)
    a('s_cmp_lt_u32', 's7', 36); a('s_cselect_b32', 's63', 1, 0); a('s_cmp_eq_u32', 's5', 0); a('s_cselect_b32', 's63', 's63', 0)
    lj_ = newlabel('Lb2'); a('s_cmp_eq_u32', 's63', 0); a('s_cbranch_scc1', lj_)
    J = lambda l: sum((16 | lc << 2 | ro) << (5*i) for i, (lc, ro) in enumerate(l))
    lists = [J([(0, 0)]), J([(1, 0)]), J([(0, 3), (1, 3), (0, 2)]), J([(0, 1), (1, 1), (1, 2)])]
    a('s_mov_b32', 's56', lists[0] | lists[1] << 16); a('s_mov_b32', 's57', lists[2] | lists[3] << 16)
    a('s_lshl_b32', 's8', 's10', 4); a('s_lshr_b64', 's[56:57]', 's[56:57]', 's8'); a('s_and_b32', 's99', 's56', 0x7fff)
    a.label(lj_)
    a('s_mov_b32', 's62', 1)
    a.label('LB2p')
    a('s_bfe_u32', 's9', 's99', (2 << 16) | 2); a('s_and_b32', 's11', 's99', 3)
    a('s_add_u32', 's13', 's53', 's9')
    a('s_lshl_b32', 's8', 's13', 1); a('s_and_b32', 's8', 's8', -4)
    a('s_load_dword', 's58', D_, 's8')
    a('s_mul_i32', 's15', 's9', USZ); a('s_add_u32', 's15', 's15', L_U)
    a('v_and_b32', v(n), 15, 'v0'); a('v_lshrrev_b32', v(q), 4, 'v0')
    a('v_mov_b32', v(msk), 0xffff0000)
    a('v_and_b32', v(t), 1, 'v0'); a('v_mul_u32_u24', v(aa), 529*16, v(t))
    a('v_bfe_u32', v(t), 'v0', 1, 1); a('v_mul_u32_u24', v(t), 264*16, v(t)); a('v_add_u32', v(aa), v(aa), v(t))
    a('v_bfe_u32', v(t), 'v0', 2, 2); a('v_lshl_add_u32', v(aa), v(t), 5, v(aa))
    a('s_cmp_eq_u32', 's11', 0); a('s_cselect_b32', 's12', 1, 0)
    a('s_add_u32', 's14', 's12', 8); a('v_lshl_add_u32', v(aa), v(q), 's14', v(aa))
    a('s_cmp_eq_u32', 's11', 1); a('s_cselect_b32', 's14', 2048, 0)
    a('s_cmp_eq_u32', 's11', 3); a('s_cselect_b32', 's14', 1040, 's14')
    a('s_mul_i32', 's8', 's9', HSZ); a('s_add_u32', 's8', 's8', 's14'); a('s_add_u32', 's8', 's8', L_H)
    a('v_add_u32', v(aa), 's8', v(aa))
    a('s_add_u32', 's14', 's12', 1); a('v_lshlrev_b32', v(t), 's14', v(q)); a('v_sub_u32', v(t), v(t), v(n))
    a('s_lshl_b32', 's14', 's12', 4); a('s_sub_u32', 's14', 31, 's14'); a('v_add_u32', v(t), 's14', v(t))
    a('v_mul_u32_u24', v(ba), 144, v(t)); a('v_add_u32', v(ba), 's15', v(ba))
    a('v_sub_u32', v(t), 's14', v(n)); a('v_mul_u32_u24', v(ia), 144, v(t)); a('v_add_u32', v(ia), 's15', v(ia))
    a('v_lshlrev_b32', v(t), 5, v(q)); a('v_sub_u32', v(ia), v(ia), v(t))
    a('s_mul_i32', 's59', 's9', REDSZ); a('s_add_u32', 's59', 's59', L_RED); a('v_lshl_add_u32', v(ra), 'v0', 4, 's59')
    lnh = newlabel('Lb2'); a('s_cmp_lg_u32', 's11', 3); a('s_cbranch_scc1', lnh)
    a('v_and_b32', v(t), 7, 'v0'); a('v_lshlrev_b32', v(u), 1, v(q)); a('v_sub_u32', v(u), v(u), v(t)); a('v_add_u32', v(u), 31, v(u))
    a('v_mul_u32_u24', v(ba), 144, v(u)); a('v_add_u32', v(ba), 's15', v(ba))
    a('v_and_b32', v(u), 8, 'v0'); a('v_xor_b32', v(u), 8, v(u)); a('v_lshl_add_u32', v(ba), v(u), 1, v(ba)); a('v_lshl_add_u32', v(ba2), v(u), 1, v(ba))
    a('v_lshl_add_u32', v(t), v(q), 3, v(t)); a('v_lshlrev_b32', v(t), 4, v(t)); a('v_and_b32', v(u), 8, 'v0'); a('v_lshl_add_u32', v(t), v(u), 7, v(t))
    a('v_add_u32', v(ra), 's59', v(t))
    a.label(lnh)
    a.wait(lgkm=0)
    a('s_bitcmp1_b32', 's13', 0); a('s_cselect_b32', 's8', 0, 16); a('s_lshl_b32', 's58', 's58', 's8'); a('s_and_b32', 's58', 's58', 0xffff0000)
    a('s_bitcmp1_b32', 's11', 0); a('s_cselect_b32', 's58', 0, 's58')
    a('s_cmp_gt_u32', 's3', 5); a('s_cselect_b32', 's98', 2, 1); a('s_sub_u32', 's98', 's3', 's98'); a('s_min_u32', 's98', 's98', 8)
    a('s_cmp_lg_u32', 's12', 0); a('s_cselect_b32', 's98', 8, 's98'); a('s_cmp_eq_u32', 's5', 0); a('s_cselect_b32', 's98', 8, 's98')
    ACC = R.alloc(16); NW = 6; RA = R.alloc(4*NW + 2); RA2 = R.alloc(4*NW + 2); NBR = 6; RB = R.alloc(4*NBR)
    a('s_cmp_eq_u32', 's62', 0); a('s_cbranch_scc1', 'LB2go')
    stamp(a, 7)
    lo = newlabel('Lb2'); lo2 = newlabel('Lb2'); lo3 = newlabel('Lb2')
    a('s_cmp_lg_u32', 's5', 0); a('s_cbranch_scc1', lo3)
    wait_lds(a, C_A2+EG[0], 4, t, u)
    a('s_branch', lo2)
    a.label(lo3)
    if UH[0]:
        a('s_cmp_lg_u32', 's3', 4); a('s_cbranch_scc1', lo)
        a('v_lshl_add_u32', v(t), 's4', 4, v(n)); a('v_lshlrev_b32', v(fa), 7, v(t)); a('v_add_u32', v(fa), H_U, v(fa))
        poll_hints(a, fa, t, u, 's96', 16)
        arrive(a, C_GU, t, u)
        a('s_branch', lo2)
        a.label(lo)
        wait_lds(a, C_GU, 1, t, u)
    else:
        wait_lds(a, C_B1D, 10, t, u)
        wait_lds(a, C_H, 2, t, u)
    a.label(lo2)
    stamp(a, 2)
    a('s_lshl_b32', 's8', 's63', 12); a('v_subrev_u32', v(fa), 's8', v(go))
    def ul():
        a('global_load_dwordx4', v(U, 4), v(go), WS_, mods=SC)
        if TWOPASS[0]: a('global_load_dwordx4', v(U+4, 4), v(fa), WS_, mods=SC)
    poll_tags(a, ul, [U, U+4] if TWOPASS[0] else [U], t, 1, XSLEEP[0])
    sk2 = newlabel('Lb2'); a('s_cmp_eq_u32', 's63', 0); a('s_cbranch_scc1', sk2)
    await_cnt(a, C_H0, 4, t, u)
    a('v_subrev_u32', v(t), USZ, v(lw))
    a('ds_write_b128', v(t), v(U+4, 4))
    a.label(sk2)
    sko = newlabel('Lb2'); a('s_cmp_eq_u32', 's5', 0); a('s_cbranch_scc1', sko)
    await_cnt(a, C_H, 2, t, u)
    a.label(sko)
    a('ds_write_b128', v(lw), v(U, 4))
    stamp(a, 8)
    subbar_s(a, 's60', 4, t, u, vm=True)
    skq = newlabel('Lb2')
    a('s_cmp_eq_u32', 's98', 8); a('s_cbranch_scc1', skq)
    await_cnt(a, C_B1D, 10, t, u)
    srd(a, 44, 's22', 's23', 2048*1280)
    a('v_mul_u32_u24', v(t), 26, 'v0'); a('v_lshrrev_b32', v(t), 8, v(t)); a('v_mul_u32_u24', v(u), 1280 - 160, v(t)); a('v_lshl_add_u32', v(u), 'v0', 4, v(u))
    a('s_lshl_b32', 's8', 's6', 3); a('s_add_u32', 's8', 's8', 's98'); a('s_mul_i32', 's8', 's8', 16*1280); a('s_mul_i32', 's14', 's4', 160); a('s_add_u32', 's8', 's8', 's14')
    a('s_mul_i32', 's14', 's98', 2*1296); a('s_mov_b32', 'exec_hi', 0xff)
    for k in range(4):
        a('s_add_u32', 'm0', 's14', L_VI + (k >> 1)*1296 + (k & 1)*640)
        a('buffer_load_dwordx4', v(u), 's[44:47]', 's8', mods='offen lds')
        if k < 3: a('s_addk_i32', 's8', 4*1280)
    a('s_mov_b64', 'exec', -1)
    a.label(skq)
    if GATE[0]:
        lg = newlabel('Lb2'); a('s_cmp_lg_u32', 's5', 0); a('s_cbranch_scc1', lg)
        a('v_mov_b32', v(t), L_CNT + 4*(C_A2+2))
        lq = newlabel('Lb2'); a.label(lq)
        a('s_sleep', 2); a('ds_read_b32', v(u), v(t)); a('v_readfirstlane_b32', 's40', v(u)); a('s_cmp_lt_u32', 's40', 4); a('s_cbranch_scc1', lq)
        a('s_cmp_ge_u32', 's7', 36); a('s_cbranch_scc1', lg)
        lq = newlabel('Lb2'); a.label(lq)
        a('s_sleep', 2); a('ds_read_b32', v(u), v(t), mods='offset:16'); a('v_readfirstlane_b32', 's40', v(u)); a('s_cmp_lt_u32', 's40', 4); a('s_cbranch_scc1', lq)
        a.label(lg)
    a.label('LB2go')
    MF = 'v_mfma_f32_16x16x32_bf16'
    PD = 3
    def rdA(ring, w, off, last):
        if w > last: return
        a('ds_read_b128', v(ring + 4*(w % NW), 4), v(aa), mods=f'offset:{off + 16*w}')
        if w and w % NW == 0: a('ds_read_b64', v(ring+4*NW, 2), v(aa), mods=f'offset:{off + 16*w}')
    def rdB(tau, last, hi=False):
        if tau > last: return
        a('ds_read_b128', v(RB + 4*(tau % NBR), 4), v(ba2 if (hi and tau % 8 == 7) else ba), mods=f'offset:{144*(tau >> 3) + 16*(tau & 7)}')
    a('s_cmp_eq_u32', 's11', 3); a('s_cbranch_scc1', 'LB2hi')
    a('s_cmp_lg_u32', 's11', 0); lp_ = newlabel('Lb2'); a('s_cbranch_scc0', lp_); a('s_setprio', 1); a.label(lp_)
    a('ds_read_b128', v(U, 4), v(ia), mods='offset:96'); a('ds_read_b128', v(U+4, 4), v(ia), mods='offset:112')
    rdB(0, 32); rdA(RA, 1, 0, 33)
    for k in range(PD): rdB(k+1, 32); rdA(RA, k+2, 0, 33)
    for x in range(16):
        e = 15 - x
        if e & 1: a('v_and_b32', v(ACC+x), v(msk), v(U + (e >> 1)))
        else: a('v_lshlrev_b32', v(ACC+x), 16, v(U + (e >> 1)))
        a('v_mul_f32', v(ACC+x), 's58', v(ACC+x))
    stamp(a, 9)
    for tau in range(32):
        if tau == 16:
            a.raw('    s_cmp_eq_u32 s12, 0'); a.raw('    s_cbranch_scc1 LB2r'); a.bytes += 8
            a.snap.setdefault('LB2r', []).append((list(a.vm), list(a.lg)))
        d0 = (4*(tau+1)) % (4*NW)
        for k, (acc, dd, bt) in enumerate(((2, d0, tau), (3, d0+2, tau), (0, d0, tau+1), (1, d0+2, tau+1))):
            a(MF, v(ACC+4*acc, 4), v(RA+dd, 4), v(RB + 4*(bt % NBR), 4), v(ACC+4*acc, 4))
            if k == 1: rdB(tau + PD + 1, 32)
            if k == 3: rdA(RA, tau + PD + 2, 0, 33)
    a.label('LB2r'); a._nop(8)
    stamp(a, 10)
    lf = newlabel('Lb2')
    a('s_lshl_b32', 's14', 's9', 3); a('s_add_u32', 's14', 's14', L_CNT + 4*C_RED); a('v_mov_b32', v(t), 's14'); a('v_mov_b32', v(u), 1)
    a('s_cmp_lg_u32', 's11', 1); a('s_cbranch_scc1', lf)
    for tt in range(4): a('ds_write_b128', v(ra), v(ACC+4*tt, 4), mods=f'offset:{1024*tt}')
    a.wait(lgkm=0); lds_cnt_add(a, t, u)
    a('s_branch', 'LB2end')
    a.label('LB2hi')
    a('s_setprio', 1)
    rdA(RA, 0, 0, 16); rdA(RA2, 0, 2048, 16)
    for k in range(PD): rdB(k, 15, True); rdA(RA, k+1, 0, 16); rdA(RA2, k+1, 2048, 16)
    stamp(a, 9)
    for tau in range(16):
        d0 = (4*tau) % (4*NW)
        for k, (acc, ring, dd) in enumerate(((0, RA, d0), (1, RA, d0+2), (2, RA2, d0), (3, RA2, d0+2))):
            a(MF, v(ACC+4*acc, 4), v(ring+dd, 4), v(RB + 4*(tau % NBR), 4), 0 if tau == 0 else v(ACC+4*acc, 4))
            if k == 0: rdB(tau + PD, 15, True)
            if k == 1: rdA(RA, tau + PD + 1, 0, 16)
            if k == 3: rdA(RA2, tau + PD + 1, 2048, 16)
    stamp(a, 10)
    a('s_lshl_b32', 's14', 's9', 3); a('s_add_u32', 's14', 's14', L_CNT + 4*C_RED); a('v_mov_b32', v(t), 's14'); a('v_mov_b32', v(u), 1)
    for acc in range(4): a('ds_write_b128', v(ra), v(ACC+4*acc, 4), mods=f'offset:{4096 + 2048*(acc >> 1) + 512*(acc & 1)}')
    a.wait(lgkm=0)
    a('s_mov_b64', 'exec', 1); a('ds_add_u32', v(t), v(u)); a('ds_add_u32', v(t), v(u), mods='offset:4'); a('s_mov_b64', 'exec', -1)
    a('s_branch', 'LB2end')
    a.label(lf)
    a('s_lshl_b32', 's8', 's11', 1); a('v_add_u32', v(t), 's8', v(t)); a('s_add_u32', 's14', 's12', 1)
    a('v_and_b32', v(u), 7, 'v0'); a('v_lshl_add_u32', v(u), v(q), 3, v(u)); a('s_lshl_b32', 's8', 's12', 11); a('s_add_u32', 's8', 's8', 's59')
    a('v_lshl_add_u32', v(ia), v(u), 4, 's8')
    lp = newlabel('Lb2'); a.label(lp)
    a('ds_read_b32', v(u), v(t)); a('v_readfirstlane_b32', 's40', v(u)); a('s_cmp_lt_u32', 's40', 's14'); a('s_cbranch_scc1', lp)
    for tt in range(4): a('ds_read_b128', v(RA+4*tt, 4), v(ia), mods=f'offset:{4096 + 512*tt}')
    ls = newlabel('Lb2'); a('s_cmp_eq_u32', 's12', 0); a('s_cbranch_scc1', ls)
    for tt in range(4): a('ds_read_b128', v(RB+4*tt, 4), v(ra), mods=f'offset:{1024*tt}')
    for x in range(16): a('v_add_f32', v(ACC+x), v(ACC+x), v(RB+x))
    a.label(ls)
    a('s_mov_b32', 'exec_lo', 0xff00ff00); a('s_mov_b32', 'exec_hi', 0xff00ff00)
    for x in range(16): a('v_add_f32', v(ACC+x), v(ACC+x), v(RA+x))
    a('s_mov_b64', 'exec', -1)
    for jj in range(8):
        a('v_cvt_pk_bf16_f32', v(U+jj), v(ACC+15-2*jj), v(ACC+14-2*jj)); tag2(a, U+jj, jj)
    sa = ra; sr = aa
    a('s_add_u32', 's8', 's8', 4096)
    a('v_sub_u32', v(t), 15, v(n)); a('v_lshlrev_b32', v(u), 1, v(q)); a('v_sub_u32', v(u), 6, v(u))
    a('v_xor_b32', v(u), v(t), v(u)); a('v_and_b32', v(u), 7, v(u)); a('v_lshlrev_b32', v(u), 4, v(u))
    a('v_lshl_add_u32', v(sa), v(t), 7, v(u)); a('v_add_u32', v(sa), 's8', v(sa)); a('v_xor_b32', v(u), 16, v(sa))
    a('ds_write_b128', v(sa), v(U, 4)); a('ds_write_b128', v(u), v(U+4, 4))
    a('v_lshrrev_b32', v(t), 3, 'v0'); a('v_xor_b32', v(u), v(t), 'v0'); a('v_and_b32', v(u), 7, v(u)); a('v_lshlrev_b32', v(u), 4, v(u))
    a('v_lshl_add_u32', v(sr), v(t), 7, v(u)); a('v_add_u32', v(sr), 's8', v(sr))
    a('ds_read_b128', v(RB, 4), v(sr)); a('ds_read_b128', v(RB+4, 4), v(sr), mods='offset:1024')
    a('s_lshl_b32', 's8', 's13', 12); a('s_lshl_b32', 's14', 's12', 11); a('s_sub_u32', 's8', 's8', 's14'); a('s_add_u32', 's8', 's8', WS_U + 2048)
    a('v_lshl_add_u32', v(t), 'v0', 4, 's8')
    a('global_store_dwordx4', v(t), v(RB, 4), WS_, mods=SC)
    a('global_store_dwordx4', v(t), v(RB+4, 4), WS_, mods=f'offset:1024 {SC}')
    a('s_cmp_eq_u32', 's5', 0); a('s_cbranch_scc1', 'LB2end')
    arrive(a, C_HZ, t, u, vm=ZDRAIN[0])
    a.label('LB2end')
    a('s_setprio', 0)
    a('s_mov_b32', 's62', 0); a.wait(lgkm=0)
    a('s_lshr_b32', 's99', 's99', 5); a('s_cbranch_scc1', 'LB2p')
    a('s_cmp_eq_u32', 's5', 0); a('s_cbranch_scc1', 'LA3')
    a('s_cmp_eq_u32', 's98', 8); a('s_cbranch_scc1', 'LB3')
    arrive(a, C_QL, t, u, vm=True)
    a('s_branch', 'LB3')

class A2R: pass
def a2_regs():
    K = A2R(); R = RegAlloc(1, 168)
    K.t = R.alloc(); K.u = R.alloc(); K.go = R.alloc(); K.lw = R.alloc(); K.lr0 = R.alloc(); K.lr1 = R.alloc(); K.msk = R.alloc()
    K.X = R.alloc(8)
    K.C = R.alloc(8); K.Sm = R.alloc(8); K.N = R.alloc(8); K.TC = R.alloc(16); K.TS = R.alloc(16)
    K.Z = R.alloc(16); K.Wp = R.alloc(16); K.B0 = R.alloc(32); K.B1 = R.alloc(32)
    K.fa, K.fw, K.o, K.h, K.of, K.hf, K.t2 = [K.Wp + k for k in range(7)]
    return K

def A2_consts(a, K):
    t, u, go, X = K.t, K.u, K.go, K.X
    a('v_lshrrev_b32', v(t), 3, 'v0'); a('v_lshl_add_u32', v(t), 's10', 3, v(t))
    a('s_mov_b32', 's8', TBLK); a('v_mul_lo_u32', v(go), v(t), 's8')
    a('v_and_b32', v(u), 7, 'v0'); a('v_lshl_add_u32', v(go), v(u), 4, v(go))
    a('s_lshl_b32', 's8', 's9', 7); a('v_add_u32', v(go), 's8', v(go))
    def swz(dst, line, piece):
        a('v_lshrrev_b32', v(dst), 1, v(line)); a('v_and_b32', v(K.t2), 1, v(line)); a('v_xor_b32', v(dst), v(dst), v(K.t2))
        a('v_xor_b32', v(dst), piece, v(dst)); a('v_and_b32', v(dst), 7, v(dst)); a('v_lshlrev_b32', v(dst), 4, v(dst))
        a('v_lshl_add_u32', v(dst), v(line), 7, v(dst)); a('v_add_u32', v(dst), 's62', v(dst))
    swz(K.lw, t, v(u))
    a('s_sub_u32', 's8', 's9', 128); a('s_mul_i32', 's8', 's8', 57); a('s_lshr_b32', 's8', 's8', 9)
    a('s_bfe_u32', 's11', 's9', (2 << 16) | 4); a('s_cmp_lt_u32', 's9', 128); a('s_cselect_b32', 's8', 's11', 's8')
    a('s_and_b32', 's8', 's8', 1); a('s_cmp_eq_u32', 's8', 0)
    a('s_cselect_b32', 's60', 0, 0x80008000); a('s_lshl_b32', 's11', 's8', 31); a('s_or_b32', 's11', 's11', fl(1/32))
    o, h, of, hf = K.o, K.h, K.of, K.hf
    a('v_bfe_u32', v(o), 'v0', 3, 1); a('v_and_b32', v(t), 3, 'v0'); a('v_lshl_add_u32', v(o), v(o), 2, v(t))
    a('v_bfe_u32', v(t), 'v0', 4, 1); a('v_lshl_add_u32', v(o), v(o), 1, v(t))
    a('v_bfe_u32', v(t), 'v0', 2, 1); a('v_lshl_add_u32', v(o), v(o), 1, v(t))
    a('v_lshrrev_b32', v(h), 5, 'v0')
    a('v_lshl_add_u32', v(t), v(h), 5, v(o))
    a('s_lshl_b32', 's8', 's10', 1)
    swz(K.lr0, t, 's8'); a('v_xor_b32', v(K.lr1), 16, v(K.lr0))
    a('v_cvt_f32_u32', v(of), v(o)); a('v_mul_f32', v(of), 's11', v(of))
    a('v_cvt_f32_u32', v(hf), v(h)); a('v_mul_f32', v(hf), v(hf), v(of))
    for kap in range(2):
        for jj in range(4):
            for e in range(2):
                idx = 2*kap + 4*(2*jj + e)
                if idx: a('v_fmamk_f32', v(X+e), v(of), fl(float(idx)), v(hf)); src = X+e
                else: src = hf
                sincos(a, src, X+2+e, X+4+e)
                vv = 8*kap + 2*jj + e
                a('v_mul_f32', v(X+6+e), fl(1/32), v(src))
                sincos(a, X+6+e, K.TC+vv, K.TS+vv)
            a('v_cvt_pk_bf16_f32', v(K.C+4*kap+jj), v(X+2), v(X+3))
            a('v_cvt_pk_bf16_f32', v(K.Sm+4*kap+jj), v(X+4), v(X+5))
            a('v_xor_b32', v(K.N+4*kap+jj), 0x80008000, v(K.Sm+4*kap+jj))
    a('v_mov_b32', v(K.msk), 0xffff0000)

def pk_auxE(a):
    K = a2_regs()
    a.label('LauxE')
    R = RegAlloc(K.B0, 164)
    WB = 2048*321*2
    bar0(a)
    a('s_sub_u32', 's10', 's3', 8)
    vo = R.alloc(); t = K.t; u = K.u
    a('v_lshlrev_b32', v(vo), 4, 'v0')
    def w_dma():
        a('s_mul_i32', 's14', 's7', 1284)
        a('s_mul_i32', 's11', 's10', 2*256*642); a('s_add_u32', 's14', 's14', 's11')
        a('s_mul_i32', 's11', 's10', 2*1296); a('s_add_u32', 's11', 's11', L_A2 + 1296)
        srd(a, 44, 's18', 's19', WB); srd(a, 48, 's20', 's21', WB)
        def slot(soff, m0v_s, add):
            for pl, sd in enumerate((44, 48)):
                a('s_add_u32', 'm0', m0v_s, add + pl*11664)
                a('buffer_load_dwordx4', v(vo), s(sd, 4), soff, mods='offen lds')
                a('s_mov_b64', 'exec', 0x1ffff)
                a('buffer_load_dwordx4', v(vo), s(sd, 4), soff, mods='offen offset:1024 lds')
                a('s_mov_b64', 'exec', -1)
        slot('s14', 's11', 0)
        a('s_add_u32', 's14', 's14', 256*642)
        slot('s14', 's11', 1296)
        sk = newlabel('Lw1s')
        a('s_cmp_lg_u32', 's7', 127); a('s_cbranch_scc1', sk)
        a('s_cmp_lg_u32', 's10', 3); a('s_cbranch_scc1', sk)
        a('s_mov_b32', 's11', L_A2)
        slot('s14', 's11', 0)
        a.label(sk)
    k0 = R.alloc(); vc = R.alloc(); go = R.alloc(); go2 = R.alloc()
    a('v_lshrrev_b32', v(t), 3, 'v0')
    a('v_mul_u32_u24', v(k0), 65, v(t))
    a('v_mul_u32_u24', v(u), 205, v(k0)); a('v_lshrrev_b32', v(u), 14, v(u))
    a('v_mul_u32_u24', v(u), 80, v(u)); a('v_sub_u32', v(k0), v(k0), v(u))
    a('s_and_b32', 's12', 's10', 1); a('s_lshr_b32', 's13', 's10', 1)
    a('s_cmp_eq_u32', 's12', 0)
    a('s_cselect_b32', 's14', 2, -2); a('s_cselect_b32', 's15', 0, 640)
    a('s_mul_i32', 's8', 's13', 642); a('s_add_u32', 's15', 's15', 's8'); a('s_add_u32', 's15', 's15', L_A2 + 1296)
    a('s_cmp_eq_u32', 's10', 3); a('s_cselect_b32', 's8', 1, 0); a('s_add_u32', 's8', 's8', 's7')
    a('s_cmp_eq_u32', 's8', 128); a('s_cselect_b32', 's41', 1296, 0); a('s_sub_u32', 's15', 's15', 's41')
    a('s_and_b32', 's8', 's8', 127)
    a('v_bfe_u32', v(t), 'v0', 1, 2); a('v_mul_u32_u24', v(t), 80, v(t))
    a('v_and_b32', v(u), 1, 'v0'); a('v_mul_u32_u24', v(u), 11664, v(u)); a('v_add_u32', v(u), 's15', v(u))
    a('v_mad_i32_i24', v(vc), v(t), 's14', v(u))
    a('s_mul_i32', 's8', 's8', TBLK); a('s_add_u32', 's8', 's8', WS_W)
    a('s_lshl_b32', 's41', 's10', 11); a('s_add_u32', 's41', 's41', 's8')
    a('v_add_u32', v(go), 's41', v(vo))
    a('s_mul_i32', 's41', 's10', 9*128); a('s_add_u32', 's41', 's41', 's8'); a('s_add_u32', 's41', 's41', 128*128)
    a('v_add_u32', v(go2), 's41', v(vo))
    ads = [R.alloc() for _ in range(6)]
    for it, C in enumerate((16, 56, 32, 72, 0, 40)):
        if C:
            a('v_add_u32', v(t), C, v(k0)); a('v_subrev_u32', v(u), 80, v(t)); a('v_min_u32', v(t), v(t), v(u))
            a('v_mad_i32_i24', v(ads[it]), v(t), 's14', v(vc))
        else: a('v_mad_i32_i24', v(ads[it]), v(k0), 's14', v(vc))
    O = R.alloc(24); Hh = R.alloc(24)
    epoch_ready(a)
    if WGATE[0]: await_cnt(a, C_X, WGATE[0], t, u)
    w_dma()
    a('s_mov_b32', 's9', 's7'); a('s_mov_b32', 's62', L_A2T); a('s_mov_b32', 's63', L_A2W); a('s_mov_b32', 's61', L_CNT + 4*C_A2)
    a.label('LA2c')
    A2_consts(a, K)
    wtag_regs(a, 56)
    a('s_cmp_lt_u32', 's3', 8); a('s_cbranch_scc1', 'LA2w')
    stamp(a, 2)
    a('s_setprio', 1)
    a('v_mov_b32', v(vo), 0xfffefffe)
    subbar(a, C_W1, 4, t, u, vm=True)
    stamp(a, 3)
    def comb(it):
        for k in range(4): a('v_lshl_or_b32', v(O+4*it+k), v(Hh+4*it+k), 16, v(O+4*it+k))
        for k in range(4): a('v_and_or_b32', v(O+4*it+k), v(O+4*it+k), v(vo), s(56+k))
    for it in range(6):
        for i in range(8): a('ds_read_u16', v((Hh if i & 1 else O) + 4*it + (i >> 1)), v(ads[it]), mods=f'offset:{1296*i}')
        if it: comb(it - 1)
        if it == 2:
            for k in range(2): a('global_store_dwordx4', v(go), v(O+4*k, 4), WS_, mods=f'offset:{1024*k} {SC}')
            a('v_add_u32', v(go), 8192, v(go))
        if it == 4:
            for k in range(2): a('global_store_dwordx4', v(go), v(O+8+4*k, 4), WS_, mods=f'offset:{1024*k} {SC}')
    comb(5)
    a('global_store_dwordx4', v(go2), v(O+16, 4), WS_, mods=SC)
    a('s_mov_b64', 'exec', 0xff)
    a('global_store_dwordx4', v(go2), v(O+20, 4), WS_, mods=f'offset:1024 {SC}')
    a('s_mov_b64', 'exec', -1)
    stamp(a, 4)
    arrive(a, C_W1D, t, u)
    stamp(a, 5)
    a.label('LA2w')
    await_cnt(a, C_A1D, 8, t, u)
    await_cnt(a, C_W1D, 4, t, u)
    a.label('LA2')
    pk_A2(a, K)

def pk_A2(a, K):
    t, u, go, lw, lr0, lr1, msk, X, Z, Wp, B0, B1 = K.t, K.u, K.go, K.lw, K.lr0, K.lr1, K.msk, K.X, K.Z, K.Wp, K.B0, K.B1
    for it in range(4):
        a('s_add_u32', s(44+2*it), 's38', 32*TBLK*it); a('s_addc_u32', s(45+2*it), 's39', 0)
    a('s_sub_u32', 's63', 's63', 's62')
    a('s_setprio', 3)
    stamp(a, 7)
    stamp(a, 11)
    ST, SW = B0, B1
    def tl():
        for it in range(4): a('global_load_dwordx4', v(ST+4*it, 4), v(go), s(44+2*it, 2), mods=SC)
    poll_tags(a, tl, [ST+4*i for i in range(4)], t, 1, XSLEEP[0])
    a('v_add_u32', v(Wp), WS_W, v(go)); a('v_add_u32', v(X+2), 's63', v(lw))
    def wl():
        for it in range(4): a('global_load_dwordx4', v(SW+4*it, 4), v(Wp), s(44+2*it, 2), mods=SC)
    stamp(a, 8)
    for it in range(4): a('ds_write_b128', v(lw), v(ST+4*it, 4), mods=f'offset:{4096*it}')
    a('v_mov_b32', v(X), 's61'); a('v_mov_b32', v(X+1), 1)
    a.wait(lgkm=0); lds_cnt_add(a, X, X+1)
    stamp(a, 6)
    wl()
    lp = newlabel('La2'); a.label(lp)
    a('ds_read_b32', v(X+1), v(X)); a('v_readfirstlane_b32', 's40', v(X+1)); a('s_cmp_lt_u32', 's40', 4); a('s_cbranch_scc1', lp)
    stamp(a, 9)
    for kap in range(2):
        for ri, ad in enumerate((lr0, lr1)): a('ds_read_b128', v(Z+8*kap+4*ri, 4), v(ad), mods=f'offset:{8192*kap}')
    MF = 'v_mfma_f32_32x32x16_bf16'
    def mm(kap, dataA, inv, d):
        dR, dI = d, d+16
        zr, zi = v(Z+8*kap, 4), v(Z+8*kap+4, 4)
        c, p, n = v(K.C+4*kap, 4), v(K.Sm+4*kap, 4), v(K.N+4*kap, 4)
        if inv: p, n = n, p
        for k, (dd, z, m) in enumerate(((dR, zr, c), (dI, zi, c), (dR, zi, p), (dI, zr, n))):
            cin = 0 if (kap == 0 and k < 2) else v(dd, 16)
            if dataA: a(MF, v(dd, 16), z, m, cin)
            else: a(MF, v(dd, 16), m, z, cin)
    mm(0, True, False, B0); mm(1, True, False, B0)
    poll_tags(a, wl, [SW+4*i for i in range(4)], t, 3, XSLEEP[0], tagsg=56, pre=True)
    for it in range(4): a('ds_write_b128', v(X+2), v(SW+4*it, 4), mods=f'offset:{4096*it}')
    stamp(a, 12)
    a('v_mov_b32', v(u), 1); a('v_mov_b32', v(t), 's61')
    a.wait(lgkm=0)
    a('s_mov_b64', 'exec', 1); a('ds_add_u32', v(t), v(u), mods='offset:4'); a('s_mov_b64', 'exec', -1)
    bufs = [B0, B1]
    for st in range(3):
        sb, db = bufs[st & 1], bufs[(st + 1) & 1]
        if st == 1:
            lp = newlabel('La2'); a.label(lp, keep=True) if False else None
            a.settle(keep_hist=True) if False else None
            hist = list(a.hist)
            a.raw(lp + ':')
            a('ds_read_b32', v(u), v(t), mods='offset:4'); a('v_readfirstlane_b32', 's40', v(u)); a('s_cmp_lt_u32', 's40', 4)
            a.raw(f'    s_cbranch_scc1 {lp}'); a.bytes += 4
            stamp(a, 14)
            a('v_add_u32', v(t), 's63', v(lr0)); a('v_add_u32', v(u), 's63', v(lr1))
            for kap in range(2):
                for ri, ad in enumerate((t, u)): a('ds_read_b128', v(Wp+8*kap+4*ri, 4), v(ad), mods=f'offset:{8192*kap}')
            for i in range(8): a('v_xor_b32', v(Wp + (i >> 2)*8 + 4 + (i & 3)), 's60', v(Wp + (i >> 2)*8 + 4 + (i & 3)))
        for kap in range(2):
            for jj in range(4):
                for e in range(2):
                    vv = 8*kap + 2*jj + e
                    re, im = sb+vv, sb+16+vv
                    if st == 1:
                        c, s_ = X+4, X+5
                        for dst, pl in ((c, 0), (s_, 1)):
                            src = Wp + 8*kap + 4*pl + jj
                            if e: a('v_and_b32', v(dst), v(msk), v(src))
                            else: a('v_lshlrev_b32', v(dst), 16, v(src))
                    else: c, s_ = K.TC+vv, K.TS+vv
                    a('v_mul_f32', v(X+e), v(re), v(c)); a('v_mul_f32', v(X+2+e), v(im), v(c))
                    if st == 0:
                        a('v_fmac_f32', v(X+e), v(im), v(s_)); a('v_fma_f32', v(X+2+e), '-' + v(re), v(s_), v(X+2+e))
                    else:
                        a('v_fma_f32', v(X+e), '-' + v(im), v(s_), v(X+e)); a('v_fmac_f32', v(X+2+e), v(re), v(s_))
                a('v_cvt_pk_bf16_f32', v(Z+8*kap+jj), v(X), v(X+1))
                a('v_cvt_pk_bf16_f32', v(Z+8*kap+4+jj), v(X+2), v(X+3))
            mm(kap, st == 1, st >= 1, db)
    sb = bufs[1]
    for kap in range(2):
        for ih, ad in enumerate((lr0, lr1)):
            for x in range(4):
                vv = 8*kap + 4*ih + x
                a('v_cvt_pk_bf16_f32', v(Z+vv), v(sb+vv), v(sb+16+vv)); tag2(a, Z+vv, x)
            a('ds_write_b128', v(ad), v(Z+8*kap+4*ih, 4), mods=f'offset:{8192*kap}')
    stamp(a, 10)
    a('s_add_u32', 's8', 's61', 8)
    subbar_s(a, 's8', 4, t, u)
    for it in range(4): a('ds_read_b128', v(Wp+4*it, 4), v(lw), mods=f'offset:{4096*it}')
    for it in range(4): a('global_store_dwordx4', v(go), v(Wp+4*it, 4), s(44+2*it, 2), mods=SC)
    a('s_setprio', 0)
    stamp(a, 13)
    a('v_mov_b32', v(u), 1); a('v_mov_b32', v(t), 's61')
    a.wait(vm=0)
    a('s_mov_b64', 'exec', 1); a('ds_add_u32', v(t), v(u), mods='offset:12'); a('s_mov_b64', 'exec', -1)
    a('s_cmp_lt_u32', 's3', 8); a('s_cbranch_scc1', 'LA3')
    a('s_branch', 'Lfin')

def epoch_store(a):
    pass

def build(stamps=False):
    STAMPS[0] = stamps
    for it in range(4):
        roles._lbl[0] = 0
        a = Asm()
        a.raw(f"; @launch grid=(256,1,1) block=(768,1,1) lds={LDS_TOTAL}")
        a.raw('.amdgcn_target "amdgcn-amd-amdhsa--gfx950"\n.text')
        entry(a)
        pk_A1(a)
        pk_auxE(a)
        pk_B1(a)
        pk_auxO(a)
        pk_B2(a)
        pk_A3(a); a('s_branch', 'Lfin')
        pk_B3(a)
        a.label('Lfin'); stamp_flush(a, 0); a('s_endpgm')
        a.raw('.p2align 10')
        a.raw(kernel_desc(KNAME, 168, 102))
        hi = max(0, (a.bytes + 1023)//1024*1024 - 12288)
        if hi == CODE_HI[0]: break
        CODE_HI[0] = hi
    print('est bytes', a.bytes, 'instrs', a.nins, 'lds', LDS_TOTAL)
    return a.text()

if __name__ == '__main__':
    open('pk8.s', 'w').write(build(False))
    open('pk8st.s', 'w').write(build(True))
    A3ALL[0] = 6; open('pk8a.s', 'w').write(build(False)); A3ALL[0] = 0
    XSLEEP[0] = 8; LSLEEP[0] = 8; open('pk8b.s', 'w').write(build(False)); XSLEEP[0] = 4; LSLEEP[0] = 4
    EG[0] = 1; open('pk8c.s', 'w').write(build(False)); EG[0] = 0
    WGATE[0] = 0; open('pk8d.s', 'w').write(build(False)); WGATE[0] = 8
    for k in sys.argv[1:]:
        roles.AMP[0] = int(k); open(f'pk8amp{k}.s', 'w').write(build(True))
```

```python
import sys
from asmlib import *
import roles
from roles import (X_, WR_, WI_, Q_, K_, V_, SK_, H_, D_, OUT_, DBG_, WS_, WS_T, WS_W, WS_U, WS_F, TBLK, HSZ, newlabel, stamp, stamp_flush,
                   sincos, row_offsets, d1_addrs, srd, quad_voff, STAMPS)
KNAME = "concat_heads__spectral_gfnet__ssm_conv_h3__prompt_kernel"
H_T, H_W, H_U, H_Z, H_T2 = WS_F, WS_F + 128*128, WS_F + 256*128, WS_F + 384*128, WS_F + 640*128
WS_EP = WS_F + 832*128
SPIN = 1 << 15
SC = 'sc1'
L_CNT = 0
L_H = 256
USZ = 40*144
L_U = L_H + 3*HSZ
L_RED = (L_U + 3*USZ + 127)//128*128
REDSZ = 8192
L_P1 = L_RED + 3*REDSZ - 8192 + 8192
L_P1 = (L_P1 + 255)//256*256
L_XR = L_P1; L_EI = L_XR + 8*3072; L_KI = L_P1; L_VI = L_KI + 17*1296
P1SZ = max(8*3072 + 8*2640 + 1024, 33*1296)
L_A2 = (L_P1 + P1SZ + 255)//256*256
A2SZ = 23552
LDS_TOTAL = L_A2 + A2SZ
assert LDS_TOTAL <= 163840, LDS_TOTAL
L_A2T = L_A2
L_A2W = (L_H + 2*HSZ + 255)//256*256
assert L_A2W + 16384 + 0 <= L_H + 3*HSZ + 0, (L_A2W, L_H + 3*HSZ)
L_TABH = L_RED + 2*REDSZ
L_TW = L_RED
L_T3H = L_U + 2*USZ
L_T3W = L_RED + 2*REDSZ
L_STG_E = L_A2 + 16384
roles.L_CNT, roles.L_EI, roles.L_KI, roles.L_VI, roles.L_XR = L_CNT, L_EI, L_KI, L_VI, L_XR
from roles import subbar, arrive, await_cnt, ei_addrs, b13_lane, tile_dma
C_A1, C_A1D, C_W1, C_W1D, C_A3, C_B1, C_B1D, C_H, C_Q, C_QL = 0, 1, 2, 3, 4, 5, 6, 7, 8, 9
C_A2 = 10
C_U = 20
C_X = 23
C_H0 = 18
C_RED = 24
import pk2
pk2.STAMPS = STAMPS
from pk2 import coop_tables, m2_mats, SEQ, A3K
XDELAY = [0]
WGATE = [8]
HGATE = [1]
GATE = [False]
ZGATE = [True]
LSLEEP = [8]
FSLEEP = [0, 0]
ONEPOLL = [True]

def lds_cnt_add(a, va, vb, rtn=False):
    a('s_mov_b64', 'exec', 1)
    if rtn: a('ds_add_rtn_u32', v(vb), v(va), v(vb))
    else: a('ds_add_u32', v(va), v(vb))
    a('s_mov_b64', 'exec', -1)

def subbar_s(a, saddr, n, va, vb, vm=False):
    a('v_mov_b32', v(va), saddr); a('v_mov_b32', v(vb), 1)
    a.wait(vm=0 if vm else None, lgkm=0)
    lds_cnt_add(a, va, vb, True)
    a('v_readfirstlane_b32', 's40', v(vb))
    done = newlabel('Lbd'); loop = newlabel('Lbl')
    a('s_cmp_ge_u32', 's40', n - 1); a('s_cbranch_scc1', done)
    a.label(loop)
    a('ds_read_b32', v(vb), v(va)); a('v_readfirstlane_b32', 's40', v(vb))
    a('s_cmp_lt_u32', 's40', n); a('s_cbranch_scc1', loop)
    a.label(done)

def publish(a, cid, n, flag_s, va, vb, ep='s52'):
    a('v_mov_b32', v(va), L_CNT + 4*cid); a('v_mov_b32', v(vb), 1)
    a.wait(vm=0, lgkm=0)
    a('s_mov_b64', 'exec', 1)
    a('ds_add_rtn_u32', v(vb), v(va), v(vb))
    a('v_readfirstlane_b32', 's40', v(vb))
    sk = newlabel('Lp')
    a('s_cmp_lg_u32', 's40', n - 1); a('s_cbranch_scc1', sk)
    if ep == 's52':
        a('s_mov_b64', 'exec', 0xff)
        a('v_lshl_add_u32', v(va), 'v0', 14, flag_s)
    else: a('v_mov_b32', v(va), flag_s)
    a('v_mov_b32', v(vb), ep)
    a('global_store_dword', v(va), v(vb), WS_, mods=SC)
    a.label(sk)
    a('s_mov_b64', 'exec', -1)

def poll_flags(a, vaddr, vt, ep='s52'):
    lp = newlabel('Lf'); dn = newlabel('Lf')
    a('s_mov_b32', 's41', SPIN)
    a.label(lp)
    a('global_load_dword', v(vt), v(vaddr), WS_, mods=SC)
    a('s_sub_u32', 's41', 's41', 1)
    a.wait(vm=0)
    a('v_cmp_ne_u32', 'vcc', ep, v(vt))
    a('s_cbranch_scc1', dn)
    sl = FSLEEP[0] if ep == 's52' else FSLEEP[1]
    if sl:
        a('s_cbranch_vccz', dn); a('s_sleep', sl); a('s_branch', lp)
    else: a('s_cbranch_vccnz', lp)
    a.label(dn)
S_M, S_C = 's100', 's101'
def tag_consts(a):
    a('s_mov_b32', S_M, 0xfffeffff); a('s_mov_b32', S_C, 0x10000)
def tag1(a, r, j):
    if j == 0: a('v_and_b32', v(r), 0xfffefffe, v(r))
    elif j == 1: a('v_and_or_b32', v(r), v(r), S_M, 1)
    elif j == 2: a('v_and_or_b32', v(r), v(r), -2, S_C)
    else: a('v_or_b32', v(r), 0x10001, v(r))
def tag2(a, r, j):
    if j & 1: a('v_and_b32', v(r), -2, v(r))
    else: a('v_or_b32', v(r), 1, v(r))
def poll_tags(a, loads, regs, vt, kind, sleep, tagsg=None, pre=False):
    lp = newlabel('Lg'); dn = newlabel('Lg')
    a('s_mov_b32', 's41', SPIN)
    if pre:
        ck = newlabel('Lg'); a('s_branch', ck); a.dead = False
    a.label(lp)
    loads()
    if pre: a.label(ck)
    a('s_sub_u32', 's41', 's41', 1)
    first = True
    for b in regs:
        if kind == 2:
            if first: a('v_bitop3_b32', v(vt), v(b), v(b+1), v(b+1), mods='bitop3:0xcf')
            else: a('v_bitop3_b32', v(vt), v(vt), v(b), v(b+1), mods='bitop3:0xfb')
            a('v_bitop3_b32', v(vt), v(vt), v(b+2), v(b+3), mods='bitop3:0xfb')
        elif kind == 1:
            if first: a('v_bitop3_b32', v(vt), v(b+3), v(b), v(b), mods='bitop3:0xcf')
            else: a('v_bitop3_b32', v(vt), v(vt), v(b+3), v(b), mods='bitop3:0xfb')
            a('v_bitop3_b32', v(vt), v(vt), v(b+1), 1, mods='bitop3:0xf6')
            a('v_bitop3_b32', v(vt), v(vt), v(b+2), S_C, mods='bitop3:0xf6')
        else:
            for j in range(4):
                if first and j == 0: a('v_xor_b32', v(vt), s(tagsg), v(b))
                else: a('v_bitop3_b32', v(vt), v(vt), v(b+j), s(tagsg+j), mods='bitop3:0xf6')
        first = False
    a('v_and_b32', v(vt), 1 if kind == 2 else 0x10001, v(vt))
    a('v_cmp_ne_u32', 'vcc', 0, v(vt))
    a('s_cbranch_scc1', dn)
    a('s_cbranch_vccz', dn); a('s_sleep', sleep); a('s_branch', lp)
    a.label(dn)
def wtag_regs(a, base):
    for j in range(4):
        a('s_add_u32', 's8', 's52', j); a('s_and_b32', s(base+j), 's8', 1); a('s_bitcmp1_b32', 's8', 1)
        a('s_cselect_b32', 's8', S_C, 0); a('s_or_b32', s(base+j), s(base+j), 's8')
def hint(a, caddr, n, flag_s, va, vb, ep):
    a('v_mov_b32', v(va), caddr); a('v_mov_b32', v(vb), 1)
    a('s_mov_b64', 'exec', 1)
    a('ds_add_rtn_u32', v(vb), v(va), v(vb))
    a('v_readfirstlane_b32', 's40', v(vb))
    sk = newlabel('Lp')
    a('s_add_u32', 's40', 's40', 1); a('s_cmp_lg_u32', 's40', n); a('s_cbranch_scc1', sk)
    a('v_mov_b32', v(va), flag_s); a('v_mov_b32', v(vb), ep)
    a('global_store_dword', v(va), v(vb), WS_, mods=SC)
    a.label(sk)
    a('s_mov_b64', 'exec', -1)
def poll_hints(a, vaddr, vt, vz, ep, nlanes):
    lp = newlabel('Lf'); dn = newlabel('Lf')
    a('s_mov_b32', 's41', SPIN); a('v_mov_b32', v(vz), 0)
    if nlanes < 32: a('s_mov_b64', 'exec', (1 << nlanes) - 1)
    else: a('s_mov_b32', 'exec_hi', 0)
    a.label(lp)
    a('global_atomic_add', v(vt), v(vaddr), v(vz), WS_, mods='sc0 sc1')
    a('s_sub_u32', 's41', 's41', 1)
    a.wait(vm=0)
    a('v_cmp_ne_u32', 'vcc', ep, v(vt))
    a('s_cbranch_scc1', dn)
    a('s_cbranch_vccnz', lp)
    a.label(dn)
    a('s_mov_b64', 'exec', -1)
def wait_lds(a, cid, n, t, u):
    a('v_mov_b32', v(t), L_CNT + 4*cid)
    lq = newlabel('Lw'); a.label(lq)
    a('s_sleep', 1); a('ds_read_b32', v(u), v(t)); a('v_readfirstlane_b32', 's40', v(u)); a('s_cmp_lt_u32', 's40', n); a('s_cbranch_scc1', lq)
C_HT, C_HU, C_HZ, C_GU, C_GZ, C_GT2 = 32, 33, 34, 35, 36, 37
NS = [8]
UH = [False]
TWOPASS = [True]
UMARG = [0]
ZDRAIN = [True]
LATE2 = [True]
A3ALL = [0]
EG = [0]
def drained(a, cid, va, vb):
    arrive(a, cid, va, vb, vm=True)
TAGX = [False, False]
XSLEEP = [8]
def poll_tag0(a, loads, regs, vt, sleep=0):
    lp = newlabel('Lg'); dn = newlabel('Lg')
    a('s_mov_b32', 's41', SPIN)
    a.label(lp)
    loads()
    a('s_sub_u32', 's41', 's41', 1)
    a('v_or_b32', v(vt), v(regs[0]), v(regs[1]))
    for k in range(2, len(regs), 2): a('v_or3_b32', v(vt), v(vt), v(regs[k]), v(regs[k+1]))
    a('v_and_b32', v(vt), 1, v(vt))
    a('v_cmp_ne_u32', 'vcc', 0, v(vt))
    a('s_cbranch_scc1', dn)
    if sleep:
        a('s_cbranch_vccz', dn); a('s_sleep', sleep); a('s_branch', lp)
    else: a('s_cbranch_vccnz', lp)
    a.label(dn)

def epoch_ready(a):
    a.wait(lgkm=0); a('s_add_u32', 's52', 's52', 1)
def bar0(a):
    a.wait(lgkm=0)
    a('s_add_u32', 's54', 's38', WS_EP); a('s_addc_u32', 's55', 's39', 0)
    a('s_load_dword', 's52', 's[54:55]', 0)
    stamp(a, 1)
    a('s_barrier')

CODE_HI = [6144]
def entry(a):
    a.raw(f".globl {KNAME}\n.p2align 12\n.type {KNAME},@function\n{KNAME}:")
    a('s_cmp_ge_u32', 's2', 256); a('s_cbranch_scc1', 'Lexit')
    if STAMPS[0]:
        for i in range(1, 16): a('s_mov_b32', s(64+2*i), 0)
    stamp(a, 0)
    a('s_load_dwordx16', 's[16:31]', 's[0:1]', 0)
    a('s_load_dwordx8', 's[32:39]', 's[0:1]', 64)
    a('s_getpc_b64', 's[42:43]'); a('s_and_b32', 's42', 's42', 0xfffff000)
    a('s_bitcmp1_b32', 's2', 3); a('s_cselect_b32', 's8', CODE_HI[0], 0); a('s_add_u32', 's42', 's42', 's8'); a('s_addc_u32', 's43', 's43', 0)
    a('v_lshlrev_b32', 'v2', 4, 'v0'); a('v_mov_b32', 'v3', 's43')
    a('v_add_co_u32', 'v2', 'vcc', 's42', 'v2'); a('v_addc_co_u32', 'v3', 'vcc', 0, 'v3', 'vcc')
    a('global_load_dwordx4', 'v[164:167]', 'v[2:3]', 'off')
    a('v_lshrrev_b32', 'v1', 6, 'v0'); a('v_and_b32', 'v0', 63, 'v0')
    a('v_readfirstlane_b32', 's3', 'v1')
    a('s_and_b32', 's4', 's2', 7); a('s_bfe_u32', 's5', 's2', (1 << 16) | 3); a('s_lshr_b32', 's6', 's2', 4)
    a('s_lshl3_add_u32', 's7', 's6', 's4')
    tag_consts(a)
    a('s_mul_i32', 's53', 's4', 80); a('s_mul_i32', 's8', 's6', 5); a('s_add_u32', 's53', 's53', 's8'); a('s_lshl1_add_u32', 's53', 's5', 's53')
    a('v_lshlrev_b32', 'v1', 2, 'v0'); a('v_mov_b32', 'v2', 0)
    a('ds_write_b32', 'v1', 'v2', mods=f'offset:{L_CNT}')
    a('s_cmp_lg_u32', 's5', 0); a('s_cbranch_scc1', 'LentO')
    a('s_cmp_ge_u32', 's3', 8); a('s_cbranch_scc1', 'LauxE')
    R = RegAlloc(1, 160)
    a('s_lshl_b32', 's9', 's3', 7); a('s_add_u32', 's9', 's9', 's7'); a('s_mul_i32', 's10', 's9', 1280)
    vo = row_offsets(a, R, 's10', 1024*1280)
    a('s_mul_i32', 's11', 's3', 3072); a('s_add_u32', 's11', 's11', L_XR); a('s_mov_b32', 'm0', 's11')
    if XDELAY[0]: a('s_sleep', XDELAY[0])
    for t in range(3): a('global_load_lds_dwordx4', v(vo[t]), X_, mods=f'offset:{1024*t}')
    a('s_branch', 'LA1')
    a.label('LentO')
    a('s_cmp_ge_u32', 's3', 9); a('s_cbranch_scc1', 'Lbar0')
    R = RegAlloc(1, 160)
    vo = quad_voff(a, R); t = R.alloc()
    a('s_mul_i32', 's10', 's6', 128*1280); a('s_mul_i32', 's8', 's4', 160); a('s_add_u32', 's10', 's10', 's8')
    a('s_sub_u32', 's8', 's10', 4*1280); a('v_add_u32', v(t), 's8', v(vo))
    NB = 2048*1280
    srd(a, 44, 's24', 's25', NB); srd(a, 48, 's26', 's27', NB)
    a('s_mov_b32', 'exec_hi', 0xff)
    a('s_cmp_eq_u32', 's3', 8); a('s_cbranch_scc1', 'LentH')
    a('s_mul_i32', 's11', 's3', 16*1280); a('s_add_u32', 's11', 's11', 's10')
    a('s_mul_i32', 's12', 's3', 2*1296); a('s_add_u32', 's12', 's12', L_KI + 1296)
    for k in range(4):
        a('s_mov_b32', 'm0', 's12')
        a('buffer_load_dwordx4', v(vo), 's[44:47]', 's11', mods='offen lds')
        a('s_add_u32', 'm0', 's12', L_VI - L_KI - 1296)
        a('buffer_load_dwordx4', v(vo), 's[48:51]', 's11', mods='offen lds')
        if k < 3:
            a('s_addk_i32', 's11', 4*1280); a('s_addk_i32', 's12', 640 if k != 1 else 656)
    a('s_branch', 'LentX')
    a.label('LentH')
    a('s_mov_b32', 'm0', L_KI + 640)
    a('buffer_load_dwordx4', v(t), 's[44:47]', 0, mods='offen lds')
    a.label('LentX')
    a('s_mov_b64', 'exec', -1)
    a.label('Lbar0')
    bar0(a)
    a('s_cmp_ge_u32', 's3', 10); a('s_cbranch_scc1', 'LauxO')
    a('s_branch', 'LB1')
    a.label('Lexit')
    a('s_endpgm')

def h_copy(a, R, slc, sc):
    mk = R.mark()
    vo = R.alloc(); Hd = R.alloc(4); t = R.alloc()
    a('s_lshl_b32', 's8', sc, 1); a('s_add_u32', 's8', 's8', 2); a('v_lshl_add_u32', v(vo), 'v0', 4, 's8')
    a('s_and_b32', 's12', sc, 1); a('s_mul_i32', 's12', 's12', 529*16); a('s_lshr_b32', 's13', sc, 1); a('s_mul_i32', 's13', 's13', 264*16)
    a('s_add_u32', 's12', 's12', 's13'); a('s_mul_i32', 's13', slc, HSZ); a('s_add_u32', 's12', 's12', 's13'); a('s_add_u32', 's12', 's12', L_H)
    a('s_add_u32', 's8', 's53', slc); a('s_lshl_b32', 's8', 's8', 12)
    a('s_load_dwordx2', 's[56:57]', H_, 's8')
    a('s_add_u32', 's44', 's30', 's8'); a('s_addc_u32', 's45', 's31', 0); a('s_and_b32', 's45', 's45', 0xffff)
    a('s_mov_b32', 's46', 4096); a('s_mov_b32', 's47', 0x20000)
    a('s_add_u32', 'm0', 's12', 128)
    for b in range(4): a('buffer_load_dwordx4', v(vo), 's[44:47]', 0, mods=f'offen offset:{1024*b} lds')
    for k in range(4): a('v_mov_b32', v(Hd+k), 0)
    sk = newlabel('Lh')
    a('s_cmp_lg_u32', sc, 0); a('s_cbranch_scc1', sk)
    a('s_mul_i32', 's8', slc, USZ); a('s_add_u32', 's8', 's8', L_U + 32*144)
    a('v_lshl_add_u32', v(t), 'v0', 4, 's8')
    a('ds_write_b128', v(t), v(Hd, 4))
    a('s_mov_b64', 'exec', 0xff); a('ds_write_b128', v(t), v(Hd, 4), mods='offset:1024'); a('s_mov_b64', 'exec', -1)
    a.label(sk)
    a('s_lshl_b32', 's8', sc, 4); a('s_sub_u32', 's8', 48, 's8')
    a('v_lshl_add_u32', v(t), 'v0', 4, 's12')
    a.wait(lgkm=0)
    a('s_lshl_b64', 's[56:57]', 's[56:57]', 's8')
    a('v_writelane_b32', v(Hd+2), 's56', 7); a('v_writelane_b32', v(Hd+3), 's57', 7)
    a('s_mov_b64', 'exec', 0xff)
    a('ds_write_b128', v(t), v(Hd, 4))
    a('s_mov_b64', 'exec', -1)
    R.release(mk)

def h_srd(a, slc):
    a('s_add_u32', 's8', 's53', slc); a('s_lshl_b32', 's8', 's8', 12)
    a('s_add_u32', 's44', 's30', 's8'); a('s_addc_u32', 's45', 's31', 0); a('s_and_b32', 's45', 's45', 0xffff)
    a('s_mov_b32', 's46', 4096); a('s_mov_b32', 's47', 0x20000)
def h_load(a, D, vo, vo2, imm):
    a('buffer_load_dwordx4', v(D, 4), v(vo), 's[44:47]', 0, mods=f'offen offset:{imm}')
    a('buffer_load_dwordx2', v(D+4, 2), v(vo2), 's[44:47]', 0, mods=f'offen offset:{imm}')
def h_expand(a, D, T, wa, imm):
    CB = [0, 529*16, 264*16, 793*16]
    for i in range(4): a('v_alignbit_b32', v(T+i), v(D+i+1), v(D+i), 16)
    a('ds_write_b128', v(wa), v(T, 4), mods=f'offset:{imm + CB[0]}')
    for i in range(4): a('v_alignbit_b32', v(T+4+i), v(D+i+2), v(D+i+1), 16)
    a('ds_write_b128', v(wa), v(T+4, 4), mods=f'offset:{imm + CB[2]}')
    a('ds_write_b128', v(wa), v(D+2, 4), mods=f'offset:{imm + CB[3]}')
    for i in range(4): a('v_mov_b32', v(T+8+i), v(D+i+1))
    a('ds_write_b128', v(wa), v(T+8, 4), mods=f'offset:{imm + CB[1]}')
def u_pad(a, slc, Zr, t):
    a('s_mul_i32', 's8', slc, USZ); a('s_add_u32', 's8', 's8', L_U + 32*144)
    a('v_lshl_add_u32', v(t), 'v0', 4, 's8')
    a('ds_write_b128', v(t), v(Zr, 4))
    a('s_mov_b64', 'exec', 0xff); a('ds_write_b128', v(t), v(Zr, 4), mods='offset:1024'); a('s_mov_b64', 'exec', -1)

def pk_A1(a):
    a.label('LA1')
    a('s_setprio', 2)
    R = RegAlloc(1, 150)
    coop_tables(a, R, L_TABH, L_TW, a3=False)
    bar0(a)
    HE = 152
    R = RegAlloc(1, 152)
    rd = R.alloc(); va = R.alloc(); vb = R.alloc(); t = R.alloc(); q = R.alloc()
    Hs = R.alloc(16); Gs = R.alloc(16); TW = R.alloc(24)
    a('v_lshlrev_b32', v(rd), 4, 'v0'); a('v_add_u32', v(t), L_TABH, v(rd)); a('v_add_u32', v(rd), L_TW, v(rd))
    Mre, Mim = m2_mats(a, R, False, None)
    epoch_ready(a)
    for k in (3, 0, 1, 2):
        a('ds_read_b128', v(Hs+4*k, 4), v(t), mods=f'offset:{1024*k}'); a('ds_read_b128', v(Gs+4*k, 4), v(t), mods=f'offset:{4096+1024*k}')
    for k in (2, 3, 4, 5, 0, 1): a('ds_read_b128', v(TW+4*k, 4), v(rd), mods=f'offset:{1024*k}')
    a('v_lshrrev_b32', v(va), 2, 'v0'); a('v_lshrrev_b32', v(q), 4, 'v0')
    a('v_bfe_u32', v(vb), 'v0', 1, 1); a('v_mul_u32_u24', v(vb), 1408, v(vb))
    a('v_and_b32', v(t), 1, 'v0'); a('v_lshl_add_u32', v(vb), v(t), 3, v(vb)); a('v_add_u32', v(vb), 's11', v(vb))
    tra = d1_addrs(a, R, va, vb)
    Dr = R.alloc(10)
    a('s_lshr_b32', 's14', 's3', 2); a('s_and_b32', 's15', 's3', 3); h_srd(a, 's14')
    a('s_lshl_b32', 's8', 's15', 10); a('v_lshl_add_u32', v(Dr), 'v0', 4, 's8'); a('v_lshlrev_b32', v(Dr+1), 4, 'v0')
    a('v_subrev_u32', v(Dr+2), 128, v(Dr+1)); a('v_subrev_u32', v(Dr+3), 112, v(Dr+1))
    a('buffer_load_dwordx4', v(HE, 4), v(Dr), 's[44:47]', 0, mods='offen'); a('buffer_load_dwordx2', v(HE+4, 2), v(Dr), 's[44:47]', 0, mods='offen offset:16')
    h_load(a, HE+6, Dr+2, Dr+3, 0)
    a('v_mov_b32', v(va), L_CNT + 4*C_X); a('v_mov_b32', v(vb), 1)
    stamp(a, 2)
    a.wait(vm=4)
    stamp(a, 3)
    for e in (0, 1, 2, 3, 4): a('ds_read_b64_tr_b16', v(Dr + 2*((e + 4) % 5), 2), v(tra[e]))
    lds_cnt_add(a, va, vb)
    ea0, ea1 = ei_addrs(a, R, 2624, dup=False)
    P0 = R.alloc(8); A1 = R.alloc(24); PK = R.alloc(12); X = R.alloc(8)
    a('v_mfma_f32_16x16x16_bf16', v(P0, 4), v(Dr+8, 2), v(Hs+12, 2), 0)
    a('v_mfma_f32_16x16x16_bf16', v(P0+4, 4), v(Dr+8, 2), v(Gs+12, 2), 0)
    tr2 = R.alloc(); go = R.alloc()
    a('v_bfe_u32', v(tr2), 'v0', 2, 2); a('v_mul_u32_u24', v(tr2), 2624, v(tr2))
    a('v_and_b32', v(t), 3, 'v0'); a('v_lshl_add_u32', v(tr2), v(t), 3, v(tr2))
    a('v_lshl_add_u32', v(tr2), v(q), 5, v(tr2))
    PAIR = {1: (0, 4), 2: (1, 3), 0: (6, 6)}
    for k5 in (1, 2, 0):
        for ri, M in enumerate((Hs, Gs)):
            a('v_mfma_f32_16x16x32_bf16', v(A1+8*k5+4*ri, 4), v(Dr, 4), v(M + 2*PAIR[k5][0], 4), v(P0+4*ri, 4))
        for ri, M in enumerate((Hs, Gs)):
            a('v_mfma_f32_16x16x32_bf16', v(A1+8*k5+4*ri, 4), v(Dr+4, 4), v(M + 2*PAIR[k5][1], 4), v(A1+8*k5+4*ri, 4))
        if k5 == 1:
            a('s_lshl_b32', 's8', 's3', 7); a('s_add_u32', 's8', 's8', L_EI); a('v_add_u32', v(tr2), 's8', v(tr2))
            a('s_mul_i32', 's8', 's7', TBLK); a('s_lshl_b32', 's12', 's3', 10); a('s_add_u32', 's8', 's8', 's12')
            a('v_lshl_add_u32', v(go), 'v0', 4, 's8')
    A2 = Hs
    for k5 in (1, 2, 0):
        for r in range(4):
            re, im, c, s_ = A1+8*k5+r, A1+8*k5+4+r, TW+8*k5+r, TW+8*k5+4+r
            a('v_mul_f32', v(X+r), v(re), v(c)); a('v_mul_f32', v(X+4+r), v(im), v(c))
            a('v_fmac_f32', v(X+r), v(im), v(s_)); a('v_fma_f32', v(X+4+r), '-' + v(re), v(s_), v(X+4+r))
            a('v_cvt_pk_bf16_f32', v(PK+4*k5+r), v(X+r), v(X+4+r))
        a('v_mfma_f32_16x16x32_bf16', v(A2+8*k5, 4), v(Mre, 4), v(PK+4*k5, 4), 0)
        a('v_mfma_f32_16x16x32_bf16', v(A2+8*k5+4, 4), v(Mim, 4), v(PK+4*k5, 4), 0)
    for k5 in (1, 2, 0):
        for r in range(4): a('v_cvt_pk_bf16_f32', v(PK+4*k5+r), v(A2+8*k5+r), v(A2+8*k5+4+r))
        if k5: a('ds_write_b128', v(ea0), v(PK+4*k5, 4), mods=f'offset:{1024*(k5-1)}')
        else: a('ds_write_b128', v(ea1), v(PK, 4))
    stamp(a, 4)
    subbar(a, C_A1, 8, X, X+1)
    O = A1
    for it in range(3):
        if it == 2:
            skip = newlabel('La1s'); a('s_cmp_gt_u32', 's3', 4); a('s_cbranch_scc1', skip)
        a('ds_read_b64_tr_b16', v(O+4*it, 2), v(tr2), mods=f'offset:{1024*it}')
        a('ds_read_b64_tr_b16', v(O+4*it+2, 2), v(tr2), mods=f'offset:{1024*it + 4*2624}')
        if it == 1:
            for j in range(4): tag1(a, O+j, j)
            a('global_store_dwordx4', v(go), v(O, 4), WS_, mods=SC)
            a('v_add_u32', v(go), 8192, v(go))
            for j in range(4): tag1(a, O+4+j, j)
            a('global_store_dwordx4', v(go), v(O+4, 4), WS_, mods=SC)
            a('v_add_u32', v(go), 8192, v(go))
    for j in range(4): tag1(a, O+8+j, j)
    a('s_cmp_lt_u32', 's3', 4); a('s_cselect_b32', 'exec_hi', -1, 0)
    a('global_store_dwordx4', v(go), v(O+8, 4), WS_, mods=SC)
    a('s_mov_b64', 'exec', -1)
    a.label(skip)
    stamp(a, 5)
    a('s_setprio', 0)
    R = RegAlloc(1, 60)
    coop_tables(a, R, L_T3H, L_T3W, a3=True)
    drained(a, C_A1D, 1, 2)
    stamp(a, 6)
    R = RegAlloc(1, 60)
    T = R.alloc(12); wa = R.alloc(); tt = R.alloc()
    a('s_lshr_b32', 's14', 's3', 2); a('s_and_b32', 's15', 's3', 3)
    a('s_mul_i32', 's8', 's14', HSZ); a('s_add_u32', 's8', 's8', L_H); a('v_lshl_add_u32', v(tt), 'v0', 4, 's8')
    a('s_lshl_b32', 's8', 's15', 10); a('v_add_u32', v(wa), 's8', v(tt))
    h_expand(a, HE, T, wa, 128)
    skh = newlabel('Lh'); a('s_cmp_lg_u32', 's15', 0); a('s_cbranch_scc1', skh)
    a('s_mov_b64', 'exec', 0xff)
    h_expand(a, HE+6, T, tt, 0)
    a('s_mov_b64', 'exec', -1)
    for k in range(4): a('v_mov_b32', v(T+k), 0)
    u_pad(a, 's14', T, wa)
    a.label(skh)
    a('s_cmp_ge_u32', 's7', 36); a('s_cbranch_scc1', 'LB2')
    a('s_cmp_ge_u32', 's3', 4); a('s_cbranch_scc1', 'LB2')
    arrive(a, C_H0, 1, 2)
    a('s_add_u32', 's9', 's7', 128); a('s_mov_b32', 's10', 's3')
    a('s_mov_b32', 's62', L_P1); a('s_mov_b32', 's63', L_P1 + 16384); a('s_mov_b32', 's61', L_CNT + 4*(C_A2+4))
    a('s_branch', 'LA2c')

def gen_A3_regs(a):
    K = A3K(); PIT = 2640
    R = RegAlloc(100, 164); T = RegAlloc(1, 100)
    t = T.alloc(); n = T.alloc(); q = T.alloc(); vb = T.alloc()
    K.go = R.alloc(); K.go2 = R.alloc(); K.go3 = R.alloc(); K.lw = R.alloc()
    a('s_mul_i32', 's8', 's7', TBLK); a('s_lshl_b32', 's12', 's3', 10); a('s_add_u32', 's12', 's8', 's12')
    a('v_lshl_add_u32', v(K.go), 'v0', 4, 's12'); a('v_add_u32', v(K.go2), 8192, v(K.go))
    a('s_add_u32', 's8', 's8', TBLK - 16)
    a('v_add_u32', v(K.go3), 16384, v(K.go)); a('v_min_u32', v(K.go3), 's8', v(K.go3))
    a('v_and_b32', v(t), 1, 'v0'); a('v_mul_u32_u24', v(K.lw), 4*PIT, v(t))
    a('v_lshrrev_b32', v(t), 1, 'v0'); a('v_lshl_add_u32', v(K.lw), v(t), 2, v(K.lw))
    a('s_lshl_b32', 's8', 's3', 7); a('s_add_u32', 's8', 's8', L_EI); a('v_add_u32', v(K.lw), 's8', v(K.lw))
    K.ea0, K.ea1 = ei_addrs(a, R, PIT, dup=True)
    a('s_lshl_b32', 's9', 's3', 7); a('s_add_u32', 's9', 's9', 's7'); a('s_mul_i32', 's10', 's9', 2560)
    a('s_mul_i32', 's11', 's3', 3072); a('s_add_u32', 's11', 's11', L_XR)
    K.vo = row_offsets(a, R, 's10', 1024*2560)
    K.Mre, K.Mim = m2_mats(a, R, True, 2.0/(2048*640))
    K.rd = R.alloc()
    a('v_and_b32', v(n), 15, 'v0'); a('v_lshrrev_b32', v(q), 4, 'v0')
    a('v_lshrrev_b32', v(vb), 5, 'v0'); a('v_mul_u32_u24', v(vb), 1408, v(vb))
    a('v_and_b32', v(t), 1, v(q)); a('v_lshl_add_u32', v(vb), v(t), 3, v(vb)); a('v_add_u32', v(vb), 's11', v(vb))
    K.wa = d1_addrs(a, R, n, vb)
    a('v_lshl_add_u32', v(K.rd), 'v0', 4, 's11')
    K.TW = R.alloc(24)
    return K

def pk_A3(a):
    a.label('LA3')
    K = gen_A3_regs(a)
    PIT = 2640
    R = RegAlloc(1, 100)
    t = R.alloc(); u = R.alloc(); IN = R.alloc(12); X = R.alloc(8); F = R.alloc(20)
    await_cnt(a, C_A1D, 8, t, u)
    sk2 = newlabel('La3w'); a('s_cmp_ge_u32', 's7', 36); a('s_cbranch_scc1', sk2)
    await_cnt(a, C_A2+4+3, 4, t, u)
    a.label(sk2)
    a('v_lshlrev_b32', v(t), 4, 'v0'); a('v_add_u32', v(u), L_T3W, v(t)); a('v_add_u32', v(t), L_T3H, v(t))
    for k in range(5): a('ds_read_b128', v(F+4*k, 4), v(t), mods=f'offset:{1024*k}')
    for k in range(6): a('ds_read_b128', v(K.TW+4*k, 4), v(u), mods=f'offset:{1024*k}')
    wait_lds(a, C_A2+3, 4, t, u)
    if A3ALL[0]:
        arrive(a, C_GT2, t, u); wait_lds(a, C_GT2, A3ALL[0], t, u)
    stamp(a, 11)
    a.wait(vm=0)
    a('s_setprio', 2)
    def loads():
        a('global_load_dwordx4', v(IN, 4), v(K.go), WS_, mods=SC)
        a('global_load_dwordx4', v(IN+4, 4), v(K.go2), WS_, mods=SC)
        a('global_load_dwordx4', v(IN+8, 4), v(K.go3), WS_, mods=SC)
    poll_tags(a, loads, [IN, IN+4, IN+8], t, 2, LSLEEP[0])
    stamp(a, 12)
    for it in range(3):
        if it == 2:
            skip = newlabel('La3s'); a('s_cmp_gt_u32', 's3', 4); a('s_cbranch_scc1', skip)
            a('s_cmp_lt_u32', 's3', 4); a('s_cselect_b32', 'exec_hi', -1, 0)
        for x in range(4): a('ds_write_b32', v(K.lw), v(IN+4*it+x), mods=f'offset:{1024*it + PIT*x}')
    a('s_mov_b64', 'exec', -1)
    a.label(skip)
    subbar(a, C_A3, 8, t, u)
    stamp(a, 13)
    Z = IN; A1 = R.alloc(24); PK = Z; Y = R.alloc(20); P0 = R.alloc(4)
    a('ds_read_b128', v(Z, 4), v(K.ea1))
    a('ds_read_b128', v(Z+4, 4), v(K.ea0)); a('ds_read_b128', v(Z+8, 4), v(K.ea0), mods='offset:1024')
    MF = 'v_mfma_f32_16x16x32_bf16'
    for k5 in range(3):
        a(MF, v(A1+8*k5, 4), v(Z+4*k5, 4), v(K.Mre, 4), 0); a(MF, v(A1+8*k5+4, 4), v(Z+4*k5, 4), v(K.Mim, 4), 0)
    for k5 in range(3):
        for r in range(4):
            re, im, c, s_ = A1+8*k5+r, A1+8*k5+4+r, K.TW+8*k5+r, K.TW+8*k5+4+r
            a('v_mul_f32', v(X+r), v(re), v(c)); a('v_mul_f32', v(X+4+r), v(im), v(c))
            a('v_fma_f32', v(X+r), '-' + v(im), v(s_), v(X+r)); a('v_fmac_f32', v(X+4+r), v(re), v(s_))
            if r & 1:
                a('v_cvt_pk_bf16_f32', v(PK+4*k5+(r >> 1)), v(X+r-1), v(X+r))
                a('v_cvt_pk_bf16_f32', v(PK+4*k5+2+(r >> 1)), v(X+4+r-1), v(X+4+r))
        if k5 == 0: a(MF, v(P0, 4), v(PK, 4), v(F, 4), 0)
        else:
            for e in range(5):
                a(MF, v(Y+4*e, 4), v(PK+4*k5, 4), v(F+4*((e*k5) % 5), 4), v(P0, 4) if k5 == 1 else v(Y+4*e, 4))
    for e in range(5):
        a('v_cvt_pk_bf16_f32', v(A1+2*e), v(Y+4*e), v(Y+4*e+1)); a('v_cvt_pk_bf16_f32', v(A1+2*e+1), v(Y+4*e+2), v(Y+4*e+3))
        a('ds_write_b64', v(K.wa[e]), v(A1+2*e, 2))
    for k in range(3): a('ds_read_b128', v(Z+4*k, 4), v(K.rd), mods=f'offset:{1024*k}')
    a('global_store_dwordx4', v(K.vo[0]), v(Z, 4), OUT_, mods=SC)
    a('s_mov_b32', 'exec_lo', 0xff00ffff)
    a('global_store_dwordx4', v(K.vo[1]), v(Z+4, 4), OUT_, mods='offset:1024 sc1')
    a('s_mov_b32', 'exec_lo', -1); a('s_mov_b32', 'exec_hi', 0xff)
    a('global_store_dwordx4', v(K.vo[2]), v(Z+8, 4), OUT_, mods='offset:2048 sc1')
    stamp(a, 14)
    ske = newlabel('Lep')
    a('s_mov_b64', 'exec', 1)
    a('s_or_b32', 's8', 's2', 's3'); a('s_cmp_lg_u32', 's8', 0); a('s_cbranch_scc1', ske)
    a('v_mov_b32', v(t), WS_EP); a('v_mov_b32', v(u), 's52')
    a('global_store_dword', v(t), v(u), WS_, mods=SC)
    a.label(ske)
    a('s_mov_b64', 'exec', -1)

def pk_B1(a):
    a.label('LB1')
    a('s_setprio', 2)
    R = RegAlloc(1, 160)
    t = R.alloc(); u = R.alloc()
    lb, uo, pr, od = b13_lane(a, R, WS_U)
    CF = R.alloc(4); C = R.alloc(8)
    a('s_mul_i32', 's8', 's4', 640); a('v_lshl_add_u32', v(t), v(pr), 4, 's8')
    a('global_load_dwordx4', v(CF, 4), v(t), SK_)
    msk = R.alloc(); a('v_mov_b32', v(msk), 0xffff0000)
    epoch_ready(a)
    stamp(a, 2)
    for j in range(4):
        for ch in range(2):
            src = CF + 2*ch + (j >> 1)
            if j & 1: a('v_and_b32', v(C+2*j+ch), v(msk), v(src))
            else: a('v_lshlrev_b32', v(C+2*j+ch), 16, v(src))
    subbar(a, C_B1, 10, t, u, vm=True)
    stamp(a, 3)
    Kd = R.alloc(12); Vd = R.alloc(8); Kf = R.alloc(22); T = R.alloc(4); O = R.alloc(8); res = R.alloc(4); uo2 = R.alloc()
    for i in range(11): a('ds_read_b32', v(Kd+i), v(lb), mods=f'offset:{(800 + 160*i if i < 3 else 1296 + 160*(i-3))}')
    for i in range(8): a('ds_read_b32', v(Vd+i), v(lb), mods=f'offset:{L_VI - L_KI + 160*i}')
    a('v_add_u32', v(uo2), 4096, v(uo))
    def unp(i):
        a('v_lshlrev_b32', v(Kf+2*i), 16, v(Kd+i)); a('v_and_b32', v(Kf+2*i+1), v(msk), v(Kd+i))
    for i in range(3): unp(i)
    for i in range(8):
        unp(i+3)
        for ch in range(2):
            acc = T + ch; dst = res + 2*(i & 1) + ch
            a('v_mul_f32', v(acc), v(Kf+2*i+ch), v(C+6+ch))
            for j in (2, 1, 0): a('v_fmac_f32', v(acc), v(Kf+2*(i+3-j)+ch), v(C+2*j+ch))
            if ch: a('v_and_b32', v(T+2+ch), v(msk), v(Vd+i))
            else: a('v_lshlrev_b32', v(T+2+ch), 16, v(Vd+i))
            a('v_mul_f32', v(dst), v(acc), v(T+2+ch))
        if i & 1:
            for ch in range(2):
                d = O+4*ch+3-(i >> 1)
                a('v_cvt_pk_bf16_f32', v(d), v(res+2+ch), v(res+ch)); tag1(a, d, 3-(i >> 1))
    stamp(a, 4)
    a('global_store_dwordx4', v(uo), v(O, 4), WS_, mods=SC)
    a('global_store_dwordx4', v(uo2), v(O+4, 4), WS_, mods=SC)
    if UH[0]: hint(a, L_CNT + 4*C_HU, 10, 's8', t, u, 's96')
    stamp(a, 5)
    drained(a, C_B1D, t, u)
    stamp(a, 6)
    a('s_setprio', 0)
    a('s_branch', 'LB2')

def pk_auxO(a):
    a.label('LauxO')
    R = RegAlloc(1, 120); t = R.alloc(); u = R.alloc(); vo = R.alloc(); vh = R.alloc(); vh2 = R.alloc(); wa = R.alloc(); wh = R.alloc()
    T = R.alloc(12); D = R.alloc(54)
    a('s_sub_u32', 's62', 's3', 10); a('s_lshl_b32', 's62', 's62', 11)
    a('v_lshlrev_b32', v(t), 4, 'v0'); a('v_add_u32', v(vo), 's62', v(t)); a('v_subrev_u32', v(vh), 128, v(t)); a('v_subrev_u32', v(vh2), 112, v(t))
    a('v_add_u32', v(wh), L_H, v(t)); a('v_add_u32', v(wa), 's62', v(wh))
    if HGATE[0]: await_cnt(a, C_B1, HGATE[0], t, u)
    a('v_lshlrev_b32', v(t), 4, 'v0')
    for lc in range(3):
        h_srd(a, lc)
        for b in range(2):
            a('buffer_load_dwordx4', v(D+18*lc+6*b, 4), v(vo), 's[44:47]', 0, mods=f'offen offset:{1024*b}')
            a('buffer_load_dwordx2', v(D+18*lc+6*b+4, 2), v(vo), 's[44:47]', 0, mods=f'offen offset:{1024*b+16}')
        h_load(a, D+18*lc+12, vh, vh2, 0)
    epoch_ready(a)
    for k in range(4): a('v_mov_b32', v(T+k), 0)
    for lc in range(3): u_pad(a, lc, T, t)
    for lc in range(3):
        for b in range(2): h_expand(a, D+18*lc+6*b, T, wa, lc*HSZ + 128 + 1024*b)
        a('s_mov_b64', 'exec', 0xff)
        h_expand(a, D+18*lc+12, T, wh, lc*HSZ)
        a('s_mov_b64', 'exec', -1)
    arrive(a, C_H, t, u)
    stamp(a, 6)
    a('s_branch', 'LB2')

def pk_B3(a):
    a.label('LB3')
    a('s_cmp_ge_u32', 's3', 10); a('s_cbranch_scc1', 'Lfin')
    R = RegAlloc(1, 160)
    t = R.alloc(); u = R.alloc()
    lb, uo, pr, od = b13_lane(a, R, WS_U)
    uo2 = R.alloc(); a('v_add_u32', v(uo2), 4096, v(uo))
    Z = R.alloc(8); oo = R.alloc(); rd = R.alloc(); msk = R.alloc(); a('v_mov_b32', v(msk), 0xffff0000)
    a('v_mul_u32_u24', v(t), 26, 'v0'); a('v_lshrrev_b32', v(t), 8, v(t))
    a('v_mul_u32_u24', v(oo), 2560 - 160, v(t)); a('v_lshl_add_u32', v(oo), 'v0', 4, v(oo))
    a('s_lshl_b32', 's8', 's6', 3); a('s_add_u32', 's8', 's8', 's3'); a('s_mul_i32', 's8', 's8', 16*2560)
    a('s_mul_i32', 's9', 's4', 160); a('s_add_u32', 's8', 's8', 's9'); a('s_add_u32', 's8', 's8', 1280); a('v_add_u32', v(oo), 's8', v(oo))
    a('s_mul_i32', 's8', 's3', 2*1296); a('s_add_u32', 's8', 's8', L_VI); a('v_lshl_add_u32', v(rd), 'v0', 4, 's8')
    await_cnt(a, C_QL, 8, t, u)
    Qd = R.alloc(8); Qf = R.alloc(16); T = R.alloc(4); O = R.alloc(16)
    for i in range(8): a('ds_read_b32', v(Qd+i), v(lb), mods=f'offset:{L_VI - L_KI + 160*i}')
    for i in range(8):
        a('v_lshlrev_b32', v(Qf+2*i), 16, v(Qd+i)); a('v_and_b32', v(Qf+2*i+1), v(msk), v(Qd+i))
    def loads():
        a('global_load_dwordx4', v(Z, 4), v(uo), WS_, mods=SC); a('global_load_dwordx4', v(Z+4, 4), v(uo2), WS_, mods=SC)
    wait_lds(a, C_HZ, 6, t, u)
    stamp(a, 11)
    a.wait(vm=0)
    a('s_setprio', 2)
    poll_tags(a, loads, [Z, Z+4], t, 2, LSLEEP[0])
    stamp(a, 12)
    for i in range(8):
        for ch in range(2):
            src = Z + 4*ch + 3 - (i >> 1)
            if i & 1: a('v_lshlrev_b32', v(T+ch), 16, v(src))
            else: a('v_and_b32', v(T+ch), v(msk), v(src))
            a('v_mul_f32', v(T+ch), v(T+ch), v(Qf+2*i+ch))
        a('v_cvt_pk_bf16_f32', v(Qd+i), v(T), v(T+1))
        a('ds_write_b32', v(lb), v(Qd+i), mods=f'offset:{L_VI - L_KI + 160*i}')
    subbar(a, C_Q, 10, t, u)
    stamp(a, 13)
    a('s_cmp_ge_u32', 's3', 8); a('s_cbranch_scc1', 'Lfin')
    a('s_mov_b32', 'exec_hi', 0xff)
    for k in range(4): a('ds_read_b128', v(O+4*k, 4), v(rd), mods=f'offset:{(k >> 1)*1296 + (k & 1)*640}')
    for k in range(4):
        a('global_store_dwordx4', v(oo), v(O+4*k, 4), OUT_, mods=SC)
        if k < 3: a('v_add_u32', v(oo), 4*2560, v(oo))
    stamp(a, 14)
    a('s_mov_b64', 'exec', -1)

def pk_B2(a):
    a.label('LB2')
    R = RegAlloc(1, 120)
    t = R.alloc(); u = R.alloc(); lw = R.alloc(); U = R.alloc(8); go = R.alloc(); fa = R.alloc(); Dv = R.alloc(); msk = R.alloc()
    n = R.alloc(); q = R.alloc(); aa = R.alloc(); ba = R.alloc(); ba2 = R.alloc(); ia = R.alloc(); ra = R.alloc()
    a('s_lshr_b32', 's9', 's3', 2); a('s_and_b32', 's10', 's3', 3)
    a('s_mul_i32', 's15', 's9', USZ); a('s_add_u32', 's15', 's15', L_U)
    a('v_lshrrev_b32', v(t), 3, 'v0'); a('v_lshlrev_b32', v(t), 4, v(t)); a('v_lshl_add_u32', v(lw), 'v0', 4, v(t))
    a('s_mul_i32', 's8', 's10', 8*144); a('s_add_u32', 's8', 's8', 's15'); a('v_add_u32', v(lw), 's8', v(lw))
    a('s_add_u32', 's13', 's53', 's9')
    a('s_lshl_b32', 's8', 's13', 12); a('s_lshl_b32', 's12', 's10', 10); a('s_add_u32', 's8', 's8', 's12'); a('s_add_u32', 's8', 's8', WS_U)
    a('v_lshl_add_u32', v(go), 'v0', 4, 's8')
    a('s_lshl_b32', 's60', 's9', 2); a('s_add_u32', 's60', 's60', L_CNT + 4*C_U)
    a('s_sub_u32', 's11', 's10', 's9'); a('s_and_b32', 's11', 's11', 3); a('s_lshl2_add_u32', 's99', 's9', 's11'); a('s_or_b32', 's99', 's99', 16)
    a('s_cmp_lt_u32', 's7', 36); a('s_cselect_b32', 's63', 1, 0); a('s_cmp_eq_u32', 's5', 0); a('s_cselect_b32', 's63', 's63', 0)
    lj_ = newlabel('Lb2'); a('s_cmp_eq_u32', 's63', 0); a('s_cbranch_scc1', lj_)
    J = lambda l: sum((16 | lc << 2 | ro) << (5*i) for i, (lc, ro) in enumerate(l))
    lists = [J([(0, 0)]), J([(1, 0)]), J([(0, 3), (1, 3)]), J([(0, 1), (1, 1)])] if LATE2[0] else [J([(0, 0)]), J([(1, 0)]), J([(0, 3), (1, 3), (0, 2)]), J([(0, 1), (1, 1), (1, 2)])]
    a('s_mov_b32', 's56', lists[0] | lists[1] << 16); a('s_mov_b32', 's57', lists[2] | lists[3] << 16)
    a('s_lshl_b32', 's8', 's10', 4); a('s_lshr_b64', 's[56:57]', 's[56:57]', 's8'); a('s_and_b32', 's99', 's56', 0x7fff)
    a.label(lj_)
    a('s_mov_b32', 's62', 1)
    a.label('LB2p')
    a('s_bfe_u32', 's9', 's99', (2 << 16) | 2); a('s_and_b32', 's11', 's99', 3)
    a('s_add_u32', 's13', 's53', 's9')
    a('s_lshl_b32', 's8', 's13', 1); a('s_and_b32', 's8', 's8', -4)
    a('s_load_dword', 's58', D_, 's8')
    a('s_mul_i32', 's15', 's9', USZ); a('s_add_u32', 's15', 's15', L_U)
    a('v_and_b32', v(n), 15, 'v0'); a('v_lshrrev_b32', v(q), 4, 'v0')
    a('v_mov_b32', v(msk), 0xffff0000)
    a('v_and_b32', v(t), 1, 'v0'); a('v_mul_u32_u24', v(aa), 529*16, v(t))
    a('v_bfe_u32', v(t), 'v0', 1, 1); a('v_mul_u32_u24', v(t), 264*16, v(t)); a('v_add_u32', v(aa), v(aa), v(t))
    a('v_bfe_u32', v(t), 'v0', 2, 2); a('v_lshl_add_u32', v(aa), v(t), 5, v(aa))
    a('s_cmp_eq_u32', 's11', 0); a('s_cselect_b32', 's12', 1, 0)
    a('s_add_u32', 's14', 's12', 8); a('v_lshl_add_u32', v(aa), v(q), 's14', v(aa))
    a('s_cmp_eq_u32', 's11', 1); a('s_cselect_b32', 's14', 2048, 0)
    a('s_cmp_eq_u32', 's11', 3); a('s_cselect_b32', 's14', 1040, 's14')
    a('s_mul_i32', 's8', 's9', HSZ); a('s_add_u32', 's8', 's8', 's14'); a('s_add_u32', 's8', 's8', L_H)
    a('v_add_u32', v(aa), 's8', v(aa))
    a('s_add_u32', 's14', 's12', 1); a('v_lshlrev_b32', v(t), 's14', v(q)); a('v_sub_u32', v(t), v(t), v(n))
    a('s_lshl_b32', 's14', 's12', 4); a('s_sub_u32', 's14', 31, 's14'); a('v_add_u32', v(t), 's14', v(t))
    a('v_mul_u32_u24', v(ba), 144, v(t)); a('v_add_u32', v(ba), 's15', v(ba))
    a('v_sub_u32', v(t), 's14', v(n)); a('v_mul_u32_u24', v(ia), 144, v(t)); a('v_add_u32', v(ia), 's15', v(ia))
    a('v_lshlrev_b32', v(t), 5, v(q)); a('v_sub_u32', v(ia), v(ia), v(t))
    a('s_mul_i32', 's59', 's9', REDSZ); a('s_add_u32', 's59', 's59', L_RED); a('v_lshl_add_u32', v(ra), 'v0', 4, 's59')
    lnh = newlabel('Lb2'); a('s_cmp_lg_u32', 's11', 3); a('s_cbranch_scc1', lnh)
    a('v_and_b32', v(t), 7, 'v0'); a('v_lshlrev_b32', v(u), 1, v(q)); a('v_sub_u32', v(u), v(u), v(t)); a('v_add_u32', v(u), 31, v(u))
    a('v_mul_u32_u24', v(ba), 144, v(u)); a('v_add_u32', v(ba), 's15', v(ba))
    a('v_and_b32', v(u), 8, 'v0'); a('v_xor_b32', v(u), 8, v(u)); a('v_lshl_add_u32', v(ba), v(u), 1, v(ba)); a('v_lshl_add_u32', v(ba2), v(u), 1, v(ba))
    a('v_lshl_add_u32', v(t), v(q), 3, v(t)); a('v_lshlrev_b32', v(t), 4, v(t)); a('v_and_b32', v(u), 8, 'v0'); a('v_lshl_add_u32', v(t), v(u), 7, v(t))
    a('v_add_u32', v(ra), 's59', v(t))
    a.label(lnh)
    a.wait(lgkm=0)
    a('s_bitcmp1_b32', 's13', 0); a('s_cselect_b32', 's8', 0, 16); a('s_lshl_b32', 's58', 's58', 's8'); a('s_and_b32', 's58', 's58', 0xffff0000)
    a('s_bitcmp1_b32', 's11', 0); a('s_cselect_b32', 's58', 0, 's58')
    a('s_cmp_gt_u32', 's3', 5); a('s_cselect_b32', 's98', 2, 1); a('s_sub_u32', 's98', 's3', 's98'); a('s_min_u32', 's98', 's98', 8)
    a('s_cmp_lg_u32', 's12', 0); a('s_cselect_b32', 's98', 8, 's98'); a('s_cmp_eq_u32', 's5', 0); a('s_cselect_b32', 's98', 8, 's98')
    ACC = R.alloc(16); NW = 6; RA = R.alloc(4*NW + 2); RA2 = R.alloc(4*NW + 2); NBR = 6; RB = R.alloc(4*NBR)
    a('s_cmp_eq_u32', 's62', 0); a('s_cbranch_scc1', 'LB2go')
    stamp(a, 7)
    lo = newlabel('Lb2'); lo2 = newlabel('Lb2'); lo3 = newlabel('Lb2')
    a('s_cmp_lg_u32', 's5', 0); a('s_cbranch_scc1', lo3)
    wait_lds(a, C_A2+EG[0], 4, t, u)
    a('s_branch', lo2)
    a.label(lo3)
    if UH[0]:
        a('s_cmp_lg_u32', 's3', 4); a('s_cbranch_scc1', lo)
        a('v_lshl_add_u32', v(t), 's4', 4, v(n)); a('v_lshlrev_b32', v(fa), 7, v(t)); a('v_add_u32', v(fa), H_U, v(fa))
        poll_hints(a, fa, t, u, 's96', 16)
        arrive(a, C_GU, t, u)
        a('s_branch', lo2)
        a.label(lo)
        wait_lds(a, C_GU, 1, t, u)
    else:
        wait_lds(a, C_B1D, 10, t, u)
        wait_lds(a, C_H, 2, t, u)
    a.label(lo2)
    stamp(a, 2)
    a('s_lshl_b32', 's8', 's63', 12); a('v_subrev_u32', v(fa), 's8', v(go))
    def ul():
        a('global_load_dwordx4', v(U, 4), v(go), WS_, mods=SC)
        if TWOPASS[0]: a('global_load_dwordx4', v(U+4, 4), v(fa), WS_, mods=SC)
    poll_tags(a, ul, [U, U+4] if TWOPASS[0] else [U], t, 1, XSLEEP[0])
    sk2 = newlabel('Lb2'); a('s_cmp_eq_u32', 's63', 0); a('s_cbranch_scc1', sk2)
    await_cnt(a, C_H0, 4, t, u)
    a('v_subrev_u32', v(t), USZ, v(lw))
    a('ds_write_b128', v(t), v(U+4, 4))
    a.label(sk2)
    sko = newlabel('Lb2'); a('s_cmp_eq_u32', 's5', 0); a('s_cbranch_scc1', sko)
    await_cnt(a, C_H, 2, t, u)
    a.label(sko)
    a('ds_write_b128', v(lw), v(U, 4))
    stamp(a, 8)
    subbar_s(a, 's60', 4, t, u, vm=True)
    skq = newlabel('Lb2')
    a('s_cmp_eq_u32', 's98', 8); a('s_cbranch_scc1', skq)
    await_cnt(a, C_B1D, 10, t, u)
    srd(a, 44, 's22', 's23', 2048*1280)
    a('v_mul_u32_u24', v(t), 26, 'v0'); a('v_lshrrev_b32', v(t), 8, v(t)); a('v_mul_u32_u24', v(u), 1280 - 160, v(t)); a('v_lshl_add_u32', v(u), 'v0', 4, v(u))
    a('s_lshl_b32', 's8', 's6', 3); a('s_add_u32', 's8', 's8', 's98'); a('s_mul_i32', 's8', 's8', 16*1280); a('s_mul_i32', 's14', 's4', 160); a('s_add_u32', 's8', 's8', 's14')
    a('s_mul_i32', 's14', 's98', 2*1296); a('s_mov_b32', 'exec_hi', 0xff)
    for k in range(4):
        a('s_add_u32', 'm0', 's14', L_VI + (k >> 1)*1296 + (k & 1)*640)
        a('buffer_load_dwordx4', v(u), 's[44:47]', 's8', mods='offen lds')
        if k < 3: a('s_addk_i32', 's8', 4*1280)
    a('s_mov_b64', 'exec', -1)
    a.label(skq)
    if GATE[0]:
        lg = newlabel('Lb2'); a('s_cmp_lg_u32', 's5', 0); a('s_cbranch_scc1', lg)
        a('v_mov_b32', v(t), L_CNT + 4*(C_A2+2))
        lq = newlabel('Lb2'); a.label(lq)
        a('s_sleep', 2); a('ds_read_b32', v(u), v(t)); a('v_readfirstlane_b32', 's40', v(u)); a('s_cmp_lt_u32', 's40', 4); a('s_cbranch_scc1', lq)
        a('s_cmp_ge_u32', 's7', 36); a('s_cbranch_scc1', lg)
        lq = newlabel('Lb2'); a.label(lq)
        a('s_sleep', 2); a('ds_read_b32', v(u), v(t), mods='offset:16'); a('v_readfirstlane_b32', 's40', v(u)); a('s_cmp_lt_u32', 's40', 4); a('s_cbranch_scc1', lq)
        a.label(lg)
    a.label('LB2go')
    MF = 'v_mfma_f32_16x16x32_bf16'
    PD = 3
    def rdA(ring, w, off, last):
        if w > last: return
        a('ds_read_b128', v(ring + 4*(w % NW), 4), v(aa), mods=f'offset:{off + 16*w}')
        if w and w % NW == 0: a('ds_read_b64', v(ring+4*NW, 2), v(aa), mods=f'offset:{off + 16*w}')
    def rdB(tau, last, hi=False):
        if tau > last: return
        a('ds_read_b128', v(RB + 4*(tau % NBR), 4), v(ba2 if (hi and tau % 8 == 7) else ba), mods=f'offset:{144*(tau >> 3) + 16*(tau & 7)}')
    a('s_cmp_eq_u32', 's11', 3); a('s_cbranch_scc1', 'LB2hi')
    a('s_cmp_lg_u32', 's11', 0); lp_ = newlabel('Lb2'); a('s_cbranch_scc0', lp_); a('s_setprio', 1); a.label(lp_)
    a('ds_read_b128', v(U, 4), v(ia), mods='offset:96'); a('ds_read_b128', v(U+4, 4), v(ia), mods='offset:112')
    rdB(0, 32); rdA(RA, 1, 0, 33)
    for k in range(PD): rdB(k+1, 32); rdA(RA, k+2, 0, 33)
    for x in range(16):
        e = 15 - x
        if e & 1: a('v_and_b32', v(ACC+x), v(msk), v(U + (e >> 1)))
        else: a('v_lshlrev_b32', v(ACC+x), 16, v(U + (e >> 1)))
        a('v_mul_f32', v(ACC+x), 's58', v(ACC+x))
    stamp(a, 9)
    for tau in range(32):
        if tau == 16:
            a.raw('    s_cmp_eq_u32 s12, 0'); a.raw('    s_cbranch_scc1 LB2r'); a.bytes += 8
            a.snap.setdefault('LB2r', []).append((list(a.vm), list(a.lg)))
        d0 = (4*(tau+1)) % (4*NW)
        for k, (acc, dd, bt) in enumerate(((2, d0, tau), (3, d0+2, tau), (0, d0, tau+1), (1, d0+2, tau+1))):
            a(MF, v(ACC+4*acc, 4), v(RA+dd, 4), v(RB + 4*(bt % NBR), 4), v(ACC+4*acc, 4))
            if k == 1: rdB(tau + PD + 1, 32)
            if k == 3: rdA(RA, tau + PD + 2, 0, 33)
    a.label('LB2r'); a._nop(8)
    stamp(a, 10)
    lf = newlabel('Lb2')
    a('s_lshl_b32', 's14', 's9', 3); a('s_add_u32', 's14', 's14', L_CNT + 4*C_RED); a('v_mov_b32', v(t), 's14'); a('v_mov_b32', v(u), 1)
    a('s_cmp_lg_u32', 's11', 1); a('s_cbranch_scc1', lf)
    for tt in range(4): a('ds_write_b128', v(ra), v(ACC+4*tt, 4), mods=f'offset:{1024*tt}')
    a.wait(lgkm=0); lds_cnt_add(a, t, u)
    a('s_branch', 'LB2end')
    a.label('LB2hi')
    a('s_setprio', 1)
    rdA(RA, 0, 0, 16); rdA(RA2, 0, 2048, 16)
    for k in range(PD): rdB(k, 15, True); rdA(RA, k+1, 0, 16); rdA(RA2, k+1, 2048, 16)
    stamp(a, 9)
    for tau in range(16):
        d0 = (4*tau) % (4*NW)
        for k, (acc, ring, dd) in enumerate(((0, RA, d0), (1, RA, d0+2), (2, RA2, d0), (3, RA2, d0+2))):
            a(MF, v(ACC+4*acc, 4), v(ring+dd, 4), v(RB + 4*(tau % NBR), 4), 0 if tau == 0 else v(ACC+4*acc, 4))
            if k == 0: rdB(tau + PD, 15, True)
            if k == 1: rdA(RA, tau + PD + 1, 0, 16)
            if k == 3: rdA(RA2, tau + PD + 1, 2048, 16)
    stamp(a, 10)
    a('s_lshl_b32', 's14', 's9', 3); a('s_add_u32', 's14', 's14', L_CNT + 4*C_RED); a('v_mov_b32', v(t), 's14'); a('v_mov_b32', v(u), 1)
    for acc in range(4): a('ds_write_b128', v(ra), v(ACC+4*acc, 4), mods=f'offset:{4096 + 2048*(acc >> 1) + 512*(acc & 1)}')
    a.wait(lgkm=0)
    a('s_mov_b64', 'exec', 1); a('ds_add_u32', v(t), v(u)); a('ds_add_u32', v(t), v(u), mods='offset:4'); a('s_mov_b64', 'exec', -1)
    a('s_branch', 'LB2end')
    a.label(lf)
    a('s_lshl_b32', 's8', 's11', 1); a('v_add_u32', v(t), 's8', v(t)); a('s_add_u32', 's14', 's12', 1)
    a('v_and_b32', v(u), 7, 'v0'); a('v_lshl_add_u32', v(u), v(q), 3, v(u)); a('s_lshl_b32', 's8', 's12', 11); a('s_add_u32', 's8', 's8', 's59')
    a('v_lshl_add_u32', v(ia), v(u), 4, 's8')
    lp = newlabel('Lb2'); a.label(lp)
    a('ds_read_b32', v(u), v(t)); a('v_readfirstlane_b32', 's40', v(u)); a('s_cmp_lt_u32', 's40', 's14'); a('s_cbranch_scc1', lp)
    for tt in range(4): a('ds_read_b128', v(RA+4*tt, 4), v(ia), mods=f'offset:{4096 + 512*tt}')
    ls = newlabel('Lb2'); a('s_cmp_eq_u32', 's12', 0); a('s_cbranch_scc1', ls)
    for tt in range(4): a('ds_read_b128', v(RB+4*tt, 4), v(ra), mods=f'offset:{1024*tt}')
    for x in range(16): a('v_add_f32', v(ACC+x), v(ACC+x), v(RB+x))
    a.label(ls)
    a('s_mov_b32', 'exec_lo', 0xff00ff00); a('s_mov_b32', 'exec_hi', 0xff00ff00)
    for x in range(16): a('v_add_f32', v(ACC+x), v(ACC+x), v(RA+x))
    a('s_mov_b64', 'exec', -1)
    for jj in range(8):
        a('v_cvt_pk_bf16_f32', v(U+jj), v(ACC+15-2*jj), v(ACC+14-2*jj)); tag2(a, U+jj, jj)
    sa = ra; sr = aa
    a('s_add_u32', 's8', 's8', 4096)
    a('v_sub_u32', v(t), 15, v(n)); a('v_lshlrev_b32', v(u), 1, v(q)); a('v_sub_u32', v(u), 6, v(u))
    a('v_xor_b32', v(u), v(t), v(u)); a('v_and_b32', v(u), 7, v(u)); a('v_lshlrev_b32', v(u), 4, v(u))
    a('v_lshl_add_u32', v(sa), v(t), 7, v(u)); a('v_add_u32', v(sa), 's8', v(sa)); a('v_xor_b32', v(u), 16, v(sa))
    a('ds_write_b128', v(sa), v(U, 4)); a('ds_write_b128', v(u), v(U+4, 4))
    a('v_lshrrev_b32', v(t), 3, 'v0'); a('v_xor_b32', v(u), v(t), 'v0'); a('v_and_b32', v(u), 7, v(u)); a('v_lshlrev_b32', v(u), 4, v(u))
    a('v_lshl_add_u32', v(sr), v(t), 7, v(u)); a('v_add_u32', v(sr), 's8', v(sr))
    a('ds_read_b128', v(RB, 4), v(sr)); a('ds_read_b128', v(RB+4, 4), v(sr), mods='offset:1024')
    a('s_lshl_b32', 's8', 's13', 12); a('s_lshl_b32', 's14', 's12', 11); a('s_sub_u32', 's8', 's8', 's14'); a('s_add_u32', 's8', 's8', WS_U + 2048)
    a('v_lshl_add_u32', v(t), 'v0', 4, 's8')
    a('global_store_dwordx4', v(t), v(RB, 4), WS_, mods=SC)
    a('global_store_dwordx4', v(t), v(RB+4, 4), WS_, mods=f'offset:1024 {SC}')
    a('s_cmp_eq_u32', 's5', 0); a('s_cbranch_scc1', 'LB2end')
    arrive(a, C_HZ, t, u, vm=ZDRAIN[0])
    a.label('LB2end')
    a('s_setprio', 0)
    a('s_mov_b32', 's62', 0); a.wait(lgkm=0)
    a('s_lshr_b32', 's99', 's99', 5); a('s_cbranch_scc1', 'LB2p')
    a('s_cmp_eq_u32', 's5', 0); a('s_cbranch_scc1', 'LA3')
    a('s_cmp_eq_u32', 's98', 8); a('s_cbranch_scc1', 'LB3')
    arrive(a, C_QL, t, u, vm=True)
    a('s_branch', 'LB3')

class A2R: pass
def a2_regs():
    K = A2R(); R = RegAlloc(1, 168)
    K.t = R.alloc(); K.u = R.alloc(); K.go = R.alloc(); K.lw = R.alloc(); K.lr0 = R.alloc(); K.lr1 = R.alloc(); K.msk = R.alloc()
    K.X = R.alloc(8)
    K.C = R.alloc(8); K.Sm = R.alloc(8); K.N = R.alloc(8); K.TC = R.alloc(16); K.TS = R.alloc(16)
    K.Z = R.alloc(16); K.Wp = R.alloc(16); K.B0 = R.alloc(32); K.B1 = R.alloc(32)
    K.fa, K.fw, K.o, K.h, K.of, K.hf, K.t2 = [K.Wp + k for k in range(7)]
    return K

def A2_consts(a, K):
    t, u, go, X = K.t, K.u, K.go, K.X
    a('v_lshrrev_b32', v(t), 3, 'v0'); a('v_lshl_add_u32', v(t), 's10', 3, v(t))
    a('s_mov_b32', 's8', TBLK); a('v_mul_lo_u32', v(go), v(t), 's8')
    a('v_and_b32', v(u), 7, 'v0'); a('v_lshl_add_u32', v(go), v(u), 4, v(go))
    a('s_lshl_b32', 's8', 's9', 7); a('v_add_u32', v(go), 's8', v(go))
    def swz(dst, line, piece):
        a('v_lshrrev_b32', v(dst), 1, v(line)); a('v_and_b32', v(K.t2), 1, v(line)); a('v_xor_b32', v(dst), v(dst), v(K.t2))
        a('v_xor_b32', v(dst), piece, v(dst)); a('v_and_b32', v(dst), 7, v(dst)); a('v_lshlrev_b32', v(dst), 4, v(dst))
        a('v_lshl_add_u32', v(dst), v(line), 7, v(dst)); a('v_add_u32', v(dst), 's62', v(dst))
    swz(K.lw, t, v(u))
    a('s_sub_u32', 's8', 's9', 128); a('s_mul_i32', 's8', 's8', 57); a('s_lshr_b32', 's8', 's8', 9)
    a('s_bfe_u32', 's11', 's9', (2 << 16) | 4); a('s_cmp_lt_u32', 's9', 128); a('s_cselect_b32', 's8', 's11', 's8')
    a('s_and_b32', 's8', 's8', 1); a('s_cmp_eq_u32', 's8', 0)
    a('s_cselect_b32', 's60', 0, 0x80008000); a('s_lshl_b32', 's11', 's8', 31); a('s_or_b32', 's11', 's11', fl(1/32))
    o, h, of, hf = K.o, K.h, K.of, K.hf
    a('v_bfe_u32', v(o), 'v0', 3, 1); a('v_and_b32', v(t), 3, 'v0'); a('v_lshl_add_u32', v(o), v(o), 2, v(t))
    a('v_bfe_u32', v(t), 'v0', 4, 1); a('v_lshl_add_u32', v(o), v(o), 1, v(t))
    a('v_bfe_u32', v(t), 'v0', 2, 1); a('v_lshl_add_u32', v(o), v(o), 1, v(t))
    a('v_lshrrev_b32', v(h), 5, 'v0')
    a('v_lshl_add_u32', v(t), v(h), 5, v(o))
    a('s_lshl_b32', 's8', 's10', 1)
    swz(K.lr0, t, 's8'); a('v_xor_b32', v(K.lr1), 16, v(K.lr0))
    a('v_cvt_f32_u32', v(of), v(o)); a('v_mul_f32', v(of), 's11', v(of))
    a('v_cvt_f32_u32', v(hf), v(h)); a('v_mul_f32', v(hf), v(hf), v(of))
    for kap in range(2):
        for jj in range(4):
            for e in range(2):
                idx = 2*kap + 4*(2*jj + e)
                if idx: a('v_fmamk_f32', v(X+e), v(of), fl(float(idx)), v(hf)); src = X+e
                else: src = hf
                sincos(a, src, X+2+e, X+4+e)
                vv = 8*kap + 2*jj + e
                a('v_mul_f32', v(X+6+e), fl(1/32), v(src))
                sincos(a, X+6+e, K.TC+vv, K.TS+vv)
            a('v_cvt_pk_bf16_f32', v(K.C+4*kap+jj), v(X+2), v(X+3))
            a('v_cvt_pk_bf16_f32', v(K.Sm+4*kap+jj), v(X+4), v(X+5))
            a('v_xor_b32', v(K.N+4*kap+jj), 0x80008000, v(K.Sm+4*kap+jj))
    a('v_mov_b32', v(K.msk), 0xffff0000)

def pk_auxE(a):
    K = a2_regs()
    a.label('LauxE')
    R = RegAlloc(K.B0, 164)
    WB = 2048*321*2
    bar0(a)
    a('s_sub_u32', 's10', 's3', 8)
    vo = R.alloc(); t = K.t; u = K.u
    a('v_lshlrev_b32', v(vo), 4, 'v0')
    def w_dma():
        a('s_mul_i32', 's14', 's7', 1284)
        a('s_mul_i32', 's11', 's10', 2*256*642); a('s_add_u32', 's14', 's14', 's11')
        a('s_mul_i32', 's11', 's10', 2*1296); a('s_add_u32', 's11', 's11', L_A2 + 1296)
        srd(a, 44, 's18', 's19', WB); srd(a, 48, 's20', 's21', WB)
        def slot(soff, m0v_s, add):
            for pl, sd in enumerate((44, 48)):
                a('s_add_u32', 'm0', m0v_s, add + pl*11664)
                a('buffer_load_dwordx4', v(vo), s(sd, 4), soff, mods='offen lds')
                a('s_mov_b64', 'exec', 0x1ffff)
                a('buffer_load_dwordx4', v(vo), s(sd, 4), soff, mods='offen offset:1024 lds')
                a('s_mov_b64', 'exec', -1)
        slot('s14', 's11', 0)
        a('s_add_u32', 's14', 's14', 256*642)
        slot('s14', 's11', 1296)
        sk = newlabel('Lw1s')
        a('s_cmp_lg_u32', 's7', 127); a('s_cbranch_scc1', sk)
        a('s_cmp_lg_u32', 's10', 3); a('s_cbranch_scc1', sk)
        a('s_mov_b32', 's11', L_A2)
        slot('s14', 's11', 0)
        a.label(sk)
    k0 = R.alloc(); vc = R.alloc(); go = R.alloc(); go2 = R.alloc()
    a('v_lshrrev_b32', v(t), 3, 'v0')
    a('v_mul_u32_u24', v(k0), 65, v(t))
    a('v_mul_u32_u24', v(u), 205, v(k0)); a('v_lshrrev_b32', v(u), 14, v(u))
    a('v_mul_u32_u24', v(u), 80, v(u)); a('v_sub_u32', v(k0), v(k0), v(u))
    a('s_and_b32', 's12', 's10', 1); a('s_lshr_b32', 's13', 's10', 1)
    a('s_cmp_eq_u32', 's12', 0)
    a('s_cselect_b32', 's14', 2, -2); a('s_cselect_b32', 's15', 0, 640)
    a('s_mul_i32', 's8', 's13', 642); a('s_add_u32', 's15', 's15', 's8'); a('s_add_u32', 's15', 's15', L_A2 + 1296)
    a('s_cmp_eq_u32', 's10', 3); a('s_cselect_b32', 's8', 1, 0); a('s_add_u32', 's8', 's8', 's7')
    a('s_cmp_eq_u32', 's8', 128); a('s_cselect_b32', 's41', 1296, 0); a('s_sub_u32', 's15', 's15', 's41')
    a('s_and_b32', 's8', 's8', 127)
    a('v_bfe_u32', v(t), 'v0', 1, 2); a('v_mul_u32_u24', v(t), 80, v(t))
    a('v_and_b32', v(u), 1, 'v0'); a('v_mul_u32_u24', v(u), 11664, v(u)); a('v_add_u32', v(u), 's15', v(u))
    a('v_mad_i32_i24', v(vc), v(t), 's14', v(u))
    a('s_mul_i32', 's8', 's8', TBLK); a('s_add_u32', 's8', 's8', WS_W)
    a('s_lshl_b32', 's41', 's10', 11); a('s_add_u32', 's41', 's41', 's8')
    a('v_add_u32', v(go), 's41', v(vo))
    a('s_mul_i32', 's41', 's10', 9*128); a('s_add_u32', 's41', 's41', 's8'); a('s_add_u32', 's41', 's41', 128*128)
    a('v_add_u32', v(go2), 's41', v(vo))
    ads = [R.alloc() for _ in range(6)]
    for it, C in enumerate((16, 56, 32, 72, 0, 40)):
        if C:
            a('v_add_u32', v(t), C, v(k0)); a('v_subrev_u32', v(u), 80, v(t)); a('v_min_u32', v(t), v(t), v(u))
            a('v_mad_i32_i24', v(ads[it]), v(t), 's14', v(vc))
        else: a('v_mad_i32_i24', v(ads[it]), v(k0), 's14', v(vc))
    O = R.alloc(24); Hh = R.alloc(24)
    epoch_ready(a)
    if WGATE[0]: await_cnt(a, C_X, WGATE[0], t, u)
    w_dma()
    a('s_mov_b32', 's9', 's7'); a('s_mov_b32', 's62', L_A2T); a('s_mov_b32', 's63', L_A2W); a('s_mov_b32', 's61', L_CNT + 4*C_A2)
    a.label('LA2c')
    A2_consts(a, K)
    wtag_regs(a, 56)
    a('s_cmp_lt_u32', 's3', 8); a('s_cbranch_scc1', 'LA2w')
    stamp(a, 2)
    a('s_setprio', 1)
    a('v_mov_b32', v(vo), 0xfffefffe)
    subbar(a, C_W1, 4, t, u, vm=True)
    stamp(a, 3)
    def comb(it):
        for k in range(4): a('v_lshl_or_b32', v(O+4*it+k), v(Hh+4*it+k), 16, v(O+4*it+k))
        for k in range(4): a('v_and_or_b32', v(O+4*it+k), v(O+4*it+k), v(vo), s(56+k))
    for it in range(6):
        for i in range(8): a('ds_read_u16', v((Hh if i & 1 else O) + 4*it + (i >> 1)), v(ads[it]), mods=f'offset:{1296*i}')
        if it: comb(it - 1)
        if it == 2:
            for k in range(2): a('global_store_dwordx4', v(go), v(O+4*k, 4), WS_, mods=f'offset:{1024*k} {SC}')
            a('v_add_u32', v(go), 8192, v(go))
        if it == 4:
            for k in range(2): a('global_store_dwordx4', v(go), v(O+8+4*k, 4), WS_, mods=f'offset:{1024*k} {SC}')
    comb(5)
    a('global_store_dwordx4', v(go2), v(O+16, 4), WS_, mods=SC)
    a('s_mov_b64', 'exec', 0xff)
    a('global_store_dwordx4', v(go2), v(O+20, 4), WS_, mods=f'offset:1024 {SC}')
    a('s_mov_b64', 'exec', -1)
    stamp(a, 4)
    arrive(a, C_W1D, t, u)
    stamp(a, 5)
    a.label('LA2w')
    await_cnt(a, C_A1D, 8, t, u)
    await_cnt(a, C_W1D, 4, t, u)
    a.label('LA2')
    pk_A2(a, K)

def pk_A2(a, K):
    t, u, go, lw, lr0, lr1, msk, X, Z, Wp, B0, B1 = K.t, K.u, K.go, K.lw, K.lr0, K.lr1, K.msk, K.X, K.Z, K.Wp, K.B0, K.B1
    for it in range(4):
        a('s_add_u32', s(44+2*it), 's38', 32*TBLK*it); a('s_addc_u32', s(45+2*it), 's39', 0)
    a('s_sub_u32', 's63', 's63', 's62')
    a('s_setprio', 3)
    stamp(a, 7)
    stamp(a, 11)
    ST, SW = B0, B1
    def tl():
        for it in range(4): a('global_load_dwordx4', v(ST+4*it, 4), v(go), s(44+2*it, 2), mods=SC)
    poll_tags(a, tl, [ST+4*i for i in range(4)], t, 1, XSLEEP[0])
    a('v_add_u32', v(Wp), WS_W, v(go)); a('v_add_u32', v(X+2), 's63', v(lw))
    def wl():
        for it in range(4): a('global_load_dwordx4', v(SW+4*it, 4), v(Wp), s(44+2*it, 2), mods=SC)
    stamp(a, 8)
    for it in range(4): a('ds_write_b128', v(lw), v(ST+4*it, 4), mods=f'offset:{4096*it}')
    a('v_mov_b32', v(X), 's61'); a('v_mov_b32', v(X+1), 1)
    a.wait(lgkm=0); lds_cnt_add(a, X, X+1)
    stamp(a, 6)
    wl()
    lp = newlabel('La2'); a.label(lp)
    a('ds_read_b32', v(X+1), v(X)); a('v_readfirstlane_b32', 's40', v(X+1)); a('s_cmp_lt_u32', 's40', 4); a('s_cbranch_scc1', lp)
    stamp(a, 9)
    for kap in range(2):
        for ri, ad in enumerate((lr0, lr1)): a('ds_read_b128', v(Z+8*kap+4*ri, 4), v(ad), mods=f'offset:{8192*kap}')
    MF = 'v_mfma_f32_32x32x16_bf16'
    def mm(kap, dataA, inv, d):
        dR, dI = d, d+16
        zr, zi = v(Z+8*kap, 4), v(Z+8*kap+4, 4)
        c, p, n = v(K.C+4*kap, 4), v(K.Sm+4*kap, 4), v(K.N+4*kap, 4)
        if inv: p, n = n, p
        for k, (dd, z, m) in enumerate(((dR, zr, c), (dI, zi, c), (dR, zi, p), (dI, zr, n))):
            cin = 0 if (kap == 0 and k < 2) else v(dd, 16)
            if dataA: a(MF, v(dd, 16), z, m, cin)
            else: a(MF, v(dd, 16), m, z, cin)
    mm(0, True, False, B0); mm(1, True, False, B0)
    poll_tags(a, wl, [SW+4*i for i in range(4)], t, 3, XSLEEP[0], tagsg=56, pre=True)
    for it in range(4): a('ds_write_b128', v(X+2), v(SW+4*it, 4), mods=f'offset:{4096*it}')
    stamp(a, 12)
    a('v_mov_b32', v(u), 1); a('v_mov_b32', v(t), 's61')
    a.wait(lgkm=0)
    a('s_mov_b64', 'exec', 1); a('ds_add_u32', v(t), v(u), mods='offset:4'); a('s_mov_b64', 'exec', -1)
    bufs = [B0, B1]
    for st in range(3):
        sb, db = bufs[st & 1], bufs[(st + 1) & 1]
        if st == 1:
            lp = newlabel('La2'); a.label(lp, keep=True) if False else None
            a.settle(keep_hist=True) if False else None
            hist = list(a.hist)
            a.raw(lp + ':')
            a('ds_read_b32', v(u), v(t), mods='offset:4'); a('v_readfirstlane_b32', 's40', v(u)); a('s_cmp_lt_u32', 's40', 4)
            a.raw(f'    s_cbranch_scc1 {lp}'); a.bytes += 4
            stamp(a, 14)
            a('v_add_u32', v(t), 's63', v(lr0)); a('v_add_u32', v(u), 's63', v(lr1))
            for kap in range(2):
                for ri, ad in enumerate((t, u)): a('ds_read_b128', v(Wp+8*kap+4*ri, 4), v(ad), mods=f'offset:{8192*kap}')
            for i in range(8): a('v_xor_b32', v(Wp + (i >> 2)*8 + 4 + (i & 3)), 's60', v(Wp + (i >> 2)*8 + 4 + (i & 3)))
        for kap in range(2):
            for jj in range(4):
                for e in range(2):
                    vv = 8*kap + 2*jj + e
                    re, im = sb+vv, sb+16+vv
                    if st == 1:
                        c, s_ = X+4, X+5
                        for dst, pl in ((c, 0), (s_, 1)):
                            src = Wp + 8*kap + 4*pl + jj
                            if e: a('v_and_b32', v(dst), v(msk), v(src))
                            else: a('v_lshlrev_b32', v(dst), 16, v(src))
                    else: c, s_ = K.TC+vv, K.TS+vv
                    a('v_mul_f32', v(X+e), v(re), v(c)); a('v_mul_f32', v(X+2+e), v(im), v(c))
                    if st == 0:
                        a('v_fmac_f32', v(X+e), v(im), v(s_)); a('v_fma_f32', v(X+2+e), '-' + v(re), v(s_), v(X+2+e))
                    else:
                        a('v_fma_f32', v(X+e), '-' + v(im), v(s_), v(X+e)); a('v_fmac_f32', v(X+2+e), v(re), v(s_))
                a('v_cvt_pk_bf16_f32', v(Z+8*kap+jj), v(X), v(X+1))
                a('v_cvt_pk_bf16_f32', v(Z+8*kap+4+jj), v(X+2), v(X+3))
            mm(kap, st == 1, st >= 1, db)
    sb = bufs[1]
    for kap in range(2):
        for ih, ad in enumerate((lr0, lr1)):
            for x in range(4):
                vv = 8*kap + 4*ih + x
                a('v_cvt_pk_bf16_f32', v(Z+vv), v(sb+vv), v(sb+16+vv)); tag2(a, Z+vv, x)
            a('ds_write_b128', v(ad), v(Z+8*kap+4*ih, 4), mods=f'offset:{8192*kap}')
    stamp(a, 10)
    a('s_add_u32', 's8', 's61', 8)
    subbar_s(a, 's8', 4, t, u)
    for it in range(4): a('ds_read_b128', v(Wp+4*it, 4), v(lw), mods=f'offset:{4096*it}')
    for it in range(4): a('global_store_dwordx4', v(go), v(Wp+4*it, 4), s(44+2*it, 2), mods=SC)
    a('s_setprio', 0)
    stamp(a, 13)
    a('v_mov_b32', v(u), 1); a('v_mov_b32', v(t), 's61')
    if LATE2[0]:
        ll = newlabel('La2'); a('s_and_b32', 's8', 's3', 14); a('s_cmp_lg_u32', 's8', 2); a('s_cbranch_scc1', ll)
        a('s_mov_b64', 'exec', 1); a('ds_add_u32', v(t), v(u), mods='offset:12'); a('s_mov_b64', 'exec', -1)
        a('s_and_b32', 's99', 's3', 1); a('s_lshl_b32', 's99', 's99', 2); a('s_or_b32', 's99', 's99', 18); a('s_mov_b32', 's62', 0)
        await_cnt(a, C_U+1, 4, t, u)
        a('s_branch', 'LB2p')
        a.label(ll)
    a.wait(vm=0)
    a('s_mov_b64', 'exec', 1); a('ds_add_u32', v(t), v(u), mods='offset:12'); a('s_mov_b64', 'exec', -1)
    a('s_cmp_lt_u32', 's3', 8); a('s_cbranch_scc1', 'LA3')
    a('s_branch', 'Lfin')

def epoch_store(a):
    pass

def build(stamps=False):
    STAMPS[0] = stamps
    for it in range(4):
        roles._lbl[0] = 0
        a = Asm()
        a.raw(f"; @launch grid=(256,1,1) block=(768,1,1) lds={LDS_TOTAL}")
        a.raw('.amdgcn_target "amdgcn-amd-amdhsa--gfx950"\n.text')
        entry(a)
        pk_A1(a)
        pk_auxE(a)
        pk_B1(a)
        pk_auxO(a)
        pk_B2(a)
        pk_A3(a); a('s_branch', 'Lfin')
        pk_B3(a)
        a.label('Lfin'); stamp_flush(a, 0); a('s_endpgm')
        a.raw('.p2align 10')
        a.raw(kernel_desc(KNAME, 168, 102))
        hi = max(0, (a.bytes + 1023)//1024*1024 - 12288)
        if hi == CODE_HI[0]: break
        CODE_HI[0] = hi
    print('est bytes', a.bytes, 'instrs', a.nins, 'lds', LDS_TOTAL)
    return a.text()

if __name__ == '__main__':
    open('pk8.s', 'w').write(build(False))
    open('pk8st.s', 'w').write(build(True))
    LATE2[0] = False; open('pk8a.s', 'w').write(build(False)); LATE2[0] = True
    XSLEEP[0] = 12; LSLEEP[0] = 12; open('pk8b.s', 'w').write(build(False))
    XSLEEP[0] = 16; LSLEEP[0] = 8; open('pk8c.s', 'w').write(build(False))
    XSLEEP[0] = 8; LSLEEP[0] = 8; A3ALL[0] = 6; EG[0] = 1; open('pk8d.s', 'w').write(build(False))
    WGATE[0] = 0; open('pk8e.s', 'w').write(build(False))
    for k in sys.argv[1:]:
        roles.AMP[0] = int(k); open(f'pk8amp{k}.s', 'w').write(build(True))
```

```python
import sys
from asmlib import *
import roles
from roles import (X_, WR_, WI_, Q_, K_, V_, SK_, H_, D_, OUT_, DBG_, WS_, WS_T, WS_W, WS_U, WS_F, TBLK, HSZ, newlabel, stamp, stamp_flush,
                   sincos, row_offsets, d1_addrs, srd, quad_voff, STAMPS)
WS_SHIFT = 0x80000
WS_W = 0x400000
WS_U = 0x800000
roles.WS_ST = 0xD00000 - WS_SHIFT
KNAME = "concat_heads__spectral_gfnet__ssm_conv_h3__prompt_kernel"
H_T, H_W, H_U, H_Z, H_T2 = WS_F, WS_F + 128*128, WS_F + 256*128, WS_F + 384*128, WS_F + 640*128
WS_EP = WS_W - 128
SPIN = 1 << 15
SC = 'sc1'
L_CNT = 0
L_H = 256
USZ = 40*144
L_U = L_H + 3*HSZ
L_RED = (L_U + 3*USZ + 127)//128*128
REDSZ = 8192
L_P1 = L_RED + 3*REDSZ - 8192 + 8192
L_P1 = (L_P1 + 255)//256*256
L_XR = L_P1; L_EI = L_XR + 8*3072; L_KI = L_P1; L_VI = L_KI + 17*1296
P1SZ = max(8*3072 + 8*2640 + 1024, 33*1296)
L_A2 = (L_P1 + P1SZ + 255)//256*256
A2SZ = 23552
LDS_TOTAL = L_A2 + A2SZ
assert LDS_TOTAL <= 163840, LDS_TOTAL
L_A2T = L_A2
L_A2W = (L_H + 2*HSZ + 255)//256*256
assert L_A2W + 16384 + 0 <= L_H + 3*HSZ + 0, (L_A2W, L_H + 3*HSZ)
L_TABH = L_RED + 2*REDSZ
L_TW = L_RED
L_T3H = L_U + 2*USZ
L_T3W = L_RED + 2*REDSZ
L_STG_E = L_A2 + 16384
roles.L_CNT, roles.L_EI, roles.L_KI, roles.L_VI, roles.L_XR = L_CNT, L_EI, L_KI, L_VI, L_XR
from roles import subbar, arrive, await_cnt, ei_addrs, b13_lane, tile_dma
C_A1, C_A1D, C_W1, C_W1D, C_A3, C_B1, C_B1D, C_H, C_Q, C_QL = 0, 1, 2, 3, 4, 5, 6, 7, 8, 9
C_A2 = 10
C_U = 20
C_X = 23
C_H0 = 18
C_RED = 24
import pk2
pk2.STAMPS = STAMPS
from pk2 import coop_tables, m2_mats, SEQ, A3K
XDELAY = [0]
WGATE = [8]
HGATE = [1]
GATE = [False]
ZGATE = [True]
LSLEEP = [8]
FSLEEP = [0, 0]
ONEPOLL = [True]

def lds_cnt_add(a, va, vb, rtn=False):
    a('s_mov_b64', 'exec', 1)
    if rtn: a('ds_add_rtn_u32', v(vb), v(va), v(vb))
    else: a('ds_add_u32', v(va), v(vb))
    a('s_mov_b64', 'exec', -1)

def subbar_s(a, saddr, n, va, vb, vm=False):
    a('v_mov_b32', v(va), saddr); a('v_mov_b32', v(vb), 1)
    a.wait(vm=0 if vm else None, lgkm=0)
    lds_cnt_add(a, va, vb, True)
    a('v_readfirstlane_b32', 's40', v(vb))
    done = newlabel('Lbd'); loop = newlabel('Lbl')
    a('s_cmp_ge_u32', 's40', n - 1); a('s_cbranch_scc1', done)
    a.label(loop)
    a('ds_read_b32', v(vb), v(va)); a('v_readfirstlane_b32', 's40', v(vb))
    a('s_cmp_lt_u32', 's40', n); a('s_cbranch_scc1', loop)
    a.label(done)

def publish(a, cid, n, flag_s, va, vb, ep='s52'):
    a('v_mov_b32', v(va), L_CNT + 4*cid); a('v_mov_b32', v(vb), 1)
    a.wait(vm=0, lgkm=0)
    a('s_mov_b64', 'exec', 1)
    a('ds_add_rtn_u32', v(vb), v(va), v(vb))
    a('v_readfirstlane_b32', 's40', v(vb))
    sk = newlabel('Lp')
    a('s_cmp_lg_u32', 's40', n - 1); a('s_cbranch_scc1', sk)
    if ep == 's52':
        a('s_mov_b64', 'exec', 0xff)
        a('v_lshl_add_u32', v(va), 'v0', 14, flag_s)
    else: a('v_mov_b32', v(va), flag_s)
    a('v_mov_b32', v(vb), ep)
    a('global_store_dword', v(va), v(vb), WS_, mods=SC)
    a.label(sk)
    a('s_mov_b64', 'exec', -1)

def poll_flags(a, vaddr, vt, ep='s52'):
    lp = newlabel('Lf'); dn = newlabel('Lf')
    a('s_mov_b32', 's41', SPIN)
    a.label(lp)
    a('global_load_dword', v(vt), v(vaddr), WS_, mods=SC)
    a('s_sub_u32', 's41', 's41', 1)
    a.wait(vm=0)
    a('v_cmp_ne_u32', 'vcc', ep, v(vt))
    a('s_cbranch_scc1', dn)
    sl = FSLEEP[0] if ep == 's52' else FSLEEP[1]
    if sl:
        a('s_cbranch_vccz', dn); a('s_sleep', sl); a('s_branch', lp)
    else: a('s_cbranch_vccnz', lp)
    a.label(dn)
S_M, S_C = 's100', 's101'
def tag_consts(a):
    a('s_mov_b32', S_M, 0xfffeffff); a('s_mov_b32', S_C, 0x10000)
def tag1(a, r, j):
    if j == 0: a('v_and_b32', v(r), 0xfffefffe, v(r))
    elif j == 1: a('v_and_or_b32', v(r), v(r), S_M, 1)
    elif j == 2: a('v_and_or_b32', v(r), v(r), -2, S_C)
    else: a('v_or_b32', v(r), 0x10001, v(r))
def tag2(a, r, j):
    if j & 1: a('v_and_b32', v(r), -2, v(r))
    else: a('v_or_b32', v(r), 1, v(r))
def poll_tags(a, loads, regs, vt, kind, sleep, tagsg=None, pre=False):
    lp = newlabel('Lg'); dn = newlabel('Lg')
    a('s_mov_b32', 's41', SPIN)
    if pre:
        ck = newlabel('Lg'); a('s_branch', ck); a.dead = False
    a.label(lp)
    loads()
    if pre: a.label(ck)
    a('s_sub_u32', 's41', 's41', 1)
    first = True
    for b in regs:
        if kind == 2:
            if first: a('v_bitop3_b32', v(vt), v(b), v(b+1), v(b+1), mods='bitop3:0xcf')
            else: a('v_bitop3_b32', v(vt), v(vt), v(b), v(b+1), mods='bitop3:0xfb')
            a('v_bitop3_b32', v(vt), v(vt), v(b+2), v(b+3), mods='bitop3:0xfb')
        elif kind == 1:
            if first: a('v_bitop3_b32', v(vt), v(b+3), v(b), v(b), mods='bitop3:0xcf')
            else: a('v_bitop3_b32', v(vt), v(vt), v(b+3), v(b), mods='bitop3:0xfb')
            a('v_bitop3_b32', v(vt), v(vt), v(b+1), 1, mods='bitop3:0xf6')
            a('v_bitop3_b32', v(vt), v(vt), v(b+2), S_C, mods='bitop3:0xf6')
        else:
            for j in range(4):
                if first and j == 0: a('v_xor_b32', v(vt), s(tagsg), v(b))
                else: a('v_bitop3_b32', v(vt), v(vt), v(b+j), s(tagsg+j), mods='bitop3:0xf6')
        first = False
    a('v_and_b32', v(vt), 1 if kind == 2 else 0x10001, v(vt))
    a('v_cmp_ne_u32', 'vcc', 0, v(vt))
    a('s_cbranch_scc1', dn)
    a('s_cbranch_vccz', dn); a('s_sleep', sleep); a('s_branch', lp)
    a.label(dn)
def wtag_regs(a, base):
    for j in range(4):
        a('s_add_u32', 's8', 's52', j); a('s_and_b32', s(base+j), 's8', 1); a('s_bitcmp1_b32', 's8', 1)
        a('s_cselect_b32', 's8', S_C, 0); a('s_or_b32', s(base+j), s(base+j), 's8')
def hint(a, caddr, n, flag_s, va, vb, ep):
    a('v_mov_b32', v(va), caddr); a('v_mov_b32', v(vb), 1)
    a('s_mov_b64', 'exec', 1)
    a('ds_add_rtn_u32', v(vb), v(va), v(vb))
    a('v_readfirstlane_b32', 's40', v(vb))
    sk = newlabel('Lp')
    a('s_add_u32', 's40', 's40', 1); a('s_cmp_lg_u32', 's40', n); a('s_cbranch_scc1', sk)
    a('v_mov_b32', v(va), flag_s); a('v_mov_b32', v(vb), ep)
    a('global_store_dword', v(va), v(vb), WS_, mods=SC)
    a.label(sk)
    a('s_mov_b64', 'exec', -1)
def poll_hints(a, vaddr, vt, vz, ep, nlanes):
    lp = newlabel('Lf'); dn = newlabel('Lf')
    a('s_mov_b32', 's41', SPIN); a('v_mov_b32', v(vz), 0)
    if nlanes < 32: a('s_mov_b64', 'exec', (1 << nlanes) - 1)
    else: a('s_mov_b32', 'exec_hi', 0)
    a.label(lp)
    a('global_atomic_add', v(vt), v(vaddr), v(vz), WS_, mods='sc0 sc1')
    a('s_sub_u32', 's41', 's41', 1)
    a.wait(vm=0)
    a('v_cmp_ne_u32', 'vcc', ep, v(vt))
    a('s_cbranch_scc1', dn)
    a('s_cbranch_vccnz', lp)
    a.label(dn)
    a('s_mov_b64', 'exec', -1)
def wait_lds(a, cid, n, t, u):
    a('v_mov_b32', v(t), L_CNT + 4*cid)
    lq = newlabel('Lw'); a.label(lq)
    a('s_sleep', 1); a('ds_read_b32', v(u), v(t)); a('v_readfirstlane_b32', 's40', v(u)); a('s_cmp_lt_u32', 's40', n); a('s_cbranch_scc1', lq)
C_HT, C_HU, C_HZ, C_GU, C_GZ, C_GT2 = 32, 33, 34, 35, 36, 37
NS = [8]
UH = [False]
TWOPASS = [True]
UMARG = [0]
ZDRAIN = [True]
WARM = [True]
HW = [False]
PF = [True]
LATE2 = [True]
A3ALL = [0]
EG = [C_W1D]
def drained(a, cid, va, vb):
    arrive(a, cid, va, vb, vm=True)
TAGX = [False, False]
XSLEEP = [8]
def poll_tag0(a, loads, regs, vt, sleep=0):
    lp = newlabel('Lg'); dn = newlabel('Lg')
    a('s_mov_b32', 's41', SPIN)
    a.label(lp)
    loads()
    a('s_sub_u32', 's41', 's41', 1)
    a('v_or_b32', v(vt), v(regs[0]), v(regs[1]))
    for k in range(2, len(regs), 2): a('v_or3_b32', v(vt), v(vt), v(regs[k]), v(regs[k+1]))
    a('v_and_b32', v(vt), 1, v(vt))
    a('v_cmp_ne_u32', 'vcc', 0, v(vt))
    a('s_cbranch_scc1', dn)
    if sleep:
        a('s_cbranch_vccz', dn); a('s_sleep', sleep); a('s_branch', lp)
    else: a('s_cbranch_vccnz', lp)
    a.label(dn)

def epoch_ready(a):
    a.wait(lgkm=0); a('s_add_u32', 's52', 's52', 1)
def warm(a):
    a.wait(lgkm=0)
    a('v_and_b32', 'v1', 7, 'v0'); a('v_lshlrev_b32', 'v1', 21, 'v1'); a('v_and_b32', 'v2', 1, 'v0'); a('v_mul_u32_u24', 'v2', 0x1f0000, 'v2'); a('v_add_u32', 'v1', 'v1', 'v2')
    a('s_mov_b64', 'exec', 0x3f); a('global_load_dword', 'v80', 'v1', WS_)
    a('v_lshlrev_b32', 'v1', 21, 'v0')
    a('s_mov_b64', 'exec', 3)
    a('global_load_dword', 'v81', 'v1', Q_); a('global_load_dword', 'v82', 'v1', H_)
    a('s_mov_b64', 'exec', 1)
    a('global_load_dword', 'v83', 'v1', WR_); a('global_load_dword', 'v84', 'v1', WI_); a('global_load_dword', 'v85', 'v1', D_)
    a('s_mov_b64', 'exec', -1)
    a('s_sub_u32', 's8', 128, 's5'); a('s_lshl_b32', 's9', 's6', 7); a('s_cmp_lg_u32', 's5', 0); a('s_cselect_b32', 's9', 's9', 's7')
    a('s_mul_i32', 's12', 's4', 160); a('s_add_u32', 's12', 's12', 1280 + 64); a('s_cmp_lg_u32', 's5', 0); a('s_cselect_b32', 's12', 's12', 0)
    a('v_mul_lo_u32', 'v1', 'v0', 's8'); a('v_add_u32', 'v1', 's9', 'v1'); a('v_mul_u32_u24', 'v1', 2560, 'v1'); a('v_add_u32', 'v1', 's12', 'v1')
    a('s_cselect_b32', 'exec_lo', 3, 0xffff); a('s_mov_b32', 'exec_hi', 0)
    a('global_load_dword', 'v86', 'v1', OUT_)
    a('s_mov_b64', 'exec', -1)
def bar0(a):
    a.wait(lgkm=0)
    a('s_add_u32', 's38', 's38', WS_SHIFT); a('s_addc_u32', 's39', 's39', 0)
    a('s_add_u32', 's54', 's38', WS_EP); a('s_addc_u32', 's55', 's39', 0)
    a('s_load_dword', 's52', 's[54:55]', 0)
    stamp(a, 1)
    a('s_barrier')

CODE_HI = [6144]
def entry(a):
    a.raw(f".globl {KNAME}\n.p2align 12\n.type {KNAME},@function\n{KNAME}:")
    a('s_cmp_ge_u32', 's2', 256); a('s_cbranch_scc1', 'Lexit')
    if STAMPS[0]:
        for i in range(1, 16): a('s_mov_b32', s(64+2*i), 0)
    stamp(a, 0)
    a('s_load_dwordx16', 's[16:31]', 's[0:1]', 0)
    a('s_load_dwordx8', 's[32:39]', 's[0:1]', 64)
    a('s_getpc_b64', 's[42:43]'); a('s_and_b32', 's42', 's42', 0xfffff000)
    a('s_bitcmp1_b32', 's2', 3); a('s_cselect_b32', 's8', CODE_HI[0], 0); a('s_add_u32', 's42', 's42', 's8'); a('s_addc_u32', 's43', 's43', 0)
    a('v_lshlrev_b32', 'v2', 4, 'v0'); a('v_mov_b32', 'v3', 's43')
    a('v_add_co_u32', 'v2', 'vcc', 's42', 'v2'); a('v_addc_co_u32', 'v3', 'vcc', 0, 'v3', 'vcc')
    a('global_load_dwordx4', 'v[164:167]', 'v[2:3]', 'off')
    a('v_lshrrev_b32', 'v1', 6, 'v0'); a('v_and_b32', 'v0', 63, 'v0')
    a('v_readfirstlane_b32', 's3', 'v1')
    a('s_and_b32', 's4', 's2', 7); a('s_bfe_u32', 's5', 's2', (1 << 16) | 3); a('s_lshr_b32', 's6', 's2', 4)
    a('s_lshl3_add_u32', 's7', 's6', 's4')
    tag_consts(a)
    a('s_mul_i32', 's53', 's4', 80); a('s_mul_i32', 's8', 's6', 5); a('s_add_u32', 's53', 's53', 's8'); a('s_lshl1_add_u32', 's53', 's5', 's53')
    a('v_lshlrev_b32', 'v1', 2, 'v0'); a('v_mov_b32', 'v2', 0)
    a('ds_write_b32', 'v1', 'v2', mods=f'offset:{L_CNT}')
    if WARM[0]:
        lw_ = newlabel('Le'); a('s_cmp_lg_u32', 's3', 11); a('s_cbranch_scc1', lw_)
        warm(a)
        a.label(lw_)
    a('s_cmp_lg_u32', 's5', 0); a('s_cbranch_scc1', 'LentO')
    a('s_cmp_ge_u32', 's3', 8); a('s_cbranch_scc1', 'LentP' if PF[0] else 'LauxE')
    R = RegAlloc(1, 160)
    a('s_lshl_b32', 's9', 's3', 7); a('s_add_u32', 's9', 's9', 's7'); a('s_mul_i32', 's10', 's9', 1280)
    vo = row_offsets(a, R, 's10', 1024*1280)
    a('s_mul_i32', 's11', 's3', 3072); a('s_add_u32', 's11', 's11', L_XR); a('s_mov_b32', 'm0', 's11')
    if XDELAY[0]: a('s_sleep', XDELAY[0])
    for t in range(3): a('global_load_lds_dwordx4', v(vo[t]), X_, mods=f'offset:{1024*t}')
    a('s_branch', 'LA1')
    if PF[0]:
        a.label('LentP')
        a('s_mul_i32', 's10', 's6', 128*1280); a('s_mul_i32', 's8', 's4', 160); a('s_add_u32', 's10', 's10', 's8')
        a('s_bitcmp1_b32', 's3', 0); a('s_cselect_b32', 's8', 156, 0); a('s_add_u32', 's10', 's10', 's8'); a('s_add_u32', 's10', 's10', 64*1280)
        a('v_mul_u32_u24', 'v1', 1280, 'v0'); a('v_add_u32', 'v1', 's10', 'v1')
        a('s_bitcmp1_b32', 's3', 1); a('s_cselect_b64', 's[12:13]', V_, K_)
        a('global_load_dword', 'v87', 'v1', 's[12:13]')
        a('s_branch', 'LauxE')
    a.label('LentO')
    a('s_cmp_ge_u32', 's3', 9); a('s_cbranch_scc1', 'Lbar0')
    R = RegAlloc(1, 160)
    vo = quad_voff(a, R); t = R.alloc()
    a('s_mul_i32', 's10', 's6', 128*1280); a('s_mul_i32', 's8', 's4', 160); a('s_add_u32', 's10', 's10', 's8')
    a('s_sub_u32', 's8', 's10', 4*1280); a('v_add_u32', v(t), 's8', v(vo))
    NB = 2048*1280
    srd(a, 44, 's24', 's25', NB); srd(a, 48, 's26', 's27', NB)
    a('s_mov_b32', 'exec_hi', 0xff)
    a('s_cmp_eq_u32', 's3', 8); a('s_cbranch_scc1', 'LentH')
    if PF[0]:
        a('s_mul_i32', 's11', 's3', 8*1280); a('s_add_u32', 's11', 's11', 's10')
        a('s_mul_i32', 's12', 's3', 1296); a('s_add_u32', 's12', 's12', L_KI + 1296)
    else:
        a('s_mul_i32', 's11', 's3', 16*1280); a('s_add_u32', 's11', 's11', 's10')
        a('s_mul_i32', 's12', 's3', 2*1296); a('s_add_u32', 's12', 's12', L_KI + 1296)
    for k in range(4):
        a('s_mov_b32', 'm0', 's12')
        a('buffer_load_dwordx4', v(vo), 's[44:47]', 's11', mods='offen lds')
        a('s_add_u32', 'm0', 's12', L_VI - L_KI - 1296)
        a('buffer_load_dwordx4', v(vo), 's[48:51]', 's11', mods='offen lds')
        if k < 3:
            if PF[0] and k == 1:
                a('s_add_u32', 's11', 's11', 60*1280); a('s_addk_i32', 's12', 8*1296 - 640)
            else:
                a('s_addk_i32', 's11', 4*1280); a('s_addk_i32', 's12', 640 if k != 1 else 656)
    a('s_branch', 'LentX')
    a.label('LentH')
    a('s_mov_b32', 'm0', L_KI + 640)
    a('buffer_load_dwordx4', v(t), 's[44:47]', 0, mods='offen lds')
    a.label('LentX')
    a('s_mov_b64', 'exec', -1)
    a.label('Lbar0')
    bar0(a)
    a('s_cmp_ge_u32', 's3', 10); a('s_cbranch_scc1', 'LauxO')
    a('s_branch', 'LB1')
    a.label('Lexit')
    a('s_endpgm')

def h_copy(a, R, slc, sc):
    mk = R.mark()
    vo = R.alloc(); Hd = R.alloc(4); t = R.alloc()
    a('s_lshl_b32', 's8', sc, 1); a('s_add_u32', 's8', 's8', 2); a('v_lshl_add_u32', v(vo), 'v0', 4, 's8')
    a('s_and_b32', 's12', sc, 1); a('s_mul_i32', 's12', 's12', 529*16); a('s_lshr_b32', 's13', sc, 1); a('s_mul_i32', 's13', 's13', 264*16)
    a('s_add_u32', 's12', 's12', 's13'); a('s_mul_i32', 's13', slc, HSZ); a('s_add_u32', 's12', 's12', 's13'); a('s_add_u32', 's12', 's12', L_H)
    a('s_add_u32', 's8', 's53', slc); a('s_lshl_b32', 's8', 's8', 12)
    a('s_load_dwordx2', 's[56:57]', H_, 's8')
    a('s_add_u32', 's44', 's30', 's8'); a('s_addc_u32', 's45', 's31', 0); a('s_and_b32', 's45', 's45', 0xffff)
    a('s_mov_b32', 's46', 4096); a('s_mov_b32', 's47', 0x20000)
    a('s_add_u32', 'm0', 's12', 128)
    for b in range(4): a('buffer_load_dwordx4', v(vo), 's[44:47]', 0, mods=f'offen offset:{1024*b} lds')
    for k in range(4): a('v_mov_b32', v(Hd+k), 0)
    sk = newlabel('Lh')
    a('s_cmp_lg_u32', sc, 0); a('s_cbranch_scc1', sk)
    a('s_mul_i32', 's8', slc, USZ); a('s_add_u32', 's8', 's8', L_U + 32*144)
    a('v_lshl_add_u32', v(t), 'v0', 4, 's8')
    a('ds_write_b128', v(t), v(Hd, 4))
    a('s_mov_b64', 'exec', 0xff); a('ds_write_b128', v(t), v(Hd, 4), mods='offset:1024'); a('s_mov_b64', 'exec', -1)
    a.label(sk)
    a('s_lshl_b32', 's8', sc, 4); a('s_sub_u32', 's8', 48, 's8')
    a('v_lshl_add_u32', v(t), 'v0', 4, 's12')
    a.wait(lgkm=0)
    a('s_lshl_b64', 's[56:57]', 's[56:57]', 's8')
    a('v_writelane_b32', v(Hd+2), 's56', 7); a('v_writelane_b32', v(Hd+3), 's57', 7)
    a('s_mov_b64', 'exec', 0xff)
    a('ds_write_b128', v(t), v(Hd, 4))
    a('s_mov_b64', 'exec', -1)
    R.release(mk)

def h_srd(a, slc):
    a('s_add_u32', 's8', 's53', slc); a('s_lshl_b32', 's8', 's8', 12)
    a('s_add_u32', 's44', 's30', 's8'); a('s_addc_u32', 's45', 's31', 0); a('s_and_b32', 's45', 's45', 0xffff)
    a('s_mov_b32', 's46', 4096); a('s_mov_b32', 's47', 0x20000)
def h_load(a, D, vo, vo2, imm):
    a('buffer_load_dwordx4', v(D, 4), v(vo), 's[44:47]', 0, mods=f'offen offset:{imm}')
    a('buffer_load_dwordx2', v(D+4, 2), v(vo2), 's[44:47]', 0, mods=f'offen offset:{imm}')
def h_expand(a, D, T, wa, imm):
    CB = [0, 529*16, 264*16, 793*16]
    for i in range(4): a('v_alignbit_b32', v(T+i), v(D+i+1), v(D+i), 16)
    a('ds_write_b128', v(wa), v(T, 4), mods=f'offset:{imm + CB[0]}')
    for i in range(4): a('v_alignbit_b32', v(T+4+i), v(D+i+2), v(D+i+1), 16)
    a('ds_write_b128', v(wa), v(T+4, 4), mods=f'offset:{imm + CB[2]}')
    a('ds_write_b128', v(wa), v(D+2, 4), mods=f'offset:{imm + CB[3]}')
    for i in range(4): a('v_mov_b32', v(T+8+i), v(D+i+1))
    a('ds_write_b128', v(wa), v(T+8, 4), mods=f'offset:{imm + CB[1]}')
def u_pad(a, slc, Zr, t):
    a('s_mul_i32', 's8', slc, USZ); a('s_add_u32', 's8', 's8', L_U + 32*144)
    a('v_lshl_add_u32', v(t), 'v0', 4, 's8')
    a('ds_write_b128', v(t), v(Zr, 4))
    a('s_mov_b64', 'exec', 0xff); a('ds_write_b128', v(t), v(Zr, 4), mods='offset:1024'); a('s_mov_b64', 'exec', -1)

def pk_A1(a):
    a.label('LA1')
    a('s_setprio', 2)
    R = RegAlloc(1, 150)
    coop_tables(a, R, L_TABH, L_TW, a3=False)
    bar0(a)
    HE = 152
    R = RegAlloc(1, 152)
    rd = R.alloc(); va = R.alloc(); vb = R.alloc(); t = R.alloc(); q = R.alloc()
    Hs = R.alloc(16); Gs = R.alloc(16); TW = R.alloc(24)
    a('v_lshlrev_b32', v(rd), 4, 'v0'); a('v_add_u32', v(t), L_TABH, v(rd)); a('v_add_u32', v(rd), L_TW, v(rd))
    Mre, Mim = m2_mats(a, R, False, None)
    epoch_ready(a)
    for k in (3, 0, 1, 2):
        a('ds_read_b128', v(Hs+4*k, 4), v(t), mods=f'offset:{1024*k}'); a('ds_read_b128', v(Gs+4*k, 4), v(t), mods=f'offset:{4096+1024*k}')
    for k in (2, 3, 4, 5, 0, 1): a('ds_read_b128', v(TW+4*k, 4), v(rd), mods=f'offset:{1024*k}')
    a('v_lshrrev_b32', v(va), 2, 'v0'); a('v_lshrrev_b32', v(q), 4, 'v0')
    a('v_bfe_u32', v(vb), 'v0', 1, 1); a('v_mul_u32_u24', v(vb), 1408, v(vb))
    a('v_and_b32', v(t), 1, 'v0'); a('v_lshl_add_u32', v(vb), v(t), 3, v(vb)); a('v_add_u32', v(vb), 's11', v(vb))
    tra = d1_addrs(a, R, va, vb)
    Dr = R.alloc(10)
    a('s_lshr_b32', 's14', 's3', 2); a('s_and_b32', 's15', 's3', 3); h_srd(a, 's14')
    a('s_lshl_b32', 's8', 's15', 10); a('v_lshl_add_u32', v(Dr), 'v0', 4, 's8'); a('v_lshlrev_b32', v(Dr+1), 4, 'v0')
    a('v_subrev_u32', v(Dr+2), 128, v(Dr+1)); a('v_subrev_u32', v(Dr+3), 112, v(Dr+1))
    a('buffer_load_dwordx4', v(HE, 4), v(Dr), 's[44:47]', 0, mods='offen'); a('buffer_load_dwordx2', v(HE+4, 2), v(Dr), 's[44:47]', 0, mods='offen offset:16')
    h_load(a, HE+6, Dr+2, Dr+3, 0)
    a('v_mov_b32', v(va), L_CNT + 4*C_X); a('v_mov_b32', v(vb), 1)
    stamp(a, 2)
    a.wait(vm=4)
    stamp(a, 3)
    for e in (0, 1, 2, 3, 4): a('ds_read_b64_tr_b16', v(Dr + 2*((e + 4) % 5), 2), v(tra[e]))
    lds_cnt_add(a, va, vb)
    ea0, ea1 = ei_addrs(a, R, 2624, dup=False)
    P0 = R.alloc(8); A1 = R.alloc(24); PK = R.alloc(12); X = R.alloc(8)
    a('v_mfma_f32_16x16x16_bf16', v(P0, 4), v(Dr+8, 2), v(Hs+12, 2), 0)
    a('v_mfma_f32_16x16x16_bf16', v(P0+4, 4), v(Dr+8, 2), v(Gs+12, 2), 0)
    tr2 = R.alloc(); go = R.alloc()
    a('v_bfe_u32', v(tr2), 'v0', 2, 2); a('v_mul_u32_u24', v(tr2), 2624, v(tr2))
    a('v_and_b32', v(t), 3, 'v0'); a('v_lshl_add_u32', v(tr2), v(t), 3, v(tr2))
    a('v_lshl_add_u32', v(tr2), v(q), 5, v(tr2))
    PAIR = {1: (0, 4), 2: (1, 3), 0: (6, 6)}
    for k5 in (1, 2, 0):
        for ri, M in enumerate((Hs, Gs)):
            a('v_mfma_f32_16x16x32_bf16', v(A1+8*k5+4*ri, 4), v(Dr, 4), v(M + 2*PAIR[k5][0], 4), v(P0+4*ri, 4))
        for ri, M in enumerate((Hs, Gs)):
            a('v_mfma_f32_16x16x32_bf16', v(A1+8*k5+4*ri, 4), v(Dr+4, 4), v(M + 2*PAIR[k5][1], 4), v(A1+8*k5+4*ri, 4))
        if k5 == 1:
            a('s_lshl_b32', 's8', 's3', 7); a('s_add_u32', 's8', 's8', L_EI); a('v_add_u32', v(tr2), 's8', v(tr2))
            a('s_mul_i32', 's8', 's7', TBLK); a('s_lshl_b32', 's12', 's3', 10); a('s_add_u32', 's8', 's8', 's12')
            a('v_lshl_add_u32', v(go), 'v0', 4, 's8')
    A2 = Hs
    for k5 in (1, 2, 0):
        for r in range(4):
            re, im, c, s_ = A1+8*k5+r, A1+8*k5+4+r, TW+8*k5+r, TW+8*k5+4+r
            a('v_mul_f32', v(X+r), v(re), v(c)); a('v_mul_f32', v(X+4+r), v(im), v(c))
            a('v_fmac_f32', v(X+r), v(im), v(s_)); a('v_fma_f32', v(X+4+r), '-' + v(re), v(s_), v(X+4+r))
            a('v_cvt_pk_bf16_f32', v(PK+4*k5+r), v(X+r), v(X+4+r))
        a('v_mfma_f32_16x16x32_bf16', v(A2+8*k5, 4), v(Mre, 4), v(PK+4*k5, 4), 0)
        a('v_mfma_f32_16x16x32_bf16', v(A2+8*k5+4, 4), v(Mim, 4), v(PK+4*k5, 4), 0)
    for k5 in (1, 2, 0):
        for r in range(4): a('v_cvt_pk_bf16_f32', v(PK+4*k5+r), v(A2+8*k5+r), v(A2+8*k5+4+r))
        if k5: a('ds_write_b128', v(ea0), v(PK+4*k5, 4), mods=f'offset:{1024*(k5-1)}')
        else: a('ds_write_b128', v(ea1), v(PK, 4))
    stamp(a, 4)
    subbar(a, C_A1, 8, X, X+1)
    O = A1
    for it in range(3):
        if it == 2:
            skip = newlabel('La1s'); a('s_cmp_gt_u32', 's3', 4); a('s_cbranch_scc1', skip)
        a('ds_read_b64_tr_b16', v(O+4*it, 2), v(tr2), mods=f'offset:{1024*it}')
        a('ds_read_b64_tr_b16', v(O+4*it+2, 2), v(tr2), mods=f'offset:{1024*it + 4*2624}')
        if it == 1:
            for j in range(4): tag1(a, O+j, j)
            a('global_store_dwordx4', v(go), v(O, 4), WS_, mods=SC)
            a('v_add_u32', v(go), 8192, v(go))
            for j in range(4): tag1(a, O+4+j, j)
            a('global_store_dwordx4', v(go), v(O+4, 4), WS_, mods=SC)
            a('v_add_u32', v(go), 8192, v(go))
    for j in range(4): tag1(a, O+8+j, j)
    a('s_cmp_lt_u32', 's3', 4); a('s_cselect_b32', 'exec_hi', -1, 0)
    a('global_store_dwordx4', v(go), v(O+8, 4), WS_, mods=SC)
    a('s_mov_b64', 'exec', -1)
    a.label(skip)
    stamp(a, 5)
    a('s_setprio', 0)
    R = RegAlloc(1, 60)
    coop_tables(a, R, L_T3H, L_T3W, a3=True)
    drained(a, C_A1D, 1, 2)
    stamp(a, 6)
    R = RegAlloc(1, 60)
    T = R.alloc(12); wa = R.alloc(); tt = R.alloc()
    a('s_lshr_b32', 's14', 's3', 2); a('s_and_b32', 's15', 's3', 3)
    a('s_mul_i32', 's8', 's14', HSZ); a('s_add_u32', 's8', 's8', L_H); a('v_lshl_add_u32', v(tt), 'v0', 4, 's8')
    a('s_lshl_b32', 's8', 's15', 10); a('v_add_u32', v(wa), 's8', v(tt))
    h_expand(a, HE, T, wa, 128)
    skh = newlabel('Lh'); a('s_cmp_lg_u32', 's15', 0); a('s_cbranch_scc1', skh)
    a('s_mov_b64', 'exec', 0xff)
    h_expand(a, HE+6, T, tt, 0)
    a('s_mov_b64', 'exec', -1)
    for k in range(4): a('v_mov_b32', v(T+k), 0)
    u_pad(a, 's14', T, wa)
    a.label(skh)
    a('s_cmp_ge_u32', 's7', 36); a('s_cbranch_scc1', 'LB2')
    a('s_cmp_ge_u32', 's3', 4); a('s_cbranch_scc1', 'LB2')
    arrive(a, C_H0, 1, 2)
    a('s_add_u32', 's9', 's7', 128); a('s_mov_b32', 's10', 's3')
    a('s_mov_b32', 's62', L_P1); a('s_mov_b32', 's63', L_P1 + 16384); a('s_mov_b32', 's61', L_CNT + 4*(C_A2+4))
    a('s_branch', 'LA2c')

def gen_A3_regs(a):
    K = A3K(); PIT = 2640
    R = RegAlloc(100, 164); T = RegAlloc(1, 100)
    t = T.alloc(); n = T.alloc(); q = T.alloc(); vb = T.alloc()
    K.go = R.alloc(); K.go2 = R.alloc(); K.go3 = R.alloc(); K.lw = R.alloc()
    a('s_mul_i32', 's8', 's7', TBLK); a('s_lshl_b32', 's12', 's3', 10); a('s_add_u32', 's12', 's8', 's12')
    a('v_lshl_add_u32', v(K.go), 'v0', 4, 's12'); a('v_add_u32', v(K.go2), 8192, v(K.go))
    a('s_add_u32', 's8', 's8', TBLK - 16)
    a('v_add_u32', v(K.go3), 16384, v(K.go)); a('v_min_u32', v(K.go3), 's8', v(K.go3))
    a('v_and_b32', v(t), 1, 'v0'); a('v_mul_u32_u24', v(K.lw), 4*PIT, v(t))
    a('v_lshrrev_b32', v(t), 1, 'v0'); a('v_lshl_add_u32', v(K.lw), v(t), 2, v(K.lw))
    a('s_lshl_b32', 's8', 's3', 7); a('s_add_u32', 's8', 's8', L_EI); a('v_add_u32', v(K.lw), 's8', v(K.lw))
    K.ea0, K.ea1 = ei_addrs(a, R, PIT, dup=True)
    a('s_lshl_b32', 's9', 's3', 7); a('s_add_u32', 's9', 's9', 's7'); a('s_mul_i32', 's10', 's9', 2560)
    a('s_mul_i32', 's11', 's3', 3072); a('s_add_u32', 's11', 's11', L_XR)
    K.vo = row_offsets(a, R, 's10', 1024*2560)
    K.Mre, K.Mim = m2_mats(a, R, True, 2.0/(2048*640))
    K.rd = R.alloc()
    a('v_and_b32', v(n), 15, 'v0'); a('v_lshrrev_b32', v(q), 4, 'v0')
    a('v_lshrrev_b32', v(vb), 5, 'v0'); a('v_mul_u32_u24', v(vb), 1408, v(vb))
    a('v_and_b32', v(t), 1, v(q)); a('v_lshl_add_u32', v(vb), v(t), 3, v(vb)); a('v_add_u32', v(vb), 's11', v(vb))
    K.wa = d1_addrs(a, R, n, vb)
    a('v_lshl_add_u32', v(K.rd), 'v0', 4, 's11')
    K.TW = R.alloc(24)
    return K

def pk_A3(a):
    a.label('LA3')
    K = gen_A3_regs(a)
    PIT = 2640
    R = RegAlloc(1, 100)
    t = R.alloc(); u = R.alloc(); IN = R.alloc(12); X = R.alloc(8); F = R.alloc(20)
    await_cnt(a, C_A1D, 8, t, u)
    sk2 = newlabel('La3w'); a('s_cmp_ge_u32', 's7', 36); a('s_cbranch_scc1', sk2)
    await_cnt(a, C_A2+4+3, 4, t, u)
    a.label(sk2)
    a('v_lshlrev_b32', v(t), 4, 'v0'); a('v_add_u32', v(u), L_T3W, v(t)); a('v_add_u32', v(t), L_T3H, v(t))
    for k in range(5): a('ds_read_b128', v(F+4*k, 4), v(t), mods=f'offset:{1024*k}')
    for k in range(6): a('ds_read_b128', v(K.TW+4*k, 4), v(u), mods=f'offset:{1024*k}')
    wait_lds(a, C_A2+3, 4, t, u)
    if A3ALL[0]:
        arrive(a, C_GT2, t, u); wait_lds(a, C_GT2, A3ALL[0], t, u)
    stamp(a, 11)
    a.wait(vm=0)
    a('s_setprio', 2)
    def loads():
        a('global_load_dwordx4', v(IN, 4), v(K.go), WS_, mods=SC)
        a('global_load_dwordx4', v(IN+4, 4), v(K.go2), WS_, mods=SC)
        a('global_load_dwordx4', v(IN+8, 4), v(K.go3), WS_, mods=SC)
    poll_tags(a, loads, [IN, IN+4, IN+8], t, 2, LSLEEP[0])
    stamp(a, 12)
    for it in range(3):
        if it == 2:
            skip = newlabel('La3s'); a('s_cmp_gt_u32', 's3', 4); a('s_cbranch_scc1', skip)
            a('s_cmp_lt_u32', 's3', 4); a('s_cselect_b32', 'exec_hi', -1, 0)
        for x in range(4): a('ds_write_b32', v(K.lw), v(IN+4*it+x), mods=f'offset:{1024*it + PIT*x}')
    a('s_mov_b64', 'exec', -1)
    a.label(skip)
    subbar(a, C_A3, 8, t, u)
    stamp(a, 13)
    Z = IN; A1 = R.alloc(24); PK = Z; Y = R.alloc(20); P0 = R.alloc(4)
    a('ds_read_b128', v(Z, 4), v(K.ea1))
    a('ds_read_b128', v(Z+4, 4), v(K.ea0)); a('ds_read_b128', v(Z+8, 4), v(K.ea0), mods='offset:1024')
    MF = 'v_mfma_f32_16x16x32_bf16'
    for k5 in range(3):
        a(MF, v(A1+8*k5, 4), v(Z+4*k5, 4), v(K.Mre, 4), 0); a(MF, v(A1+8*k5+4, 4), v(Z+4*k5, 4), v(K.Mim, 4), 0)
    for k5 in range(3):
        for r in range(4):
            re, im, c, s_ = A1+8*k5+r, A1+8*k5+4+r, K.TW+8*k5+r, K.TW+8*k5+4+r
            a('v_mul_f32', v(X+r), v(re), v(c)); a('v_mul_f32', v(X+4+r), v(im), v(c))
            a('v_fma_f32', v(X+r), '-' + v(im), v(s_), v(X+r)); a('v_fmac_f32', v(X+4+r), v(re), v(s_))
            if r & 1:
                a('v_cvt_pk_bf16_f32', v(PK+4*k5+(r >> 1)), v(X+r-1), v(X+r))
                a('v_cvt_pk_bf16_f32', v(PK+4*k5+2+(r >> 1)), v(X+4+r-1), v(X+4+r))
        if k5 == 0: a(MF, v(P0, 4), v(PK, 4), v(F, 4), 0)
        else:
            for e in range(5):
                a(MF, v(Y+4*e, 4), v(PK+4*k5, 4), v(F+4*((e*k5) % 5), 4), v(P0, 4) if k5 == 1 else v(Y+4*e, 4))
    for e in range(5):
        a('v_cvt_pk_bf16_f32', v(A1+2*e), v(Y+4*e), v(Y+4*e+1)); a('v_cvt_pk_bf16_f32', v(A1+2*e+1), v(Y+4*e+2), v(Y+4*e+3))
        a('ds_write_b64', v(K.wa[e]), v(A1+2*e, 2))
    for k in range(3): a('ds_read_b128', v(Z+4*k, 4), v(K.rd), mods=f'offset:{1024*k}')
    a('global_store_dwordx4', v(K.vo[0]), v(Z, 4), OUT_, mods=SC)
    a('s_mov_b32', 'exec_lo', 0xff00ffff)
    a('global_store_dwordx4', v(K.vo[1]), v(Z+4, 4), OUT_, mods='offset:1024 sc1')
    a('s_mov_b32', 'exec_lo', -1); a('s_mov_b32', 'exec_hi', 0xff)
    a('global_store_dwordx4', v(K.vo[2]), v(Z+8, 4), OUT_, mods='offset:2048 sc1')
    stamp(a, 14)
    ske = newlabel('Lep')
    a('s_mov_b64', 'exec', 1)
    a('s_or_b32', 's8', 's2', 's3'); a('s_cmp_lg_u32', 's8', 0); a('s_cbranch_scc1', ske)
    a('v_mov_b32', v(t), WS_EP); a('v_mov_b32', v(u), 's52')
    a('global_store_dword', v(t), v(u), WS_, mods=SC)
    a.label(ske)
    a('s_mov_b64', 'exec', -1)

def pk_B1(a):
    a.label('LB1')
    a('s_setprio', 2)
    R = RegAlloc(1, 160)
    t = R.alloc(); u = R.alloc()
    lb, uo, pr, od = b13_lane(a, R, WS_U)
    CF = R.alloc(4); C = R.alloc(8)
    a('s_mul_i32', 's8', 's4', 640); a('v_lshl_add_u32', v(t), v(pr), 4, 's8')
    a('global_load_dwordx4', v(CF, 4), v(t), SK_)
    msk = R.alloc(); a('v_mov_b32', v(msk), 0xffff0000)
    epoch_ready(a)
    stamp(a, 2)
    for j in range(4):
        for ch in range(2):
            src = CF + 2*ch + (j >> 1)
            if j & 1: a('v_and_b32', v(C+2*j+ch), v(msk), v(src))
            else: a('v_lshlrev_b32', v(C+2*j+ch), 16, v(src))
    subbar(a, C_B1, 10, t, u, vm=True)
    stamp(a, 3)
    Kd = R.alloc(12); Vd = R.alloc(8); Kf = R.alloc(22); T = R.alloc(4); O = R.alloc(8); res = R.alloc(4); uo2 = R.alloc()
    for i in range(11): a('ds_read_b32', v(Kd+i), v(lb), mods=f'offset:{(800 + 160*i if i < 3 else 1296 + 160*(i-3))}')
    for i in range(8): a('ds_read_b32', v(Vd+i), v(lb), mods=f'offset:{L_VI - L_KI + 160*i}')
    a('v_add_u32', v(uo2), 4096, v(uo))
    def unp(i):
        a('v_lshlrev_b32', v(Kf+2*i), 16, v(Kd+i)); a('v_and_b32', v(Kf+2*i+1), v(msk), v(Kd+i))
    for i in range(3): unp(i)
    for i in range(8):
        unp(i+3)
        for ch in range(2):
            acc = T + ch; dst = res + 2*(i & 1) + ch
            a('v_mul_f32', v(acc), v(Kf+2*i+ch), v(C+6+ch))
            for j in (2, 1, 0): a('v_fmac_f32', v(acc), v(Kf+2*(i+3-j)+ch), v(C+2*j+ch))
            if ch: a('v_and_b32', v(T+2+ch), v(msk), v(Vd+i))
            else: a('v_lshlrev_b32', v(T+2+ch), 16, v(Vd+i))
            a('v_mul_f32', v(dst), v(acc), v(T+2+ch))
        if i & 1:
            for ch in range(2):
                d = O+4*ch+3-(i >> 1)
                a('v_cvt_pk_bf16_f32', v(d), v(res+2+ch), v(res+ch)); tag1(a, d, 3-(i >> 1))
    stamp(a, 4)
    a('global_store_dwordx4', v(uo), v(O, 4), WS_, mods=SC)
    a('global_store_dwordx4', v(uo2), v(O+4, 4), WS_, mods=SC)
    if UH[0]: hint(a, L_CNT + 4*C_HU, 10, 's8', t, u, 's96')
    stamp(a, 5)
    a('s_setprio', 0)
    a('s_branch', 'LB2')

def pk_auxO(a):
    a.label('LauxO')
    R = RegAlloc(1, 120); t = R.alloc(); u = R.alloc(); vo = R.alloc(); vh = R.alloc(); vh2 = R.alloc(); wa = R.alloc(); wh = R.alloc()
    T = R.alloc(12); D = R.alloc(54)
    a('s_sub_u32', 's62', 's3', 10); a('s_lshl_b32', 's62', 's62', 11)
    a('v_lshlrev_b32', v(t), 4, 'v0'); a('v_add_u32', v(vo), 's62', v(t)); a('v_subrev_u32', v(vh), 128, v(t)); a('v_subrev_u32', v(vh2), 112, v(t))
    a('v_add_u32', v(wh), L_H, v(t)); a('v_add_u32', v(wa), 's62', v(wh))
    if HGATE[0]: await_cnt(a, C_B1, HGATE[0], t, u)
    a('v_lshlrev_b32', v(t), 4, 'v0')
    for lc in range(3):
        h_srd(a, lc)
        for b in range(2):
            a('buffer_load_dwordx4', v(D+18*lc+6*b, 4), v(vo), 's[44:47]', 0, mods=f'offen offset:{1024*b}')
            a('buffer_load_dwordx2', v(D+18*lc+6*b+4, 2), v(vo), 's[44:47]', 0, mods=f'offen offset:{1024*b+16}')
        h_load(a, D+18*lc+12, vh, vh2, 0)
    epoch_ready(a)
    for k in range(4): a('v_mov_b32', v(T+k), 0)
    for lc in range(3): u_pad(a, lc, T, t)
    for lc in range(3):
        for b in range(2): h_expand(a, D+18*lc+6*b, T, wa, lc*HSZ + 128 + 1024*b)
        a('s_mov_b64', 'exec', 0xff)
        h_expand(a, D+18*lc+12, T, wh, lc*HSZ)
        a('s_mov_b64', 'exec', -1)
    arrive(a, C_H, t, u)
    stamp(a, 6)
    a('s_branch', 'LB2')

def pk_B3(a):
    a.label('LB3')
    a('s_cmp_ge_u32', 's3', 10); a('s_cbranch_scc1', 'Lfin')
    R = RegAlloc(1, 160)
    t = R.alloc(); u = R.alloc()
    lb, uo, pr, od = b13_lane(a, R, WS_U)
    uo2 = R.alloc(); a('v_add_u32', v(uo2), 4096, v(uo))
    Z = R.alloc(8); oo = R.alloc(); rd = R.alloc(); msk = R.alloc(); a('v_mov_b32', v(msk), 0xffff0000)
    a('v_mul_u32_u24', v(t), 26, 'v0'); a('v_lshrrev_b32', v(t), 8, v(t))
    a('v_mul_u32_u24', v(oo), 2560 - 160, v(t)); a('v_lshl_add_u32', v(oo), 'v0', 4, v(oo))
    a('s_lshl_b32', 's8', 's6', 3); a('s_add_u32', 's8', 's8', 's3'); a('s_mul_i32', 's8', 's8', 16*2560)
    a('s_mul_i32', 's9', 's4', 160); a('s_add_u32', 's8', 's8', 's9'); a('s_add_u32', 's8', 's8', 1280); a('v_add_u32', v(oo), 's8', v(oo))
    a('s_mul_i32', 's8', 's3', 2*1296); a('s_add_u32', 's8', 's8', L_VI); a('v_lshl_add_u32', v(rd), 'v0', 4, 's8')
    await_cnt(a, C_QL, 8, t, u)
    Qd = R.alloc(8); Qf = R.alloc(16); T = R.alloc(4); O = R.alloc(16)
    for i in range(8): a('ds_read_b32', v(Qd+i), v(lb), mods=f'offset:{L_VI - L_KI + 160*i}')
    for i in range(8):
        a('v_lshlrev_b32', v(Qf+2*i), 16, v(Qd+i)); a('v_and_b32', v(Qf+2*i+1), v(msk), v(Qd+i))
    def loads():
        a('global_load_dwordx4', v(Z, 4), v(uo), WS_, mods=SC); a('global_load_dwordx4', v(Z+4, 4), v(uo2), WS_, mods=SC)
    wait_lds(a, C_HZ, 6, t, u)
    stamp(a, 11)
    a.wait(vm=0)
    a('s_setprio', 2)
    poll_tags(a, loads, [Z, Z+4], t, 2, LSLEEP[0])
    stamp(a, 12)
    for i in range(8):
        for ch in range(2):
            src = Z + 4*ch + 3 - (i >> 1)
            if i & 1: a('v_lshlrev_b32', v(T+ch), 16, v(src))
            else: a('v_and_b32', v(T+ch), v(msk), v(src))
            a('v_mul_f32', v(T+ch), v(T+ch), v(Qf+2*i+ch))
        a('v_cvt_pk_bf16_f32', v(Qd+i), v(T), v(T+1))
        a('ds_write_b32', v(lb), v(Qd+i), mods=f'offset:{L_VI - L_KI + 160*i}')
    subbar(a, C_Q, 10, t, u)
    stamp(a, 13)
    a('s_cmp_ge_u32', 's3', 8); a('s_cbranch_scc1', 'Lfin')
    a('s_mov_b32', 'exec_hi', 0xff)
    for k in range(4): a('ds_read_b128', v(O+4*k, 4), v(rd), mods=f'offset:{(k >> 1)*1296 + (k & 1)*640}')
    for k in range(4):
        a('global_store_dwordx4', v(oo), v(O+4*k, 4), OUT_, mods=SC)
        if k < 3: a('v_add_u32', v(oo), 4*2560, v(oo))
    stamp(a, 14)
    a('s_mov_b64', 'exec', -1)

def pk_B2(a):
    a.label('LB2')
    R = RegAlloc(1, 128)
    t = R.alloc(); u = R.alloc(); lw = R.alloc(); U = R.alloc(8); go = R.alloc(); fa = R.alloc(); Dv = R.alloc(); msk = R.alloc()
    n = R.alloc(); q = R.alloc(); aa = R.alloc(); ba = R.alloc(); ba2 = R.alloc(); ia = R.alloc(); ra = R.alloc()
    a('s_lshr_b32', 's9', 's3', 2); a('s_and_b32', 's10', 's3', 3)
    a('s_mul_i32', 's15', 's9', USZ); a('s_add_u32', 's15', 's15', L_U)
    a('v_lshrrev_b32', v(t), 3, 'v0'); a('v_lshlrev_b32', v(t), 4, v(t)); a('v_lshl_add_u32', v(lw), 'v0', 4, v(t))
    a('s_mul_i32', 's8', 's10', 8*144); a('s_add_u32', 's8', 's8', 's15'); a('v_add_u32', v(lw), 's8', v(lw))
    a('s_add_u32', 's13', 's53', 's9')
    a('s_lshl_b32', 's8', 's13', 12); a('s_lshl_b32', 's12', 's10', 10); a('s_add_u32', 's8', 's8', 's12'); a('s_add_u32', 's8', 's8', WS_U)
    a('v_lshl_add_u32', v(go), 'v0', 4, 's8')
    a('s_lshl_b32', 's60', 's9', 2); a('s_add_u32', 's60', 's60', L_CNT + 4*C_U)
    a('s_sub_u32', 's11', 's10', 's9'); a('s_and_b32', 's11', 's11', 3); a('s_lshl2_add_u32', 's99', 's9', 's11'); a('s_or_b32', 's99', 's99', 16)
    a('s_cmp_lt_u32', 's7', 36); a('s_cselect_b32', 's63', 1, 0); a('s_cmp_eq_u32', 's5', 0); a('s_cselect_b32', 's63', 's63', 0)
    lj_ = newlabel('Lb2'); a('s_cmp_eq_u32', 's63', 0); a('s_cbranch_scc1', lj_)
    J = lambda l: sum((16 | lc << 2 | ro) << (5*i) for i, (lc, ro) in enumerate(l))
    lists = [J([(0, 0)]), J([(1, 0)]), J([(0, 3), (1, 3)]), J([(0, 1), (1, 1)])] if LATE2[0] else [J([(0, 0)]), J([(1, 0)]), J([(0, 3), (1, 3), (0, 2)]), J([(0, 1), (1, 1), (1, 2)])]
    a('s_mov_b32', 's56', lists[0] | lists[1] << 16); a('s_mov_b32', 's57', lists[2] | lists[3] << 16)
    a('s_lshl_b32', 's8', 's10', 4); a('s_lshr_b64', 's[56:57]', 's[56:57]', 's8'); a('s_and_b32', 's99', 's56', 0x7fff)
    a.label(lj_)
    a('s_mov_b32', 's62', 1)
    a.label('LB2p')
    a('s_bfe_u32', 's9', 's99', (2 << 16) | 2); a('s_and_b32', 's11', 's99', 3)
    a('s_add_u32', 's13', 's53', 's9')
    a('s_lshl_b32', 's8', 's13', 1); a('s_and_b32', 's8', 's8', -4)
    a('s_load_dword', 's58', D_, 's8')
    a('s_mul_i32', 's15', 's9', USZ); a('s_add_u32', 's15', 's15', L_U)
    a('v_and_b32', v(n), 15, 'v0'); a('v_lshrrev_b32', v(q), 4, 'v0')
    a('v_mov_b32', v(msk), 0xffff0000)
    a('v_and_b32', v(t), 1, 'v0'); a('v_mul_u32_u24', v(aa), 529*16, v(t))
    a('v_bfe_u32', v(t), 'v0', 1, 1); a('v_mul_u32_u24', v(t), 264*16, v(t)); a('v_add_u32', v(aa), v(aa), v(t))
    a('v_bfe_u32', v(t), 'v0', 2, 2); a('v_lshl_add_u32', v(aa), v(t), 5, v(aa))
    a('s_cmp_eq_u32', 's11', 0); a('s_cselect_b32', 's12', 1, 0)
    a('s_add_u32', 's14', 's12', 8); a('v_lshl_add_u32', v(aa), v(q), 's14', v(aa))
    a('s_cmp_eq_u32', 's11', 1); a('s_cselect_b32', 's14', 2048, 0)
    a('s_cmp_eq_u32', 's11', 3); a('s_cselect_b32', 's14', 1040, 's14')
    a('s_mul_i32', 's8', 's9', HSZ); a('s_add_u32', 's8', 's8', 's14'); a('s_add_u32', 's8', 's8', L_H)
    a('v_add_u32', v(aa), 's8', v(aa))
    a('s_add_u32', 's14', 's12', 1); a('v_lshlrev_b32', v(t), 's14', v(q)); a('v_sub_u32', v(t), v(t), v(n))
    a('s_lshl_b32', 's14', 's12', 4); a('s_sub_u32', 's14', 31, 's14'); a('v_add_u32', v(t), 's14', v(t))
    a('v_mul_u32_u24', v(ba), 144, v(t)); a('v_add_u32', v(ba), 's15', v(ba))
    a('s_cmp_eq_u32', 's11', 2); a('s_cselect_b32', 's14', 31, 15)
    a('v_sub_u32', v(t), 's14', v(n)); a('v_mul_u32_u24', v(ia), 144, v(t)); a('v_add_u32', v(ia), 's15', v(ia))
    a('v_lshlrev_b32', v(t), 5, v(q)); a('v_sub_u32', v(ia), v(ia), v(t))
    a('s_mul_i32', 's59', 's9', REDSZ); a('s_add_u32', 's59', 's59', L_RED); a('v_lshl_add_u32', v(ra), 'v0', 4, 's59')
    lnh = newlabel('Lb2'); a('s_cmp_lg_u32', 's11', 3); a('s_cbranch_scc1', lnh)
    a('v_and_b32', v(t), 7, 'v0'); a('v_lshlrev_b32', v(u), 1, v(q)); a('v_sub_u32', v(u), v(u), v(t)); a('v_add_u32', v(u), 31, v(u))
    a('v_mul_u32_u24', v(ba), 144, v(u)); a('v_add_u32', v(ba), 's15', v(ba))
    a('v_and_b32', v(u), 8, 'v0'); a('v_xor_b32', v(u), 8, v(u)); a('v_lshl_add_u32', v(ba), v(u), 1, v(ba)); a('v_lshl_add_u32', v(ba2), v(u), 1, v(ba))
    a('v_lshl_add_u32', v(t), v(q), 3, v(t)); a('v_lshlrev_b32', v(t), 4, v(t)); a('v_and_b32', v(u), 8, 'v0'); a('v_lshl_add_u32', v(t), v(u), 7, v(t))
    a('v_add_u32', v(ra), 's59', v(t))
    a.label(lnh)
    a.wait(lgkm=0)
    a('s_bitcmp1_b32', 's13', 0); a('s_cselect_b32', 's8', 0, 16); a('s_lshl_b32', 's58', 's58', 's8'); a('s_and_b32', 's58', 's58', 0xffff0000)
    a('s_cmp_gt_u32', 's3', 5); a('s_cselect_b32', 's98', 2, 1); a('s_sub_u32', 's98', 's3', 's98'); a('s_min_u32', 's98', 's98', 8)
    a('s_cmp_lg_u32', 's12', 0); a('s_cselect_b32', 's98', 8, 's98'); a('s_cmp_eq_u32', 's5', 0); a('s_cselect_b32', 's98', 8, 's98')
    ACC = R.alloc(16); NW = 6; RA = R.alloc(4*NW + 2); RA2 = R.alloc(4*NW + 2); NBR = 6; RB = R.alloc(4*NBR)
    for x in range(16): a('v_mov_b32', v(ACC+x), 0)
    fi = R.alloc(); sa = R.alloc(); sa2 = R.alloc(); sr = R.alloc(); zo = R.alloc(); ca = R.alloc()
    a('s_lshl_b32', 's14', 's9', 3); a('s_add_u32', 's14', 's14', L_CNT + 4*C_RED); a('v_mov_b32', v(ca), 's14')
    a('v_and_b32', v(u), 7, 'v0'); a('v_lshl_add_u32', v(u), v(q), 3, v(u)); a('s_lshl_b32', 's8', 's12', 11); a('s_add_u32', 's8', 's8', 's59'); a('s_add_u32', 's8', 's8', 4096)
    a('v_lshl_add_u32', v(fi), v(u), 4, 's8')
    a('v_sub_u32', v(t), 15, v(n)); a('v_lshlrev_b32', v(u), 1, v(q)); a('v_sub_u32', v(u), 6, v(u))
    a('v_xor_b32', v(u), v(t), v(u)); a('v_and_b32', v(u), 7, v(u)); a('v_lshlrev_b32', v(u), 4, v(u))
    a('v_lshl_add_u32', v(sa), v(t), 7, v(u)); a('v_add_u32', v(sa), 's8', v(sa)); a('v_xor_b32', v(sa2), 16, v(sa))
    a('v_lshrrev_b32', v(t), 3, 'v0'); a('v_xor_b32', v(u), v(t), 'v0'); a('v_and_b32', v(u), 7, v(u)); a('v_lshlrev_b32', v(u), 4, v(u))
    a('v_lshl_add_u32', v(sr), v(t), 7, v(u)); a('v_add_u32', v(sr), 's8', v(sr))
    a('s_lshl_b32', 's8', 's13', 12); a('s_lshl_b32', 's14', 's12', 11); a('s_sub_u32', 's8', 's8', 's14'); a('s_add_u32', 's8', 's8', WS_U + 2048)
    a('v_lshl_add_u32', v(zo), 'v0', 4, 's8')
    a('s_cmp_eq_u32', 's62', 0); a('s_cbranch_scc1', 'LB2go')
    stamp(a, 7)
    lo = newlabel('Lb2'); lo2 = newlabel('Lb2'); lo3 = newlabel('Lb2')
    a('s_cmp_lg_u32', 's5', 0); a('s_cbranch_scc1', lo3)
    wait_lds(a, EG[0], 4, t, u)
    a('s_branch', lo2)
    a.label(lo3)
    if UH[0]:
        a('s_cmp_lg_u32', 's3', 4); a('s_cbranch_scc1', lo)
        a('v_lshl_add_u32', v(t), 's4', 4, v(n)); a('v_lshlrev_b32', v(fa), 7, v(t)); a('v_add_u32', v(fa), H_U, v(fa))
        poll_hints(a, fa, t, u, 's96', 16)
        arrive(a, C_GU, t, u)
        a('s_branch', lo2)
        a.label(lo)
        wait_lds(a, C_GU, 1, t, u)
    else:
        lx = newlabel('Lb2'); a('s_cmp_ge_u32', 's3', 10); a('s_cbranch_scc1', lx)
        drained(a, C_B1D, t, u)
        stamp(a, 6)
        a.label(lx)
        wait_lds(a, C_B1D, 10, t, u)
        if HW[0]: wait_lds(a, C_H, 2, t, u)
    a.label(lo2)
    stamp(a, 2)
    a('s_lshl_b32', 's8', 's63', 12); a('v_subrev_u32', v(fa), 's8', v(go))
    def ul():
        a('global_load_dwordx4', v(U, 4), v(go), WS_, mods=SC)
        if TWOPASS[0]: a('global_load_dwordx4', v(U+4, 4), v(fa), WS_, mods=SC)
    poll_tags(a, ul, [U, U+4] if TWOPASS[0] else [U], t, 1, XSLEEP[0])
    sk2 = newlabel('Lb2'); a('s_cmp_eq_u32', 's63', 0); a('s_cbranch_scc1', sk2)
    await_cnt(a, C_H0, 4, t, u)
    a('v_subrev_u32', v(t), USZ, v(lw))
    a('ds_write_b128', v(t), v(U+4, 4))
    a.label(sk2)
    sko = newlabel('Lb2'); a('s_cmp_eq_u32', 's5', 0); a('s_cbranch_scc1', sko)
    await_cnt(a, C_H, 2, t, u)
    a.label(sko)
    a('ds_write_b128', v(lw), v(U, 4))
    stamp(a, 8)
    subbar_s(a, 's60', 4, t, u, vm=True)
    if GATE[0]:
        lg = newlabel('Lb2'); a('s_cmp_lg_u32', 's5', 0); a('s_cbranch_scc1', lg)
        a('v_mov_b32', v(t), L_CNT + 4*(C_A2+2))
        lq = newlabel('Lb2'); a.label(lq)
        a('s_sleep', 2); a('ds_read_b32', v(u), v(t)); a('v_readfirstlane_b32', 's40', v(u)); a('s_cmp_lt_u32', 's40', 4); a('s_cbranch_scc1', lq)
        a('s_cmp_ge_u32', 's7', 36); a('s_cbranch_scc1', lg)
        lq = newlabel('Lb2'); a.label(lq)
        a('s_sleep', 2); a('ds_read_b32', v(u), v(t), mods='offset:16'); a('v_readfirstlane_b32', 's40', v(u)); a('s_cmp_lt_u32', 's40', 4); a('s_cbranch_scc1', lq)
        a.label(lg)
    a.label('LB2go')
    MF = 'v_mfma_f32_16x16x32_bf16'
    PD = 3
    def rdA(ring, w, off, last):
        if w > last: return
        a('ds_read_b128', v(ring + 4*(w % NW), 4), v(aa), mods=f'offset:{off + 16*w}')
        if w and w % NW == 0: a('ds_read_b64', v(ring+4*NW, 2), v(aa), mods=f'offset:{off + 16*w}')
    def rdB(tau, last, hi=False):
        if tau > last: return
        a('ds_read_b128', v(RB + 4*(tau % NBR), 4), v(ba2 if (hi and tau % 8 == 7) else ba), mods=f'offset:{144*(tau >> 3) + 16*(tau & 7)}')
    a('s_cmp_eq_u32', 's11', 3); a('s_cbranch_scc1', 'LB2hi')
    rdB(0, 32); rdA(RA, 1, 0, 33)
    for k in range(PD): rdB(k+1, 32); rdA(RA, k+2, 0, 33)
    lp_ = newlabel('Lb2'); a('s_cmp_eq_u32', 's11', 0); a('s_cbranch_scc1', lp_)
    a('s_setprio', 1)
    a('ds_read_b128', v(U, 4), v(ia), mods='offset:96'); a('ds_read_b128', v(U+4, 4), v(ia), mods='offset:112')
    for x in range(16):
        e = 15 - x
        if e & 1: a('v_and_b32', v(ACC+x), v(msk), v(U + (e >> 1)))
        else: a('v_lshlrev_b32', v(ACC+x), 16, v(U + (e >> 1)))
        a('v_mul_f32', v(ACC+x), 's58', v(ACC+x))
    pend = a.snap[lp_][0]
    a.label(lp_)
    a.lg = list(pend[1])
    stamp(a, 9)
    for tau in range(32):
        if tau == 16:
            a.raw('    s_cmp_eq_u32 s12, 0'); a.raw('    s_cbranch_scc1 LB2r'); a.bytes += 8
            a.snap.setdefault('LB2r', []).append((list(a.vm), list(a.lg)))
        d0 = (4*(tau+1)) % (4*NW)
        for k, (acc, dd, bt) in enumerate(((2, d0, tau), (3, d0+2, tau), (0, d0, tau+1), (1, d0+2, tau+1))):
            a(MF, v(ACC+4*acc, 4), v(RA+dd, 4), v(RB + 4*(bt % NBR), 4), v(ACC+4*acc, 4))
            if k == 1: rdB(tau + PD + 1, 32)
            if k == 3: rdA(RA, tau + PD + 2, 0, 33)
    a.label('LB2r'); a._nop(8)
    stamp(a, 10)
    lf = newlabel('Lb2')
    a('v_mov_b32', v(u), 1)
    a('s_cmp_lg_u32', 's11', 1); a('s_cbranch_scc1', lf)
    for tt in range(4): a('ds_write_b128', v(ra), v(ACC+4*tt, 4), mods=f'offset:{1024*tt}')
    a.wait(lgkm=0); lds_cnt_add(a, ca, u)
    a('s_branch', 'LB2end')
    a.label('LB2hi')
    a('s_setprio', 1)
    rdA(RA, 0, 0, 16); rdA(RA2, 0, 2048, 16)
    for k in range(PD): rdB(k, 15, True); rdA(RA, k+1, 0, 16); rdA(RA2, k+1, 2048, 16)
    stamp(a, 9)
    for tau in range(16):
        d0 = (4*tau) % (4*NW)
        for k, (acc, ring, dd) in enumerate(((0, RA, d0), (1, RA, d0+2), (2, RA2, d0), (3, RA2, d0+2))):
            a(MF, v(ACC+4*acc, 4), v(ring+dd, 4), v(RB + 4*(tau % NBR), 4), 0 if tau == 0 else v(ACC+4*acc, 4))
            if k == 0: rdB(tau + PD, 15, True)
            if k == 1: rdA(RA, tau + PD + 1, 0, 16)
            if k == 3: rdA(RA2, tau + PD + 1, 2048, 16)
    stamp(a, 10)
    a('v_mov_b32', v(u), 1)
    for acc in range(4): a('ds_write_b128', v(ra), v(ACC+4*acc, 4), mods=f'offset:{4096 + 2048*(acc >> 1) + 512*(acc & 1)}')
    a.wait(lgkm=0)
    a('s_mov_b64', 'exec', 1); a('ds_add_u32', v(ca), v(u)); a('ds_add_u32', v(ca), v(u), mods='offset:4'); a('s_mov_b64', 'exec', -1)
    a('s_branch', 'LB2end')
    a.label(lf)
    a('s_lshl_b32', 's8', 's11', 1); a('v_add_u32', v(t), 's8', v(ca)); a('s_add_u32', 's14', 's12', 1)
    lp = newlabel('Lb2'); a.label(lp)
    a('ds_read_b32', v(u), v(t)); a('v_readfirstlane_b32', 's40', v(u)); a('s_cmp_lt_u32', 's40', 's14'); a('s_cbranch_scc1', lp)
    for tt in range(4): a('ds_read_b128', v(RA+4*tt, 4), v(fi), mods=f'offset:{512*tt}')
    ls = newlabel('Lb2'); a('s_cmp_eq_u32', 's12', 0); a('s_cbranch_scc1', ls)
    for tt in range(4): a('ds_read_b128', v(RB+4*tt, 4), v(ra), mods=f'offset:{1024*tt}')
    for x in range(16): a('v_add_f32', v(ACC+x), v(ACC+x), v(RB+x))
    a.label(ls)
    a('s_mov_b32', 'exec_lo', 0xff00ff00); a('s_mov_b32', 'exec_hi', 0xff00ff00)
    for x in range(16): a('v_add_f32', v(ACC+x), v(ACC+x), v(RA+x))
    a('s_mov_b64', 'exec', -1)
    for jj in range(8):
        a('v_cvt_pk_bf16_f32', v(U+jj), v(ACC+15-2*jj), v(ACC+14-2*jj)); tag2(a, U+jj, jj)
        if jj == 3: a('ds_write_b128', v(sa), v(U, 4))
    a('ds_write_b128', v(sa2), v(U+4, 4))
    a('ds_read_b128', v(RB, 4), v(sr)); a('ds_read_b128', v(RB+4, 4), v(sr), mods='offset:1024')
    a('global_store_dwordx4', v(zo), v(RB, 4), WS_, mods=SC)
    a('global_store_dwordx4', v(zo), v(RB+4, 4), WS_, mods=f'offset:1024 {SC}')
    a('s_cmp_eq_u32', 's5', 0); a('s_cbranch_scc1', 'LB2end')
    arrive(a, C_HZ, t, u, vm=ZDRAIN[0])
    a.label('LB2end')
    a('s_setprio', 0)
    a('s_mov_b32', 's62', 0); a.wait(lgkm=0)
    a('s_lshr_b32', 's99', 's99', 5); a('s_cbranch_scc1', 'LB2p')
    a('s_cmp_eq_u32', 's5', 0); a('s_cbranch_scc1', 'LA3')
    a('s_cmp_eq_u32', 's98', 8); a('s_cbranch_scc1', 'LB3')
    srd(a, 44, 's22', 's23', 2048*1280)
    a('v_mul_u32_u24', v(t), 26, 'v0'); a('v_lshrrev_b32', v(t), 8, v(t)); a('v_mul_u32_u24', v(u), 1280 - 160, v(t)); a('v_lshl_add_u32', v(u), 'v0', 4, v(u))
    a('s_lshl_b32', 's8', 's6', 3); a('s_add_u32', 's8', 's8', 's98'); a('s_mul_i32', 's8', 's8', 16*1280); a('s_mul_i32', 's14', 's4', 160); a('s_add_u32', 's8', 's8', 's14')
    a('s_mul_i32', 's14', 's98', 2*1296); a('s_mov_b32', 'exec_hi', 0xff)
    for k in range(4):
        a('s_add_u32', 'm0', 's14', L_VI + (k >> 1)*1296 + (k & 1)*640)
        a('buffer_load_dwordx4', v(u), 's[44:47]', 's8', mods='offen lds')
        if k < 3: a('s_addk_i32', 's8', 4*1280)
    a('s_mov_b64', 'exec', -1)
    arrive(a, C_QL, t, u, vm=True)
    a('s_branch', 'LB3')

class A2R: pass
def a2_regs():
    K = A2R(); R = RegAlloc(1, 168)
    K.t = R.alloc(); K.u = R.alloc(); K.go = R.alloc(); K.lw = R.alloc(); K.lr0 = R.alloc(); K.lr1 = R.alloc(); K.msk = R.alloc()
    K.X = R.alloc(8)
    K.C = R.alloc(8); K.Sm = R.alloc(8); K.N = R.alloc(8); K.TC = R.alloc(16); K.TS = R.alloc(16)
    K.Z = R.alloc(16); K.Wp = R.alloc(16); K.B0 = R.alloc(32); K.B1 = R.alloc(32)
    K.fa, K.fw, K.o, K.h, K.of, K.hf, K.t2 = [K.Wp + k for k in range(7)]
    return K

def A2_consts(a, K):
    t, u, go, X = K.t, K.u, K.go, K.X
    a('v_lshrrev_b32', v(t), 3, 'v0'); a('v_lshl_add_u32', v(t), 's10', 3, v(t))
    a('s_mov_b32', 's8', TBLK); a('v_mul_lo_u32', v(go), v(t), 's8')
    a('v_and_b32', v(u), 7, 'v0'); a('v_lshl_add_u32', v(go), v(u), 4, v(go))
    a('s_lshl_b32', 's8', 's9', 7); a('v_add_u32', v(go), 's8', v(go))
    def swz(dst, line, piece):
        a('v_lshrrev_b32', v(dst), 1, v(line)); a('v_and_b32', v(K.t2), 1, v(line)); a('v_xor_b32', v(dst), v(dst), v(K.t2))
        a('v_xor_b32', v(dst), piece, v(dst)); a('v_and_b32', v(dst), 7, v(dst)); a('v_lshlrev_b32', v(dst), 4, v(dst))
        a('v_lshl_add_u32', v(dst), v(line), 7, v(dst)); a('v_add_u32', v(dst), 's62', v(dst))
    swz(K.lw, t, v(u))
    a('s_sub_u32', 's8', 's9', 128); a('s_mul_i32', 's8', 's8', 57); a('s_lshr_b32', 's8', 's8', 9)
    a('s_bfe_u32', 's11', 's9', (2 << 16) | 4); a('s_cmp_lt_u32', 's9', 128); a('s_cselect_b32', 's8', 's11', 's8')
    a('s_and_b32', 's8', 's8', 1); a('s_cmp_eq_u32', 's8', 0)
    a('s_cselect_b32', 's60', 0, 0x80008000); a('s_lshl_b32', 's11', 's8', 31); a('s_or_b32', 's11', 's11', fl(1/32))
    o, h, of, hf = K.o, K.h, K.of, K.hf
    a('v_bfe_u32', v(o), 'v0', 3, 1); a('v_and_b32', v(t), 3, 'v0'); a('v_lshl_add_u32', v(o), v(o), 2, v(t))
    a('v_bfe_u32', v(t), 'v0', 4, 1); a('v_lshl_add_u32', v(o), v(o), 1, v(t))
    a('v_bfe_u32', v(t), 'v0', 2, 1); a('v_lshl_add_u32', v(o), v(o), 1, v(t))
    a('v_lshrrev_b32', v(h), 5, 'v0')
    a('v_lshl_add_u32', v(t), v(h), 5, v(o))
    a('s_lshl_b32', 's8', 's10', 1)
    swz(K.lr0, t, 's8'); a('v_xor_b32', v(K.lr1), 16, v(K.lr0))
    a('v_cvt_f32_u32', v(of), v(o)); a('v_mul_f32', v(of), 's11', v(of))
    a('v_cvt_f32_u32', v(hf), v(h)); a('v_mul_f32', v(hf), v(hf), v(of))
    for kap in range(2):
        for jj in range(4):
            for e in range(2):
                idx = 2*kap + 4*(2*jj + e)
                if idx: a('v_fmamk_f32', v(X+e), v(of), fl(float(idx)), v(hf)); src = X+e
                else: src = hf
                sincos(a, src, X+2+e, X+4+e)
                vv = 8*kap + 2*jj + e
                a('v_mul_f32', v(X+6+e), fl(1/32), v(src))
                sincos(a, X+6+e, K.TC+vv, K.TS+vv)
            a('v_cvt_pk_bf16_f32', v(K.C+4*kap+jj), v(X+2), v(X+3))
            a('v_cvt_pk_bf16_f32', v(K.Sm+4*kap+jj), v(X+4), v(X+5))
            a('v_xor_b32', v(K.N+4*kap+jj), 0x80008000, v(K.Sm+4*kap+jj))
    a('v_mov_b32', v(K.msk), 0xffff0000)

def pk_auxE(a):
    K = a2_regs()
    a.label('LauxE')
    R = RegAlloc(K.B0, 164)
    WB = 2048*321*2
    bar0(a)
    a('s_sub_u32', 's10', 's3', 8)
    vo = R.alloc(); t = K.t; u = K.u
    a('v_lshlrev_b32', v(vo), 4, 'v0')
    def w_dma():
        a('s_mul_i32', 's14', 's7', 1284)
        a('s_mul_i32', 's11', 's10', 2*256*642); a('s_add_u32', 's14', 's14', 's11')
        a('s_mul_i32', 's11', 's10', 2*1296); a('s_add_u32', 's11', 's11', L_A2 + 1296)
        srd(a, 44, 's18', 's19', WB); srd(a, 48, 's20', 's21', WB)
        def slot(soff, m0v_s, add):
            for pl, sd in enumerate((44, 48)):
                a('s_add_u32', 'm0', m0v_s, add + pl*11664)
                a('buffer_load_dwordx4', v(vo), s(sd, 4), soff, mods='offen lds')
                a('s_mov_b64', 'exec', 0x1ffff)
                a('buffer_load_dwordx4', v(vo), s(sd, 4), soff, mods='offen offset:1024 lds')
                a('s_mov_b64', 'exec', -1)
        slot('s14', 's11', 0)
        a('s_add_u32', 's14', 's14', 256*642)
        slot('s14', 's11', 1296)
        sk = newlabel('Lw1s')
        a('s_cmp_lg_u32', 's7', 127); a('s_cbranch_scc1', sk)
        a('s_cmp_lg_u32', 's10', 3); a('s_cbranch_scc1', sk)
        a('s_mov_b32', 's11', L_A2)
        slot('s14', 's11', 0)
        a.label(sk)
    k0 = R.alloc(); vc = R.alloc(); go = R.alloc(); go2 = R.alloc()
    a('v_lshrrev_b32', v(t), 3, 'v0')
    a('v_mul_u32_u24', v(k0), 65, v(t))
    a('v_mul_u32_u24', v(u), 205, v(k0)); a('v_lshrrev_b32', v(u), 14, v(u))
    a('v_mul_u32_u24', v(u), 80, v(u)); a('v_sub_u32', v(k0), v(k0), v(u))
    a('s_and_b32', 's12', 's10', 1); a('s_lshr_b32', 's13', 's10', 1)
    a('s_cmp_eq_u32', 's12', 0)
    a('s_cselect_b32', 's14', 2, -2); a('s_cselect_b32', 's15', 0, 640)
    a('s_mul_i32', 's8', 's13', 642); a('s_add_u32', 's15', 's15', 's8'); a('s_add_u32', 's15', 's15', L_A2 + 1296)
    a('s_cmp_eq_u32', 's10', 3); a('s_cselect_b32', 's8', 1, 0); a('s_add_u32', 's8', 's8', 's7')
    a('s_cmp_eq_u32', 's8', 128); a('s_cselect_b32', 's41', 1296, 0); a('s_sub_u32', 's15', 's15', 's41')
    a('s_and_b32', 's8', 's8', 127)
    a('v_bfe_u32', v(t), 'v0', 1, 2); a('v_mul_u32_u24', v(t), 80, v(t))
    a('v_and_b32', v(u), 1, 'v0'); a('v_mul_u32_u24', v(u), 11664, v(u)); a('v_add_u32', v(u), 's15', v(u))
    a('v_mad_i32_i24', v(vc), v(t), 's14', v(u))
    a('s_mul_i32', 's8', 's8', TBLK); a('s_add_u32', 's8', 's8', WS_W)
    a('s_lshl_b32', 's41', 's10', 11); a('s_add_u32', 's41', 's41', 's8')
    a('v_add_u32', v(go), 's41', v(vo))
    a('s_mul_i32', 's41', 's10', 9*128); a('s_add_u32', 's41', 's41', 's8'); a('s_add_u32', 's41', 's41', 128*128)
    a('v_add_u32', v(go2), 's41', v(vo))
    ads = [R.alloc() for _ in range(6)]
    for it, C in enumerate((16, 56, 32, 72, 0, 40)):
        if C:
            a('v_add_u32', v(t), C, v(k0)); a('v_subrev_u32', v(u), 80, v(t)); a('v_min_u32', v(t), v(t), v(u))
            a('v_mad_i32_i24', v(ads[it]), v(t), 's14', v(vc))
        else: a('v_mad_i32_i24', v(ads[it]), v(k0), 's14', v(vc))
    O = R.alloc(24); Hh = R.alloc(24)
    epoch_ready(a)
    if WGATE[0]: await_cnt(a, C_X, WGATE[0], t, u)
    w_dma()
    a('s_mov_b32', 's9', 's7'); a('s_mov_b32', 's62', L_A2T); a('s_mov_b32', 's63', L_A2W); a('s_mov_b32', 's61', L_CNT + 4*C_A2)
    a.label('LA2c')
    A2_consts(a, K)
    wtag_regs(a, 56)
    a('s_cmp_lt_u32', 's3', 8); a('s_cbranch_scc1', 'LA2w')
    stamp(a, 2)
    a('s_setprio', 1)
    a('v_mov_b32', v(vo), 0xfffefffe)
    subbar(a, C_W1, 4, t, u, vm=True)
    stamp(a, 3)
    def comb(it):
        for k in range(4): a('v_lshl_or_b32', v(O+4*it+k), v(Hh+4*it+k), 16, v(O+4*it+k))
        for k in range(4): a('v_and_or_b32', v(O+4*it+k), v(O+4*it+k), v(vo), s(56+k))
    for it in range(6):
        for i in range(8): a('ds_read_u16', v((Hh if i & 1 else O) + 4*it + (i >> 1)), v(ads[it]), mods=f'offset:{1296*i}')
        if it: comb(it - 1)
        if it == 2:
            for k in range(2): a('global_store_dwordx4', v(go), v(O+4*k, 4), WS_, mods=f'offset:{1024*k} {SC}')
            a('v_add_u32', v(go), 8192, v(go))
        if it == 4:
            for k in range(2): a('global_store_dwordx4', v(go), v(O+8+4*k, 4), WS_, mods=f'offset:{1024*k} {SC}')
    comb(5)
    a('global_store_dwordx4', v(go2), v(O+16, 4), WS_, mods=SC)
    a('s_mov_b64', 'exec', 0xff)
    a('global_store_dwordx4', v(go2), v(O+20, 4), WS_, mods=f'offset:1024 {SC}')
    a('s_mov_b64', 'exec', -1)
    stamp(a, 4)
    arrive(a, C_W1D, t, u)
    stamp(a, 5)
    a.label('LA2w')
    await_cnt(a, C_A1D, 8, t, u)
    await_cnt(a, C_W1D, 4, t, u)
    a.label('LA2')
    pk_A2(a, K)

def pk_A2(a, K):
    t, u, go, lw, lr0, lr1, msk, X, Z, Wp, B0, B1 = K.t, K.u, K.go, K.lw, K.lr0, K.lr1, K.msk, K.X, K.Z, K.Wp, K.B0, K.B1
    for it in range(4):
        a('s_add_u32', s(44+2*it), 's38', 32*TBLK*it); a('s_addc_u32', s(45+2*it), 's39', 0)
    a('s_sub_u32', 's63', 's63', 's62')
    a('s_setprio', 3)
    stamp(a, 7)
    stamp(a, 11)
    ST, SW = B0, B1
    def tl():
        for it in range(4): a('global_load_dwordx4', v(ST+4*it, 4), v(go), s(44+2*it, 2), mods=SC)
    poll_tags(a, tl, [ST+4*i for i in range(4)], t, 1, XSLEEP[0])
    a('v_add_u32', v(Wp), WS_W, v(go)); a('v_add_u32', v(X+2), 's63', v(lw))
    def wl():
        for it in range(4): a('global_load_dwordx4', v(SW+4*it, 4), v(Wp), s(44+2*it, 2), mods=SC)
    stamp(a, 8)
    for it in range(4): a('ds_write_b128', v(lw), v(ST+4*it, 4), mods=f'offset:{4096*it}')
    a('v_mov_b32', v(X), 's61'); a('v_mov_b32', v(X+1), 1)
    a.wait(lgkm=0); lds_cnt_add(a, X, X+1)
    stamp(a, 6)
    wl()
    lp = newlabel('La2'); a.label(lp)
    a('ds_read_b32', v(X+1), v(X)); a('v_readfirstlane_b32', 's40', v(X+1)); a('s_cmp_lt_u32', 's40', 4); a('s_cbranch_scc1', lp)
    stamp(a, 9)
    for kap in range(2):
        for ri, ad in enumerate((lr0, lr1)): a('ds_read_b128', v(Z+8*kap+4*ri, 4), v(ad), mods=f'offset:{8192*kap}')
    MF = 'v_mfma_f32_32x32x16_bf16'
    def mm(kap, dataA, inv, d):
        dR, dI = d, d+16
        zr, zi = v(Z+8*kap, 4), v(Z+8*kap+4, 4)
        c, p, n = v(K.C+4*kap, 4), v(K.Sm+4*kap, 4), v(K.N+4*kap, 4)
        if inv: p, n = n, p
        for k, (dd, z, m) in enumerate(((dR, zr, c), (dI, zi, c), (dR, zi, p), (dI, zr, n))):
            cin = 0 if (kap == 0 and k < 2) else v(dd, 16)
            if dataA: a(MF, v(dd, 16), z, m, cin)
            else: a(MF, v(dd, 16), m, z, cin)
    mm(0, True, False, B0); mm(1, True, False, B0)
    poll_tags(a, wl, [SW+4*i for i in range(4)], t, 3, XSLEEP[0], tagsg=56, pre=True)
    for it in range(4): a('ds_write_b128', v(X+2), v(SW+4*it, 4), mods=f'offset:{4096*it}')
    stamp(a, 12)
    a('v_mov_b32', v(u), 1); a('v_mov_b32', v(t), 's61')
    a.wait(lgkm=0)
    a('s_mov_b64', 'exec', 1); a('ds_add_u32', v(t), v(u), mods='offset:4'); a('s_mov_b64', 'exec', -1)
    bufs = [B0, B1]
    for st in range(3):
        sb, db = bufs[st & 1], bufs[(st + 1) & 1]
        if st == 1:
            lp = newlabel('La2'); a.label(lp, keep=True) if False else None
            a.settle(keep_hist=True) if False else None
            hist = list(a.hist)
            a.raw(lp + ':')
            a('ds_read_b32', v(u), v(t), mods='offset:4'); a('v_readfirstlane_b32', 's40', v(u)); a('s_cmp_lt_u32', 's40', 4)
            a.raw(f'    s_cbranch_scc1 {lp}'); a.bytes += 4
            stamp(a, 14)
            a('v_add_u32', v(t), 's63', v(lr0)); a('v_add_u32', v(u), 's63', v(lr1))
            for kap in range(2):
                for ri, ad in enumerate((t, u)): a('ds_read_b128', v(Wp+8*kap+4*ri, 4), v(ad), mods=f'offset:{8192*kap}')
            a('v_mov_b32', v(X+6), 0xfffefffe)
            for i in range(16):
                if i & 4: a('v_bitop3_b32', v(Wp+i), v(Wp+i), v(X+6), 's60', mods='bitop3:0x6a')
                else: a('v_and_b32', v(Wp+i), v(X+6), v(Wp+i))
        for kap in range(2):
            for jj in range(4):
                for e in range(2):
                    vv = 8*kap + 2*jj + e
                    re, im = sb+vv, sb+16+vv
                    if st == 1:
                        c, s_ = X+4, X+5
                        for dst, pl in ((c, 0), (s_, 1)):
                            src = Wp + 8*kap + 4*pl + jj
                            if e: a('v_and_b32', v(dst), v(msk), v(src))
                            else: a('v_lshlrev_b32', v(dst), 16, v(src))
                    else: c, s_ = K.TC+vv, K.TS+vv
                    a('v_mul_f32', v(X+e), v(re), v(c)); a('v_mul_f32', v(X+2+e), v(im), v(c))
                    if st == 0:
                        a('v_fmac_f32', v(X+e), v(im), v(s_)); a('v_fma_f32', v(X+2+e), '-' + v(re), v(s_), v(X+2+e))
                    else:
                        a('v_fma_f32', v(X+e), '-' + v(im), v(s_), v(X+e)); a('v_fmac_f32', v(X+2+e), v(re), v(s_))
                a('v_cvt_pk_bf16_f32', v(Z+8*kap+jj), v(X), v(X+1))
                a('v_cvt_pk_bf16_f32', v(Z+8*kap+4+jj), v(X+2), v(X+3))
            mm(kap, st == 1, st >= 1, db)
    sb = bufs[1]
    for kap in range(2):
        for ih, ad in enumerate((lr0, lr1)):
            for x in range(4):
                vv = 8*kap + 4*ih + x
                a('v_cvt_pk_bf16_f32', v(Z+vv), v(sb+vv), v(sb+16+vv)); tag2(a, Z+vv, x)
            a('ds_write_b128', v(ad), v(Z+8*kap+4*ih, 4), mods=f'offset:{8192*kap}')
    stamp(a, 10)
    a('s_add_u32', 's8', 's61', 8)
    subbar_s(a, 's8', 4, t, u)
    for it in range(4): a('ds_read_b128', v(Wp+4*it, 4), v(lw), mods=f'offset:{4096*it}')
    for it in range(4): a('global_store_dwordx4', v(go), v(Wp+4*it, 4), s(44+2*it, 2), mods=SC)
    a('s_setprio', 0)
    stamp(a, 13)
    a('v_mov_b32', v(u), 1); a('v_mov_b32', v(t), 's61')
    if LATE2[0]:
        ll = newlabel('La2'); a('s_and_b32', 's8', 's3', 14); a('s_cmp_lg_u32', 's8', 2); a('s_cbranch_scc1', ll)
        a('s_mov_b64', 'exec', 1); a('ds_add_u32', v(t), v(u), mods='offset:12'); a('s_mov_b64', 'exec', -1)
        a('s_and_b32', 's99', 's3', 1); a('s_lshl_b32', 's99', 's99', 2); a('s_or_b32', 's99', 's99', 18); a('s_mov_b32', 's62', 0)
        await_cnt(a, C_U+1, 4, t, u)
        a('s_branch', 'LB2p')
        a.label(ll)
    a.wait(vm=0)
    a('s_mov_b64', 'exec', 1); a('ds_add_u32', v(t), v(u), mods='offset:12'); a('s_mov_b64', 'exec', -1)
    a('s_cmp_lt_u32', 's3', 8); a('s_cbranch_scc1', 'LA3')
    a('s_branch', 'Lfin')

def epoch_store(a):
    pass

def build(stamps=False):
    STAMPS[0] = stamps
    for it in range(4):
        roles._lbl[0] = 0
        a = Asm()
        a.raw(f"; @launch grid=(256,1,1) block=(768,1,1) lds={LDS_TOTAL}")
        a.raw('.amdgcn_target "amdgcn-amd-amdhsa--gfx950"\n.text')
        entry(a)
        pk_A1(a)
        pk_auxE(a)
        pk_B1(a)
        pk_auxO(a)
        pk_B2(a)
        pk_A3(a); a('s_branch', 'Lfin')
        pk_B3(a)
        a.label('Lfin'); stamp_flush(a, 0); a('s_endpgm')
        a.raw('.p2align 10')
        a.raw(kernel_desc(KNAME, 168, 102))
        hi = max(0, (a.bytes + 1023)//1024*1024 - 12288)
        if hi == CODE_HI[0]: break
        CODE_HI[0] = hi
    print('est bytes', a.bytes, 'instrs', a.nins, 'lds', LDS_TOTAL)
    return a.text()

if __name__ == '__main__':
    open('pk17.s', 'w').write(build(False))
    open('pk17st.s', 'w').write(build(True))
    WARM[0] = False; open('pk17a.s', 'w').write(build(False)); WARM[0] = True
    EG[0] = C_A2; open('pk17b.s', 'w').write(build(False)); EG[0] = C_W1D
    for k in sys.argv[1:]:
        roles.AMP[0] = int(k); open(f'pk17amp{k}.s', 'w').write(build(True))
```

```python
import sys
from asmlib import *
import roles
from roles import (X_, WR_, WI_, Q_, K_, V_, SK_, H_, D_, OUT_, DBG_, WS_, WS_T, WS_W, WS_U, WS_F, TBLK, HSZ, newlabel, stamp, stamp_flush,
                   sincos, row_offsets, d1_addrs, srd, quad_voff, STAMPS)
WS_SHIFT = 0x80000
WS_W = 0x400000
WS_U = 0x800000
roles.WS_ST = 0xD00000 - WS_SHIFT
KNAME = "concat_heads__spectral_gfnet__ssm_conv_h3__prompt_kernel"
H_T, H_W, H_U, H_Z, H_T2 = WS_F, WS_F + 128*128, WS_F + 256*128, WS_F + 384*128, WS_F + 640*128
WS_EP = WS_W - 128
SPIN = 1 << 15
SC = 'sc1'
L_CNT = 0
L_H = 256
USZ = 40*144
L_U = L_H + 3*HSZ
L_RED = (L_U + 3*USZ + 127)//128*128
REDSZ = 8192
L_P1 = L_RED + 3*REDSZ - 8192 + 8192
L_P1 = (L_P1 + 255)//256*256
L_XR = L_P1; L_EI = L_XR + 8*3072; L_KI = L_P1; L_VI = L_KI + 17*1296
P1SZ = max(8*3072 + 8*2640 + 1024, 33*1296)
L_A2 = (L_P1 + P1SZ + 255)//256*256
A2SZ = 23552
LDS_TOTAL = L_A2 + A2SZ
assert LDS_TOTAL <= 163840, LDS_TOTAL
L_A2T = L_A2
L_A2W = (L_H + 2*HSZ + 255)//256*256
assert L_A2W + 16384 + 0 <= L_H + 3*HSZ + 0, (L_A2W, L_H + 3*HSZ)
L_TABH = L_RED + 2*REDSZ
L_TW = L_RED
L_T3H = L_U + 2*USZ
L_T3W = L_RED + 2*REDSZ
L_STG_E = L_A2 + 16384
roles.L_CNT, roles.L_EI, roles.L_KI, roles.L_VI, roles.L_XR = L_CNT, L_EI, L_KI, L_VI, L_XR
from roles import subbar, arrive, await_cnt, ei_addrs, b13_lane, tile_dma
C_A1, C_A1D, C_W1, C_W1D, C_A3, C_B1, C_B1D, C_H, C_Q, C_QL = 0, 1, 2, 3, 4, 5, 6, 7, 8, 9
C_A2 = 10
C_U = 20
C_X = 23
C_H0 = 18
C_RED = 24
import pk2
pk2.STAMPS = STAMPS
from pk2 import coop_tables, m2_mats, SEQ, A3K
XDELAY = [0]
WGATE = [8]
HGATE = [1]
GATE = [False]
ZGATE = [True]
LSLEEP = [8]
FSLEEP = [0, 0]
ONEPOLL = [True]

def lds_cnt_add(a, va, vb, rtn=False):
    a('s_mov_b64', 'exec', 1)
    if rtn: a('ds_add_rtn_u32', v(vb), v(va), v(vb))
    else: a('ds_add_u32', v(va), v(vb))
    a('s_mov_b64', 'exec', -1)

def subbar_s(a, saddr, n, va, vb, vm=False):
    a('v_mov_b32', v(va), saddr); a('v_mov_b32', v(vb), 1)
    a.wait(vm=0 if vm else None, lgkm=0)
    lds_cnt_add(a, va, vb, True)
    a('v_readfirstlane_b32', 's40', v(vb))
    done = newlabel('Lbd'); loop = newlabel('Lbl')
    a('s_cmp_ge_u32', 's40', n - 1); a('s_cbranch_scc1', done)
    a.label(loop)
    a('ds_read_b32', v(vb), v(va)); a('v_readfirstlane_b32', 's40', v(vb))
    a('s_cmp_lt_u32', 's40', n); a('s_cbranch_scc1', loop)
    a.label(done)

def publish(a, cid, n, flag_s, va, vb, ep='s52'):
    a('v_mov_b32', v(va), L_CNT + 4*cid); a('v_mov_b32', v(vb), 1)
    a.wait(vm=0, lgkm=0)
    a('s_mov_b64', 'exec', 1)
    a('ds_add_rtn_u32', v(vb), v(va), v(vb))
    a('v_readfirstlane_b32', 's40', v(vb))
    sk = newlabel('Lp')
    a('s_cmp_lg_u32', 's40', n - 1); a('s_cbranch_scc1', sk)
    if ep == 's52':
        a('s_mov_b64', 'exec', 0xff)
        a('v_lshl_add_u32', v(va), 'v0', 14, flag_s)
    else: a('v_mov_b32', v(va), flag_s)
    a('v_mov_b32', v(vb), ep)
    a('global_store_dword', v(va), v(vb), WS_, mods=SC)
    a.label(sk)
    a('s_mov_b64', 'exec', -1)

def poll_flags(a, vaddr, vt, ep='s52'):
    lp = newlabel('Lf'); dn = newlabel('Lf')
    a('s_mov_b32', 's41', SPIN)
    a.label(lp)
    a('global_load_dword', v(vt), v(vaddr), WS_, mods=SC)
    a('s_sub_u32', 's41', 's41', 1)
    a.wait(vm=0)
    a('v_cmp_ne_u32', 'vcc', ep, v(vt))
    a('s_cbranch_scc1', dn)
    sl = FSLEEP[0] if ep == 's52' else FSLEEP[1]
    if sl:
        a('s_cbranch_vccz', dn); a('s_sleep', sl); a('s_branch', lp)
    else: a('s_cbranch_vccnz', lp)
    a.label(dn)
S_M, S_C = 's100', 's101'
def tag_consts(a):
    a('s_mov_b32', S_M, 0xfffeffff); a('s_mov_b32', S_C, 0x10000)
def tag1(a, r, j):
    if j == 0: a('v_and_b32', v(r), 0xfffefffe, v(r))
    elif j == 1: a('v_and_or_b32', v(r), v(r), S_M, 1)
    elif j == 2: a('v_and_or_b32', v(r), v(r), -2, S_C)
    else: a('v_or_b32', v(r), 0x10001, v(r))
def tag2(a, r, j):
    if j & 1: a('v_and_b32', v(r), -2, v(r))
    else: a('v_or_b32', v(r), 1, v(r))
def poll_tags(a, loads, regs, vt, kind, sleep, tagsg=None, pre=False):
    lp = newlabel('Lg'); dn = newlabel('Lg')
    a('s_mov_b32', 's41', SPIN)
    if pre:
        ck = newlabel('Lg'); a('s_branch', ck); a.dead = False
    a.label(lp)
    loads()
    if pre: a.label(ck)
    a('s_sub_u32', 's41', 's41', 1)
    first = True
    for b in regs:
        if kind == 2:
            if first: a('v_bitop3_b32', v(vt), v(b), v(b+1), v(b+1), mods='bitop3:0xcf')
            else: a('v_bitop3_b32', v(vt), v(vt), v(b), v(b+1), mods='bitop3:0xfb')
            a('v_bitop3_b32', v(vt), v(vt), v(b+2), v(b+3), mods='bitop3:0xfb')
        elif kind == 1:
            if first: a('v_bitop3_b32', v(vt), v(b+3), v(b), v(b), mods='bitop3:0xcf')
            else: a('v_bitop3_b32', v(vt), v(vt), v(b+3), v(b), mods='bitop3:0xfb')
            a('v_bitop3_b32', v(vt), v(vt), v(b+1), 1, mods='bitop3:0xf6')
            a('v_bitop3_b32', v(vt), v(vt), v(b+2), S_C, mods='bitop3:0xf6')
        else:
            for j in range(4):
                if first and j == 0: a('v_xor_b32', v(vt), s(tagsg), v(b))
                else: a('v_bitop3_b32', v(vt), v(vt), v(b+j), s(tagsg+j), mods='bitop3:0xf6')
        first = False
    a('v_and_b32', v(vt), 1 if kind == 2 else 0x10001, v(vt))
    a('v_cmp_ne_u32', 'vcc', 0, v(vt))
    a('s_cbranch_scc1', dn)
    a('s_cbranch_vccz', dn); a('s_sleep', sleep); a('s_branch', lp)
    a.label(dn)
def wtag_regs(a, base):
    for j in range(4):
        a('s_add_u32', 's8', 's52', j); a('s_and_b32', s(base+j), 's8', 1); a('s_bitcmp1_b32', 's8', 1)
        a('s_cselect_b32', 's8', S_C, 0); a('s_or_b32', s(base+j), s(base+j), 's8')
def hint(a, caddr, n, flag_s, va, vb, ep):
    a('v_mov_b32', v(va), caddr); a('v_mov_b32', v(vb), 1)
    a('s_mov_b64', 'exec', 1)
    a('ds_add_rtn_u32', v(vb), v(va), v(vb))
    a('v_readfirstlane_b32', 's40', v(vb))
    sk = newlabel('Lp')
    a('s_add_u32', 's40', 's40', 1); a('s_cmp_lg_u32', 's40', n); a('s_cbranch_scc1', sk)
    a('v_mov_b32', v(va), flag_s); a('v_mov_b32', v(vb), ep)
    a('global_store_dword', v(va), v(vb), WS_, mods=SC)
    a.label(sk)
    a('s_mov_b64', 'exec', -1)
def poll_hints(a, vaddr, vt, vz, ep, nlanes):
    lp = newlabel('Lf'); dn = newlabel('Lf')
    a('s_mov_b32', 's41', SPIN); a('v_mov_b32', v(vz), 0)
    if nlanes < 32: a('s_mov_b64', 'exec', (1 << nlanes) - 1)
    else: a('s_mov_b32', 'exec_hi', 0)
    a.label(lp)
    a('global_atomic_add', v(vt), v(vaddr), v(vz), WS_, mods='sc0 sc1')
    a('s_sub_u32', 's41', 's41', 1)
    a.wait(vm=0)
    a('v_cmp_ne_u32', 'vcc', ep, v(vt))
    a('s_cbranch_scc1', dn)
    a('s_cbranch_vccnz', lp)
    a.label(dn)
    a('s_mov_b64', 'exec', -1)
def wait_lds(a, cid, n, t, u):
    a('v_mov_b32', v(t), L_CNT + 4*cid)
    lq = newlabel('Lw'); a.label(lq)
    a('s_sleep', 1); a('ds_read_b32', v(u), v(t)); a('v_readfirstlane_b32', 's40', v(u)); a('s_cmp_lt_u32', 's40', n); a('s_cbranch_scc1', lq)
C_HT, C_HU, C_HZ, C_GU, C_GZ, C_GT2 = 32, 33, 34, 35, 36, 37
NS = [8]
UH = [False]
TWOPASS = [True]
UMARG = [0]
ZDRAIN = [True]
WARM = [2]
HW = [False]
PF = [True]
LATE2 = [True]
A3ALL = [0]
EG = [C_W1D]
def drained(a, cid, va, vb):
    arrive(a, cid, va, vb, vm=True)
TAGX = [False, False]
XSLEEP = [8]
def poll_tag0(a, loads, regs, vt, sleep=0):
    lp = newlabel('Lg'); dn = newlabel('Lg')
    a('s_mov_b32', 's41', SPIN)
    a.label(lp)
    loads()
    a('s_sub_u32', 's41', 's41', 1)
    a('v_or_b32', v(vt), v(regs[0]), v(regs[1]))
    for k in range(2, len(regs), 2): a('v_or3_b32', v(vt), v(vt), v(regs[k]), v(regs[k+1]))
    a('v_and_b32', v(vt), 1, v(vt))
    a('v_cmp_ne_u32', 'vcc', 0, v(vt))
    a('s_cbranch_scc1', dn)
    if sleep:
        a('s_cbranch_vccz', dn); a('s_sleep', sleep); a('s_branch', lp)
    else: a('s_cbranch_vccnz', lp)
    a.label(dn)

def epoch_ready(a):
    a.wait(lgkm=0); a('s_add_u32', 's52', 's52', 1)
def warm(a, late):
    if not late:
        a('v_lshlrev_b32', 'v1', 21, 'v0')
        a('s_mov_b64', 'exec', 1)
        a('global_load_dword', 'v83', 'v1', WR_); a('global_load_dword', 'v84', 'v1', WI_)
        a('s_mov_b64', 'exec', -1)
        a('v_and_b32', 'v2', 1, 'v0'); a('v_mul_u32_u24', 'v2', 0x1f0000, 'v2'); a('v_add_u32', 'v2', 'v1', 'v2')
        a('s_sub_u32', 's12', 's38', WS_SHIFT); a('s_subb_u32', 's13', 's39', 0)
        a('s_mov_b64', 'exec', 0x3f); a('global_load_dword', 'v80', 'v2', 's[12:13]')
        a('s_mov_b64', 'exec', 3); a('global_load_dword', 'v82', 'v1', H_)
        a('s_mov_b64', 'exec', 1); a('global_load_dword', 'v85', 'v1', D_)
        a('s_load_dword', 's8', D_, 0)
    else:
        a('v_lshlrev_b32', 'v1', 21, 'v0')
        a('s_mov_b64', 'exec', 3); a('global_load_dword', 'v81', 'v1', Q_)
        a('s_mov_b64', 'exec', -1)
        a('v_lshl_add_u32', 'v1', 'v0', 9, 's7'); a('v_mul_u32_u24', 'v1', 2560, 'v1')
        a('s_mov_b64', 'exec', 0xf); a('global_load_dword', 'v86', 'v1', OUT_)
        a('v_add_u32', 'v1', 1920*2560, 'v1'); a('s_mov_b64', 'exec', 1); a('global_load_dword', 'v86', 'v1', OUT_)
    a('s_mov_b64', 'exec', -1)
def bar0(a):
    a.wait(lgkm=0)
    a('s_add_u32', 's38', 's38', WS_SHIFT); a('s_addc_u32', 's39', 's39', 0)
    a('s_add_u32', 's54', 's38', WS_EP); a('s_addc_u32', 's55', 's39', 0)
    a('s_load_dword', 's52', 's[54:55]', 0)
    stamp(a, 1)
    a('s_barrier')

CODE_HI = [6144]
def entry(a):
    a.raw(f".globl {KNAME}\n.p2align 12\n.type {KNAME},@function\n{KNAME}:")
    a('s_cmp_ge_u32', 's2', 256); a('s_cbranch_scc1', 'Lexit')
    if STAMPS[0]:
        for i in range(1, 16): a('s_mov_b32', s(64+2*i), 0)
    stamp(a, 0)
    a('s_load_dwordx16', 's[16:31]', 's[0:1]', 0)
    a('s_load_dwordx8', 's[32:39]', 's[0:1]', 64)
    a('s_getpc_b64', 's[42:43]'); a('s_and_b32', 's42', 's42', 0xfffff000)
    a('s_bitcmp1_b32', 's2', 3); a('s_cselect_b32', 's8', CODE_HI[0], 0); a('s_add_u32', 's42', 's42', 's8'); a('s_addc_u32', 's43', 's43', 0)
    a('v_lshlrev_b32', 'v2', 4, 'v0'); a('v_mov_b32', 'v3', 's43')
    a('v_add_co_u32', 'v2', 'vcc', 's42', 'v2'); a('v_addc_co_u32', 'v3', 'vcc', 0, 'v3', 'vcc')
    a('global_load_dwordx4', 'v[164:167]', 'v[2:3]', 'off')
    a('v_lshrrev_b32', 'v1', 6, 'v0'); a('v_and_b32', 'v0', 63, 'v0')
    a('v_readfirstlane_b32', 's3', 'v1')
    a('s_and_b32', 's4', 's2', 7); a('s_bfe_u32', 's5', 's2', (1 << 16) | 3); a('s_lshr_b32', 's6', 's2', 4)
    a('s_lshl3_add_u32', 's7', 's6', 's4')
    tag_consts(a)
    a('s_mul_i32', 's53', 's4', 80); a('s_mul_i32', 's8', 's6', 5); a('s_add_u32', 's53', 's53', 's8'); a('s_lshl1_add_u32', 's53', 's5', 's53')
    a('v_lshlrev_b32', 'v1', 2, 'v0'); a('v_mov_b32', 'v2', 0)
    a('ds_write_b32', 'v1', 'v2', mods=f'offset:{L_CNT}')
    a('s_cmp_lg_u32', 's5', 0); a('s_cbranch_scc1', 'LentO')
    a('s_cmp_ge_u32', 's3', 8); a('s_cbranch_scc1', 'LentP' if PF[0] else 'LauxE')
    R = RegAlloc(1, 160)
    a('s_lshl_b32', 's9', 's3', 7); a('s_add_u32', 's9', 's9', 's7'); a('s_mul_i32', 's10', 's9', 1280)
    vo = row_offsets(a, R, 's10', 1024*1280)
    a('s_mul_i32', 's11', 's3', 3072); a('s_add_u32', 's11', 's11', L_XR); a('s_mov_b32', 'm0', 's11')
    if XDELAY[0]: a('s_sleep', XDELAY[0])
    for t in range(3): a('global_load_lds_dwordx4', v(vo[t]), X_, mods=f'offset:{1024*t}')
    a('s_branch', 'LA1')
    if PF[0]:
        a.label('LentP')
        a('s_mul_i32', 's10', 's6', 128*1280); a('s_mul_i32', 's8', 's4', 160); a('s_add_u32', 's10', 's10', 's8')
        a('s_bitcmp1_b32', 's3', 0); a('s_cselect_b32', 's8', 156, 0); a('s_add_u32', 's10', 's10', 's8'); a('s_add_u32', 's10', 's10', 64*1280)
        a('v_mul_u32_u24', 'v1', 1280, 'v0'); a('v_add_u32', 'v1', 's10', 'v1')
        a('s_bitcmp1_b32', 's3', 1); a('s_cselect_b64', 's[12:13]', V_, K_)
        a('global_load_dword', 'v87', 'v1', 's[12:13]')
        a('s_branch', 'LauxE')
    a.label('LentO')
    a('s_cmp_ge_u32', 's3', 9); a('s_cbranch_scc1', 'Lbar0')
    R = RegAlloc(1, 160)
    vo = quad_voff(a, R); t = R.alloc()
    a('s_mul_i32', 's10', 's6', 128*1280); a('s_mul_i32', 's8', 's4', 160); a('s_add_u32', 's10', 's10', 's8')
    a('s_sub_u32', 's8', 's10', 4*1280); a('v_add_u32', v(t), 's8', v(vo))
    NB = 2048*1280
    srd(a, 44, 's24', 's25', NB); srd(a, 48, 's26', 's27', NB)
    a('s_mov_b32', 'exec_hi', 0xff)
    a('s_cmp_eq_u32', 's3', 8); a('s_cbranch_scc1', 'LentH')
    if PF[0]:
        a('s_mul_i32', 's11', 's3', 8*1280); a('s_add_u32', 's11', 's11', 's10')
        a('s_mul_i32', 's12', 's3', 1296); a('s_add_u32', 's12', 's12', L_KI + 1296)
    else:
        a('s_mul_i32', 's11', 's3', 16*1280); a('s_add_u32', 's11', 's11', 's10')
        a('s_mul_i32', 's12', 's3', 2*1296); a('s_add_u32', 's12', 's12', L_KI + 1296)
    for k in range(4):
        a('s_mov_b32', 'm0', 's12')
        a('buffer_load_dwordx4', v(vo), 's[44:47]', 's11', mods='offen lds')
        a('s_add_u32', 'm0', 's12', L_VI - L_KI - 1296)
        a('buffer_load_dwordx4', v(vo), 's[48:51]', 's11', mods='offen lds')
        if k < 3:
            if PF[0] and k == 1:
                a('s_add_u32', 's11', 's11', 60*1280); a('s_addk_i32', 's12', 8*1296 - 640)
            else:
                a('s_addk_i32', 's11', 4*1280); a('s_addk_i32', 's12', 640 if k != 1 else 656)
    a('s_branch', 'LentX')
    a.label('LentH')
    a('s_mov_b32', 'm0', L_KI + 640)
    a('buffer_load_dwordx4', v(t), 's[44:47]', 0, mods='offen lds')
    a.label('LentX')
    a('s_mov_b64', 'exec', -1)
    a.label('Lbar0')
    bar0(a)
    a('s_cmp_ge_u32', 's3', 10); a('s_cbranch_scc1', 'LauxO')
    a('s_branch', 'LB1')
    a.label('Lexit')
    a('s_endpgm')

def h_copy(a, R, slc, sc):
    mk = R.mark()
    vo = R.alloc(); Hd = R.alloc(4); t = R.alloc()
    a('s_lshl_b32', 's8', sc, 1); a('s_add_u32', 's8', 's8', 2); a('v_lshl_add_u32', v(vo), 'v0', 4, 's8')
    a('s_and_b32', 's12', sc, 1); a('s_mul_i32', 's12', 's12', 529*16); a('s_lshr_b32', 's13', sc, 1); a('s_mul_i32', 's13', 's13', 264*16)
    a('s_add_u32', 's12', 's12', 's13'); a('s_mul_i32', 's13', slc, HSZ); a('s_add_u32', 's12', 's12', 's13'); a('s_add_u32', 's12', 's12', L_H)
    a('s_add_u32', 's8', 's53', slc); a('s_lshl_b32', 's8', 's8', 12)
    a('s_load_dwordx2', 's[56:57]', H_, 's8')
    a('s_add_u32', 's44', 's30', 's8'); a('s_addc_u32', 's45', 's31', 0); a('s_and_b32', 's45', 's45', 0xffff)
    a('s_mov_b32', 's46', 4096); a('s_mov_b32', 's47', 0x20000)
    a('s_add_u32', 'm0', 's12', 128)
    for b in range(4): a('buffer_load_dwordx4', v(vo), 's[44:47]', 0, mods=f'offen offset:{1024*b} lds')
    for k in range(4): a('v_mov_b32', v(Hd+k), 0)
    sk = newlabel('Lh')
    a('s_cmp_lg_u32', sc, 0); a('s_cbranch_scc1', sk)
    a('s_mul_i32', 's8', slc, USZ); a('s_add_u32', 's8', 's8', L_U + 32*144)
    a('v_lshl_add_u32', v(t), 'v0', 4, 's8')
    a('ds_write_b128', v(t), v(Hd, 4))
    a('s_mov_b64', 'exec', 0xff); a('ds_write_b128', v(t), v(Hd, 4), mods='offset:1024'); a('s_mov_b64', 'exec', -1)
    a.label(sk)
    a('s_lshl_b32', 's8', sc, 4); a('s_sub_u32', 's8', 48, 's8')
    a('v_lshl_add_u32', v(t), 'v0', 4, 's12')
    a.wait(lgkm=0)
    a('s_lshl_b64', 's[56:57]', 's[56:57]', 's8')
    a('v_writelane_b32', v(Hd+2), 's56', 7); a('v_writelane_b32', v(Hd+3), 's57', 7)
    a('s_mov_b64', 'exec', 0xff)
    a('ds_write_b128', v(t), v(Hd, 4))
    a('s_mov_b64', 'exec', -1)
    R.release(mk)

def h_srd(a, slc):
    a('s_add_u32', 's8', 's53', slc); a('s_lshl_b32', 's8', 's8', 12)
    a('s_add_u32', 's44', 's30', 's8'); a('s_addc_u32', 's45', 's31', 0); a('s_and_b32', 's45', 's45', 0xffff)
    a('s_mov_b32', 's46', 4096); a('s_mov_b32', 's47', 0x20000)
def h_load(a, D, vo, vo2, imm):
    a('buffer_load_dwordx4', v(D, 4), v(vo), 's[44:47]', 0, mods=f'offen offset:{imm}')
    a('buffer_load_dwordx2', v(D+4, 2), v(vo2), 's[44:47]', 0, mods=f'offen offset:{imm}')
def h_expand(a, D, T, wa, imm):
    CB = [0, 529*16, 264*16, 793*16]
    for i in range(4): a('v_alignbit_b32', v(T+i), v(D+i+1), v(D+i), 16)
    a('ds_write_b128', v(wa), v(T, 4), mods=f'offset:{imm + CB[0]}')
    for i in range(4): a('v_alignbit_b32', v(T+4+i), v(D+i+2), v(D+i+1), 16)
    a('ds_write_b128', v(wa), v(T+4, 4), mods=f'offset:{imm + CB[2]}')
    a('ds_write_b128', v(wa), v(D+2, 4), mods=f'offset:{imm + CB[3]}')
    for i in range(4): a('v_mov_b32', v(T+8+i), v(D+i+1))
    a('ds_write_b128', v(wa), v(T+8, 4), mods=f'offset:{imm + CB[1]}')
def u_pad(a, slc, Zr, t):
    a('s_mul_i32', 's8', slc, USZ); a('s_add_u32', 's8', 's8', L_U + 32*144)
    a('v_lshl_add_u32', v(t), 'v0', 4, 's8')
    a('ds_write_b128', v(t), v(Zr, 4))
    a('s_mov_b64', 'exec', 0xff); a('ds_write_b128', v(t), v(Zr, 4), mods='offset:1024'); a('s_mov_b64', 'exec', -1)

def pk_A1(a):
    a.label('LA1')
    a('s_setprio', 2)
    R = RegAlloc(1, 150)
    coop_tables(a, R, L_TABH, L_TW, a3=False)
    bar0(a)
    HE = 152
    R = RegAlloc(1, 152)
    rd = R.alloc(); va = R.alloc(); vb = R.alloc(); t = R.alloc(); q = R.alloc()
    Hs = R.alloc(16); Gs = R.alloc(16); TW = R.alloc(24)
    a('v_lshlrev_b32', v(rd), 4, 'v0'); a('v_add_u32', v(t), L_TABH, v(rd)); a('v_add_u32', v(rd), L_TW, v(rd))
    Mre, Mim = m2_mats(a, R, False, None)
    epoch_ready(a)
    for k in (3, 0, 1, 2):
        a('ds_read_b128', v(Hs+4*k, 4), v(t), mods=f'offset:{1024*k}'); a('ds_read_b128', v(Gs+4*k, 4), v(t), mods=f'offset:{4096+1024*k}')
    for k in (2, 3, 4, 5, 0, 1): a('ds_read_b128', v(TW+4*k, 4), v(rd), mods=f'offset:{1024*k}')
    a('v_lshrrev_b32', v(va), 2, 'v0'); a('v_lshrrev_b32', v(q), 4, 'v0')
    a('v_bfe_u32', v(vb), 'v0', 1, 1); a('v_mul_u32_u24', v(vb), 1408, v(vb))
    a('v_and_b32', v(t), 1, 'v0'); a('v_lshl_add_u32', v(vb), v(t), 3, v(vb)); a('v_add_u32', v(vb), 's11', v(vb))
    tra = d1_addrs(a, R, va, vb)
    Dr = R.alloc(10)
    a('s_lshr_b32', 's14', 's3', 2); a('s_and_b32', 's15', 's3', 3); h_srd(a, 's14')
    a('s_lshl_b32', 's8', 's15', 10); a('v_lshl_add_u32', v(Dr), 'v0', 4, 's8'); a('v_lshlrev_b32', v(Dr+1), 4, 'v0')
    a('v_subrev_u32', v(Dr+2), 128, v(Dr+1)); a('v_subrev_u32', v(Dr+3), 112, v(Dr+1))
    a('buffer_load_dwordx4', v(HE, 4), v(Dr), 's[44:47]', 0, mods='offen'); a('buffer_load_dwordx2', v(HE+4, 2), v(Dr), 's[44:47]', 0, mods='offen offset:16')
    h_load(a, HE+6, Dr+2, Dr+3, 0)
    a('v_mov_b32', v(va), L_CNT + 4*C_X); a('v_mov_b32', v(vb), 1)
    stamp(a, 2)
    a.wait(vm=4)
    stamp(a, 3)
    for e in (0, 1, 2, 3, 4): a('ds_read_b64_tr_b16', v(Dr + 2*((e + 4) % 5), 2), v(tra[e]))
    lds_cnt_add(a, va, vb)
    ea0, ea1 = ei_addrs(a, R, 2624, dup=False)
    P0 = R.alloc(8); A1 = R.alloc(24); PK = R.alloc(12); X = R.alloc(8)
    a('v_mfma_f32_16x16x16_bf16', v(P0, 4), v(Dr+8, 2), v(Hs+12, 2), 0)
    a('v_mfma_f32_16x16x16_bf16', v(P0+4, 4), v(Dr+8, 2), v(Gs+12, 2), 0)
    tr2 = R.alloc(); go = R.alloc()
    a('v_bfe_u32', v(tr2), 'v0', 2, 2); a('v_mul_u32_u24', v(tr2), 2624, v(tr2))
    a('v_and_b32', v(t), 3, 'v0'); a('v_lshl_add_u32', v(tr2), v(t), 3, v(tr2))
    a('v_lshl_add_u32', v(tr2), v(q), 5, v(tr2))
    PAIR = {1: (0, 4), 2: (1, 3), 0: (6, 6)}
    for k5 in (1, 2, 0):
        for ri, M in enumerate((Hs, Gs)):
            a('v_mfma_f32_16x16x32_bf16', v(A1+8*k5+4*ri, 4), v(Dr, 4), v(M + 2*PAIR[k5][0], 4), v(P0+4*ri, 4))
        for ri, M in enumerate((Hs, Gs)):
            a('v_mfma_f32_16x16x32_bf16', v(A1+8*k5+4*ri, 4), v(Dr+4, 4), v(M + 2*PAIR[k5][1], 4), v(A1+8*k5+4*ri, 4))
        if k5 == 1:
            a('s_lshl_b32', 's8', 's3', 7); a('s_add_u32', 's8', 's8', L_EI); a('v_add_u32', v(tr2), 's8', v(tr2))
            a('s_mul_i32', 's8', 's7', TBLK); a('s_lshl_b32', 's12', 's3', 10); a('s_add_u32', 's8', 's8', 's12')
            a('v_lshl_add_u32', v(go), 'v0', 4, 's8')
    A2 = Hs
    for k5 in (1, 2, 0):
        for r in range(4):
            re, im, c, s_ = A1+8*k5+r, A1+8*k5+4+r, TW+8*k5+r, TW+8*k5+4+r
            a('v_mul_f32', v(X+r), v(re), v(c)); a('v_mul_f32', v(X+4+r), v(im), v(c))
            a('v_fmac_f32', v(X+r), v(im), v(s_)); a('v_fma_f32', v(X+4+r), '-' + v(re), v(s_), v(X+4+r))
            a('v_cvt_pk_bf16_f32', v(PK+4*k5+r), v(X+r), v(X+4+r))
        a('v_mfma_f32_16x16x32_bf16', v(A2+8*k5, 4), v(Mre, 4), v(PK+4*k5, 4), 0)
        a('v_mfma_f32_16x16x32_bf16', v(A2+8*k5+4, 4), v(Mim, 4), v(PK+4*k5, 4), 0)
    for k5 in (1, 2, 0):
        for r in range(4): a('v_cvt_pk_bf16_f32', v(PK+4*k5+r), v(A2+8*k5+r), v(A2+8*k5+4+r))
        if k5: a('ds_write_b128', v(ea0), v(PK+4*k5, 4), mods=f'offset:{1024*(k5-1)}')
        else: a('ds_write_b128', v(ea1), v(PK, 4))
    stamp(a, 4)
    subbar(a, C_A1, 8, X, X+1)
    O = A1
    for it in range(3):
        if it == 2:
            skip = newlabel('La1s'); a('s_cmp_gt_u32', 's3', 4); a('s_cbranch_scc1', skip)
        a('ds_read_b64_tr_b16', v(O+4*it, 2), v(tr2), mods=f'offset:{1024*it}')
        a('ds_read_b64_tr_b16', v(O+4*it+2, 2), v(tr2), mods=f'offset:{1024*it + 4*2624}')
        if it == 1:
            for j in range(4): tag1(a, O+j, j)
            a('global_store_dwordx4', v(go), v(O, 4), WS_, mods=SC)
            a('v_add_u32', v(go), 8192, v(go))
            for j in range(4): tag1(a, O+4+j, j)
            a('global_store_dwordx4', v(go), v(O+4, 4), WS_, mods=SC)
            a('v_add_u32', v(go), 8192, v(go))
    for j in range(4): tag1(a, O+8+j, j)
    a('s_cmp_lt_u32', 's3', 4); a('s_cselect_b32', 'exec_hi', -1, 0)
    a('global_store_dwordx4', v(go), v(O+8, 4), WS_, mods=SC)
    a('s_mov_b64', 'exec', -1)
    a.label(skip)
    stamp(a, 5)
    a('s_setprio', 0)
    R = RegAlloc(1, 60)
    coop_tables(a, R, L_T3H, L_T3W, a3=True)
    drained(a, C_A1D, 1, 2)
    stamp(a, 6)
    if WARM[0] > 1:
        lw_ = newlabel('Le'); a('s_cmp_lg_u32', 's3', 7); a('s_cbranch_scc1', lw_)
        warm(a, True)
        a.label(lw_)
    R = RegAlloc(1, 60)
    T = R.alloc(12); wa = R.alloc(); tt = R.alloc()
    a('s_lshr_b32', 's14', 's3', 2); a('s_and_b32', 's15', 's3', 3)
    a('s_mul_i32', 's8', 's14', HSZ); a('s_add_u32', 's8', 's8', L_H); a('v_lshl_add_u32', v(tt), 'v0', 4, 's8')
    a('s_lshl_b32', 's8', 's15', 10); a('v_add_u32', v(wa), 's8', v(tt))
    h_expand(a, HE, T, wa, 128)
    skh = newlabel('Lh'); a('s_cmp_lg_u32', 's15', 0); a('s_cbranch_scc1', skh)
    a('s_mov_b64', 'exec', 0xff)
    h_expand(a, HE+6, T, tt, 0)
    a('s_mov_b64', 'exec', -1)
    for k in range(4): a('v_mov_b32', v(T+k), 0)
    u_pad(a, 's14', T, wa)
    a.label(skh)
    a('s_cmp_ge_u32', 's7', 36); a('s_cbranch_scc1', 'LB2')
    a('s_cmp_ge_u32', 's3', 4); a('s_cbranch_scc1', 'LB2')
    arrive(a, C_H0, 1, 2)
    a('s_add_u32', 's9', 's7', 128); a('s_mov_b32', 's10', 's3')
    a('s_mov_b32', 's62', L_P1); a('s_mov_b32', 's63', L_P1 + 16384); a('s_mov_b32', 's61', L_CNT + 4*(C_A2+4))
    a('s_branch', 'LA2c')

def gen_A3_regs(a):
    K = A3K(); PIT = 2640
    R = RegAlloc(100, 164); T = RegAlloc(1, 100)
    t = T.alloc(); n = T.alloc(); q = T.alloc(); vb = T.alloc()
    K.go = R.alloc(); K.go2 = R.alloc(); K.go3 = R.alloc(); K.lw = R.alloc()
    a('s_mul_i32', 's8', 's7', TBLK); a('s_lshl_b32', 's12', 's3', 10); a('s_add_u32', 's12', 's8', 's12')
    a('v_lshl_add_u32', v(K.go), 'v0', 4, 's12'); a('v_add_u32', v(K.go2), 8192, v(K.go))
    a('s_add_u32', 's8', 's8', TBLK - 16)
    a('v_add_u32', v(K.go3), 16384, v(K.go)); a('v_min_u32', v(K.go3), 's8', v(K.go3))
    a('v_and_b32', v(t), 1, 'v0'); a('v_mul_u32_u24', v(K.lw), 4*PIT, v(t))
    a('v_lshrrev_b32', v(t), 1, 'v0'); a('v_lshl_add_u32', v(K.lw), v(t), 2, v(K.lw))
    a('s_lshl_b32', 's8', 's3', 7); a('s_add_u32', 's8', 's8', L_EI); a('v_add_u32', v(K.lw), 's8', v(K.lw))
    K.ea0, K.ea1 = ei_addrs(a, R, PIT, dup=True)
    a('s_lshl_b32', 's9', 's3', 7); a('s_add_u32', 's9', 's9', 's7'); a('s_mul_i32', 's10', 's9', 2560)
    a('s_mul_i32', 's11', 's3', 3072); a('s_add_u32', 's11', 's11', L_XR)
    K.vo = row_offsets(a, R, 's10', 1024*2560)
    K.Mre, K.Mim = m2_mats(a, R, True, 2.0/(2048*640))
    K.rd = R.alloc()
    a('v_and_b32', v(n), 15, 'v0'); a('v_lshrrev_b32', v(q), 4, 'v0')
    a('v_lshrrev_b32', v(vb), 5, 'v0'); a('v_mul_u32_u24', v(vb), 1408, v(vb))
    a('v_and_b32', v(t), 1, v(q)); a('v_lshl_add_u32', v(vb), v(t), 3, v(vb)); a('v_add_u32', v(vb), 's11', v(vb))
    K.wa = d1_addrs(a, R, n, vb)
    a('v_lshl_add_u32', v(K.rd), 'v0', 4, 's11')
    K.TW = R.alloc(24)
    return K

def pk_A3(a):
    a.label('LA3')
    K = gen_A3_regs(a)
    PIT = 2640
    R = RegAlloc(1, 100)
    t = R.alloc(); u = R.alloc(); IN = R.alloc(12); X = R.alloc(8); F = R.alloc(20)
    await_cnt(a, C_A1D, 8, t, u)
    sk2 = newlabel('La3w'); a('s_cmp_ge_u32', 's7', 36); a('s_cbranch_scc1', sk2)
    await_cnt(a, C_A2+4+3, 4, t, u)
    a.label(sk2)
    a('v_lshlrev_b32', v(t), 4, 'v0'); a('v_add_u32', v(u), L_T3W, v(t)); a('v_add_u32', v(t), L_T3H, v(t))
    for k in range(5): a('ds_read_b128', v(F+4*k, 4), v(t), mods=f'offset:{1024*k}')
    for k in range(6): a('ds_read_b128', v(K.TW+4*k, 4), v(u), mods=f'offset:{1024*k}')
    wait_lds(a, C_A2+3, 4, t, u)
    if A3ALL[0]:
        arrive(a, C_GT2, t, u); wait_lds(a, C_GT2, A3ALL[0], t, u)
    stamp(a, 11)
    a.wait(vm=0)
    a('s_setprio', 2)
    def loads():
        a('global_load_dwordx4', v(IN, 4), v(K.go), WS_, mods=SC)
        a('global_load_dwordx4', v(IN+4, 4), v(K.go2), WS_, mods=SC)
        a('global_load_dwordx4', v(IN+8, 4), v(K.go3), WS_, mods=SC)
    poll_tags(a, loads, [IN, IN+4, IN+8], t, 2, LSLEEP[0])
    stamp(a, 12)
    for it in range(3):
        if it == 2:
            skip = newlabel('La3s'); a('s_cmp_gt_u32', 's3', 4); a('s_cbranch_scc1', skip)
            a('s_cmp_lt_u32', 's3', 4); a('s_cselect_b32', 'exec_hi', -1, 0)
        for x in range(4): a('ds_write_b32', v(K.lw), v(IN+4*it+x), mods=f'offset:{1024*it + PIT*x}')
    a('s_mov_b64', 'exec', -1)
    a.label(skip)
    subbar(a, C_A3, 8, t, u)
    stamp(a, 13)
    Z = IN; A1 = R.alloc(24); PK = Z; Y = R.alloc(20); P0 = R.alloc(4)
    a('ds_read_b128', v(Z, 4), v(K.ea1))
    a('ds_read_b128', v(Z+4, 4), v(K.ea0)); a('ds_read_b128', v(Z+8, 4), v(K.ea0), mods='offset:1024')
    MF = 'v_mfma_f32_16x16x32_bf16'
    for k5 in range(3):
        a(MF, v(A1+8*k5, 4), v(Z+4*k5, 4), v(K.Mre, 4), 0); a(MF, v(A1+8*k5+4, 4), v(Z+4*k5, 4), v(K.Mim, 4), 0)
    for k5 in range(3):
        for r in range(4):
            re, im, c, s_ = A1+8*k5+r, A1+8*k5+4+r, K.TW+8*k5+r, K.TW+8*k5+4+r
            a('v_mul_f32', v(X+r), v(re), v(c)); a('v_mul_f32', v(X+4+r), v(im), v(c))
            a('v_fma_f32', v(X+r), '-' + v(im), v(s_), v(X+r)); a('v_fmac_f32', v(X+4+r), v(re), v(s_))
            if r & 1:
                a('v_cvt_pk_bf16_f32', v(PK+4*k5+(r >> 1)), v(X+r-1), v(X+r))
                a('v_cvt_pk_bf16_f32', v(PK+4*k5+2+(r >> 1)), v(X+4+r-1), v(X+4+r))
        if k5 == 0: a(MF, v(P0, 4), v(PK, 4), v(F, 4), 0)
        else:
            for e in range(5):
                a(MF, v(Y+4*e, 4), v(PK+4*k5, 4), v(F+4*((e*k5) % 5), 4), v(P0, 4) if k5 == 1 else v(Y+4*e, 4))
    for e in range(5):
        a('v_cvt_pk_bf16_f32', v(A1+2*e), v(Y+4*e), v(Y+4*e+1)); a('v_cvt_pk_bf16_f32', v(A1+2*e+1), v(Y+4*e+2), v(Y+4*e+3))
        a('ds_write_b64', v(K.wa[e]), v(A1+2*e, 2))
    for k in range(3): a('ds_read_b128', v(Z+4*k, 4), v(K.rd), mods=f'offset:{1024*k}')
    a('global_store_dwordx4', v(K.vo[0]), v(Z, 4), OUT_, mods=SC)
    a('s_mov_b32', 'exec_lo', 0xff00ffff)
    a('global_store_dwordx4', v(K.vo[1]), v(Z+4, 4), OUT_, mods='offset:1024 sc1')
    a('s_mov_b32', 'exec_lo', -1); a('s_mov_b32', 'exec_hi', 0xff)
    a('global_store_dwordx4', v(K.vo[2]), v(Z+8, 4), OUT_, mods='offset:2048 sc1')
    stamp(a, 14)
    ske = newlabel('Lep')
    a('s_mov_b64', 'exec', 1)
    a('s_or_b32', 's8', 's2', 's3'); a('s_cmp_lg_u32', 's8', 0); a('s_cbranch_scc1', ske)
    a('v_mov_b32', v(t), WS_EP); a('v_mov_b32', v(u), 's52')
    a('global_store_dword', v(t), v(u), WS_, mods=SC)
    a.label(ske)
    a('s_mov_b64', 'exec', -1)

def pk_B1(a):
    a.label('LB1')
    a('s_setprio', 2)
    R = RegAlloc(1, 160)
    t = R.alloc(); u = R.alloc()
    lb, uo, pr, od = b13_lane(a, R, WS_U)
    CF = R.alloc(4); C = R.alloc(8)
    a('s_mul_i32', 's8', 's4', 640); a('v_lshl_add_u32', v(t), v(pr), 4, 's8')
    a('global_load_dwordx4', v(CF, 4), v(t), SK_)
    msk = R.alloc(); a('v_mov_b32', v(msk), 0xffff0000)
    epoch_ready(a)
    stamp(a, 2)
    for j in range(4):
        for ch in range(2):
            src = CF + 2*ch + (j >> 1)
            if j & 1: a('v_and_b32', v(C+2*j+ch), v(msk), v(src))
            else: a('v_lshlrev_b32', v(C+2*j+ch), 16, v(src))
    subbar(a, C_B1, 10, t, u, vm=True)
    stamp(a, 3)
    Kd = R.alloc(12); Vd = R.alloc(8); Kf = R.alloc(22); T = R.alloc(4); O = R.alloc(8); res = R.alloc(4); uo2 = R.alloc()
    for i in range(11): a('ds_read_b32', v(Kd+i), v(lb), mods=f'offset:{(800 + 160*i if i < 3 else 1296 + 160*(i-3))}')
    for i in range(8): a('ds_read_b32', v(Vd+i), v(lb), mods=f'offset:{L_VI - L_KI + 160*i}')
    a('v_add_u32', v(uo2), 4096, v(uo))
    def unp(i):
        a('v_lshlrev_b32', v(Kf+2*i), 16, v(Kd+i)); a('v_and_b32', v(Kf+2*i+1), v(msk), v(Kd+i))
    for i in range(3): unp(i)
    for i in range(8):
        unp(i+3)
        for ch in range(2):
            acc = T + ch; dst = res + 2*(i & 1) + ch
            a('v_mul_f32', v(acc), v(Kf+2*i+ch), v(C+6+ch))
            for j in (2, 1, 0): a('v_fmac_f32', v(acc), v(Kf+2*(i+3-j)+ch), v(C+2*j+ch))
            if ch: a('v_and_b32', v(T+2+ch), v(msk), v(Vd+i))
            else: a('v_lshlrev_b32', v(T+2+ch), 16, v(Vd+i))
            a('v_mul_f32', v(dst), v(acc), v(T+2+ch))
        if i & 1:
            for ch in range(2):
                d = O+4*ch+3-(i >> 1)
                a('v_cvt_pk_bf16_f32', v(d), v(res+2+ch), v(res+ch)); tag1(a, d, 3-(i >> 1))
    stamp(a, 4)
    a('global_store_dwordx4', v(uo), v(O, 4), WS_, mods=SC)
    a('global_store_dwordx4', v(uo2), v(O+4, 4), WS_, mods=SC)
    if UH[0]: hint(a, L_CNT + 4*C_HU, 10, 's8', t, u, 's96')
    stamp(a, 5)
    a('s_setprio', 0)
    a('s_branch', 'LB2')

def pk_auxO(a):
    a.label('LauxO')
    R = RegAlloc(1, 120); t = R.alloc(); u = R.alloc(); vo = R.alloc(); vh = R.alloc(); vh2 = R.alloc(); wa = R.alloc(); wh = R.alloc()
    T = R.alloc(12); D = R.alloc(54)
    a('s_sub_u32', 's62', 's3', 10); a('s_lshl_b32', 's62', 's62', 11)
    a('v_lshlrev_b32', v(t), 4, 'v0'); a('v_add_u32', v(vo), 's62', v(t)); a('v_subrev_u32', v(vh), 128, v(t)); a('v_subrev_u32', v(vh2), 112, v(t))
    a('v_add_u32', v(wh), L_H, v(t)); a('v_add_u32', v(wa), 's62', v(wh))
    if HGATE[0]: await_cnt(a, C_B1, HGATE[0], t, u)
    a('v_lshlrev_b32', v(t), 4, 'v0')
    for lc in range(3):
        h_srd(a, lc)
        for b in range(2):
            a('buffer_load_dwordx4', v(D+18*lc+6*b, 4), v(vo), 's[44:47]', 0, mods=f'offen offset:{1024*b}')
            a('buffer_load_dwordx2', v(D+18*lc+6*b+4, 2), v(vo), 's[44:47]', 0, mods=f'offen offset:{1024*b+16}')
        h_load(a, D+18*lc+12, vh, vh2, 0)
    epoch_ready(a)
    for k in range(4): a('v_mov_b32', v(T+k), 0)
    for lc in range(3): u_pad(a, lc, T, t)
    for lc in range(3):
        for b in range(2): h_expand(a, D+18*lc+6*b, T, wa, lc*HSZ + 128 + 1024*b)
        a('s_mov_b64', 'exec', 0xff)
        h_expand(a, D+18*lc+12, T, wh, lc*HSZ)
        a('s_mov_b64', 'exec', -1)
    arrive(a, C_H, t, u)
    stamp(a, 6)
    a('s_branch', 'LB2')

def pk_B3(a):
    a.label('LB3')
    a('s_cmp_ge_u32', 's3', 10); a('s_cbranch_scc1', 'Lfin')
    R = RegAlloc(1, 160)
    t = R.alloc(); u = R.alloc()
    lb, uo, pr, od = b13_lane(a, R, WS_U)
    uo2 = R.alloc(); a('v_add_u32', v(uo2), 4096, v(uo))
    Z = R.alloc(8); oo = R.alloc(); rd = R.alloc(); msk = R.alloc(); a('v_mov_b32', v(msk), 0xffff0000)
    a('v_mul_u32_u24', v(t), 26, 'v0'); a('v_lshrrev_b32', v(t), 8, v(t))
    a('v_mul_u32_u24', v(oo), 2560 - 160, v(t)); a('v_lshl_add_u32', v(oo), 'v0', 4, v(oo))
    a('s_lshl_b32', 's8', 's6', 3); a('s_add_u32', 's8', 's8', 's3'); a('s_mul_i32', 's8', 's8', 16*2560)
    a('s_mul_i32', 's9', 's4', 160); a('s_add_u32', 's8', 's8', 's9'); a('s_add_u32', 's8', 's8', 1280); a('v_add_u32', v(oo), 's8', v(oo))
    a('s_mul_i32', 's8', 's3', 2*1296); a('s_add_u32', 's8', 's8', L_VI); a('v_lshl_add_u32', v(rd), 'v0', 4, 's8')
    await_cnt(a, C_QL, 8, t, u)
    Qd = R.alloc(8); Qf = R.alloc(16); T = R.alloc(4); O = R.alloc(16)
    for i in range(8): a('ds_read_b32', v(Qd+i), v(lb), mods=f'offset:{L_VI - L_KI + 160*i}')
    for i in range(8):
        a('v_lshlrev_b32', v(Qf+2*i), 16, v(Qd+i)); a('v_and_b32', v(Qf+2*i+1), v(msk), v(Qd+i))
    def loads():
        a('global_load_dwordx4', v(Z, 4), v(uo), WS_, mods=SC); a('global_load_dwordx4', v(Z+4, 4), v(uo2), WS_, mods=SC)
    wait_lds(a, C_HZ, 6, t, u)
    stamp(a, 11)
    a.wait(vm=0)
    a('s_setprio', 2)
    poll_tags(a, loads, [Z, Z+4], t, 2, LSLEEP[0])
    stamp(a, 12)
    for i in range(8):
        for ch in range(2):
            src = Z + 4*ch + 3 - (i >> 1)
            if i & 1: a('v_lshlrev_b32', v(T+ch), 16, v(src))
            else: a('v_and_b32', v(T+ch), v(msk), v(src))
            a('v_mul_f32', v(T+ch), v(T+ch), v(Qf+2*i+ch))
        a('v_cvt_pk_bf16_f32', v(Qd+i), v(T), v(T+1))
        a('ds_write_b32', v(lb), v(Qd+i), mods=f'offset:{L_VI - L_KI + 160*i}')
    subbar(a, C_Q, 10, t, u)
    stamp(a, 13)
    a('s_cmp_ge_u32', 's3', 8); a('s_cbranch_scc1', 'Lfin')
    a('s_mov_b32', 'exec_hi', 0xff)
    for k in range(4): a('ds_read_b128', v(O+4*k, 4), v(rd), mods=f'offset:{(k >> 1)*1296 + (k & 1)*640}')
    for k in range(4):
        a('global_store_dwordx4', v(oo), v(O+4*k, 4), OUT_, mods=SC)
        if k < 3: a('v_add_u32', v(oo), 4*2560, v(oo))
    stamp(a, 14)
    a('s_mov_b64', 'exec', -1)

def pk_B2(a):
    a.label('LB2')
    R = RegAlloc(1, 128)
    t = R.alloc(); u = R.alloc(); lw = R.alloc(); U = R.alloc(8); go = R.alloc(); fa = R.alloc(); Dv = R.alloc(); msk = R.alloc()
    n = R.alloc(); q = R.alloc(); aa = R.alloc(); ba = R.alloc(); ba2 = R.alloc(); ia = R.alloc(); ra = R.alloc()
    a('s_lshr_b32', 's9', 's3', 2); a('s_and_b32', 's10', 's3', 3)
    a('s_mul_i32', 's15', 's9', USZ); a('s_add_u32', 's15', 's15', L_U)
    a('v_lshrrev_b32', v(t), 3, 'v0'); a('v_lshlrev_b32', v(t), 4, v(t)); a('v_lshl_add_u32', v(lw), 'v0', 4, v(t))
    a('s_mul_i32', 's8', 's10', 8*144); a('s_add_u32', 's8', 's8', 's15'); a('v_add_u32', v(lw), 's8', v(lw))
    a('s_add_u32', 's13', 's53', 's9')
    a('s_lshl_b32', 's8', 's13', 12); a('s_lshl_b32', 's12', 's10', 10); a('s_add_u32', 's8', 's8', 's12'); a('s_add_u32', 's8', 's8', WS_U)
    a('v_lshl_add_u32', v(go), 'v0', 4, 's8')
    a('s_lshl_b32', 's60', 's9', 2); a('s_add_u32', 's60', 's60', L_CNT + 4*C_U)
    a('s_sub_u32', 's11', 's10', 's9'); a('s_and_b32', 's11', 's11', 3); a('s_lshl2_add_u32', 's99', 's9', 's11'); a('s_or_b32', 's99', 's99', 16)
    a('s_cmp_lt_u32', 's7', 36); a('s_cselect_b32', 's63', 1, 0); a('s_cmp_eq_u32', 's5', 0); a('s_cselect_b32', 's63', 's63', 0)
    lj_ = newlabel('Lb2'); a('s_cmp_eq_u32', 's63', 0); a('s_cbranch_scc1', lj_)
    J = lambda l: sum((16 | lc << 2 | ro) << (5*i) for i, (lc, ro) in enumerate(l))
    lists = [J([(0, 0)]), J([(1, 0)]), J([(0, 3), (1, 3)]), J([(0, 1), (1, 1)])] if LATE2[0] else [J([(0, 0)]), J([(1, 0)]), J([(0, 3), (1, 3), (0, 2)]), J([(0, 1), (1, 1), (1, 2)])]
    a('s_mov_b32', 's56', lists[0] | lists[1] << 16); a('s_mov_b32', 's57', lists[2] | lists[3] << 16)
    a('s_lshl_b32', 's8', 's10', 4); a('s_lshr_b64', 's[56:57]', 's[56:57]', 's8'); a('s_and_b32', 's99', 's56', 0x7fff)
    a.label(lj_)
    a('s_mov_b32', 's62', 1)
    a.label('LB2p')
    a('s_bfe_u32', 's9', 's99', (2 << 16) | 2); a('s_and_b32', 's11', 's99', 3)
    a('s_add_u32', 's13', 's53', 's9')
    a('s_lshl_b32', 's8', 's13', 1); a('s_and_b32', 's8', 's8', -4)
    a('s_load_dword', 's58', D_, 's8')
    a('s_mul_i32', 's15', 's9', USZ); a('s_add_u32', 's15', 's15', L_U)
    a('v_and_b32', v(n), 15, 'v0'); a('v_lshrrev_b32', v(q), 4, 'v0')
    a('v_mov_b32', v(msk), 0xffff0000)
    a('v_and_b32', v(t), 1, 'v0'); a('v_mul_u32_u24', v(aa), 529*16, v(t))
    a('v_bfe_u32', v(t), 'v0', 1, 1); a('v_mul_u32_u24', v(t), 264*16, v(t)); a('v_add_u32', v(aa), v(aa), v(t))
    a('v_bfe_u32', v(t), 'v0', 2, 2); a('v_lshl_add_u32', v(aa), v(t), 5, v(aa))
    a('s_cmp_eq_u32', 's11', 0); a('s_cselect_b32', 's12', 1, 0)
    a('s_add_u32', 's14', 's12', 8); a('v_lshl_add_u32', v(aa), v(q), 's14', v(aa))
    a('s_cmp_eq_u32', 's11', 1); a('s_cselect_b32', 's14', 2048, 0)
    a('s_cmp_eq_u32', 's11', 3); a('s_cselect_b32', 's14', 1040, 's14')
    a('s_mul_i32', 's8', 's9', HSZ); a('s_add_u32', 's8', 's8', 's14'); a('s_add_u32', 's8', 's8', L_H)
    a('v_add_u32', v(aa), 's8', v(aa))
    a('s_add_u32', 's14', 's12', 1); a('v_lshlrev_b32', v(t), 's14', v(q)); a('v_sub_u32', v(t), v(t), v(n))
    a('s_lshl_b32', 's14', 's12', 4); a('s_sub_u32', 's14', 31, 's14'); a('v_add_u32', v(t), 's14', v(t))
    a('v_mul_u32_u24', v(ba), 144, v(t)); a('v_add_u32', v(ba), 's15', v(ba))
    a('s_cmp_eq_u32', 's11', 2); a('s_cselect_b32', 's14', 31, 15)
    a('v_sub_u32', v(t), 's14', v(n)); a('v_mul_u32_u24', v(ia), 144, v(t)); a('v_add_u32', v(ia), 's15', v(ia))
    a('v_lshlrev_b32', v(t), 5, v(q)); a('v_sub_u32', v(ia), v(ia), v(t))
    a('s_mul_i32', 's59', 's9', REDSZ); a('s_add_u32', 's59', 's59', L_RED); a('v_lshl_add_u32', v(ra), 'v0', 4, 's59')
    lnh = newlabel('Lb2'); a('s_cmp_lg_u32', 's11', 3); a('s_cbranch_scc1', lnh)
    a('v_and_b32', v(t), 7, 'v0'); a('v_lshlrev_b32', v(u), 1, v(q)); a('v_sub_u32', v(u), v(u), v(t)); a('v_add_u32', v(u), 31, v(u))
    a('v_mul_u32_u24', v(ba), 144, v(u)); a('v_add_u32', v(ba), 's15', v(ba))
    a('v_and_b32', v(u), 8, 'v0'); a('v_xor_b32', v(u), 8, v(u)); a('v_lshl_add_u32', v(ba), v(u), 1, v(ba)); a('v_lshl_add_u32', v(ba2), v(u), 1, v(ba))
    a('v_lshl_add_u32', v(t), v(q), 3, v(t)); a('v_lshlrev_b32', v(t), 4, v(t)); a('v_and_b32', v(u), 8, 'v0'); a('v_lshl_add_u32', v(t), v(u), 7, v(t))
    a('v_add_u32', v(ra), 's59', v(t))
    a.label(lnh)
    a.wait(lgkm=0)
    a('s_bitcmp1_b32', 's13', 0); a('s_cselect_b32', 's8', 0, 16); a('s_lshl_b32', 's58', 's58', 's8'); a('s_and_b32', 's58', 's58', 0xffff0000)
    a('s_cmp_gt_u32', 's3', 5); a('s_cselect_b32', 's98', 2, 1); a('s_sub_u32', 's98', 's3', 's98'); a('s_min_u32', 's98', 's98', 8)
    a('s_cmp_lg_u32', 's12', 0); a('s_cselect_b32', 's98', 8, 's98'); a('s_cmp_eq_u32', 's5', 0); a('s_cselect_b32', 's98', 8, 's98')
    ACC = R.alloc(16); NW = 6; RA = R.alloc(4*NW + 2); RA2 = R.alloc(4*NW + 2); NBR = 6; RB = R.alloc(4*NBR)
    for x in range(16): a('v_mov_b32', v(ACC+x), 0)
    fi = R.alloc(); sa = R.alloc(); sa2 = R.alloc(); sr = R.alloc(); zo = R.alloc(); ca = R.alloc()
    a('s_lshl_b32', 's14', 's9', 3); a('s_add_u32', 's14', 's14', L_CNT + 4*C_RED); a('v_mov_b32', v(ca), 's14')
    a('v_and_b32', v(u), 7, 'v0'); a('v_lshl_add_u32', v(u), v(q), 3, v(u)); a('s_lshl_b32', 's8', 's12', 11); a('s_add_u32', 's8', 's8', 's59'); a('s_add_u32', 's8', 's8', 4096)
    a('v_lshl_add_u32', v(fi), v(u), 4, 's8')
    a('v_sub_u32', v(t), 15, v(n)); a('v_lshlrev_b32', v(u), 1, v(q)); a('v_sub_u32', v(u), 6, v(u))
    a('v_xor_b32', v(u), v(t), v(u)); a('v_and_b32', v(u), 7, v(u)); a('v_lshlrev_b32', v(u), 4, v(u))
    a('v_lshl_add_u32', v(sa), v(t), 7, v(u)); a('v_add_u32', v(sa), 's8', v(sa)); a('v_xor_b32', v(sa2), 16, v(sa))
    a('v_lshrrev_b32', v(t), 3, 'v0'); a('v_xor_b32', v(u), v(t), 'v0'); a('v_and_b32', v(u), 7, v(u)); a('v_lshlrev_b32', v(u), 4, v(u))
    a('v_lshl_add_u32', v(sr), v(t), 7, v(u)); a('v_add_u32', v(sr), 's8', v(sr))
    a('s_lshl_b32', 's8', 's13', 12); a('s_lshl_b32', 's14', 's12', 11); a('s_sub_u32', 's8', 's8', 's14'); a('s_add_u32', 's8', 's8', WS_U + 2048)
    a('v_lshl_add_u32', v(zo), 'v0', 4, 's8')
    a('s_cmp_eq_u32', 's62', 0); a('s_cbranch_scc1', 'LB2go')
    stamp(a, 7)
    lo = newlabel('Lb2'); lo2 = newlabel('Lb2'); lo3 = newlabel('Lb2')
    a('s_cmp_lg_u32', 's5', 0); a('s_cbranch_scc1', lo3)
    wait_lds(a, EG[0], 4, t, u)
    a('s_branch', lo2)
    a.label(lo3)
    if UH[0]:
        a('s_cmp_lg_u32', 's3', 4); a('s_cbranch_scc1', lo)
        a('v_lshl_add_u32', v(t), 's4', 4, v(n)); a('v_lshlrev_b32', v(fa), 7, v(t)); a('v_add_u32', v(fa), H_U, v(fa))
        poll_hints(a, fa, t, u, 's96', 16)
        arrive(a, C_GU, t, u)
        a('s_branch', lo2)
        a.label(lo)
        wait_lds(a, C_GU, 1, t, u)
    else:
        lx = newlabel('Lb2'); a('s_cmp_ge_u32', 's3', 10); a('s_cbranch_scc1', lx)
        drained(a, C_B1D, t, u)
        stamp(a, 6)
        a.label(lx)
        wait_lds(a, C_B1D, 10, t, u)
        if HW[0]: wait_lds(a, C_H, 2, t, u)
    a.label(lo2)
    stamp(a, 2)
    a('s_lshl_b32', 's8', 's63', 12); a('v_subrev_u32', v(fa), 's8', v(go))
    def ul():
        a('global_load_dwordx4', v(U, 4), v(go), WS_, mods=SC)
        if TWOPASS[0]: a('global_load_dwordx4', v(U+4, 4), v(fa), WS_, mods=SC)
    poll_tags(a, ul, [U, U+4] if TWOPASS[0] else [U], t, 1, XSLEEP[0])
    sk2 = newlabel('Lb2'); a('s_cmp_eq_u32', 's63', 0); a('s_cbranch_scc1', sk2)
    await_cnt(a, C_H0, 4, t, u)
    a('v_subrev_u32', v(t), USZ, v(lw))
    a('ds_write_b128', v(t), v(U+4, 4))
    a.label(sk2)
    sko = newlabel('Lb2'); a('s_cmp_eq_u32', 's5', 0); a('s_cbranch_scc1', sko)
    await_cnt(a, C_H, 2, t, u)
    a.label(sko)
    a('ds_write_b128', v(lw), v(U, 4))
    stamp(a, 8)
    subbar_s(a, 's60', 4, t, u, vm=True)
    if GATE[0]:
        lg = newlabel('Lb2'); a('s_cmp_lg_u32', 's5', 0); a('s_cbranch_scc1', lg)
        a('v_mov_b32', v(t), L_CNT + 4*(C_A2+2))
        lq = newlabel('Lb2'); a.label(lq)
        a('s_sleep', 2); a('ds_read_b32', v(u), v(t)); a('v_readfirstlane_b32', 's40', v(u)); a('s_cmp_lt_u32', 's40', 4); a('s_cbranch_scc1', lq)
        a('s_cmp_ge_u32', 's7', 36); a('s_cbranch_scc1', lg)
        lq = newlabel('Lb2'); a.label(lq)
        a('s_sleep', 2); a('ds_read_b32', v(u), v(t), mods='offset:16'); a('v_readfirstlane_b32', 's40', v(u)); a('s_cmp_lt_u32', 's40', 4); a('s_cbranch_scc1', lq)
        a.label(lg)
    a.label('LB2go')
    MF = 'v_mfma_f32_16x16x32_bf16'
    PD = 3
    def rdA(ring, w, off, last):
        if w > last: return
        a('ds_read_b128', v(ring + 4*(w % NW), 4), v(aa), mods=f'offset:{off + 16*w}')
        if w and w % NW == 0: a('ds_read_b64', v(ring+4*NW, 2), v(aa), mods=f'offset:{off + 16*w}')
    def rdB(tau, last, hi=False):
        if tau > last: return
        a('ds_read_b128', v(RB + 4*(tau % NBR), 4), v(ba2 if (hi and tau % 8 == 7) else ba), mods=f'offset:{144*(tau >> 3) + 16*(tau & 7)}')
    a('s_cmp_eq_u32', 's11', 3); a('s_cbranch_scc1', 'LB2hi')
    rdB(0, 32); rdA(RA, 1, 0, 33)
    for k in range(PD): rdB(k+1, 32); rdA(RA, k+2, 0, 33)
    lp_ = newlabel('Lb2'); a('s_cmp_eq_u32', 's11', 0); a('s_cbranch_scc1', lp_)
    a('s_setprio', 1)
    a('ds_read_b128', v(U, 4), v(ia), mods='offset:96'); a('ds_read_b128', v(U+4, 4), v(ia), mods='offset:112')
    for x in range(16):
        e = 15 - x
        if e & 1: a('v_and_b32', v(ACC+x), v(msk), v(U + (e >> 1)))
        else: a('v_lshlrev_b32', v(ACC+x), 16, v(U + (e >> 1)))
        a('v_mul_f32', v(ACC+x), 's58', v(ACC+x))
    pend = a.snap[lp_][0]
    a.label(lp_)
    a.lg = list(pend[1])
    stamp(a, 9)
    for tau in range(32):
        if tau == 16:
            a.raw('    s_cmp_eq_u32 s12, 0'); a.raw('    s_cbranch_scc1 LB2r'); a.bytes += 8
            a.snap.setdefault('LB2r', []).append((list(a.vm), list(a.lg)))
        d0 = (4*(tau+1)) % (4*NW)
        for k, (acc, dd, bt) in enumerate(((2, d0, tau), (3, d0+2, tau), (0, d0, tau+1), (1, d0+2, tau+1))):
            a(MF, v(ACC+4*acc, 4), v(RA+dd, 4), v(RB + 4*(bt % NBR), 4), v(ACC+4*acc, 4))
            if k == 1: rdB(tau + PD + 1, 32)
            if k == 3: rdA(RA, tau + PD + 2, 0, 33)
    a.label('LB2r'); a._nop(8)
    stamp(a, 10)
    lf = newlabel('Lb2')
    a('v_mov_b32', v(u), 1)
    a('s_cmp_lg_u32', 's11', 1); a('s_cbranch_scc1', lf)
    for tt in range(4): a('ds_write_b128', v(ra), v(ACC+4*tt, 4), mods=f'offset:{1024*tt}')
    a.wait(lgkm=0); lds_cnt_add(a, ca, u)
    a('s_branch', 'LB2end')
    a.label('LB2hi')
    a('s_setprio', 1)
    rdA(RA, 0, 0, 16); rdA(RA2, 0, 2048, 16)
    for k in range(PD): rdB(k, 15, True); rdA(RA, k+1, 0, 16); rdA(RA2, k+1, 2048, 16)
    stamp(a, 9)
    for tau in range(16):
        d0 = (4*tau) % (4*NW)
        for k, (acc, ring, dd) in enumerate(((0, RA, d0), (1, RA, d0+2), (2, RA2, d0), (3, RA2, d0+2))):
            a(MF, v(ACC+4*acc, 4), v(ring+dd, 4), v(RB + 4*(tau % NBR), 4), 0 if tau == 0 else v(ACC+4*acc, 4))
            if k == 0: rdB(tau + PD, 15, True)
            if k == 1: rdA(RA, tau + PD + 1, 0, 16)
            if k == 3: rdA(RA2, tau + PD + 1, 2048, 16)
    stamp(a, 10)
    a('v_mov_b32', v(u), 1)
    for acc in range(4): a('ds_write_b128', v(ra), v(ACC+4*acc, 4), mods=f'offset:{4096 + 2048*(acc >> 1) + 512*(acc & 1)}')
    a.wait(lgkm=0)
    a('s_mov_b64', 'exec', 1); a('ds_add_u32', v(ca), v(u)); a('ds_add_u32', v(ca), v(u), mods='offset:4'); a('s_mov_b64', 'exec', -1)
    a('s_branch', 'LB2end')
    a.label(lf)
    a('s_lshl_b32', 's8', 's11', 1); a('v_add_u32', v(t), 's8', v(ca)); a('s_add_u32', 's14', 's12', 1)
    lp = newlabel('Lb2'); a.label(lp)
    a('ds_read_b32', v(u), v(t)); a('v_readfirstlane_b32', 's40', v(u)); a('s_cmp_lt_u32', 's40', 's14'); a('s_cbranch_scc1', lp)
    for tt in range(4): a('ds_read_b128', v(RA+4*tt, 4), v(fi), mods=f'offset:{512*tt}')
    ls = newlabel('Lb2'); a('s_cmp_eq_u32', 's12', 0); a('s_cbranch_scc1', ls)
    for tt in range(4): a('ds_read_b128', v(RB+4*tt, 4), v(ra), mods=f'offset:{1024*tt}')
    for x in range(16): a('v_add_f32', v(ACC+x), v(ACC+x), v(RB+x))
    a.label(ls)
    a('s_mov_b32', 'exec_lo', 0xff00ff00); a('s_mov_b32', 'exec_hi', 0xff00ff00)
    for x in range(16): a('v_add_f32', v(ACC+x), v(ACC+x), v(RA+x))
    a('s_mov_b64', 'exec', -1)
    for jj in range(8):
        a('v_cvt_pk_bf16_f32', v(U+jj), v(ACC+15-2*jj), v(ACC+14-2*jj)); tag2(a, U+jj, jj)
        if jj == 3: a('ds_write_b128', v(sa), v(U, 4))
    a('ds_write_b128', v(sa2), v(U+4, 4))
    a('ds_read_b128', v(RB, 4), v(sr)); a('ds_read_b128', v(RB+4, 4), v(sr), mods='offset:1024')
    a('global_store_dwordx4', v(zo), v(RB, 4), WS_, mods=SC)
    a('global_store_dwordx4', v(zo), v(RB+4, 4), WS_, mods=f'offset:1024 {SC}')
    a('s_cmp_eq_u32', 's5', 0); a('s_cbranch_scc1', 'LB2end')
    arrive(a, C_HZ, t, u, vm=ZDRAIN[0])
    a.label('LB2end')
    a('s_setprio', 0)
    a('s_mov_b32', 's62', 0); a.wait(lgkm=0)
    a('s_lshr_b32', 's99', 's99', 5); a('s_cbranch_scc1', 'LB2p')
    a('s_cmp_eq_u32', 's5', 0); a('s_cbranch_scc1', 'LA3')
    a('s_cmp_eq_u32', 's98', 8); a('s_cbranch_scc1', 'LB3')
    srd(a, 44, 's22', 's23', 2048*1280)
    a('v_mul_u32_u24', v(t), 26, 'v0'); a('v_lshrrev_b32', v(t), 8, v(t)); a('v_mul_u32_u24', v(u), 1280 - 160, v(t)); a('v_lshl_add_u32', v(u), 'v0', 4, v(u))
    a('s_lshl_b32', 's8', 's6', 3); a('s_add_u32', 's8', 's8', 's98'); a('s_mul_i32', 's8', 's8', 16*1280); a('s_mul_i32', 's14', 's4', 160); a('s_add_u32', 's8', 's8', 's14')
    a('s_mul_i32', 's14', 's98', 2*1296); a('s_mov_b32', 'exec_hi', 0xff)
    for k in range(4):
        a('s_add_u32', 'm0', 's14', L_VI + (k >> 1)*1296 + (k & 1)*640)
        a('buffer_load_dwordx4', v(u), 's[44:47]', 's8', mods='offen lds')
        if k < 3: a('s_addk_i32', 's8', 4*1280)
    a('s_mov_b64', 'exec', -1)
    arrive(a, C_QL, t, u, vm=True)
    a('s_branch', 'LB3')

class A2R: pass
def a2_regs():
    K = A2R(); R = RegAlloc(1, 168)
    K.t = R.alloc(); K.u = R.alloc(); K.go = R.alloc(); K.lw = R.alloc(); K.lr0 = R.alloc(); K.lr1 = R.alloc(); K.msk = R.alloc()
    K.X = R.alloc(8)
    K.C = R.alloc(8); K.Sm = R.alloc(8); K.N = R.alloc(8); K.TC = R.alloc(16); K.TS = R.alloc(16)
    K.Z = R.alloc(16); K.Wp = R.alloc(16); K.B0 = R.alloc(32); K.B1 = R.alloc(32)
    K.fa, K.fw, K.o, K.h, K.of, K.hf, K.t2 = [K.Wp + k for k in range(7)]
    return K

def A2_consts(a, K):
    t, u, go, X = K.t, K.u, K.go, K.X
    a('v_lshrrev_b32', v(t), 3, 'v0'); a('v_lshl_add_u32', v(t), 's10', 3, v(t))
    a('s_mov_b32', 's8', TBLK); a('v_mul_lo_u32', v(go), v(t), 's8')
    a('v_and_b32', v(u), 7, 'v0'); a('v_lshl_add_u32', v(go), v(u), 4, v(go))
    a('s_lshl_b32', 's8', 's9', 7); a('v_add_u32', v(go), 's8', v(go))
    def swz(dst, line, piece):
        a('v_lshrrev_b32', v(dst), 1, v(line)); a('v_and_b32', v(K.t2), 1, v(line)); a('v_xor_b32', v(dst), v(dst), v(K.t2))
        a('v_xor_b32', v(dst), piece, v(dst)); a('v_and_b32', v(dst), 7, v(dst)); a('v_lshlrev_b32', v(dst), 4, v(dst))
        a('v_lshl_add_u32', v(dst), v(line), 7, v(dst)); a('v_add_u32', v(dst), 's62', v(dst))
    swz(K.lw, t, v(u))
    a('s_sub_u32', 's8', 's9', 128); a('s_mul_i32', 's8', 's8', 57); a('s_lshr_b32', 's8', 's8', 9)
    a('s_bfe_u32', 's11', 's9', (2 << 16) | 4); a('s_cmp_lt_u32', 's9', 128); a('s_cselect_b32', 's8', 's11', 's8')
    a('s_and_b32', 's8', 's8', 1); a('s_cmp_eq_u32', 's8', 0)
    a('s_cselect_b32', 's60', 0, 0x80008000); a('s_lshl_b32', 's11', 's8', 31); a('s_or_b32', 's11', 's11', fl(1/32))
    o, h, of, hf = K.o, K.h, K.of, K.hf
    a('v_bfe_u32', v(o), 'v0', 3, 1); a('v_and_b32', v(t), 3, 'v0'); a('v_lshl_add_u32', v(o), v(o), 2, v(t))
    a('v_bfe_u32', v(t), 'v0', 4, 1); a('v_lshl_add_u32', v(o), v(o), 1, v(t))
    a('v_bfe_u32', v(t), 'v0', 2, 1); a('v_lshl_add_u32', v(o), v(o), 1, v(t))
    a('v_lshrrev_b32', v(h), 5, 'v0')
    a('v_lshl_add_u32', v(t), v(h), 5, v(o))
    a('s_lshl_b32', 's8', 's10', 1)
    swz(K.lr0, t, 's8'); a('v_xor_b32', v(K.lr1), 16, v(K.lr0))
    a('v_cvt_f32_u32', v(of), v(o)); a('v_mul_f32', v(of), 's11', v(of))
    a('v_cvt_f32_u32', v(hf), v(h)); a('v_mul_f32', v(hf), v(hf), v(of))
    for kap in range(2):
        for jj in range(4):
            for e in range(2):
                idx = 2*kap + 4*(2*jj + e)
                if idx: a('v_fmamk_f32', v(X+e), v(of), fl(float(idx)), v(hf)); src = X+e
                else: src = hf
                sincos(a, src, X+2+e, X+4+e)
                vv = 8*kap + 2*jj + e
                a('v_mul_f32', v(X+6+e), fl(1/32), v(src))
                sincos(a, X+6+e, K.TC+vv, K.TS+vv)
            a('v_cvt_pk_bf16_f32', v(K.C+4*kap+jj), v(X+2), v(X+3))
            a('v_cvt_pk_bf16_f32', v(K.Sm+4*kap+jj), v(X+4), v(X+5))
            a('v_xor_b32', v(K.N+4*kap+jj), 0x80008000, v(K.Sm+4*kap+jj))
    a('v_mov_b32', v(K.msk), 0xffff0000)

def pk_auxE(a):
    K = a2_regs()
    a.label('LauxE')
    R = RegAlloc(K.B0, 164)
    WB = 2048*321*2
    bar0(a)
    if WARM[0]:
        lw_ = newlabel('Le'); a('s_cmp_lg_u32', 's3', 11); a('s_cbranch_scc1', lw_)
        warm(a, False)
        a.label(lw_)
    a('s_sub_u32', 's10', 's3', 8)
    vo = R.alloc(); t = K.t; u = K.u
    a('v_lshlrev_b32', v(vo), 4, 'v0')
    def w_dma():
        a('s_mul_i32', 's14', 's7', 1284)
        a('s_mul_i32', 's11', 's10', 2*256*642); a('s_add_u32', 's14', 's14', 's11')
        a('s_mul_i32', 's11', 's10', 2*1296); a('s_add_u32', 's11', 's11', L_A2 + 1296)
        srd(a, 44, 's18', 's19', WB); srd(a, 48, 's20', 's21', WB)
        def slot(soff, m0v_s, add):
            for pl, sd in enumerate((44, 48)):
                a('s_add_u32', 'm0', m0v_s, add + pl*11664)
                a('buffer_load_dwordx4', v(vo), s(sd, 4), soff, mods='offen lds')
                a('s_mov_b64', 'exec', 0x1ffff)
                a('buffer_load_dwordx4', v(vo), s(sd, 4), soff, mods='offen offset:1024 lds')
                a('s_mov_b64', 'exec', -1)
        slot('s14', 's11', 0)
        a('s_add_u32', 's14', 's14', 256*642)
        slot('s14', 's11', 1296)
        sk = newlabel('Lw1s')
        a('s_cmp_lg_u32', 's7', 127); a('s_cbranch_scc1', sk)
        a('s_cmp_lg_u32', 's10', 3); a('s_cbranch_scc1', sk)
        a('s_mov_b32', 's11', L_A2)
        slot('s14', 's11', 0)
        a.label(sk)
    k0 = R.alloc(); vc = R.alloc(); go = R.alloc(); go2 = R.alloc()
    a('v_lshrrev_b32', v(t), 3, 'v0')
    a('v_mul_u32_u24', v(k0), 65, v(t))
    a('v_mul_u32_u24', v(u), 205, v(k0)); a('v_lshrrev_b32', v(u), 14, v(u))
    a('v_mul_u32_u24', v(u), 80, v(u)); a('v_sub_u32', v(k0), v(k0), v(u))
    a('s_and_b32', 's12', 's10', 1); a('s_lshr_b32', 's13', 's10', 1)
    a('s_cmp_eq_u32', 's12', 0)
    a('s_cselect_b32', 's14', 2, -2); a('s_cselect_b32', 's15', 0, 640)
    a('s_mul_i32', 's8', 's13', 642); a('s_add_u32', 's15', 's15', 's8'); a('s_add_u32', 's15', 's15', L_A2 + 1296)
    a('s_cmp_eq_u32', 's10', 3); a('s_cselect_b32', 's8', 1, 0); a('s_add_u32', 's8', 's8', 's7')
    a('s_cmp_eq_u32', 's8', 128); a('s_cselect_b32', 's41', 1296, 0); a('s_sub_u32', 's15', 's15', 's41')
    a('s_and_b32', 's8', 's8', 127)
    a('v_bfe_u32', v(t), 'v0', 1, 2); a('v_mul_u32_u24', v(t), 80, v(t))
    a('v_and_b32', v(u), 1, 'v0'); a('v_mul_u32_u24', v(u), 11664, v(u)); a('v_add_u32', v(u), 's15', v(u))
    a('v_mad_i32_i24', v(vc), v(t), 's14', v(u))
    a('s_mul_i32', 's8', 's8', TBLK); a('s_add_u32', 's8', 's8', WS_W)
    a('s_lshl_b32', 's41', 's10', 11); a('s_add_u32', 's41', 's41', 's8')
    a('v_add_u32', v(go), 's41', v(vo))
    a('s_mul_i32', 's41', 's10', 9*128); a('s_add_u32', 's41', 's41', 's8'); a('s_add_u32', 's41', 's41', 128*128)
    a('v_add_u32', v(go2), 's41', v(vo))
    ads = [R.alloc() for _ in range(6)]
    for it, C in enumerate((16, 56, 32, 72, 0, 40)):
        if C:
            a('v_add_u32', v(t), C, v(k0)); a('v_subrev_u32', v(u), 80, v(t)); a('v_min_u32', v(t), v(t), v(u))
            a('v_mad_i32_i24', v(ads[it]), v(t), 's14', v(vc))
        else: a('v_mad_i32_i24', v(ads[it]), v(k0), 's14', v(vc))
    O = R.alloc(24); Hh = R.alloc(24)
    epoch_ready(a)
    if WGATE[0]: await_cnt(a, C_X, WGATE[0], t, u)
    w_dma()
    a('s_mov_b32', 's9', 's7'); a('s_mov_b32', 's62', L_A2T); a('s_mov_b32', 's63', L_A2W); a('s_mov_b32', 's61', L_CNT + 4*C_A2)
    a.label('LA2c')
    A2_consts(a, K)
    wtag_regs(a, 56)
    a('s_cmp_lt_u32', 's3', 8); a('s_cbranch_scc1', 'LA2w')
    stamp(a, 2)
    a('s_setprio', 1)
    a('v_mov_b32', v(vo), 0xfffefffe)
    subbar(a, C_W1, 4, t, u, vm=True)
    stamp(a, 3)
    def comb(it):
        for k in range(4): a('v_lshl_or_b32', v(O+4*it+k), v(Hh+4*it+k), 16, v(O+4*it+k))
        for k in range(4): a('v_and_or_b32', v(O+4*it+k), v(O+4*it+k), v(vo), s(56+k))
    for it in range(6):
        for i in range(8): a('ds_read_u16', v((Hh if i & 1 else O) + 4*it + (i >> 1)), v(ads[it]), mods=f'offset:{1296*i}')
        if it: comb(it - 1)
        if it == 2:
            for k in range(2): a('global_store_dwordx4', v(go), v(O+4*k, 4), WS_, mods=f'offset:{1024*k} {SC}')
            a('v_add_u32', v(go), 8192, v(go))
        if it == 4:
            for k in range(2): a('global_store_dwordx4', v(go), v(O+8+4*k, 4), WS_, mods=f'offset:{1024*k} {SC}')
    comb(5)
    a('global_store_dwordx4', v(go2), v(O+16, 4), WS_, mods=SC)
    a('s_mov_b64', 'exec', 0xff)
    a('global_store_dwordx4', v(go2), v(O+20, 4), WS_, mods=f'offset:1024 {SC}')
    a('s_mov_b64', 'exec', -1)
    stamp(a, 4)
    arrive(a, C_W1D, t, u)
    stamp(a, 5)
    a.label('LA2w')
    await_cnt(a, C_A1D, 8, t, u)
    await_cnt(a, C_W1D, 4, t, u)
    a.label('LA2')
    pk_A2(a, K)

def pk_A2(a, K):
    t, u, go, lw, lr0, lr1, msk, X, Z, Wp, B0, B1 = K.t, K.u, K.go, K.lw, K.lr0, K.lr1, K.msk, K.X, K.Z, K.Wp, K.B0, K.B1
    for it in range(4):
        a('s_add_u32', s(44+2*it), 's38', 32*TBLK*it); a('s_addc_u32', s(45+2*it), 's39', 0)
    a('s_sub_u32', 's63', 's63', 's62')
    a('s_setprio', 3)
    stamp(a, 7)
    stamp(a, 11)
    ST, SW = B0, B1
    def tl():
        for it in range(4): a('global_load_dwordx4', v(ST+4*it, 4), v(go), s(44+2*it, 2), mods=SC)
    poll_tags(a, tl, [ST+4*i for i in range(4)], t, 1, XSLEEP[0])
    a('v_add_u32', v(Wp), WS_W, v(go)); a('v_add_u32', v(X+2), 's63', v(lw))
    def wl():
        for it in range(4): a('global_load_dwordx4', v(SW+4*it, 4), v(Wp), s(44+2*it, 2), mods=SC)
    stamp(a, 8)
    for it in range(4): a('ds_write_b128', v(lw), v(ST+4*it, 4), mods=f'offset:{4096*it}')
    a('v_mov_b32', v(X), 's61'); a('v_mov_b32', v(X+1), 1)
    a.wait(lgkm=0); lds_cnt_add(a, X, X+1)
    stamp(a, 6)
    wl()
    lp = newlabel('La2'); a.label(lp)
    a('ds_read_b32', v(X+1), v(X)); a('v_readfirstlane_b32', 's40', v(X+1)); a('s_cmp_lt_u32', 's40', 4); a('s_cbranch_scc1', lp)
    stamp(a, 9)
    for kap in range(2):
        for ri, ad in enumerate((lr0, lr1)): a('ds_read_b128', v(Z+8*kap+4*ri, 4), v(ad), mods=f'offset:{8192*kap}')
    MF = 'v_mfma_f32_32x32x16_bf16'
    def mm(kap, dataA, inv, d):
        dR, dI = d, d+16
        zr, zi = v(Z+8*kap, 4), v(Z+8*kap+4, 4)
        c, p, n = v(K.C+4*kap, 4), v(K.Sm+4*kap, 4), v(K.N+4*kap, 4)
        if inv: p, n = n, p
        for k, (dd, z, m) in enumerate(((dR, zr, c), (dI, zi, c), (dR, zi, p), (dI, zr, n))):
            cin = 0 if (kap == 0 and k < 2) else v(dd, 16)
            if dataA: a(MF, v(dd, 16), z, m, cin)
            else: a(MF, v(dd, 16), m, z, cin)
    mm(0, True, False, B0); mm(1, True, False, B0)
    poll_tags(a, wl, [SW+4*i for i in range(4)], t, 3, XSLEEP[0], tagsg=56, pre=True)
    for it in range(4): a('ds_write_b128', v(X+2), v(SW+4*it, 4), mods=f'offset:{4096*it}')
    stamp(a, 12)
    a('v_mov_b32', v(u), 1); a('v_mov_b32', v(t), 's61')
    a.wait(lgkm=0)
    a('s_mov_b64', 'exec', 1); a('ds_add_u32', v(t), v(u), mods='offset:4'); a('s_mov_b64', 'exec', -1)
    bufs = [B0, B1]
    for st in range(3):
        sb, db = bufs[st & 1], bufs[(st + 1) & 1]
        if st == 1:
            lp = newlabel('La2'); a.label(lp, keep=True) if False else None
            a.settle(keep_hist=True) if False else None
            hist = list(a.hist)
            a.raw(lp + ':')
            a('ds_read_b32', v(u), v(t), mods='offset:4'); a('v_readfirstlane_b32', 's40', v(u)); a('s_cmp_lt_u32', 's40', 4)
            a.raw(f'    s_cbranch_scc1 {lp}'); a.bytes += 4
            stamp(a, 14)
            a('v_add_u32', v(t), 's63', v(lr0)); a('v_add_u32', v(u), 's63', v(lr1))
            for kap in range(2):
                for ri, ad in enumerate((t, u)): a('ds_read_b128', v(Wp+8*kap+4*ri, 4), v(ad), mods=f'offset:{8192*kap}')
            a('v_mov_b32', v(X+6), 0xfffefffe)
            for i in range(16):
                if i & 4: a('v_bitop3_b32', v(Wp+i), v(Wp+i), v(X+6), 's60', mods='bitop3:0x6a')
                else: a('v_and_b32', v(Wp+i), v(X+6), v(Wp+i))
        for kap in range(2):
            for jj in range(4):
                for e in range(2):
                    vv = 8*kap + 2*jj + e
                    re, im = sb+vv, sb+16+vv
                    if st == 1:
                        c, s_ = X+4, X+5
                        for dst, pl in ((c, 0), (s_, 1)):
                            src = Wp + 8*kap + 4*pl + jj
                            if e: a('v_and_b32', v(dst), v(msk), v(src))
                            else: a('v_lshlrev_b32', v(dst), 16, v(src))
                    else: c, s_ = K.TC+vv, K.TS+vv
                    a('v_mul_f32', v(X+e), v(re), v(c)); a('v_mul_f32', v(X+2+e), v(im), v(c))
                    if st == 0:
                        a('v_fmac_f32', v(X+e), v(im), v(s_)); a('v_fma_f32', v(X+2+e), '-' + v(re), v(s_), v(X+2+e))
                    else:
                        a('v_fma_f32', v(X+e), '-' + v(im), v(s_), v(X+e)); a('v_fmac_f32', v(X+2+e), v(re), v(s_))
                a('v_cvt_pk_bf16_f32', v(Z+8*kap+jj), v(X), v(X+1))
                a('v_cvt_pk_bf16_f32', v(Z+8*kap+4+jj), v(X+2), v(X+3))
            mm(kap, st == 1, st >= 1, db)
    sb = bufs[1]
    for kap in range(2):
        for ih, ad in enumerate((lr0, lr1)):
            for x in range(4):
                vv = 8*kap + 4*ih + x
                a('v_cvt_pk_bf16_f32', v(Z+vv), v(sb+vv), v(sb+16+vv)); tag2(a, Z+vv, x)
            a('ds_write_b128', v(ad), v(Z+8*kap+4*ih, 4), mods=f'offset:{8192*kap}')
    stamp(a, 10)
    a('s_add_u32', 's8', 's61', 8)
    subbar_s(a, 's8', 4, t, u)
    for it in range(4): a('ds_read_b128', v(Wp+4*it, 4), v(lw), mods=f'offset:{4096*it}')
    for it in range(4): a('global_store_dwordx4', v(go), v(Wp+4*it, 4), s(44+2*it, 2), mods=SC)
    a('s_setprio', 0)
    stamp(a, 13)
    a('v_mov_b32', v(u), 1); a('v_mov_b32', v(t), 's61')
    if LATE2[0]:
        ll = newlabel('La2'); a('s_and_b32', 's8', 's3', 14); a('s_cmp_lg_u32', 's8', 2); a('s_cbranch_scc1', ll)
        a('s_mov_b64', 'exec', 1); a('ds_add_u32', v(t), v(u), mods='offset:12'); a('s_mov_b64', 'exec', -1)
        a('s_and_b32', 's99', 's3', 1); a('s_lshl_b32', 's99', 's99', 2); a('s_or_b32', 's99', 's99', 18); a('s_mov_b32', 's62', 0)
        await_cnt(a, C_U+1, 4, t, u)
        a('s_branch', 'LB2p')
        a.label(ll)
    a.wait(vm=0)
    a('s_mov_b64', 'exec', 1); a('ds_add_u32', v(t), v(u), mods='offset:12'); a('s_mov_b64', 'exec', -1)
    a('s_cmp_lt_u32', 's3', 8); a('s_cbranch_scc1', 'LA3')
    a('s_branch', 'Lfin')

def epoch_store(a):
    pass

def build(stamps=False):
    STAMPS[0] = stamps
    for it in range(4):
        roles._lbl[0] = 0
        a = Asm()
        a.raw(f"; @launch grid=(256,1,1) block=(768,1,1) lds={LDS_TOTAL}")
        a.raw('.amdgcn_target "amdgcn-amd-amdhsa--gfx950"\n.text')
        entry(a)
        pk_A1(a)
        pk_auxE(a)
        pk_B1(a)
        pk_auxO(a)
        pk_B2(a)
        pk_A3(a); a('s_branch', 'Lfin')
        pk_B3(a)
        a.label('Lfin'); stamp_flush(a, 0); a('s_endpgm')
        a.raw('.p2align 10')
        a.raw(kernel_desc(KNAME, 168, 102))
        hi = max(0, (a.bytes + 1023)//1024*1024 - 12288)
        if hi == CODE_HI[0]: break
        CODE_HI[0] = hi
    print('est bytes', a.bytes, 'instrs', a.nins, 'lds', LDS_TOTAL)
    return a.text()

if __name__ == '__main__':
    open('pk17.s', 'w').write(build(False))
    open('pk17st.s', 'w').write(build(True))
    WARM[0] = 0; open('pk17a.s', 'w').write(build(False))
    WARM[0] = 1; open('pk17b.s', 'w').write(build(False)); WARM[0] = 2
    for k in sys.argv[1:]:
        roles.AMP[0] = int(k); open(f'pk17amp{k}.s', 'w').write(build(True))
```

```python
import re

REG_RE = re.compile(r'^(-|\|)?(?:abs\()?([vsa])(?:(\d+)|\[(\d+):(\d+)\])\)?\|?$')

def regs_of(op):
    if not isinstance(op, str): return set()
    op = op.strip()
    if op == 'vcc': return {('s', 106), ('s', 107)}
    if op == 'vcc_lo': return {('s', 106)}
    if op == 'vcc_hi': return {('s', 107)}
    if op == 'exec': return {('s', 126), ('s', 127)}
    if op == 'exec_lo': return {('s', 126)}
    if op == 'exec_hi': return {('s', 127)}
    if op == 'm0': return {('s', 124)}
    m = REG_RE.match(op)
    if not m: return set()
    k = m.group(2)
    if m.group(3) is not None: return {(k, int(m.group(3)))}
    return {(k, i) for i in range(int(m.group(4)), int(m.group(5)) + 1)}

def v(n, cnt=1):
    return f"v{n}" if cnt == 1 else f"v[{n}:{n+cnt-1}]"
def s(n, cnt=1):
    return f"s{n}" if cnt == 1 else f"s[{n}:{n+cnt-1}]"

TRANS = ('v_exp_', 'v_log_', 'v_rcp_', 'v_rsq_', 'v_sqrt_', 'v_sin_', 'v_cos_')
VCC = {('s', 106), ('s', 107)}

def mfma_passes(op):
    if '32x32x16' in op or '32x32x8' in op: return 8
    if '16x16x32' in op or '16x16x16' in op: return 4
    raise ValueError(op)

class Ins:
    __slots__ = ('op', 'args', 'mods', 'kind', 'defs', 'uses', 'srcC', 'srcAB', 'passes', 'ws', 'text', 'wide_data', 'comment')
    def __init__(self, op, args, mods):
        self.op, self.args, self.mods = op, [str(a) for a in args], mods
        self.defs, self.uses, self.srcC, self.srcAB = set(), set(), set(), set()
        self.passes = 0; self.ws = 1; self.wide_data = set()
        a = self.args
        R = lambda xs: set().union(*[regs_of(x) for x in xs]) if xs else set()
        if op.startswith('v_mfma'):
            self.kind = 'mfma'; self.passes = mfma_passes(op)
            self.defs = R(a[:1]); self.srcAB = R(a[1:3]); self.srcC = R(a[3:4]); self.uses = self.srcAB | self.srcC
        elif op.startswith('v_'):
            self.kind = 'trans' if op.startswith(TRANS) else 'valu'
            if op.startswith('v_permlane') and 'swap' in op:
                self.defs = R(a[:2]); self.uses = R(a[:2])
            elif op.startswith(('v_add_co', 'v_sub_co', 'v_subrev_co', 'v_addc_co', 'v_subb_co', 'v_mad_u64')):
                self.defs = R(a[:2]); self.uses = R(a[2:])
            else:
                self.defs = R(a[:1]); self.uses = R(a[1:])
                if op.startswith(('v_fmac', 'v_pk_fmac', 'v_dot2c', 'v_writelane')) or 'mixlo' in op or 'mixhi' in op:
                    self.uses |= self.defs
                if 'dpp' in op or 'row_' in mods or 'quad_perm' in mods: self.uses |= self.defs
        elif op.startswith('ds_'):
            self.kind = 'ds'
            if op.startswith(('ds_read', 'ds_bpermute', 'ds_permute', 'ds_swizzle')) or '_rtn_' in op:
                self.defs = R(a[:1]); self.uses = R(a[1:])
                if 'd16' in op: self.uses |= self.defs
            else:
                self.uses = R(a)
        elif op.startswith(('global_', 'buffer_')):
            self.kind = 'vmem'
            lds = ('_lds_' in op) or (' lds' in ' ' + mods)
            if lds:
                self.uses = R(a) | {('s', 124)}
            elif '_load' in op or ('atomic' in op and 'sc0' in mods):
                self.defs = R(a[:1]); self.uses = R(a[1:])
                if 'd16' in op: self.uses |= self.defs
                if 'atomic' in op and op.startswith('buffer_'): self.uses |= self.defs
            else:
                self.uses = R(a)
                if 'x4' in op or 'x3' in op:
                    self.wide_data = R([a[1] if op.startswith('global_') else a[0]])
        elif op.startswith(('s_load', 's_memtime', 's_memrealtime', 's_buffer_load')):
            self.kind = 'smem'; self.defs = R(a[:1]); self.uses = R(a[1:])
        elif op.startswith('s_'):
            self.kind = 'salu'
            if op == 's_nop': self.ws = int(a[0]) + 1
            elif op.startswith(('s_cmp', 's_cbranch', 's_branch', 's_waitcnt', 's_barrier', 's_sleep', 's_setprio', 's_endpgm', 's_bitcmp', 's_setreg', 's_setpc')):
                self.uses = R(a)
            else:
                self.defs = R(a[:1]); self.uses = R(a[1:])
                if 'saveexec' in op: self.defs |= regs_of('exec'); self.uses |= regs_of('exec')
                if op in ('s_addk_i32', 's_mulk_i32'): self.uses |= self.defs
        else:
            raise ValueError(op)
        self.text = op + (' ' + ', '.join(self.args) if self.args else '') + (' ' + mods if mods else '')

INLINE_F = {'0.5', '-0.5', '1.0', '-1.0', '2.0', '-2.0', '4.0', '-4.0'}
def _is_lit(x):
    x = x.strip()
    if regs_of(x) or x in INLINE_F: return False
    try: val = int(x, 0)
    except ValueError: return False
    return not (-16 <= val <= 64)
VOP3_ONLY = ('v_fma_f32', 'v_cvt_pk', 'v_mad_', 'v_lshl_add', 'v_add3', 'v_bfe', 'v_mul_lo', 'v_mul_hi', 'v_and_or', 'v_or3', 'v_lshl_or', 'v_perm', 'v_alignbit',
             'v_pk_', 'v_fma_mix', 'v_lshlrev_b64', 'v_max3', 'v_min3', 'v_add_lshl', 'v_bfi', 'v_bitop3', 'v_readlane', 'v_writelane', 'v_xad', 'v_med3', 'v_fmamk', 'v_fmaak', 'v_dot2_')
def est_size(i):
    if i.kind in ('mfma', 'ds', 'vmem', 'smem'): return 8
    if i.kind == 'salu':
        if i.op.startswith(('s_waitcnt', 's_nop', 's_cbranch', 's_branch', 's_barrier', 's_sleep', 's_setprio', 's_endpgm', 's_addk', 's_movk', 's_mulk')): return 4
        return 8 if any(_is_lit(x) for x in i.args) else 4
    if i.op.startswith(VOP3_ONLY) or i.mods: return 8
    if any(x.startswith(('-v', '-s', 'abs', '|')) for x in i.args): return 8
    if len(i.args) >= 3 and not i.args[2].startswith('v'): return 8
    if i.op.startswith('v_cmp') and i.args[0] != 'vcc': return 8
    return 8 if any(_is_lit(x) for x in i.args) else 4

class Asm:
    def __init__(self):
        self.bytes = 0; self.pad_role = None; self.pad_last = 0; self.pads = {}; self.pad_on = False
        self.lines = []
        self.hist = []
        self.vm = []
        self.lg = []
        self.maxv = 0; self.maxs = 0
        self.nins = 0
        self.nopad = False
        self.defined = {}
        self.ignore = set()
        self.snap = {}
        self.dead = False
    def raw(self, t): self.lines.append(t)
    def comment(self, t): self.lines.append('    ; ' + t)
    def label(self, name, keep=False):
        if not keep and not self.dead:
            self.settle()
        self.hist = []
        states = self.snap.pop(name, [])
        if not self.dead: states = states + [(self.vm, self.lg)]
        if len(states) == 1:
            self.vm, self.lg = list(states[0][0]), list(states[0][1])
        else:
            same_v = all(x[0] == states[0][0] for x in states); same_l = all(x[1] == states[0][1] for x in states)
            if states and same_v: self.vm = list(states[0][0])
            else:
                un = set().union(*[d for x in states for d in x[0]]) if any(x[0] for x in states) else None
                self.vm = [un] if un is not None else []
            if states and same_l: self.lg = list(states[0][1])
            else:
                anyl = any(x[1] for x in states)
                un = set().union(*[d[0] for x in states for d in x[1]]) if anyl else None
                self.lg = [(un, any(d[1] for x in states for d in x[1]))] if anyl else []
        self.dead = False
        self.defined[name] = (set().union(*self.vm) if self.vm else set(), set().union(*[d[0] for d in self.lg]) if self.lg else set())
        self.lines.append(name + ':')
    def settle(self, keep_hist=False, minus=0):
        need = 0; dist = minus
        for p in reversed(self.hist):
            if p.kind == 'mfma': need = max(need, {4: 8, 8: 12}[p.passes] - dist)
            elif p.kind in ('valu', 'trans'):
                need = max(need, (5 if any(r[0] == 's' and r[1] != 40 for r in p.defs) else (2 if any(r[0] == 'v' for r in p.defs) else 0)) - dist)
            elif p.wide_data: need = max(need, 2 - dist)
            elif ('s', 124) in p.defs: need = max(need, 1 - dist)
            dist += p.ws
            if dist > 20: break
        if need > 0: self._nop(need)
        if not keep_hist: self.hist = []
    def _nop(self, n):
        while n > 0:
            k = min(n, 16)
            i = Ins('s_nop', [k - 1], ''); self.hist.append(i); self.lines.append('    ' + i.text); self.nins += 1; self.bytes += 4
            n -= k
    def cell(self, b):
        return (b >> 12)*4 + min(((b & 4095) >> 6)//17, 3)
    def pad_begin(self, role):
        self.pad_role = role; self.pads[role] = [f"Pad{self.cell(self.bytes)}"] if self.cell(self.bytes) else []
    def pad_end(self): self.pad_role = None
    def _pad(self):
        c = self.cell(self.bytes); self.pad_last = c
        name = f"Pad{c}"
        if self.pad_role and name not in self.pads[self.pad_role]: self.pads[self.pad_role].append(name)
        self.lines.append(name + ':')
        i = Ins('s_cbranch_execz', ['Ltramp'], ''); self.hist.append(i); self.lines.append('    ' + i.text); self.nins += 1
        self.bytes += 4
    def _emit(self, i):
        self.bytes += est_size(i)
        self.hist.append(i); self.lines.append('    ' + i.text); self.nins += 1
        if len(self.hist) > 64: self.hist = self.hist[-40:]
    def wait(self, vm=None, lgkm=None):
        parts = []
        if vm is not None:
            vm = min(vm, 63); parts.append(f'vmcnt({vm})'); self.vm = self.vm[len(self.vm) - vm:] if vm < len(self.vm) else self.vm
            if vm == 0: self.vm = []
        if lgkm is not None:
            lgkm = min(lgkm, 15); parts.append(f'lgkmcnt({lgkm})'); self.lg = self.lg[len(self.lg) - lgkm:] if lgkm < len(self.lg) else self.lg
            if lgkm == 0: self.lg = []
        self._emit(Ins('s_waitcnt', [' '.join(parts)], ''))
    def forget(self):
        self.vm = []; self.lg = []
    def __call__(self, op, *args, mods=''):
        i = Ins(op, args, mods)
        if self.pad_on and self.cell(self.bytes) != self.pad_last and not self.nopad and not self.dead: self._pad()
        touch = i.defs | i.uses
        for r in touch:
            if r[0] == 'v': self.maxv = max(self.maxv, r[1])
            elif r[0] == 's' and r[1] < 102: self.maxs = max(self.maxs, r[1])
        wv = wl = None
        for k in range(len(self.vm) - 1, -1, -1):
            if self.vm[k] & touch:
                if i.kind == 'vmem' and 'd16' in op and not (self.vm[k] & (i.uses - i.defs)): continue
                wv = len(self.vm) - 1 - k; break
        for k in range(len(self.lg) - 1, -1, -1):
            if self.lg[k][0] & touch:
                if i.kind == 'ds' and 'd16' in op and not (self.lg[k][0] & (i.uses - i.defs)): continue
                wl = len(self.lg) - 1 - k; break
        if wl is not None and any(x[1] for x in self.lg): wl = 0
        if wv is not None or wl is not None: self.wait(wv, wl)
        need = 0; dist = 0
        isv = i.kind in ('valu', 'trans')
        for p in reversed(self.hist):
            n = 0
            if p.kind in ('valu', 'trans'):
                pv = {r for r in p.defs if r[0] != 's'}; ps = {r for r in p.defs if r[0] == 's'}
                if i.kind == 'mfma' and pv & i.uses: n = max(n, 2)
                if p.kind == 'trans' and i.kind == 'valu' and pv & i.uses: n = max(n, 1)
                if isv and pv & i.uses:
                    if op.startswith(('v_readlane', 'v_readfirstlane')): n = max(n, 1)
                    if op.startswith('v_permlane') or 'row_' in mods or 'quad_perm' in mods or 'dpp' in op: n = max(n, 2)
                if ('op_sel' in p.mods and ('mixhi' in p.op or 'mixlo' in p.op or 'sdwa' in p.op)) and isv and pv & touch: n = max(n, 1)
                if ps & i.uses:
                    if isv: n = max(n, 4 if op.startswith(('v_readlane', 'v_writelane', 'v_div_fmas')) else 2)
                    if i.kind == 'vmem': n = max(n, 5)
                    if i.kind == 'mfma': n = max(n, 4)
            elif p.kind == 'mfma':
                big = {4: 8, 8: 12}[p.passes]
                if i.kind == 'mfma':
                    if p.defs & i.srcAB: n = max(n, big)
                    if p.defs & i.srcC:
                        if not (p.defs == i.srcC and p.op == i.op): n = max(n, big - 2)
                    elif p.defs & i.defs and p.passes != i.passes: n = max(n, big - 2)
                elif i.kind in ('valu', 'trans', 'vmem', 'ds'):
                    if p.defs & touch: n = max(n, big)
                    if isv and p.srcC & i.defs: n = max(n, {4: 3, 8: 7}[p.passes])
            elif p.kind == 'vmem':
                if p.wide_data & i.defs: n = max(n, 2)
            elif p.kind == 'salu':
                if ('s', 124) in p.defs and ('s', 124) in i.uses and i.kind in ('vmem', 'ds'): n = max(n, 1)
            need = max(need, n - dist)
            dist += p.ws
            if dist > 20: break
        if need > 0: self._nop(need)
        if op.startswith(('s_cbranch', 's_branch')):
            self.settle(keep_hist=True, minus=1)
            tgt = str(args[0])
            if tgt in self.defined:
                pv = (set().union(*self.vm) if self.vm else set()) - self.defined[tgt][0] - self.ignore
                pl = (set().union(*[d[0] for d in self.lg]) if self.lg else set()) - self.defined[tgt][1]
                assert not pv and not pl, f"backward branch to {tgt} with pending loads {pv} {pl}"
            self.snap.setdefault(tgt, []).append((list(self.vm), list(self.lg)))
        self._emit(i)
        if op in ('s_branch', 's_endpgm', 's_setpc_b64'): self.dead = True
        if i.kind == 'vmem': self.vm.append(set(i.defs))
        elif i.kind == 'ds': self.lg.append((set(i.defs), False))
        elif i.kind == 'smem': self.lg.append((set(i.defs), True))
        return i
    def text(self): return '\n'.join(self.lines) + '\n'

class RegAlloc:
    def __init__(self, start=0, limit=256):
        self.next = start; self.limit = limit; self.free_list = []
    def alloc(self, n=1, align=None):
        if align is None: align = 1 if n == 1 else 2
        b = (self.next + align - 1) // align * align
        self.next = b + n
        assert self.next <= self.limit, f"out of registers ({self.next} > {self.limit})"
        return b
    def mark(self): return self.next
    def release(self, m): self.next = m

def kernel_desc(name, vgpr, sgpr):
    vg = max(8, (vgpr + 3) // 4 * 4)
    return f""".section .rodata,"a"
.p2align 6
.amdhsa_kernel {name}
  .amdhsa_next_free_vgpr {vg}
  .amdhsa_next_free_sgpr {sgpr}
  .amdhsa_accum_offset {vg}
  .amdhsa_group_segment_fixed_size 0
  .amdhsa_float_denorm_mode_32 3
  .amdhsa_kernarg_size 96
  .amdhsa_user_sgpr_count 2
  .amdhsa_user_sgpr_kernarg_segment_ptr 1
  .amdhsa_system_sgpr_workgroup_id_x 1
.end_amdhsa_kernel
.text
"""
import struct
def f2u(x): return struct.unpack('<I', struct.pack('<f', x))[0]
def fl(x): return f"0x{f2u(x):08x}"
```

```python
import sys
from asmlib import *
import roles
from roles import (X_, WR_, WI_, Q_, K_, V_, SK_, H_, D_, OUT_, DBG_, WS_, WS_T, WS_W, WS_U, TBLK, HSZ, newlabel, stamp,
                   sincos, srd, quad_voff, STAMPS)
import pk15 as P
from pk15 import (KNAME, SPIN, SC, L_CNT, L_H, USZ, L_U, L_RED, REDSZ, L_P1, L_XR, L_EI, L_KI, L_VI, L_A2, LDS_TOTAL, L_A2T, L_A2W, L_TABH, L_TW,
                  L_T3H, L_T3W, lds_cnt_add, subbar_s, tag_consts, tag1, tag2, poll_tags, wtag_regs, wait_lds, h_srd, h_load, h_expand, u_pad,
                  coop_tables, S_M, S_C)
from roles import subbar, arrive, await_cnt, b13_lane
NWV = 16
WS_EP = WS_W - 128
C_A1, C_A1D, C_W1, C_W1D, C_A3, C_B1, C_B1D, C_H, C_Q, C_QL, C_A2, C_X, C_HZ, C_W1R = 0, 1, 2, 3, 4, 5, 6, 7, 8, 9, 10, 14, 15, 16
C_U, C_RED, C_PR = 20, 24, 17
XS, LS = [8], [8]
OPT = dict(tgo=10, eg=C_W1D, hh=False, tge=(C_W1R, 4), probe=0, psl=2, tprobe=0)

def stamp_flush(a):
    if not STAMPS[0]: return
    a.wait(vm=0); stamp(a, 15); a.wait(lgkm=0)
    if roles.AMP[0] is not None:
        k = roles.AMP[0]
        a('s_add_u32', 's10', 's64', 4000)
        if k > 0:
            a('s_sub_u32', 's11', s(64+2*k), 's64'); a('s_lshl_b32', 's11', 's11', 2)
            a('s_cmp_eq_u32', s(64+2*k), 0); a('s_cselect_b32', 's11', 0, 's11'); a('s_add_u32', 's10', 's10', 's11')
        a.label('Lamp')
        a('s_sleep', 8); a('s_memrealtime', 's[12:13]'); a.wait(lgkm=0)
        a('s_sub_u32', 's11', 's12', 's10'); a('s_cmp_lt_i32', 's11', 0); a('s_cbranch_scc1', 'Lamp')
        return
    a('s_add_u32', 's10', 's64', 1600)
    a.label('Lamp2')
    a('s_sleep', 32); a('s_memrealtime', 's[12:13]'); a.wait(lgkm=0)
    a('s_sub_u32', 's11', 's12', 's10'); a('s_cmp_lt_i32', 's11', 0); a('s_cbranch_scc1', 'Lamp2')
    a('s_lshl_b32', 's8', 's2', 4); a('s_add_u32', 's8', 's8', 's3'); a('s_lshl_b32', 's8', 's8', 6); a('s_add_u32', 's8', 's8', roles.WS_ST)
    a('s_mov_b64', 'exec', 1); a('v_mov_b32', 'v1', 's8')
    for i in range(16): a('v_mov_b32', v(4+i), s(64+2*i))
    for i in range(4): a('global_store_dwordx4', 'v1', v(4+4*i, 4), WS_, mods=f'offset:{16*i}')

def bar0(a, epoch=False):
    a.wait(lgkm=0)
    if epoch:
        a('s_add_u32', 's54', 's38', WS_EP); a('s_addc_u32', 's55', 's39', 0)
        a('s_load_dword', 's52', 's[54:55]', 0)
    stamp(a, 1)
    a('s_barrier')
def epoch_ready(a):
    a.wait(lgkm=0); a('s_add_u32', 's52', 's52', 1)

def row_offsets(a, o, t, sbase, pitch_rows):
    a('v_lshlrev_b32', v(t), 4, 'v0')
    a('v_add_u32', v(o[0]), sbase, v(t))
    a('v_add_u32', v(o[1]), pitch_rows - 24*16 - 1024, v(o[0]))
    a('v_cmp_gt_u32', 'vcc', 24, 'v0')
    a('v_cndmask_b32', v(o[1]), v(o[1]), v(o[0]), 'vcc')
    a('v_min_u32', v(t), 39*16, v(t))
    a('v_add_u32', v(t), pitch_rows + 40*16 - 2048, v(t))
    a('v_add_u32', v(o[2]), sbase, v(t))
def d1_addrs(a, out, t, u, va, vbase):
    a('v_mul_u32_u24', v(t), 5, v(va))
    for e in range(5):
        if e:
            a('v_add_u32', v(t), 16, v(t)); a('v_subrev_u32', v(u), 80, v(t)); a('v_min_u32', v(t), v(t), v(u))
        a('v_lshl_add_u32', v(out[e]), v(t), 4, v(vbase))
def ei_addrs(a, a0, a1, t, u, pitch, dup):
    a('s_mul_i32', 's8', 's3', pitch); a('s_add_u32', 's8', 's8', L_EI)
    a('v_lshl_add_u32', v(a0), 'v0', 4, 's8')
    a('v_and_b32', v(t), 15, 'v0'); a('v_lshrrev_b32', v(u), 4, 'v0')
    a('v_cmp_gt_u32', 'vcc', 9, v(t))
    if dup:
        a('v_subrev_u32', v(a1), 8, v(t)); a('v_cndmask_b32', v(t), v(a1), v(t), 'vcc')
    a('v_mad_u32_u24', v(t), v(u), 9, v(t))
    a('s_add_u32', 's8', 's8', 2048)
    a('v_lshl_add_u32', v(a1), v(t), 4, 's8')
    if not dup:
        a('v_lshlrev_b32', v(t), 4, 'v0'); a('v_add_u32', v(t), L_EI + 8*2640, v(t))
        a('v_cndmask_b32', v(a1), v(t), v(a1), 'vcc')
def m2_mats(a, Mre, Mim, tmp, inv, scale):
    u2, t, u, ang, C, S = tmp, tmp+1, tmp+2, tmp+3, tmp+7, tmp+11
    a('v_and_b32', v(u2), 7, 'v0'); a('v_cvt_f32_u32', v(u2), v(u2)); a('v_mul_f32', v(u2), fl(1/8), v(u2))
    a('v_bfe_u32', v(t if inv else u), 'v0', 3, 1); a('v_lshrrev_b32', v(u if inv else t), 5, 'v0')
    a('v_lshl_add_u32', v(t), v(t), 10, 's9'); a('v_mul_u32_u24', v(t), v(t), v(u))
    a('v_cvt_f32_u32', v(t), v(t)); a('v_mul_f32', v(t), fl(1/2048), v(t))
    a('v_bfe_u32', v(u), 'v0', 4, 1); a('v_lshlrev_b32', v(u), 2, v(u)); a('v_cvt_f32_u32', v(u), v(u))
    a('v_fma_f32', v(ang), v(u2), v(u), v(t))
    for r in range(1, 4): a('v_add_f32', v(ang+r), v(ang+r-1), v(u2))
    for r in range(4): sincos(a, ang+r, C+r, S+r)
    if scale:
        for r in range(8): a('v_mul_f32', v(C+r), fl(scale), v(C+r))
    for r in range(4):
        a('v_cvt_pk_bf16_f32', v(Mre+r), v(C+r), ('-' if inv else '') + v(S+r))
        a('v_cvt_pk_bf16_f32', v(Mim+r), ('' if inv else '-') + v(S+r), v(C+r))

CODE_END = [20480]
def entry(a):
    a.raw(f".globl {KNAME}\n.p2align 12\n.type {KNAME},@function\n{KNAME}:")
    a('s_cmp_ge_u32', 's2', 256); a('s_cbranch_scc1', 'Lexit')
    if STAMPS[0]:
        for i in range(1, 16): a('s_mov_b32', s(64+2*i), 0)
    stamp(a, 0)
    a('s_load_dwordx16', 's[16:31]', 's[0:1]', 0)
    a('s_load_dwordx8', 's[32:39]', 's[0:1]', 64)
    a('v_lshrrev_b32', 'v1', 6, 'v0')
    a('s_getpc_b64', 's[42:43]'); a('s_and_b32', 's42', 's42', 0xfffff000)
    a('s_bitcmp1_b32', 's2', 3); a('s_cselect_b32', 's8', CODE_END[0] - 11264, 0); a('s_add_u32', 's42', 's42', 's8'); a('s_addc_u32', 's43', 's43', 0)
    a('v_readfirstlane_b32', 's3', 'v1')
    a('v_lshlrev_b32', 'v2', 4, 'v0'); a('v_mov_b32', 'v3', 's43')
    a('v_add_co_u32', 'v2', 'vcc', 's42', 'v2'); a('v_addc_co_u32', 'v3', 'vcc', 0, 'v3', 'vcc')
    lc_ = newlabel('Le'); a('s_cmp_ge_u32', 's3', 11); a('s_cbranch_scc1', lc_)
    a('global_load_dwordx4', 'v[122:125]', 'v[2:3]', 'off')
    a.label(lc_)
    a('v_and_b32', 'v0', 63, 'v0')
    a('s_and_b32', 's4', 's2', 7); a('s_bfe_u32', 's5', 's2', (1 << 16) | 3); a('s_lshr_b32', 's6', 's2', 4)
    a('s_lshl3_add_u32', 's7', 's6', 's4')
    tag_consts(a)
    a('s_mul_i32', 's53', 's4', 80); a('s_mul_i32', 's8', 's6', 5); a('s_add_u32', 's53', 's53', 's8'); a('s_lshl1_add_u32', 's53', 's5', 's53')
    a('v_lshlrev_b32', 'v1', 2, 'v0'); a('v_mov_b32', 'v2', 0)
    a('ds_write_b32', 'v1', 'v2', mods=f'offset:{L_CNT}')
    a('s_cmp_ge_u32', 's3', 12); a('s_cbranch_scc1', 'Lbar0')
    a('s_cmp_lg_u32', 's5', 0); a('s_cbranch_scc1', 'LentO')
    a('s_cmp_ge_u32', 's3', 8); a('s_cbranch_scc1', 'LentP')
    a('s_lshl_b32', 's9', 's3', 7); a('s_add_u32', 's9', 's9', 's7'); a('s_mul_i32', 's10', 's9', 1280)
    row_offsets(a, [1, 2, 3], 4, 's10', 1024*1280)
    a('s_mul_i32', 's11', 's3', 3072); a('s_add_u32', 's11', 's11', L_XR); a('s_mov_b32', 'm0', 's11')
    for t in range(3): a('global_load_lds_dwordx4', v(1+t), X_, mods=f'offset:{1024*t}')
    a('s_branch', 'LA1')
    a.label('LentP')
    a('s_mul_i32', 's10', 's6', 128*1280); a('s_mul_i32', 's8', 's4', 160); a('s_add_u32', 's10', 's10', 's8')
    a('s_bitcmp1_b32', 's3', 0); a('s_cselect_b32', 's8', 156, 0); a('s_add_u32', 's10', 's10', 's8'); a('s_add_u32', 's10', 's10', 64*1280)
    a('v_mul_u32_u24', 'v1', 1280, 'v0'); a('v_add_u32', 'v1', 's10', 'v1')
    a('s_bitcmp1_b32', 's3', 1); a('s_cselect_b64', 's[12:13]', V_, K_)
    a('global_load_dword', 'v126', 'v1', 's[12:13]')
    a('s_branch', 'Lbar0')
    a.label('LentO')
    a('s_cmp_ge_u32', 's3', 9); a('s_cbranch_scc1', 'Lbar0')
    R = RegAlloc(1, 120)
    vo = quad_voff(a, R); t = R.alloc()
    a('s_mul_i32', 's10', 's6', 128*1280); a('s_mul_i32', 's8', 's4', 160); a('s_add_u32', 's10', 's10', 's8')
    a('s_sub_u32', 's8', 's10', 4*1280); a('v_add_u32', v(t), 's8', v(vo))
    NB = 2048*1280
    srd(a, 44, 's24', 's25', NB); srd(a, 48, 's26', 's27', NB)
    a('s_mov_b32', 'exec_hi', 0xff)
    a('s_cmp_eq_u32', 's3', 8); a('s_cbranch_scc1', 'LentH')
    a('s_mul_i32', 's11', 's3', 8*1280); a('s_add_u32', 's11', 's11', 's10')
    a('s_mul_i32', 's12', 's3', 1296); a('s_add_u32', 's12', 's12', L_KI + 1296)
    for k in range(4):
        a('s_mov_b32', 'm0', 's12')
        a('buffer_load_dwordx4', v(vo), 's[44:47]', 's11', mods='offen lds')
        a('s_add_u32', 'm0', 's12', L_VI - L_KI - 1296)
        a('buffer_load_dwordx4', v(vo), 's[48:51]', 's11', mods='offen lds')
        if k == 1: a('s_add_u32', 's11', 's11', 60*1280); a('s_addk_i32', 's12', 8*1296 - 640)
        elif k < 3: a('s_addk_i32', 's11', 4*1280); a('s_addk_i32', 's12', 640)
    a('s_branch', 'LentX')
    a.label('LentH')
    a('s_mov_b32', 'm0', L_KI + 640)
    a('buffer_load_dwordx4', v(t), 's[44:47]', 0, mods='offen lds')
    a.label('LentX')
    a('s_mov_b64', 'exec', -1)
    a.label('Lbar0')
    bar0(a, epoch=True)
    a('s_cmp_ge_u32', 's3', 12); a('s_cbranch_scc1', 'LA2')
    a('s_cmp_eq_u32', 's5', 0); a('s_cbranch_scc1', 'LW1')
    a('s_cmp_ge_u32', 's3', 10); a('s_cbranch_scc1', 'LauxO')
    a('s_branch', 'LB1')
    a.label('Lexit')
    a('s_endpgm')

def A1(a):
    a.label('LA1')
    a('s_setprio', 2)
    coop_tables(a, RegAlloc(1, 100), L_TABH, L_TW, a3=False)
    bar0(a)
    t, u, q, ea0, ea1, tr2, go = 1, 2, 3, 4, 5, 6, 7
    Hs, Gs, TW, Mre, Mim, AC, P0, Dr = 8, 24, 40, 64, 68, 72, 96, 104
    tra = [114+e for e in range(5)]; PK = 104; X = P0; va, vb = 119, 120
    a('v_lshlrev_b32', v(u), 4, 'v0'); a('v_add_u32', v(t), L_TABH, v(u)); a('v_add_u32', v(u), L_TW, v(u))
    m2_mats(a, Mre, Mim, AC, False, None)
    for k in (3, 0, 1, 2):
        a('ds_read_b128', v(Hs+4*k, 4), v(t), mods=f'offset:{1024*k}'); a('ds_read_b128', v(Gs+4*k, 4), v(t), mods=f'offset:{4096+1024*k}')
    for k in (2, 3, 4, 5, 0, 1): a('ds_read_b128', v(TW+4*k, 4), v(u), mods=f'offset:{1024*k}')
    a('v_lshrrev_b32', v(va), 2, 'v0'); a('v_lshrrev_b32', v(q), 4, 'v0')
    a('v_bfe_u32', v(vb), 'v0', 1, 1); a('v_mul_u32_u24', v(vb), 1408, v(vb))
    a('v_and_b32', v(t), 1, 'v0'); a('v_lshl_add_u32', v(vb), v(t), 3, v(vb)); a('v_add_u32', v(vb), 's11', v(vb))
    d1_addrs(a, tra, t, u, va, vb)
    a('v_mov_b32', v(va), L_CNT + 4*C_X); a('v_mov_b32', v(vb), 1)
    stamp(a, 2)
    a.wait(vm=0)
    stamp(a, 3)
    for e in range(5): a('ds_read_b64_tr_b16', v(Dr + 2*((e + 4) % 5), 2), v(tra[e]))
    lds_cnt_add(a, va, vb)
    ei_addrs(a, ea0, ea1, t, u, 2624, dup=False)
    a('v_mfma_f32_16x16x16_bf16', v(P0, 4), v(Dr+8, 2), v(Hs+12, 2), 0)
    a('v_mfma_f32_16x16x16_bf16', v(P0+4, 4), v(Dr+8, 2), v(Gs+12, 2), 0)
    a('v_bfe_u32', v(tr2), 'v0', 2, 2); a('v_mul_u32_u24', v(tr2), 2624, v(tr2))
    a('v_and_b32', v(t), 3, 'v0'); a('v_lshl_add_u32', v(tr2), v(t), 3, v(tr2)); a('v_lshl_add_u32', v(tr2), v(q), 5, v(tr2))
    PAIR = {1: (0, 4), 2: (1, 3), 0: (6, 6)}
    MF = 'v_mfma_f32_16x16x32_bf16'
    for k5 in (1, 2, 0):
        for ri, M in enumerate((Hs, Gs)): a(MF, v(AC+8*k5+4*ri, 4), v(Dr, 4), v(M + 2*PAIR[k5][0], 4), v(P0+4*ri, 4))
        for ri, M in enumerate((Hs, Gs)): a(MF, v(AC+8*k5+4*ri, 4), v(Dr+4, 4), v(M + 2*PAIR[k5][1], 4), v(AC+8*k5+4*ri, 4))
        if k5 == 1:
            a('s_lshl_b32', 's8', 's3', 7); a('s_add_u32', 's8', 's8', L_EI); a('v_add_u32', v(tr2), 's8', v(tr2))
            a('s_mul_i32', 's8', 's7', TBLK); a('s_lshl_b32', 's12', 's3', 10); a('s_add_u32', 's8', 's8', 's12')
            a('v_lshl_add_u32', v(go), 'v0', 4, 's8')
    A2r = Hs
    for k5 in (1, 2, 0):
        for r in range(4):
            re, im, c, s_ = AC+8*k5+r, AC+8*k5+4+r, TW+8*k5+r, TW+8*k5+4+r
            a('v_mul_f32', v(X+r), v(re), v(c)); a('v_mul_f32', v(X+4+r), v(im), v(c))
            a('v_fmac_f32', v(X+r), v(im), v(s_)); a('v_fma_f32', v(X+4+r), '-' + v(re), v(s_), v(X+4+r))
            a('v_cvt_pk_bf16_f32', v(PK+4*k5+r), v(X+r), v(X+4+r))
        a(MF, v(A2r+8*k5, 4), v(Mre, 4), v(PK+4*k5, 4), 0); a(MF, v(A2r+8*k5+4, 4), v(Mim, 4), v(PK+4*k5, 4), 0)
    for k5 in (1, 2, 0):
        for r in range(4): a('v_cvt_pk_bf16_f32', v(PK+4*k5+r), v(A2r+8*k5+r), v(A2r+8*k5+4+r))
        if k5: a('ds_write_b128', v(ea0), v(PK+4*k5, 4), mods=f'offset:{1024*(k5-1)}')
        else: a('ds_write_b128', v(ea1), v(PK, 4))
    stamp(a, 4)
    subbar(a, C_A1, 8, t, u)
    O = AC
    for it in range(3):
        if it == 2:
            skip = newlabel('La1s'); a('s_cmp_gt_u32', 's3', 4); a('s_cbranch_scc1', skip)
        a('ds_read_b64_tr_b16', v(O+4*it, 2), v(tr2), mods=f'offset:{1024*it}')
        a('ds_read_b64_tr_b16', v(O+4*it+2, 2), v(tr2), mods=f'offset:{1024*it + 4*2624}')
        if it == 1:
            for k in range(2):
                for j in range(4): tag1(a, O+4*k+j, j)
                a('global_store_dwordx4', v(go), v(O+4*k, 4), WS_, mods=SC)
                a('v_add_u32', v(go), 8192, v(go))
    for j in range(4): tag1(a, O+8+j, j)
    a('s_cmp_lt_u32', 's3', 4); a('s_cselect_b32', 'exec_hi', -1, 0)
    a('global_store_dwordx4', v(go), v(O+8, 4), WS_, mods=SC)
    a('s_mov_b64', 'exec', -1)
    a.label(skip)
    stamp(a, 5)
    a('s_setprio', 0)
    a('s_add_u32', 's54', 's38', WS_EP); a('s_addc_u32', 's55', 's39', 0); a('s_load_dword', 's52', 's[54:55]', 0)
    coop_tables(a, RegAlloc(1, 60), L_T3H, L_T3W, a3=True)
    epoch_ready(a)
    arrive(a, C_A1D, 1, 2, vm=True)
    stamp(a, 6)
    a('s_branch', 'LB2')

def A3(a):
    a.label('LA3')
    PIT = 2640
    t, u, go, go2, go3, lw, ea0, ea1, rd, n, vb = range(1, 12)
    vo = [12, 13, 14]; wa = [15, 16, 17, 18, 19]
    Mre, Mim, TW, F, IN, X, P0, Yx, AC = 20, 24, 28, 52, 72, 84, 92, 96, 100
    Y = [Yx, AC, AC+4, AC+8, AC+12]
    a('s_mul_i32', 's8', 's7', TBLK); a('s_lshl_b32', 's12', 's3', 10); a('s_add_u32', 's12', 's8', 's12')
    a('v_lshl_add_u32', v(go), 'v0', 4, 's12'); a('v_add_u32', v(go2), 8192, v(go))
    a('s_add_u32', 's8', 's8', TBLK - 16)
    a('v_add_u32', v(go3), 16384, v(go)); a('v_min_u32', v(go3), 's8', v(go3))
    a('v_and_b32', v(t), 1, 'v0'); a('v_mul_u32_u24', v(lw), 4*PIT, v(t))
    a('v_lshrrev_b32', v(t), 1, 'v0'); a('v_lshl_add_u32', v(lw), v(t), 2, v(lw))
    a('s_lshl_b32', 's8', 's3', 7); a('s_add_u32', 's8', 's8', L_EI); a('v_add_u32', v(lw), 's8', v(lw))
    await_cnt(a, C_A1D, 8, t, u)
    a('v_lshlrev_b32', v(t), 4, 'v0'); a('v_add_u32', v(u), L_T3W, v(t)); a('v_add_u32', v(t), L_T3H, v(t))
    for k in range(5): a('ds_read_b128', v(F+4*k, 4), v(t), mods=f'offset:{1024*k}')
    for k in range(6): a('ds_read_b128', v(TW+4*k, 4), v(u), mods=f'offset:{1024*k}')
    wait_lds(a, C_A2+3, 4, t, u)
    stamp(a, 11)
    a('s_setprio', 2)
    def loads():
        for k, g_ in enumerate((go, go2, go3)): a('global_load_dwordx4', v(IN+4*k, 4), v(g_), WS_, mods=SC)
    loads()
    ei_addrs(a, ea0, ea1, t, u, PIT, dup=True)
    a('s_lshl_b32', 's9', 's3', 7); a('s_add_u32', 's9', 's9', 's7'); a('s_mul_i32', 's10', 's9', 2560)
    a('s_mul_i32', 's11', 's3', 3072); a('s_add_u32', 's11', 's11', L_XR)
    row_offsets(a, vo, t, 's10', 1024*2560)
    m2_mats(a, Mre, Mim, AC, True, 2.0/(2048*640))
    a('v_and_b32', v(n), 15, 'v0')
    a('v_lshrrev_b32', v(vb), 5, 'v0'); a('v_mul_u32_u24', v(vb), 1408, v(vb))
    a('v_bfe_u32', v(t), 'v0', 4, 1); a('v_lshl_add_u32', v(vb), v(t), 3, v(vb)); a('v_add_u32', v(vb), 's11', v(vb))
    d1_addrs(a, wa, t, u, n, vb)
    a('v_lshl_add_u32', v(rd), 'v0', 4, 's11')
    poll_tags(a, loads, [IN, IN+4, IN+8], t, 2, LS[0], pre=True)
    stamp(a, 12)
    for it in range(3):
        if it == 2:
            skip = newlabel('La3s'); a('s_cmp_gt_u32', 's3', 4); a('s_cbranch_scc1', skip)
            a('s_cmp_lt_u32', 's3', 4); a('s_cselect_b32', 'exec_hi', -1, 0)
        for x in range(4): a('ds_write_b32', v(lw), v(IN+4*it+x), mods=f'offset:{1024*it + PIT*x}')
    a('s_mov_b64', 'exec', -1)
    a.label(skip)
    subbar(a, C_A3, 8, t, u)
    stamp(a, 13)
    Z = IN; PK = Z
    a('ds_read_b128', v(Z, 4), v(ea1))
    a('ds_read_b128', v(Z+4, 4), v(ea0)); a('ds_read_b128', v(Z+8, 4), v(ea0), mods='offset:1024')
    MF = 'v_mfma_f32_16x16x32_bf16'
    for k5 in range(3):
        a(MF, v(AC+8*k5, 4), v(Z+4*k5, 4), v(Mre, 4), 0); a(MF, v(AC+8*k5+4, 4), v(Z+4*k5, 4), v(Mim, 4), 0)
    for k5 in range(3):
        for r in range(4):
            re, im, c, s_ = AC+8*k5+r, AC+8*k5+4+r, TW+8*k5+r, TW+8*k5+4+r
            a('v_mul_f32', v(X+r), v(re), v(c)); a('v_mul_f32', v(X+4+r), v(im), v(c))
            a('v_fma_f32', v(X+r), '-' + v(im), v(s_), v(X+r)); a('v_fmac_f32', v(X+4+r), v(re), v(s_))
            if r & 1:
                a('v_cvt_pk_bf16_f32', v(PK+4*k5+(r >> 1)), v(X+r-1), v(X+r))
                a('v_cvt_pk_bf16_f32', v(PK+4*k5+2+(r >> 1)), v(X+4+r-1), v(X+4+r))
        if k5 == 0: a(MF, v(P0, 4), v(PK, 4), v(F, 4), 0)
        else:
            for e in range(5): a(MF, v(Y[e], 4), v(PK+4*k5, 4), v(F+4*((e*k5) % 5), 4), v(P0, 4) if k5 == 1 else v(Y[e], 4))
    for e in range(5):
        a('v_cvt_pk_bf16_f32', v(TW+2*e), v(Y[e]), v(Y[e]+1)); a('v_cvt_pk_bf16_f32', v(TW+2*e+1), v(Y[e]+2), v(Y[e]+3))
        a('ds_write_b64', v(wa[e]), v(TW+2*e, 2))
    for k in range(3): a('ds_read_b128', v(Z+4*k, 4), v(rd), mods=f'offset:{1024*k}')
    a('global_store_dwordx4', v(vo[0]), v(Z, 4), OUT_, mods=SC)
    a('s_mov_b32', 'exec_lo', 0xff00ffff)
    a('global_store_dwordx4', v(vo[1]), v(Z+4, 4), OUT_, mods='offset:1024 sc1')
    a('s_mov_b32', 'exec_lo', -1); a('s_mov_b32', 'exec_hi', 0xff)
    a('global_store_dwordx4', v(vo[2]), v(Z+8, 4), OUT_, mods='offset:2048 sc1')
    stamp(a, 14)
    ske = newlabel('Lep')
    a('s_mov_b64', 'exec', 1)
    a('s_or_b32', 's8', 's2', 's3'); a('s_cmp_lg_u32', 's8', 0); a('s_cbranch_scc1', ske)
    a('v_mov_b32', v(t), WS_EP); a('v_mov_b32', v(u), 's52')
    a('global_store_dword', v(t), v(u), WS_, mods=SC)
    a.label(ske)
    a('s_mov_b64', 'exec', -1)

def B1(a):
    a.label('LB1')
    a('s_setprio', 2)
    R = RegAlloc(1, 120)
    t = R.alloc(); u = R.alloc()
    lb, uo, pr, od = b13_lane(a, R, WS_U)
    CF = R.alloc(4); C = R.alloc(8)
    a('s_mul_i32', 's8', 's4', 640); a('v_lshl_add_u32', v(t), v(pr), 4, 's8')
    a('global_load_dwordx4', v(CF, 4), v(t), SK_)
    msk = R.alloc(); a('v_mov_b32', v(msk), 0xffff0000)
    for j in range(4):
        for ch in range(2):
            src = CF + 2*ch + (j >> 1)
            if j & 1: a('v_and_b32', v(C+2*j+ch), v(msk), v(src))
            else: a('v_lshlrev_b32', v(C+2*j+ch), 16, v(src))
    subbar(a, C_B1, 10, t, u, vm=True)
    stamp(a, 3)
    Kd = R.alloc(12); Vd = R.alloc(8); Kf = R.alloc(22); T = R.alloc(4); O = R.alloc(8); res = R.alloc(4); uo2 = R.alloc()
    for i in range(11): a('ds_read_b32', v(Kd+i), v(lb), mods=f'offset:{(800 + 160*i if i < 3 else 1296 + 160*(i-3))}')
    for i in range(8): a('ds_read_b32', v(Vd+i), v(lb), mods=f'offset:{L_VI - L_KI + 160*i}')
    a('v_add_u32', v(uo2), 4096, v(uo))
    def unp(i):
        a('v_lshlrev_b32', v(Kf+2*i), 16, v(Kd+i)); a('v_and_b32', v(Kf+2*i+1), v(msk), v(Kd+i))
    for i in range(3): unp(i)
    for i in range(8):
        unp(i+3)
        for ch in range(2):
            acc = T + ch; dst = res + 2*(i & 1) + ch
            a('v_mul_f32', v(acc), v(Kf+2*i+ch), v(C+6+ch))
            for j in (2, 1, 0): a('v_fmac_f32', v(acc), v(Kf+2*(i+3-j)+ch), v(C+2*j+ch))
            if ch: a('v_and_b32', v(T+2+ch), v(msk), v(Vd+i))
            else: a('v_lshlrev_b32', v(T+2+ch), 16, v(Vd+i))
            a('v_mul_f32', v(dst), v(acc), v(T+2+ch))
        if i & 1:
            for ch in range(2):
                d = O+4*ch+3-(i >> 1)
                a('v_cvt_pk_bf16_f32', v(d), v(res+2+ch), v(res+ch)); tag1(a, d, 3-(i >> 1))
    stamp(a, 4)
    a('global_store_dwordx4', v(uo), v(O, 4), WS_, mods=SC)
    a('global_store_dwordx4', v(uo2), v(O+4, 4), WS_, mods=SC)
    stamp(a, 5)
    a('s_setprio', 0)
    a('s_branch', 'LB2')

def auxO(a):
    a.label('LauxO')
    R = RegAlloc(1, 120); t = R.alloc(); u = R.alloc(); vo = R.alloc(); vh = R.alloc(); vh2 = R.alloc(); wa = R.alloc(); wh = R.alloc()
    T = R.alloc(12); D = R.alloc(54)
    a('s_sub_u32', 's62', 's3', 10); a('s_lshl_b32', 's62', 's62', 11)
    a('v_lshlrev_b32', v(t), 4, 'v0'); a('v_add_u32', v(vo), 's62', v(t)); a('v_subrev_u32', v(vh), 128, v(t)); a('v_subrev_u32', v(vh2), 112, v(t))
    a('v_add_u32', v(wh), L_H, v(t)); a('v_add_u32', v(wa), 's62', v(wh))
    for k in range(4): a('v_mov_b32', v(T+k), 0)
    for lc in range(3): u_pad(a, lc, T, t)
    wait_lds(a, C_B1, 1, t, u)
    for lc in range(3):
        h_srd(a, lc)
        for b in range(2):
            a('buffer_load_dwordx4', v(D+18*lc+6*b, 4), v(vo), 's[44:47]', 0, mods=f'offen offset:{1024*b}')
            a('buffer_load_dwordx2', v(D+18*lc+6*b+4, 2), v(vo), 's[44:47]', 0, mods=f'offen offset:{1024*b+16}')
        h_load(a, D+18*lc+12, vh, vh2, 0)
    for lc in range(3):
        for b in range(2): h_expand(a, D+18*lc+6*b, T, wa, lc*HSZ + 128 + 1024*b)
        a('s_mov_b64', 'exec', 0xff)
        h_expand(a, D+18*lc+12, T, wh, lc*HSZ)
        a('s_mov_b64', 'exec', -1)
    a('v_mov_b32', v(t), L_CNT + 4*C_H); a('v_mov_b32', v(u), 2); a.wait(lgkm=0); lds_cnt_add(a, t, u)
    stamp(a, 6)
    a('s_branch', 'LB2')

def B3(a):
    a.label('LB3')
    a('s_cmp_ge_u32', 's3', 10); a('s_cbranch_scc1', 'Lfin')
    R = RegAlloc(1, 120)
    t = R.alloc(); u = R.alloc()
    lb, uo, pr, od = b13_lane(a, R, WS_U)
    uo2 = R.alloc(); a('v_add_u32', v(uo2), 4096, v(uo))
    Z = R.alloc(8); oo = R.alloc(); rd = R.alloc(); msk = R.alloc(); a('v_mov_b32', v(msk), 0xffff0000)
    def loads():
        a('global_load_dwordx4', v(Z, 4), v(uo), WS_, mods=SC); a('global_load_dwordx4', v(Z+4, 4), v(uo2), WS_, mods=SC)
    wait_lds(a, C_HZ, 6, t, u)
    stamp(a, 11)
    a('s_setprio', 2)
    loads()
    a('v_mul_u32_u24', v(t), 26, 'v0'); a('v_lshrrev_b32', v(t), 8, v(t))
    a('v_mul_u32_u24', v(oo), 2560 - 160, v(t)); a('v_lshl_add_u32', v(oo), 'v0', 4, v(oo))
    a('s_lshl_b32', 's8', 's6', 3); a('s_add_u32', 's8', 's8', 's3'); a('s_mul_i32', 's8', 's8', 16*2560)
    a('s_mul_i32', 's9', 's4', 160); a('s_add_u32', 's8', 's8', 's9'); a('s_add_u32', 's8', 's8', 1280); a('v_add_u32', v(oo), 's8', v(oo))
    a('s_mul_i32', 's8', 's3', 2*1296); a('s_add_u32', 's8', 's8', L_VI); a('v_lshl_add_u32', v(rd), 'v0', 4, 's8')
    await_cnt(a, C_QL, 8, t, u)
    Qd = R.alloc(8); Qf = R.alloc(16); T = R.alloc(4); O = R.alloc(16)
    for i in range(8): a('ds_read_b32', v(Qd+i), v(lb), mods=f'offset:{L_VI - L_KI + 160*i}')
    for i in range(8):
        a('v_lshlrev_b32', v(Qf+2*i), 16, v(Qd+i)); a('v_and_b32', v(Qf+2*i+1), v(msk), v(Qd+i))
    poll_tags(a, loads, [Z, Z+4], t, 2, LS[0], pre=True)
    stamp(a, 12)
    for i in range(8):
        for ch in range(2):
            src = Z + 4*ch + 3 - (i >> 1)
            if i & 1: a('v_lshlrev_b32', v(T+ch), 16, v(src))
            else: a('v_and_b32', v(T+ch), v(msk), v(src))
            a('v_mul_f32', v(T+ch), v(T+ch), v(Qf+2*i+ch))
        a('v_cvt_pk_bf16_f32', v(Qd+i), v(T), v(T+1))
        a('ds_write_b32', v(lb), v(Qd+i), mods=f'offset:{L_VI - L_KI + 160*i}')
    subbar(a, C_Q, 10, t, u)
    stamp(a, 13)
    a('s_cmp_ge_u32', 's3', 8); a('s_cbranch_scc1', 'Lfin')
    a('s_mov_b32', 'exec_hi', 0xff)
    for k in range(4): a('ds_read_b128', v(O+4*k, 4), v(rd), mods=f'offset:{(k >> 1)*1296 + (k & 1)*640}')
    for k in range(4):
        a('global_store_dwordx4', v(oo), v(O+4*k, 4), OUT_, mods=SC)
        if k < 3: a('v_add_u32', v(oo), 4*2560, v(oo))
    stamp(a, 14)
    a('s_mov_b64', 'exec', -1)

def B2(a):
    a.label('LB2')
    R = RegAlloc(1, 126)
    t = R.alloc(); u = R.alloc(); lw = R.alloc(); U = R.alloc(8); go = R.alloc(); msk = R.alloc()
    n = R.alloc(); q = R.alloc(); aa = R.alloc(); ba = R.alloc(); ba2 = R.alloc(); ia = R.alloc(); ra = R.alloc()
    fi = R.alloc(); sa = R.alloc(); sa2 = R.alloc(); sr = R.alloc(); zo = R.alloc(); ca = R.alloc()
    ACC = R.alloc(16); NW = 6; RA = R.alloc(4*NW + 2); RA2 = R.alloc(4*NW + 2); NBR = 6; RB = R.alloc(4*NBR)
    a('s_lshr_b32', 's9', 's3', 2); a('s_and_b32', 's10', 's3', 3)
    a('s_sub_u32', 's11', 's10', 's9'); a('s_and_b32', 's11', 's11', 3)
    a('s_add_u32', 's13', 's53', 's9')
    a('s_lshl_b32', 's8', 's13', 1); a('s_and_b32', 's8', 's8', -4)
    a('s_load_dword', 's58', D_, 's8')
    a('s_mul_i32', 's15', 's9', USZ); a('s_add_u32', 's15', 's15', L_U)
    a('v_lshrrev_b32', v(t), 3, 'v0'); a('v_lshlrev_b32', v(t), 4, v(t)); a('v_lshl_add_u32', v(lw), 'v0', 4, v(t))
    a('s_mul_i32', 's8', 's10', 8*144); a('s_add_u32', 's8', 's8', 's15'); a('v_add_u32', v(lw), 's8', v(lw))
    a('s_lshl_b32', 's8', 's13', 12); a('s_lshl_b32', 's12', 's10', 10); a('s_add_u32', 's8', 's8', 's12'); a('s_add_u32', 's8', 's8', WS_U)
    a('v_lshl_add_u32', v(go), 'v0', 4, 's8')
    a('s_lshl_b32', 's60', 's9', 2); a('s_add_u32', 's60', 's60', L_CNT + 4*C_U)
    a('v_and_b32', v(n), 15, 'v0'); a('v_lshrrev_b32', v(q), 4, 'v0')
    a('v_mov_b32', v(msk), 0xffff0000)
    a('v_and_b32', v(t), 1, 'v0'); a('v_mul_u32_u24', v(aa), 529*16, v(t))
    a('v_bfe_u32', v(t), 'v0', 1, 1); a('v_mul_u32_u24', v(t), 264*16, v(t)); a('v_add_u32', v(aa), v(aa), v(t))
    a('v_bfe_u32', v(t), 'v0', 2, 2); a('v_lshl_add_u32', v(aa), v(t), 5, v(aa))
    a('s_cmp_eq_u32', 's11', 0); a('s_cselect_b32', 's12', 1, 0)
    a('s_add_u32', 's14', 's12', 8); a('v_lshl_add_u32', v(aa), v(q), 's14', v(aa))
    a('s_cmp_eq_u32', 's11', 1); a('s_cselect_b32', 's14', 2048, 0)
    a('s_cmp_eq_u32', 's11', 3); a('s_cselect_b32', 's14', 1040, 's14')
    a('s_mul_i32', 's8', 's9', HSZ); a('s_add_u32', 's8', 's8', 's14'); a('s_add_u32', 's8', 's8', L_H)
    a('v_add_u32', v(aa), 's8', v(aa))
    a('s_add_u32', 's14', 's12', 1); a('v_lshlrev_b32', v(t), 's14', v(q)); a('v_sub_u32', v(t), v(t), v(n))
    a('s_lshl_b32', 's14', 's12', 4); a('s_sub_u32', 's14', 31, 's14'); a('v_add_u32', v(t), 's14', v(t))
    a('v_mul_u32_u24', v(ba), 144, v(t)); a('v_add_u32', v(ba), 's15', v(ba))
    a('s_cmp_eq_u32', 's11', 2); a('s_cselect_b32', 's14', 31, 15)
    a('v_sub_u32', v(t), 's14', v(n)); a('v_mul_u32_u24', v(ia), 144, v(t)); a('v_add_u32', v(ia), 's15', v(ia))
    a('v_lshlrev_b32', v(t), 5, v(q)); a('v_sub_u32', v(ia), v(ia), v(t))
    a('s_mul_i32', 's59', 's9', REDSZ); a('s_add_u32', 's59', 's59', L_RED); a('v_lshl_add_u32', v(ra), 'v0', 4, 's59')
    lnh = newlabel('Lb2'); a('s_cmp_lg_u32', 's11', 3); a('s_cbranch_scc1', lnh)
    a('v_and_b32', v(t), 7, 'v0'); a('v_lshlrev_b32', v(u), 1, v(q)); a('v_sub_u32', v(u), v(u), v(t)); a('v_add_u32', v(u), 31, v(u))
    a('v_mul_u32_u24', v(ba), 144, v(u)); a('v_add_u32', v(ba), 's15', v(ba))
    a('v_and_b32', v(u), 8, 'v0'); a('v_xor_b32', v(u), 8, v(u)); a('v_lshl_add_u32', v(ba), v(u), 1, v(ba)); a('v_lshl_add_u32', v(ba2), v(u), 1, v(ba))
    a('v_lshl_add_u32', v(t), v(q), 3, v(t)); a('v_lshlrev_b32', v(t), 4, v(t)); a('v_and_b32', v(u), 8, 'v0'); a('v_lshl_add_u32', v(t), v(u), 7, v(t))
    a('v_add_u32', v(ra), 's59', v(t))
    a.label(lnh)
    stamp(a, 7)
    lo2 = newlabel('Lb2'); lo3 = newlabel('Lb2')
    a('s_cmp_lg_u32', 's5', 0); a('s_cbranch_scc1', lo3)
    if OPT['probe']:
        lo4 = newlabel('Lb2'); a('s_cmp_lg_u32', 's3', 4); a('s_cbranch_scc1', lo4)
        NP = OPT['probe']
        a('v_and_b32', v(u), NP - 1, 'v0'); a('v_mul_u32_u24', v(u), 4096//NP, v(u)); a('s_and_b32', 's8', 's6', 32//NP - 1); a('s_lshl_b32', 's8', 's8', 7)
        a('s_lshl_b32', 's14', 's13', 12); a('s_add_u32', 's8', 's8', 's14'); a('s_add_u32', 's8', 's8', WS_U); a('v_add_u32', v(ca), 's8', v(u))
        poll_tags(a, lambda: a('global_load_dwordx4', v(U, 4), v(ca), WS_, mods=SC), [U], t, 1, OPT['psl'])
        arrive(a, C_PR, t, u)
        a('s_branch', lo2)
        a.label(lo4)
        wait_lds(a, C_PR, 1, t, u)
    else:
        wait_lds(a, OPT['eg'], 4, t, u)
    a('s_branch', lo2)
    a.label(lo3)
    lx = newlabel('Lb2'); a('s_cmp_ge_u32', 's3', 10); a('s_cbranch_scc1', lx)
    arrive(a, C_B1D, t, u, vm=True)
    stamp(a, 6)
    a.label(lx)
    wait_lds(a, C_B1D, 10, t, u)
    a.label(lo2)
    stamp(a, 2)
    def ul(): a('global_load_dwordx4', v(U, 4), v(go), WS_, mods=SC)
    ul()
    a.wait(lgkm=0)
    a('s_bitcmp1_b32', 's13', 0); a('s_cselect_b32', 's8', 0, 16); a('s_lshl_b32', 's58', 's58', 's8'); a('s_and_b32', 's58', 's58', 0xffff0000)
    a('s_cmp_gt_u32', 's3', 5); a('s_cselect_b32', 's98', 2, 1); a('s_sub_u32', 's98', 's3', 's98'); a('s_min_u32', 's98', 's98', 8)
    a('s_cmp_lg_u32', 's12', 0); a('s_cselect_b32', 's98', 8, 's98')
    for x in range(16): a('v_mov_b32', v(ACC+x), 0)
    a('s_lshl_b32', 's14', 's9', 3); a('s_add_u32', 's14', 's14', L_CNT + 4*C_RED); a('v_mov_b32', v(ca), 's14')
    a('v_and_b32', v(u), 7, 'v0'); a('v_lshl_add_u32', v(u), v(q), 3, v(u)); a('s_lshl_b32', 's8', 's12', 11); a('s_add_u32', 's8', 's8', 's59'); a('s_add_u32', 's8', 's8', 4096)
    a('v_lshl_add_u32', v(fi), v(u), 4, 's8')
    a('v_sub_u32', v(t), 15, v(n)); a('v_lshlrev_b32', v(u), 1, v(q)); a('v_sub_u32', v(u), 6, v(u))
    a('v_xor_b32', v(u), v(t), v(u)); a('v_and_b32', v(u), 7, v(u)); a('v_lshlrev_b32', v(u), 4, v(u))
    a('v_lshl_add_u32', v(sa), v(t), 7, v(u)); a('v_add_u32', v(sa), 's8', v(sa)); a('v_xor_b32', v(sa2), 16, v(sa))
    a('v_lshrrev_b32', v(t), 3, 'v0'); a('v_xor_b32', v(u), v(t), 'v0'); a('v_and_b32', v(u), 7, v(u)); a('v_lshlrev_b32', v(u), 4, v(u))
    a('v_lshl_add_u32', v(sr), v(t), 7, v(u)); a('v_add_u32', v(sr), 's8', v(sr))
    a('s_lshl_b32', 's8', 's13', 12); a('s_lshl_b32', 's14', 's12', 11); a('s_sub_u32', 's8', 's8', 's14'); a('s_add_u32', 's8', 's8', WS_U + 2048)
    a('v_lshl_add_u32', v(zo), 'v0', 4, 's8')
    await_cnt(a, C_H, 4, t, u)
    poll_tags(a, ul, [U], t, 1, XS[0], pre=True)
    a('ds_write_b128', v(lw), v(U, 4))
    stamp(a, 8)
    subbar_s(a, 's60', 4, t, u)
    MF = 'v_mfma_f32_16x16x32_bf16'
    PD = 3
    def rdA(ring, w, off, last):
        if w > last: return
        a('ds_read_b128', v(ring + 4*(w % NW), 4), v(aa), mods=f'offset:{off + 16*w}')
        if w and w % NW == 0: a('ds_read_b64', v(ring+4*NW, 2), v(aa), mods=f'offset:{off + 16*w}')
    def rdB(tau, last, hi=False):
        if tau > last: return
        a('ds_read_b128', v(RB + 4*(tau % NBR), 4), v(ba2 if (hi and tau % 8 == 7) else ba), mods=f'offset:{144*(tau >> 3) + 16*(tau & 7)}')
    a('s_cmp_eq_u32', 's11', 3); a('s_cbranch_scc1', 'LB2hi')
    rdB(0, 32); rdA(RA, 1, 0, 33)
    for k in range(PD): rdB(k+1, 32); rdA(RA, k+2, 0, 33)
    lp_ = newlabel('Lb2'); a('s_cmp_eq_u32', 's11', 0); a('s_cbranch_scc1', lp_)
    a('s_setprio', 1)
    a('ds_read_b128', v(U, 4), v(ia), mods='offset:96'); a('ds_read_b128', v(U+4, 4), v(ia), mods='offset:112')
    for x in range(16):
        e = 15 - x
        if e & 1: a('v_and_b32', v(ACC+x), v(msk), v(U + (e >> 1)))
        else: a('v_lshlrev_b32', v(ACC+x), 16, v(U + (e >> 1)))
        a('v_mul_f32', v(ACC+x), 's58', v(ACC+x))
    pend = a.snap[lp_][0]
    a.label(lp_)
    a.lg = list(pend[1])
    stamp(a, 9)
    for tau in range(32):
        if tau == 16:
            a.raw('    s_cmp_eq_u32 s12, 0'); a.raw('    s_cbranch_scc1 LB2r'); a.bytes += 8
            a.snap.setdefault('LB2r', []).append((list(a.vm), list(a.lg)))
        d0 = (4*(tau+1)) % (4*NW)
        for k, (acc, dd, bt) in enumerate(((2, d0, tau), (3, d0+2, tau), (0, d0, tau+1), (1, d0+2, tau+1))):
            a(MF, v(ACC+4*acc, 4), v(RA+dd, 4), v(RB + 4*(bt % NBR), 4), v(ACC+4*acc, 4))
            if k == 1: rdB(tau + PD + 1, 32)
            if k == 3: rdA(RA, tau + PD + 2, 0, 33)
    a.label('LB2r'); a._nop(8)
    stamp(a, 10)
    lf = newlabel('Lb2')
    a('v_mov_b32', v(u), 1)
    a('s_cmp_lg_u32', 's11', 1); a('s_cbranch_scc1', lf)
    for tt in range(4): a('ds_write_b128', v(ra), v(ACC+4*tt, 4), mods=f'offset:{1024*tt}')
    a.wait(lgkm=0); lds_cnt_add(a, ca, u)
    a('s_branch', 'LB2end')
    a.label('LB2hi')
    a('s_setprio', 1)
    rdA(RA, 0, 0, 16); rdA(RA2, 0, 2048, 16)
    for k in range(PD): rdB(k, 15, True); rdA(RA, k+1, 0, 16); rdA(RA2, k+1, 2048, 16)
    stamp(a, 9)
    for tau in range(16):
        d0 = (4*tau) % (4*NW)
        for k, (acc, ring, dd) in enumerate(((0, RA, d0), (1, RA, d0+2), (2, RA2, d0), (3, RA2, d0+2))):
            a(MF, v(ACC+4*acc, 4), v(ring+dd, 4), v(RB + 4*(tau % NBR), 4), v(ACC+4*acc, 4))
            if k == 0: rdB(tau + PD, 15, True)
            if k == 1: rdA(RA, tau + PD + 1, 0, 16)
            if k == 3: rdA(RA2, tau + PD + 1, 2048, 16)
    stamp(a, 10)
    a('v_mov_b32', v(u), 1)
    for acc in range(4): a('ds_write_b128', v(ra), v(ACC+4*acc, 4), mods=f'offset:{4096 + 2048*(acc >> 1) + 512*(acc & 1)}')
    a.wait(lgkm=0)
    a('s_mov_b64', 'exec', 1); a('ds_add_u32', v(ca), v(u)); a('ds_add_u32', v(ca), v(u), mods='offset:4'); a('s_mov_b64', 'exec', -1)
    a('s_branch', 'LB2end')
    a.label(lf)
    a('s_setprio', 3)
    a('s_lshl_b32', 's8', 's11', 1); a('v_add_u32', v(t), 's8', v(ca)); a('s_add_u32', 's14', 's12', 1)
    lp = newlabel('Lb2'); a.label(lp)
    a('ds_read_b32', v(u), v(t)); a('v_readfirstlane_b32', 's40', v(u)); a('s_cmp_lt_u32', 's40', 's14'); a('s_cbranch_scc1', lp)
    for tt in range(4): a('ds_read_b128', v(RA+4*tt, 4), v(fi), mods=f'offset:{512*tt}')
    ls = newlabel('Lb2'); a('s_cmp_eq_u32', 's12', 0); a('s_cbranch_scc1', ls)
    for tt in range(4): a('ds_read_b128', v(RB+4*tt, 4), v(ra), mods=f'offset:{1024*tt}')
    for x in range(16): a('v_add_f32', v(ACC+x), v(ACC+x), v(RB+x))
    a.label(ls)
    a('s_mov_b32', 'exec_lo', 0xff00ff00); a('s_mov_b32', 'exec_hi', 0xff00ff00)
    for x in range(16): a('v_add_f32', v(ACC+x), v(ACC+x), v(RA+x))
    a('s_mov_b64', 'exec', -1)
    for jj in range(8):
        a('v_cvt_pk_bf16_f32', v(U+jj), v(ACC+15-2*jj), v(ACC+14-2*jj)); tag2(a, U+jj, jj)
        if jj == 3: a('ds_write_b128', v(sa), v(U, 4))
    a('ds_write_b128', v(sa2), v(U+4, 4))
    a('ds_read_b128', v(RB, 4), v(sr)); a('ds_read_b128', v(RB+4, 4), v(sr), mods='offset:1024')
    a('global_store_dwordx4', v(zo), v(RB, 4), WS_, mods=SC)
    a('global_store_dwordx4', v(zo), v(RB+4, 4), WS_, mods=f'offset:1024 {SC}')
    a('s_cmp_eq_u32', 's5', 0); a('s_cbranch_scc1', 'LB2end')
    arrive(a, C_HZ, t, u, vm=True)
    a.label('LB2end')
    a('s_setprio', 0)
    a.wait(lgkm=0)
    a('s_cmp_eq_u32', 's5', 0); a('s_cbranch_scc1', 'LA3')
    a('s_cmp_eq_u32', 's98', 8); a('s_cbranch_scc1', 'LB3')
    srd(a, 44, 's22', 's23', 2048*1280)
    a('v_mul_u32_u24', v(t), 26, 'v0'); a('v_lshrrev_b32', v(t), 8, v(t)); a('v_mul_u32_u24', v(u), 1280 - 160, v(t)); a('v_lshl_add_u32', v(u), 'v0', 4, v(u))
    a('s_lshl_b32', 's8', 's6', 3); a('s_add_u32', 's8', 's8', 's98'); a('s_mul_i32', 's8', 's8', 16*1280); a('s_mul_i32', 's14', 's4', 160); a('s_add_u32', 's8', 's8', 's14')
    a('s_mul_i32', 's14', 's98', 2*1296); a('s_mov_b32', 'exec_hi', 0xff)
    for k in range(4):
        a('s_add_u32', 'm0', 's14', L_VI + (k >> 1)*1296 + (k & 1)*640)
        a('buffer_load_dwordx4', v(u), 's[44:47]', 's8', mods='offen lds')
        if k < 3: a('s_addk_i32', 's8', 4*1280)
    a('s_mov_b64', 'exec', -1)
    arrive(a, C_QL, t, u, vm=True)
    a('s_branch', 'LB3')

def W1(a):
    a.label('LW1')
    R = RegAlloc(1, 120)
    WB = 2048*321*2
    a('s_sub_u32', 's10', 's3', 8)
    vo = R.alloc(); t = R.alloc(); u = R.alloc(); k0 = R.alloc(); vc = R.alloc(); go = R.alloc(); go2 = R.alloc(); mk = R.alloc()
    vq = R.alloc(); vh = R.alloc(); vh2 = R.alloc()
    a('v_lshlrev_b32', v(vo), 4, 'v0'); a('v_mov_b32', v(mk), 0xfffefffe)
    a('v_lshrrev_b32', v(t), 3, 'v0')
    a('v_mul_u32_u24', v(k0), 65, v(t))
    a('v_mul_u32_u24', v(u), 205, v(k0)); a('v_lshrrev_b32', v(u), 14, v(u))
    a('v_mul_u32_u24', v(u), 80, v(u)); a('v_sub_u32', v(k0), v(k0), v(u))
    a('s_and_b32', 's12', 's10', 1); a('s_lshr_b32', 's13', 's10', 1)
    a('s_cmp_eq_u32', 's12', 0)
    a('s_cselect_b32', 's14', 2, -2); a('s_cselect_b32', 's15', 0, 640)
    a('s_mul_i32', 's8', 's13', 642); a('s_add_u32', 's15', 's15', 's8'); a('s_add_u32', 's15', 's15', L_A2 + 1296)
    a('s_cmp_eq_u32', 's10', 3); a('s_cselect_b32', 's8', 1, 0); a('s_add_u32', 's8', 's8', 's7')
    a('s_cmp_eq_u32', 's8', 128); a('s_cselect_b32', 's41', 1296, 0); a('s_sub_u32', 's15', 's15', 's41')
    a('s_and_b32', 's8', 's8', 127)
    a('v_bfe_u32', v(t), 'v0', 1, 2); a('v_mul_u32_u24', v(t), 80, v(t))
    a('v_and_b32', v(u), 1, 'v0'); a('v_mul_u32_u24', v(u), 11664, v(u)); a('v_add_u32', v(u), 's15', v(u))
    a('v_mad_i32_i24', v(vc), v(t), 's14', v(u))
    a('s_mul_i32', 's8', 's8', TBLK); a('s_add_u32', 's8', 's8', WS_W)
    a('s_lshl_b32', 's41', 's10', 11); a('s_add_u32', 's41', 's41', 's8')
    a('v_add_u32', v(go), 's41', v(vo))
    a('s_mul_i32', 's41', 's10', 9*128); a('s_add_u32', 's41', 's41', 's8'); a('s_add_u32', 's41', 's41', 128*128)
    a('v_add_u32', v(go2), 's41', v(vo))
    ads = [R.alloc() for _ in range(6)]
    for it, C in enumerate((16, 56, 32, 72, 0, 40)):
        if C:
            a('v_add_u32', v(t), C, v(k0)); a('v_subrev_u32', v(u), 80, v(t)); a('v_min_u32', v(t), v(t), v(u))
            a('v_mad_i32_i24', v(ads[it]), v(t), 's14', v(vc))
        else: a('v_mad_i32_i24', v(ads[it]), v(k0), 's14', v(vc))
    O = R.alloc(24); Hh = R.alloc(24); D = R.alloc(18); T = R.alloc(12)
    a('s_lshl_b32', 's8', 's10', 10); a('v_add_u32', v(vq), 's8', v(vo)); a('v_subrev_u32', v(vh), 128, v(vo)); a('v_subrev_u32', v(vh2), 112, v(vo))
    for k in range(4): a('v_mov_b32', v(T+k), 0)
    u_pad(a, 's12', T, t)
    epoch_ready(a)
    wtag_regs(a, 56)
    a('s_mul_i32', 's14', 's7', 1284)
    a('s_mul_i32', 's11', 's10', 2*256*642); a('s_add_u32', 's14', 's14', 's11')
    a('s_mul_i32', 's11', 's10', 2*1296); a('s_add_u32', 's11', 's11', L_A2 + 1296)
    srd(a, 44, 's18', 's19', WB); srd(a, 48, 's20', 's21', WB)
    wait_lds(a, C_X, 8, t, u)
    def slot(soff, m0v_s, add):
        for pl, sd in enumerate((44, 48)):
            a('s_add_u32', 'm0', m0v_s, add + pl*11664)
            a('buffer_load_dwordx4', v(vo), s(sd, 4), soff, mods='offen lds')
            a('s_mov_b64', 'exec', 0x1ffff)
            a('buffer_load_dwordx4', v(vo), s(sd, 4), soff, mods='offen offset:1024 lds')
            a('s_mov_b64', 'exec', -1)
    slot('s14', 's11', 0)
    a('s_add_u32', 's14', 's14', 256*642)
    slot('s14', 's11', 1296)
    sk = newlabel('Lw1s')
    a('s_cmp_lg_u32', 's7', 127); a('s_cbranch_scc1', sk)
    a('s_cmp_lg_u32', 's10', 3); a('s_cbranch_scc1', sk)
    a('s_mov_b32', 's11', L_A2)
    slot('s14', 's11', 0)
    a.label(sk)
    for lc in range(2):
        h_srd(a, lc)
        a('buffer_load_dwordx4', v(D+6*lc, 4), v(vq), 's[44:47]', 0, mods='offen'); a('buffer_load_dwordx2', v(D+6*lc+4, 2), v(vq), 's[44:47]', 0, mods='offen offset:16')
    h_srd(a, 's12'); h_load(a, D+12, vh, vh2, 0)
    stamp(a, 2)
    a('s_setprio', 1)
    a.wait(vm=6)
    subbar(a, C_W1, 4, t, u)
    stamp(a, 3)
    def comb(it):
        for k in range(4): a('v_lshl_or_b32', v(O+4*it+k), v(Hh+4*it+k), 16, v(O+4*it+k))
        for k in range(4): a('v_and_or_b32', v(O+4*it+k), v(O+4*it+k), v(mk), s(56+k))
    for it in range(6):
        for i in range(8): a('ds_read_u16', v((Hh if i & 1 else O) + 4*it + (i >> 1)), v(ads[it]), mods=f'offset:{1296*i}')
        if it: comb(it - 1)
        if it == 2:
            for k in range(2): a('global_store_dwordx4', v(go), v(O+4*k, 4), WS_, mods=f'offset:{1024*k} {SC}')
            a('v_add_u32', v(go), 8192, v(go))
        if it == 4:
            for k in range(2): a('global_store_dwordx4', v(go), v(O+8+4*k, 4), WS_, mods=f'offset:{1024*k} {SC}')
    comb(5)
    a('global_store_dwordx4', v(go2), v(O+16, 4), WS_, mods=SC)
    a('s_mov_b64', 'exec', 0xff)
    a('global_store_dwordx4', v(go2), v(O+20, 4), WS_, mods=f'offset:1024 {SC}')
    a('s_mov_b64', 'exec', -1)
    stamp(a, 4)
    arrive(a, C_W1R, t, u)
    a('v_add_u32', v(vq), L_H, v(vq)); a('s_mul_i32', 's8', 's12', HSZ); a('s_add_u32', 's8', 's8', L_H); a('v_add_u32', v(vh), 's8', v(vo))
    for lc in range(2): h_expand(a, D+6*lc, T, vq, lc*HSZ + 128)
    a('s_mov_b64', 'exec', 0xff)
    h_expand(a, D+12, T, vh, 0)
    a('s_mov_b64', 'exec', -1)
    arrive(a, C_H, t, u)
    stamp(a, 5)
    arrive(a, C_W1D, t, u, vm=True)
    stamp(a, 6)
    a('s_branch', 'Lfin')

def A2(a):
    a.label('LA2')
    a('s_lshl_b32', 's9', 's5', 7); a('s_add_u32', 's9', 's9', 's7')
    a('s_cmp_ge_u32', 's9', 164); a('s_cbranch_scc1', 'Lfin')
    t, u, go, lw, lr0, lr1, msk, X, C, Sm, N, TC, TS, Z, AC, Wp = 1, 2, 3, 4, 5, 6, 7, 8, 16, 24, 32, 40, 56, 72, 88, 120
    o, h, of, hf, t2 = Z, Z+1, Z+2, Z+3, Z+4
    a('s_sub_u32', 's10', 's3', 12)
    a('s_cmp_lg_u32', 's5', 0); a('s_mov_b32', 's63', (L_A2W - L_A2T) & 0xffffffff); a('s_cselect_b32', 's63', (L_KI - L_A2T) & 0xffffffff, 's63')
    a('v_lshrrev_b32', v(t), 3, 'v0'); a('v_lshl_add_u32', v(t), 's10', 3, v(t))
    a('s_mov_b32', 's8', TBLK); a('v_mul_lo_u32', v(go), v(t), 's8')
    a('v_and_b32', v(u), 7, 'v0'); a('v_lshl_add_u32', v(go), v(u), 4, v(go))
    a('s_lshl_b32', 's8', 's9', 7); a('v_add_u32', v(go), 's8', v(go))
    def swz(dst, line, piece):
        a('v_lshrrev_b32', v(dst), 1, v(line)); a('v_and_b32', v(t2), 1, v(line)); a('v_xor_b32', v(dst), v(dst), v(t2))
        a('v_xor_b32', v(dst), piece, v(dst)); a('v_and_b32', v(dst), 7, v(dst)); a('v_lshlrev_b32', v(dst), 4, v(dst))
        a('v_lshl_add_u32', v(dst), v(line), 7, v(dst)); a('v_add_u32', v(dst), L_A2T, v(dst))
    swz(lw, t, v(u))
    a('s_sub_u32', 's8', 's9', 128); a('s_mul_i32', 's8', 's8', 57); a('s_lshr_b32', 's8', 's8', 9)
    a('s_bfe_u32', 's11', 's9', (2 << 16) | 4); a('s_cmp_lt_u32', 's9', 128); a('s_cselect_b32', 's8', 's11', 's8')
    a('s_and_b32', 's8', 's8', 1); a('s_cmp_eq_u32', 's8', 0)
    a('s_cselect_b32', 's60', 0, 0x80008000); a('s_lshl_b32', 's11', 's8', 31); a('s_or_b32', 's11', 's11', fl(1/32))
    a('v_bfe_u32', v(o), 'v0', 3, 1); a('v_and_b32', v(t), 3, 'v0'); a('v_lshl_add_u32', v(o), v(o), 2, v(t))
    a('v_bfe_u32', v(t), 'v0', 4, 1); a('v_lshl_add_u32', v(o), v(o), 1, v(t))
    a('v_bfe_u32', v(t), 'v0', 2, 1); a('v_lshl_add_u32', v(o), v(o), 1, v(t))
    a('v_lshrrev_b32', v(h), 5, 'v0')
    a('v_lshl_add_u32', v(t), v(h), 5, v(o))
    a('s_lshl_b32', 's8', 's10', 1)
    swz(lr0, t, 's8'); a('v_xor_b32', v(lr1), 16, v(lr0))
    a('v_cvt_f32_u32', v(of), v(o)); a('v_mul_f32', v(of), 's11', v(of))
    a('v_cvt_f32_u32', v(hf), v(h)); a('v_mul_f32', v(hf), v(hf), v(of))
    for kap in range(2):
        for jj in range(4):
            for e in range(2):
                idx = 2*kap + 4*(2*jj + e)
                if idx: a('v_fmamk_f32', v(X+e), v(of), fl(float(idx)), v(hf)); src = X+e
                else: src = hf
                sincos(a, src, X+2+e, X+4+e)
                vv = 8*kap + 2*jj + e
                a('v_mul_f32', v(X+6+e), fl(1/32), v(src))
                sincos(a, X+6+e, TC+vv, TS+vv)
            a('v_cvt_pk_bf16_f32', v(C+4*kap+jj), v(X+2), v(X+3))
            a('v_cvt_pk_bf16_f32', v(Sm+4*kap+jj), v(X+4), v(X+5))
            a('v_xor_b32', v(N+4*kap+jj), 0x80008000, v(Sm+4*kap+jj))
    a('v_mov_b32', v(msk), 0xfffe0000)
    epoch_ready(a)
    wtag_regs(a, 56)
    for it in range(4):
        a('s_add_u32', s(44+2*it), 's38', 32*TBLK*it); a('s_addc_u32', s(45+2*it), 's39', 0)
    stamp(a, 2)
    def gate(cE, nE, cO, nO):
        a('s_cmp_lg_u32', 's5', 0); a('s_cselect_b32', 's8', L_CNT + 4*cO, L_CNT + 4*cE); a('s_cselect_b32', 's14', nO, nE)
        a('v_mov_b32', v(t), 's8')
        lq = newlabel('Lw'); a.raw(lq + ':')
        a('s_sleep', 1); a('ds_read_b32', v(u), v(t)); a('v_readfirstlane_b32', 's40', v(u)); a('s_cmp_lt_u32', 's40', 's14')
        a.raw(f'    s_cbranch_scc1 {lq}'); a.bytes += 4
    gate(C_A1D, 8, C_B1D, OPT['tgo'])
    if OPT['tge']: gate(OPT['tge'][0], OPT['tge'][1], C_B1D, 0)
    a('s_setprio', 3)
    stamp(a, 7)
    def tl():
        for it in range(4): a('global_load_dwordx4', v(AC+4*it, 4), v(go), s(44+2*it, 2), mods=SC)
    if OPT['tprobe']:
        a('s_mov_b64', 'exec', OPT['tprobe'])
        poll_tags(a, tl, [AC+4*i for i in range(4)], t, 1, OPT['psl'])
        a('s_mov_b64', 'exec', -1)
    poll_tags(a, tl, [AC+4*i for i in range(4)], t, 1, XS[0])
    stamp(a, 8)
    gate(C_W1R, 4, C_B1D, 0)
    for it in range(4): a('ds_write_b128', v(lw), v(AC+4*it, 4), mods=f'offset:{4096*it}')
    subbar(a, C_A2, 4, t, u)
    stamp(a, 9)
    for kap in range(2):
        for ri, ad in enumerate((lr0, lr1)): a('ds_read_b128', v(Z+8*kap+4*ri, 4), v(ad), mods=f'offset:{8192*kap}')
    MF = 'v_mfma_f32_32x32x16_bf16'
    def mm(dataA, inv):
        for kap in range(2):
            zr, zi = v(Z+8*kap, 4), v(Z+8*kap+4, 4)
            c, p, n = v(C+4*kap, 4), v(Sm+4*kap, 4), v(N+4*kap, 4)
            if inv: p, n = n, p
            for k, (dd, z, m) in enumerate(((AC, zr, c), (AC+16, zi, c), (AC, zi, p), (AC+16, zr, n))):
                cin = 0 if (kap == 0 and k < 2) else v(dd, 16)
                if dataA: a(MF, v(dd, 16), z, m, cin)
                else: a(MF, v(dd, 16), m, z, cin)
    gw, lww = X+6, X+7
    def wl(dst, its):
        for k, it in enumerate(its): a('global_load_dwordx4', v(dst+4*k, 4), v(gw), s(44+2*it, 2), mods=SC)
    def vst(st, kap):
        for jj in range(4):
            for e in range(2):
                vv = 8*kap + 2*jj + e
                re, im = AC+vv, AC+16+vv
                if st == 1:
                    c, s_ = X+4, X+5
                    for dst, pl in ((c, 0), (s_, 1)):
                        src = Wp + 4*pl + jj
                        if e: a('v_and_b32', v(dst), v(msk), v(src))
                        else: a('v_lshlrev_b32', v(dst), 16, v(src))
                else: c, s_ = TC+vv, TS+vv
                a('v_mul_f32', v(X+e), v(re), v(c)); a('v_mul_f32', v(X+2+e), v(im), v(c))
                if st == 0:
                    a('v_fmac_f32', v(X+e), v(im), v(s_)); a('v_fma_f32', v(X+2+e), '-' + v(re), v(s_), v(X+2+e))
                else:
                    a('v_fma_f32', v(X+e), '-' + v(im), v(s_), v(X+e)); a('v_fmac_f32', v(X+2+e), v(re), v(s_))
            a('v_cvt_pk_bf16_f32', v(Z+8*kap+jj), v(X), v(X+1))
            a('v_cvt_pk_bf16_f32', v(Z+8*kap+4+jj), v(X+2), v(X+3))
    mm(True, False)
    a('v_add_u32', v(gw), WS_W, v(go)); a('v_add_u32', v(lww), 's63', v(lw))
    gate(C_W1D, 4, C_B1D, 10)
    stamp(a, 11)
    wl(Wp, (0, 1))
    vst(0, 0)
    poll_tags(a, lambda: wl(Wp, (0, 1)), [Wp, Wp+4], t, 3, XS[0], tagsg=56, pre=True)
    for it in range(2): a('ds_write_b128', v(lww), v(Wp+4*it, 4), mods=f'offset:{4096*it}')
    a.wait(lgkm=0)
    wl(Wp, (2, 3))
    vst(0, 1)
    mm(False, False)
    poll_tags(a, lambda: wl(Wp, (2, 3)), [Wp, Wp+4], t, 3, XS[0], tagsg=56, pre=True)
    for it in range(2): a('ds_write_b128', v(lww), v(Wp+4*it, 4), mods=f'offset:{8192+4096*it}')
    subbar(a, C_A2+1, 4, t, u)
    stamp(a, 12)
    a('v_add_u32', v(t), 's63', v(lr0)); a('v_add_u32', v(u), 's63', v(lr1))
    a('ds_read_b128', v(Wp, 4), v(t)); a('ds_read_b128', v(Wp+4, 4), v(u))
    a('ds_read_b128', v(Z+8, 4), v(t), mods='offset:8192'); a('ds_read_b128', v(Z+12, 4), v(u), mods='offset:8192')
    for kap in range(2):
        src = Wp if kap == 0 else Z+8
        for i in range(8):
            if i & 4: a('v_bitop3_b32', v(Wp+i), v(src+i), -2, 's60', mods='bitop3:0x6a')
            else: a('v_and_b32', v(Wp+i), -2, v(src+i))
        vst(1, kap)
    mm(True, True)
    vst(2, 0); vst(2, 1)
    mm(False, True)
    for kap in range(2):
        for ih, ad in enumerate((lr0, lr1)):
            for x in range(4):
                vv = 8*kap + 4*ih + x
                a('v_cvt_pk_bf16_f32', v(Z+vv), v(AC+vv), v(AC+16+vv)); tag2(a, Z+vv, x)
            a('ds_write_b128', v(ad), v(Z+8*kap+4*ih, 4), mods=f'offset:{8192*kap}')
    stamp(a, 10)
    subbar(a, C_A2+2, 4, t, u)
    for it in range(4): a('ds_read_b128', v(AC+4*it, 4), v(lw), mods=f'offset:{4096*it}')
    for it in range(4): a('global_store_dwordx4', v(go), v(AC+4*it, 4), s(44+2*it, 2), mods=SC)
    a('s_setprio', 0)
    stamp(a, 13)
    arrive(a, C_A2+3, t, u, vm=True)
    a('s_branch', 'Lfin')

def build(stamps=False):
    STAMPS[0] = stamps
    for it in range(4):
        roles._lbl[0] = 0
        a = Asm()
        a.raw(f"; @launch grid=(256,1,1) block=(1024,1,1) lds={LDS_TOTAL}")
        a.raw('.amdgcn_target "amdgcn-amd-amdhsa--gfx950"\n.text')
        entry(a); A1(a); B1(a); W1(a); auxO(a); A2(a); B2(a)
        A3(a); a('s_branch', 'Lfin')
        B3(a)
        a.label('Lfin'); stamp_flush(a); a('s_endpgm')
        a.raw(kernel_desc(KNAME, 128, 102))
        end = a.bytes//64*64 - 64
        assert a.maxv < 128 and end <= 22528
        if end == CODE_END[0]: break
        CODE_END[0] = end
    print('est bytes', a.bytes, 'instrs', a.nins, 'maxv', a.maxv)
    return a.text()

if __name__ == '__main__':
    open('f16.s', 'w').write(build(False))
    open('f16st.s', 'w').write(build(True))
    OPT['tprobe'] = 1; OPT['tge'] = None; OPT['tgo'] = 1; open('f16a.s', 'w').write(build(False)); open('f16ast.s', 'w').write(build(True))
    OPT['tprobe'] = 0; OPT['tge'] = (C_H, 4); OPT['tgo'] = 10; open('f16b.s', 'w').write(build(False))
    for k in sys.argv[1:]:
        roles.AMP[0] = int(k); open(f'f16amp{k}.s', 'w').write(build(True))
```

```python
import sys
from asmlib import *
import roles
from roles import (X_, WR_, WI_, Q_, K_, V_, SK_, H_, D_, OUT_, DBG_, WS_, WS_T, WS_W, WS_U, WS_F, TBLK, HSZ, newlabel, stamp, stamp_flush,
                   sincos, row_offsets, d1_addrs, srd, quad_voff, STAMPS)
KNAME = "concat_heads__spectral_gfnet__ssm_conv_h3__prompt_kernel"
H_T, H_W, H_U, H_Z, H_T2 = WS_F, WS_F + 128*128, WS_F + 256*128, WS_F + 384*128, WS_F + 640*128
WS_EP = WS_F + 832*128
SPIN = 1 << 15
SC = 'sc1'
L_CNT = 0
L_H = 256
USZ = 40*144
L_U = L_H + 3*HSZ
L_RED = (L_U + 3*USZ + 127)//128*128
REDSZ = 8192
L_P1 = L_RED + 3*REDSZ - 8192 + 8192
L_P1 = (L_P1 + 255)//256*256
L_XR = L_P1; L_EI = L_XR + 8*3072; L_KI = L_P1; L_VI = L_KI + 17*1296
P1SZ = max(8*3072 + 8*2640 + 1024, 33*1296)
L_A2 = (L_P1 + P1SZ + 255)//256*256
A2SZ = 23552
LDS_TOTAL = L_A2 + A2SZ
assert LDS_TOTAL <= 163840, LDS_TOTAL
L_A2T = L_A2
L_A2W = (L_H + 2*HSZ + 255)//256*256
assert L_A2W + 16384 + 0 <= L_H + 3*HSZ + 0, (L_A2W, L_H + 3*HSZ)
L_TABH = L_RED + 2*REDSZ
L_TW = L_RED
L_T3H = L_U + 2*USZ
L_T3W = L_RED + 2*REDSZ
L_STG_E = L_A2 + 16384
roles.L_CNT, roles.L_EI, roles.L_KI, roles.L_VI, roles.L_XR = L_CNT, L_EI, L_KI, L_VI, L_XR
from roles import subbar, arrive, await_cnt, ei_addrs, b13_lane, tile_dma
C_A1, C_A1D, C_W1, C_W1D, C_A3, C_B1, C_B1D, C_H, C_Q, C_QL = 0, 1, 2, 3, 4, 5, 6, 7, 8, 9
C_A2 = 10
C_U = 20
C_X = 23
C_H0 = 18
C_RED = 24
import pk2
pk2.STAMPS = STAMPS
from pk2 import coop_tables, m2_mats, SEQ, A3K
XDELAY = [0]
WGATE = [8]
HGATE = [1]
GATE = [False]
ZGATE = [True]
LSLEEP = [8]
FSLEEP = [0, 0]
ONEPOLL = [True]

def lds_cnt_add(a, va, vb, rtn=False):
    a('s_mov_b64', 'exec', 1)
    if rtn: a('ds_add_rtn_u32', v(vb), v(va), v(vb))
    else: a('ds_add_u32', v(va), v(vb))
    a('s_mov_b64', 'exec', -1)

def subbar_s(a, saddr, n, va, vb, vm=False):
    a('v_mov_b32', v(va), saddr); a('v_mov_b32', v(vb), 1)
    a.wait(vm=0 if vm else None, lgkm=0)
    lds_cnt_add(a, va, vb, True)
    a('v_readfirstlane_b32', 's40', v(vb))
    done = newlabel('Lbd'); loop = newlabel('Lbl')
    a('s_cmp_ge_u32', 's40', n - 1); a('s_cbranch_scc1', done)
    a.label(loop)
    a('ds_read_b32', v(vb), v(va)); a('v_readfirstlane_b32', 's40', v(vb))
    a('s_cmp_lt_u32', 's40', n); a('s_cbranch_scc1', loop)
    a.label(done)

def publish(a, cid, n, flag_s, va, vb, ep='s52'):
    a('v_mov_b32', v(va), L_CNT + 4*cid); a('v_mov_b32', v(vb), 1)
    a.wait(vm=0, lgkm=0)
    a('s_mov_b64', 'exec', 1)
    a('ds_add_rtn_u32', v(vb), v(va), v(vb))
    a('v_readfirstlane_b32', 's40', v(vb))
    sk = newlabel('Lp')
    a('s_cmp_lg_u32', 's40', n - 1); a('s_cbranch_scc1', sk)
    if ep == 's52':
        a('s_mov_b64', 'exec', 0xff)
        a('v_lshl_add_u32', v(va), 'v0', 14, flag_s)
    else: a('v_mov_b32', v(va), flag_s)
    a('v_mov_b32', v(vb), ep)
    a('global_store_dword', v(va), v(vb), WS_, mods=SC)
    a.label(sk)
    a('s_mov_b64', 'exec', -1)

def poll_flags(a, vaddr, vt, ep='s52'):
    lp = newlabel('Lf'); dn = newlabel('Lf')
    a('s_mov_b32', 's41', SPIN)
    a.label(lp)
    a('global_load_dword', v(vt), v(vaddr), WS_, mods=SC)
    a('s_sub_u32', 's41', 's41', 1)
    a.wait(vm=0)
    a('v_cmp_ne_u32', 'vcc', ep, v(vt))
    a('s_cbranch_scc1', dn)
    sl = FSLEEP[0] if ep == 's52' else FSLEEP[1]
    if sl:
        a('s_cbranch_vccz', dn); a('s_sleep', sl); a('s_branch', lp)
    else: a('s_cbranch_vccnz', lp)
    a.label(dn)
S_M, S_C = 's100', 's101'
def tag_consts(a):
    a('s_mov_b32', S_M, 0xfffeffff); a('s_mov_b32', S_C, 0x10000)
def tag1(a, r, j):
    if j == 0: a('v_and_b32', v(r), 0xfffefffe, v(r))
    elif j == 1: a('v_and_or_b32', v(r), v(r), S_M, 1)
    elif j == 2: a('v_and_or_b32', v(r), v(r), -2, S_C)
    else: a('v_or_b32', v(r), 0x10001, v(r))
def tag2(a, r, j):
    if j & 1: a('v_and_b32', v(r), -2, v(r))
    else: a('v_or_b32', v(r), 1, v(r))
def poll_tags(a, loads, regs, vt, kind, sleep, tagsg=None, pre=False):
    lp = newlabel('Lg'); dn = newlabel('Lg')
    a('s_mov_b32', 's41', SPIN)
    if pre:
        ck = newlabel('Lg'); a('s_branch', ck); a.dead = False
    a.label(lp)
    loads()
    if pre: a.label(ck)
    a('s_sub_u32', 's41', 's41', 1)
    first = True
    for b in regs:
        if kind == 2:
            if first: a('v_bitop3_b32', v(vt), v(b), v(b+1), v(b+1), mods='bitop3:0xcf')
            else: a('v_bitop3_b32', v(vt), v(vt), v(b), v(b+1), mods='bitop3:0xfb')
            a('v_bitop3_b32', v(vt), v(vt), v(b+2), v(b+3), mods='bitop3:0xfb')
        elif kind == 1:
            if first: a('v_bitop3_b32', v(vt), v(b+3), v(b), v(b), mods='bitop3:0xcf')
            else: a('v_bitop3_b32', v(vt), v(vt), v(b+3), v(b), mods='bitop3:0xfb')
            a('v_bitop3_b32', v(vt), v(vt), v(b+1), 1, mods='bitop3:0xf6')
            a('v_bitop3_b32', v(vt), v(vt), v(b+2), S_C, mods='bitop3:0xf6')
        else:
            for j in range(4):
                if first and j == 0: a('v_xor_b32', v(vt), s(tagsg), v(b))
                else: a('v_bitop3_b32', v(vt), v(vt), v(b+j), s(tagsg+j), mods='bitop3:0xf6')
        first = False
    a('v_and_b32', v(vt), 1 if kind == 2 else 0x10001, v(vt))
    a('v_cmp_ne_u32', 'vcc', 0, v(vt))
    a('s_cbranch_scc1', dn)
    a('s_cbranch_vccz', dn); a('s_sleep', sleep); a('s_branch', lp)
    a.label(dn)
def wtag_regs(a, base):
    for j in range(4):
        a('s_add_u32', 's8', 's52', j); a('s_and_b32', s(base+j), 's8', 1); a('s_bitcmp1_b32', 's8', 1)
        a('s_cselect_b32', 's8', S_C, 0); a('s_or_b32', s(base+j), s(base+j), 's8')
def hint(a, caddr, n, flag_s, va, vb, ep):
    a('v_mov_b32', v(va), caddr); a('v_mov_b32', v(vb), 1)
    a('s_mov_b64', 'exec', 1)
    a('ds_add_rtn_u32', v(vb), v(va), v(vb))
    a('v_readfirstlane_b32', 's40', v(vb))
    sk = newlabel('Lp')
    a('s_add_u32', 's40', 's40', 1); a('s_cmp_lg_u32', 's40', n); a('s_cbranch_scc1', sk)
    a('v_mov_b32', v(va), flag_s); a('v_mov_b32', v(vb), ep)
    a('global_store_dword', v(va), v(vb), WS_, mods=SC)
    a.label(sk)
    a('s_mov_b64', 'exec', -1)
def poll_hints(a, vaddr, vt, vz, ep, nlanes):
    lp = newlabel('Lf'); dn = newlabel('Lf')
    a('s_mov_b32', 's41', SPIN); a('v_mov_b32', v(vz), 0)
    if nlanes < 32: a('s_mov_b64', 'exec', (1 << nlanes) - 1)
    else: a('s_mov_b32', 'exec_hi', 0)
    a.label(lp)
    a('global_atomic_add', v(vt), v(vaddr), v(vz), WS_, mods='sc0 sc1')
    a('s_sub_u32', 's41', 's41', 1)
    a.wait(vm=0)
    a('v_cmp_ne_u32', 'vcc', ep, v(vt))
    a('s_cbranch_scc1', dn)
    a('s_cbranch_vccnz', lp)
    a.label(dn)
    a('s_mov_b64', 'exec', -1)
def wait_lds(a, cid, n, t, u):
    a('v_mov_b32', v(t), L_CNT + 4*cid)
    lq = newlabel('Lw'); a.label(lq)
    a('s_sleep', 1); a('ds_read_b32', v(u), v(t)); a('v_readfirstlane_b32', 's40', v(u)); a('s_cmp_lt_u32', 's40', n); a('s_cbranch_scc1', lq)
C_HT, C_HU, C_HZ, C_GU, C_GZ, C_GT2 = 32, 33, 34, 35, 36, 37
NS = [8]
UH = [False]
TWOPASS = [True]
UMARG = [0]
ZDRAIN = [True]
HW = [False]
PF = [True]
LATE2 = [True]
A3ALL = [0]
EG = [C_W1D]
def drained(a, cid, va, vb):
    arrive(a, cid, va, vb, vm=True)
TAGX = [False, False]
XSLEEP = [8]
def poll_tag0(a, loads, regs, vt, sleep=0):
    lp = newlabel('Lg'); dn = newlabel('Lg')
    a('s_mov_b32', 's41', SPIN)
    a.label(lp)
    loads()
    a('s_sub_u32', 's41', 's41', 1)
    a('v_or_b32', v(vt), v(regs[0]), v(regs[1]))
    for k in range(2, len(regs), 2): a('v_or3_b32', v(vt), v(vt), v(regs[k]), v(regs[k+1]))
    a('v_and_b32', v(vt), 1, v(vt))
    a('v_cmp_ne_u32', 'vcc', 0, v(vt))
    a('s_cbranch_scc1', dn)
    if sleep:
        a('s_cbranch_vccz', dn); a('s_sleep', sleep); a('s_branch', lp)
    else: a('s_cbranch_vccnz', lp)
    a.label(dn)

def epoch_ready(a):
    a.wait(lgkm=0); a('s_add_u32', 's52', 's52', 1)
def bar0(a):
    a.wait(lgkm=0)
    a('s_add_u32', 's54', 's38', WS_EP); a('s_addc_u32', 's55', 's39', 0)
    a('s_load_dword', 's52', 's[54:55]', 0)
    stamp(a, 1)
    a('s_barrier')

CODE_HI = [6144]
def entry(a):
    a.raw(f".globl {KNAME}\n.p2align 12\n.type {KNAME},@function\n{KNAME}:")
    a('s_cmp_ge_u32', 's2', 256); a('s_cbranch_scc1', 'Lexit')
    if STAMPS[0]:
        for i in range(1, 16): a('s_mov_b32', s(64+2*i), 0)
    stamp(a, 0)
    a('s_load_dwordx16', 's[16:31]', 's[0:1]', 0)
    a('s_load_dwordx8', 's[32:39]', 's[0:1]', 64)
    a('s_getpc_b64', 's[42:43]'); a('s_and_b32', 's42', 's42', 0xfffff000)
    a('s_bitcmp1_b32', 's2', 3); a('s_cselect_b32', 's8', CODE_HI[0], 0); a('s_add_u32', 's42', 's42', 's8'); a('s_addc_u32', 's43', 's43', 0)
    a('v_lshlrev_b32', 'v2', 4, 'v0'); a('v_mov_b32', 'v3', 's43')
    a('v_add_co_u32', 'v2', 'vcc', 's42', 'v2'); a('v_addc_co_u32', 'v3', 'vcc', 0, 'v3', 'vcc')
    a('global_load_dwordx4', 'v[164:167]', 'v[2:3]', 'off')
    a('v_lshrrev_b32', 'v1', 6, 'v0'); a('v_and_b32', 'v0', 63, 'v0')
    a('v_readfirstlane_b32', 's3', 'v1')
    a('s_and_b32', 's4', 's2', 7); a('s_bfe_u32', 's5', 's2', (1 << 16) | 3); a('s_lshr_b32', 's6', 's2', 4)
    a('s_lshl3_add_u32', 's7', 's6', 's4')
    tag_consts(a)
    a('s_mul_i32', 's53', 's4', 80); a('s_mul_i32', 's8', 's6', 5); a('s_add_u32', 's53', 's53', 's8'); a('s_lshl1_add_u32', 's53', 's5', 's53')
    a('v_lshlrev_b32', 'v1', 2, 'v0'); a('v_mov_b32', 'v2', 0)
    a('ds_write_b32', 'v1', 'v2', mods=f'offset:{L_CNT}')
    a('s_cmp_lg_u32', 's5', 0); a('s_cbranch_scc1', 'LentO')
    a('s_cmp_ge_u32', 's3', 8); a('s_cbranch_scc1', 'LentP' if PF[0] else 'LauxE')
    R = RegAlloc(1, 160)
    a('s_lshl_b32', 's9', 's3', 7); a('s_add_u32', 's9', 's9', 's7'); a('s_mul_i32', 's10', 's9', 1280)
    vo = row_offsets(a, R, 's10', 1024*1280)
    a('s_mul_i32', 's11', 's3', 3072); a('s_add_u32', 's11', 's11', L_XR); a('s_mov_b32', 'm0', 's11')
    if XDELAY[0]: a('s_sleep', XDELAY[0])
    for t in range(3): a('global_load_lds_dwordx4', v(vo[t]), X_, mods=f'offset:{1024*t}')
    a('s_branch', 'LA1')
    if PF[0]:
        a.label('LentP')
        a('s_mul_i32', 's10', 's6', 128*1280); a('s_mul_i32', 's8', 's4', 160); a('s_add_u32', 's10', 's10', 's8')
        a('s_bitcmp1_b32', 's3', 0); a('s_cselect_b32', 's8', 156, 0); a('s_add_u32', 's10', 's10', 's8'); a('s_add_u32', 's10', 's10', 64*1280)
        a('v_mul_u32_u24', 'v1', 1280, 'v0'); a('v_add_u32', 'v1', 's10', 'v1')
        a('s_bitcmp1_b32', 's3', 1); a('s_cselect_b64', 's[12:13]', V_, K_)
        a('global_load_dword', 'v87', 'v1', 's[12:13]')
        a('s_branch', 'LauxE')
    a.label('LentO')
    a('s_cmp_ge_u32', 's3', 9); a('s_cbranch_scc1', 'Lbar0')
    R = RegAlloc(1, 160)
    vo = quad_voff(a, R); t = R.alloc()
    a('s_mul_i32', 's10', 's6', 128*1280); a('s_mul_i32', 's8', 's4', 160); a('s_add_u32', 's10', 's10', 's8')
    a('s_sub_u32', 's8', 's10', 4*1280); a('v_add_u32', v(t), 's8', v(vo))
    NB = 2048*1280
    srd(a, 44, 's24', 's25', NB); srd(a, 48, 's26', 's27', NB)
    a('s_mov_b32', 'exec_hi', 0xff)
    a('s_cmp_eq_u32', 's3', 8); a('s_cbranch_scc1', 'LentH')
    if PF[0]:
        a('s_mul_i32', 's11', 's3', 8*1280); a('s_add_u32', 's11', 's11', 's10')
        a('s_mul_i32', 's12', 's3', 1296); a('s_add_u32', 's12', 's12', L_KI + 1296)
    else:
        a('s_mul_i32', 's11', 's3', 16*1280); a('s_add_u32', 's11', 's11', 's10')
        a('s_mul_i32', 's12', 's3', 2*1296); a('s_add_u32', 's12', 's12', L_KI + 1296)
    for k in range(4):
        a('s_mov_b32', 'm0', 's12')
        a('buffer_load_dwordx4', v(vo), 's[44:47]', 's11', mods='offen lds')
        a('s_add_u32', 'm0', 's12', L_VI - L_KI - 1296)
        a('buffer_load_dwordx4', v(vo), 's[48:51]', 's11', mods='offen lds')
        if k < 3:
            if PF[0] and k == 1:
                a('s_add_u32', 's11', 's11', 60*1280); a('s_addk_i32', 's12', 8*1296 - 640)
            else:
                a('s_addk_i32', 's11', 4*1280); a('s_addk_i32', 's12', 640 if k != 1 else 656)
    a('s_branch', 'LentX')
    a.label('LentH')
    a('s_mov_b32', 'm0', L_KI + 640)
    a('buffer_load_dwordx4', v(t), 's[44:47]', 0, mods='offen lds')
    a.label('LentX')
    a('s_mov_b64', 'exec', -1)
    a.label('Lbar0')
    bar0(a)
    a('s_cmp_ge_u32', 's3', 10); a('s_cbranch_scc1', 'LauxO')
    a('s_branch', 'LB1')
    a.label('Lexit')
    a('s_endpgm')

def h_copy(a, R, slc, sc):
    mk = R.mark()
    vo = R.alloc(); Hd = R.alloc(4); t = R.alloc()
    a('s_lshl_b32', 's8', sc, 1); a('s_add_u32', 's8', 's8', 2); a('v_lshl_add_u32', v(vo), 'v0', 4, 's8')
    a('s_and_b32', 's12', sc, 1); a('s_mul_i32', 's12', 's12', 529*16); a('s_lshr_b32', 's13', sc, 1); a('s_mul_i32', 's13', 's13', 264*16)
    a('s_add_u32', 's12', 's12', 's13'); a('s_mul_i32', 's13', slc, HSZ); a('s_add_u32', 's12', 's12', 's13'); a('s_add_u32', 's12', 's12', L_H)
    a('s_add_u32', 's8', 's53', slc); a('s_lshl_b32', 's8', 's8', 12)
    a('s_load_dwordx2', 's[56:57]', H_, 's8')
    a('s_add_u32', 's44', 's30', 's8'); a('s_addc_u32', 's45', 's31', 0); a('s_and_b32', 's45', 's45', 0xffff)
    a('s_mov_b32', 's46', 4096); a('s_mov_b32', 's47', 0x20000)
    a('s_add_u32', 'm0', 's12', 128)
    for b in range(4): a('buffer_load_dwordx4', v(vo), 's[44:47]', 0, mods=f'offen offset:{1024*b} lds')
    for k in range(4): a('v_mov_b32', v(Hd+k), 0)
    sk = newlabel('Lh')
    a('s_cmp_lg_u32', sc, 0); a('s_cbranch_scc1', sk)
    a('s_mul_i32', 's8', slc, USZ); a('s_add_u32', 's8', 's8', L_U + 32*144)
    a('v_lshl_add_u32', v(t), 'v0', 4, 's8')
    a('ds_write_b128', v(t), v(Hd, 4))
    a('s_mov_b64', 'exec', 0xff); a('ds_write_b128', v(t), v(Hd, 4), mods='offset:1024'); a('s_mov_b64', 'exec', -1)
    a.label(sk)
    a('s_lshl_b32', 's8', sc, 4); a('s_sub_u32', 's8', 48, 's8')
    a('v_lshl_add_u32', v(t), 'v0', 4, 's12')
    a.wait(lgkm=0)
    a('s_lshl_b64', 's[56:57]', 's[56:57]', 's8')
    a('v_writelane_b32', v(Hd+2), 's56', 7); a('v_writelane_b32', v(Hd+3), 's57', 7)
    a('s_mov_b64', 'exec', 0xff)
    a('ds_write_b128', v(t), v(Hd, 4))
    a('s_mov_b64', 'exec', -1)
    R.release(mk)

def h_srd(a, slc):
    a('s_add_u32', 's8', 's53', slc); a('s_lshl_b32', 's8', 's8', 12)
    a('s_add_u32', 's44', 's30', 's8'); a('s_addc_u32', 's45', 's31', 0); a('s_and_b32', 's45', 's45', 0xffff)
    a('s_mov_b32', 's46', 4096); a('s_mov_b32', 's47', 0x20000)
def h_load(a, D, vo, vo2, imm):
    a('buffer_load_dwordx4', v(D, 4), v(vo), 's[44:47]', 0, mods=f'offen offset:{imm}')
    a('buffer_load_dwordx2', v(D+4, 2), v(vo2), 's[44:47]', 0, mods=f'offen offset:{imm}')
def h_expand(a, D, T, wa, imm):
    CB = [0, 529*16, 264*16, 793*16]
    for i in range(4): a('v_alignbit_b32', v(T+i), v(D+i+1), v(D+i), 16)
    a('ds_write_b128', v(wa), v(T, 4), mods=f'offset:{imm + CB[0]}')
    for i in range(4): a('v_alignbit_b32', v(T+4+i), v(D+i+2), v(D+i+1), 16)
    a('ds_write_b128', v(wa), v(T+4, 4), mods=f'offset:{imm + CB[2]}')
    a('ds_write_b128', v(wa), v(D+2, 4), mods=f'offset:{imm + CB[3]}')
    for i in range(4): a('v_mov_b32', v(T+8+i), v(D+i+1))
    a('ds_write_b128', v(wa), v(T+8, 4), mods=f'offset:{imm + CB[1]}')
def u_pad(a, slc, Zr, t):
    a('s_mul_i32', 's8', slc, USZ); a('s_add_u32', 's8', 's8', L_U + 32*144)
    a('v_lshl_add_u32', v(t), 'v0', 4, 's8')
    a('ds_write_b128', v(t), v(Zr, 4))
    a('s_mov_b64', 'exec', 0xff); a('ds_write_b128', v(t), v(Zr, 4), mods='offset:1024'); a('s_mov_b64', 'exec', -1)

def pk_A1(a):
    a.label('LA1')
    a('s_setprio', 2)
    R = RegAlloc(1, 150)
    coop_tables(a, R, L_TABH, L_TW, a3=False)
    bar0(a)
    HE = 152
    R = RegAlloc(1, 152)
    rd = R.alloc(); va = R.alloc(); vb = R.alloc(); t = R.alloc(); q = R.alloc()
    Hs = R.alloc(16); Gs = R.alloc(16); TW = R.alloc(24)
    a('v_lshlrev_b32', v(rd), 4, 'v0'); a('v_add_u32', v(t), L_TABH, v(rd)); a('v_add_u32', v(rd), L_TW, v(rd))
    Mre, Mim = m2_mats(a, R, False, None)
    epoch_ready(a)
    for k in (3, 0, 1, 2):
        a('ds_read_b128', v(Hs+4*k, 4), v(t), mods=f'offset:{1024*k}'); a('ds_read_b128', v(Gs+4*k, 4), v(t), mods=f'offset:{4096+1024*k}')
    for k in (2, 3, 4, 5, 0, 1): a('ds_read_b128', v(TW+4*k, 4), v(rd), mods=f'offset:{1024*k}')
    a('v_lshrrev_b32', v(va), 2, 'v0'); a('v_lshrrev_b32', v(q), 4, 'v0')
    a('v_bfe_u32', v(vb), 'v0', 1, 1); a('v_mul_u32_u24', v(vb), 1408, v(vb))
    a('v_and_b32', v(t), 1, 'v0'); a('v_lshl_add_u32', v(vb), v(t), 3, v(vb)); a('v_add_u32', v(vb), 's11', v(vb))
    tra = d1_addrs(a, R, va, vb)
    Dr = R.alloc(10)
    a('s_lshr_b32', 's14', 's3', 2); a('s_and_b32', 's15', 's3', 3); h_srd(a, 's14')
    a('s_lshl_b32', 's8', 's15', 10); a('v_lshl_add_u32', v(Dr), 'v0', 4, 's8'); a('v_lshlrev_b32', v(Dr+1), 4, 'v0')
    a('v_subrev_u32', v(Dr+2), 128, v(Dr+1)); a('v_subrev_u32', v(Dr+3), 112, v(Dr+1))
    a('buffer_load_dwordx4', v(HE, 4), v(Dr), 's[44:47]', 0, mods='offen'); a('buffer_load_dwordx2', v(HE+4, 2), v(Dr), 's[44:47]', 0, mods='offen offset:16')
    h_load(a, HE+6, Dr+2, Dr+3, 0)
    a('v_mov_b32', v(va), L_CNT + 4*C_X); a('v_mov_b32', v(vb), 1)
    stamp(a, 2)
    a.wait(vm=4)
    stamp(a, 3)
    for e in (0, 1, 2, 3, 4): a('ds_read_b64_tr_b16', v(Dr + 2*((e + 4) % 5), 2), v(tra[e]))
    lds_cnt_add(a, va, vb)
    ea0, ea1 = ei_addrs(a, R, 2624, dup=False)
    P0 = R.alloc(8); A1 = R.alloc(24); PK = R.alloc(12); X = R.alloc(8)
    a('v_mfma_f32_16x16x16_bf16', v(P0, 4), v(Dr+8, 2), v(Hs+12, 2), 0)
    a('v_mfma_f32_16x16x16_bf16', v(P0+4, 4), v(Dr+8, 2), v(Gs+12, 2), 0)
    tr2 = R.alloc(); go = R.alloc()
    a('v_bfe_u32', v(tr2), 'v0', 2, 2); a('v_mul_u32_u24', v(tr2), 2624, v(tr2))
    a('v_and_b32', v(t), 3, 'v0'); a('v_lshl_add_u32', v(tr2), v(t), 3, v(tr2))
    a('v_lshl_add_u32', v(tr2), v(q), 5, v(tr2))
    PAIR = {1: (0, 4), 2: (1, 3), 0: (6, 6)}
    for k5 in (1, 2, 0):
        for ri, M in enumerate((Hs, Gs)):
            a('v_mfma_f32_16x16x32_bf16', v(A1+8*k5+4*ri, 4), v(Dr, 4), v(M + 2*PAIR[k5][0], 4), v(P0+4*ri, 4))
        for ri, M in enumerate((Hs, Gs)):
            a('v_mfma_f32_16x16x32_bf16', v(A1+8*k5+4*ri, 4), v(Dr+4, 4), v(M + 2*PAIR[k5][1], 4), v(A1+8*k5+4*ri, 4))
        if k5 == 1:
            a('s_lshl_b32', 's8', 's3', 7); a('s_add_u32', 's8', 's8', L_EI); a('v_add_u32', v(tr2), 's8', v(tr2))
            a('s_mul_i32', 's8', 's7', TBLK); a('s_lshl_b32', 's12', 's3', 10); a('s_add_u32', 's8', 's8', 's12')
            a('v_lshl_add_u32', v(go), 'v0', 4, 's8')
    A2 = Hs
    for k5 in (1, 2, 0):
        for r in range(4):
            re, im, c, s_ = A1+8*k5+r, A1+8*k5+4+r, TW+8*k5+r, TW+8*k5+4+r
            a('v_mul_f32', v(X+r), v(re), v(c)); a('v_mul_f32', v(X+4+r), v(im), v(c))
            a('v_fmac_f32', v(X+r), v(im), v(s_)); a('v_fma_f32', v(X+4+r), '-' + v(re), v(s_), v(X+4+r))
            a('v_cvt_pk_bf16_f32', v(PK+4*k5+r), v(X+r), v(X+4+r))
        a('v_mfma_f32_16x16x32_bf16', v(A2+8*k5, 4), v(Mre, 4), v(PK+4*k5, 4), 0)
        a('v_mfma_f32_16x16x32_bf16', v(A2+8*k5+4, 4), v(Mim, 4), v(PK+4*k5, 4), 0)
    for k5 in (1, 2, 0):
        for r in range(4): a('v_cvt_pk_bf16_f32', v(PK+4*k5+r), v(A2+8*k5+r), v(A2+8*k5+4+r))
        if k5: a('ds_write_b128', v(ea0), v(PK+4*k5, 4), mods=f'offset:{1024*(k5-1)}')
        else: a('ds_write_b128', v(ea1), v(PK, 4))
    stamp(a, 4)
    subbar(a, C_A1, 8, X, X+1)
    O = A1
    for it in range(3):
        if it == 2:
            skip = newlabel('La1s'); a('s_cmp_gt_u32', 's3', 4); a('s_cbranch_scc1', skip)
        a('ds_read_b64_tr_b16', v(O+4*it, 2), v(tr2), mods=f'offset:{1024*it}')
        a('ds_read_b64_tr_b16', v(O+4*it+2, 2), v(tr2), mods=f'offset:{1024*it + 4*2624}')
        if it == 1:
            for j in range(4): tag1(a, O+j, j)
            a('global_store_dwordx4', v(go), v(O, 4), WS_, mods=SC)
            a('v_add_u32', v(go), 8192, v(go))
            for j in range(4): tag1(a, O+4+j, j)
            a('global_store_dwordx4', v(go), v(O+4, 4), WS_, mods=SC)
            a('v_add_u32', v(go), 8192, v(go))
    for j in range(4): tag1(a, O+8+j, j)
    a('s_cmp_lt_u32', 's3', 4); a('s_cselect_b32', 'exec_hi', -1, 0)
    a('global_store_dwordx4', v(go), v(O+8, 4), WS_, mods=SC)
    a('s_mov_b64', 'exec', -1)
    a.label(skip)
    stamp(a, 5)
    a('s_setprio', 0)
    R = RegAlloc(1, 60)
    coop_tables(a, R, L_T3H, L_T3W, a3=True)
    drained(a, C_A1D, 1, 2)
    stamp(a, 6)
    R = RegAlloc(1, 60)
    T = R.alloc(12); wa = R.alloc(); tt = R.alloc()
    a('s_lshr_b32', 's14', 's3', 2); a('s_and_b32', 's15', 's3', 3)
    a('s_mul_i32', 's8', 's14', HSZ); a('s_add_u32', 's8', 's8', L_H); a('v_lshl_add_u32', v(tt), 'v0', 4, 's8')
    a('s_lshl_b32', 's8', 's15', 10); a('v_add_u32', v(wa), 's8', v(tt))
    h_expand(a, HE, T, wa, 128)
    skh = newlabel('Lh'); a('s_cmp_lg_u32', 's15', 0); a('s_cbranch_scc1', skh)
    a('s_mov_b64', 'exec', 0xff)
    h_expand(a, HE+6, T, tt, 0)
    a('s_mov_b64', 'exec', -1)
    for k in range(4): a('v_mov_b32', v(T+k), 0)
    u_pad(a, 's14', T, wa)
    a.label(skh)
    a('s_cmp_ge_u32', 's7', 36); a('s_cbranch_scc1', 'LB2')
    a('s_cmp_ge_u32', 's3', 4); a('s_cbranch_scc1', 'LB2')
    arrive(a, C_H0, 1, 2)
    a('s_add_u32', 's9', 's7', 128); a('s_mov_b32', 's10', 's3')
    a('s_mov_b32', 's62', L_P1); a('s_mov_b32', 's63', L_P1 + 16384); a('s_mov_b32', 's61', L_CNT + 4*(C_A2+4))
    a('s_branch', 'LA2c')

def gen_A3_regs(a):
    K = A3K(); PIT = 2640
    R = RegAlloc(100, 164); T = RegAlloc(1, 100)
    t = T.alloc(); n = T.alloc(); q = T.alloc(); vb = T.alloc()
    K.go = R.alloc(); K.go2 = R.alloc(); K.go3 = R.alloc(); K.lw = R.alloc()
    a('s_mul_i32', 's8', 's7', TBLK); a('s_lshl_b32', 's12', 's3', 10); a('s_add_u32', 's12', 's8', 's12')
    a('v_lshl_add_u32', v(K.go), 'v0', 4, 's12'); a('v_add_u32', v(K.go2), 8192, v(K.go))
    a('s_add_u32', 's8', 's8', TBLK - 16)
    a('v_add_u32', v(K.go3), 16384, v(K.go)); a('v_min_u32', v(K.go3), 's8', v(K.go3))
    a('v_and_b32', v(t), 1, 'v0'); a('v_mul_u32_u24', v(K.lw), 4*PIT, v(t))
    a('v_lshrrev_b32', v(t), 1, 'v0'); a('v_lshl_add_u32', v(K.lw), v(t), 2, v(K.lw))
    a('s_lshl_b32', 's8', 's3', 7); a('s_add_u32', 's8', 's8', L_EI); a('v_add_u32', v(K.lw), 's8', v(K.lw))
    K.ea0, K.ea1 = ei_addrs(a, R, PIT, dup=True)
    a('s_lshl_b32', 's9', 's3', 7); a('s_add_u32', 's9', 's9', 's7'); a('s_mul_i32', 's10', 's9', 2560)
    a('s_mul_i32', 's11', 's3', 3072); a('s_add_u32', 's11', 's11', L_XR)
    K.vo = row_offsets(a, R, 's10', 1024*2560)
    K.Mre, K.Mim = m2_mats(a, R, True, 2.0/(2048*640))
    K.rd = R.alloc()
    a('v_and_b32', v(n), 15, 'v0'); a('v_lshrrev_b32', v(q), 4, 'v0')
    a('v_lshrrev_b32', v(vb), 5, 'v0'); a('v_mul_u32_u24', v(vb), 1408, v(vb))
    a('v_and_b32', v(t), 1, v(q)); a('v_lshl_add_u32', v(vb), v(t), 3, v(vb)); a('v_add_u32', v(vb), 's11', v(vb))
    K.wa = d1_addrs(a, R, n, vb)
    a('v_lshl_add_u32', v(K.rd), 'v0', 4, 's11')
    K.TW = R.alloc(24)
    return K

def pk_A3(a):
    a.label('LA3')
    K = gen_A3_regs(a)
    PIT = 2640
    R = RegAlloc(1, 100)
    t = R.alloc(); u = R.alloc(); IN = R.alloc(12); X = R.alloc(8); F = R.alloc(20)
    await_cnt(a, C_A1D, 8, t, u)
    sk2 = newlabel('La3w'); a('s_cmp_ge_u32', 's7', 36); a('s_cbranch_scc1', sk2)
    await_cnt(a, C_A2+4+3, 4, t, u)
    a.label(sk2)
    a('v_lshlrev_b32', v(t), 4, 'v0'); a('v_add_u32', v(u), L_T3W, v(t)); a('v_add_u32', v(t), L_T3H, v(t))
    for k in range(5): a('ds_read_b128', v(F+4*k, 4), v(t), mods=f'offset:{1024*k}')
    for k in range(6): a('ds_read_b128', v(K.TW+4*k, 4), v(u), mods=f'offset:{1024*k}')
    wait_lds(a, C_A2+3, 4, t, u)
    if A3ALL[0]:
        arrive(a, C_GT2, t, u); wait_lds(a, C_GT2, A3ALL[0], t, u)
    stamp(a, 11)
    a.wait(vm=0)
    a('s_setprio', 2)
    def loads():
        a('global_load_dwordx4', v(IN, 4), v(K.go), WS_, mods=SC)
        a('global_load_dwordx4', v(IN+4, 4), v(K.go2), WS_, mods=SC)
        a('global_load_dwordx4', v(IN+8, 4), v(K.go3), WS_, mods=SC)
    poll_tags(a, loads, [IN, IN+4, IN+8], t, 2, LSLEEP[0])
    stamp(a, 12)
    for it in range(3):
        if it == 2:
            skip = newlabel('La3s'); a('s_cmp_gt_u32', 's3', 4); a('s_cbranch_scc1', skip)
            a('s_cmp_lt_u32', 's3', 4); a('s_cselect_b32', 'exec_hi', -1, 0)
        for x in range(4): a('ds_write_b32', v(K.lw), v(IN+4*it+x), mods=f'offset:{1024*it + PIT*x}')
    a('s_mov_b64', 'exec', -1)
    a.label(skip)
    subbar(a, C_A3, 8, t, u)
    stamp(a, 13)
    Z = IN; A1 = R.alloc(24); PK = Z; Y = R.alloc(20); P0 = R.alloc(4)
    a('ds_read_b128', v(Z, 4), v(K.ea1))
    a('ds_read_b128', v(Z+4, 4), v(K.ea0)); a('ds_read_b128', v(Z+8, 4), v(K.ea0), mods='offset:1024')
    MF = 'v_mfma_f32_16x16x32_bf16'
    for k5 in range(3):
        a(MF, v(A1+8*k5, 4), v(Z+4*k5, 4), v(K.Mre, 4), 0); a(MF, v(A1+8*k5+4, 4), v(Z+4*k5, 4), v(K.Mim, 4), 0)
    for k5 in range(3):
        for r in range(4):
            re, im, c, s_ = A1+8*k5+r, A1+8*k5+4+r, K.TW+8*k5+r, K.TW+8*k5+4+r
            a('v_mul_f32', v(X+r), v(re), v(c)); a('v_mul_f32', v(X+4+r), v(im), v(c))
            a('v_fma_f32', v(X+r), '-' + v(im), v(s_), v(X+r)); a('v_fmac_f32', v(X+4+r), v(re), v(s_))
            if r & 1:
                a('v_cvt_pk_bf16_f32', v(PK+4*k5+(r >> 1)), v(X+r-1), v(X+r))
                a('v_cvt_pk_bf16_f32', v(PK+4*k5+2+(r >> 1)), v(X+4+r-1), v(X+4+r))
        if k5 == 0: a(MF, v(P0, 4), v(PK, 4), v(F, 4), 0)
        else:
            for e in range(5):
                a(MF, v(Y+4*e, 4), v(PK+4*k5, 4), v(F+4*((e*k5) % 5), 4), v(P0, 4) if k5 == 1 else v(Y+4*e, 4))
    for e in range(5):
        a('v_cvt_pk_bf16_f32', v(A1+2*e), v(Y+4*e), v(Y+4*e+1)); a('v_cvt_pk_bf16_f32', v(A1+2*e+1), v(Y+4*e+2), v(Y+4*e+3))
        a('ds_write_b64', v(K.wa[e]), v(A1+2*e, 2))
    for k in range(3): a('ds_read_b128', v(Z+4*k, 4), v(K.rd), mods=f'offset:{1024*k}')
    a('global_store_dwordx4', v(K.vo[0]), v(Z, 4), OUT_, mods=SC)
    a('s_mov_b32', 'exec_lo', 0xff00ffff)
    a('global_store_dwordx4', v(K.vo[1]), v(Z+4, 4), OUT_, mods='offset:1024 sc1')
    a('s_mov_b32', 'exec_lo', -1); a('s_mov_b32', 'exec_hi', 0xff)
    a('global_store_dwordx4', v(K.vo[2]), v(Z+8, 4), OUT_, mods='offset:2048 sc1')
    stamp(a, 14)
    ske = newlabel('Lep')
    a('s_mov_b64', 'exec', 1)
    a('s_or_b32', 's8', 's2', 's3'); a('s_cmp_lg_u32', 's8', 0); a('s_cbranch_scc1', ske)
    a('v_mov_b32', v(t), WS_EP); a('v_mov_b32', v(u), 's52')
    a('global_store_dword', v(t), v(u), WS_, mods=SC)
    a.label(ske)
    a('s_mov_b64', 'exec', -1)

def pk_B1(a):
    a.label('LB1')
    a('s_setprio', 2)
    R = RegAlloc(1, 160)
    t = R.alloc(); u = R.alloc()
    lb, uo, pr, od = b13_lane(a, R, WS_U)
    CF = R.alloc(4); C = R.alloc(8)
    a('s_mul_i32', 's8', 's4', 640); a('v_lshl_add_u32', v(t), v(pr), 4, 's8')
    a('global_load_dwordx4', v(CF, 4), v(t), SK_)
    msk = R.alloc(); a('v_mov_b32', v(msk), 0xffff0000)
    epoch_ready(a)
    stamp(a, 2)
    for j in range(4):
        for ch in range(2):
            src = CF + 2*ch + (j >> 1)
            if j & 1: a('v_and_b32', v(C+2*j+ch), v(msk), v(src))
            else: a('v_lshlrev_b32', v(C+2*j+ch), 16, v(src))
    subbar(a, C_B1, 10, t, u, vm=True)
    stamp(a, 3)
    Kd = R.alloc(12); Vd = R.alloc(8); Kf = R.alloc(22); T = R.alloc(4); O = R.alloc(8); res = R.alloc(4); uo2 = R.alloc()
    for i in range(11): a('ds_read_b32', v(Kd+i), v(lb), mods=f'offset:{(800 + 160*i if i < 3 else 1296 + 160*(i-3))}')
    for i in range(8): a('ds_read_b32', v(Vd+i), v(lb), mods=f'offset:{L_VI - L_KI + 160*i}')
    a('v_add_u32', v(uo2), 4096, v(uo))
    def unp(i):
        a('v_lshlrev_b32', v(Kf+2*i), 16, v(Kd+i)); a('v_and_b32', v(Kf+2*i+1), v(msk), v(Kd+i))
    for i in range(3): unp(i)
    for i in range(8):
        unp(i+3)
        for ch in range(2):
            acc = T + ch; dst = res + 2*(i & 1) + ch
            a('v_mul_f32', v(acc), v(Kf+2*i+ch), v(C+6+ch))
            for j in (2, 1, 0): a('v_fmac_f32', v(acc), v(Kf+2*(i+3-j)+ch), v(C+2*j+ch))
            if ch: a('v_and_b32', v(T+2+ch), v(msk), v(Vd+i))
            else: a('v_lshlrev_b32', v(T+2+ch), 16, v(Vd+i))
            a('v_mul_f32', v(dst), v(acc), v(T+2+ch))
        if i & 1:
            for ch in range(2):
                d = O+4*ch+3-(i >> 1)
                a('v_cvt_pk_bf16_f32', v(d), v(res+2+ch), v(res+ch)); tag1(a, d, 3-(i >> 1))
    stamp(a, 4)
    a('global_store_dwordx4', v(uo), v(O, 4), WS_, mods=SC)
    a('global_store_dwordx4', v(uo2), v(O+4, 4), WS_, mods=SC)
    if UH[0]: hint(a, L_CNT + 4*C_HU, 10, 's8', t, u, 's96')
    stamp(a, 5)
    a('s_setprio', 0)
    a('s_branch', 'LB2')

def pk_auxO(a):
    a.label('LauxO')
    R = RegAlloc(1, 120); t = R.alloc(); u = R.alloc(); vo = R.alloc(); vh = R.alloc(); vh2 = R.alloc(); wa = R.alloc(); wh = R.alloc()
    T = R.alloc(12); D = R.alloc(54)
    a('s_sub_u32', 's62', 's3', 10); a('s_lshl_b32', 's62', 's62', 11)
    a('v_lshlrev_b32', v(t), 4, 'v0'); a('v_add_u32', v(vo), 's62', v(t)); a('v_subrev_u32', v(vh), 128, v(t)); a('v_subrev_u32', v(vh2), 112, v(t))
    a('v_add_u32', v(wh), L_H, v(t)); a('v_add_u32', v(wa), 's62', v(wh))
    if HGATE[0]: await_cnt(a, C_B1, HGATE[0], t, u)
    a('v_lshlrev_b32', v(t), 4, 'v0')
    for lc in range(3):
        h_srd(a, lc)
        for b in range(2):
            a('buffer_load_dwordx4', v(D+18*lc+6*b, 4), v(vo), 's[44:47]', 0, mods=f'offen offset:{1024*b}')
            a('buffer_load_dwordx2', v(D+18*lc+6*b+4, 2), v(vo), 's[44:47]', 0, mods=f'offen offset:{1024*b+16}')
        h_load(a, D+18*lc+12, vh, vh2, 0)
    epoch_ready(a)
    for k in range(4): a('v_mov_b32', v(T+k), 0)
    for lc in range(3): u_pad(a, lc, T, t)
    for lc in range(3):
        for b in range(2): h_expand(a, D+18*lc+6*b, T, wa, lc*HSZ + 128 + 1024*b)
        a('s_mov_b64', 'exec', 0xff)
        h_expand(a, D+18*lc+12, T, wh, lc*HSZ)
        a('s_mov_b64', 'exec', -1)
    arrive(a, C_H, t, u)
    stamp(a, 6)
    a('s_branch', 'LB2')

def pk_B3(a):
    a.label('LB3')
    a('s_cmp_ge_u32', 's3', 10); a('s_cbranch_scc1', 'Lfin')
    R = RegAlloc(1, 160)
    t = R.alloc(); u = R.alloc()
    lb, uo, pr, od = b13_lane(a, R, WS_U)
    uo2 = R.alloc(); a('v_add_u32', v(uo2), 4096, v(uo))
    Z = R.alloc(8); oo = R.alloc(); rd = R.alloc(); msk = R.alloc(); a('v_mov_b32', v(msk), 0xffff0000)
    a('v_mul_u32_u24', v(t), 26, 'v0'); a('v_lshrrev_b32', v(t), 8, v(t))
    a('v_mul_u32_u24', v(oo), 2560 - 160, v(t)); a('v_lshl_add_u32', v(oo), 'v0', 4, v(oo))
    a('s_lshl_b32', 's8', 's6', 3); a('s_add_u32', 's8', 's8', 's3'); a('s_mul_i32', 's8', 's8', 16*2560)
    a('s_mul_i32', 's9', 's4', 160); a('s_add_u32', 's8', 's8', 's9'); a('s_add_u32', 's8', 's8', 1280); a('v_add_u32', v(oo), 's8', v(oo))
    a('s_mul_i32', 's8', 's3', 2*1296); a('s_add_u32', 's8', 's8', L_VI); a('v_lshl_add_u32', v(rd), 'v0', 4, 's8')
    await_cnt(a, C_QL, 8, t, u)
    Qd = R.alloc(8); Qf = R.alloc(16); T = R.alloc(4); O = R.alloc(16)
    for i in range(8): a('ds_read_b32', v(Qd+i), v(lb), mods=f'offset:{L_VI - L_KI + 160*i}')
    for i in range(8):
        a('v_lshlrev_b32', v(Qf+2*i), 16, v(Qd+i)); a('v_and_b32', v(Qf+2*i+1), v(msk), v(Qd+i))
    def loads():
        a('global_load_dwordx4', v(Z, 4), v(uo), WS_, mods=SC); a('global_load_dwordx4', v(Z+4, 4), v(uo2), WS_, mods=SC)
    wait_lds(a, C_HZ, 6, t, u)
    stamp(a, 11)
    a.wait(vm=0)
    a('s_setprio', 2)
    poll_tags(a, loads, [Z, Z+4], t, 2, LSLEEP[0])
    stamp(a, 12)
    for i in range(8):
        for ch in range(2):
            src = Z + 4*ch + 3 - (i >> 1)
            if i & 1: a('v_lshlrev_b32', v(T+ch), 16, v(src))
            else: a('v_and_b32', v(T+ch), v(msk), v(src))
            a('v_mul_f32', v(T+ch), v(T+ch), v(Qf+2*i+ch))
        a('v_cvt_pk_bf16_f32', v(Qd+i), v(T), v(T+1))
        a('ds_write_b32', v(lb), v(Qd+i), mods=f'offset:{L_VI - L_KI + 160*i}')
    subbar(a, C_Q, 10, t, u)
    stamp(a, 13)
    a('s_cmp_ge_u32', 's3', 8); a('s_cbranch_scc1', 'Lfin')
    a('s_mov_b32', 'exec_hi', 0xff)
    for k in range(4): a('ds_read_b128', v(O+4*k, 4), v(rd), mods=f'offset:{(k >> 1)*1296 + (k & 1)*640}')
    for k in range(4):
        a('global_store_dwordx4', v(oo), v(O+4*k, 4), OUT_, mods=SC)
        if k < 3: a('v_add_u32', v(oo), 4*2560, v(oo))
    stamp(a, 14)
    a('s_mov_b64', 'exec', -1)

def pk_B2(a):
    a.label('LB2')
    R = RegAlloc(1, 128)
    t = R.alloc(); u = R.alloc(); lw = R.alloc(); U = R.alloc(8); go = R.alloc(); fa = R.alloc(); Dv = R.alloc(); msk = R.alloc()
    n = R.alloc(); q = R.alloc(); aa = R.alloc(); ba = R.alloc(); ba2 = R.alloc(); ia = R.alloc(); ra = R.alloc()
    a('s_lshr_b32', 's9', 's3', 2); a('s_and_b32', 's10', 's3', 3)
    a('s_mul_i32', 's15', 's9', USZ); a('s_add_u32', 's15', 's15', L_U)
    a('v_lshrrev_b32', v(t), 3, 'v0'); a('v_lshlrev_b32', v(t), 4, v(t)); a('v_lshl_add_u32', v(lw), 'v0', 4, v(t))
    a('s_mul_i32', 's8', 's10', 8*144); a('s_add_u32', 's8', 's8', 's15'); a('v_add_u32', v(lw), 's8', v(lw))
    a('s_add_u32', 's13', 's53', 's9')
    a('s_lshl_b32', 's8', 's13', 12); a('s_lshl_b32', 's12', 's10', 10); a('s_add_u32', 's8', 's8', 's12'); a('s_add_u32', 's8', 's8', WS_U)
    a('v_lshl_add_u32', v(go), 'v0', 4, 's8')
    a('s_lshl_b32', 's60', 's9', 2); a('s_add_u32', 's60', 's60', L_CNT + 4*C_U)
    a('s_sub_u32', 's11', 's10', 's9'); a('s_and_b32', 's11', 's11', 3); a('s_lshl2_add_u32', 's99', 's9', 's11'); a('s_or_b32', 's99', 's99', 16)
    a('s_cmp_lt_u32', 's7', 36); a('s_cselect_b32', 's63', 1, 0); a('s_cmp_eq_u32', 's5', 0); a('s_cselect_b32', 's63', 's63', 0)
    lj_ = newlabel('Lb2'); a('s_cmp_eq_u32', 's63', 0); a('s_cbranch_scc1', lj_)
    J = lambda l: sum((16 | lc << 2 | ro) << (5*i) for i, (lc, ro) in enumerate(l))
    lists = [J([(0, 0)]), J([(1, 0)]), J([(0, 3), (1, 3)]), J([(0, 1), (1, 1)])] if LATE2[0] else [J([(0, 0)]), J([(1, 0)]), J([(0, 3), (1, 3), (0, 2)]), J([(0, 1), (1, 1), (1, 2)])]
    a('s_mov_b32', 's56', lists[0] | lists[1] << 16); a('s_mov_b32', 's57', lists[2] | lists[3] << 16)
    a('s_lshl_b32', 's8', 's10', 4); a('s_lshr_b64', 's[56:57]', 's[56:57]', 's8'); a('s_and_b32', 's99', 's56', 0x7fff)
    a.label(lj_)
    a('s_mov_b32', 's62', 1)
    a.label('LB2p')
    a('s_bfe_u32', 's9', 's99', (2 << 16) | 2); a('s_and_b32', 's11', 's99', 3)
    a('s_add_u32', 's13', 's53', 's9')
    a('s_lshl_b32', 's8', 's13', 1); a('s_and_b32', 's8', 's8', -4)
    a('s_load_dword', 's58', D_, 's8')
    a('s_mul_i32', 's15', 's9', USZ); a('s_add_u32', 's15', 's15', L_U)
    a('v_and_b32', v(n), 15, 'v0'); a('v_lshrrev_b32', v(q), 4, 'v0')
    a('v_mov_b32', v(msk), 0xffff0000)
    a('v_and_b32', v(t), 1, 'v0'); a('v_mul_u32_u24', v(aa), 529*16, v(t))
    a('v_bfe_u32', v(t), 'v0', 1, 1); a('v_mul_u32_u24', v(t), 264*16, v(t)); a('v_add_u32', v(aa), v(aa), v(t))
    a('v_bfe_u32', v(t), 'v0', 2, 2); a('v_lshl_add_u32', v(aa), v(t), 5, v(aa))
    a('s_cmp_eq_u32', 's11', 0); a('s_cselect_b32', 's12', 1, 0)
    a('s_add_u32', 's14', 's12', 8); a('v_lshl_add_u32', v(aa), v(q), 's14', v(aa))
    a('s_cmp_eq_u32', 's11', 1); a('s_cselect_b32', 's14', 2048, 0)
    a('s_cmp_eq_u32', 's11', 3); a('s_cselect_b32', 's14', 1040, 's14')
    a('s_mul_i32', 's8', 's9', HSZ); a('s_add_u32', 's8', 's8', 's14'); a('s_add_u32', 's8', 's8', L_H)
    a('v_add_u32', v(aa), 's8', v(aa))
    a('s_add_u32', 's14', 's12', 1); a('v_lshlrev_b32', v(t), 's14', v(q)); a('v_sub_u32', v(t), v(t), v(n))
    a('s_lshl_b32', 's14', 's12', 4); a('s_sub_u32', 's14', 31, 's14'); a('v_add_u32', v(t), 's14', v(t))
    a('v_mul_u32_u24', v(ba), 144, v(t)); a('v_add_u32', v(ba), 's15', v(ba))
    a('s_cmp_eq_u32', 's11', 2); a('s_cselect_b32', 's14', 31, 15)
    a('v_sub_u32', v(t), 's14', v(n)); a('v_mul_u32_u24', v(ia), 144, v(t)); a('v_add_u32', v(ia), 's15', v(ia))
    a('v_lshlrev_b32', v(t), 5, v(q)); a('v_sub_u32', v(ia), v(ia), v(t))
    a('s_mul_i32', 's59', 's9', REDSZ); a('s_add_u32', 's59', 's59', L_RED); a('v_lshl_add_u32', v(ra), 'v0', 4, 's59')
    lnh = newlabel('Lb2'); a('s_cmp_lg_u32', 's11', 3); a('s_cbranch_scc1', lnh)
    a('v_and_b32', v(t), 7, 'v0'); a('v_lshlrev_b32', v(u), 1, v(q)); a('v_sub_u32', v(u), v(u), v(t)); a('v_add_u32', v(u), 31, v(u))
    a('v_mul_u32_u24', v(ba), 144, v(u)); a('v_add_u32', v(ba), 's15', v(ba))
    a('v_and_b32', v(u), 8, 'v0'); a('v_xor_b32', v(u), 8, v(u)); a('v_lshl_add_u32', v(ba), v(u), 1, v(ba)); a('v_lshl_add_u32', v(ba2), v(u), 1, v(ba))
    a('v_lshl_add_u32', v(t), v(q), 3, v(t)); a('v_lshlrev_b32', v(t), 4, v(t)); a('v_and_b32', v(u), 8, 'v0'); a('v_lshl_add_u32', v(t), v(u), 7, v(t))
    a('v_add_u32', v(ra), 's59', v(t))
    a.label(lnh)
    a.wait(lgkm=0)
    a('s_bitcmp1_b32', 's13', 0); a('s_cselect_b32', 's8', 0, 16); a('s_lshl_b32', 's58', 's58', 's8'); a('s_and_b32', 's58', 's58', 0xffff0000)
    a('s_cmp_gt_u32', 's3', 5); a('s_cselect_b32', 's98', 2, 1); a('s_sub_u32', 's98', 's3', 's98'); a('s_min_u32', 's98', 's98', 8)
    a('s_cmp_lg_u32', 's12', 0); a('s_cselect_b32', 's98', 8, 's98'); a('s_cmp_eq_u32', 's5', 0); a('s_cselect_b32', 's98', 8, 's98')
    ACC = R.alloc(16); NW = 6; RA = R.alloc(4*NW + 2); RA2 = R.alloc(4*NW + 2); NBR = 6; RB = R.alloc(4*NBR)
    for x in range(16): a('v_mov_b32', v(ACC+x), 0)
    fi = R.alloc(); sa = R.alloc(); sa2 = R.alloc(); sr = R.alloc(); zo = R.alloc(); ca = R.alloc()
    a('s_lshl_b32', 's14', 's9', 3); a('s_add_u32', 's14', 's14', L_CNT + 4*C_RED); a('v_mov_b32', v(ca), 's14')
    a('v_and_b32', v(u), 7, 'v0'); a('v_lshl_add_u32', v(u), v(q), 3, v(u)); a('s_lshl_b32', 's8', 's12', 11); a('s_add_u32', 's8', 's8', 's59'); a('s_add_u32', 's8', 's8', 4096)
    a('v_lshl_add_u32', v(fi), v(u), 4, 's8')
    a('v_sub_u32', v(t), 15, v(n)); a('v_lshlrev_b32', v(u), 1, v(q)); a('v_sub_u32', v(u), 6, v(u))
    a('v_xor_b32', v(u), v(t), v(u)); a('v_and_b32', v(u), 7, v(u)); a('v_lshlrev_b32', v(u), 4, v(u))
    a('v_lshl_add_u32', v(sa), v(t), 7, v(u)); a('v_add_u32', v(sa), 's8', v(sa)); a('v_xor_b32', v(sa2), 16, v(sa))
    a('v_lshrrev_b32', v(t), 3, 'v0'); a('v_xor_b32', v(u), v(t), 'v0'); a('v_and_b32', v(u), 7, v(u)); a('v_lshlrev_b32', v(u), 4, v(u))
    a('v_lshl_add_u32', v(sr), v(t), 7, v(u)); a('v_add_u32', v(sr), 's8', v(sr))
    a('s_lshl_b32', 's8', 's13', 12); a('s_lshl_b32', 's14', 's12', 11); a('s_sub_u32', 's8', 's8', 's14'); a('s_add_u32', 's8', 's8', WS_U + 2048)
    a('v_lshl_add_u32', v(zo), 'v0', 4, 's8')
    a('s_cmp_eq_u32', 's62', 0); a('s_cbranch_scc1', 'LB2go')
    stamp(a, 7)
    lo = newlabel('Lb2'); lo2 = newlabel('Lb2'); lo3 = newlabel('Lb2')
    a('s_cmp_lg_u32', 's5', 0); a('s_cbranch_scc1', lo3)
    wait_lds(a, EG[0], 4, t, u)
    a('s_branch', lo2)
    a.label(lo3)
    if UH[0]:
        a('s_cmp_lg_u32', 's3', 4); a('s_cbranch_scc1', lo)
        a('v_lshl_add_u32', v(t), 's4', 4, v(n)); a('v_lshlrev_b32', v(fa), 7, v(t)); a('v_add_u32', v(fa), H_U, v(fa))
        poll_hints(a, fa, t, u, 's96', 16)
        arrive(a, C_GU, t, u)
        a('s_branch', lo2)
        a.label(lo)
        wait_lds(a, C_GU, 1, t, u)
    else:
        lx = newlabel('Lb2'); a('s_cmp_ge_u32', 's3', 10); a('s_cbranch_scc1', lx)
        drained(a, C_B1D, t, u)
        stamp(a, 6)
        a.label(lx)
        wait_lds(a, C_B1D, 10, t, u)
        if HW[0]: wait_lds(a, C_H, 2, t, u)
    a.label(lo2)
    stamp(a, 2)
    a('s_lshl_b32', 's8', 's63', 12); a('v_subrev_u32', v(fa), 's8', v(go))
    def ul():
        a('global_load_dwordx4', v(U, 4), v(go), WS_, mods=SC)
        if TWOPASS[0]: a('global_load_dwordx4', v(U+4, 4), v(fa), WS_, mods=SC)
    poll_tags(a, ul, [U, U+4] if TWOPASS[0] else [U], t, 1, XSLEEP[0])
    sk2 = newlabel('Lb2'); a('s_cmp_eq_u32', 's63', 0); a('s_cbranch_scc1', sk2)
    await_cnt(a, C_H0, 4, t, u)
    a('v_subrev_u32', v(t), USZ, v(lw))
    a('ds_write_b128', v(t), v(U+4, 4))
    a.label(sk2)
    sko = newlabel('Lb2'); a('s_cmp_eq_u32', 's5', 0); a('s_cbranch_scc1', sko)
    await_cnt(a, C_H, 2, t, u)
    a.label(sko)
    a('ds_write_b128', v(lw), v(U, 4))
    stamp(a, 8)
    subbar_s(a, 's60', 4, t, u, vm=True)
    if GATE[0]:
        lg = newlabel('Lb2'); a('s_cmp_lg_u32', 's5', 0); a('s_cbranch_scc1', lg)
        a('v_mov_b32', v(t), L_CNT + 4*(C_A2+2))
        lq = newlabel('Lb2'); a.label(lq)
        a('s_sleep', 2); a('ds_read_b32', v(u), v(t)); a('v_readfirstlane_b32', 's40', v(u)); a('s_cmp_lt_u32', 's40', 4); a('s_cbranch_scc1', lq)
        a('s_cmp_ge_u32', 's7', 36); a('s_cbranch_scc1', lg)
        lq = newlabel('Lb2'); a.label(lq)
        a('s_sleep', 2); a('ds_read_b32', v(u), v(t), mods='offset:16'); a('v_readfirstlane_b32', 's40', v(u)); a('s_cmp_lt_u32', 's40', 4); a('s_cbranch_scc1', lq)
        a.label(lg)
    a.label('LB2go')
    MF = 'v_mfma_f32_16x16x32_bf16'
    PD = 3
    def rdA(ring, w, off, last):
        if w > last: return
        a('ds_read_b128', v(ring + 4*(w % NW), 4), v(aa), mods=f'offset:{off + 16*w}')
        if w and w % NW == 0: a('ds_read_b64', v(ring+4*NW, 2), v(aa), mods=f'offset:{off + 16*w}')
    def rdB(tau, last, hi=False):
        if tau > last: return
        a('ds_read_b128', v(RB + 4*(tau % NBR), 4), v(ba2 if (hi and tau % 8 == 7) else ba), mods=f'offset:{144*(tau >> 3) + 16*(tau & 7)}')
    a('s_cmp_eq_u32', 's11', 3); a('s_cbranch_scc1', 'LB2hi')
    rdB(0, 32); rdA(RA, 1, 0, 33)
    for k in range(PD): rdB(k+1, 32); rdA(RA, k+2, 0, 33)
    lp_ = newlabel('Lb2'); a('s_cmp_eq_u32', 's11', 0); a('s_cbranch_scc1', lp_)
    a('s_setprio', 1)
    a('ds_read_b128', v(U, 4), v(ia), mods='offset:96'); a('ds_read_b128', v(U+4, 4), v(ia), mods='offset:112')
    for x in range(16):
        e = 15 - x
        if e & 1: a('v_and_b32', v(ACC+x), v(msk), v(U + (e >> 1)))
        else: a('v_lshlrev_b32', v(ACC+x), 16, v(U + (e >> 1)))
        a('v_mul_f32', v(ACC+x), 's58', v(ACC+x))
    pend = a.snap[lp_][0]
    a.label(lp_)
    a.lg = list(pend[1])
    stamp(a, 9)
    for tau in range(32):
        if tau == 16:
            a.raw('    s_cmp_eq_u32 s12, 0'); a.raw('    s_cbranch_scc1 LB2r'); a.bytes += 8
            a.snap.setdefault('LB2r', []).append((list(a.vm), list(a.lg)))
        d0 = (4*(tau+1)) % (4*NW)
        for k, (acc, dd, bt) in enumerate(((2, d0, tau), (3, d0+2, tau), (0, d0, tau+1), (1, d0+2, tau+1))):
            a(MF, v(ACC+4*acc, 4), v(RA+dd, 4), v(RB + 4*(bt % NBR), 4), v(ACC+4*acc, 4))
            if k == 1: rdB(tau + PD + 1, 32)
            if k == 3: rdA(RA, tau + PD + 2, 0, 33)
    a.label('LB2r'); a._nop(8)
    stamp(a, 10)
    lf = newlabel('Lb2')
    a('v_mov_b32', v(u), 1)
    a('s_cmp_lg_u32', 's11', 1); a('s_cbranch_scc1', lf)
    for tt in range(4): a('ds_write_b128', v(ra), v(ACC+4*tt, 4), mods=f'offset:{1024*tt}')
    a.wait(lgkm=0); lds_cnt_add(a, ca, u)
    a('s_branch', 'LB2end')
    a.label('LB2hi')
    a('s_setprio', 1)
    rdA(RA, 0, 0, 16); rdA(RA2, 0, 2048, 16)
    for k in range(PD): rdB(k, 15, True); rdA(RA, k+1, 0, 16); rdA(RA2, k+1, 2048, 16)
    stamp(a, 9)
    for tau in range(16):
        d0 = (4*tau) % (4*NW)
        for k, (acc, ring, dd) in enumerate(((0, RA, d0), (1, RA, d0+2), (2, RA2, d0), (3, RA2, d0+2))):
            a(MF, v(ACC+4*acc, 4), v(ring+dd, 4), v(RB + 4*(tau % NBR), 4), 0 if tau == 0 else v(ACC+4*acc, 4))
            if k == 0: rdB(tau + PD, 15, True)
            if k == 1: rdA(RA, tau + PD + 1, 0, 16)
            if k == 3: rdA(RA2, tau + PD + 1, 2048, 16)
    stamp(a, 10)
    a('v_mov_b32', v(u), 1)
    for acc in range(4): a('ds_write_b128', v(ra), v(ACC+4*acc, 4), mods=f'offset:{4096 + 2048*(acc >> 1) + 512*(acc & 1)}')
    a.wait(lgkm=0)
    a('s_mov_b64', 'exec', 1); a('ds_add_u32', v(ca), v(u)); a('ds_add_u32', v(ca), v(u), mods='offset:4'); a('s_mov_b64', 'exec', -1)
    a('s_branch', 'LB2end')
    a.label(lf)
    a('s_lshl_b32', 's8', 's11', 1); a('v_add_u32', v(t), 's8', v(ca)); a('s_add_u32', 's14', 's12', 1)
    lp = newlabel('Lb2'); a.label(lp)
    a('ds_read_b32', v(u), v(t)); a('v_readfirstlane_b32', 's40', v(u)); a('s_cmp_lt_u32', 's40', 's14'); a('s_cbranch_scc1', lp)
    for tt in range(4): a('ds_read_b128', v(RA+4*tt, 4), v(fi), mods=f'offset:{512*tt}')
    ls = newlabel('Lb2'); a('s_cmp_eq_u32', 's12', 0); a('s_cbranch_scc1', ls)
    for tt in range(4): a('ds_read_b128', v(RB+4*tt, 4), v(ra), mods=f'offset:{1024*tt}')
    for x in range(16): a('v_add_f32', v(ACC+x), v(ACC+x), v(RB+x))
    a.label(ls)
    a('s_mov_b32', 'exec_lo', 0xff00ff00); a('s_mov_b32', 'exec_hi', 0xff00ff00)
    for x in range(16): a('v_add_f32', v(ACC+x), v(ACC+x), v(RA+x))
    a('s_mov_b64', 'exec', -1)
    for jj in range(8):
        a('v_cvt_pk_bf16_f32', v(U+jj), v(ACC+15-2*jj), v(ACC+14-2*jj)); tag2(a, U+jj, jj)
        if jj == 3: a('ds_write_b128', v(sa), v(U, 4))
    a('ds_write_b128', v(sa2), v(U+4, 4))
    a('ds_read_b128', v(RB, 4), v(sr)); a('ds_read_b128', v(RB+4, 4), v(sr), mods='offset:1024')
    a('global_store_dwordx4', v(zo), v(RB, 4), WS_, mods=SC)
    a('global_store_dwordx4', v(zo), v(RB+4, 4), WS_, mods=f'offset:1024 {SC}')
    a('s_cmp_eq_u32', 's5', 0); a('s_cbranch_scc1', 'LB2end')
    arrive(a, C_HZ, t, u, vm=ZDRAIN[0])
    a.label('LB2end')
    a('s_setprio', 0)
    a('s_mov_b32', 's62', 0); a.wait(lgkm=0)
    a('s_lshr_b32', 's99', 's99', 5); a('s_cbranch_scc1', 'LB2p')
    a('s_cmp_eq_u32', 's5', 0); a('s_cbranch_scc1', 'LA3')
    a('s_cmp_eq_u32', 's98', 8); a('s_cbranch_scc1', 'LB3')
    srd(a, 44, 's22', 's23', 2048*1280)
    a('v_mul_u32_u24', v(t), 26, 'v0'); a('v_lshrrev_b32', v(t), 8, v(t)); a('v_mul_u32_u24', v(u), 1280 - 160, v(t)); a('v_lshl_add_u32', v(u), 'v0', 4, v(u))
    a('s_lshl_b32', 's8', 's6', 3); a('s_add_u32', 's8', 's8', 's98'); a('s_mul_i32', 's8', 's8', 16*1280); a('s_mul_i32', 's14', 's4', 160); a('s_add_u32', 's8', 's8', 's14')
    a('s_mul_i32', 's14', 's98', 2*1296); a('s_mov_b32', 'exec_hi', 0xff)
    for k in range(4):
        a('s_add_u32', 'm0', 's14', L_VI + (k >> 1)*1296 + (k & 1)*640)
        a('buffer_load_dwordx4', v(u), 's[44:47]', 's8', mods='offen lds')
        if k < 3: a('s_addk_i32', 's8', 4*1280)
    a('s_mov_b64', 'exec', -1)
    arrive(a, C_QL, t, u, vm=True)
    a('s_branch', 'LB3')

class A2R: pass
def a2_regs():
    K = A2R(); R = RegAlloc(1, 168)
    K.t = R.alloc(); K.u = R.alloc(); K.go = R.alloc(); K.lw = R.alloc(); K.lr0 = R.alloc(); K.lr1 = R.alloc(); K.msk = R.alloc()
    K.X = R.alloc(8)
    K.C = R.alloc(8); K.Sm = R.alloc(8); K.N = R.alloc(8); K.TC = R.alloc(16); K.TS = R.alloc(16)
    K.Z = R.alloc(16); K.Wp = R.alloc(16); K.B0 = R.alloc(32); K.B1 = R.alloc(32)
    K.fa, K.fw, K.o, K.h, K.of, K.hf, K.t2 = [K.Wp + k for k in range(7)]
    return K

def A2_consts(a, K):
    t, u, go, X = K.t, K.u, K.go, K.X
    a('v_lshrrev_b32', v(t), 3, 'v0'); a('v_lshl_add_u32', v(t), 's10', 3, v(t))
    a('s_mov_b32', 's8', TBLK); a('v_mul_lo_u32', v(go), v(t), 's8')
    a('v_and_b32', v(u), 7, 'v0'); a('v_lshl_add_u32', v(go), v(u), 4, v(go))
    a('s_lshl_b32', 's8', 's9', 7); a('v_add_u32', v(go), 's8', v(go))
    def swz(dst, line, piece):
        a('v_lshrrev_b32', v(dst), 1, v(line)); a('v_and_b32', v(K.t2), 1, v(line)); a('v_xor_b32', v(dst), v(dst), v(K.t2))
        a('v_xor_b32', v(dst), piece, v(dst)); a('v_and_b32', v(dst), 7, v(dst)); a('v_lshlrev_b32', v(dst), 4, v(dst))
        a('v_lshl_add_u32', v(dst), v(line), 7, v(dst)); a('v_add_u32', v(dst), 's62', v(dst))
    swz(K.lw, t, v(u))
    a('s_sub_u32', 's8', 's9', 128); a('s_mul_i32', 's8', 's8', 57); a('s_lshr_b32', 's8', 's8', 9)
    a('s_bfe_u32', 's11', 's9', (2 << 16) | 4); a('s_cmp_lt_u32', 's9', 128); a('s_cselect_b32', 's8', 's11', 's8')
    a('s_and_b32', 's8', 's8', 1); a('s_cmp_eq_u32', 's8', 0)
    a('s_cselect_b32', 's60', 0, 0x80008000); a('s_lshl_b32', 's11', 's8', 31); a('s_or_b32', 's11', 's11', fl(1/32))
    o, h, of, hf = K.o, K.h, K.of, K.hf
    a('v_bfe_u32', v(o), 'v0', 3, 1); a('v_and_b32', v(t), 3, 'v0'); a('v_lshl_add_u32', v(o), v(o), 2, v(t))
    a('v_bfe_u32', v(t), 'v0', 4, 1); a('v_lshl_add_u32', v(o), v(o), 1, v(t))
    a('v_bfe_u32', v(t), 'v0', 2, 1); a('v_lshl_add_u32', v(o), v(o), 1, v(t))
    a('v_lshrrev_b32', v(h), 5, 'v0')
    a('v_lshl_add_u32', v(t), v(h), 5, v(o))
    a('s_lshl_b32', 's8', 's10', 1)
    swz(K.lr0, t, 's8'); a('v_xor_b32', v(K.lr1), 16, v(K.lr0))
    a('v_cvt_f32_u32', v(of), v(o)); a('v_mul_f32', v(of), 's11', v(of))
    a('v_cvt_f32_u32', v(hf), v(h)); a('v_mul_f32', v(hf), v(hf), v(of))
    for kap in range(2):
        for jj in range(4):
            for e in range(2):
                idx = 2*kap + 4*(2*jj + e)
                if idx: a('v_fmamk_f32', v(X+e), v(of), fl(float(idx)), v(hf)); src = X+e
                else: src = hf
                sincos(a, src, X+2+e, X+4+e)
                vv = 8*kap + 2*jj + e
                a('v_mul_f32', v(X+6+e), fl(1/32), v(src))
                sincos(a, X+6+e, K.TC+vv, K.TS+vv)
            a('v_cvt_pk_bf16_f32', v(K.C+4*kap+jj), v(X+2), v(X+3))
            a('v_cvt_pk_bf16_f32', v(K.Sm+4*kap+jj), v(X+4), v(X+5))
            a('v_xor_b32', v(K.N+4*kap+jj), 0x80008000, v(K.Sm+4*kap+jj))
    a('v_mov_b32', v(K.msk), 0xffff0000)

def pk_auxE(a):
    K = a2_regs()
    a.label('LauxE')
    R = RegAlloc(K.B0, 164)
    WB = 2048*321*2
    bar0(a)
    a('s_sub_u32', 's10', 's3', 8)
    vo = R.alloc(); t = K.t; u = K.u
    a('v_lshlrev_b32', v(vo), 4, 'v0')
    def w_dma():
        a('s_mul_i32', 's14', 's7', 1284)
        a('s_mul_i32', 's11', 's10', 2*256*642); a('s_add_u32', 's14', 's14', 's11')
        a('s_mul_i32', 's11', 's10', 2*1296); a('s_add_u32', 's11', 's11', L_A2 + 1296)
        srd(a, 44, 's18', 's19', WB); srd(a, 48, 's20', 's21', WB)
        def slot(soff, m0v_s, add):
            for pl, sd in enumerate((44, 48)):
                a('s_add_u32', 'm0', m0v_s, add + pl*11664)
                a('buffer_load_dwordx4', v(vo), s(sd, 4), soff, mods='offen lds')
                a('s_mov_b64', 'exec', 0x1ffff)
                a('buffer_load_dwordx4', v(vo), s(sd, 4), soff, mods='offen offset:1024 lds')
                a('s_mov_b64', 'exec', -1)
        slot('s14', 's11', 0)
        a('s_add_u32', 's14', 's14', 256*642)
        slot('s14', 's11', 1296)
        sk = newlabel('Lw1s')
        a('s_cmp_lg_u32', 's7', 127); a('s_cbranch_scc1', sk)
        a('s_cmp_lg_u32', 's10', 3); a('s_cbranch_scc1', sk)
        a('s_mov_b32', 's11', L_A2)
        slot('s14', 's11', 0)
        a.label(sk)
    k0 = R.alloc(); vc = R.alloc(); go = R.alloc(); go2 = R.alloc()
    a('v_lshrrev_b32', v(t), 3, 'v0')
    a('v_mul_u32_u24', v(k0), 65, v(t))
    a('v_mul_u32_u24', v(u), 205, v(k0)); a('v_lshrrev_b32', v(u), 14, v(u))
    a('v_mul_u32_u24', v(u), 80, v(u)); a('v_sub_u32', v(k0), v(k0), v(u))
    a('s_and_b32', 's12', 's10', 1); a('s_lshr_b32', 's13', 's10', 1)
    a('s_cmp_eq_u32', 's12', 0)
    a('s_cselect_b32', 's14', 2, -2); a('s_cselect_b32', 's15', 0, 640)
    a('s_mul_i32', 's8', 's13', 642); a('s_add_u32', 's15', 's15', 's8'); a('s_add_u32', 's15', 's15', L_A2 + 1296)
    a('s_cmp_eq_u32', 's10', 3); a('s_cselect_b32', 's8', 1, 0); a('s_add_u32', 's8', 's8', 's7')
    a('s_cmp_eq_u32', 's8', 128); a('s_cselect_b32', 's41', 1296, 0); a('s_sub_u32', 's15', 's15', 's41')
    a('s_and_b32', 's8', 's8', 127)
    a('v_bfe_u32', v(t), 'v0', 1, 2); a('v_mul_u32_u24', v(t), 80, v(t))
    a('v_and_b32', v(u), 1, 'v0'); a('v_mul_u32_u24', v(u), 11664, v(u)); a('v_add_u32', v(u), 's15', v(u))
    a('v_mad_i32_i24', v(vc), v(t), 's14', v(u))
    a('s_mul_i32', 's8', 's8', TBLK); a('s_add_u32', 's8', 's8', WS_W)
    a('s_lshl_b32', 's41', 's10', 11); a('s_add_u32', 's41', 's41', 's8')
    a('v_add_u32', v(go), 's41', v(vo))
    a('s_mul_i32', 's41', 's10', 9*128); a('s_add_u32', 's41', 's41', 's8'); a('s_add_u32', 's41', 's41', 128*128)
    a('v_add_u32', v(go2), 's41', v(vo))
    ads = [R.alloc() for _ in range(6)]
    for it, C in enumerate((16, 56, 32, 72, 0, 40)):
        if C:
            a('v_add_u32', v(t), C, v(k0)); a('v_subrev_u32', v(u), 80, v(t)); a('v_min_u32', v(t), v(t), v(u))
            a('v_mad_i32_i24', v(ads[it]), v(t), 's14', v(vc))
        else: a('v_mad_i32_i24', v(ads[it]), v(k0), 's14', v(vc))
    O = R.alloc(24); Hh = R.alloc(24)
    epoch_ready(a)
    if WGATE[0]: await_cnt(a, C_X, WGATE[0], t, u)
    w_dma()
    a('s_mov_b32', 's9', 's7'); a('s_mov_b32', 's62', L_A2T); a('s_mov_b32', 's63', L_A2W); a('s_mov_b32', 's61', L_CNT + 4*C_A2)
    a.label('LA2c')
    A2_consts(a, K)
    wtag_regs(a, 56)
    a('s_cmp_lt_u32', 's3', 8); a('s_cbranch_scc1', 'LA2w')
    stamp(a, 2)
    a('s_setprio', 1)
    a('v_mov_b32', v(vo), 0xfffefffe)
    subbar(a, C_W1, 4, t, u, vm=True)
    stamp(a, 3)
    def comb(it):
        for k in range(4): a('v_lshl_or_b32', v(O+4*it+k), v(Hh+4*it+k), 16, v(O+4*it+k))
        for k in range(4): a('v_and_or_b32', v(O+4*it+k), v(O+4*it+k), v(vo), s(56+k))
    for it in range(6):
        for i in range(8): a('ds_read_u16', v((Hh if i & 1 else O) + 4*it + (i >> 1)), v(ads[it]), mods=f'offset:{1296*i}')
        if it: comb(it - 1)
        if it == 2:
            for k in range(2): a('global_store_dwordx4', v(go), v(O+4*k, 4), WS_, mods=f'offset:{1024*k} {SC}')
            a('v_add_u32', v(go), 8192, v(go))
        if it == 4:
            for k in range(2): a('global_store_dwordx4', v(go), v(O+8+4*k, 4), WS_, mods=f'offset:{1024*k} {SC}')
    comb(5)
    a('global_store_dwordx4', v(go2), v(O+16, 4), WS_, mods=SC)
    a('s_mov_b64', 'exec', 0xff)
    a('global_store_dwordx4', v(go2), v(O+20, 4), WS_, mods=f'offset:1024 {SC}')
    a('s_mov_b64', 'exec', -1)
    stamp(a, 4)
    arrive(a, C_W1D, t, u)
    stamp(a, 5)
    a.label('LA2w')
    await_cnt(a, C_A1D, 8, t, u)
    await_cnt(a, C_W1D, 4, t, u)
    a.label('LA2')
    pk_A2(a, K)

def pk_A2(a, K):
    t, u, go, lw, lr0, lr1, msk, X, Z, Wp, B0, B1 = K.t, K.u, K.go, K.lw, K.lr0, K.lr1, K.msk, K.X, K.Z, K.Wp, K.B0, K.B1
    for it in range(4):
        a('s_add_u32', s(44+2*it), 's38', 32*TBLK*it); a('s_addc_u32', s(45+2*it), 's39', 0)
    a('s_sub_u32', 's63', 's63', 's62')
    a('s_setprio', 3)
    stamp(a, 7)
    stamp(a, 11)
    ST, SW = B0, B1
    def tl():
        for it in range(4): a('global_load_dwordx4', v(ST+4*it, 4), v(go), s(44+2*it, 2), mods=SC)
    poll_tags(a, tl, [ST+4*i for i in range(4)], t, 1, XSLEEP[0])
    a('v_add_u32', v(Wp), WS_W, v(go)); a('v_add_u32', v(X+2), 's63', v(lw))
    def wl():
        for it in range(4): a('global_load_dwordx4', v(SW+4*it, 4), v(Wp), s(44+2*it, 2), mods=SC)
    stamp(a, 8)
    for it in range(4): a('ds_write_b128', v(lw), v(ST+4*it, 4), mods=f'offset:{4096*it}')
    a('v_mov_b32', v(X), 's61'); a('v_mov_b32', v(X+1), 1)
    a.wait(lgkm=0); lds_cnt_add(a, X, X+1)
    stamp(a, 6)
    wl()
    lp = newlabel('La2'); a.label(lp)
    a('ds_read_b32', v(X+1), v(X)); a('v_readfirstlane_b32', 's40', v(X+1)); a('s_cmp_lt_u32', 's40', 4); a('s_cbranch_scc1', lp)
    stamp(a, 9)
    for kap in range(2):
        for ri, ad in enumerate((lr0, lr1)): a('ds_read_b128', v(Z+8*kap+4*ri, 4), v(ad), mods=f'offset:{8192*kap}')
    MF = 'v_mfma_f32_32x32x16_bf16'
    def mm(kap, dataA, inv, d):
        dR, dI = d, d+16
        zr, zi = v(Z+8*kap, 4), v(Z+8*kap+4, 4)
        c, p, n = v(K.C+4*kap, 4), v(K.Sm+4*kap, 4), v(K.N+4*kap, 4)
        if inv: p, n = n, p
        for k, (dd, z, m) in enumerate(((dR, zr, c), (dI, zi, c), (dR, zi, p), (dI, zr, n))):
            cin = 0 if (kap == 0 and k < 2) else v(dd, 16)
            if dataA: a(MF, v(dd, 16), z, m, cin)
            else: a(MF, v(dd, 16), m, z, cin)
    mm(0, True, False, B0); mm(1, True, False, B0)
    poll_tags(a, wl, [SW+4*i for i in range(4)], t, 3, XSLEEP[0], tagsg=56, pre=True)
    for it in range(4): a('ds_write_b128', v(X+2), v(SW+4*it, 4), mods=f'offset:{4096*it}')
    stamp(a, 12)
    a('v_mov_b32', v(u), 1); a('v_mov_b32', v(t), 's61')
    a.wait(lgkm=0)
    a('s_mov_b64', 'exec', 1); a('ds_add_u32', v(t), v(u), mods='offset:4'); a('s_mov_b64', 'exec', -1)
    bufs = [B0, B1]
    for st in range(3):
        sb, db = bufs[st & 1], bufs[(st + 1) & 1]
        if st == 1:
            lp = newlabel('La2'); a.label(lp, keep=True) if False else None
            a.settle(keep_hist=True) if False else None
            hist = list(a.hist)
            a.raw(lp + ':')
            a('ds_read_b32', v(u), v(t), mods='offset:4'); a('v_readfirstlane_b32', 's40', v(u)); a('s_cmp_lt_u32', 's40', 4)
            a.raw(f'    s_cbranch_scc1 {lp}'); a.bytes += 4
            stamp(a, 14)
            a('v_add_u32', v(t), 's63', v(lr0)); a('v_add_u32', v(u), 's63', v(lr1))
            for kap in range(2):
                for ri, ad in enumerate((t, u)): a('ds_read_b128', v(Wp+8*kap+4*ri, 4), v(ad), mods=f'offset:{8192*kap}')
            a('v_mov_b32', v(X+6), 0xfffefffe)
            for i in range(16):
                if i & 4: a('v_bitop3_b32', v(Wp+i), v(Wp+i), v(X+6), 's60', mods='bitop3:0x6a')
                else: a('v_and_b32', v(Wp+i), v(X+6), v(Wp+i))
        for kap in range(2):
            for jj in range(4):
                for e in range(2):
                    vv = 8*kap + 2*jj + e
                    re, im = sb+vv, sb+16+vv
                    if st == 1:
                        c, s_ = X+4, X+5
                        for dst, pl in ((c, 0), (s_, 1)):
                            src = Wp + 8*kap + 4*pl + jj
                            if e: a('v_and_b32', v(dst), v(msk), v(src))
                            else: a('v_lshlrev_b32', v(dst), 16, v(src))
                    else: c, s_ = K.TC+vv, K.TS+vv
                    a('v_mul_f32', v(X+e), v(re), v(c)); a('v_mul_f32', v(X+2+e), v(im), v(c))
                    if st == 0:
                        a('v_fmac_f32', v(X+e), v(im), v(s_)); a('v_fma_f32', v(X+2+e), '-' + v(re), v(s_), v(X+2+e))
                    else:
                        a('v_fma_f32', v(X+e), '-' + v(im), v(s_), v(X+e)); a('v_fmac_f32', v(X+2+e), v(re), v(s_))
                a('v_cvt_pk_bf16_f32', v(Z+8*kap+jj), v(X), v(X+1))
                a('v_cvt_pk_bf16_f32', v(Z+8*kap+4+jj), v(X+2), v(X+3))
            mm(kap, st == 1, st >= 1, db)
    sb = bufs[1]
    for kap in range(2):
        for ih, ad in enumerate((lr0, lr1)):
            for x in range(4):
                vv = 8*kap + 4*ih + x
                a('v_cvt_pk_bf16_f32', v(Z+vv), v(sb+vv), v(sb+16+vv)); tag2(a, Z+vv, x)
            a('ds_write_b128', v(ad), v(Z+8*kap+4*ih, 4), mods=f'offset:{8192*kap}')
    stamp(a, 10)
    a('s_add_u32', 's8', 's61', 8)
    subbar_s(a, 's8', 4, t, u)
    for it in range(4): a('ds_read_b128', v(Wp+4*it, 4), v(lw), mods=f'offset:{4096*it}')
    for it in range(4): a('global_store_dwordx4', v(go), v(Wp+4*it, 4), s(44+2*it, 2), mods=SC)
    a('s_setprio', 0)
    stamp(a, 13)
    a('v_mov_b32', v(u), 1); a('v_mov_b32', v(t), 's61')
    if LATE2[0]:
        ll = newlabel('La2'); a('s_and_b32', 's8', 's3', 14); a('s_cmp_lg_u32', 's8', 2); a('s_cbranch_scc1', ll)
        a('s_mov_b64', 'exec', 1); a('ds_add_u32', v(t), v(u), mods='offset:12'); a('s_mov_b64', 'exec', -1)
        a('s_and_b32', 's99', 's3', 1); a('s_lshl_b32', 's99', 's99', 2); a('s_or_b32', 's99', 's99', 18); a('s_mov_b32', 's62', 0)
        await_cnt(a, C_U+1, 4, t, u)
        a('s_branch', 'LB2p')
        a.label(ll)
    a.wait(vm=0)
    a('s_mov_b64', 'exec', 1); a('ds_add_u32', v(t), v(u), mods='offset:12'); a('s_mov_b64', 'exec', -1)
    a('s_cmp_lt_u32', 's3', 8); a('s_cbranch_scc1', 'LA3')
    a('s_branch', 'Lfin')

def epoch_store(a):
    pass

def build(stamps=False):
    STAMPS[0] = stamps
    for it in range(4):
        roles._lbl[0] = 0
        a = Asm()
        a.raw(f"; @launch grid=(256,1,1) block=(768,1,1) lds={LDS_TOTAL}")
        a.raw('.amdgcn_target "amdgcn-amd-amdhsa--gfx950"\n.text')
        entry(a)
        pk_A1(a)
        pk_auxE(a)
        pk_B1(a)
        pk_auxO(a)
        pk_B2(a)
        pk_A3(a); a('s_branch', 'Lfin')
        pk_B3(a)
        a.label('Lfin'); stamp_flush(a, 0); a('s_endpgm')
        a.raw('.p2align 10')
        a.raw(kernel_desc(KNAME, 168, 102))
        hi = max(0, (a.bytes + 1023)//1024*1024 - 12288)
        if hi == CODE_HI[0]: break
        CODE_HI[0] = hi
    print('est bytes', a.bytes, 'instrs', a.nins, 'lds', LDS_TOTAL)
    return a.text()

if __name__ == '__main__':
    open('pk15.s', 'w').write(build(False))
    open('pk15st.s', 'w').write(build(True))
    HGATE[0] = 0; open('pk15a.s', 'w').write(build(False)); open('pk15ast.s', 'w').write(build(True))
    HW[0] = True; open('pk15b.s', 'w').write(build(False))
    for k in sys.argv[1:]:
        roles.AMP[0] = int(k); open(f'pk15amp{k}.s', 'w').write(build(True))
```

```python
import sys
from asmlib import *
import roles
from roles import (X_, WR_, WI_, Q_, K_, V_, SK_, H_, D_, OUT_, DBG_, WS_, WS_T, WS_W, WS_U, WS_F, TBLK, HSZ, newlabel, stamp, stamp_flush,
                   sincos, row_offsets, d1_addrs, srd, quad_voff, STAMPS)
WS_SHIFT = 0x80000
WS_W = 0x400000
WS_U = 0x800000
roles.WS_ST = 0xD00000 - WS_SHIFT
KNAME = "concat_heads__spectral_gfnet__ssm_conv_h3__prompt_kernel"
H_T, H_W, H_U, H_Z, H_T2 = WS_F, WS_F + 128*128, WS_F + 256*128, WS_F + 384*128, WS_F + 640*128
WS_EP = WS_W - 128
SPIN = 1 << 15
SC = 'sc1'
L_CNT = 0
L_H = 256
USZ = 40*144
L_U = L_H + 3*HSZ
L_RED = (L_U + 3*USZ + 127)//128*128
REDSZ = 8192
L_P1 = L_RED + 3*REDSZ - 8192 + 8192
L_P1 = (L_P1 + 255)//256*256
L_XR = L_P1; L_EI = L_XR + 8*3072; L_KI = L_P1; L_VI = L_KI + 17*1296
P1SZ = max(8*3072 + 8*2640 + 1024, 33*1296)
L_A2 = (L_P1 + P1SZ + 255)//256*256
A2SZ = 23552
LDS_TOTAL = L_A2 + A2SZ
assert LDS_TOTAL <= 163840, LDS_TOTAL
L_A2T = L_A2
L_A2W = (L_H + 2*HSZ + 255)//256*256
assert L_A2W + 16384 + 0 <= L_H + 3*HSZ + 0, (L_A2W, L_H + 3*HSZ)
L_TABH = L_RED + 2*REDSZ
L_TW = L_RED
L_T3H = L_U + 2*USZ
L_T3W = L_RED + 2*REDSZ
L_STG_E = L_A2 + 16384
roles.L_CNT, roles.L_EI, roles.L_KI, roles.L_VI, roles.L_XR = L_CNT, L_EI, L_KI, L_VI, L_XR
from roles import subbar, arrive, await_cnt, ei_addrs, b13_lane, tile_dma
C_A1, C_A1D, C_W1, C_W1D, C_A3, C_B1, C_B1D, C_H, C_Q, C_QL = 0, 1, 2, 3, 4, 5, 6, 7, 8, 9
C_A2 = 10
C_U = 20
C_X = 23
C_H0 = 18
C_RED = 24
import pk2
pk2.STAMPS = STAMPS
from pk2 import coop_tables, m2_mats, SEQ, A3K
XDELAY = [0]
WGATE = [8]
HGATE = [1]
GATE = [False]
ZGATE = [True]
LSLEEP = [8]
FSLEEP = [0, 0]
ONEPOLL = [True]

def lds_cnt_add(a, va, vb, rtn=False):
    a('s_mov_b64', 'exec', 1)
    if rtn: a('ds_add_rtn_u32', v(vb), v(va), v(vb))
    else: a('ds_add_u32', v(va), v(vb))
    a('s_mov_b64', 'exec', -1)

def subbar_s(a, saddr, n, va, vb, vm=False):
    a('v_mov_b32', v(va), saddr); a('v_mov_b32', v(vb), 1)
    a.wait(vm=0 if vm else None, lgkm=0)
    lds_cnt_add(a, va, vb, True)
    a('v_readfirstlane_b32', 's40', v(vb))
    done = newlabel('Lbd'); loop = newlabel('Lbl')
    a('s_cmp_ge_u32', 's40', n - 1); a('s_cbranch_scc1', done)
    a.label(loop)
    a('ds_read_b32', v(vb), v(va)); a('v_readfirstlane_b32', 's40', v(vb))
    a('s_cmp_lt_u32', 's40', n); a('s_cbranch_scc1', loop)
    a.label(done)

def publish(a, cid, n, flag_s, va, vb, ep='s52'):
    a('v_mov_b32', v(va), L_CNT + 4*cid); a('v_mov_b32', v(vb), 1)
    a.wait(vm=0, lgkm=0)
    a('s_mov_b64', 'exec', 1)
    a('ds_add_rtn_u32', v(vb), v(va), v(vb))
    a('v_readfirstlane_b32', 's40', v(vb))
    sk = newlabel('Lp')
    a('s_cmp_lg_u32', 's40', n - 1); a('s_cbranch_scc1', sk)
    if ep == 's52':
        a('s_mov_b64', 'exec', 0xff)
        a('v_lshl_add_u32', v(va), 'v0', 14, flag_s)
    else: a('v_mov_b32', v(va), flag_s)
    a('v_mov_b32', v(vb), ep)
    a('global_store_dword', v(va), v(vb), WS_, mods=SC)
    a.label(sk)
    a('s_mov_b64', 'exec', -1)

def poll_flags(a, vaddr, vt, ep='s52'):
    lp = newlabel('Lf'); dn = newlabel('Lf')
    a('s_mov_b32', 's41', SPIN)
    a.label(lp)
    a('global_load_dword', v(vt), v(vaddr), WS_, mods=SC)
    a('s_sub_u32', 's41', 's41', 1)
    a.wait(vm=0)
    a('v_cmp_ne_u32', 'vcc', ep, v(vt))
    a('s_cbranch_scc1', dn)
    sl = FSLEEP[0] if ep == 's52' else FSLEEP[1]
    if sl:
        a('s_cbranch_vccz', dn); a('s_sleep', sl); a('s_branch', lp)
    else: a('s_cbranch_vccnz', lp)
    a.label(dn)
S_M, S_C = 's100', 's101'
def tag_consts(a):
    a('s_mov_b32', S_M, 0xfffeffff); a('s_mov_b32', S_C, 0x10000)
def tag1(a, r, j):
    if j == 0: a('v_and_b32', v(r), 0xfffefffe, v(r))
    elif j == 1: a('v_and_or_b32', v(r), v(r), S_M, 1)
    elif j == 2: a('v_and_or_b32', v(r), v(r), -2, S_C)
    else: a('v_or_b32', v(r), 0x10001, v(r))
def tag2(a, r, j):
    if j & 1: a('v_and_b32', v(r), -2, v(r))
    else: a('v_or_b32', v(r), 1, v(r))
def poll_tags(a, loads, regs, vt, kind, sleep, tagsg=None, pre=False):
    lp = newlabel('Lg'); dn = newlabel('Lg')
    a('s_mov_b32', 's41', SPIN)
    if pre:
        ck = newlabel('Lg'); a('s_branch', ck); a.dead = False
    a.label(lp)
    loads()
    if pre: a.label(ck)
    a('s_sub_u32', 's41', 's41', 1)
    first = True
    for b in regs:
        if kind == 2:
            if first: a('v_bitop3_b32', v(vt), v(b), v(b+1), v(b+1), mods='bitop3:0xcf')
            else: a('v_bitop3_b32', v(vt), v(vt), v(b), v(b+1), mods='bitop3:0xfb')
            a('v_bitop3_b32', v(vt), v(vt), v(b+2), v(b+3), mods='bitop3:0xfb')
        elif kind == 1:
            if first: a('v_bitop3_b32', v(vt), v(b+3), v(b), v(b), mods='bitop3:0xcf')
            else: a('v_bitop3_b32', v(vt), v(vt), v(b+3), v(b), mods='bitop3:0xfb')
            a('v_bitop3_b32', v(vt), v(vt), v(b+1), 1, mods='bitop3:0xf6')
            a('v_bitop3_b32', v(vt), v(vt), v(b+2), S_C, mods='bitop3:0xf6')
        else:
            for j in range(4):
                if first and j == 0: a('v_xor_b32', v(vt), s(tagsg), v(b))
                else: a('v_bitop3_b32', v(vt), v(vt), v(b+j), s(tagsg+j), mods='bitop3:0xf6')
        first = False
    a('v_and_b32', v(vt), 1 if kind == 2 else 0x10001, v(vt))
    a('v_cmp_ne_u32', 'vcc', 0, v(vt))
    a('s_cbranch_scc1', dn)
    a('s_cbranch_vccz', dn); a('s_sleep', sleep); a('s_branch', lp)
    a.label(dn)
def wtag_regs(a, base):
    for j in range(4):
        a('s_add_u32', 's8', 's52', j); a('s_and_b32', s(base+j), 's8', 1); a('s_bitcmp1_b32', 's8', 1)
        a('s_cselect_b32', 's8', S_C, 0); a('s_or_b32', s(base+j), s(base+j), 's8')
def hint(a, caddr, n, flag_s, va, vb, ep):
    a('v_mov_b32', v(va), caddr); a('v_mov_b32', v(vb), 1)
    a('s_mov_b64', 'exec', 1)
    a('ds_add_rtn_u32', v(vb), v(va), v(vb))
    a('v_readfirstlane_b32', 's40', v(vb))
    sk = newlabel('Lp')
    a('s_add_u32', 's40', 's40', 1); a('s_cmp_lg_u32', 's40', n); a('s_cbranch_scc1', sk)
    a('v_mov_b32', v(va), flag_s); a('v_mov_b32', v(vb), ep)
    a('global_store_dword', v(va), v(vb), WS_, mods=SC)
    a.label(sk)
    a('s_mov_b64', 'exec', -1)
def poll_hints(a, vaddr, vt, vz, ep, nlanes):
    lp = newlabel('Lf'); dn = newlabel('Lf')
    a('s_mov_b32', 's41', SPIN); a('v_mov_b32', v(vz), 0)
    if nlanes < 32: a('s_mov_b64', 'exec', (1 << nlanes) - 1)
    else: a('s_mov_b32', 'exec_hi', 0)
    a.label(lp)
    a('global_atomic_add', v(vt), v(vaddr), v(vz), WS_, mods='sc0 sc1')
    a('s_sub_u32', 's41', 's41', 1)
    a.wait(vm=0)
    a('v_cmp_ne_u32', 'vcc', ep, v(vt))
    a('s_cbranch_scc1', dn)
    a('s_cbranch_vccnz', lp)
    a.label(dn)
    a('s_mov_b64', 'exec', -1)
def wait_lds(a, cid, n, t, u):
    a('v_mov_b32', v(t), L_CNT + 4*cid)
    lq = newlabel('Lw'); a.label(lq)
    a('s_sleep', 1); a('ds_read_b32', v(u), v(t)); a('v_readfirstlane_b32', 's40', v(u)); a('s_cmp_lt_u32', 's40', n); a('s_cbranch_scc1', lq)
C_HT, C_HU, C_HZ, C_GU, C_GZ, C_GT2 = 32, 33, 34, 35, 36, 37
NS = [8]
UH = [False]
TWOPASS = [True]
UMARG = [0]
ZDRAIN = [True]
WARM = [0]
QPF = [0]
HPF = [1]
WPF = [1]
QEARLY = [False]
W1DR = [False]
HW = [False]
PF = [True]
LATE2 = [True]
A3ALL = [0]
EG = [C_W1D]
def drained(a, cid, va, vb):
    arrive(a, cid, va, vb, vm=True)
TAGX = [False, False]
XSLEEP = [8]
def poll_tag0(a, loads, regs, vt, sleep=0):
    lp = newlabel('Lg'); dn = newlabel('Lg')
    a('s_mov_b32', 's41', SPIN)
    a.label(lp)
    loads()
    a('s_sub_u32', 's41', 's41', 1)
    a('v_or_b32', v(vt), v(regs[0]), v(regs[1]))
    for k in range(2, len(regs), 2): a('v_or3_b32', v(vt), v(vt), v(regs[k]), v(regs[k+1]))
    a('v_and_b32', v(vt), 1, v(vt))
    a('v_cmp_ne_u32', 'vcc', 0, v(vt))
    a('s_cbranch_scc1', dn)
    if sleep:
        a('s_cbranch_vccz', dn); a('s_sleep', sleep); a('s_branch', lp)
    else: a('s_cbranch_vccnz', lp)
    a.label(dn)

def epoch_ready(a):
    a.wait(lgkm=0); a('s_add_u32', 's52', 's52', 1)
def warm(a, late):
    if not late:
        a('v_lshlrev_b32', 'v1', 21, 'v0')
        a('s_mov_b64', 'exec', 1)
        a('global_load_dword', 'v83', 'v1', WR_); a('global_load_dword', 'v84', 'v1', WI_)
        a('s_mov_b64', 'exec', -1)
        a('v_and_b32', 'v2', 1, 'v0'); a('v_mul_u32_u24', 'v2', 0x1f0000, 'v2'); a('v_add_u32', 'v2', 'v1', 'v2')
        a('s_sub_u32', 's12', 's38', WS_SHIFT); a('s_subb_u32', 's13', 's39', 0)
        a('s_mov_b64', 'exec', 0x3f); a('global_load_dword', 'v80', 'v2', 's[12:13]')
        a('s_mov_b64', 'exec', 3); a('global_load_dword', 'v82', 'v1', H_)
        a('s_mov_b64', 'exec', 1); a('global_load_dword', 'v85', 'v1', D_)
        a('s_load_dword', 's8', D_, 0)
    else:
        a('v_lshlrev_b32', 'v1', 21, 'v0')
        a('s_mov_b64', 'exec', 3); a('global_load_dword', 'v81', 'v1', Q_)
        a('s_mov_b64', 'exec', -1)
        a('v_lshl_add_u32', 'v1', 'v0', 9, 's7'); a('v_mul_u32_u24', 'v1', 2560, 'v1')
        a('s_mov_b64', 'exec', 0xf); a('global_load_dword', 'v86', 'v1', OUT_)
        a('v_add_u32', 'v1', 1920*2560, 'v1'); a('s_mov_b64', 'exec', 1); a('global_load_dword', 'v86', 'v1', OUT_)
    a('s_mov_b64', 'exec', -1)
def bar0(a):
    a.wait(lgkm=0)
    a('s_add_u32', 's38', 's38', WS_SHIFT); a('s_addc_u32', 's39', 's39', 0)
    a('s_add_u32', 's40', 's38', WS_EP); a('s_addc_u32', 's41', 's39', 0)
    a('s_load_dword', 's52', 's[40:41]', 0)
    a('s_lshl_b32', 's96', 's53', 1); a('s_and_b32', 's96', 's96', -4); a('s_min_u32', 's96', 's96', 1272)
    a('s_load_dwordx2', 's[54:55]', D_, 's96')
    stamp(a, 1)
    a('s_barrier')

CODE_HI = [6144]
def entry(a):
    a.raw(f".globl {KNAME}\n.p2align 12\n.type {KNAME},@function\n{KNAME}:")
    a('s_cmp_ge_u32', 's2', 256); a('s_cbranch_scc1', 'Lexit')
    if STAMPS[0]:
        for i in range(1, 16): a('s_mov_b32', s(64+2*i), 0)
    stamp(a, 0)
    a('s_load_dwordx16', 's[16:31]', 's[0:1]', 0)
    a('s_load_dwordx8', 's[32:39]', 's[0:1]', 64)
    a('s_getpc_b64', 's[42:43]'); a('s_and_b32', 's42', 's42', 0xfffff000)
    a('s_bitcmp1_b32', 's2', 3); a('s_cselect_b32', 's8', CODE_HI[0], 0); a('s_add_u32', 's42', 's42', 's8'); a('s_addc_u32', 's43', 's43', 0)
    a('v_lshlrev_b32', 'v2', 4, 'v0'); a('v_mov_b32', 'v3', 's43')
    a('v_add_co_u32', 'v2', 'vcc', 's42', 'v2'); a('v_addc_co_u32', 'v3', 'vcc', 0, 'v3', 'vcc')
    a('global_load_dwordx4', 'v[164:167]', 'v[2:3]', 'off')
    a('v_lshrrev_b32', 'v1', 6, 'v0'); a('v_and_b32', 'v0', 63, 'v0')
    a('v_readfirstlane_b32', 's3', 'v1')
    a('s_and_b32', 's4', 's2', 7); a('s_bfe_u32', 's5', 's2', (1 << 16) | 3); a('s_lshr_b32', 's6', 's2', 4)
    a('s_lshl3_add_u32', 's7', 's6', 's4')
    tag_consts(a)
    a('s_mul_i32', 's53', 's4', 80); a('s_mul_i32', 's8', 's6', 5); a('s_add_u32', 's53', 's53', 's8'); a('s_lshl1_add_u32', 's53', 's5', 's53')
    a('v_lshlrev_b32', 'v1', 2, 'v0'); a('v_mov_b32', 'v2', 0)
    a('ds_write_b32', 'v1', 'v2', mods=f'offset:{L_CNT}')
    a('s_cmp_lg_u32', 's5', 0); a('s_cbranch_scc1', 'LentO')
    a('s_cmp_ge_u32', 's3', 8); a('s_cbranch_scc1', 'LentP' if PF[0] else 'LauxE')
    R = RegAlloc(1, 160)
    a('s_lshl_b32', 's9', 's3', 7); a('s_add_u32', 's9', 's9', 's7'); a('s_mul_i32', 's10', 's9', 1280)
    vo = row_offsets(a, R, 's10', 1024*1280)
    a('s_mul_i32', 's11', 's3', 3072); a('s_add_u32', 's11', 's11', L_XR); a('s_mov_b32', 'm0', 's11')
    if XDELAY[0]: a('s_sleep', XDELAY[0])
    for t in range(3): a('global_load_lds_dwordx4', v(vo[t]), X_, mods=f'offset:{1024*t}')
    a('s_branch', 'LA1')
    if PF[0]:
        a.label('LentP')
        a('s_mul_i32', 's10', 's6', 128*1280); a('s_mul_i32', 's8', 's4', 160); a('s_add_u32', 's10', 's10', 's8')
        a('s_bitcmp1_b32', 's3', 0); a('s_cselect_b32', 's8', 156, 0); a('s_add_u32', 's10', 's10', 's8'); a('s_add_u32', 's10', 's10', 64*1280)
        a('v_mul_u32_u24', 'v1', 1280, 'v0'); a('v_add_u32', 'v1', 's10', 'v1')
        a('s_bitcmp1_b32', 's3', 1); a('s_cselect_b64', 's[12:13]', V_, K_)
        a('global_load_dword', 'v87', 'v1', 's[12:13]')
        a('s_branch', 'LauxE')
    a.label('LentO')
    a('s_cmp_ge_u32', 's3', 9); a('s_cbranch_scc1', 'Lbar0')
    R = RegAlloc(1, 160)
    vo = quad_voff(a, R); t = R.alloc()
    a('s_mul_i32', 's10', 's6', 128*1280); a('s_mul_i32', 's8', 's4', 160); a('s_add_u32', 's10', 's10', 's8')
    a('s_sub_u32', 's8', 's10', 4*1280); a('v_add_u32', v(t), 's8', v(vo))
    NB = 2048*1280
    srd(a, 44, 's24', 's25', NB); srd(a, 48, 's26', 's27', NB)
    a('s_mov_b32', 'exec_hi', 0xff)
    a('s_cmp_eq_u32', 's3', 8); a('s_cbranch_scc1', 'LentH')
    if PF[0]:
        a('s_mul_i32', 's11', 's3', 8*1280); a('s_add_u32', 's11', 's11', 's10')
        a('s_mul_i32', 's12', 's3', 1296); a('s_add_u32', 's12', 's12', L_KI + 1296)
    else:
        a('s_mul_i32', 's11', 's3', 16*1280); a('s_add_u32', 's11', 's11', 's10')
        a('s_mul_i32', 's12', 's3', 2*1296); a('s_add_u32', 's12', 's12', L_KI + 1296)
    for k in range(4):
        a('s_mov_b32', 'm0', 's12')
        a('buffer_load_dwordx4', v(vo), 's[44:47]', 's11', mods='offen lds')
        a('s_add_u32', 'm0', 's12', L_VI - L_KI - 1296)
        a('buffer_load_dwordx4', v(vo), 's[48:51]', 's11', mods='offen lds')
        if k < 3:
            if PF[0] and k == 1:
                a('s_add_u32', 's11', 's11', 60*1280); a('s_addk_i32', 's12', 8*1296 - 640)
            else:
                a('s_addk_i32', 's11', 4*1280); a('s_addk_i32', 's12', 640 if k != 1 else 656)
    a('s_branch', 'LentX')
    a.label('LentH')
    a('s_mov_b32', 'm0', L_KI + 640)
    a('buffer_load_dwordx4', v(t), 's[44:47]', 0, mods='offen lds')
    a.label('LentX')
    a('s_mov_b64', 'exec', -1)
    a.label('Lbar0')
    bar0(a)
    a('s_cmp_ge_u32', 's3', 10); a('s_cbranch_scc1', 'LauxO')
    a('s_branch', 'LB1')
    a.label('Lexit')
    a('s_endpgm')

def h_copy(a, R, slc, sc):
    mk = R.mark()
    vo = R.alloc(); Hd = R.alloc(4); t = R.alloc()
    a('s_lshl_b32', 's8', sc, 1); a('s_add_u32', 's8', 's8', 2); a('v_lshl_add_u32', v(vo), 'v0', 4, 's8')
    a('s_and_b32', 's12', sc, 1); a('s_mul_i32', 's12', 's12', 529*16); a('s_lshr_b32', 's13', sc, 1); a('s_mul_i32', 's13', 's13', 264*16)
    a('s_add_u32', 's12', 's12', 's13'); a('s_mul_i32', 's13', slc, HSZ); a('s_add_u32', 's12', 's12', 's13'); a('s_add_u32', 's12', 's12', L_H)
    a('s_add_u32', 's8', 's53', slc); a('s_lshl_b32', 's8', 's8', 12)
    a('s_load_dwordx2', 's[56:57]', H_, 's8')
    a('s_add_u32', 's44', 's30', 's8'); a('s_addc_u32', 's45', 's31', 0); a('s_and_b32', 's45', 's45', 0xffff)
    a('s_mov_b32', 's46', 4096); a('s_mov_b32', 's47', 0x20000)
    a('s_add_u32', 'm0', 's12', 128)
    for b in range(4): a('buffer_load_dwordx4', v(vo), 's[44:47]', 0, mods=f'offen offset:{1024*b} lds')
    for k in range(4): a('v_mov_b32', v(Hd+k), 0)
    sk = newlabel('Lh')
    a('s_cmp_lg_u32', sc, 0); a('s_cbranch_scc1', sk)
    a('s_mul_i32', 's8', slc, USZ); a('s_add_u32', 's8', 's8', L_U + 32*144)
    a('v_lshl_add_u32', v(t), 'v0', 4, 's8')
    a('ds_write_b128', v(t), v(Hd, 4))
    a('s_mov_b64', 'exec', 0xff); a('ds_write_b128', v(t), v(Hd, 4), mods='offset:1024'); a('s_mov_b64', 'exec', -1)
    a.label(sk)
    a('s_lshl_b32', 's8', sc, 4); a('s_sub_u32', 's8', 48, 's8')
    a('v_lshl_add_u32', v(t), 'v0', 4, 's12')
    a.wait(lgkm=0)
    a('s_lshl_b64', 's[56:57]', 's[56:57]', 's8')
    a('v_writelane_b32', v(Hd+2), 's56', 7); a('v_writelane_b32', v(Hd+3), 's57', 7)
    a('s_mov_b64', 'exec', 0xff)
    a('ds_write_b128', v(t), v(Hd, 4))
    a('s_mov_b64', 'exec', -1)
    R.release(mk)

def h_srd(a, slc):
    a('s_add_u32', 's8', 's53', slc); a('s_lshl_b32', 's8', 's8', 12)
    a('s_add_u32', 's44', 's30', 's8'); a('s_addc_u32', 's45', 's31', 0); a('s_and_b32', 's45', 's45', 0xffff)
    a('s_mov_b32', 's46', 4096); a('s_mov_b32', 's47', 0x20000)
def h_load(a, D, vo, vo2, imm):
    a('buffer_load_dwordx4', v(D, 4), v(vo), 's[44:47]', 0, mods=f'offen offset:{imm}')
    a('buffer_load_dwordx2', v(D+4, 2), v(vo2), 's[44:47]', 0, mods=f'offen offset:{imm}')
def h_expand(a, D, T, wa, imm):
    CB = [0, 529*16, 264*16, 793*16]
    for i in range(4): a('v_alignbit_b32', v(T+i), v(D+i+1), v(D+i), 16)
    a('ds_write_b128', v(wa), v(T, 4), mods=f'offset:{imm + CB[0]}')
    for i in range(4): a('v_alignbit_b32', v(T+4+i), v(D+i+2), v(D+i+1), 16)
    a('ds_write_b128', v(wa), v(T+4, 4), mods=f'offset:{imm + CB[2]}')
    a('ds_write_b128', v(wa), v(D+2, 4), mods=f'offset:{imm + CB[3]}')
    for i in range(4): a('v_mov_b32', v(T+8+i), v(D+i+1))
    a('ds_write_b128', v(wa), v(T+8, 4), mods=f'offset:{imm + CB[1]}')
def u_pad(a, slc, Zr, t):
    a('s_mul_i32', 's8', slc, USZ); a('s_add_u32', 's8', 's8', L_U + 32*144)
    a('v_lshl_add_u32', v(t), 'v0', 4, 's8')
    a('ds_write_b128', v(t), v(Zr, 4))
    a('s_mov_b64', 'exec', 0xff); a('ds_write_b128', v(t), v(Zr, 4), mods='offset:1024'); a('s_mov_b64', 'exec', -1)

def pk_A1(a):
    a.label('LA1')
    a('s_setprio', 2)
    R = RegAlloc(1, 150)
    coop_tables(a, R, L_TABH, L_TW, a3=False)
    bar0(a)
    HE = 152
    R = RegAlloc(1, 152)
    rd = R.alloc(); va = R.alloc(); vb = R.alloc(); t = R.alloc(); q = R.alloc()
    Hs = R.alloc(16); Gs = R.alloc(16); TW = R.alloc(24)
    a('v_lshlrev_b32', v(rd), 4, 'v0'); a('v_add_u32', v(t), L_TABH, v(rd)); a('v_add_u32', v(rd), L_TW, v(rd))
    Mre, Mim = m2_mats(a, R, False, None)
    epoch_ready(a)
    for k in (3, 0, 1, 2):
        a('ds_read_b128', v(Hs+4*k, 4), v(t), mods=f'offset:{1024*k}'); a('ds_read_b128', v(Gs+4*k, 4), v(t), mods=f'offset:{4096+1024*k}')
    for k in (2, 3, 4, 5, 0, 1): a('ds_read_b128', v(TW+4*k, 4), v(rd), mods=f'offset:{1024*k}')
    a('v_lshrrev_b32', v(va), 2, 'v0'); a('v_lshrrev_b32', v(q), 4, 'v0')
    a('v_bfe_u32', v(vb), 'v0', 1, 1); a('v_mul_u32_u24', v(vb), 1408, v(vb))
    a('v_and_b32', v(t), 1, 'v0'); a('v_lshl_add_u32', v(vb), v(t), 3, v(vb)); a('v_add_u32', v(vb), 's11', v(vb))
    tra = d1_addrs(a, R, va, vb)
    Dr = R.alloc(10)
    a('s_lshr_b32', 's14', 's3', 2); a('s_and_b32', 's15', 's3', 3); h_srd(a, 's14')
    a('s_lshl_b32', 's8', 's15', 10); a('v_lshl_add_u32', v(Dr), 'v0', 4, 's8'); a('v_lshlrev_b32', v(Dr+1), 4, 'v0')
    a('v_subrev_u32', v(Dr+2), 128, v(Dr+1)); a('v_subrev_u32', v(Dr+3), 112, v(Dr+1))
    a('buffer_load_dwordx4', v(HE, 4), v(Dr), 's[44:47]', 0, mods='offen'); a('buffer_load_dwordx2', v(HE+4, 2), v(Dr), 's[44:47]', 0, mods='offen offset:16')
    h_load(a, HE+6, Dr+2, Dr+3, 0)
    a('v_mov_b32', v(va), L_CNT + 4*C_X); a('v_mov_b32', v(vb), 1)
    stamp(a, 2)
    a.wait(vm=4)
    stamp(a, 3)
    for e in (0, 1, 2, 3, 4): a('ds_read_b64_tr_b16', v(Dr + 2*((e + 4) % 5), 2), v(tra[e]))
    lds_cnt_add(a, va, vb)
    ea0, ea1 = ei_addrs(a, R, 2624, dup=False)
    P0 = R.alloc(8); A1 = R.alloc(24); PK = R.alloc(12); X = R.alloc(8)
    a('v_mfma_f32_16x16x16_bf16', v(P0, 4), v(Dr+8, 2), v(Hs+12, 2), 0)
    a('v_mfma_f32_16x16x16_bf16', v(P0+4, 4), v(Dr+8, 2), v(Gs+12, 2), 0)
    tr2 = R.alloc(); go = R.alloc()
    a('v_bfe_u32', v(tr2), 'v0', 2, 2); a('v_mul_u32_u24', v(tr2), 2624, v(tr2))
    a('v_and_b32', v(t), 3, 'v0'); a('v_lshl_add_u32', v(tr2), v(t), 3, v(tr2))
    a('v_lshl_add_u32', v(tr2), v(q), 5, v(tr2))
    PAIR = {1: (0, 4), 2: (1, 3), 0: (6, 6)}
    for k5 in (1, 2, 0):
        for ri, M in enumerate((Hs, Gs)):
            a('v_mfma_f32_16x16x32_bf16', v(A1+8*k5+4*ri, 4), v(Dr, 4), v(M + 2*PAIR[k5][0], 4), v(P0+4*ri, 4))
        for ri, M in enumerate((Hs, Gs)):
            a('v_mfma_f32_16x16x32_bf16', v(A1+8*k5+4*ri, 4), v(Dr+4, 4), v(M + 2*PAIR[k5][1], 4), v(A1+8*k5+4*ri, 4))
        if k5 == 1:
            a('s_lshl_b32', 's8', 's3', 7); a('s_add_u32', 's8', 's8', L_EI); a('v_add_u32', v(tr2), 's8', v(tr2))
            a('s_mul_i32', 's8', 's7', TBLK); a('s_lshl_b32', 's12', 's3', 10); a('s_add_u32', 's8', 's8', 's12')
            a('v_lshl_add_u32', v(go), 'v0', 4, 's8')
    A2 = Hs
    for k5 in (1, 2, 0):
        for r in range(4):
            re, im, c, s_ = A1+8*k5+r, A1+8*k5+4+r, TW+8*k5+r, TW+8*k5+4+r
            a('v_mul_f32', v(X+r), v(re), v(c)); a('v_mul_f32', v(X+4+r), v(im), v(c))
            a('v_fmac_f32', v(X+r), v(im), v(s_)); a('v_fma_f32', v(X+4+r), '-' + v(re), v(s_), v(X+4+r))
            a('v_cvt_pk_bf16_f32', v(PK+4*k5+r), v(X+r), v(X+4+r))
        a('v_mfma_f32_16x16x32_bf16', v(A2+8*k5, 4), v(Mre, 4), v(PK+4*k5, 4), 0)
        a('v_mfma_f32_16x16x32_bf16', v(A2+8*k5+4, 4), v(Mim, 4), v(PK+4*k5, 4), 0)
    for k5 in (1, 2, 0):
        for r in range(4): a('v_cvt_pk_bf16_f32', v(PK+4*k5+r), v(A2+8*k5+r), v(A2+8*k5+4+r))
        if k5: a('ds_write_b128', v(ea0), v(PK+4*k5, 4), mods=f'offset:{1024*(k5-1)}')
        else: a('ds_write_b128', v(ea1), v(PK, 4))
    stamp(a, 4)
    subbar(a, C_A1, 8, X, X+1)
    O = A1
    for it in range(3):
        if it == 2:
            skip = newlabel('La1s'); a('s_cmp_gt_u32', 's3', 4); a('s_cbranch_scc1', skip)
        a('ds_read_b64_tr_b16', v(O+4*it, 2), v(tr2), mods=f'offset:{1024*it}')
        a('ds_read_b64_tr_b16', v(O+4*it+2, 2), v(tr2), mods=f'offset:{1024*it + 4*2624}')
        if it == 1:
            for j in range(4): tag1(a, O+j, j)
            a('global_store_dwordx4', v(go), v(O, 4), WS_, mods=SC)
            a('v_add_u32', v(go), 8192, v(go))
            for j in range(4): tag1(a, O+4+j, j)
            a('global_store_dwordx4', v(go), v(O+4, 4), WS_, mods=SC)
            a('v_add_u32', v(go), 8192, v(go))
    for j in range(4): tag1(a, O+8+j, j)
    a('s_cmp_lt_u32', 's3', 4); a('s_cselect_b32', 'exec_hi', -1, 0)
    a('global_store_dwordx4', v(go), v(O+8, 4), WS_, mods=SC)
    a('s_mov_b64', 'exec', -1)
    a.label(skip)
    stamp(a, 5)
    a('s_setprio', 0)
    R = RegAlloc(1, 60)
    coop_tables(a, R, L_T3H, L_T3W, a3=True)
    drained(a, C_A1D, 1, 2)
    stamp(a, 6)
    if WARM[0] > 1:
        lw_ = newlabel('Le'); a('s_cmp_lg_u32', 's3', 7); a('s_cbranch_scc1', lw_)
        warm(a, True)
        a.label(lw_)
    R = RegAlloc(1, 60)
    T = R.alloc(12); wa = R.alloc(); tt = R.alloc()
    a('s_lshr_b32', 's14', 's3', 2); a('s_and_b32', 's15', 's3', 3)
    a('s_mul_i32', 's8', 's14', HSZ); a('s_add_u32', 's8', 's8', L_H); a('v_lshl_add_u32', v(tt), 'v0', 4, 's8')
    a('s_lshl_b32', 's8', 's15', 10); a('v_add_u32', v(wa), 's8', v(tt))
    h_expand(a, HE, T, wa, 128)
    skh = newlabel('Lh'); a('s_cmp_lg_u32', 's15', 0); a('s_cbranch_scc1', skh)
    a('s_mov_b64', 'exec', 0xff)
    h_expand(a, HE+6, T, tt, 0)
    a('s_mov_b64', 'exec', -1)
    for k in range(4): a('v_mov_b32', v(T+k), 0)
    u_pad(a, 's14', T, wa)
    a.label(skh)
    a('s_cmp_ge_u32', 's7', 36); a('s_cbranch_scc1', 'LB2')
    a('s_cmp_ge_u32', 's3', 4); a('s_cbranch_scc1', 'LB2')
    arrive(a, C_H0, 1, 2)
    a('s_add_u32', 's9', 's7', 128); a('s_mov_b32', 's10', 's3')
    a('s_mov_b32', 's62', L_P1); a('s_mov_b32', 's63', L_P1 + 16384); a('s_mov_b32', 's61', L_CNT + 4*(C_A2+4))
    a('s_branch', 'LA2c')

def gen_A3_regs(a):
    K = A3K(); PIT = 2640
    R = RegAlloc(100, 164); T = RegAlloc(1, 100)
    t = T.alloc(); n = T.alloc(); q = T.alloc(); vb = T.alloc()
    K.go = R.alloc(); K.go2 = R.alloc(); K.go3 = R.alloc(); K.lw = R.alloc()
    a('s_mul_i32', 's8', 's7', TBLK); a('s_lshl_b32', 's12', 's3', 10); a('s_add_u32', 's12', 's8', 's12')
    a('v_lshl_add_u32', v(K.go), 'v0', 4, 's12'); a('v_add_u32', v(K.go2), 8192, v(K.go))
    a('s_add_u32', 's8', 's8', TBLK - 16)
    a('v_add_u32', v(K.go3), 16384, v(K.go)); a('v_min_u32', v(K.go3), 's8', v(K.go3))
    a('v_and_b32', v(t), 1, 'v0'); a('v_mul_u32_u24', v(K.lw), 4*PIT, v(t))
    a('v_lshrrev_b32', v(t), 1, 'v0'); a('v_lshl_add_u32', v(K.lw), v(t), 2, v(K.lw))
    a('s_lshl_b32', 's8', 's3', 7); a('s_add_u32', 's8', 's8', L_EI); a('v_add_u32', v(K.lw), 's8', v(K.lw))
    K.ea0, K.ea1 = ei_addrs(a, R, PIT, dup=True)
    a('s_lshl_b32', 's9', 's3', 7); a('s_add_u32', 's9', 's9', 's7'); a('s_mul_i32', 's10', 's9', 2560)
    a('s_mul_i32', 's11', 's3', 3072); a('s_add_u32', 's11', 's11', L_XR)
    K.vo = row_offsets(a, R, 's10', 1024*2560)
    K.Mre, K.Mim = m2_mats(a, R, True, 2.0/(2048*640))
    K.rd = R.alloc()
    a('v_and_b32', v(n), 15, 'v0'); a('v_lshrrev_b32', v(q), 4, 'v0')
    a('v_lshrrev_b32', v(vb), 5, 'v0'); a('v_mul_u32_u24', v(vb), 1408, v(vb))
    a('v_and_b32', v(t), 1, v(q)); a('v_lshl_add_u32', v(vb), v(t), 3, v(vb)); a('v_add_u32', v(vb), 's11', v(vb))
    K.wa = d1_addrs(a, R, n, vb)
    a('v_lshl_add_u32', v(K.rd), 'v0', 4, 's11')
    K.TW = R.alloc(24)
    return K

def pk_A3(a):
    a.label('LA3')
    K = gen_A3_regs(a)
    PIT = 2640
    R = RegAlloc(1, 100)
    t = R.alloc(); u = R.alloc(); IN = R.alloc(12); X = R.alloc(8); F = R.alloc(20)
    await_cnt(a, C_A1D, 8, t, u)
    sk2 = newlabel('La3w'); a('s_cmp_ge_u32', 's7', 36); a('s_cbranch_scc1', sk2)
    await_cnt(a, C_A2+4+3, 4, t, u)
    a.label(sk2)
    a('v_lshlrev_b32', v(t), 4, 'v0'); a('v_add_u32', v(u), L_T3W, v(t)); a('v_add_u32', v(t), L_T3H, v(t))
    for k in range(5): a('ds_read_b128', v(F+4*k, 4), v(t), mods=f'offset:{1024*k}')
    for k in range(6): a('ds_read_b128', v(K.TW+4*k, 4), v(u), mods=f'offset:{1024*k}')
    wait_lds(a, C_A2+3, 4, t, u)
    if A3ALL[0]:
        arrive(a, C_GT2, t, u); wait_lds(a, C_GT2, A3ALL[0], t, u)
    stamp(a, 11)
    a.wait(vm=0)
    a('s_setprio', 2)
    def loads():
        a('global_load_dwordx4', v(IN, 4), v(K.go), WS_, mods=SC)
        a('global_load_dwordx4', v(IN+4, 4), v(K.go2), WS_, mods=SC)
        a('global_load_dwordx4', v(IN+8, 4), v(K.go3), WS_, mods=SC)
    poll_tags(a, loads, [IN, IN+4, IN+8], t, 2, LSLEEP[0])
    stamp(a, 12)
    for it in range(3):
        if it == 2:
            skip = newlabel('La3s'); a('s_cmp_gt_u32', 's3', 4); a('s_cbranch_scc1', skip)
            a('s_cmp_lt_u32', 's3', 4); a('s_cselect_b32', 'exec_hi', -1, 0)
        for x in range(4): a('ds_write_b32', v(K.lw), v(IN+4*it+x), mods=f'offset:{1024*it + PIT*x}')
    a('s_mov_b64', 'exec', -1)
    a.label(skip)
    subbar(a, C_A3, 8, t, u)
    stamp(a, 13)
    Z = IN; A1 = R.alloc(24); PK = Z; Y = R.alloc(20); P0 = R.alloc(4)
    a('ds_read_b128', v(Z, 4), v(K.ea1))
    a('ds_read_b128', v(Z+4, 4), v(K.ea0)); a('ds_read_b128', v(Z+8, 4), v(K.ea0), mods='offset:1024')
    MF = 'v_mfma_f32_16x16x32_bf16'
    for k5 in range(3):
        a(MF, v(A1+8*k5, 4), v(Z+4*k5, 4), v(K.Mre, 4), 0); a(MF, v(A1+8*k5+4, 4), v(Z+4*k5, 4), v(K.Mim, 4), 0)
    for k5 in range(3):
        for r in range(4):
            re, im, c, s_ = A1+8*k5+r, A1+8*k5+4+r, K.TW+8*k5+r, K.TW+8*k5+4+r
            a('v_mul_f32', v(X+r), v(re), v(c)); a('v_mul_f32', v(X+4+r), v(im), v(c))
            a('v_fma_f32', v(X+r), '-' + v(im), v(s_), v(X+r)); a('v_fmac_f32', v(X+4+r), v(re), v(s_))
            if r & 1:
                a('v_cvt_pk_bf16_f32', v(PK+4*k5+(r >> 1)), v(X+r-1), v(X+r))
                a('v_cvt_pk_bf16_f32', v(PK+4*k5+2+(r >> 1)), v(X+4+r-1), v(X+4+r))
        if k5 == 0: a(MF, v(P0, 4), v(PK, 4), v(F, 4), 0)
        else:
            for e in range(5):
                a(MF, v(Y+4*e, 4), v(PK+4*k5, 4), v(F+4*((e*k5) % 5), 4), v(P0, 4) if k5 == 1 else v(Y+4*e, 4))
    for e in range(5):
        a('v_cvt_pk_bf16_f32', v(A1+2*e), v(Y+4*e), v(Y+4*e+1)); a('v_cvt_pk_bf16_f32', v(A1+2*e+1), v(Y+4*e+2), v(Y+4*e+3))
        a('ds_write_b64', v(K.wa[e]), v(A1+2*e, 2))
    for k in range(3): a('ds_read_b128', v(Z+4*k, 4), v(K.rd), mods=f'offset:{1024*k}')
    a('global_store_dwordx4', v(K.vo[0]), v(Z, 4), OUT_, mods=SC)
    a('s_mov_b32', 'exec_lo', 0xff00ffff)
    a('global_store_dwordx4', v(K.vo[1]), v(Z+4, 4), OUT_, mods='offset:1024 sc1')
    a('s_mov_b32', 'exec_lo', -1); a('s_mov_b32', 'exec_hi', 0xff)
    a('global_store_dwordx4', v(K.vo[2]), v(Z+8, 4), OUT_, mods='offset:2048 sc1')
    stamp(a, 14)
    ske = newlabel('Lep')
    a('s_mov_b64', 'exec', 1)
    a('s_or_b32', 's8', 's2', 's3'); a('s_cmp_lg_u32', 's8', 0); a('s_cbranch_scc1', ske)
    a('v_mov_b32', v(t), WS_EP); a('v_mov_b32', v(u), 's52')
    a('global_store_dword', v(t), v(u), WS_, mods=SC)
    a.label(ske)
    a('s_mov_b64', 'exec', -1)

def pk_B1(a):
    a.label('LB1')
    a('s_setprio', 2)
    R = RegAlloc(1, 160)
    t = R.alloc(); u = R.alloc()
    lb, uo, pr, od = b13_lane(a, R, WS_U)
    CF = R.alloc(4); C = R.alloc(8)
    a('s_mul_i32', 's8', 's4', 640); a('v_lshl_add_u32', v(t), v(pr), 4, 's8')
    a('global_load_dwordx4', v(CF, 4), v(t), SK_)
    msk = R.alloc(); a('v_mov_b32', v(msk), 0xffff0000)
    epoch_ready(a)
    stamp(a, 2)
    for j in range(4):
        for ch in range(2):
            src = CF + 2*ch + (j >> 1)
            if j & 1: a('v_and_b32', v(C+2*j+ch), v(msk), v(src))
            else: a('v_lshlrev_b32', v(C+2*j+ch), 16, v(src))
    subbar(a, C_B1, 10, t, u, vm=True)
    stamp(a, 3)
    Kd = R.alloc(12); Vd = R.alloc(8); Kf = R.alloc(22); T = R.alloc(4); O = R.alloc(8); res = R.alloc(4); uo2 = R.alloc()
    for i in range(11): a('ds_read_b32', v(Kd+i), v(lb), mods=f'offset:{(800 + 160*i if i < 3 else 1296 + 160*(i-3))}')
    for i in range(8): a('ds_read_b32', v(Vd+i), v(lb), mods=f'offset:{L_VI - L_KI + 160*i}')
    a('v_add_u32', v(uo2), 4096, v(uo))
    def unp(i):
        a('v_lshlrev_b32', v(Kf+2*i), 16, v(Kd+i)); a('v_and_b32', v(Kf+2*i+1), v(msk), v(Kd+i))
    for i in range(3): unp(i)
    for i in range(8):
        unp(i+3)
        for ch in range(2):
            acc = T + ch; dst = res + 2*(i & 1) + ch
            a('v_mul_f32', v(acc), v(Kf+2*i+ch), v(C+6+ch))
            for j in (2, 1, 0): a('v_fmac_f32', v(acc), v(Kf+2*(i+3-j)+ch), v(C+2*j+ch))
            if ch: a('v_and_b32', v(T+2+ch), v(msk), v(Vd+i))
            else: a('v_lshlrev_b32', v(T+2+ch), 16, v(Vd+i))
            a('v_mul_f32', v(dst), v(acc), v(T+2+ch))
        if i & 1:
            for ch in range(2):
                d = O+4*ch+3-(i >> 1)
                a('v_cvt_pk_bf16_f32', v(d), v(res+2+ch), v(res+ch)); tag1(a, d, 3-(i >> 1))
    stamp(a, 4)
    a('global_store_dwordx4', v(uo), v(O, 4), WS_, mods=SC)
    a('global_store_dwordx4', v(uo2), v(O+4, 4), WS_, mods=SC)
    if UH[0]: hint(a, L_CNT + 4*C_HU, 10, 's8', t, u, 's96')
    stamp(a, 5)
    a('s_setprio', 0)
    a('s_branch', 'LB2')

def pk_auxO(a):
    a.label('LauxO')
    R = RegAlloc(1, 120); t = R.alloc(); u = R.alloc(); vo = R.alloc(); vh = R.alloc(); vh2 = R.alloc(); wa = R.alloc(); wh = R.alloc()
    T = R.alloc(12); D = R.alloc(54)
    a('s_sub_u32', 's62', 's3', 10); a('s_lshl_b32', 's62', 's62', 11)
    a('v_lshlrev_b32', v(t), 4, 'v0'); a('v_add_u32', v(vo), 's62', v(t)); a('v_subrev_u32', v(vh), 128, v(t)); a('v_subrev_u32', v(vh2), 112, v(t))
    a('v_add_u32', v(wh), L_H, v(t)); a('v_add_u32', v(wa), 's62', v(wh))
    if HGATE[0]: await_cnt(a, C_B1, HGATE[0], t, u)
    a('v_lshlrev_b32', v(t), 4, 'v0')
    for lc in range(3):
        h_srd(a, lc)
        for b in range(2):
            a('buffer_load_dwordx4', v(D+18*lc+6*b, 4), v(vo), 's[44:47]', 0, mods=f'offen offset:{1024*b}')
            a('buffer_load_dwordx2', v(D+18*lc+6*b+4, 2), v(vo), 's[44:47]', 0, mods=f'offen offset:{1024*b+16}')
        h_load(a, D+18*lc+12, vh, vh2, 0)
    if QPF[0]:
        a('s_lshl_b32', 's8', 's6', 1); a('s_add_u32', 's8', 's8', 's3'); a('s_sub_u32', 's8', 's8', 10); a('s_mul_i32', 's8', 's8', 64*1280)
        a('s_mul_i32', 's14', 's4', 160); a('s_add_u32', 's8', 's8', 's14')
        a('v_mul_u32_u24', v(u), 1280, 'v0'); a('v_add_u32', v(u), 's8', v(u))
        a('global_load_dword', 'v118', v(u), Q_); a('global_load_dword', 'v119', v(u), Q_, mods='offset:156')
    epoch_ready(a)
    for k in range(4): a('v_mov_b32', v(T+k), 0)
    for lc in range(3): u_pad(a, lc, T, t)
    for lc in range(3):
        for b in range(2): h_expand(a, D+18*lc+6*b, T, wa, lc*HSZ + 128 + 1024*b)
        a('s_mov_b64', 'exec', 0xff)
        h_expand(a, D+18*lc+12, T, wh, lc*HSZ)
        a('s_mov_b64', 'exec', -1)
    arrive(a, C_H, t, u)
    stamp(a, 6)
    a('s_branch', 'LB2')

def pk_B3(a):
    a.label('LB3')
    a('s_cmp_ge_u32', 's3', 10); a('s_cbranch_scc1', 'Lfin')
    R = RegAlloc(1, 160)
    t = R.alloc(); u = R.alloc()
    lb, uo, pr, od = b13_lane(a, R, WS_U)
    uo2 = R.alloc(); a('v_add_u32', v(uo2), 4096, v(uo))
    Z = R.alloc(8); oo = R.alloc(); rd = R.alloc(); msk = R.alloc(); a('v_mov_b32', v(msk), 0xffff0000)
    a('v_mul_u32_u24', v(t), 26, 'v0'); a('v_lshrrev_b32', v(t), 8, v(t))
    a('v_mul_u32_u24', v(oo), 2560 - 160, v(t)); a('v_lshl_add_u32', v(oo), 'v0', 4, v(oo))
    a('s_lshl_b32', 's8', 's6', 3); a('s_add_u32', 's8', 's8', 's3'); a('s_mul_i32', 's8', 's8', 16*2560)
    a('s_mul_i32', 's9', 's4', 160); a('s_add_u32', 's8', 's8', 's9'); a('s_add_u32', 's8', 's8', 1280); a('v_add_u32', v(oo), 's8', v(oo))
    a('s_mul_i32', 's8', 's3', 2*1296); a('s_add_u32', 's8', 's8', L_VI); a('v_lshl_add_u32', v(rd), 'v0', 4, 's8')
    await_cnt(a, C_QL, 8, t, u)
    Qd = R.alloc(8); Qf = R.alloc(16); T = R.alloc(4); O = R.alloc(16)
    for i in range(8): a('ds_read_b32', v(Qd+i), v(lb), mods=f'offset:{L_VI - L_KI + 160*i}')
    for i in range(8):
        a('v_lshlrev_b32', v(Qf+2*i), 16, v(Qd+i)); a('v_and_b32', v(Qf+2*i+1), v(msk), v(Qd+i))
    def loads():
        a('global_load_dwordx4', v(Z, 4), v(uo), WS_, mods=SC); a('global_load_dwordx4', v(Z+4, 4), v(uo2), WS_, mods=SC)
    wait_lds(a, C_HZ, 6, t, u)
    stamp(a, 11)
    a.wait(vm=0)
    a('s_setprio', 2)
    poll_tags(a, loads, [Z, Z+4], t, 2, LSLEEP[0])
    stamp(a, 12)
    for i in range(8):
        for ch in range(2):
            src = Z + 4*ch + 3 - (i >> 1)
            if i & 1: a('v_lshlrev_b32', v(T+ch), 16, v(src))
            else: a('v_and_b32', v(T+ch), v(msk), v(src))
            a('v_mul_f32', v(T+ch), v(T+ch), v(Qf+2*i+ch))
        a('v_cvt_pk_bf16_f32', v(Qd+i), v(T), v(T+1))
        a('ds_write_b32', v(lb), v(Qd+i), mods=f'offset:{L_VI - L_KI + 160*i}')
    subbar(a, C_Q, 10, t, u)
    stamp(a, 13)
    a('s_cmp_ge_u32', 's3', 8); a('s_cbranch_scc1', 'Lfin')
    a('s_mov_b32', 'exec_hi', 0xff)
    for k in range(4): a('ds_read_b128', v(O+4*k, 4), v(rd), mods=f'offset:{(k >> 1)*1296 + (k & 1)*640}')
    for k in range(4):
        a('global_store_dwordx4', v(oo), v(O+4*k, 4), OUT_, mods=SC)
        if k < 3: a('v_add_u32', v(oo), 4*2560, v(oo))
    stamp(a, 14)
    a('s_mov_b64', 'exec', -1)

def pk_B2(a):
    a.label('LB2')
    R = RegAlloc(1, 128)
    t = R.alloc(); u = R.alloc(); lw = R.alloc(); U = R.alloc(8); go = R.alloc(); fa = R.alloc(); Dv = R.alloc(); msk = R.alloc()
    n = R.alloc(); q = R.alloc(); aa = R.alloc(); ba = R.alloc(); ba2 = R.alloc(); ia = R.alloc(); ra = R.alloc()
    a('s_lshr_b32', 's9', 's3', 2); a('s_and_b32', 's10', 's3', 3)
    a('s_mul_i32', 's15', 's9', USZ); a('s_add_u32', 's15', 's15', L_U)
    a('v_lshrrev_b32', v(t), 3, 'v0'); a('v_lshlrev_b32', v(t), 4, v(t)); a('v_lshl_add_u32', v(lw), 'v0', 4, v(t))
    a('s_mul_i32', 's8', 's10', 8*144); a('s_add_u32', 's8', 's8', 's15'); a('v_add_u32', v(lw), 's8', v(lw))
    a('s_add_u32', 's13', 's53', 's9')
    a('s_lshl_b32', 's8', 's13', 12); a('s_lshl_b32', 's12', 's10', 10); a('s_add_u32', 's8', 's8', 's12'); a('s_add_u32', 's8', 's8', WS_U)
    a('v_lshl_add_u32', v(go), 'v0', 4, 's8')
    a('s_lshl_b32', 's60', 's9', 2); a('s_add_u32', 's60', 's60', L_CNT + 4*C_U)
    a('s_sub_u32', 's11', 's10', 's9'); a('s_and_b32', 's11', 's11', 3); a('s_lshl2_add_u32', 's99', 's9', 's11'); a('s_or_b32', 's99', 's99', 16)
    a('s_cmp_lt_u32', 's7', 36); a('s_cselect_b32', 's63', 1, 0); a('s_cmp_eq_u32', 's5', 0); a('s_cselect_b32', 's63', 's63', 0)
    lj_ = newlabel('Lb2'); a('s_cmp_eq_u32', 's63', 0); a('s_cbranch_scc1', lj_)
    J = lambda l: sum((16 | lc << 2 | ro) << (5*i) for i, (lc, ro) in enumerate(l))
    lists = [J([(0, 0)]), J([(1, 0)]), J([(0, 3), (1, 3)]), J([(0, 1), (1, 1)])] if LATE2[0] else [J([(0, 0)]), J([(1, 0)]), J([(0, 3), (1, 3), (0, 2)]), J([(0, 1), (1, 1), (1, 2)])]
    a('s_mov_b32', 's56', lists[0] | lists[1] << 16); a('s_mov_b32', 's57', lists[2] | lists[3] << 16)
    a('s_lshl_b32', 's8', 's10', 4); a('s_lshr_b64', 's[56:57]', 's[56:57]', 's8'); a('s_and_b32', 's99', 's56', 0x7fff)
    a.label(lj_)
    a('s_mov_b32', 's62', 1)
    a.label('LB2p')
    a('s_bfe_u32', 's9', 's99', (2 << 16) | 2); a('s_and_b32', 's11', 's99', 3)
    a('s_add_u32', 's13', 's53', 's9')
    a('s_mul_i32', 's15', 's9', USZ); a('s_add_u32', 's15', 's15', L_U)
    a('v_and_b32', v(n), 15, 'v0'); a('v_lshrrev_b32', v(q), 4, 'v0')
    a('v_mov_b32', v(msk), 0xffff0000)
    a('v_and_b32', v(t), 1, 'v0'); a('v_mul_u32_u24', v(aa), 529*16, v(t))
    a('v_bfe_u32', v(t), 'v0', 1, 1); a('v_mul_u32_u24', v(t), 264*16, v(t)); a('v_add_u32', v(aa), v(aa), v(t))
    a('v_bfe_u32', v(t), 'v0', 2, 2); a('v_lshl_add_u32', v(aa), v(t), 5, v(aa))
    a('s_cmp_eq_u32', 's11', 0); a('s_cselect_b32', 's12', 1, 0)
    a('s_add_u32', 's14', 's12', 8); a('v_lshl_add_u32', v(aa), v(q), 's14', v(aa))
    a('s_cmp_eq_u32', 's11', 1); a('s_cselect_b32', 's14', 2048, 0)
    a('s_cmp_eq_u32', 's11', 3); a('s_cselect_b32', 's14', 1040, 's14')
    a('s_mul_i32', 's8', 's9', HSZ); a('s_add_u32', 's8', 's8', 's14'); a('s_add_u32', 's8', 's8', L_H)
    a('v_add_u32', v(aa), 's8', v(aa))
    a('s_add_u32', 's14', 's12', 1); a('v_lshlrev_b32', v(t), 's14', v(q)); a('v_sub_u32', v(t), v(t), v(n))
    a('s_lshl_b32', 's14', 's12', 4); a('s_sub_u32', 's14', 31, 's14'); a('v_add_u32', v(t), 's14', v(t))
    a('v_mul_u32_u24', v(ba), 144, v(t)); a('v_add_u32', v(ba), 's15', v(ba))
    a('s_cmp_eq_u32', 's11', 2); a('s_cselect_b32', 's14', 31, 15)
    a('v_sub_u32', v(t), 's14', v(n)); a('v_mul_u32_u24', v(ia), 144, v(t)); a('v_add_u32', v(ia), 's15', v(ia))
    a('v_lshlrev_b32', v(t), 5, v(q)); a('v_sub_u32', v(ia), v(ia), v(t))
    a('s_mul_i32', 's59', 's9', REDSZ); a('s_add_u32', 's59', 's59', L_RED); a('v_lshl_add_u32', v(ra), 'v0', 4, 's59')
    lnh = newlabel('Lb2'); a('s_cmp_lg_u32', 's11', 3); a('s_cbranch_scc1', lnh)
    a('v_and_b32', v(t), 7, 'v0'); a('v_lshlrev_b32', v(u), 1, v(q)); a('v_sub_u32', v(u), v(u), v(t)); a('v_add_u32', v(u), 31, v(u))
    a('v_mul_u32_u24', v(ba), 144, v(u)); a('v_add_u32', v(ba), 's15', v(ba))
    a('v_and_b32', v(u), 8, 'v0'); a('v_xor_b32', v(u), 8, v(u)); a('v_lshl_add_u32', v(ba), v(u), 1, v(ba)); a('v_lshl_add_u32', v(ba2), v(u), 1, v(ba))
    a('v_lshl_add_u32', v(t), v(q), 3, v(t)); a('v_lshlrev_b32', v(t), 4, v(t)); a('v_and_b32', v(u), 8, 'v0'); a('v_lshl_add_u32', v(t), v(u), 7, v(t))
    a('v_add_u32', v(ra), 's59', v(t))
    a.label(lnh)
    a('s_lshl_b32', 's8', 's13', 1); a('s_sub_u32', 's8', 's8', 's96'); a('s_lshl_b32', 's8', 's8', 3)
    a('s_lshr_b64', 's[56:57]', 's[54:55]', 's8'); a('s_lshl_b32', 's58', 's56', 16)
    a('s_cmp_gt_u32', 's3', 5); a('s_cselect_b32', 's98', 2, 1); a('s_sub_u32', 's98', 's3', 's98'); a('s_min_u32', 's98', 's98', 8)
    a('s_cmp_lg_u32', 's12', 0); a('s_cselect_b32', 's98', 8, 's98'); a('s_cmp_eq_u32', 's5', 0); a('s_cselect_b32', 's98', 8, 's98')
    ACC = R.alloc(16); NW = 6; RA = R.alloc(4*NW + 2); RA2 = R.alloc(4*NW + 2); NBR = 6; RB = R.alloc(4*NBR)
    for x in range(16): a('v_mov_b32', v(ACC+x), 0)
    fi = R.alloc(); sa = R.alloc(); sa2 = R.alloc(); sr = R.alloc(); zo = R.alloc(); ca = R.alloc()
    a('s_lshl_b32', 's14', 's9', 3); a('s_add_u32', 's14', 's14', L_CNT + 4*C_RED); a('v_mov_b32', v(ca), 's14')
    a('v_and_b32', v(u), 7, 'v0'); a('v_lshl_add_u32', v(u), v(q), 3, v(u)); a('s_lshl_b32', 's8', 's12', 11); a('s_add_u32', 's8', 's8', 's59'); a('s_add_u32', 's8', 's8', 4096)
    a('v_lshl_add_u32', v(fi), v(u), 4, 's8')
    a('v_sub_u32', v(t), 15, v(n)); a('v_lshlrev_b32', v(u), 1, v(q)); a('v_sub_u32', v(u), 6, v(u))
    a('v_xor_b32', v(u), v(t), v(u)); a('v_and_b32', v(u), 7, v(u)); a('v_lshlrev_b32', v(u), 4, v(u))
    a('v_lshl_add_u32', v(sa), v(t), 7, v(u)); a('v_add_u32', v(sa), 's8', v(sa)); a('v_xor_b32', v(sa2), 16, v(sa))
    a('v_lshrrev_b32', v(t), 3, 'v0'); a('v_xor_b32', v(u), v(t), 'v0'); a('v_and_b32', v(u), 7, v(u)); a('v_lshlrev_b32', v(u), 4, v(u))
    a('v_lshl_add_u32', v(sr), v(t), 7, v(u)); a('v_add_u32', v(sr), 's8', v(sr))
    a('s_lshl_b32', 's8', 's13', 12); a('s_lshl_b32', 's14', 's12', 11); a('s_sub_u32', 's8', 's8', 's14'); a('s_add_u32', 's8', 's8', WS_U + 2048)
    a('v_lshl_add_u32', v(zo), 'v0', 4, 's8')
    a('s_cmp_eq_u32', 's62', 0); a('s_cbranch_scc1', 'LB2go')
    stamp(a, 7)
    lo = newlabel('Lb2'); lo2 = newlabel('Lb2'); lo3 = newlabel('Lb2')
    a('s_cmp_lg_u32', 's5', 0); a('s_cbranch_scc1', lo3)
    wait_lds(a, EG[0], 4, t, u)
    a('s_branch', lo2)
    a.label(lo3)
    if UH[0]:
        a('s_cmp_lg_u32', 's3', 4); a('s_cbranch_scc1', lo)
        a('v_lshl_add_u32', v(t), 's4', 4, v(n)); a('v_lshlrev_b32', v(fa), 7, v(t)); a('v_add_u32', v(fa), H_U, v(fa))
        poll_hints(a, fa, t, u, 's96', 16)
        arrive(a, C_GU, t, u)
        a('s_branch', lo2)
        a.label(lo)
        wait_lds(a, C_GU, 1, t, u)
    else:
        lx = newlabel('Lb2'); a('s_cmp_ge_u32', 's3', 10); a('s_cbranch_scc1', lx)
        drained(a, C_B1D, t, u)
        stamp(a, 6)
        a.label(lx)
        wait_lds(a, C_B1D, 10, t, u)
        if HW[0]: wait_lds(a, C_H, 2, t, u)
    a.label(lo2)
    stamp(a, 2)
    a('s_lshl_b32', 's8', 's63', 12); a('v_subrev_u32', v(fa), 's8', v(go))
    def ul():
        a('global_load_dwordx4', v(U, 4), v(go), WS_, mods=SC)
        if TWOPASS[0]: a('global_load_dwordx4', v(U+4, 4), v(fa), WS_, mods=SC)
    poll_tags(a, ul, [U, U+4] if TWOPASS[0] else [U], t, 1, XSLEEP[0])
    sk2 = newlabel('Lb2'); a('s_cmp_eq_u32', 's63', 0); a('s_cbranch_scc1', sk2)
    await_cnt(a, C_H0, 4, t, u)
    a('v_subrev_u32', v(t), USZ, v(lw))
    a('ds_write_b128', v(t), v(U+4, 4))
    a.label(sk2)
    sko = newlabel('Lb2'); a('s_cmp_eq_u32', 's5', 0); a('s_cbranch_scc1', sko)
    await_cnt(a, C_H, 2, t, u)
    a.label(sko)
    a('ds_write_b128', v(lw), v(U, 4))
    stamp(a, 8)
    subbar_s(a, 's60', 4, t, u, vm=True)
    if GATE[0]:
        lg = newlabel('Lb2'); a('s_cmp_lg_u32', 's5', 0); a('s_cbranch_scc1', lg)
        a('v_mov_b32', v(t), L_CNT + 4*(C_A2+2))
        lq = newlabel('Lb2'); a.label(lq)
        a('s_sleep', 2); a('ds_read_b32', v(u), v(t)); a('v_readfirstlane_b32', 's40', v(u)); a('s_cmp_lt_u32', 's40', 4); a('s_cbranch_scc1', lq)
        a('s_cmp_ge_u32', 's7', 36); a('s_cbranch_scc1', lg)
        lq = newlabel('Lb2'); a.label(lq)
        a('s_sleep', 2); a('ds_read_b32', v(u), v(t), mods='offset:16'); a('v_readfirstlane_b32', 's40', v(u)); a('s_cmp_lt_u32', 's40', 4); a('s_cbranch_scc1', lq)
        a.label(lg)
    a.label('LB2go')
    MF = 'v_mfma_f32_16x16x32_bf16'
    PD = 3
    def rdA(ring, w, off, last):
        if w > last: return
        a('ds_read_b128', v(ring + 4*(w % NW), 4), v(aa), mods=f'offset:{off + 16*w}')
        if w and w % NW == 0: a('ds_read_b64', v(ring+4*NW, 2), v(aa), mods=f'offset:{off + 16*w}')
    def rdB(tau, last, hi=False):
        if tau > last: return
        a('ds_read_b128', v(RB + 4*(tau % NBR), 4), v(ba2 if (hi and tau % 8 == 7) else ba), mods=f'offset:{144*(tau >> 3) + 16*(tau & 7)}')
    a('s_cmp_eq_u32', 's11', 3); a('s_cbranch_scc1', 'LB2hi')
    rdB(0, 32); rdA(RA, 1, 0, 33)
    for k in range(PD): rdB(k+1, 32); rdA(RA, k+2, 0, 33)
    lp_ = newlabel('Lb2'); a('s_cmp_eq_u32', 's11', 0); a('s_cbranch_scc1', lp_)
    a('s_setprio', 1)
    a('ds_read_b128', v(U, 4), v(ia), mods='offset:96'); a('ds_read_b128', v(U+4, 4), v(ia), mods='offset:112')
    for x in range(16):
        e = 15 - x
        if e & 1: a('v_and_b32', v(ACC+x), v(msk), v(U + (e >> 1)))
        else: a('v_lshlrev_b32', v(ACC+x), 16, v(U + (e >> 1)))
        a('v_mul_f32', v(ACC+x), 's58', v(ACC+x))
    pend = a.snap[lp_][0]
    a.label(lp_)
    a.lg = list(pend[1])
    stamp(a, 9)
    for tau in range(32):
        if tau == 16:
            a.raw('    s_cmp_eq_u32 s12, 0'); a.raw('    s_cbranch_scc1 LB2r'); a.bytes += 8
            a.snap.setdefault('LB2r', []).append((list(a.vm), list(a.lg)))
        d0 = (4*(tau+1)) % (4*NW)
        for k, (acc, dd, bt) in enumerate(((2, d0, tau), (3, d0+2, tau), (0, d0, tau+1), (1, d0+2, tau+1))):
            a(MF, v(ACC+4*acc, 4), v(RA+dd, 4), v(RB + 4*(bt % NBR), 4), v(ACC+4*acc, 4))
            if k == 1: rdB(tau + PD + 1, 32)
            if k == 3: rdA(RA, tau + PD + 2, 0, 33)
    a.label('LB2r'); a._nop(8)
    stamp(a, 10)
    lf = newlabel('Lb2')
    a('v_mov_b32', v(u), 1)
    a('s_cmp_lg_u32', 's11', 1); a('s_cbranch_scc1', lf)
    for tt in range(4): a('ds_write_b128', v(ra), v(ACC+4*tt, 4), mods=f'offset:{1024*tt}')
    a.wait(lgkm=0); lds_cnt_add(a, ca, u)
    a('s_branch', 'LB2end')
    a.label('LB2hi')
    a('s_setprio', 1)
    rdA(RA, 0, 0, 16); rdA(RA2, 0, 2048, 16)
    for k in range(PD): rdB(k, 15, True); rdA(RA, k+1, 0, 16); rdA(RA2, k+1, 2048, 16)
    stamp(a, 9)
    for tau in range(16):
        d0 = (4*tau) % (4*NW)
        for k, (acc, ring, dd) in enumerate(((0, RA, d0), (1, RA, d0+2), (2, RA2, d0), (3, RA2, d0+2))):
            a(MF, v(ACC+4*acc, 4), v(ring+dd, 4), v(RB + 4*(tau % NBR), 4), 0 if tau == 0 else v(ACC+4*acc, 4))
            if k == 0: rdB(tau + PD, 15, True)
            if k == 1: rdA(RA, tau + PD + 1, 0, 16)
            if k == 3: rdA(RA2, tau + PD + 1, 2048, 16)
    stamp(a, 10)
    a('v_mov_b32', v(u), 1)
    for acc in range(4): a('ds_write_b128', v(ra), v(ACC+4*acc, 4), mods=f'offset:{4096 + 2048*(acc >> 1) + 512*(acc & 1)}')
    a.wait(lgkm=0)
    a('s_mov_b64', 'exec', 1); a('ds_add_u32', v(ca), v(u)); a('ds_add_u32', v(ca), v(u), mods='offset:4'); a('s_mov_b64', 'exec', -1)
    a('s_branch', 'LB2end')
    a.label(lf)
    a('s_lshl_b32', 's8', 's11', 1); a('v_add_u32', v(t), 's8', v(ca)); a('s_add_u32', 's14', 's12', 1)
    lp = newlabel('Lb2'); a.label(lp)
    a('ds_read_b32', v(u), v(t)); a('v_readfirstlane_b32', 's40', v(u)); a('s_cmp_lt_u32', 's40', 's14'); a('s_cbranch_scc1', lp)
    for tt in range(4): a('ds_read_b128', v(RA+4*tt, 4), v(fi), mods=f'offset:{512*tt}')
    ls = newlabel('Lb2'); a('s_cmp_eq_u32', 's12', 0); a('s_cbranch_scc1', ls)
    for tt in range(4): a('ds_read_b128', v(RB+4*tt, 4), v(ra), mods=f'offset:{1024*tt}')
    for x in range(16): a('v_add_f32', v(ACC+x), v(ACC+x), v(RB+x))
    a.label(ls)
    a('s_mov_b32', 'exec_lo', 0xff00ff00); a('s_mov_b32', 'exec_hi', 0xff00ff00)
    for x in range(16): a('v_add_f32', v(ACC+x), v(ACC+x), v(RA+x))
    a('s_mov_b64', 'exec', -1)
    for jj in range(8):
        a('v_cvt_pk_bf16_f32', v(U+jj), v(ACC+15-2*jj), v(ACC+14-2*jj)); tag2(a, U+jj, jj)
        if jj == 3: a('ds_write_b128', v(sa), v(U, 4))
    a('ds_write_b128', v(sa2), v(U+4, 4))
    a('ds_read_b128', v(RB, 4), v(sr)); a('ds_read_b128', v(RB+4, 4), v(sr), mods='offset:1024')
    a('global_store_dwordx4', v(zo), v(RB, 4), WS_, mods=SC)
    a('global_store_dwordx4', v(zo), v(RB+4, 4), WS_, mods=f'offset:1024 {SC}')
    a('s_cmp_eq_u32', 's5', 0); a('s_cbranch_scc1', 'LB2end')
    arrive(a, C_HZ, t, u, vm=ZDRAIN[0])
    a.label('LB2end')
    a('s_setprio', 0)
    a('s_mov_b32', 's62', 0); a.wait(lgkm=0)
    a('s_lshr_b32', 's99', 's99', 5); a('s_cbranch_scc1', 'LB2p')
    a('s_cmp_eq_u32', 's5', 0); a('s_cbranch_scc1', 'LA3')
    a('s_cmp_eq_u32', 's98', 8); a('s_cbranch_scc1', 'LB3')
    srd(a, 44, 's22', 's23', 2048*1280)
    a('v_mul_u32_u24', v(t), 26, 'v0'); a('v_lshrrev_b32', v(t), 8, v(t)); a('v_mul_u32_u24', v(u), 1280 - 160, v(t)); a('v_lshl_add_u32', v(u), 'v0', 4, v(u))
    a('s_lshl_b32', 's8', 's6', 3); a('s_add_u32', 's8', 's8', 's98'); a('s_mul_i32', 's8', 's8', 16*1280); a('s_mul_i32', 's14', 's4', 160); a('s_add_u32', 's8', 's8', 's14')
    a('s_mul_i32', 's14', 's98', 2*1296); a('s_mov_b32', 'exec_hi', 0xff)
    for k in range(4):
        a('s_add_u32', 'm0', 's14', L_VI + (k >> 1)*1296 + (k & 1)*640)
        a('buffer_load_dwordx4', v(u), 's[44:47]', 's8', mods='offen lds')
        if k < 3: a('s_addk_i32', 's8', 4*1280)
    a('s_mov_b64', 'exec', -1)
    arrive(a, C_QL, t, u, vm=True)
    a('s_branch', 'LB3')

class A2R: pass
def a2_regs():
    K = A2R(); R = RegAlloc(1, 168)
    K.t = R.alloc(); K.u = R.alloc(); K.go = R.alloc(); K.lw = R.alloc(); K.lr0 = R.alloc(); K.lr1 = R.alloc(); K.msk = R.alloc()
    K.X = R.alloc(8)
    K.C = R.alloc(8); K.Sm = R.alloc(8); K.N = R.alloc(8); K.TC = R.alloc(16); K.TS = R.alloc(16)
    K.Z = R.alloc(16); K.Wp = R.alloc(16); K.B0 = R.alloc(32); K.B1 = R.alloc(32)
    K.fa, K.fw, K.o, K.h, K.of, K.hf, K.t2 = [K.Wp + k for k in range(7)]
    return K

def A2_consts(a, K):
    t, u, go, X = K.t, K.u, K.go, K.X
    a('v_lshrrev_b32', v(t), 3, 'v0'); a('v_lshl_add_u32', v(t), 's10', 3, v(t))
    a('s_mov_b32', 's8', TBLK); a('v_mul_lo_u32', v(go), v(t), 's8')
    a('v_and_b32', v(u), 7, 'v0'); a('v_lshl_add_u32', v(go), v(u), 4, v(go))
    a('s_lshl_b32', 's8', 's9', 7); a('v_add_u32', v(go), 's8', v(go))
    def swz(dst, line, piece):
        a('v_lshrrev_b32', v(dst), 1, v(line)); a('v_and_b32', v(K.t2), 1, v(line)); a('v_xor_b32', v(dst), v(dst), v(K.t2))
        a('v_xor_b32', v(dst), piece, v(dst)); a('v_and_b32', v(dst), 7, v(dst)); a('v_lshlrev_b32', v(dst), 4, v(dst))
        a('v_lshl_add_u32', v(dst), v(line), 7, v(dst)); a('v_add_u32', v(dst), 's62', v(dst))
    swz(K.lw, t, v(u))
    a('s_sub_u32', 's8', 's9', 128); a('s_mul_i32', 's8', 's8', 57); a('s_lshr_b32', 's8', 's8', 9)
    a('s_bfe_u32', 's11', 's9', (2 << 16) | 4); a('s_cmp_lt_u32', 's9', 128); a('s_cselect_b32', 's8', 's11', 's8')
    a('s_and_b32', 's8', 's8', 1); a('s_cmp_eq_u32', 's8', 0)
    a('s_cselect_b32', 's60', 0, 0x80008000); a('s_lshl_b32', 's11', 's8', 31); a('s_or_b32', 's11', 's11', fl(1/32))
    o, h, of, hf = K.o, K.h, K.of, K.hf
    a('v_bfe_u32', v(o), 'v0', 3, 1); a('v_and_b32', v(t), 3, 'v0'); a('v_lshl_add_u32', v(o), v(o), 2, v(t))
    a('v_bfe_u32', v(t), 'v0', 4, 1); a('v_lshl_add_u32', v(o), v(o), 1, v(t))
    a('v_bfe_u32', v(t), 'v0', 2, 1); a('v_lshl_add_u32', v(o), v(o), 1, v(t))
    a('v_lshrrev_b32', v(h), 5, 'v0')
    a('v_lshl_add_u32', v(t), v(h), 5, v(o))
    a('s_lshl_b32', 's8', 's10', 1)
    swz(K.lr0, t, 's8'); a('v_xor_b32', v(K.lr1), 16, v(K.lr0))
    a('v_cvt_f32_u32', v(of), v(o)); a('v_mul_f32', v(of), 's11', v(of))
    a('v_cvt_f32_u32', v(hf), v(h)); a('v_mul_f32', v(hf), v(hf), v(of))
    for kap in range(2):
        for jj in range(4):
            for e in range(2):
                idx = 2*kap + 4*(2*jj + e)
                if idx: a('v_fmamk_f32', v(X+e), v(of), fl(float(idx)), v(hf)); src = X+e
                else: src = hf
                sincos(a, src, X+2+e, X+4+e)
                vv = 8*kap + 2*jj + e
                a('v_mul_f32', v(X+6+e), fl(1/32), v(src))
                sincos(a, X+6+e, K.TC+vv, K.TS+vv)
            a('v_cvt_pk_bf16_f32', v(K.C+4*kap+jj), v(X+2), v(X+3))
            a('v_cvt_pk_bf16_f32', v(K.Sm+4*kap+jj), v(X+4), v(X+5))
            a('v_xor_b32', v(K.N+4*kap+jj), 0x80008000, v(K.Sm+4*kap+jj))
    a('v_mov_b32', v(K.msk), 0xffff0000)

def pk_auxE(a):
    K = a2_regs()
    a.label('LauxE')
    R = RegAlloc(K.B0, 164)
    WB = 2048*321*2
    def hpf():
        lh_ = newlabel('Le'); a('s_cmp_ge_u32', 's3', 10); a('s_cbranch_scc1', lh_)
        a('s_add_u32', 's8', 's53', 2); a('s_lshl_b32', 's8', 's8', 12); a('s_sub_u32', 's9', 's3', 8); a('s_mul_i32', 's9', 's9', 6144); a('s_add_u32', 's8', 's8', 's9')
        a('v_min_u32', 'v1', 47, 'v0'); a('v_lshl_add_u32', 'v1', 'v1', 7, 's8')
        a('global_load_dword', 'v86', 'v1', H_)
        a.label(lh_)
    def wpf():
        a('v_lshrrev_b32', 'v1', 4, 'v0'); a('v_and_b32', 'v2', 15, 'v0'); a('v_lshlrev_b32', 'v2', 7, 'v2'); a('v_min_u32', 'v2', 1280, 'v2')
        a('v_and_b32', 'v1', 1, 'v1'); a('v_mul_u32_u24', 'v1', 256*642, 'v1'); a('v_add_u32', 'v1', 'v1', 'v2')
        a('s_sub_u32', 's9', 's3', 8); a('s_mul_i32', 's9', 's9', 2*256*642); a('s_mul_i32', 's8', 's7', 1284); a('s_add_u32', 's8', 's8', 's9')
        a('v_add_u32', 'v1', 's8', 'v1')
        a('s_mov_b32', 'exec_hi', 0)
        a('global_load_dword', 'v84', 'v1', WR_); a('global_load_dword', 'v85', 'v1', WI_)
        a('s_mov_b64', 'exec', -1)
    if WPF[0] == 1: wpf()
    if HPF[0] == 1: hpf()
    bar0(a)
    if WPF[0] == 2: wpf()
    if WARM[0]:
        lw_ = newlabel('Le'); a('s_cmp_lg_u32', 's3', 11); a('s_cbranch_scc1', lw_)
        warm(a, False)
        a.label(lw_)
    a('s_sub_u32', 's10', 's3', 8)
    vo = R.alloc(); t = K.t; u = K.u
    a('v_lshlrev_b32', v(vo), 4, 'v0')
    def w_dma():
        a('s_mul_i32', 's14', 's7', 1284)
        a('s_mul_i32', 's11', 's10', 2*256*642); a('s_add_u32', 's14', 's14', 's11')
        a('s_mul_i32', 's11', 's10', 2*1296); a('s_add_u32', 's11', 's11', L_A2 + 1296)
        srd(a, 44, 's18', 's19', WB); srd(a, 48, 's20', 's21', WB)
        def slot(soff, m0v_s, add):
            for pl, sd in enumerate((44, 48)):
                a('s_add_u32', 'm0', m0v_s, add + pl*11664)
                a('buffer_load_dwordx4', v(vo), s(sd, 4), soff, mods='offen lds')
                a('s_mov_b64', 'exec', 0x1ffff)
                a('buffer_load_dwordx4', v(vo), s(sd, 4), soff, mods='offen offset:1024 lds')
                a('s_mov_b64', 'exec', -1)
        slot('s14', 's11', 0)
        a('s_add_u32', 's14', 's14', 256*642)
        slot('s14', 's11', 1296)
        sk = newlabel('Lw1s')
        a('s_cmp_lg_u32', 's7', 127); a('s_cbranch_scc1', sk)
        a('s_cmp_lg_u32', 's10', 3); a('s_cbranch_scc1', sk)
        a('s_mov_b32', 's11', L_A2)
        slot('s14', 's11', 0)
        a.label(sk)
    k0 = R.alloc(); vc = R.alloc(); go = R.alloc(); go2 = R.alloc()
    a('v_lshrrev_b32', v(t), 3, 'v0')
    a('v_mul_u32_u24', v(k0), 65, v(t))
    a('v_mul_u32_u24', v(u), 205, v(k0)); a('v_lshrrev_b32', v(u), 14, v(u))
    a('v_mul_u32_u24', v(u), 80, v(u)); a('v_sub_u32', v(k0), v(k0), v(u))
    a('s_and_b32', 's12', 's10', 1); a('s_lshr_b32', 's13', 's10', 1)
    a('s_cmp_eq_u32', 's12', 0)
    a('s_cselect_b32', 's14', 2, -2); a('s_cselect_b32', 's15', 0, 640)
    a('s_mul_i32', 's8', 's13', 642); a('s_add_u32', 's15', 's15', 's8'); a('s_add_u32', 's15', 's15', L_A2 + 1296)
    a('s_cmp_eq_u32', 's10', 3); a('s_cselect_b32', 's8', 1, 0); a('s_add_u32', 's8', 's8', 's7')
    a('s_cmp_eq_u32', 's8', 128); a('s_cselect_b32', 's41', 1296, 0); a('s_sub_u32', 's15', 's15', 's41')
    a('s_and_b32', 's8', 's8', 127)
    a('v_bfe_u32', v(t), 'v0', 1, 2); a('v_mul_u32_u24', v(t), 80, v(t))
    a('v_and_b32', v(u), 1, 'v0'); a('v_mul_u32_u24', v(u), 11664, v(u)); a('v_add_u32', v(u), 's15', v(u))
    a('v_mad_i32_i24', v(vc), v(t), 's14', v(u))
    a('s_mul_i32', 's8', 's8', TBLK); a('s_add_u32', 's8', 's8', WS_W)
    a('s_lshl_b32', 's41', 's10', 11); a('s_add_u32', 's41', 's41', 's8')
    a('v_add_u32', v(go), 's41', v(vo))
    a('s_mul_i32', 's41', 's10', 9*128); a('s_add_u32', 's41', 's41', 's8'); a('s_add_u32', 's41', 's41', 128*128)
    a('v_add_u32', v(go2), 's41', v(vo))
    ads = [R.alloc() for _ in range(6)]
    for it, C in enumerate((16, 56, 32, 72, 0, 40)):
        if C:
            a('v_add_u32', v(t), C, v(k0)); a('v_subrev_u32', v(u), 80, v(t)); a('v_min_u32', v(t), v(t), v(u))
            a('v_mad_i32_i24', v(ads[it]), v(t), 's14', v(vc))
        else: a('v_mad_i32_i24', v(ads[it]), v(k0), 's14', v(vc))
    O = R.alloc(24); Hh = R.alloc(24)
    epoch_ready(a)
    if WGATE[0]: await_cnt(a, C_X, WGATE[0], t, u)
    if HPF[0] == 2: hpf()
    w_dma()
    a('s_mov_b32', 's9', 's7'); a('s_mov_b32', 's62', L_A2T); a('s_mov_b32', 's63', L_A2W); a('s_mov_b32', 's61', L_CNT + 4*C_A2)
    a.label('LA2c')
    A2_consts(a, K)
    wtag_regs(a, 56)
    a('s_cmp_lt_u32', 's3', 8); a('s_cbranch_scc1', 'LA2w')
    stamp(a, 2)
    a('s_setprio', 1)
    a('v_mov_b32', v(vo), 0xfffefffe)
    subbar(a, C_W1, 4, t, u, vm=True)
    stamp(a, 3)
    def comb(it):
        for k in range(4): a('v_lshl_or_b32', v(O+4*it+k), v(Hh+4*it+k), 16, v(O+4*it+k))
        for k in range(4): a('v_and_or_b32', v(O+4*it+k), v(O+4*it+k), v(vo), s(56+k))
    for it in range(6):
        for i in range(8): a('ds_read_u16', v((Hh if i & 1 else O) + 4*it + (i >> 1)), v(ads[it]), mods=f'offset:{1296*i}')
        if it: comb(it - 1)
        if it == 2:
            for k in range(2): a('global_store_dwordx4', v(go), v(O+4*k, 4), WS_, mods=f'offset:{1024*k} {SC}')
            a('v_add_u32', v(go), 8192, v(go))
        if it == 4:
            for k in range(2): a('global_store_dwordx4', v(go), v(O+8+4*k, 4), WS_, mods=f'offset:{1024*k} {SC}')
    comb(5)
    a('global_store_dwordx4', v(go2), v(O+16, 4), WS_, mods=SC)
    a('s_mov_b64', 'exec', 0xff)
    a('global_store_dwordx4', v(go2), v(O+20, 4), WS_, mods=f'offset:1024 {SC}')
    a('s_mov_b64', 'exec', -1)
    stamp(a, 4)
    arrive(a, C_W1D, t, u, vm=W1DR[0])
    stamp(a, 5)
    a.label('LA2w')
    await_cnt(a, C_A1D, 8, t, u)
    await_cnt(a, C_W1D, 4, t, u)
    a.label('LA2')
    pk_A2(a, K)

def pk_A2(a, K):
    t, u, go, lw, lr0, lr1, msk, X, Z, Wp, B0, B1 = K.t, K.u, K.go, K.lw, K.lr0, K.lr1, K.msk, K.X, K.Z, K.Wp, K.B0, K.B1
    for it in range(4):
        a('s_add_u32', s(44+2*it), 's38', 32*TBLK*it); a('s_addc_u32', s(45+2*it), 's39', 0)
    a('s_sub_u32', 's63', 's63', 's62')
    a('s_setprio', 3)
    stamp(a, 7)
    stamp(a, 11)
    ST, SW = B0, B1
    def tl():
        for it in range(4): a('global_load_dwordx4', v(ST+4*it, 4), v(go), s(44+2*it, 2), mods=SC)
    poll_tags(a, tl, [ST+4*i for i in range(4)], t, 1, XSLEEP[0])
    a('v_add_u32', v(Wp), WS_W, v(go)); a('v_add_u32', v(X+2), 's63', v(lw))
    def wl():
        for it in range(4): a('global_load_dwordx4', v(SW+4*it, 4), v(Wp), s(44+2*it, 2), mods=SC)
    stamp(a, 8)
    for it in range(4): a('ds_write_b128', v(lw), v(ST+4*it, 4), mods=f'offset:{4096*it}')
    a('v_mov_b32', v(X), 's61'); a('v_mov_b32', v(X+1), 1)
    a.wait(lgkm=0); lds_cnt_add(a, X, X+1)
    stamp(a, 6)
    wl()
    lp = newlabel('La2'); a.label(lp)
    a('ds_read_b32', v(X+1), v(X)); a('v_readfirstlane_b32', 's40', v(X+1)); a('s_cmp_lt_u32', 's40', 4); a('s_cbranch_scc1', lp)
    stamp(a, 9)
    for kap in range(2):
        for ri, ad in enumerate((lr0, lr1)): a('ds_read_b128', v(Z+8*kap+4*ri, 4), v(ad), mods=f'offset:{8192*kap}')
    MF = 'v_mfma_f32_32x32x16_bf16'
    def mm(kap, dataA, inv, d):
        dR, dI = d, d+16
        zr, zi = v(Z+8*kap, 4), v(Z+8*kap+4, 4)
        c, p, n = v(K.C+4*kap, 4), v(K.Sm+4*kap, 4), v(K.N+4*kap, 4)
        if inv: p, n = n, p
        for k, (dd, z, m) in enumerate(((dR, zr, c), (dI, zi, c), (dR, zi, p), (dI, zr, n))):
            cin = 0 if (kap == 0 and k < 2) else v(dd, 16)
            if dataA: a(MF, v(dd, 16), z, m, cin)
            else: a(MF, v(dd, 16), m, z, cin)
    mm(0, True, False, B0); mm(1, True, False, B0)
    poll_tags(a, wl, [SW+4*i for i in range(4)], t, 3, XSLEEP[0], tagsg=56, pre=True)
    for it in range(4): a('ds_write_b128', v(X+2), v(SW+4*it, 4), mods=f'offset:{4096*it}')
    stamp(a, 12)
    a('v_mov_b32', v(u), 1); a('v_mov_b32', v(t), 's61')
    a.wait(lgkm=0)
    a('s_mov_b64', 'exec', 1); a('ds_add_u32', v(t), v(u), mods='offset:4'); a('s_mov_b64', 'exec', -1)
    bufs = [B0, B1]
    for st in range(3):
        sb, db = bufs[st & 1], bufs[(st + 1) & 1]
        if st == 1:
            lp = newlabel('La2'); a.label(lp, keep=True) if False else None
            a.settle(keep_hist=True) if False else None
            hist = list(a.hist)
            a.raw(lp + ':')
            a('ds_read_b32', v(u), v(t), mods='offset:4'); a('v_readfirstlane_b32', 's40', v(u)); a('s_cmp_lt_u32', 's40', 4)
            a.raw(f'    s_cbranch_scc1 {lp}'); a.bytes += 4
            stamp(a, 14)
            a('v_add_u32', v(t), 's63', v(lr0)); a('v_add_u32', v(u), 's63', v(lr1))
            for kap in range(2):
                for ri, ad in enumerate((t, u)): a('ds_read_b128', v(Wp+8*kap+4*ri, 4), v(ad), mods=f'offset:{8192*kap}')
            a('v_mov_b32', v(X+6), 0xfffefffe)
            for i in range(16):
                if i & 4: a('v_bitop3_b32', v(Wp+i), v(Wp+i), v(X+6), 's60', mods='bitop3:0x6a')
                else: a('v_and_b32', v(Wp+i), v(X+6), v(Wp+i))
        for kap in range(2):
            for jj in range(4):
                for e in range(2):
                    vv = 8*kap + 2*jj + e
                    re, im = sb+vv, sb+16+vv
                    if st == 1:
                        c, s_ = X+4, X+5
                        for dst, pl in ((c, 0), (s_, 1)):
                            src = Wp + 8*kap + 4*pl + jj
                            if e: a('v_and_b32', v(dst), v(msk), v(src))
                            else: a('v_lshlrev_b32', v(dst), 16, v(src))
                    else: c, s_ = K.TC+vv, K.TS+vv
                    a('v_mul_f32', v(X+e), v(re), v(c)); a('v_mul_f32', v(X+2+e), v(im), v(c))
                    if st == 0:
                        a('v_fmac_f32', v(X+e), v(im), v(s_)); a('v_fma_f32', v(X+2+e), '-' + v(re), v(s_), v(X+2+e))
                    else:
                        a('v_fma_f32', v(X+e), '-' + v(im), v(s_), v(X+e)); a('v_fmac_f32', v(X+2+e), v(re), v(s_))
                a('v_cvt_pk_bf16_f32', v(Z+8*kap+jj), v(X), v(X+1))
                a('v_cvt_pk_bf16_f32', v(Z+8*kap+4+jj), v(X+2), v(X+3))
            mm(kap, st == 1, st >= 1, db)
    sb = bufs[1]
    for kap in range(2):
        for ih, ad in enumerate((lr0, lr1)):
            for x in range(4):
                vv = 8*kap + 4*ih + x
                a('v_cvt_pk_bf16_f32', v(Z+vv), v(sb+vv), v(sb+16+vv)); tag2(a, Z+vv, x)
            a('ds_write_b128', v(ad), v(Z+8*kap+4*ih, 4), mods=f'offset:{8192*kap}')
    stamp(a, 10)
    a('s_add_u32', 's8', 's61', 8)
    subbar_s(a, 's8', 4, t, u)
    for it in range(4): a('ds_read_b128', v(Wp+4*it, 4), v(lw), mods=f'offset:{4096*it}')
    for it in range(4): a('global_store_dwordx4', v(go), v(Wp+4*it, 4), s(44+2*it, 2), mods=SC)
    a('s_setprio', 0)
    stamp(a, 13)
    a('v_mov_b32', v(u), 1); a('v_mov_b32', v(t), 's61')
    if LATE2[0]:
        ll = newlabel('La2'); a('s_and_b32', 's8', 's3', 14); a('s_cmp_lg_u32', 's8', 2); a('s_cbranch_scc1', ll)
        a('s_mov_b64', 'exec', 1); a('ds_add_u32', v(t), v(u), mods='offset:12'); a('s_mov_b64', 'exec', -1)
        a('s_and_b32', 's99', 's3', 1); a('s_lshl_b32', 's99', 's99', 2); a('s_or_b32', 's99', 's99', 18); a('s_mov_b32', 's62', 0)
        await_cnt(a, C_U+1, 4, t, u)
        a('s_branch', 'LB2p')
        a.label(ll)
    a.wait(vm=0)
    a('s_mov_b64', 'exec', 1); a('ds_add_u32', v(t), v(u), mods='offset:12'); a('s_mov_b64', 'exec', -1)
    a('s_cmp_lt_u32', 's3', 8); a('s_cbranch_scc1', 'LA3')
    a('s_branch', 'Lfin')

def epoch_store(a):
    pass

def build(stamps=False):
    STAMPS[0] = stamps
    for it in range(4):
        roles._lbl[0] = 0
        a = Asm()
        a.raw(f"; @launch grid=(256,1,1) block=(768,1,1) lds={LDS_TOTAL}")
        a.raw('.amdgcn_target "amdgcn-amd-amdhsa--gfx950"\n.text')
        entry(a)
        pk_A1(a)
        pk_auxE(a)
        pk_B1(a)
        pk_auxO(a)
        pk_B2(a)
        pk_A3(a); a('s_branch', 'Lfin')
        pk_B3(a)
        a.label('Lfin'); stamp_flush(a, 0); a('s_endpgm')
        a.raw('.p2align 10')
        a.raw(kernel_desc(KNAME, 168, 102))
        hi = max(0, (a.bytes + 1023)//1024*1024 - 12288)
        if hi == CODE_HI[0]: break
        CODE_HI[0] = hi
    print('est bytes', a.bytes, 'instrs', a.nins, 'lds', LDS_TOTAL)
    return a.text()

if __name__ == '__main__':
    open('pk17.s', 'w').write(build(False))
    open('pk17st.s', 'w').write(build(True))
    WPF[0] = 0; open('pk17a.s', 'w').write(build(False))
    WPF[0] = 2; open('pk17b.s', 'w').write(build(False)); open('pk17bst.s', 'w').write(build(True))
    WPF[0] = 2; EG[0] = C_A2; open('pk17c.s', 'w').write(build(False))
    WPF[0] = 1; open('pk17d.s', 'w').write(build(False))
    for k in sys.argv[1:]:
        roles.AMP[0] = int(k); open(f'pk17amp{k}.s', 'w').write(build(True))
```

```python
import sys
from asmlib import *
import roles
from roles import (X_, WR_, WI_, Q_, K_, V_, SK_, H_, D_, OUT_, DBG_, WS_, HSZ, newlabel, stamp, stamp_flush, sincos, srd, quad_voff, STAMPS)
KNAME = "concat_heads__spectral_gfnet__ssm_conv_h3__prompt_kernel"
SPIN = 1 << 15
SC = 'sc1'
TBLK = 161*128
WS_U = 0x300000
L_CNT = 0
USZ = 40*144; O_U = HSZ; O_RED = 22784; CHS = 30976; L_CH = 256
L_FREE = L_CH + 2*CHS
L_P1 = 163840 - 47616
L_EI = L_P1; EP = 2880; L_XR = L_EI + 8*EP
L_KI = L_P1; L_VI = L_KI + 17*1296
LDS_TOTAL = 163840
L_W1 = L_FREE; L_T1 = L_FREE + 32768
L_T2 = L_T1 + 16384; L_W2 = L_T2 + 16384
assert L_W2 + 32768 <= 163840 and L_T2 <= L_P1 and L_FREE % 256 == 0 and L_P1 % 256 == 0 and L_XR % 128 == 0
TABH, TABG = L_CH + O_RED, L_CH + CHS + O_RED
TABW = [TABH + 6144, TABG + 6144, L_CH + O_U]
L_T3 = L_W1
L_T3B = 163840 - 16384
roles.L_CNT, roles.L_KI, roles.L_VI = L_CNT, L_KI, L_VI
from roles import subbar, arrive, await_cnt, b13_lane
import pk17 as P
P.L_CNT = L_CNT
from pk17 import lds_cnt_add, subbar_s, tag_consts, tag1, tag2, poll_tags, wait_lds, h_srd, h_load, h_expand, S_M, S_C
from fin16 import row_offsets
roles.L_CNT, roles.L_KI, roles.L_VI = L_CNT, L_KI, L_VI
C_A1, C_A1D, C_W1, C_WR, C_A3, C_B1, C_B1D, C_H, C_Q, C_QL, C_A2, C_X, C_HZ = 0, 1, 2, 3, 4, 5, 6, 7, 8, 9, 10, 19, 23
C_T3 = 31
C_U, C_RED = 20, 24
XS, LS = [8], [8]
OPT = dict(wgate=8, hgate=1, stop=0, eg=(C_A2, 1), tm=None, wearly=1, wlate=0, wpf=0, wat=1, dl=1)
ND = 33
MF = 'v_mfma_f32_16x16x32_bf16'

def bar0(a):
    a.wait(lgkm=0)
    a('s_lshl_b32', 's96', 's53', 1); a('s_and_b32', 's96', 's96', -4); a('s_min_u32', 's96', 's96', 1272)
    a('s_load_dwordx2', 's[54:55]', D_, 's96')
    stamp(a, 1)
    a('s_barrier')

def u_pad(a, slc, Zr, t):
    a('s_mul_i32', 's8', slc, CHS); a('s_add_u32', 's8', 's8', L_CH + O_U + 32*144)
    a('v_lshl_add_u32', v(t), 'v0', 4, 's8')
    a('ds_write_b128', v(t), v(Zr, 4))
    a('s_mov_b64', 'exec', 0xff); a('ds_write_b128', v(t), v(Zr, 4), mods='offset:1024'); a('s_mov_b64', 'exec', -1)

CODE_HI = [6144]
def entry(a):
    a.raw(f".globl {KNAME}\n.p2align 12\n.type {KNAME},@function\n{KNAME}:")
    a('s_cmp_ge_u32', 's2', 256); a('s_cbranch_scc1', 'Lexit')
    if STAMPS[0]:
        for i in range(1, 16): a('s_mov_b32', s(64+2*i), 0)
    stamp(a, 0)
    a('s_load_dwordx16', 's[16:31]', 's[0:1]', 0)
    a('s_load_dwordx8', 's[32:39]', 's[0:1]', 64)
    a('s_getpc_b64', 's[42:43]'); a('s_and_b32', 's42', 's42', 0xfffff000)
    a('s_bitcmp1_b32', 's2', 3); a('s_cselect_b32', 's8', CODE_HI[0], 0); a('s_add_u32', 's42', 's42', 's8'); a('s_addc_u32', 's43', 's43', 0)
    a('v_lshlrev_b32', 'v2', 4, 'v0'); a('v_mov_b32', 'v3', 's43')
    a('v_add_co_u32', 'v2', 'vcc', 's42', 'v2'); a('v_addc_co_u32', 'v3', 'vcc', 0, 'v3', 'vcc')
    a('global_load_dwordx4', 'v[164:167]', 'v[2:3]', 'off')
    a('v_lshrrev_b32', 'v1', 6, 'v0'); a('v_and_b32', 'v0', 63, 'v0')
    a('v_readfirstlane_b32', 's3', 'v1')
    a('s_and_b32', 's4', 's2', 7); a('s_bfe_u32', 's5', 's2', (1 << 16) | 3); a('s_lshr_b32', 's6', 's2', 4)
    a('s_lshl3_add_u32', 's7', 's6', 's4')
    tag_consts(a)
    a('s_mul_i32', 's53', 's4', 80); a('s_mul_i32', 's8', 's6', 5); a('s_add_u32', 's53', 's53', 's8'); a('s_lshl1_add_u32', 's53', 's5', 's53')
    a('v_lshlrev_b32', 'v1', 2, 'v0'); a('v_mov_b32', 'v2', 0)
    a('ds_write_b32', 'v1', 'v2', mods=f'offset:{L_CNT}')
    a('s_cmp_lg_u32', 's5', 0); a('s_cbranch_scc1', 'LentO')
    a('s_cmp_ge_u32', 's3', 8); a('s_cbranch_scc1', 'LentP')
    a('s_lshl_b32', 's9', 's3', 7); a('s_add_u32', 's9', 's9', 's7'); a('s_mul_i32', 's10', 's9', 1280)
    row_offsets(a, [1, 2, 3], 4, 's10', 1024*1280)
    a('s_mul_i32', 's11', 's3', 3072); a('s_add_u32', 's11', 's11', L_XR); a('s_mov_b32', 'm0', 's11')
    for t in range(3): a('global_load_lds_dwordx4', v(1+t), X_, mods=f'offset:{1024*t}')
    a('s_branch', 'LA1')
    a.label('LentP')
    a('s_mul_i32', 's10', 's6', 128*1280); a('s_mul_i32', 's8', 's4', 160); a('s_add_u32', 's10', 's10', 's8')
    a('s_bitcmp1_b32', 's3', 0); a('s_cselect_b32', 's8', 156, 0); a('s_add_u32', 's10', 's10', 's8'); a('s_add_u32', 's10', 's10', 64*1280)
    a('v_mul_u32_u24', 'v1', 1280, 'v0'); a('v_add_u32', 'v1', 's10', 'v1')
    a('s_bitcmp1_b32', 's3', 1); a('s_cselect_b64', 's[12:13]', V_, K_)
    a('global_load_dword', 'v163', 'v1', 's[12:13]')
    a('s_add_u32', 's8', 's53', 2); a('s_lshl_b32', 's8', 's8', 12); a('s_sub_u32', 's9', 's3', 8); a('s_mul_i32', 's9', 's9', 3072); a('s_add_u32', 's8', 's8', 's9')
    a('v_min_u32', 'v1', 23, 'v0'); a('v_lshl_add_u32', 'v1', 'v1', 7, 's8')
    a('global_load_dword', 'v162', 'v1', H_)
    a('s_branch', 'Lbar0')
    a.label('LentO')
    a('s_cmp_ge_u32', 's3', 9); a('s_cbranch_scc1', 'Lbar0')
    R = RegAlloc(1, 120)
    vo = quad_voff(a, R); t = R.alloc()
    a('s_mul_i32', 's10', 's6', 128*1280); a('s_mul_i32', 's8', 's4', 160); a('s_add_u32', 's10', 's10', 's8')
    a('s_sub_u32', 's8', 's10', 4*1280); a('v_add_u32', v(t), 's8', v(vo))
    NB = 2048*1280
    srd(a, 44, 's24', 's25', NB); srd(a, 48, 's26', 's27', NB)
    a('s_mov_b32', 'exec_hi', 0xff)
    a('s_cmp_eq_u32', 's3', 8); a('s_cbranch_scc1', 'LentH')
    a('s_mul_i32', 's11', 's3', 8*1280); a('s_add_u32', 's11', 's11', 's10')
    a('s_mul_i32', 's12', 's3', 1296); a('s_add_u32', 's12', 's12', L_KI + 1296)
    for k in range(4):
        a('s_mov_b32', 'm0', 's12')
        a('buffer_load_dwordx4', v(vo), 's[44:47]', 's11', mods='offen lds')
        a('s_add_u32', 'm0', 's12', L_VI - L_KI - 1296)
        a('buffer_load_dwordx4', v(vo), 's[48:51]', 's11', mods='offen lds')
        if k == 1: a('s_add_u32', 's11', 's11', 60*1280); a('s_addk_i32', 's12', 8*1296 - 640)
        elif k < 3: a('s_addk_i32', 's11', 4*1280); a('s_addk_i32', 's12', 640)
    a('s_branch', 'LentX')
    a.label('LentH')
    a('s_mov_b32', 'm0', L_KI + 640)
    a('buffer_load_dwordx4', v(t), 's[44:47]', 0, mods='offen lds')
    a.label('LentX')
    a('s_mov_b64', 'exec', -1)
    a.label('Lbar0')
    bar0(a)
    a('s_cmp_eq_u32', 's5', 0); a('s_cbranch_scc1', 'LauxE')
    a('s_cmp_ge_u32', 's3', 10); a('s_cbranch_scc1', 'LauxO')
    a('s_branch', 'LB1')
    a.label('Lexit')
    a('s_endpgm')

def quad_trig(a, ang, step, C, S):
    for r in range(1, 4): a('v_add_f32', v(ang+r), v(ang+r-1), v(step))
    for r in range(4): sincos(a, ang+r, C+r, S+r)

def a1_tables(a):
    n, q, qf, st, t, ad, ang, C, S, PK = 5, 6, 7, 8, 9, 10, 12, 16, 20, 24
    a('v_and_b32', v(n), 15, 'v0'); a('v_lshrrev_b32', v(q), 4, 'v0'); a('v_mul_u32_u24', v(n), 5, v(n))
    a('s_mov_b32', 's12', 's3')
    lp = newlabel('Lc'); ltw = newlabel('Lc'); lnx = newlabel('Lc')
    a.label(lp)
    a('s_cmp_ge_u32', 's12', 11); a('s_cbranch_scc1', ltw)
    a('s_cmp_ge_u32', 's12', 5); a('s_cselect_b32', 's13', 2, 1); a('s_cselect_b32', 's14', 5, 0); a('s_sub_u32', 's14', 's12', 's14')
    a('s_cmp_eq_u32', 's12', 10); a('s_cselect_b32', 's13', 0, 's13')
    a('v_add_u32', v(st), 's13', v(n)); a('v_cvt_f32_u32', v(st), v(st)); a('v_mul_f32', v(st), fl(1/80), v(st))
    a('v_lshlrev_b32', v(qf), 2, v(q)); a('v_cvt_f32_u32', v(qf), v(qf))
    a('s_mul_i32', 's8', 's13', 's14'); a('v_cvt_f32_u32', v(t), 's8'); a('v_mul_f32', v(t), fl(0.2), v(t))
    a('v_fma_f32', v(ang), v(st), v(qf), v(t))
    quad_trig(a, ang, st, C, S)
    for h in range(2):
        a('v_cvt_pk_bf16_f32', v(PK+h), v(C+2*h), v(C+2*h+1)); a('v_cvt_pk_bf16_f32', v(PK+2+h), '-' + v(S+2*h), '-' + v(S+2*h+1))
    a('s_sub_u32', 's15', 's13', 1); a('s_lshl_b32', 's8', 's15', 2); a('s_add_u32', 's8', 's8', 's14')
    a('s_add_u32', 's15', 's15', 8); a('s_cmp_eq_u32', 's14', 4); a('s_cselect_b32', 's8', 's15', 's8')
    a('s_cmp_eq_u32', 's12', 10); a('s_cselect_b32', 's8', 10, 's8'); a('s_cselect_b32', 's41', 8, 0)
    a('s_lshr_b32', 's15', 's8', 1); a('s_lshl_b32', 's15', 's15', 10); a('s_and_b32', 's8', 's8', 1); a('s_lshl3_add_u32', 's8', 's8', 's15'); a('s_add_u32', 's8', 's8', TABH)
    a('v_lshl_add_u32', v(ad), 'v0', 4, 's8'); a('v_add_u32', v(t), 's41', v(ad))
    for r_ in (ad, t):
        a('ds_write_b64', v(r_), v(PK, 2)); a('ds_write_b64', v(r_), v(PK+2, 2), mods=f'offset:{CHS}')
    a('s_branch', lnx)
    a.label(ltw)
    a('s_sub_u32', 's13', 's12', 11)
    a('v_add_u32', v(st), 's13', v(n)); a('v_cvt_f32_u32', v(st), v(st)); a('v_mul_f32', v(st), fl(1/640), v(st))
    a('v_and_b32', v(qf), 1, v(q)); a('v_lshlrev_b32', v(qf), 2, v(qf)); a('v_cvt_f32_u32', v(qf), v(qf))
    a('v_mul_f32', v(ang), v(st), v(qf))
    quad_trig(a, ang, st, C, S)
    a('s_mul_i32', 's8', 's13', CHS); a('s_add_u32', 's8', 's8', TABW[0]); a('s_cmp_eq_u32', 's13', 2); a('s_cselect_b32', 's8', TABW[2], 's8')
    a('v_lshl_add_u32', v(ad), 'v0', 4, 's8')
    a('ds_write_b128', v(ad), v(C, 4)); a('ds_write_b128', v(ad), v(S, 4), mods='offset:1024')
    a.label(lnx)
    a('s_add_u32', 's12', 's12', 8); a('s_cmp_lt_u32', 's12', 14); a('s_cbranch_scc1', lp)

def a3_tables(a, first=8, step=4):
    n, q, t, ad, k1, ang, C, S, PK = 132, 133, 134, 135, 136, 136, 140, 144, 148
    a('v_and_b32', v(n), 15, 'v0'); a('v_lshrrev_b32', v(q), 4, 'v0')
    a('s_sub_u32', 's12', 's3', first)
    lp = newlabel('Lc'); ltw = newlabel('Lc'); lnx = newlabel('Lc')
    a.label(lp)
    a('s_cmp_ge_u32', 's12', 5); a('s_cselect_b32', 's13', 1, 0); a('s_sub_u32', 's8', 's12', 10); a('s_cmp_ge_u32', 's12', 10); a('s_cselect_b32', 's13', 's8', 's13')
    a('s_cmp_eq_u32', 's13', 2); a('s_cselect_b32', 's14', 20, 10); a('s_mov_b32', 's15', 0x07060201); a('s_cselect_b32', 's15', 0x0f0a0500, 's15')
    a('s_and_b32', 's8', 's13', 1); a('s_mul_i32', 's8', 's8', 40)
    a('v_mul_lo_u32', v(t), v(q), 's14'); a('v_add_u32', v(t), 's8', v(t))
    for r in range(4):
        a('s_bfe_u32', 's8', 's15', (8 << 16) | (8*r)); a('v_add_u32', v(k1+r), 's8', v(t))
    a('s_cmp_ge_u32', 's12', 10); a('s_cbranch_scc1', ltw)
    a('s_mul_i32', 's8', 's13', 5); a('s_sub_u32', 's8', 's12', 's8'); a('s_lshl_b32', 's8', 's8', 4); a('v_add_u32', v(t), 's8', v(n))
    for r in range(4):
        a('v_mul_u32_u24', v(ang+r), v(t), v(k1+r)); a('v_cvt_f32_u32', v(ang+r), v(ang+r)); a('v_mul_f32', v(ang+r), fl(1/80), v(ang+r))
    for r in range(4): sincos(a, ang+r, C+r, S+r)
    for h in range(2):
        a('v_cvt_pk_bf16_f32', v(PK+h), v(C+2*h), v(C+2*h+1)); a('v_cvt_pk_bf16_f32', v(PK+2+h), '-' + v(S+2*h), '-' + v(S+2*h+1))
    a('s_lshl_b32', 's8', 's12', 10); a('s_add_u32', 's8', 's8', 's52'); a('v_lshl_add_u32', v(ad), 'v0', 4, 's8')
    a('ds_write_b128', v(ad), v(PK, 4))
    a('s_branch', lnx)
    a.label(ltw)
    a('v_and_b32', v(t), 7, 'v0')
    for r in range(4):
        a('v_mul_u32_u24', v(ang+r), v(t), v(k1+r)); a('v_cvt_f32_u32', v(ang+r), v(ang+r)); a('v_mul_f32', v(ang+r), fl(1/640), v(ang+r))
    for r in range(4): sincos(a, ang+r, C+r, S+r)
    a('s_lshl_b32', 's8', 's13', 11); a('s_add_u32', 's8', 's8', 10240); a('s_add_u32', 's8', 's8', 's52')
    a('v_lshl_add_u32', v(ad), 'v0', 4, 's8')
    a('ds_write_b128', v(ad), v(C, 4)); a('ds_write_b128', v(ad), v(S, 4), mods='offset:1024')
    a.label(lnx)
    a('s_add_u32', 's12', 's12', step); a('s_cmp_lt_u32', 's12', 13); a('s_cbranch_scc1', lp)

def m2_angles(a, tmp, inv):
    u2, t, u, ang, C, S = tmp, tmp+1, tmp+2, tmp+3, tmp+7, tmp+11
    a('v_and_b32', v(u2), 7, 'v0'); a('v_cvt_f32_u32', v(u2), v(u2)); a('v_mul_f32', v(u2), fl(1/8), v(u2))
    a('v_bfe_u32', v(t if inv else u), 'v0', 3, 1); a('v_lshrrev_b32', v(u if inv else t), 5, 'v0')
    a('v_lshl_add_u32', v(t), v(t), 10, 's9'); a('v_mul_u32_u24', v(t), v(t), v(u))
    a('v_cvt_f32_u32', v(t), v(t)); a('v_mul_f32', v(t), fl(1/2048), v(t))
    a('v_lshlrev_b32', v(C), 27 if inv else 29, 'v0'); a('v_and_b32', v(C), 0x80000000, v(C)); a('v_xor_b32', v(t), v(t), v(C))
    a('v_bfe_u32', v(u), 'v0', 4, 1); a('v_lshlrev_b32', v(u), 2, v(u)); a('v_cvt_f32_u32', v(u), v(u))
    a('v_fma_f32', v(ang), v(u2), v(u), v(t))
    a('v_lshrrev_b32', v(u), 16, v(C)); a('v_or_b32', v(u), v(u), v(C))
    quad_trig(a, ang, u2, C, S)
    return C, S, u

def msg_addrs(a, go, go2, gs, t):
    a('s_mul_i32', 's8', 's7', TBLK)
    a('s_and_b32', 's12', 's3', 1); a('s_mul_i32', 's13', 's12', 1280); a('s_lshr_b32', 's14', 's3', 1); a('s_lshl_b32', 's14', 's14', 7)
    a('s_add_u32', 's13', 's13', 's14'); a('s_add_u32', 's13', 's13', 's8')
    a('v_lshrrev_b32', v(t), 4, 'v0'); a('v_mul_u32_u24', v(go), 2560 - 128, v(t)); a('v_lshl_add_u32', v(go), 'v0', 3, v(go)); a('v_add_u32', v(go), 's13', v(go))
    a('v_add_u32', v(go2), 10240, v(go))
    a('s_lshl2_add_u32', 's8', 's12', 's8'); a('s_add_u32', 's8', 's8', 160*128); a('v_lshl_add_u32', v(gs), v(t), 3, 's8')

def A1(a):
    a.label('LA1')
    a('s_setprio', 2)
    a('s_mul_i32', 's10', 's3', EP); a('s_add_u32', 's10', 's10', L_EI)
    a('v_lshrrev_b32', 'v5', 4, 'v0'); a('v_mul_u32_u24', 'v5', 704 - 64, 'v5'); a('v_lshl_add_u32', 'v5', 'v0', 2, 'v5'); a('v_add_u32', 'v5', 's10', 'v5'); a('v_mov_b32', 'v6', 0)
    a('ds_write_b32', 'v5', 'v6', mods='offset:640')
    a1_tables(a)
    bar0(a)
    t, u, q, tra, wd, wz, tr2, go, go2, gs, hf, mk, tl0, tl1, tls = range(1, 16)
    Hs, Gs, TW, Mre, Mim, M3, AC, Dr, PK, X = 16, 40, 64, 88, 92, 96, 104, 128, 138, 150
    a('v_lshlrev_b32', v(u), 4, 'v0'); a('v_add_u32', v(t), TABH, v(u)); a('v_add_u32', v(u), TABW[2], v(u))
    C, S, sg = m2_angles(a, AC, False)
    for r in range(4):
        a('v_cvt_pk_bf16_f32', v(Mre+r), v(C+r), v(S+r)); a('v_cvt_pk_bf16_f32', v(Mim+r), '-' + v(S+r), v(C+r)); a('v_xor_b32', v(Mim+r), v(sg), v(Mim+r))
    a.wait(lgkm=0)
    for k in (4, 0, 1, 2, 3, 5):
        a('ds_read_b128', v(Hs+4*k, 4), v(t), mods=f'offset:{1024*k}'); a('ds_read_b128', v(Gs+4*k, 4), v(t), mods=f'offset:{CHS+1024*k}')
    for h in range(2):
        a('ds_read_b128', v(TW+8+4*h, 4), v(t), mods=f'offset:{CHS+6144+1024*h}')
    for h in range(2):
        a('ds_read_b128', v(TW+16+4*h, 4), v(u), mods=f'offset:{1024*h}'); a('ds_read_b128', v(TW+4*h, 4), v(t), mods=f'offset:{6144+1024*h}')
    a('v_lshrrev_b32', v(q), 4, 'v0')
    a('v_bfe_u32', v(tra), 'v0', 1, 1); a('v_mul_u32_u24', v(tra), 1408, v(tra))
    a('v_and_b32', v(t), 1, 'v0'); a('v_lshl_add_u32', v(tra), v(t), 3, v(tra)); a('v_lshrrev_b32', v(t), 2, 'v0'); a('v_lshl_add_u32', v(tra), v(t), 4, v(tra)); a('v_add_u32', v(tra), 's11', v(tra))
    fh, ph, an = X, X+1, X+2
    a('v_and_b32', v(t), 1, 'v0'); a('v_lshrrev_b32', v(u), 5, 'v0'); a('v_sub_u32', v(t), v(t), v(u)); a('v_cvt_f32_i32', v(ph), v(t)); a('v_mul_f32', v(ph), fl(0.25), v(ph))
    a('v_bfe_u32', v(t), 'v0', 1, 1); a('v_bfe_u32', v(u), 'v0', 4, 1); a('v_cmp_eq_u32', 'vcc', v(t), v(u)); a('v_cndmask_b32', v(mk), 0, -1, 'vcc')
    a('v_cvt_f32_u32', v(t), 's7'); a('v_mul_f32', v(t), fl(1/128), v(t))
    for mu in range(2):
        a('v_bfe_u32', v(fh), 'v0', 2, 2)
        if mu: a('v_add_u32', v(fh), 4, v(fh))
        a('v_cvt_f32_u32', v(fh), v(fh)); a('v_mul_f32', v(fh), fl(1/8), v(fh))
        a('v_fma_f32', v(an), v(fh), v(t), v(ph))
        for i in range(8):
            a('v_cos_f32', v(an+1+(i & 1)), v(an))
            if i < 7: a('v_add_f32', v(an), v(an), v(fh))
            if i & 1:
                a('v_cvt_pk_bf16_f32', v(M3+4*mu+(i >> 1)), v(an+1), v(an+2)); a('v_and_b32', v(M3+4*mu+(i >> 1)), v(mk), v(M3+4*mu+(i >> 1)))
    a('v_mov_b32', v(go), L_CNT + 4*C_X); a('v_mov_b32', v(go2), 1)
    stamp(a, 2)
    a.wait(vm=0)
    stamp(a, 3)
    lw6 = newlabel('La1'); a('s_cmp_lg_u32', 's3', 6); a('s_cbranch_scc1', lw6)
    a('v_and_b32', 'v159', 15, 'v0'); a('v_lshl_add_u32', 'v159', 's7', 4, 'v159'); a('v_mul_u32_u24', 'v159', 642, 'v159')
    a('global_load_ushort', 'v160', 'v159', WR_, mods='offset:640'); a('global_load_ushort', 'v161', 'v159', WI_, mods='offset:640')
    a.label(lw6)
    for e in (4, 0, 1, 2, 3): a('ds_read_b64_tr_b16', v(Dr+2*e, 2), v(tra), mods=f'offset:{256*e}')
    lds_cnt_add(a, go, go2)
    a('v_and_b32', v(t), 7, 'v0'); a('v_lshl_add_u32', v(t), v(t), 2, v(q)); a('v_sub_u32', v(u), 31, v(t)); a('v_cmp_gt_u32', 'vcc', 16, v(t))
    a('v_min_u32', v(u), v(t), v(u)); a('v_mul_u32_u24', v(wd), 40, v(u)); a('v_add_u32', v(wz), 32, v(wd)); a('v_add_u32', v(u), 16, v(wd)); a('v_cndmask_b32', v(wd), v(u), v(wd), 'vcc')
    a('v_mov_b32', v(u), 656); a('v_cndmask_b32', v(wz), v(u), v(wz), 'vcc')
    a('v_cmp_eq_u32', 'vcc', 16, v(t)); a('v_mov_b32', v(u), 640); a('v_cndmask_b32', v(wz), v(wz), v(u), 'vcc')
    a('v_and_b32', v(u), 15, v(t)); a('v_cmp_eq_u32', 'vcc', 0, v(u)); a('v_cndmask_b32', v(hf), 1.0, 0.5, 'vcc')
    SL = {1: (0, 1, 16), 2: (2, 3, 18), 0: (5, 5, 20)}
    for k5 in (1, 2, 0):
        for ri, M in enumerate((Hs, Gs)): a('v_mfma_f32_16x16x16_bf16', v(AC+8*k5+4*ri, 4), v(Dr+8, 2), v(M+SL[k5][2], 2), 0)
    a('v_bfe_u32', v(u), 'v0', 3, 1); a('v_mul_u32_u24', v(u), 1408, v(u)); a('v_add_u32', v(u), 's10', v(u)); a('v_add_u32', v(wd), v(wd), v(u)); a('v_add_u32', v(wz), v(wz), v(u))
    for k5 in (1, 2, 0):
        for p in range(2):
            for ri, M in enumerate((Hs, Gs)): a(MF, v(AC+8*k5+4*ri, 4), v(Dr+4*p, 4), v(M+4*SL[k5][p], 4), v(AC+8*k5+4*ri, 4))
        if k5 == 1:
            msg_addrs(a, go, go2, gs, t)
        if k5 == 2:
            a('v_bfe_u32', v(tr2), 'v0', 2, 2); a('v_mul_u32_u24', v(tr2), EP, v(tr2)); a('v_and_b32', v(t), 3, 'v0'); a('v_lshl_add_u32', v(tr2), v(t), 3, v(tr2))
            a('v_and_b32', v(t), 1, v(q)); a('v_lshl_add_u32', v(tr2), v(t), 5, v(tr2)); a('v_lshrrev_b32', v(t), 5, 'v0'); a('v_mul_u32_u24', v(t), 704, v(t)); a('v_add_u32', v(tr2), v(tr2), v(t))
            a('s_mul_i32', 's8', 's12', 1408); a('s_lshr_b32', 's14', 's14', 1); a('s_add_u32', 's8', 's8', 's14'); a('s_add_u32', 's8', 's8', L_EI); a('v_add_u32', v(tr2), 's8', v(tr2))
    A2r = Hs
    for k5 in (1, 2, 0):
        for r in range(4):
            re, im, c, s_ = AC+8*k5+r, AC+8*k5+4+r, TW+8*k5+r, TW+8*k5+4+r
            a('v_mul_f32', v(X+r), v(re), v(c)); a('v_mul_f32', v(X+4+r), v(im), v(c))
            a('v_fmac_f32', v(X+r), v(im), v(s_)); a('v_fma_f32', v(X+4+r), '-' + v(re), v(s_), v(X+4+r))
            a('v_cvt_pk_bf16_f32', v(PK+4*k5+r), v(X+r), v(X+4+r))
        a(MF, v(A2r+8*k5, 4), v(PK+4*k5, 4), v(Mre, 4), 0); a(MF, v(A2r+8*k5+4, 4), v(PK+4*k5, 4), v(Mim, 4), 0)
    for ri in range(2):
        for r in range(4): a('v_cvt_pk_bf16_f32', v(PK+4*ri+r), v(A2r+8+4*ri+r), v(A2r+16+4*ri+r))
        a('ds_write_b64', v(wd), v(PK+4*ri, 2), mods=f'offset:{704*ri}'); a('ds_write_b64', v(wd), v(PK+4*ri+2, 2), mods=f'offset:{704*ri+8}')
    for ri in range(2):
        a('v_mul_f32', v(A2r+4*ri), v(hf), v(A2r+4*ri))
        for h in range(2): a('v_cvt_pk_bf16_f32', v(PK+8+2*ri+h), v(A2r+4*ri+2*h), v(A2r+4*ri+2*h+1))
        a('ds_write_b64', v(wz), v(PK+8+2*ri, 2), mods=f'offset:{704*ri}')
    a('v_mov_b32', v(mk), 0xfffefffe); a('v_and_b32', v(tl0), 1, 'v0'); a('v_lshlrev_b32', v(tl0), 16, v(tl0)); a('v_or_b32', v(tl1), 1, v(tl0))
    a('v_and_b32', v(tls), 16, 'v0'); a('v_lshlrev_b32', v(tls), 12, v(tls)); a('v_or_b32', v(tls), 's12', v(tls))
    stamp(a, 4)
    subbar(a, C_A1, 8, t, u)
    OP = TW; O3 = AC; ST = PK
    for it in range(3):
        a('ds_read_b64_tr_b16', v(OP+4*it, 2), v(tr2), mods=f'offset:{256*it}')
        a('ds_read_b64_tr_b16', v(OP+4*it+2, 2), v(tr2), mods=f'offset:{256*it + 4*EP}')
    for it in range(3):
        for mu in range(2): a(MF, v(O3+8*it+4*mu, 4), v(M3+4*mu, 4), v(OP+4*it, 4), 0)
    skip = newlabel('La1s'); lsp = newlabel('La1s')
    for it in range(3):
        if it == 2:
            a('s_cmp_ge_u32', 's3', 4); a('s_cbranch_scc1', lsp)
        for mu, g_ in enumerate((go, go2)):
            b = O3+8*it+4*mu; d = ST+4*it+2*mu
            a('v_cvt_pk_bf16_f32', v(d), v(b), v(b+1)); a('v_cvt_pk_bf16_f32', v(d+1), v(b+2), v(b+3))
            a('v_and_or_b32', v(d), v(d), v(mk), v(tl0)); a('v_and_or_b32', v(d+1), v(d+1), v(mk), v(tl1))
            a('global_store_dwordx2', v(g_), v(d, 2), WS_, mods=f'offset:{512*it} {SC}')
    a('s_branch', skip)
    a.label(lsp)
    l45 = newlabel('La1s'); a('s_cmp_lt_u32', 's3', 6); a('s_cbranch_scc1', l45)
    a('s_cmp_lg_u32', 's3', 6); a('s_cbranch_scc1', skip)
    a('v_lshl_or_b32', v(ST+8), 'v161', 16, 'v160')
    a('v_and_b32', v(t), 2, 'v0'); a('v_lshlrev_b32', v(t), 15, v(t)); a('v_and_or_b32', v(t), 'v0', 1, v(t)); a('v_and_or_b32', v(ST+8), v(ST+8), v(mk), v(t))
    a('s_mul_i32', 's8', 's7', TBLK); a('s_add_u32', 's8', 's8', 160*128 + 64); a('v_lshl_add_u32', v(t), 'v0', 2, 's8')
    a('s_mov_b64', 'exec', 0xffff)
    a('global_store_dword', v(t), v(ST+8), WS_, mods=SC)
    a('s_mov_b64', 'exec', -1)
    a('s_branch', skip)
    a.label(l45)
    for mu in range(2):
        a('v_cvt_pk_bf16_f32', v(ST+8+mu), v(O3+16+4*mu), v(O3+17+4*mu)); a('v_and_or_b32', v(ST+8+mu), v(ST+8+mu), v(mk), v(tls))
    a('s_mov_b32', 'exec_lo', 0x10001); a('s_mov_b32', 'exec_hi', 0x10001)
    for mu in range(2): a('global_store_dword', v(gs), v(ST+8+mu), WS_, mods=f'offset:{32*mu} {SC}')
    a('s_mov_b64', 'exec', -1)
    a.label(skip)
    stamp(a, 5)
    a('s_setprio', 0)
    lt3 = newlabel('La1'); a('s_cmp_lt_u32', 's7', ND); a('s_cbranch_scc1', lt3)
    a._nop(2); a('s_mov_b32', 's52', L_T3B); a3_tables(a, 0, 8)
    a.label(lt3)
    arrive(a, C_A1D, 1, 2, vm=True)
    stamp(a, 6)
    if OPT['stop'] == 1: a('s_branch', 'Lfin'); return
    a('s_cmp_ge_u32', 's7', ND); a('s_cbranch_scc1', 'LB2')
    a('s_cmp_ge_u32', 's3', 4); a('s_cbranch_scc1', 'LB2')
    a('s_add_u32', 's9', 's6', 16); a('s_mov_b32', 's10', 's3'); a('v_mov_b32', 'v159', 0)
    a('s_mov_b32', 's62', L_T2); a('s_mov_b32', 's63', L_W2); a('s_mov_b32', 's61', L_CNT + 4*(C_A2+4)); a('s_mov_b32', 's60', L_CNT + 4*18)
    a('s_branch', 'LA2')

def A3(a):
    a.label('LA3')
    t, u, q, go, go2, gs, lw, ra0, ra1, rz, wa, rd = range(1, 13)
    vo = [13, 14, 15]
    Mre, Mim, M3, TW, F, IN, X, P0, AC, Y = 16, 20, 24, 32, 56, 100, 112, 120, 124, 148
    msg_addrs(a, go, go2, gs, t)
    await_cnt(a, C_A1D, 8, t, u)
    a('s_lshl_b32', 's9', 's3', 7); a('s_add_u32', 's9', 's9', 's7'); a('s_mul_i32', 's10', 's9', 2560)
    a('s_mul_i32', 's11', 's3', 3072); a('s_add_u32', 's11', 's11', L_XR)
    row_offsets(a, vo, t, 's10', 1024*2560)
    a('v_lshrrev_b32', v(q), 4, 'v0')
    C, S, sg = m2_angles(a, AC, True)
    for r in range(8): a('v_mul_f32', v(C+r), fl(2.0/(2048*640)), v(C+r))
    for h in range(2):
        a('v_cvt_pk_bf16_f32', v(Mre+h), v(C+2*h), v(C+2*h+1)); a('v_cvt_pk_bf16_f32', v(Mim+h), v(S+2*h), v(S+2*h+1))
        a('v_cvt_pk_bf16_f32', v(Mre+2+h), '-' + v(S+2*h), '-' + v(S+2*h+1)); a('v_xor_b32', v(Mre+2+h), v(sg), v(Mre+2+h))
        a('v_xor_b32', v(Mim+2+h), v(sg), v(Mre+h))
    a('v_and_b32', v(t), 15, 'v0'); a('v_cvt_f32_u32', v(t), v(t)); a('v_mul_f32', v(t), fl(1/16), v(t)); a('v_lshlrev_b32', v(u), 2, v(q)); a('v_cvt_f32_u32', v(u), v(u))
    a('v_mul_f32', v(AC), v(t), v(u)); quad_trig(a, AC, t, AC+4, AC+8)
    for h in range(2):
        a('v_cvt_pk_bf16_f32', v(F+40+h), v(AC+4+2*h), v(AC+5+2*h)); a('v_cvt_pk_bf16_f32', v(F+42+h), '-' + v(AC+8+2*h), '-' + v(AC+9+2*h))
    a('v_and_b32', v(t), 7, 'v0'); a('v_lshl_add_u32', v(t), v(t), 7, 's7')
    a('v_and_b32', v(u), 8, 'v0'); a('v_cmp_eq_u32', 'vcc', 0, v(u))
    for mu in range(2):
        a('v_add_u32', v(u), 4*mu, v(q)); a('v_mul_u32_u24', v(u), v(u), v(t)); a('v_cvt_f32_u32', v(u), v(u)); a('v_mul_f32', v(u), fl(1/1024), v(u))
        sincos(a, u, X, X+1)
        a('v_cvt_pk_bf16_f32', v(X+2), v(X), '-' + v(X+1)); a('v_cvt_pk_bf16_f32', v(X+3), v(X+1), v(X))
        for nu in range(2):
            a('v_cndmask_b32', v(M3+4*nu+2*mu), 0, v(X+2+nu), 'vcc'); a('v_cndmask_b32', v(M3+4*nu+2*mu+1), v(X+2+nu), 0, 'vcc')
    a('v_and_b32', v(lw), 7, 'v0'); a('v_mul_u32_u24', v(lw), EP, v(lw)); a('v_and_b32', v(t), 8, 'v0'); a('v_lshl_add_u32', v(lw), v(t), 2, v(lw)); a('v_lshl_add_u32', v(lw), v(q), 3, v(lw))
    a('s_mul_i32', 's8', 's12', 1408); a('s_lshr_b32', 's14', 's14', 1); a('s_add_u32', 's8', 's8', 's14'); a('s_add_u32', 's8', 's8', L_EI); a('v_add_u32', v(lw), 's8', v(lw))
    k4, bs = X, X+1
    a('v_and_b32', v(k4), 28, 'v0'); a('v_lshrrev_b32', v(bs), 5, 'v0'); a('v_mul_u32_u24', v(bs), 1408, v(bs))
    a('s_mul_i32', 's8', 's3', EP); a('s_add_u32', 's8', 's8', L_EI); a('v_add_u32', v(bs), 's8', v(bs))
    a('v_cmp_gt_u32', 'vcc', 16, v(k4))
    for hx, dst in enumerate((ra0, ra1)):
        a('v_bfe_u32', v(t), 'v0', 1, 1); a('v_add3_u32', v(t), v(t), v(k4), 2*hx); a('v_sub_u32', v(u), 31, v(t)); a('v_min_u32', v(t), v(t), v(u))
        a('v_mul_u32_u24', v(dst), 40, v(t)); a('v_add_u32', v(u), 16, v(dst)); a('v_cndmask_b32', v(dst), v(u), v(dst), 'vcc')
        a('v_and_b32', v(t), 1, 'v0'); a('v_lshl_add_u32', v(dst), v(t), 3, v(dst)); a('v_add_u32', v(dst), v(dst), v(bs))
    a('v_and_b32', v(t), 31, 'v0'); a('v_mul_u32_u24', v(rz), 40, v(t)); a('v_add_u32', v(rz), 32, v(rz)); a('v_mov_b32', v(u), 648); a('v_cndmask_b32', v(rz), v(u), v(rz), 'vcc')
    a('v_cmp_eq_u32', 'vcc', 16, v(t)); a('v_mov_b32', v(u), 640); a('v_cndmask_b32', v(rz), v(rz), v(u), 'vcc'); a('v_add_u32', v(rz), v(rz), v(bs))
    a('v_lshrrev_b32', v(wa), 5, 'v0'); a('v_mul_u32_u24', v(wa), 1408, v(wa)); a('v_and_b32', v(t), 1, v(q)); a('v_lshl_add_u32', v(wa), v(t), 3, v(wa))
    a('v_and_b32', v(t), 15, 'v0'); a('v_lshl_add_u32', v(wa), v(t), 4, v(wa)); a('v_add_u32', v(wa), 's11', v(wa))
    a('v_lshl_add_u32', v(rd), 'v0', 4, 's11')
    lw2 = newlabel('La3'); a('s_cmp_ge_u32', 's7', ND); a('s_cbranch_scc1', lw2)
    wait_lds(a, C_A2+4+3, 4, t, u)
    a.label(lw2)
    wait_lds(a, C_A2+3, 4, t, u)
    a('s_cmp_lt_u32', 's7', ND); a('s_mov_b32', 's8', L_T3B); a('s_cselect_b32', 's8', L_T3, 's8'); a('v_lshl_add_u32', v(t), 'v0', 4, 's8')
    for k in range(10): a('ds_read_b128', v(F+4*k, 4), v(t), mods=f'offset:{1024*k}')
    for k in range(6): a('ds_read_b128', v(TW+4*k, 4), v(t), mods=f'offset:{10240+1024*k}')
    stamp(a, 11)
    a('s_setprio', 2)
    def ld(its):
        for it in its:
            for mu, g_ in enumerate((go, go2)): a('global_load_dwordx2', v(IN+4*it+2*mu, 2), v(g_), WS_, mods=f'offset:{512*it} {SC}')
    l4 = newlabel('La3'); lj = newlabel('La3'); l6 = newlabel('La3')
    a('s_cmp_ge_u32', 's3', 4); a('s_cbranch_scc1', l4)
    poll_tags(a, lambda: ld((0, 1, 2)), [IN, IN+4, IN+8], t, 2, LS[0])
    a('s_branch', lj)
    a.label(l4)
    def ld2():
        ld((0, 1))
        for mu in range(2): a('global_load_dword', v(X+mu), v(gs), WS_, mods=f'offset:{32*mu} {SC}')
        for mu in range(2): a('v_xor_b32', v(IN+8+2*mu), 's12', v(X+mu))
    a('v_mov_b32', v(IN+9), 0); a('v_mov_b32', v(IN+11), 0)
    poll_tags(a, ld2, [IN, IN+4, IN+8], t, 2, LS[0])
    a('v_and_b32', v(t), 15, 'v0'); a('v_cmp_eq_u32', 'vcc', 0, v(t))
    for mu in range(2): a('v_cndmask_b32', v(IN+8+2*mu), 0, v(X+mu), 'vcc')
    a.label(lj)
    stamp(a, 12)
    for it in range(3):
        for nu in range(2): a(MF, v(AC+8*it+4*nu, 4), v(IN+4*it, 4), v(M3+4*nu, 4), 0)
    for it in range(3):
        if it == 2: a('s_cmp_ge_u32', 's3', 6); a('s_cbranch_scc1', l6)
        for nu in range(2):
            b = AC+8*it+4*nu; d = IN+4*it+2*nu
            a('v_cvt_pk_bf16_f32', v(d), v(b), v(b+1)); a('v_cvt_pk_bf16_f32', v(d+1), v(b+2), v(b+3))
            a('ds_write_b64', v(lw), v(d, 2), mods=f'offset:{256*it + 704*nu}')
    a.label(l6)
    subbar(a, C_A3, 8, t, u)
    stamp(a, 13)
    Z = IN
    order = (2, 0, 1)
    for st in order:
        ad = (ra0, ra1, rz)[st]
        for ri in range(2): a('ds_read_b64_tr_b16', v(Z+4*st+2*ri, 2), v(ad), mods=f'offset:{704*ri}')
    for st in order:
        a(MF, v(AC+8*st, 4), v(Z+4*st, 4), v(Mre, 4), 0); a(MF, v(AC+8*st+4, 4), v(Z+4*st, 4), v(Mim, 4), 0)
    for st in order:
        for r in range(4):
            re, im, c, s_ = AC+8*st+r, AC+8*st+4+r, TW+8*st+r, TW+8*st+4+r
            a('v_mul_f32', v(X+r), v(re), v(c)); a('v_mul_f32', v(X+4+r), v(im), v(c))
            a('v_fma_f32', v(X+r), '-' + v(im), v(s_), v(X+r)); a('v_fmac_f32', v(X+4+r), v(re), v(s_))
            if r & 1:
                a('v_cvt_pk_bf16_f32', v(Z+4*st+(r >> 1)), v(X+r-1), v(X+r)); a('v_cvt_pk_bf16_f32', v(Z+4*st+2+(r >> 1)), v(X+4+r-1), v(X+4+r))
        if st == 2: a(MF, v(P0, 4), v(Z+8, 4), v(F+40, 4), 0)
        else:
            for e in range(5): a(MF, v(Y+4*e, 4), v(Z+4*st, 4), v(F+20*st+4*e, 4), v(P0, 4) if st == 0 else v(Y+4*e, 4))
    for e in range(5):
        a('v_cvt_pk_bf16_f32', v(AC+2*e), v(Y+4*e), v(Y+4*e+1)); a('v_cvt_pk_bf16_f32', v(AC+2*e+1), v(Y+4*e+2), v(Y+4*e+3))
        a('ds_write_b64', v(wa), v(AC+2*e, 2), mods=f'offset:{256*e}')
    for k in range(3): a('ds_read_b128', v(Z+4*k, 4), v(rd), mods=f'offset:{1024*k}')
    a('global_store_dwordx4', v(vo[0]), v(Z, 4), OUT_, mods=SC)
    a('s_mov_b32', 'exec_lo', 0xff00ffff)
    a('global_store_dwordx4', v(vo[1]), v(Z+4, 4), OUT_, mods='offset:1024 sc1')
    a('s_mov_b32', 'exec_lo', -1); a('s_mov_b32', 'exec_hi', 0xff)
    a('global_store_dwordx4', v(vo[2]), v(Z+8, 4), OUT_, mods='offset:2048 sc1')
    stamp(a, 14)
    a('s_mov_b64', 'exec', -1)

def auxE(a):
    a.label('LauxE')
    a('s_sub_u32', 's10', 's3', 8)
    a('s_mov_b32', 's9', 's6')
    a('s_mov_b32', 's62', L_T1); a('s_mov_b32', 's63', L_W1); a('s_mov_b32', 's61', L_CNT + 4*C_A2); a('s_mov_b32', 's60', L_CNT + 4*C_W1)
    h_even(a, 0)
    a('v_lshrrev_b32', 'v1', 3, 'v0'); a('v_and_b32', 'v2', 7, 'v0'); a('v_lshlrev_b32', 'v2', 7, 'v2'); a('v_min_u32', 'v2', 640, 'v2'); a('v_mul_u32_u24', 'v1', 8*642, 'v1'); a('v_add_u32', 'v1', 'v1', 'v2')
    a('s_lshl_b32', 's8', 's6', 1); a('s_and_b32', 's11', 's3', 1); a('s_add_u32', 's8', 's8', 's11'); a('s_lshl_b32', 's8', 's8', 6); a('s_add_u32', 's8', 's8', 's4'); a('s_mul_i32', 's8', 's8', 642)
    a('v_add_u32', 'v159', 's8', 'v1')
def wpf(a):
    sk = newlabel('La2'); a('s_cmp_lt_u32', 's3', 8); a('s_cbranch_scc1', sk)
    a('s_bitcmp1_b32', 's3', 1); a('s_cselect_b64', 's[98:99]', WI_, WR_)
    a('global_load_ushort', 'v163', 'v159', 's[98:99]')
    a.label(sk)
def h_even(a, part):
    t, u, vo, vq, vh, vh2, D, T = 1, 2, 132, 133, 134, 135, 136, 100
    if part == 0:
        a('s_and_b32', 's15', 's10', 1)
        a('v_lshlrev_b32', v(vo), 4, 'v0')
        a('s_lshl_b32', 's8', 's10', 10); a('v_add_u32', v(vq), 's8', v(vo)); a('v_subrev_u32', v(vh), 128, v(vo)); a('v_subrev_u32', v(vh2), 112, v(vo))
        for lc in range(2):
            h_srd(a, lc)
            a('buffer_load_dwordx4', v(D+6*lc, 4), v(vq), 's[44:47]', 0, mods='offen'); a('buffer_load_dwordx2', v(D+6*lc+4, 2), v(vq), 's[44:47]', 0, mods='offen offset:16')
        h_srd(a, 's15'); h_load(a, D+12, vh, vh2, 0)
        for k in range(4): a('v_mov_b32', v(T+k), 0)
        u_pad(a, 's15', T, t)
        a('v_add_u32', v(vq), L_CH, v(vq)); a('s_mul_i32', 's8', 's15', CHS); a('s_add_u32', 's8', 's8', L_CH); a('v_add_u32', v(vh), 's8', v(vo))
        return
    sk = newlabel('La2'); a('s_cmp_lt_u32', 's3', 8); a('s_cbranch_scc1', sk)
    for lc in range(2): h_expand(a, D+6*lc, T, vq, lc*CHS + 128)
    a('s_mov_b64', 'exec', 0xff)
    h_expand(a, D+12, T, vh, 0)
    a('s_mov_b64', 'exec', -1)
    arrive(a, C_H, t, u)
    stamp(a, 2)
    a.label(sk)

def A2(a, HOOK):
    a.label('LA2')
    t, u, go, lw, lr, q, n = range(1, 8)
    wr = [8, 9, 10, 11]; lr2, wv, ww, ww2, pl_, ph_, msk, IL = 154, 155, 156, 157, 158, 160, 161, 44
    Fr, Fi, Mr, Mi, T1c, T2c, X, Wv, Z, AC, SW = 12, 16, 20, 24, 28, 36, 44, 52, 84, 100, 52
    a('s_cmp_ge_u32', 's9', 10); a('s_cselect_b32', 's11', 8, 0); a('s_cselect_b32', 's12', 10, 0); a('s_add_u32', 's11', 's11', 's4'); a('s_sub_u32', 's12', 's9', 's12')
    a('s_mul_i32', 's13', 's11', 10); a('s_add_u32', 's13', 's13', 's12')
    a('s_cmp_eq_u32', 's9', 20); a('s_cselect_b32', 's13', 160, 's13')
    a('s_mul_i32', 's14', 's12', 32*205); a('s_lshr_b32', 's14', 's14', 12); a('s_mul_i32', 's14', 's14', 20)
    a('v_lshrrev_b32', v(t), 3, 'v0'); a('v_and_b32', v(u), 7, 'v0'); a('v_mul_u32_u24', v(wv), 16*642, v(t)); a('v_lshl_add_u32', v(wv), v(u), 4, v(wv))
    a('s_lshl_b32', 's8', 's10', 9); a('s_add_u32', 's8', 's8', 's11'); a('s_mul_i32', 's8', 's8', 642); a('s_lshl1_add_u32', 's8', 's14', 's8'); a('s_and_b32', 's8', 's8', -4)
    a('v_add_u32', v(wv), 's8', v(wv))
    WB = 2048*321*2
    def wload():
        lns = newlabel('La2'); a('s_cmp_eq_u32', 's9', 20); a('s_cbranch_scc1', lns)
        a('s_mov_b32', 's8', 0)
        for k in range(4):
            for pl, sd in enumerate((12, 56)): a('buffer_load_dwordx4', v(SW+16*pl+4*k, 4), v(wv), s(sd, 4), 's8', mods='offen')
            if k < 3: a('s_add_u32', 's8', 's8', 128*642)
        a.label(lns)
    a('v_and_b32', v(n), 15, 'v0'); a('v_lshrrev_b32', v(q), 4, 'v0')
    a('v_lshrrev_b32', v(t), 3, 'v0'); a('v_lshl_add_u32', v(t), 's10', 3, v(t))
    a('v_mul_u32_u24', v(go), TBLK, v(t)); a('v_and_b32', v(u), 7, 'v0'); a('v_lshl_add_u32', v(go), v(u), 4, v(go)); a('s_lshl_b32', 's8', 's13', 7); a('v_add_u32', v(go), 's8', v(go))
    a('v_xor_b32', v(lw), v(t), v(u)); a('v_and_b32', v(lw), 7, v(lw)); a('v_lshlrev_b32', v(lw), 4, v(lw)); a('v_lshl_add_u32', v(lw), v(t), 7, v(lw)); a('v_add_u32', v(lw), 's62', v(lw))
    a('s_lshl_b32', 's8', 's10', 1); a('v_xor_b32', v(lr), 's8', v(u)); a('v_lshlrev_b32', v(lr), 4, v(lr)); a('v_lshl_add_u32', v(t), v(q), 5, v(u)); a('v_lshl_add_u32', v(lr), v(t), 7, v(lr))
    a('v_bfe_u32', v(t), 'v0', 3, 1); a('v_lshl_add_u32', v(lr), v(t), 2, v(lr)); a('v_add_u32', v(lr), 's62', v(lr)); a('v_xor_b32', v(lr2), 16, v(lr))
    a('v_lshrrev_b32', v(t), 3, 'v0')
    a('v_lshlrev_b32', v(u), 1, v(u)); a('v_xor_b32', v(u), v(t), v(u)); a('v_lshlrev_b32', v(t), 8, v(t)); a('v_lshl_add_u32', v(ww), v(u), 4, v(t)); a('s_lshl_b32', 's8', 's10', 13); a('s_add_u32', 's8', 's8', 's63'); a('v_add_u32', v(ww), 's8', v(ww)); a('v_xor_b32', v(ww2), 16, v(ww))
    rel, b_, o_, y_, c_, base = X, X+1, X+2, X+3, X+4, X+5
    a('v_and_b32', v(t), 1, v(q)); a('v_lshlrev_b32', v(base), 14, v(t)); a('v_add_u32', v(base), 's63', v(base))
    a('s_lshl_b32', 's8', 's12', 5); a('s_lshl2_add_u32', 's8', 's10', 's8'); a('s_sub_u32', 's8', 's8', 's14')
    a('v_lshrrev_b32', v(t), 5, 'v0'); a('v_lshl_add_u32', v(rel), v(t), 4, 's8')
    lsp2 = newlabel('La2'); lj2 = newlabel('La2')
    a('s_cmp_eq_u32', 's9', 20); a('s_cbranch_scc1', lsp2)
    a('v_lshl_add_u32', v(base), v(n), 8, v(base)); a('s_and_b32', 's15', 's11', 1); a('v_and_b32', v(X+6), 7, 'v0')
    for tt in range(4):
        if tt: a('v_add_u32', v(rel), 1, v(rel))
        a('v_mul_u32_u24', v(b_), 13, v(rel)); a('v_lshrrev_b32', v(b_), 8, v(b_)); a('v_mul_u32_u24', v(b_), 20, v(b_)); a('v_sub_u32', v(o_), v(rel), v(b_))
        a('v_lshrrev_b32', v(y_), 1, v(o_)); a('v_mul_u32_u24', v(y_), 5, v(y_)); a('v_and_b32', v(u), 1, v(o_)); a('v_add_u32', v(y_), v(y_), v(u))
        a('v_add_u32', v(c_), 1, v(y_)); a('v_sub_u32', v(y_), 39, v(y_)); a('v_cmp_gt_u32', 'vcc', 8, v(o_)); a('v_cndmask_b32', v(c_), v(y_), v(c_), 'vcc')
        a('v_mul_u32_u24', v(y_), 5, v(o_)); a('v_subrev_u32', v(y_), 80, v(y_)); a('v_cmp_gt_u32', 'vcc', 16, v(o_)); a('v_cndmask_b32', v(c_), v(y_), v(c_), 'vcc')
        a('v_add3_u32', v(c_), v(c_), v(b_), 's15')
        a('v_lshrrev_b32', v(y_), 2, v(c_)); a('v_xor_b32', v(y_), v(y_), v(X+6)); a('v_lshl_add_u32', v(wr[tt]), v(y_), 4, v(base))
        a('v_and_b32', v(c_), 3, v(c_)); a('v_lshl_add_u32', v(wr[tt]), v(c_), 2, v(wr[tt]))
    a('s_branch', lj2)
    a.label(lsp2)
    a('v_and_b32', v(u), 1, v(q)); a('v_lshl_add_u32', v(u), v(u), 6, v(n)); a('v_lshlrev_b32', v(base), 7, v(u)); a('v_lshl_add_u32', v(base), v(t), 2, v(base)); a('v_add_u32', v(base), 's62', v(base))
    a('s_and_b32', 's8', 's10', 1); a('s_lshl_b32', 's8', 's8', 1); a('s_add_u32', 's8', 's8', 4); a('v_xor_b32', v(u), 's8', v(n)); a('v_and_b32', v(u), 7, v(u))
    a('v_lshl_add_u32', v(wr[0]), v(u), 4, v(base)); a('v_xor_b32', v(wr[2]), 16, v(wr[0]))
    a.label(lj2)
    nf, qf, st, ang, C, S = Z, Z+1, Z+2, Z+4, Z+8, Z+12
    a('v_cvt_f32_u32', v(nf), v(n)); a('v_lshlrev_b32', v(qf), 2, v(q)); a('v_cvt_f32_u32', v(qf), v(qf))
    a('v_mul_f32', v(st), fl(1/16), v(nf)); a('v_mul_f32', v(ang), v(st), v(qf)); quad_trig(a, ang, st, C, S)
    for r in range(4):
        a('v_cvt_pk_bf16_f32', v(Fr+r), v(C+r), v(S+r)); a('v_cvt_pk_bf16_f32', v(Fi+r), '-' + v(S+r), v(C+r))
    a('v_and_b32', v(u), 7, 'v0'); a('v_cvt_f32_u32', v(u), v(u))
    a('v_mul_f32', v(st), fl(1/128), v(u)); a('v_mul_f32', v(ang), v(st), v(qf)); quad_trig(a, ang, st, T2c, T2c+4)
    a('v_and_b32', v(qf), 1, v(q)); a('v_lshlrev_b32', v(qf), 2, v(qf)); a('v_cvt_f32_u32', v(qf), v(qf))
    a('v_mul_f32', v(st), fl(1/128), v(nf)); a('v_mul_f32', v(ang), v(st), v(qf)); quad_trig(a, ang, st, T1c, T1c+4)
    a('v_mul_f32', v(st), fl(1/8), v(u)); a('v_mul_f32', v(ang), v(st), v(qf)); quad_trig(a, ang, st, C, S)
    a('v_bfe_u32', v(t), 'v0', 3, 1); a('v_lshrrev_b32', v(u), 5, 'v0'); a('v_cmp_eq_u32', 'vcc', v(t), v(u)); a('v_cndmask_b32', v(u), 0, -1, 'vcc')
    for r in range(4):
        a('v_cvt_pk_bf16_f32', v(Mr+r), v(C+r), v(S+r)); a('v_cvt_pk_bf16_f32', v(Mi+r), '-' + v(S+r), v(C+r))
        a('v_and_b32', v(Mr+r), v(u), v(Mr+r)); a('v_and_b32', v(Mi+r), v(u), v(Mi+r))
    HOOK()
    for it in range(4):
        a('s_add_u32', s(44+2*it), 's38', 32*TBLK*it); a('s_addc_u32', s(45+2*it), 's39', 0)
    srd(a, 12, 's18', 's19', WB); srd(a, 56, 's20', 's21', WB)
    a('v_mov_b32', v(pl_), 0x05040100); a('v_mov_b32', v(ph_), 0x07060302); a('v_mov_b32', v(msk), 0xffff0000)
    stamp(a, 3)
    if OPT['wpf'] == 1:
        wait_lds(a, C_A1D, 1, t, u); wpf(a)
    wait_lds(a, C_A1D, 8, t, u)
    a('s_setprio', 3)
    stamp(a, 7)
    def tl():
        for it in range(4): a('global_load_dwordx4', v(AC+4*it, 4), v(go), s(44+2*it, 2), mods=SC)
    if OPT['wat'] == -1:
        tl(); wload()
        keep = set().union(*a.vm) & {('v', k) for k in range(SW, SW+32)}
        lsw = newlabel('La2'); a('s_cmp_eq_u32', 's9', 20); a('s_cbranch_scc1', lsw)
        a.raw('    s_waitcnt vmcnt(8)'); a.bytes += 4
        first = True
        a.vm = [keep]
        for b in [AC+4*i for i in range(4)]:
            if first: a('v_bitop3_b32', v(t), v(b+3), v(b), v(b), mods='bitop3:0xcf')
            else: a('v_bitop3_b32', v(t), v(t), v(b+3), v(b), mods='bitop3:0xfb')
            a('v_bitop3_b32', v(t), v(t), v(b+1), 1, mods='bitop3:0xf6'); a('v_bitop3_b32', v(t), v(t), v(b+2), S_C, mods='bitop3:0xf6')
            first = False
        a('v_and_b32', v(t), 0x10001, v(t)); a('v_cmp_ne_u32', 'vcc', 0, v(t))
        lok = newlabel('La2'); a('s_cbranch_vccz', lok)
        a.label(lsw)
        poll_tags(a, tl, [AC+4*i for i in range(4)], t, 1, XS[0])
        a.label(lok)
    else:
        poll_tags(a, tl, [AC+4*i for i in range(4)], t, 1, XS[0])
    if OPT['wpf'] == 2: wpf(a)
    stamp(a, 8)
    for it in range(4): a('ds_write_b128', v(lw), v(AC+4*it, 4), mods=f'offset:{4096*it}')
    a('v_mov_b32', v(t), 's61'); a('v_mov_b32', v(u), 1); a.wait(lgkm=0); lds_cnt_add(a, t, u)
    if OPT['wat'] == 0: wload()
    lq = newlabel('La2'); a.label(lq)
    a('ds_read_b32', v(u), v(t)); a('v_readfirstlane_b32', 's40', v(u)); a('s_cmp_lt_u32', 's40', 4); a('s_cbranch_scc1', lq)
    stamp(a, 9)
    for tt in range(4):
        for al in range(4): a('ds_read_b32', v(Z+4*tt+al), v(lr2 if tt & 2 else lr), mods=f'offset:{1024*al + 8*(tt & 1)}')
    def w_regs():
        lg3 = newlabel('La2'); lg4 = newlabel('La2')
        a('s_cmp_eq_u32', 's9', 20); a('s_cbranch_scc1', lg4)
        for k in range(4):
            for hh in range(2):
                for j in range(2):
                    r_, i_ = SW+4*k+2*hh+j, SW+16+4*k+2*hh+j
                    a('v_perm_b32', v(IL+4*hh+2*j), v(i_), v(r_), v(pl_)); a('v_perm_b32', v(IL+4*hh+2*j+1), v(i_), v(r_), v(ph_))
                a('ds_write_b128', v(ww2 if hh else ww), v(IL+4*hh, 4), mods=f'offset:{2048*k}')
        subbar_s(a, 's60', 4, t, u)
        for tt in range(4):
            for r in range(4): a('ds_read_b32', v(Wv+8*tt+4+r), v(wr[tt]), mods=f'offset:{4096*r}')
        a('s_branch', lg3)
        a.label(lg4)
        for tt in range(4):
            for r in range(4): a('ds_read_b32', v(Wv+8*tt+4+r), v(wr[tt & 2]), mods=f'offset:{8*(tt & 1) + 2048*r}')
        subbar_s(a, 's60', 4, t, u)
        pend = a.snap[lg3][0]
        a.label(lg3)
        a.lg = list(pend[1])
    def cm(tt, cc, ss, conj, swap_in, swap_out):
        for r in range(4):
            re, im = AC+8*tt+r, AC+8*tt+4+r
            if swap_in: re, im = im, re
            x0, x1 = X+2*(r & 1), X+2*(r & 1)+1
            a('v_mul_f32', v(x0), v(re), v(cc+r)); a('v_mul_f32', v(x1), v(im), v(cc+r))
            if conj: a('v_fmac_f32', v(x0), v(im), v(ss+r)); a('v_fma_f32', v(x1), '-' + v(re), v(ss+r), v(x1))
            else: a('v_fma_f32', v(x0), '-' + v(im), v(ss+r), v(x0)); a('v_fmac_f32', v(x1), v(re), v(ss+r))
            if swap_out: x0, x1 = x1, x0
            a('v_cvt_pk_bf16_f32', v(Z+4*tt+r), v(x0), v(x1))
    def mm(tt, dataA, R_, I_):
        for k, M in enumerate((R_, I_)):
            if dataA: a(MF, v(AC+8*tt+4*k, 4), v(Z+4*tt, 4), v(M, 4), 0)
            else: a(MF, v(AC+8*tt+4*k, 4), v(M, 4), v(Z+4*tt, 4), 0)
    for tt in range(4): mm(tt, True, Fr, Fi)
    if OPT['wat'] == 1: wload()
    for tt in range(4): cm(tt, T1c, T1c+4, True, False, False); mm(tt, False, Mr, Mi)
    if OPT['wat'] == 2: wload()
    stamp(a, 11)
    w_regs()
    stamp(a, 12)
    for tt in range(4):
        for r in range(4):
            a('v_lshlrev_b32', v(Wv+8*tt+r), 16, v(Wv+8*tt+4+r)); a('v_and_b32', v(Wv+8*tt+4+r), v(msk), v(Wv+8*tt+4+r))
        cm(tt, Wv+8*tt, Wv+8*tt+4, False, False, True); mm(tt, True, Mr, Mi)
    for tt in range(4): cm(tt, T2c, T2c+4, False, True, True); mm(tt, False, Fr, Fi)
    a('v_bfe_u32', v(t), 'v0', 3, 1); a('v_xor_b32', v(t), 1, v(t))
    for tt in range(4):
        for r in range(4):
            a('v_cvt_pk_bf16_f32', v(Z+4*tt+r), v(AC+8*tt+4+r), v(AC+8*tt+r)); a('v_and_or_b32', v(Z+4*tt+r), v(Z+4*tt+r), -2, v(t))
            a('ds_write_b32', v(lr2 if tt & 2 else lr), v(Z+4*tt+r), mods=f'offset:{1024*r + 8*(tt & 1)}')
    stamp(a, 10)
    a('s_add_u32', 's8', 's61', 8)
    subbar_s(a, 's8', 4, t, u)
    for it in range(4): a('ds_read_b128', v(AC+4*it, 4), v(lw), mods=f'offset:{4096*it}')
    for it in range(4): a('global_store_dwordx4', v(go), v(AC+4*it, 4), s(44+2*it, 2), mods=SC)
    a('s_setprio', 0)
    stamp(a, 13)
    if OPT['stop'] == 2: a('s_branch', 'Lfin'); return
    if OPT['dl'] == 0:
        ll = newlabel('La2'); a('s_and_b32', 's8', 's3', 14); a('s_cmp_lg_u32', 's8', 2); a('s_cbranch_scc1', ll)
        a('s_and_b32', 's99', 's3', 1); a('s_lshl_b32', 's99', 's99', 2); a('s_or_b32', 's99', 's99', 18); a('s_mov_b32', 's62', 0)
        arrive(a, C_A2+4+3, t, u)
        await_cnt(a, C_U+1, 4, t, u)
        a('s_branch', 'LB2p')
        a.label(ll)
    lh8 = newlabel('La2'); a('s_cmp_ge_u32', 's3', 8); a('s_cbranch_scc1', lh8)
    arrive(a, C_A2+4+3, t, u)
    a('s_branch', 'LA3')
    a.label(lh8)
    lt4 = newlabel('La2'); a('s_cmp_ge_u32', 's7', ND); a('s_cbranch_scc1', lt4)
    a('s_setprio', 3); a('s_mov_b32', 's52', L_T3); a3_tables(a)
    a.label(lt4)
    arrive(a, C_A2+3, t, u, vm=True)
    a('s_branch', 'Lfin')

def B1(a):
    import fin16
    fin16.L_VI, fin16.L_KI, fin16.WS_U, fin16.C_B1 = L_VI, L_KI, WS_U, C_B1
    fin16.B1(a)
def B3(a):
    import fin16
    fin16.L_VI, fin16.L_KI, fin16.WS_U, fin16.C_HZ, fin16.C_QL, fin16.C_Q, fin16.LS = L_VI, L_KI, WS_U, C_HZ, C_QL, C_Q, LS
    fin16.B3(a)

def auxO(a):
    a.label('LauxO')
    R = RegAlloc(1, 120); t = R.alloc(); u = R.alloc(); vo = R.alloc(); vh = R.alloc(); vh2 = R.alloc(); wa = R.alloc(); wh = R.alloc()
    T = R.alloc(12); D = R.alloc(54)
    a('s_sub_u32', 's62', 's3', 10); a('s_lshl_b32', 's62', 's62', 11)
    a('v_lshlrev_b32', v(t), 4, 'v0'); a('v_add_u32', v(vo), 's62', v(t)); a('v_subrev_u32', v(vh), 128, v(t)); a('v_subrev_u32', v(vh2), 112, v(t))
    a('v_add_u32', v(wh), L_CH, v(t)); a('v_add_u32', v(wa), 's62', v(wh))
    for k in range(4): a('v_mov_b32', v(T+k), 0)
    for lc in range(3): u_pad(a, lc, T, t)
    if OPT['hgate']: wait_lds(a, C_B1, OPT['hgate'], t, u)
    for lc in range(3):
        h_srd(a, lc)
        for b in range(2):
            a('buffer_load_dwordx4', v(D+18*lc+6*b, 4), v(vo), 's[44:47]', 0, mods=f'offen offset:{1024*b}')
            a('buffer_load_dwordx2', v(D+18*lc+6*b+4, 2), v(vo), 's[44:47]', 0, mods=f'offen offset:{1024*b+16}')
        h_load(a, D+18*lc+12, vh, vh2, 0)
    for lc in range(3):
        for b in range(2): h_expand(a, D+18*lc+6*b, T, wa, 128 + 1024*b)
        a('s_mov_b64', 'exec', 0xff)
        h_expand(a, D+18*lc+12, T, wh, 0)
        a('s_mov_b64', 'exec', -1)
        if lc < 2: a('v_add_u32', v(wa), CHS, v(wa)); a('v_add_u32', v(wh), CHS, v(wh))
    a('v_mov_b32', v(t), L_CNT + 4*C_H); a('v_mov_b32', v(u), 2); a.wait(lgkm=0); lds_cnt_add(a, t, u)
    stamp(a, 6)
    a('s_branch', 'LB2')

def B2(a):
    a.label('LB2')
    R = RegAlloc(1, 130)
    t = R.alloc(); u = R.alloc(); lw = R.alloc(); U = R.alloc(8); go = R.alloc(); fa = R.alloc(); msk = R.alloc()
    n = R.alloc(); q = R.alloc(); aa = R.alloc(); ba = R.alloc(); ba2 = R.alloc(); ia = R.alloc(); ra = R.alloc()
    fi = R.alloc(); sa = R.alloc(); sa2 = R.alloc(); sr = R.alloc(); zo = R.alloc(); ca = R.alloc()
    ACC = R.alloc(16); NW = 6; RA = R.alloc(4*NW + 2); RA2 = R.alloc(4*NW + 2); NBR = 6; RB = R.alloc(4*NBR)
    a.wait(lgkm=0)
    a('s_lshr_b32', 's9', 's3', 2); a('s_and_b32', 's10', 's3', 3)
    a('s_mul_i32', 's15', 's9', CHS); a('s_add_u32', 's15', 's15', L_CH + O_U)
    a('v_lshrrev_b32', v(t), 3, 'v0'); a('v_lshlrev_b32', v(t), 4, v(t)); a('v_lshl_add_u32', v(lw), 'v0', 4, v(t))
    a('s_mul_i32', 's8', 's10', 8*144); a('s_add_u32', 's8', 's8', 's15'); a('v_add_u32', v(lw), 's8', v(lw))
    a('s_add_u32', 's13', 's53', 's9')
    a('s_lshl_b32', 's8', 's13', 12); a('s_lshl_b32', 's12', 's10', 10); a('s_add_u32', 's8', 's8', 's12'); a('s_add_u32', 's8', 's8', WS_U)
    a('v_lshl_add_u32', v(go), 'v0', 4, 's8')
    a('s_lshl_b32', 's60', 's9', 2); a('s_add_u32', 's60', 's60', L_CNT + 4*C_U)
    a('s_sub_u32', 's11', 's10', 's9'); a('s_and_b32', 's11', 's11', 3); a('s_lshl2_add_u32', 's99', 's9', 's11'); a('s_or_b32', 's99', 's99', 16)
    a('s_cmp_lt_u32', 's7', ND); a('s_cselect_b32', 's63', 1, 0); a('s_cmp_eq_u32', 's5', 0); a('s_cselect_b32', 's63', 's63', 0)
    lj_ = newlabel('Lb2'); a('s_cmp_eq_u32', 's63', 0); a('s_cbranch_scc1', lj_)
    J = lambda l: sum((16 | lc << 2 | ro) << (5*i) for i, (lc, ro) in enumerate(l))
    lists = [[J([(0, 0)]), J([(1, 0)]), J([(0, 3), (1, 3)]), J([(0, 1), (1, 1)])],
             [J([(0, 2), (0, 0)]), J([(1, 2), (1, 0)]), J([(0, 3), (0, 1)]), J([(1, 3), (1, 1)])],
             [J([(0, 0)]), J([(1, 0)]), J([(0, 3), (1, 3), (0, 2)]), J([(0, 1), (1, 1), (1, 2)])]][OPT['dl']]
    a('s_mov_b32', 's56', lists[0] | lists[1] << 16); a('s_mov_b32', 's57', lists[2] | lists[3] << 16)
    a('s_lshl_b32', 's8', 's10', 4); a('s_lshr_b64', 's[56:57]', 's[56:57]', 's8'); a('s_and_b32', 's99', 's56', 0x7fff)
    a.label(lj_)
    a('s_mov_b32', 's62', 1)
    a.label('LB2p')
    a('s_bfe_u32', 's9', 's99', (2 << 16) | 2); a('s_and_b32', 's11', 's99', 3)
    a('s_add_u32', 's13', 's53', 's9')
    a('s_mul_i32', 's15', 's9', CHS); a('s_add_u32', 's15', 's15', L_CH + O_U)
    a('v_and_b32', v(n), 15, 'v0'); a('v_lshrrev_b32', v(q), 4, 'v0')
    a('v_mov_b32', v(msk), 0xffff0000)
    a('v_and_b32', v(t), 1, 'v0'); a('v_mul_u32_u24', v(aa), 529*16, v(t))
    a('v_bfe_u32', v(t), 'v0', 1, 1); a('v_mul_u32_u24', v(t), 264*16, v(t)); a('v_add_u32', v(aa), v(aa), v(t))
    a('v_bfe_u32', v(t), 'v0', 2, 2); a('v_lshl_add_u32', v(aa), v(t), 5, v(aa))
    a('s_cmp_eq_u32', 's11', 0); a('s_cselect_b32', 's12', 1, 0)
    a('s_add_u32', 's14', 's12', 8); a('v_lshl_add_u32', v(aa), v(q), 's14', v(aa))
    a('s_cmp_eq_u32', 's11', 1); a('s_cselect_b32', 's14', 2048, 0)
    a('s_cmp_eq_u32', 's11', 3); a('s_cselect_b32', 's14', 1040, 's14')
    a('s_add_u32', 's8', 's15', 's14'); a('s_sub_u32', 's8', 's8', O_U)
    a('v_add_u32', v(aa), 's8', v(aa))
    a('s_add_u32', 's14', 's12', 1); a('v_lshlrev_b32', v(t), 's14', v(q)); a('v_sub_u32', v(t), v(t), v(n))
    a('s_lshl_b32', 's14', 's12', 4); a('s_sub_u32', 's14', 31, 's14'); a('v_add_u32', v(t), 's14', v(t))
    a('v_mul_u32_u24', v(ba), 144, v(t)); a('v_add_u32', v(ba), 's15', v(ba))
    a('s_cmp_eq_u32', 's11', 2); a('s_cselect_b32', 's14', 31, 15)
    a('v_sub_u32', v(t), 's14', v(n)); a('v_mul_u32_u24', v(ia), 144, v(t)); a('v_add_u32', v(ia), 's15', v(ia))
    a('v_lshlrev_b32', v(t), 5, v(q)); a('v_sub_u32', v(ia), v(ia), v(t))
    a('s_add_u32', 's59', 's15', O_RED - O_U); a('v_lshl_add_u32', v(ra), 'v0', 4, 's59')
    lnh = newlabel('Lb2'); a('s_cmp_lg_u32', 's11', 3); a('s_cbranch_scc1', lnh)
    a('v_and_b32', v(t), 7, 'v0'); a('v_lshlrev_b32', v(u), 1, v(q)); a('v_sub_u32', v(u), v(u), v(t)); a('v_add_u32', v(u), 31, v(u))
    a('v_mul_u32_u24', v(ba), 144, v(u)); a('v_add_u32', v(ba), 's15', v(ba))
    a('v_and_b32', v(u), 8, 'v0'); a('v_xor_b32', v(u), 8, v(u)); a('v_lshl_add_u32', v(ba), v(u), 1, v(ba)); a('v_lshl_add_u32', v(ba2), v(u), 1, v(ba))
    a('v_lshl_add_u32', v(t), v(q), 3, v(t)); a('v_lshlrev_b32', v(t), 4, v(t)); a('v_and_b32', v(u), 8, 'v0'); a('v_lshl_add_u32', v(t), v(u), 7, v(t))
    a('v_add_u32', v(ra), 's59', v(t))
    a.label(lnh)
    a('s_lshl_b32', 's8', 's13', 1); a('s_sub_u32', 's8', 's8', 's96'); a('s_lshl_b32', 's8', 's8', 3)
    a('s_lshr_b64', 's[56:57]', 's[54:55]', 's8'); a('s_lshl_b32', 's58', 's56', 16)
    a('s_cmp_gt_u32', 's3', 5); a('s_cselect_b32', 's98', 2, 1); a('s_sub_u32', 's98', 's3', 's98'); a('s_min_u32', 's98', 's98', 8)
    a('s_cmp_lg_u32', 's12', 0); a('s_cselect_b32', 's98', 8, 's98')
    for x in range(16): a('v_mov_b32', v(ACC+x), 0)
    a('s_lshl_b32', 's14', 's9', 3); a('s_add_u32', 's14', 's14', L_CNT + 4*C_RED); a('v_mov_b32', v(ca), 's14')
    a('v_and_b32', v(u), 7, 'v0'); a('v_lshl_add_u32', v(u), v(q), 3, v(u)); a('s_lshl_b32', 's8', 's12', 11); a('s_add_u32', 's8', 's8', 's59'); a('s_add_u32', 's8', 's8', 4096)
    a('v_lshl_add_u32', v(fi), v(u), 4, 's8')
    a('v_sub_u32', v(t), 15, v(n)); a('v_lshlrev_b32', v(u), 1, v(q)); a('v_sub_u32', v(u), 6, v(u))
    a('v_xor_b32', v(u), v(t), v(u)); a('v_and_b32', v(u), 7, v(u)); a('v_lshlrev_b32', v(u), 4, v(u))
    a('v_lshl_add_u32', v(sa), v(t), 7, v(u)); a('v_add_u32', v(sa), 's8', v(sa)); a('v_xor_b32', v(sa2), 16, v(sa))
    a('v_lshrrev_b32', v(t), 3, 'v0'); a('v_xor_b32', v(u), v(t), 'v0'); a('v_and_b32', v(u), 7, v(u)); a('v_lshlrev_b32', v(u), 4, v(u))
    a('v_lshl_add_u32', v(sr), v(t), 7, v(u)); a('v_add_u32', v(sr), 's8', v(sr))
    a('s_lshl_b32', 's8', 's13', 12); a('s_lshl_b32', 's14', 's12', 11); a('s_sub_u32', 's8', 's8', 's14'); a('s_add_u32', 's8', 's8', WS_U + 2048)
    a('v_lshl_add_u32', v(zo), 'v0', 4, 's8')
    a('s_cmp_eq_u32', 's62', 0); a('s_cbranch_scc1', 'LB2go')
    stamp(a, 7)
    lo2 = newlabel('Lb2'); lo3 = newlabel('Lb2')
    a('s_cmp_lg_u32', 's5', 0); a('s_cbranch_scc1', lo3)
    wait_lds(a, OPT['eg'][0], OPT['eg'][1], t, u)
    a('s_branch', lo2)
    a.label(lo3)
    lx = newlabel('Lb2'); a('s_cmp_ge_u32', 's3', 10); a('s_cbranch_scc1', lx)
    arrive(a, C_B1D, t, u, vm=True)
    stamp(a, 6)
    a.label(lx)
    wait_lds(a, C_B1D, 10, t, u)
    a.label(lo2)
    stamp(a, 2)
    a('s_lshl_b32', 's8', 's63', 12); a('v_subrev_u32', v(fa), 's8', v(go))
    def ul():
        a('global_load_dwordx4', v(U, 4), v(go), WS_, mods=SC); a('global_load_dwordx4', v(U+4, 4), v(fa), WS_, mods=SC)
    poll_tags(a, ul, [U, U+4], t, 1, XS[0])
    sk2 = newlabel('Lb2'); a('s_cmp_eq_u32', 's63', 0); a('s_cbranch_scc1', sk2)
    a('v_subrev_u32', v(t), CHS, v(lw))
    a('ds_write_b128', v(t), v(U+4, 4))
    a.label(sk2)
    a('ds_write_b128', v(lw), v(U, 4))
    await_cnt(a, C_H, 4, t, u)
    stamp(a, 8)
    subbar_s(a, 's60', 4, t, u)
    a.label('LB2go')
    PD = 3
    def rdA(ring, w, off, last):
        if w > last: return
        a('ds_read_b128', v(ring + 4*(w % NW), 4), v(aa), mods=f'offset:{off + 16*w}')
        if w and w % NW == 0: a('ds_read_b64', v(ring+4*NW, 2), v(aa), mods=f'offset:{off + 16*w}')
    def rdB(tau, last, hi=False):
        if tau > last: return
        a('ds_read_b128', v(RB + 4*(tau % NBR), 4), v(ba2 if (hi and tau % 8 == 7) else ba), mods=f'offset:{144*(tau >> 3) + 16*(tau & 7)}')
    a('s_cmp_eq_u32', 's11', 3); a('s_cbranch_scc1', 'LB2hi')
    rdB(0, 32); rdA(RA, 1, 0, 33)
    for k in range(PD): rdB(k+1, 32); rdA(RA, k+2, 0, 33)
    lp_ = newlabel('Lb2'); a('s_cmp_eq_u32', 's11', 0); a('s_cbranch_scc1', lp_)
    a('s_setprio', 1)
    a('ds_read_b128', v(U, 4), v(ia), mods='offset:96'); a('ds_read_b128', v(U+4, 4), v(ia), mods='offset:112')
    for x in range(16):
        e = 15 - x
        if e & 1: a('v_and_b32', v(ACC+x), v(msk), v(U + (e >> 1)))
        else: a('v_lshlrev_b32', v(ACC+x), 16, v(U + (e >> 1)))
        a('v_mul_f32', v(ACC+x), 's58', v(ACC+x))
    pend = a.snap[lp_][0]
    a.label(lp_)
    a.lg = list(pend[1])
    stamp(a, 9)
    for tau in range(32):
        if tau == 16:
            a.raw('    s_cmp_eq_u32 s12, 0'); a.raw('    s_cbranch_scc1 LB2r'); a.bytes += 8
            a.snap.setdefault('LB2r', []).append((list(a.vm), list(a.lg)))
        d0 = (4*(tau+1)) % (4*NW)
        for k, (acc, dd, bt) in enumerate(((2, d0, tau), (3, d0+2, tau), (0, d0, tau+1), (1, d0+2, tau+1))):
            a(MF, v(ACC+4*acc, 4), v(RA+dd, 4), v(RB + 4*(bt % NBR), 4), v(ACC+4*acc, 4))
            if k == 1: rdB(tau + PD + 1, 32)
            if k == 3: rdA(RA, tau + PD + 2, 0, 33)
    a.label('LB2r'); a._nop(8)
    stamp(a, 10)
    lf = newlabel('Lb2')
    a('v_mov_b32', v(u), 1)
    a('s_cmp_lg_u32', 's11', 1); a('s_cbranch_scc1', lf)
    for tt in range(4): a('ds_write_b128', v(ra), v(ACC+4*tt, 4), mods=f'offset:{1024*tt}')
    a.wait(lgkm=0); lds_cnt_add(a, ca, u)
    a('s_branch', 'LB2end')
    a.label('LB2hi')
    a('s_setprio', 1)
    rdA(RA, 0, 0, 16); rdA(RA2, 0, 2048, 16)
    for k in range(PD): rdB(k, 15, True); rdA(RA, k+1, 0, 16); rdA(RA2, k+1, 2048, 16)
    stamp(a, 9)
    for tau in range(16):
        d0 = (4*tau) % (4*NW)
        for k, (acc, ring, dd) in enumerate(((0, RA, d0), (1, RA, d0+2), (2, RA2, d0), (3, RA2, d0+2))):
            a(MF, v(ACC+4*acc, 4), v(ring+dd, 4), v(RB + 4*(tau % NBR), 4), v(ACC+4*acc, 4))
            if k == 0: rdB(tau + PD, 15, True)
            if k == 1: rdA(RA, tau + PD + 1, 0, 16)
            if k == 3: rdA(RA2, tau + PD + 1, 2048, 16)
    stamp(a, 10)
    a('v_mov_b32', v(u), 1)
    for acc in range(4): a('ds_write_b128', v(ra), v(ACC+4*acc, 4), mods=f'offset:{4096 + 2048*(acc >> 1) + 512*(acc & 1)}')
    a.wait(lgkm=0)
    a('s_mov_b64', 'exec', 1); a('ds_add_u32', v(ca), v(u)); a('ds_add_u32', v(ca), v(u), mods='offset:4'); a('s_mov_b64', 'exec', -1)
    a('s_branch', 'LB2end')
    a.label(lf)
    a('s_lshl_b32', 's8', 's11', 1); a('v_add_u32', v(t), 's8', v(ca)); a('s_add_u32', 's14', 's12', 1)
    lp = newlabel('Lb2'); a.label(lp)
    a('ds_read_b32', v(u), v(t)); a('v_readfirstlane_b32', 's40', v(u)); a('s_cmp_lt_u32', 's40', 's14'); a('s_cbranch_scc1', lp)
    for tt in range(4): a('ds_read_b128', v(RA+4*tt, 4), v(fi), mods=f'offset:{512*tt}')
    ls = newlabel('Lb2'); a('s_cmp_eq_u32', 's12', 0); a('s_cbranch_scc1', ls)
    for tt in range(4): a('ds_read_b128', v(RB+4*tt, 4), v(ra), mods=f'offset:{1024*tt}')
    for x in range(16): a('v_add_f32', v(ACC+x), v(ACC+x), v(RB+x))
    a.label(ls)
    a('s_mov_b32', 'exec_lo', 0xff00ff00); a('s_mov_b32', 'exec_hi', 0xff00ff00)
    for x in range(16): a('v_add_f32', v(ACC+x), v(ACC+x), v(RA+x))
    a('s_mov_b64', 'exec', -1)
    for jj in range(8):
        a('v_cvt_pk_bf16_f32', v(U+jj), v(ACC+15-2*jj), v(ACC+14-2*jj)); tag2(a, U+jj, jj)
        if jj == 3: a('ds_write_b128', v(sa), v(U, 4))
    a('ds_write_b128', v(sa2), v(U+4, 4))
    a('ds_read_b128', v(RB, 4), v(sr)); a('ds_read_b128', v(RB+4, 4), v(sr), mods='offset:1024')
    a('global_store_dwordx4', v(zo), v(RB, 4), WS_, mods=SC)
    a('global_store_dwordx4', v(zo), v(RB+4, 4), WS_, mods=f'offset:1024 {SC}')
    a('s_cmp_eq_u32', 's5', 0); a('s_cbranch_scc1', 'LB2end')
    arrive(a, C_HZ, t, u, vm=True)
    a.label('LB2end')
    a('s_setprio', 0)
    a('s_mov_b32', 's62', 0); a.wait(lgkm=0)
    a('s_lshr_b32', 's99', 's99', 5); a('s_cbranch_scc1', 'LB2p')
    a('s_cmp_eq_u32', 's5', 0); a('s_cbranch_scc1', 'LA3' if OPT['stop'] == 0 else 'Lfin')
    a('s_cmp_eq_u32', 's98', 8); a('s_cbranch_scc1', 'LB3')
    srd(a, 44, 's22', 's23', 2048*1280)
    a('v_mul_u32_u24', v(t), 26, 'v0'); a('v_lshrrev_b32', v(t), 8, v(t)); a('v_mul_u32_u24', v(u), 1280 - 160, v(t)); a('v_lshl_add_u32', v(u), 'v0', 4, v(u))
    a('s_lshl_b32', 's8', 's6', 3); a('s_add_u32', 's8', 's8', 's98'); a('s_mul_i32', 's8', 's8', 16*1280); a('s_mul_i32', 's14', 's4', 160); a('s_add_u32', 's8', 's8', 's14')
    a('s_mul_i32', 's14', 's98', 2*1296); a('s_mov_b32', 'exec_hi', 0xff)
    for k in range(4):
        a('s_add_u32', 'm0', 's14', L_VI + (k >> 1)*1296 + (k & 1)*640)
        a('buffer_load_dwordx4', v(u), 's[44:47]', 's8', mods='offen lds')
        if k < 3: a('s_addk_i32', 's8', 4*1280)
    a('s_mov_b64', 'exec', -1)
    arrive(a, C_QL, t, u, vm=True)
    a('s_branch', 'LB3')

def build(stamps=False):
    STAMPS[0] = stamps
    roles.WS_ST = 0xD00000
    for it in range(4):
        roles._lbl[0] = 0
        a = Asm(); a.ignore = {('v', k) for k in (159, 162, 163, 164, 165, 166, 167)}
        a.raw(f"; @launch grid=(256,1,1) block=(768,1,1) lds={LDS_TOTAL}")
        a.raw('.amdgcn_target "amdgcn-amd-amdhsa--gfx950"\n.text')
        entry(a)
        A1(a); auxE(a); A2(a, lambda: h_even(a, 1)); B1(a); auxO(a); B2(a)
        A3(a); a('s_branch', 'Lfin')
        B3(a)
        a.label('Lfin'); stamp_flush(a, 0); a('s_endpgm')
        a.raw('.p2align 10')
        if OPT['stop']: a.raw('.fill 4096, 4, 0xbf800000')
        a.raw(kernel_desc(KNAME, 168, 102))
        hi = max(0, (a.bytes + 1023)//1024*1024 - 12288)
        if hi == CODE_HI[0]: break
        CODE_HI[0] = hi
    print('est bytes', a.bytes, 'instrs', a.nins, 'maxv', a.maxv)
    return a.text()

if __name__ == '__main__':
    open('m16.s', 'w').write(build(False))
    open('m16st.s', 'w').write(build(True))
    OPT['wpf'] = 1; open('m16a.s', 'w').write(build(False)); open('m16ast.s', 'w').write(build(True))
    OPT['wpf'] = 2; open('m16b.s', 'w').write(build(False))
    OPT['wat'] = 2; open('m16c.s', 'w').write(build(False)); open('m16cst.s', 'w').write(build(True))
    OPT['wpf'] = 1; open('m16d.s', 'w').write(build(False))
```

```python
import sys
from asmlib import *
import roles
from roles import (X_, WR_, WI_, Q_, K_, V_, SK_, H_, D_, OUT_, DBG_, WS_, HSZ, newlabel, stamp, stamp_flush, sincos, srd, quad_voff, STAMPS)
KNAME = "concat_heads__spectral_gfnet__ssm_conv_h3__prompt_kernel"
SPIN = 1 << 15
SC = 'sc1'
TBLK = 161*128
WS_U = 0x300000
L_CNT = 0
USZ = 40*144; O_U = HSZ; O_RED = 22784; CHS = 30976; L_CH = 256
L_FREE = L_CH + 2*CHS
L_P1 = 163840 - 47616
L_EI = L_P1; EP = 2880; L_XR = L_EI + 8*EP
L_KI = L_P1; L_VI = L_KI + 17*1296
LDS_TOTAL = 163840
L_W1 = L_FREE; L_T1 = L_FREE + 32768
L_T2 = L_T1 + 16384; L_W2 = L_T2 + 16384
assert L_W2 + 32768 <= 163840 and L_T2 <= L_P1 and L_FREE % 256 == 0 and L_P1 % 256 == 0 and L_XR % 128 == 0
TABH, TABG = L_CH + O_RED, L_CH + CHS + O_RED
TABW = [TABH + 6144, TABG + 6144, L_CH + O_U]
L_T3 = L_W1
L_T3B = 163840 - 16384
roles.L_CNT, roles.L_KI, roles.L_VI = L_CNT, L_KI, L_VI
from roles import subbar, arrive, await_cnt, b13_lane
import pk17 as P
P.L_CNT = L_CNT
from pk17 import lds_cnt_add, subbar_s, tag_consts, tag1, tag2, poll_tags, wait_lds, h_srd, h_load, h_expand, S_M, S_C
from fin16 import row_offsets
roles.L_CNT, roles.L_KI, roles.L_VI = L_CNT, L_KI, L_VI
C_A1, C_A1D, C_W1, C_WR, C_A3, C_B1, C_B1D, C_H, C_Q, C_QL, C_A2, C_X, C_HZ = 0, 1, 2, 3, 4, 5, 6, 7, 8, 9, 10, 19, 23
C_ST = 30; C_SP = 31; L_SPB = 160
C_U, C_RED = 20, 24
XS, LS = [8], [8]
OPT = dict(wgate=8, hgate=1, stop=0, eg=(C_A2, 1), tm=None, wearly=1, wlate=0, wpf=0, wat=1, dl=1, wal=2, wsp=0, a3p=1)
ND = 33
MF = 'v_mfma_f32_16x16x32_bf16'

def bar0(a):
    a.wait(lgkm=0)
    a('s_lshl_b32', 's96', 's53', 1); a('s_and_b32', 's96', 's96', -4); a('s_min_u32', 's96', 's96', 1272)
    a('s_load_dwordx2', 's[54:55]', D_, 's96')
    stamp(a, 1)
    a('s_barrier')

def u_pad(a, slc, Zr, t):
    a('s_mul_i32', 's8', slc, CHS); a('s_add_u32', 's8', 's8', L_CH + O_U + 32*144)
    a('v_lshl_add_u32', v(t), 'v0', 4, 's8')
    a('ds_write_b128', v(t), v(Zr, 4))
    a('s_mov_b64', 'exec', 0xff); a('ds_write_b128', v(t), v(Zr, 4), mods='offset:1024'); a('s_mov_b64', 'exec', -1)

CODE_HI = [6144]
def entry(a):
    a.raw(f".globl {KNAME}\n.p2align 12\n.type {KNAME},@function\n{KNAME}:")
    a('s_cmp_ge_u32', 's2', 256); a('s_cbranch_scc1', 'Lexit')
    if STAMPS[0]:
        for i in range(1, 16): a('s_mov_b32', s(64+2*i), 0)
    stamp(a, 0)
    a('s_load_dwordx16', 's[16:31]', 's[0:1]', 0)
    a('s_load_dwordx8', 's[32:39]', 's[0:1]', 64)
    a('s_getpc_b64', 's[42:43]'); a('s_and_b32', 's42', 's42', 0xfffff000)
    a('s_bitcmp1_b32', 's2', 3); a('s_cselect_b32', 's8', CODE_HI[0], 0); a('s_add_u32', 's42', 's42', 's8'); a('s_addc_u32', 's43', 's43', 0)
    a('v_lshlrev_b32', 'v2', 4, 'v0'); a('v_mov_b32', 'v3', 's43')
    a('v_add_co_u32', 'v2', 'vcc', 's42', 'v2'); a('v_addc_co_u32', 'v3', 'vcc', 0, 'v3', 'vcc')
    a('global_load_dwordx4', 'v[164:167]', 'v[2:3]', 'off')
    a('v_lshrrev_b32', 'v1', 6, 'v0'); a('v_and_b32', 'v0', 63, 'v0')
    a('v_readfirstlane_b32', 's3', 'v1')
    a('s_and_b32', 's4', 's2', 7); a('s_bfe_u32', 's5', 's2', (1 << 16) | 3); a('s_lshr_b32', 's6', 's2', 4)
    a('s_lshl3_add_u32', 's7', 's6', 's4')
    tag_consts(a)
    a('s_mul_i32', 's53', 's4', 80); a('s_mul_i32', 's8', 's6', 5); a('s_add_u32', 's53', 's53', 's8'); a('s_lshl1_add_u32', 's53', 's5', 's53')
    a('v_lshlrev_b32', 'v1', 2, 'v0'); a('v_mov_b32', 'v2', 0)
    a('ds_write_b32', 'v1', 'v2', mods=f'offset:{L_CNT}')
    a('s_cmp_lg_u32', 's5', 0); a('s_cbranch_scc1', 'LentO')
    a('s_cmp_ge_u32', 's3', 8); a('s_cbranch_scc1', 'LentP')
    a('s_lshl_b32', 's9', 's3', 7); a('s_add_u32', 's9', 's9', 's7'); a('s_mul_i32', 's10', 's9', 1280)
    row_offsets(a, [1, 2, 3], 4, 's10', 1024*1280)
    a('s_mul_i32', 's11', 's3', 3072); a('s_add_u32', 's11', 's11', L_XR); a('s_mov_b32', 'm0', 's11')
    for t in range(3): a('global_load_lds_dwordx4', v(1+t), X_, mods=f'offset:{1024*t}')
    a('s_branch', 'LA1')
    a.label('LentP')
    a('s_mul_i32', 's10', 's6', 128*1280); a('s_mul_i32', 's8', 's4', 160); a('s_add_u32', 's10', 's10', 's8')
    a('s_bitcmp1_b32', 's3', 0); a('s_cselect_b32', 's8', 156, 0); a('s_add_u32', 's10', 's10', 's8'); a('s_add_u32', 's10', 's10', 64*1280)
    a('v_mul_u32_u24', 'v1', 1280, 'v0'); a('v_add_u32', 'v1', 's10', 'v1')
    a('s_bitcmp1_b32', 's3', 1); a('s_cselect_b64', 's[12:13]', V_, K_)
    a('global_load_dword', 'v163', 'v1', 's[12:13]')
    a('s_add_u32', 's8', 's53', 2); a('s_lshl_b32', 's8', 's8', 12); a('s_sub_u32', 's9', 's3', 8); a('s_mul_i32', 's9', 's9', 3072); a('s_add_u32', 's8', 's8', 's9')
    a('v_min_u32', 'v1', 23, 'v0'); a('v_lshl_add_u32', 'v1', 'v1', 7, 's8')
    a('global_load_dword', 'v162', 'v1', H_)
    a('s_branch', 'Lbar0')
    a.label('LentO')
    a('s_cmp_ge_u32', 's3', 9); a('s_cbranch_scc1', 'Lbar0')
    R = RegAlloc(1, 120)
    vo = quad_voff(a, R); t = R.alloc()
    a('s_mul_i32', 's10', 's6', 128*1280); a('s_mul_i32', 's8', 's4', 160); a('s_add_u32', 's10', 's10', 's8')
    a('s_sub_u32', 's8', 's10', 4*1280); a('v_add_u32', v(t), 's8', v(vo))
    NB = 2048*1280
    srd(a, 44, 's24', 's25', NB); srd(a, 48, 's26', 's27', NB)
    a('s_mov_b32', 'exec_hi', 0xff)
    a('s_cmp_eq_u32', 's3', 8); a('s_cbranch_scc1', 'LentH')
    a('s_mul_i32', 's11', 's3', 8*1280); a('s_add_u32', 's11', 's11', 's10')
    a('s_mul_i32', 's12', 's3', 1296); a('s_add_u32', 's12', 's12', L_KI + 1296)
    for k in range(4):
        a('s_mov_b32', 'm0', 's12')
        a('buffer_load_dwordx4', v(vo), 's[44:47]', 's11', mods='offen lds')
        a('s_add_u32', 'm0', 's12', L_VI - L_KI - 1296)
        a('buffer_load_dwordx4', v(vo), 's[48:51]', 's11', mods='offen lds')
        if k == 1: a('s_add_u32', 's11', 's11', 60*1280); a('s_addk_i32', 's12', 8*1296 - 640)
        elif k < 3: a('s_addk_i32', 's11', 4*1280); a('s_addk_i32', 's12', 640)
    a('s_branch', 'LentX')
    a.label('LentH')
    a('s_mov_b32', 'm0', L_KI + 640)
    a('buffer_load_dwordx4', v(t), 's[44:47]', 0, mods='offen lds')
    a.label('LentX')
    a('s_mov_b64', 'exec', -1)
    a.label('Lbar0')
    bar0(a)
    a('s_cmp_eq_u32', 's5', 0); a('s_cbranch_scc1', 'LauxE')
    a('s_cmp_ge_u32', 's3', 10); a('s_cbranch_scc1', 'LauxO')
    a('s_branch', 'LB1')
    a.label('Lexit')
    a('s_endpgm')

def quad_trig(a, ang, step, C, S):
    for r in range(1, 4): a('v_add_f32', v(ang+r), v(ang+r-1), v(step))
    for r in range(4): sincos(a, ang+r, C+r, S+r)

def a1_tables(a):
    n, q, qf, st, t, ad, ang, C, S, PK = 5, 6, 7, 8, 9, 10, 12, 16, 20, 24
    a('v_and_b32', v(n), 15, 'v0'); a('v_lshrrev_b32', v(q), 4, 'v0'); a('v_mul_u32_u24', v(n), 5, v(n))
    a('s_mov_b32', 's12', 's3')
    lp = newlabel('Lc'); ltw = newlabel('Lc'); lnx = newlabel('Lc')
    a.label(lp)
    a('s_cmp_ge_u32', 's12', 11); a('s_cbranch_scc1', ltw)
    a('s_cmp_ge_u32', 's12', 5); a('s_cselect_b32', 's13', 2, 1); a('s_cselect_b32', 's14', 5, 0); a('s_sub_u32', 's14', 's12', 's14')
    a('s_cmp_eq_u32', 's12', 10); a('s_cselect_b32', 's13', 0, 's13')
    a('v_add_u32', v(st), 's13', v(n)); a('v_cvt_f32_u32', v(st), v(st)); a('v_mul_f32', v(st), fl(1/80), v(st))
    a('v_lshlrev_b32', v(qf), 2, v(q)); a('v_cvt_f32_u32', v(qf), v(qf))
    a('s_mul_i32', 's8', 's13', 's14'); a('v_cvt_f32_u32', v(t), 's8'); a('v_mul_f32', v(t), fl(0.2), v(t))
    a('v_fma_f32', v(ang), v(st), v(qf), v(t))
    quad_trig(a, ang, st, C, S)
    for h in range(2):
        a('v_cvt_pk_bf16_f32', v(PK+h), v(C+2*h), v(C+2*h+1)); a('v_cvt_pk_bf16_f32', v(PK+2+h), '-' + v(S+2*h), '-' + v(S+2*h+1))
    a('s_sub_u32', 's15', 's13', 1); a('s_lshl_b32', 's8', 's15', 2); a('s_add_u32', 's8', 's8', 's14')
    a('s_add_u32', 's15', 's15', 8); a('s_cmp_eq_u32', 's14', 4); a('s_cselect_b32', 's8', 's15', 's8')
    a('s_cmp_eq_u32', 's12', 10); a('s_cselect_b32', 's8', 10, 's8'); a('s_cselect_b32', 's41', 8, 0)
    a('s_lshr_b32', 's15', 's8', 1); a('s_lshl_b32', 's15', 's15', 10); a('s_and_b32', 's8', 's8', 1); a('s_lshl3_add_u32', 's8', 's8', 's15'); a('s_add_u32', 's8', 's8', TABH)
    a('v_lshl_add_u32', v(ad), 'v0', 4, 's8'); a('v_add_u32', v(t), 's41', v(ad))
    for r_ in (ad, t):
        a('ds_write_b64', v(r_), v(PK, 2)); a('ds_write_b64', v(r_), v(PK+2, 2), mods=f'offset:{CHS}')
    a('s_branch', lnx)
    a.label(ltw)
    a('s_sub_u32', 's13', 's12', 11)
    a('v_add_u32', v(st), 's13', v(n)); a('v_cvt_f32_u32', v(st), v(st)); a('v_mul_f32', v(st), fl(1/640), v(st))
    a('v_and_b32', v(qf), 1, v(q)); a('v_lshlrev_b32', v(qf), 2, v(qf)); a('v_cvt_f32_u32', v(qf), v(qf))
    a('v_mul_f32', v(ang), v(st), v(qf))
    quad_trig(a, ang, st, C, S)
    a('s_mul_i32', 's8', 's13', CHS); a('s_add_u32', 's8', 's8', TABW[0]); a('s_cmp_eq_u32', 's13', 2); a('s_cselect_b32', 's8', TABW[2], 's8')
    a('v_lshl_add_u32', v(ad), 'v0', 4, 's8')
    a('ds_write_b128', v(ad), v(C, 4)); a('ds_write_b128', v(ad), v(S, 4), mods='offset:1024')
    a.label(lnx)
    a('s_add_u32', 's12', 's12', 8); a('s_cmp_lt_u32', 's12', 14); a('s_cbranch_scc1', lp)

def a3_tables(a, first=8, step=4):
    n, q, t, ad, k1, ang, C, S, PK = 132, 133, 134, 135, 136, 136, 140, 144, 148
    a('v_and_b32', v(n), 15, 'v0'); a('v_lshrrev_b32', v(q), 4, 'v0')
    a('s_sub_u32', 's12', 's3', first)
    lp = newlabel('Lc'); ltw = newlabel('Lc'); lnx = newlabel('Lc')
    a.label(lp)
    a('s_cmp_ge_u32', 's12', 5); a('s_cselect_b32', 's13', 1, 0); a('s_sub_u32', 's8', 's12', 10); a('s_cmp_ge_u32', 's12', 10); a('s_cselect_b32', 's13', 's8', 's13')
    a('s_cmp_eq_u32', 's13', 2); a('s_cselect_b32', 's14', 20, 10); a('s_mov_b32', 's15', 0x07060201); a('s_cselect_b32', 's15', 0x0f0a0500, 's15')
    a('s_and_b32', 's8', 's13', 1); a('s_mul_i32', 's8', 's8', 40)
    a('v_mul_lo_u32', v(t), v(q), 's14'); a('v_add_u32', v(t), 's8', v(t))
    for r in range(4):
        a('s_bfe_u32', 's8', 's15', (8 << 16) | (8*r)); a('v_add_u32', v(k1+r), 's8', v(t))
    a('s_cmp_ge_u32', 's12', 10); a('s_cbranch_scc1', ltw)
    a('s_mul_i32', 's8', 's13', 5); a('s_sub_u32', 's8', 's12', 's8'); a('s_lshl_b32', 's8', 's8', 4); a('v_add_u32', v(t), 's8', v(n))
    for r in range(4):
        a('v_mul_u32_u24', v(ang+r), v(t), v(k1+r)); a('v_cvt_f32_u32', v(ang+r), v(ang+r)); a('v_mul_f32', v(ang+r), fl(1/80), v(ang+r))
    for r in range(4): sincos(a, ang+r, C+r, S+r)
    for h in range(2):
        a('v_cvt_pk_bf16_f32', v(PK+h), v(C+2*h), v(C+2*h+1)); a('v_cvt_pk_bf16_f32', v(PK+2+h), '-' + v(S+2*h), '-' + v(S+2*h+1))
    a('s_lshl_b32', 's8', 's12', 10); a('s_add_u32', 's8', 's8', 's52'); a('v_lshl_add_u32', v(ad), 'v0', 4, 's8')
    a('ds_write_b128', v(ad), v(PK, 4))
    a('s_branch', lnx)
    a.label(ltw)
    a('v_and_b32', v(t), 7, 'v0')
    for r in range(4):
        a('v_mul_u32_u24', v(ang+r), v(t), v(k1+r)); a('v_cvt_f32_u32', v(ang+r), v(ang+r)); a('v_mul_f32', v(ang+r), fl(1/640), v(ang+r))
    for r in range(4): sincos(a, ang+r, C+r, S+r)
    a('s_lshl_b32', 's8', 's13', 11); a('s_add_u32', 's8', 's8', 10240); a('s_add_u32', 's8', 's8', 's52')
    a('v_lshl_add_u32', v(ad), 'v0', 4, 's8')
    a('ds_write_b128', v(ad), v(C, 4)); a('ds_write_b128', v(ad), v(S, 4), mods='offset:1024')
    a.label(lnx)
    a('s_add_u32', 's12', 's12', step); a('s_cmp_lt_u32', 's12', 13); a('s_cbranch_scc1', lp)

def m2_angles(a, tmp, inv):
    u2, t, u, ang, C, S = tmp, tmp+1, tmp+2, tmp+3, tmp+7, tmp+11
    a('v_and_b32', v(u2), 7, 'v0'); a('v_cvt_f32_u32', v(u2), v(u2)); a('v_mul_f32', v(u2), fl(1/8), v(u2))
    a('v_bfe_u32', v(t if inv else u), 'v0', 3, 1); a('v_lshrrev_b32', v(u if inv else t), 5, 'v0')
    a('v_lshl_add_u32', v(t), v(t), 10, 's9'); a('v_mul_u32_u24', v(t), v(t), v(u))
    a('v_cvt_f32_u32', v(t), v(t)); a('v_mul_f32', v(t), fl(1/2048), v(t))
    a('v_lshlrev_b32', v(C), 27 if inv else 29, 'v0'); a('v_and_b32', v(C), 0x80000000, v(C)); a('v_xor_b32', v(t), v(t), v(C))
    a('v_bfe_u32', v(u), 'v0', 4, 1); a('v_lshlrev_b32', v(u), 2, v(u)); a('v_cvt_f32_u32', v(u), v(u))
    a('v_fma_f32', v(ang), v(u2), v(u), v(t))
    a('v_lshrrev_b32', v(u), 16, v(C)); a('v_or_b32', v(u), v(u), v(C))
    quad_trig(a, ang, u2, C, S)
    return C, S, u

def msg_addrs(a, go, go2, gs, t):
    a('s_mul_i32', 's8', 's7', TBLK)
    a('s_and_b32', 's12', 's3', 1); a('s_mul_i32', 's13', 's12', 1280); a('s_lshr_b32', 's14', 's3', 1); a('s_lshl_b32', 's14', 's14', 7)
    a('s_add_u32', 's13', 's13', 's14'); a('s_add_u32', 's13', 's13', 's8')
    a('v_lshrrev_b32', v(t), 4, 'v0'); a('v_mul_u32_u24', v(go), 2560 - 128, v(t)); a('v_lshl_add_u32', v(go), 'v0', 3, v(go)); a('v_add_u32', v(go), 's13', v(go))
    a('v_add_u32', v(go2), 10240, v(go))
    a('s_lshl2_add_u32', 's8', 's12', 's8'); a('s_add_u32', 's8', 's8', 160*128); a('v_lshl_add_u32', v(gs), v(t), 3, 's8')

def A1(a):
    a.label('LA1')
    a('s_setprio', 2)
    a('s_mul_i32', 's10', 's3', EP); a('s_add_u32', 's10', 's10', L_EI)
    a('v_lshrrev_b32', 'v5', 4, 'v0'); a('v_mul_u32_u24', 'v5', 704 - 64, 'v5'); a('v_lshl_add_u32', 'v5', 'v0', 2, 'v5'); a('v_add_u32', 'v5', 's10', 'v5'); a('v_mov_b32', 'v6', 0)
    a('ds_write_b32', 'v5', 'v6', mods='offset:640')
    a1_tables(a)
    bar0(a)
    t, u, q, tra, wd, wz, tr2, go, go2, gs, hf, mk, tl0, tl1, tls = range(1, 16)
    Hs, Gs, TW, Mre, Mim, M3, AC, Dr, PK, X = 16, 40, 64, 88, 92, 96, 104, 128, 138, 150
    a('v_lshlrev_b32', v(u), 4, 'v0'); a('v_add_u32', v(t), TABH, v(u)); a('v_add_u32', v(u), TABW[2], v(u))
    C, S, sg = m2_angles(a, AC, False)
    for r in range(4):
        a('v_cvt_pk_bf16_f32', v(Mre+r), v(C+r), v(S+r)); a('v_cvt_pk_bf16_f32', v(Mim+r), '-' + v(S+r), v(C+r)); a('v_xor_b32', v(Mim+r), v(sg), v(Mim+r))
    a.wait(lgkm=0)
    for k in (4, 0, 1, 2, 3, 5):
        a('ds_read_b128', v(Hs+4*k, 4), v(t), mods=f'offset:{1024*k}'); a('ds_read_b128', v(Gs+4*k, 4), v(t), mods=f'offset:{CHS+1024*k}')
    for h in range(2):
        a('ds_read_b128', v(TW+8+4*h, 4), v(t), mods=f'offset:{CHS+6144+1024*h}')
    for h in range(2):
        a('ds_read_b128', v(TW+16+4*h, 4), v(u), mods=f'offset:{1024*h}'); a('ds_read_b128', v(TW+4*h, 4), v(t), mods=f'offset:{6144+1024*h}')
    a('v_lshrrev_b32', v(q), 4, 'v0')
    a('v_bfe_u32', v(tra), 'v0', 1, 1); a('v_mul_u32_u24', v(tra), 1408, v(tra))
    a('v_and_b32', v(t), 1, 'v0'); a('v_lshl_add_u32', v(tra), v(t), 3, v(tra)); a('v_lshrrev_b32', v(t), 2, 'v0'); a('v_lshl_add_u32', v(tra), v(t), 4, v(tra)); a('v_add_u32', v(tra), 's11', v(tra))
    fh, ph, an = X, X+1, X+2
    a('v_and_b32', v(t), 1, 'v0'); a('v_lshrrev_b32', v(u), 5, 'v0'); a('v_sub_u32', v(t), v(t), v(u)); a('v_cvt_f32_i32', v(ph), v(t)); a('v_mul_f32', v(ph), fl(0.25), v(ph))
    a('v_bfe_u32', v(t), 'v0', 1, 1); a('v_bfe_u32', v(u), 'v0', 4, 1); a('v_cmp_eq_u32', 'vcc', v(t), v(u)); a('v_cndmask_b32', v(mk), 0, -1, 'vcc')
    a('v_cvt_f32_u32', v(t), 's7'); a('v_mul_f32', v(t), fl(1/128), v(t))
    for mu in range(2):
        a('v_bfe_u32', v(fh), 'v0', 2, 2)
        if mu: a('v_add_u32', v(fh), 4, v(fh))
        a('v_cvt_f32_u32', v(fh), v(fh)); a('v_mul_f32', v(fh), fl(1/8), v(fh))
        a('v_fma_f32', v(an), v(fh), v(t), v(ph))
        for i in range(8):
            a('v_cos_f32', v(an+1+(i & 1)), v(an))
            if i < 7: a('v_add_f32', v(an), v(an), v(fh))
            if i & 1:
                a('v_cvt_pk_bf16_f32', v(M3+4*mu+(i >> 1)), v(an+1), v(an+2)); a('v_and_b32', v(M3+4*mu+(i >> 1)), v(mk), v(M3+4*mu+(i >> 1)))
    a('v_mov_b32', v(go), L_CNT + 4*C_X); a('v_mov_b32', v(go2), 1)
    stamp(a, 2)
    a.wait(vm=0)
    stamp(a, 3)
    for e in (4, 0, 1, 2, 3): a('ds_read_b64_tr_b16', v(Dr+2*e, 2), v(tra), mods=f'offset:{256*e}')
    lds_cnt_add(a, go, go2)
    a('v_and_b32', v(t), 7, 'v0'); a('v_lshl_add_u32', v(t), v(t), 2, v(q)); a('v_sub_u32', v(u), 31, v(t)); a('v_cmp_gt_u32', 'vcc', 16, v(t))
    a('v_min_u32', v(u), v(t), v(u)); a('v_mul_u32_u24', v(wd), 40, v(u)); a('v_add_u32', v(wz), 32, v(wd)); a('v_add_u32', v(u), 16, v(wd)); a('v_cndmask_b32', v(wd), v(u), v(wd), 'vcc')
    a('v_mov_b32', v(u), 656); a('v_cndmask_b32', v(wz), v(u), v(wz), 'vcc')
    a('v_cmp_eq_u32', 'vcc', 16, v(t)); a('v_mov_b32', v(u), 640); a('v_cndmask_b32', v(wz), v(wz), v(u), 'vcc')
    a('v_and_b32', v(u), 15, v(t)); a('v_cmp_eq_u32', 'vcc', 0, v(u)); a('v_cndmask_b32', v(hf), 1.0, 0.5, 'vcc')
    SL = {1: (0, 1, 16), 2: (2, 3, 18), 0: (5, 5, 20)}
    for k5 in (1, 2, 0):
        for ri, M in enumerate((Hs, Gs)): a('v_mfma_f32_16x16x16_bf16', v(AC+8*k5+4*ri, 4), v(Dr+8, 2), v(M+SL[k5][2], 2), 0)
    a('v_bfe_u32', v(u), 'v0', 3, 1); a('v_mul_u32_u24', v(u), 1408, v(u)); a('v_add_u32', v(u), 's10', v(u)); a('v_add_u32', v(wd), v(wd), v(u)); a('v_add_u32', v(wz), v(wz), v(u))
    for k5 in (1, 2, 0):
        for p in range(2):
            for ri, M in enumerate((Hs, Gs)): a(MF, v(AC+8*k5+4*ri, 4), v(Dr+4*p, 4), v(M+4*SL[k5][p], 4), v(AC+8*k5+4*ri, 4))
        if k5 == 1:
            msg_addrs(a, go, go2, gs, t)
        if k5 == 2:
            a('v_bfe_u32', v(tr2), 'v0', 2, 2); a('v_mul_u32_u24', v(tr2), EP, v(tr2)); a('v_and_b32', v(t), 3, 'v0'); a('v_lshl_add_u32', v(tr2), v(t), 3, v(tr2))
            a('v_and_b32', v(t), 1, v(q)); a('v_lshl_add_u32', v(tr2), v(t), 5, v(tr2)); a('v_lshrrev_b32', v(t), 5, 'v0'); a('v_mul_u32_u24', v(t), 704, v(t)); a('v_add_u32', v(tr2), v(tr2), v(t))
            a('s_mul_i32', 's8', 's12', 1408); a('s_lshr_b32', 's14', 's14', 1); a('s_add_u32', 's8', 's8', 's14'); a('s_add_u32', 's8', 's8', L_EI); a('v_add_u32', v(tr2), 's8', v(tr2))
    A2r = Hs
    for k5 in (1, 2, 0):
        for r in range(4):
            re, im, c, s_ = AC+8*k5+r, AC+8*k5+4+r, TW+8*k5+r, TW+8*k5+4+r
            a('v_mul_f32', v(X+r), v(re), v(c)); a('v_mul_f32', v(X+4+r), v(im), v(c))
            a('v_fmac_f32', v(X+r), v(im), v(s_)); a('v_fma_f32', v(X+4+r), '-' + v(re), v(s_), v(X+4+r))
            a('v_cvt_pk_bf16_f32', v(PK+4*k5+r), v(X+r), v(X+4+r))
        a(MF, v(A2r+8*k5, 4), v(PK+4*k5, 4), v(Mre, 4), 0); a(MF, v(A2r+8*k5+4, 4), v(PK+4*k5, 4), v(Mim, 4), 0)
    for ri in range(2):
        for r in range(4): a('v_cvt_pk_bf16_f32', v(PK+4*ri+r), v(A2r+8+4*ri+r), v(A2r+16+4*ri+r))
        a('ds_write_b64', v(wd), v(PK+4*ri, 2), mods=f'offset:{704*ri}'); a('ds_write_b64', v(wd), v(PK+4*ri+2, 2), mods=f'offset:{704*ri+8}')
    for ri in range(2):
        a('v_mul_f32', v(A2r+4*ri), v(hf), v(A2r+4*ri))
        for h in range(2): a('v_cvt_pk_bf16_f32', v(PK+8+2*ri+h), v(A2r+4*ri+2*h), v(A2r+4*ri+2*h+1))
        a('ds_write_b64', v(wz), v(PK+8+2*ri, 2), mods=f'offset:{704*ri}')
    a('v_mov_b32', v(mk), 0xfffefffe); a('v_and_b32', v(tl0), 1, 'v0'); a('v_lshlrev_b32', v(tl0), 16, v(tl0)); a('v_or_b32', v(tl1), 1, v(tl0))
    stamp(a, 4)
    subbar(a, C_A1, 8, t, u)
    OP = TW; O3 = AC; ST = PK
    for it in range(3):
        a('ds_read_b64_tr_b16', v(OP+4*it, 2), v(tr2), mods=f'offset:{256*it}')
        a('ds_read_b64_tr_b16', v(OP+4*it+2, 2), v(tr2), mods=f'offset:{256*it + 4*EP}')
    for it in range(3):
        for mu in range(2): a(MF, v(O3+8*it+4*mu, 4), v(M3+4*mu, 4), v(OP+4*it, 4), 0)
    skip = newlabel('La1s'); lsp = newlabel('La1s')
    for it in range(3):
        if it == 2:
            a('s_cmp_ge_u32', 's3', 4); a('s_cbranch_scc1', lsp)
        for mu, g_ in enumerate((go, go2)):
            b = O3+8*it+4*mu; d = ST+4*it+2*mu
            a('v_cvt_pk_bf16_f32', v(d), v(b), v(b+1)); a('v_cvt_pk_bf16_f32', v(d+1), v(b+2), v(b+3))
            a('v_and_or_b32', v(d), v(d), v(mk), v(tl0)); a('v_and_or_b32', v(d+1), v(d+1), v(mk), v(tl1))
            a('global_store_dwordx2', v(g_), v(d, 2), WS_, mods=f'offset:{512*it} {SC}')
    a('s_branch', skip)
    a.label(lsp)
    a('s_cmp_ge_u32', 's3', 6); a('s_cbranch_scc1', skip)
    for mu in range(2): a('v_cvt_pk_bf16_f32', v(ST+8+mu), v(O3+16+4*mu), v(O3+17+4*mu))
    a('v_and_b32', v(t), 63, v(gs))
    a('s_mov_b32', 'exec_lo', 0x10001); a('s_mov_b32', 'exec_hi', 0x10001)
    for mu in range(2): a('ds_write_b32', v(t), v(ST+8+mu), mods=f'offset:{L_SPB + 32*mu}')
    a('s_mov_b64', 'exec', -1)
    arrive(a, C_SP, t, u)
    a.label(skip)
    if OPT['wsp']: arrive(a, C_ST, t, u)
    stamp(a, 5)
    a('s_setprio', 0)
    lt3 = newlabel('La1'); a('s_cmp_lt_u32', 's7', ND); a('s_cbranch_scc1', lt3)
    a._nop(2); a('s_mov_b32', 's52', L_T3B); a3_tables(a, 0, 8)
    a.label(lt3)
    arrive(a, C_A1D, 1, 2, vm=True)
    stamp(a, 6)
    if OPT['stop'] == 1: a('s_branch', 'Lfin'); return
    a('s_cmp_ge_u32', 's7', ND); a('s_cbranch_scc1', 'LB2')
    a('s_cmp_ge_u32', 's3', 4); a('s_cbranch_scc1', 'LB2')
    a('s_add_u32', 's9', 's6', 16); a('s_mov_b32', 's10', 's3'); a('v_mov_b32', 'v159', 0)
    a('s_mov_b32', 's62', L_T2); a('s_mov_b32', 's63', L_W2); a('s_mov_b32', 's61', L_CNT + 4*(C_A2+4)); a('s_mov_b32', 's60', L_CNT + 4*18)
    a('s_branch', 'LA2')

def A3(a):
    a.label('LA3')
    t, u, q, go, go2, gs, lw, ra0, ra1, rz, wa, rd = range(1, 13)
    vo = [13, 14, 15]
    Mre, Mim, M3, TW, F, IN, X, P0, AC, Y = 16, 20, 24, 32, 56, 100, 112, 120, 124, 148
    msg_addrs(a, go, go2, gs, t)
    await_cnt(a, C_A1D, 8, t, u)
    a('s_lshl_b32', 's9', 's3', 7); a('s_add_u32', 's9', 's9', 's7'); a('s_mul_i32', 's10', 's9', 2560)
    a('s_mul_i32', 's11', 's3', 3072); a('s_add_u32', 's11', 's11', L_XR)
    row_offsets(a, vo, t, 's10', 1024*2560)
    a('v_lshrrev_b32', v(q), 4, 'v0')
    C, S, sg = m2_angles(a, AC, True)
    for r in range(8): a('v_mul_f32', v(C+r), fl(2.0/(2048*640)), v(C+r))
    for h in range(2):
        a('v_cvt_pk_bf16_f32', v(Mre+h), v(C+2*h), v(C+2*h+1)); a('v_cvt_pk_bf16_f32', v(Mim+h), v(S+2*h), v(S+2*h+1))
        a('v_cvt_pk_bf16_f32', v(Mre+2+h), '-' + v(S+2*h), '-' + v(S+2*h+1)); a('v_xor_b32', v(Mre+2+h), v(sg), v(Mre+2+h))
        a('v_xor_b32', v(Mim+2+h), v(sg), v(Mre+h))
    a('v_and_b32', v(t), 15, 'v0'); a('v_cvt_f32_u32', v(t), v(t)); a('v_mul_f32', v(t), fl(1/16), v(t)); a('v_lshlrev_b32', v(u), 2, v(q)); a('v_cvt_f32_u32', v(u), v(u))
    a('v_mul_f32', v(AC), v(t), v(u)); quad_trig(a, AC, t, AC+4, AC+8)
    for h in range(2):
        a('v_cvt_pk_bf16_f32', v(F+40+h), v(AC+4+2*h), v(AC+5+2*h)); a('v_cvt_pk_bf16_f32', v(F+42+h), '-' + v(AC+8+2*h), '-' + v(AC+9+2*h))
    a('v_and_b32', v(t), 7, 'v0'); a('v_lshl_add_u32', v(t), v(t), 7, 's7')
    a('v_and_b32', v(u), 8, 'v0'); a('v_cmp_eq_u32', 'vcc', 0, v(u))
    for mu in range(2):
        a('v_add_u32', v(u), 4*mu, v(q)); a('v_mul_u32_u24', v(u), v(u), v(t)); a('v_cvt_f32_u32', v(u), v(u)); a('v_mul_f32', v(u), fl(1/1024), v(u))
        sincos(a, u, X, X+1)
        a('v_cvt_pk_bf16_f32', v(X+2), v(X), '-' + v(X+1)); a('v_cvt_pk_bf16_f32', v(X+3), v(X+1), v(X))
        for nu in range(2):
            a('v_cndmask_b32', v(M3+4*nu+2*mu), 0, v(X+2+nu), 'vcc'); a('v_cndmask_b32', v(M3+4*nu+2*mu+1), v(X+2+nu), 0, 'vcc')
    a('v_and_b32', v(lw), 7, 'v0'); a('v_mul_u32_u24', v(lw), EP, v(lw)); a('v_and_b32', v(t), 8, 'v0'); a('v_lshl_add_u32', v(lw), v(t), 2, v(lw)); a('v_lshl_add_u32', v(lw), v(q), 3, v(lw))
    a('s_mul_i32', 's8', 's12', 1408); a('s_lshr_b32', 's14', 's14', 1); a('s_add_u32', 's8', 's8', 's14'); a('s_add_u32', 's8', 's8', L_EI); a('v_add_u32', v(lw), 's8', v(lw))
    k4, bs = X, X+1
    a('v_and_b32', v(k4), 28, 'v0'); a('v_lshrrev_b32', v(bs), 5, 'v0'); a('v_mul_u32_u24', v(bs), 1408, v(bs))
    a('s_mul_i32', 's8', 's3', EP); a('s_add_u32', 's8', 's8', L_EI); a('v_add_u32', v(bs), 's8', v(bs))
    a('v_cmp_gt_u32', 'vcc', 16, v(k4))
    for hx, dst in enumerate((ra0, ra1)):
        a('v_bfe_u32', v(t), 'v0', 1, 1); a('v_add3_u32', v(t), v(t), v(k4), 2*hx); a('v_sub_u32', v(u), 31, v(t)); a('v_min_u32', v(t), v(t), v(u))
        a('v_mul_u32_u24', v(dst), 40, v(t)); a('v_add_u32', v(u), 16, v(dst)); a('v_cndmask_b32', v(dst), v(u), v(dst), 'vcc')
        a('v_and_b32', v(t), 1, 'v0'); a('v_lshl_add_u32', v(dst), v(t), 3, v(dst)); a('v_add_u32', v(dst), v(dst), v(bs))
    a('v_and_b32', v(t), 31, 'v0'); a('v_mul_u32_u24', v(rz), 40, v(t)); a('v_add_u32', v(rz), 32, v(rz)); a('v_mov_b32', v(u), 648); a('v_cndmask_b32', v(rz), v(u), v(rz), 'vcc')
    a('v_cmp_eq_u32', 'vcc', 16, v(t)); a('v_mov_b32', v(u), 640); a('v_cndmask_b32', v(rz), v(rz), v(u), 'vcc'); a('v_add_u32', v(rz), v(rz), v(bs))
    a('v_lshrrev_b32', v(wa), 5, 'v0'); a('v_mul_u32_u24', v(wa), 1408, v(wa)); a('v_and_b32', v(t), 1, v(q)); a('v_lshl_add_u32', v(wa), v(t), 3, v(wa))
    a('v_and_b32', v(t), 15, 'v0'); a('v_lshl_add_u32', v(wa), v(t), 4, v(wa)); a('v_add_u32', v(wa), 's11', v(wa))
    a('v_lshl_add_u32', v(rd), 'v0', 4, 's11')
    lw2 = newlabel('La3'); a('s_cmp_ge_u32', 's7', ND); a('s_cbranch_scc1', lw2)
    wait_lds(a, C_A2+4+3, 4, t, u)
    a.label(lw2)
    wait_lds(a, C_A2+3, 4, t, u)
    a('s_cmp_lt_u32', 's7', ND); a('s_mov_b32', 's8', L_T3B); a('s_cselect_b32', 's8', L_T3, 's8'); a('v_lshl_add_u32', v(t), 'v0', 4, 's8')
    for k in range(10): a('ds_read_b128', v(F+4*k, 4), v(t), mods=f'offset:{1024*k}')
    for k in range(6): a('ds_read_b128', v(TW+4*k, 4), v(t), mods=f'offset:{10240+1024*k}')
    stamp(a, 11)
    a('s_setprio', 2)
    def ld(its):
        for it in its:
            for mu, g_ in enumerate((go, go2)): a('global_load_dwordx2', v(IN+4*it+2*mu, 2), v(g_), WS_, mods=f'offset:{512*it} {SC}')
    l4 = newlabel('La3'); lj = newlabel('La3'); l6 = newlabel('La3')
    if OPT['a3p']:
        lpz = newlabel('La3'); a('s_cmp_lt_u32', 's7', ND); a('s_cbranch_scc1', lpz)
        def l1():
            a('global_load_dwordx2', v(IN, 2), v(go2), WS_, mods=SC); a('global_load_dwordx2', v(IN+2, 2), v(go), WS_, mods=f'offset:512 {SC}')
        poll_tags(a, l1, [IN], t, 2, LS[0])
        if OPT['a3p'] > 1: subbar(a, C_WR, 8, t, u)
        a.label(lpz)
    a('s_cmp_ge_u32', 's3', 4); a('s_cbranch_scc1', l4)
    poll_tags(a, lambda: ld((0, 1, 2)), [IN, IN+4, IN+8], t, 2, LS[0])
    a('s_branch', lj)
    a.label(l4)
    def ld2():
        ld((0, 1))
        for mu in range(2): a('global_load_dword', v(X+mu), v(gs), WS_, mods=f'offset:{32*mu} {SC}')
        for mu in range(2): a('v_xor_b32', v(IN+8+2*mu), 's12', v(X+mu))
    a('v_mov_b32', v(IN+9), 0); a('v_mov_b32', v(IN+11), 0)
    poll_tags(a, ld2, [IN, IN+4, IN+8], t, 2, LS[0])
    a('v_and_b32', v(t), 15, 'v0'); a('v_cmp_eq_u32', 'vcc', 0, v(t))
    for mu in range(2): a('v_cndmask_b32', v(IN+8+2*mu), 0, v(X+mu), 'vcc')
    a.label(lj)
    stamp(a, 12)
    for it in range(3):
        for nu in range(2): a(MF, v(AC+8*it+4*nu, 4), v(IN+4*it, 4), v(M3+4*nu, 4), 0)
    for it in range(3):
        if it == 2: a('s_cmp_ge_u32', 's3', 6); a('s_cbranch_scc1', l6)
        for nu in range(2):
            b = AC+8*it+4*nu; d = IN+4*it+2*nu
            a('v_cvt_pk_bf16_f32', v(d), v(b), v(b+1)); a('v_cvt_pk_bf16_f32', v(d+1), v(b+2), v(b+3))
            a('ds_write_b64', v(lw), v(d, 2), mods=f'offset:{256*it + 704*nu}')
    a.label(l6)
    subbar(a, C_A3, 8, t, u)
    stamp(a, 13)
    Z = IN
    order = (2, 0, 1)
    for st in order:
        ad = (ra0, ra1, rz)[st]
        for ri in range(2): a('ds_read_b64_tr_b16', v(Z+4*st+2*ri, 2), v(ad), mods=f'offset:{704*ri}')
    for st in order:
        a(MF, v(AC+8*st, 4), v(Z+4*st, 4), v(Mre, 4), 0); a(MF, v(AC+8*st+4, 4), v(Z+4*st, 4), v(Mim, 4), 0)
    for st in order:
        for r in range(4):
            re, im, c, s_ = AC+8*st+r, AC+8*st+4+r, TW+8*st+r, TW+8*st+4+r
            a('v_mul_f32', v(X+r), v(re), v(c)); a('v_mul_f32', v(X+4+r), v(im), v(c))
            a('v_fma_f32', v(X+r), '-' + v(im), v(s_), v(X+r)); a('v_fmac_f32', v(X+4+r), v(re), v(s_))
            if r & 1:
                a('v_cvt_pk_bf16_f32', v(Z+4*st+(r >> 1)), v(X+r-1), v(X+r)); a('v_cvt_pk_bf16_f32', v(Z+4*st+2+(r >> 1)), v(X+4+r-1), v(X+4+r))
        if st == 2: a(MF, v(P0, 4), v(Z+8, 4), v(F+40, 4), 0)
        else:
            for e in range(5): a(MF, v(Y+4*e, 4), v(Z+4*st, 4), v(F+20*st+4*e, 4), v(P0, 4) if st == 0 else v(Y+4*e, 4))
    for e in range(5):
        a('v_cvt_pk_bf16_f32', v(AC+2*e), v(Y+4*e), v(Y+4*e+1)); a('v_cvt_pk_bf16_f32', v(AC+2*e+1), v(Y+4*e+2), v(Y+4*e+3))
        a('ds_write_b64', v(wa), v(AC+2*e, 2), mods=f'offset:{256*e}')
    for k in range(3): a('ds_read_b128', v(Z+4*k, 4), v(rd), mods=f'offset:{1024*k}')
    a('global_store_dwordx4', v(vo[0]), v(Z, 4), OUT_, mods=SC)
    a('s_mov_b32', 'exec_lo', 0xff00ffff)
    a('global_store_dwordx4', v(vo[1]), v(Z+4, 4), OUT_, mods='offset:1024 sc1')
    a('s_mov_b32', 'exec_lo', -1); a('s_mov_b32', 'exec_hi', 0xff)
    a('global_store_dwordx4', v(vo[2]), v(Z+8, 4), OUT_, mods='offset:2048 sc1')
    stamp(a, 14)
    a('s_mov_b64', 'exec', -1)

def auxE(a):
    a.label('LauxE')
    a('s_sub_u32', 's10', 's3', 8)
    a('s_mov_b32', 's9', 's6')
    a('s_mov_b32', 's62', L_T1); a('s_mov_b32', 's63', L_W1); a('s_mov_b32', 's61', L_CNT + 4*C_A2); a('s_mov_b32', 's60', L_CNT + 4*C_W1)
    h_even(a, 0)
    a('v_lshrrev_b32', 'v1', 3, 'v0'); a('v_and_b32', 'v2', 7, 'v0'); a('v_lshlrev_b32', 'v2', 7, 'v2'); a('v_min_u32', 'v2', 640, 'v2'); a('v_mul_u32_u24', 'v1', 8*642, 'v1'); a('v_add_u32', 'v1', 'v1', 'v2')
    a('s_lshl_b32', 's8', 's6', 1); a('s_and_b32', 's11', 's3', 1); a('s_add_u32', 's8', 's8', 's11'); a('s_lshl_b32', 's8', 's8', 6); a('s_add_u32', 's8', 's8', 's4'); a('s_mul_i32', 's8', 's8', 642)
    a('v_add_u32', 'v159', 's8', 'v1')
def wpf(a):
    sk = newlabel('La2'); a('s_cmp_lt_u32', 's3', 8); a('s_cbranch_scc1', sk)
    a('s_bitcmp1_b32', 's3', 1); a('s_cselect_b64', 's[98:99]', WI_, WR_)
    a('global_load_ushort', 'v163', 'v159', 's[98:99]')
    a.label(sk)
def h_even(a, part):
    t, u, vo, vq, vh, vh2, D, T = 1, 2, 132, 133, 134, 135, 136, 100
    if part == 0:
        a('s_and_b32', 's15', 's10', 1)
        a('v_lshlrev_b32', v(vo), 4, 'v0')
        a('s_lshl_b32', 's8', 's10', 10); a('v_add_u32', v(vq), 's8', v(vo)); a('v_subrev_u32', v(vh), 128, v(vo)); a('v_subrev_u32', v(vh2), 112, v(vo))
        for lc in range(2):
            h_srd(a, lc)
            a('buffer_load_dwordx4', v(D+6*lc, 4), v(vq), 's[44:47]', 0, mods='offen'); a('buffer_load_dwordx2', v(D+6*lc+4, 2), v(vq), 's[44:47]', 0, mods='offen offset:16')
        h_srd(a, 's15'); h_load(a, D+12, vh, vh2, 0)
        lw6 = newlabel('La1'); a('s_cmp_lg_u32', 's3', 11); a('s_cbranch_scc1', lw6)
        a('v_and_b32', v(t), 15, 'v0'); a('v_lshl_add_u32', v(t), 's7', 4, v(t)); a('v_mul_u32_u24', v(t), 642, v(t))
        a('global_load_ushort', 'v112', v(t), WR_, mods='offset:640'); a('global_load_ushort', 'v113', v(t), WI_, mods='offset:640')
        a.label(lw6)
        for k in range(4): a('v_mov_b32', v(T+k), 0)
        u_pad(a, 's15', T, t)
        a('v_add_u32', v(vq), L_CH, v(vq)); a('s_mul_i32', 's8', 's15', CHS); a('s_add_u32', 's8', 's8', L_CH); a('v_add_u32', v(vh), 's8', v(vo))
        return
    sk = newlabel('La2'); a('s_cmp_lt_u32', 's3', 8); a('s_cbranch_scc1', sk)
    for lc in range(2): h_expand(a, D+6*lc, T, vq, lc*CHS + 128)
    a('s_mov_b64', 'exec', 0xff)
    h_expand(a, D+12, T, vh, 0)
    a('s_mov_b64', 'exec', -1)
    arrive(a, C_H, t, u)
    stamp(a, 2)
    a('s_cmp_lg_u32', 's3', 11); a('s_cbranch_scc1', sk)
    await_cnt(a, C_SP, 2, t, u)
    a('v_lshlrev_b32', v(t), 2, 'v0'); a('ds_read_b32', 'v114', v(t), mods=f'offset:{L_SPB}')
    a('v_lshl_or_b32', 'v112', 'v113', 16, 'v112')
    a('v_cmp_gt_u32', 'vcc', 16, 'v0'); a('v_cndmask_b32', 'v112', 'v112', 'v114', 'vcc')
    a('v_and_b32', v(u), 2, 'v0'); a('v_lshlrev_b32', v(u), 15, v(u)); a('v_and_or_b32', v(u), 'v0', 1, v(u)); a('v_and_b32', 'v112', 0xfffefffe, 'v112'); a('v_or_b32', 'v112', 'v112', v(u))
    a('s_mul_i32', 's8', 's7', TBLK); a('s_add_u32', 's8', 's8', 160*128); a('v_add_u32', v(t), 's8', v(t))
    a('s_mov_b32', 'exec_hi', 0)
    a('global_store_dword', v(t), 'v112', WS_, mods=SC)
    a('s_mov_b64', 'exec', -1)
    a.label(sk)

def A2(a, HOOK):
    a.label('LA2')
    t, u, go, lw, lr, q, n = range(1, 8)
    wr = [8, 9, 10, 11]; lr2, wv, ww, ww2, pl_, ph_, msk, IL = 154, 155, 156, 157, 158, 160, 161, 44
    Fr, Fi, Mr, Mi, T1c, T2c, X, Wv, Z, AC, SW = 12, 16, 20, 24, 28, 36, 44, 52, 84, 100, 52
    a('s_cmp_ge_u32', 's9', 10); a('s_cselect_b32', 's11', 8, 0); a('s_cselect_b32', 's12', 10, 0); a('s_add_u32', 's11', 's11', 's4'); a('s_sub_u32', 's12', 's9', 's12')
    a('s_mul_i32', 's13', 's11', 10); a('s_add_u32', 's13', 's13', 's12')
    a('s_cmp_eq_u32', 's9', 20); a('s_cselect_b32', 's13', 160, 's13')
    a('s_mul_i32', 's14', 's12', 32*205); a('s_lshr_b32', 's14', 's14', 12); a('s_mul_i32', 's14', 's14', 20)
    a('v_lshrrev_b32', v(t), 3, 'v0'); a('v_and_b32', v(u), 7, 'v0'); a('v_mul_u32_u24', v(wv), 16*642, v(t)); a('v_lshl_add_u32', v(wv), v(u), 4, v(wv))
    a('s_lshl_b32', 's8', 's10', 9); a('s_add_u32', 's8', 's8', 's11'); a('s_mul_i32', 's8', 's8', 642); a('s_lshl1_add_u32', 's8', 's14', 's8'); a('s_bfe_u32', 's15', 's8', ((OPT['wal']-1) << 16) | 1); a('s_and_b32', 's8', 's8', -(1 << OPT['wal']))
    a('v_add_u32', v(wv), 's8', v(wv))
    WB = 2048*321*2
    def wload(ks=None):
        if ks is None: ks = range(OPT['wsp'], 4)
        lns = newlabel('La2'); a('s_cmp_eq_u32', 's9', 20); a('s_cbranch_scc1', lns)
        for k in ks:
            a('s_mov_b32', 's8', 128*642*k)
            for pl, sd in enumerate((12, 56)): a('buffer_load_dwordx4', v(SW+16*pl+4*k, 4), v(wv), s(sd, 4), 's8', mods='offen')
        a.label(lns)
    a('v_and_b32', v(n), 15, 'v0'); a('v_lshrrev_b32', v(q), 4, 'v0')
    a('v_lshrrev_b32', v(t), 3, 'v0'); a('v_lshl_add_u32', v(t), 's10', 3, v(t))
    a('v_mul_u32_u24', v(go), TBLK, v(t)); a('v_and_b32', v(u), 7, 'v0'); a('v_lshl_add_u32', v(go), v(u), 4, v(go)); a('s_lshl_b32', 's8', 's13', 7); a('v_add_u32', v(go), 's8', v(go))
    a('v_xor_b32', v(lw), v(t), v(u)); a('v_and_b32', v(lw), 7, v(lw)); a('v_lshlrev_b32', v(lw), 4, v(lw)); a('v_lshl_add_u32', v(lw), v(t), 7, v(lw)); a('v_add_u32', v(lw), 's62', v(lw))
    a('s_lshl_b32', 's8', 's10', 1); a('v_xor_b32', v(lr), 's8', v(u)); a('v_lshlrev_b32', v(lr), 4, v(lr)); a('v_lshl_add_u32', v(t), v(q), 5, v(u)); a('v_lshl_add_u32', v(lr), v(t), 7, v(lr))
    a('v_bfe_u32', v(t), 'v0', 3, 1); a('v_lshl_add_u32', v(lr), v(t), 2, v(lr)); a('v_add_u32', v(lr), 's62', v(lr)); a('v_xor_b32', v(lr2), 16, v(lr))
    a('v_lshrrev_b32', v(t), 3, 'v0')
    a('v_lshlrev_b32', v(u), 1, v(u)); a('v_xor_b32', v(u), v(t), v(u)); a('v_lshlrev_b32', v(t), 8, v(t)); a('v_lshl_add_u32', v(ww), v(u), 4, v(t)); a('s_lshl_b32', 's8', 's10', 13); a('s_add_u32', 's8', 's8', 's63'); a('v_add_u32', v(ww), 's8', v(ww)); a('v_xor_b32', v(ww2), 16, v(ww))
    rel, b_, o_, y_, c_, base = X, X+1, X+2, X+3, X+4, X+5
    a('v_and_b32', v(t), 1, v(q)); a('v_lshlrev_b32', v(base), 14, v(t)); a('v_add_u32', v(base), 's63', v(base))
    a('s_lshl_b32', 's8', 's12', 5); a('s_lshl2_add_u32', 's8', 's10', 's8'); a('s_sub_u32', 's8', 's8', 's14')
    a('v_lshrrev_b32', v(t), 5, 'v0'); a('v_lshl_add_u32', v(rel), v(t), 4, 's8')
    lsp2 = newlabel('La2'); lj2 = newlabel('La2')
    a('s_cmp_eq_u32', 's9', 20); a('s_cbranch_scc1', lsp2)
    a('v_lshl_add_u32', v(base), v(n), 8, v(base)); a('v_and_b32', v(X+6), 7, 'v0')
    for tt in range(4):
        if tt: a('v_add_u32', v(rel), 1, v(rel))
        a('v_mul_u32_u24', v(b_), 13, v(rel)); a('v_lshrrev_b32', v(b_), 8, v(b_)); a('v_mul_u32_u24', v(b_), 20, v(b_)); a('v_sub_u32', v(o_), v(rel), v(b_))
        a('v_lshrrev_b32', v(y_), 1, v(o_)); a('v_mul_u32_u24', v(y_), 5, v(y_)); a('v_and_b32', v(u), 1, v(o_)); a('v_add_u32', v(y_), v(y_), v(u))
        a('v_add_u32', v(c_), 1, v(y_)); a('v_sub_u32', v(y_), 39, v(y_)); a('v_cmp_gt_u32', 'vcc', 8, v(o_)); a('v_cndmask_b32', v(c_), v(y_), v(c_), 'vcc')
        a('v_mul_u32_u24', v(y_), 5, v(o_)); a('v_subrev_u32', v(y_), 80, v(y_)); a('v_cmp_gt_u32', 'vcc', 16, v(o_)); a('v_cndmask_b32', v(c_), v(y_), v(c_), 'vcc')
        a('v_add3_u32', v(c_), v(c_), v(b_), 's15')
        a('v_lshrrev_b32', v(y_), 2, v(c_)); a('v_xor_b32', v(y_), v(y_), v(X+6)); a('v_lshl_add_u32', v(wr[tt]), v(y_), 4, v(base))
        a('v_and_b32', v(c_), 3, v(c_)); a('v_lshl_add_u32', v(wr[tt]), v(c_), 2, v(wr[tt]))
    a('s_branch', lj2)
    a.label(lsp2)
    a('v_and_b32', v(u), 1, v(q)); a('v_lshl_add_u32', v(u), v(u), 6, v(n)); a('v_lshlrev_b32', v(base), 7, v(u)); a('v_lshl_add_u32', v(base), v(t), 2, v(base)); a('v_add_u32', v(base), 's62', v(base))
    a('s_and_b32', 's8', 's10', 1); a('s_lshl_b32', 's8', 's8', 1); a('s_add_u32', 's8', 's8', 4); a('v_xor_b32', v(u), 's8', v(n)); a('v_and_b32', v(u), 7, v(u))
    a('v_lshl_add_u32', v(wr[0]), v(u), 4, v(base)); a('v_xor_b32', v(wr[2]), 16, v(wr[0]))
    a.label(lj2)
    nf, qf, st, ang, C, S = Z, Z+1, Z+2, Z+4, Z+8, Z+12
    a('v_cvt_f32_u32', v(nf), v(n)); a('v_lshlrev_b32', v(qf), 2, v(q)); a('v_cvt_f32_u32', v(qf), v(qf))
    a('v_mul_f32', v(st), fl(1/16), v(nf)); a('v_mul_f32', v(ang), v(st), v(qf)); quad_trig(a, ang, st, C, S)
    for r in range(4):
        a('v_cvt_pk_bf16_f32', v(Fr+r), v(C+r), v(S+r)); a('v_cvt_pk_bf16_f32', v(Fi+r), '-' + v(S+r), v(C+r))
    a('v_and_b32', v(u), 7, 'v0'); a('v_cvt_f32_u32', v(u), v(u))
    a('v_mul_f32', v(st), fl(1/128), v(u)); a('v_mul_f32', v(ang), v(st), v(qf)); quad_trig(a, ang, st, T2c, T2c+4)
    a('v_and_b32', v(qf), 1, v(q)); a('v_lshlrev_b32', v(qf), 2, v(qf)); a('v_cvt_f32_u32', v(qf), v(qf))
    a('v_mul_f32', v(st), fl(1/128), v(nf)); a('v_mul_f32', v(ang), v(st), v(qf)); quad_trig(a, ang, st, T1c, T1c+4)
    a('v_mul_f32', v(st), fl(1/8), v(u)); a('v_mul_f32', v(ang), v(st), v(qf)); quad_trig(a, ang, st, C, S)
    a('v_bfe_u32', v(t), 'v0', 3, 1); a('v_lshrrev_b32', v(u), 5, 'v0'); a('v_cmp_eq_u32', 'vcc', v(t), v(u)); a('v_cndmask_b32', v(u), 0, -1, 'vcc')
    for r in range(4):
        a('v_cvt_pk_bf16_f32', v(Mr+r), v(C+r), v(S+r)); a('v_cvt_pk_bf16_f32', v(Mi+r), '-' + v(S+r), v(C+r))
        a('v_and_b32', v(Mr+r), v(u), v(Mr+r)); a('v_and_b32', v(Mi+r), v(u), v(Mi+r))
    srd(a, 12, 's18', 's19', WB); srd(a, 56, 's20', 's21', WB)
    if OPT['wsp']:
        a.wait(vm=0)
        wait_lds(a, C_ST, 8, t, u); wload(range(OPT['wsp']))
    HOOK()
    for it in range(4):
        a('s_add_u32', s(44+2*it), 's38', 32*TBLK*it); a('s_addc_u32', s(45+2*it), 's39', 0)
    a('v_mov_b32', v(pl_), 0x05040100); a('v_mov_b32', v(ph_), 0x07060302); a('v_mov_b32', v(msk), 0xffff0000)
    stamp(a, 3)
    if OPT['wpf'] == 1:
        wait_lds(a, C_A1D, 1, t, u); wpf(a)
    wait_lds(a, C_A1D, 8, t, u)
    a('s_setprio', 3)
    stamp(a, 7)
    def tl():
        for it in range(4): a('global_load_dwordx4', v(AC+4*it, 4), v(go), s(44+2*it, 2), mods=SC)
    if OPT['wat'] == -1:
        tl(); wload()
        keep = set().union(*a.vm) & {('v', k) for k in range(SW, SW+32)}
        lsw = newlabel('La2'); a('s_cmp_eq_u32', 's9', 20); a('s_cbranch_scc1', lsw)
        a.raw('    s_waitcnt vmcnt(8)'); a.bytes += 4
        first = True
        a.vm = [keep]
        for b in [AC+4*i for i in range(4)]:
            if first: a('v_bitop3_b32', v(t), v(b+3), v(b), v(b), mods='bitop3:0xcf')
            else: a('v_bitop3_b32', v(t), v(t), v(b+3), v(b), mods='bitop3:0xfb')
            a('v_bitop3_b32', v(t), v(t), v(b+1), 1, mods='bitop3:0xf6'); a('v_bitop3_b32', v(t), v(t), v(b+2), S_C, mods='bitop3:0xf6')
            first = False
        a('v_and_b32', v(t), 0x10001, v(t)); a('v_cmp_ne_u32', 'vcc', 0, v(t))
        lok = newlabel('La2'); a('s_cbranch_vccz', lok)
        a.label(lsw)
        poll_tags(a, tl, [AC+4*i for i in range(4)], t, 1, XS[0])
        a.label(lok)
    else:
        poll_tags(a, tl, [AC+4*i for i in range(4)], t, 1, XS[0])
    if OPT['wpf'] == 2: wpf(a)
    stamp(a, 8)
    for it in range(4): a('ds_write_b128', v(lw), v(AC+4*it, 4), mods=f'offset:{4096*it}')
    a('v_mov_b32', v(t), 's61'); a('v_mov_b32', v(u), 1); a.wait(lgkm=0); lds_cnt_add(a, t, u)
    if OPT['wat'] == 0: wload()
    lq = newlabel('La2'); a.label(lq)
    a('ds_read_b32', v(u), v(t)); a('v_readfirstlane_b32', 's40', v(u)); a('s_cmp_lt_u32', 's40', 4); a('s_cbranch_scc1', lq)
    stamp(a, 9)
    for tt in range(4):
        for al in range(4): a('ds_read_b32', v(Z+4*tt+al), v(lr2 if tt & 2 else lr), mods=f'offset:{1024*al + 8*(tt & 1)}')
    def w_regs():
        lg3 = newlabel('La2'); lg4 = newlabel('La2')
        a('s_cmp_eq_u32', 's9', 20); a('s_cbranch_scc1', lg4)
        if STAMPS[0]: a.wait(vm=0); stamp(a, 4)
        for k in range(4):
            for hh in range(2):
                for j in range(2):
                    r_, i_ = SW+4*k+2*hh+j, SW+16+4*k+2*hh+j
                    a('v_perm_b32', v(IL+4*hh+2*j), v(i_), v(r_), v(pl_)); a('v_perm_b32', v(IL+4*hh+2*j+1), v(i_), v(r_), v(ph_))
                a('ds_write_b128', v(ww2 if hh else ww), v(IL+4*hh, 4), mods=f'offset:{2048*k}')
        stamp(a, 5)
        subbar_s(a, 's60', 4, t, u)
        stamp(a, 6)
        for tt in range(4):
            for r in range(4): a('ds_read_b32', v(Wv+8*tt+4+r), v(wr[tt]), mods=f'offset:{4096*r}')
        a('s_branch', lg3)
        a.label(lg4)
        for tt in range(4):
            for r in range(4): a('ds_read_b32', v(Wv+8*tt+4+r), v(wr[tt & 2]), mods=f'offset:{8*(tt & 1) + 2048*r}')
        subbar_s(a, 's60', 4, t, u)
        pend = a.snap[lg3][0]
        a.label(lg3)
        a.lg = list(pend[1])
    def cm(tt, cc, ss, conj, swap_in, swap_out):
        for r in range(4):
            re, im = AC+8*tt+r, AC+8*tt+4+r
            if swap_in: re, im = im, re
            x0, x1 = X+2*(r & 1), X+2*(r & 1)+1
            a('v_mul_f32', v(x0), v(re), v(cc+r)); a('v_mul_f32', v(x1), v(im), v(cc+r))
            if conj: a('v_fmac_f32', v(x0), v(im), v(ss+r)); a('v_fma_f32', v(x1), '-' + v(re), v(ss+r), v(x1))
            else: a('v_fma_f32', v(x0), '-' + v(im), v(ss+r), v(x0)); a('v_fmac_f32', v(x1), v(re), v(ss+r))
            if swap_out: x0, x1 = x1, x0
            a('v_cvt_pk_bf16_f32', v(Z+4*tt+r), v(x0), v(x1))
    def mm(tt, dataA, R_, I_):
        for k, M in enumerate((R_, I_)):
            if dataA: a(MF, v(AC+8*tt+4*k, 4), v(Z+4*tt, 4), v(M, 4), 0)
            else: a(MF, v(AC+8*tt+4*k, 4), v(M, 4), v(Z+4*tt, 4), 0)
    for tt in range(4): mm(tt, True, Fr, Fi)
    if OPT['wat'] == 1: wload()
    for tt in range(4): cm(tt, T1c, T1c+4, True, False, False); mm(tt, False, Mr, Mi)
    if OPT['wat'] == 2: wload()
    stamp(a, 11)
    w_regs()
    stamp(a, 12)
    for tt in range(4):
        for r in range(4):
            a('v_lshlrev_b32', v(Wv+8*tt+r), 16, v(Wv+8*tt+4+r)); a('v_and_b32', v(Wv+8*tt+4+r), v(msk), v(Wv+8*tt+4+r))
        cm(tt, Wv+8*tt, Wv+8*tt+4, False, False, True); mm(tt, True, Mr, Mi)
    for tt in range(4): cm(tt, T2c, T2c+4, False, True, True); mm(tt, False, Fr, Fi)
    a('v_bfe_u32', v(t), 'v0', 3, 1); a('v_xor_b32', v(t), 1, v(t))
    for tt in range(4):
        for r in range(4):
            a('v_cvt_pk_bf16_f32', v(Z+4*tt+r), v(AC+8*tt+4+r), v(AC+8*tt+r)); a('v_and_or_b32', v(Z+4*tt+r), v(Z+4*tt+r), -2, v(t))
            a('ds_write_b32', v(lr2 if tt & 2 else lr), v(Z+4*tt+r), mods=f'offset:{1024*r + 8*(tt & 1)}')
    stamp(a, 10)
    a('s_add_u32', 's8', 's61', 8)
    subbar_s(a, 's8', 4, t, u)
    for it in range(4): a('ds_read_b128', v(AC+4*it, 4), v(lw), mods=f'offset:{4096*it}')
    for it in range(4): a('global_store_dwordx4', v(go), v(AC+4*it, 4), s(44+2*it, 2), mods=SC)
    a('s_setprio', 0)
    stamp(a, 13)
    if OPT['stop'] == 2: a('s_branch', 'Lfin'); return
    if OPT['dl'] == 0:
        ll = newlabel('La2'); a('s_and_b32', 's8', 's3', 14); a('s_cmp_lg_u32', 's8', 2); a('s_cbranch_scc1', ll)
        a('s_and_b32', 's99', 's3', 1); a('s_lshl_b32', 's99', 's99', 2); a('s_or_b32', 's99', 's99', 18); a('s_mov_b32', 's62', 0)
        arrive(a, C_A2+4+3, t, u)
        await_cnt(a, C_U+1, 4, t, u)
        a('s_branch', 'LB2p')
        a.label(ll)
    lh8 = newlabel('La2'); a('s_cmp_ge_u32', 's3', 8); a('s_cbranch_scc1', lh8)
    arrive(a, C_A2+4+3, t, u)
    a('s_branch', 'LA3')
    a.label(lh8)
    lt4 = newlabel('La2'); a('s_cmp_ge_u32', 's7', ND); a('s_cbranch_scc1', lt4)
    a('s_setprio', 3); a('s_mov_b32', 's52', L_T3); a3_tables(a)
    a.label(lt4)
    arrive(a, C_A2+3, t, u, vm=True)
    a('s_branch', 'Lfin')

def B1(a):
    import fin16
    fin16.L_VI, fin16.L_KI, fin16.WS_U, fin16.C_B1 = L_VI, L_KI, WS_U, C_B1
    fin16.B1(a)
def B3(a):
    import fin16
    fin16.L_VI, fin16.L_KI, fin16.WS_U, fin16.C_HZ, fin16.C_QL, fin16.C_Q, fin16.LS = L_VI, L_KI, WS_U, C_HZ, C_QL, C_Q, LS
    fin16.B3(a)

def auxO(a):
    a.label('LauxO')
    R = RegAlloc(1, 120); t = R.alloc(); u = R.alloc(); vo = R.alloc(); vh = R.alloc(); vh2 = R.alloc(); wa = R.alloc(); wh = R.alloc()
    T = R.alloc(12); D = R.alloc(54)
    a('s_sub_u32', 's62', 's3', 10); a('s_lshl_b32', 's62', 's62', 11)
    a('v_lshlrev_b32', v(t), 4, 'v0'); a('v_add_u32', v(vo), 's62', v(t)); a('v_subrev_u32', v(vh), 128, v(t)); a('v_subrev_u32', v(vh2), 112, v(t))
    a('v_add_u32', v(wh), L_CH, v(t)); a('v_add_u32', v(wa), 's62', v(wh))
    for k in range(4): a('v_mov_b32', v(T+k), 0)
    for lc in range(3): u_pad(a, lc, T, t)
    if OPT['hgate']: wait_lds(a, C_B1, OPT['hgate'], t, u)
    for lc in range(3):
        h_srd(a, lc)
        for b in range(2):
            a('buffer_load_dwordx4', v(D+18*lc+6*b, 4), v(vo), 's[44:47]', 0, mods=f'offen offset:{1024*b}')
            a('buffer_load_dwordx2', v(D+18*lc+6*b+4, 2), v(vo), 's[44:47]', 0, mods=f'offen offset:{1024*b+16}')
        h_load(a, D+18*lc+12, vh, vh2, 0)
    for lc in range(3):
        for b in range(2): h_expand(a, D+18*lc+6*b, T, wa, 128 + 1024*b)
        a('s_mov_b64', 'exec', 0xff)
        h_expand(a, D+18*lc+12, T, wh, 0)
        a('s_mov_b64', 'exec', -1)
        if lc < 2: a('v_add_u32', v(wa), CHS, v(wa)); a('v_add_u32', v(wh), CHS, v(wh))
    a('v_mov_b32', v(t), L_CNT + 4*C_H); a('v_mov_b32', v(u), 2); a.wait(lgkm=0); lds_cnt_add(a, t, u)
    stamp(a, 6)
    a('s_branch', 'LB2')

def B2(a):
    a.label('LB2')
    R = RegAlloc(1, 130)
    t = R.alloc(); u = R.alloc(); lw = R.alloc(); U = R.alloc(8); go = R.alloc(); fa = R.alloc(); msk = R.alloc()
    n = R.alloc(); q = R.alloc(); aa = R.alloc(); ba = R.alloc(); ba2 = R.alloc(); ia = R.alloc(); ra = R.alloc()
    fi = R.alloc(); sa = R.alloc(); sa2 = R.alloc(); sr = R.alloc(); zo = R.alloc(); ca = R.alloc()
    ACC = R.alloc(16); NW = 6; RA = R.alloc(4*NW + 2); RA2 = R.alloc(4*NW + 2); NBR = 6; RB = R.alloc(4*NBR)
    a.wait(lgkm=0)
    a('s_lshr_b32', 's9', 's3', 2); a('s_and_b32', 's10', 's3', 3)
    a('s_mul_i32', 's15', 's9', CHS); a('s_add_u32', 's15', 's15', L_CH + O_U)
    a('v_lshrrev_b32', v(t), 3, 'v0'); a('v_lshlrev_b32', v(t), 4, v(t)); a('v_lshl_add_u32', v(lw), 'v0', 4, v(t))
    a('s_mul_i32', 's8', 's10', 8*144); a('s_add_u32', 's8', 's8', 's15'); a('v_add_u32', v(lw), 's8', v(lw))
    a('s_add_u32', 's13', 's53', 's9')
    a('s_lshl_b32', 's8', 's13', 12); a('s_lshl_b32', 's12', 's10', 10); a('s_add_u32', 's8', 's8', 's12'); a('s_add_u32', 's8', 's8', WS_U)
    a('v_lshl_add_u32', v(go), 'v0', 4, 's8')
    a('s_lshl_b32', 's60', 's9', 2); a('s_add_u32', 's60', 's60', L_CNT + 4*C_U)
    a('s_sub_u32', 's11', 's10', 's9'); a('s_and_b32', 's11', 's11', 3); a('s_lshl2_add_u32', 's99', 's9', 's11'); a('s_or_b32', 's99', 's99', 16)
    a('s_cmp_lt_u32', 's7', ND); a('s_cselect_b32', 's63', 1, 0); a('s_cmp_eq_u32', 's5', 0); a('s_cselect_b32', 's63', 's63', 0)
    lj_ = newlabel('Lb2'); a('s_cmp_eq_u32', 's63', 0); a('s_cbranch_scc1', lj_)
    J = lambda l: sum((16 | lc << 2 | ro) << (5*i) for i, (lc, ro) in enumerate(l))
    lists = [[J([(0, 0)]), J([(1, 0)]), J([(0, 3), (1, 3)]), J([(0, 1), (1, 1)])],
             [J([(0, 2), (0, 0)]), J([(1, 2), (1, 0)]), J([(0, 3), (0, 1)]), J([(1, 3), (1, 1)])],
             [J([(0, 0)]), J([(1, 0)]), J([(0, 3), (1, 3), (0, 2)]), J([(0, 1), (1, 1), (1, 2)])]][OPT['dl']]
    a('s_mov_b32', 's56', lists[0] | lists[1] << 16); a('s_mov_b32', 's57', lists[2] | lists[3] << 16)
    a('s_lshl_b32', 's8', 's10', 4); a('s_lshr_b64', 's[56:57]', 's[56:57]', 's8'); a('s_and_b32', 's99', 's56', 0x7fff)
    a.label(lj_)
    a('s_mov_b32', 's62', 1)
    a.label('LB2p')
    a('s_bfe_u32', 's9', 's99', (2 << 16) | 2); a('s_and_b32', 's11', 's99', 3)
    a('s_add_u32', 's13', 's53', 's9')
    a('s_mul_i32', 's15', 's9', CHS); a('s_add_u32', 's15', 's15', L_CH + O_U)
    a('v_and_b32', v(n), 15, 'v0'); a('v_lshrrev_b32', v(q), 4, 'v0')
    a('v_mov_b32', v(msk), 0xffff0000)
    a('v_and_b32', v(t), 1, 'v0'); a('v_mul_u32_u24', v(aa), 529*16, v(t))
    a('v_bfe_u32', v(t), 'v0', 1, 1); a('v_mul_u32_u24', v(t), 264*16, v(t)); a('v_add_u32', v(aa), v(aa), v(t))
    a('v_bfe_u32', v(t), 'v0', 2, 2); a('v_lshl_add_u32', v(aa), v(t), 5, v(aa))
    a('s_cmp_eq_u32', 's11', 0); a('s_cselect_b32', 's12', 1, 0)
    a('s_add_u32', 's14', 's12', 8); a('v_lshl_add_u32', v(aa), v(q), 's14', v(aa))
    a('s_cmp_eq_u32', 's11', 1); a('s_cselect_b32', 's14', 2048, 0)
    a('s_cmp_eq_u32', 's11', 3); a('s_cselect_b32', 's14', 1040, 's14')
    a('s_add_u32', 's8', 's15', 's14'); a('s_sub_u32', 's8', 's8', O_U)
    a('v_add_u32', v(aa), 's8', v(aa))
    a('s_add_u32', 's14', 's12', 1); a('v_lshlrev_b32', v(t), 's14', v(q)); a('v_sub_u32', v(t), v(t), v(n))
    a('s_lshl_b32', 's14', 's12', 4); a('s_sub_u32', 's14', 31, 's14'); a('v_add_u32', v(t), 's14', v(t))
    a('v_mul_u32_u24', v(ba), 144, v(t)); a('v_add_u32', v(ba), 's15', v(ba))
    a('s_cmp_eq_u32', 's11', 2); a('s_cselect_b32', 's14', 31, 15)
    a('v_sub_u32', v(t), 's14', v(n)); a('v_mul_u32_u24', v(ia), 144, v(t)); a('v_add_u32', v(ia), 's15', v(ia))
    a('v_lshlrev_b32', v(t), 5, v(q)); a('v_sub_u32', v(ia), v(ia), v(t))
    a('s_add_u32', 's59', 's15', O_RED - O_U); a('v_lshl_add_u32', v(ra), 'v0', 4, 's59')
    lnh = newlabel('Lb2'); a('s_cmp_lg_u32', 's11', 3); a('s_cbranch_scc1', lnh)
    a('v_and_b32', v(t), 7, 'v0'); a('v_lshlrev_b32', v(u), 1, v(q)); a('v_sub_u32', v(u), v(u), v(t)); a('v_add_u32', v(u), 31, v(u))
    a('v_mul_u32_u24', v(ba), 144, v(u)); a('v_add_u32', v(ba), 's15', v(ba))
    a('v_and_b32', v(u), 8, 'v0'); a('v_xor_b32', v(u), 8, v(u)); a('v_lshl_add_u32', v(ba), v(u), 1, v(ba)); a('v_lshl_add_u32', v(ba2), v(u), 1, v(ba))
    a('v_lshl_add_u32', v(t), v(q), 3, v(t)); a('v_lshlrev_b32', v(t), 4, v(t)); a('v_and_b32', v(u), 8, 'v0'); a('v_lshl_add_u32', v(t), v(u), 7, v(t))
    a('v_add_u32', v(ra), 's59', v(t))
    a.label(lnh)
    a('s_lshl_b32', 's8', 's13', 1); a('s_sub_u32', 's8', 's8', 's96'); a('s_lshl_b32', 's8', 's8', 3)
    a('s_lshr_b64', 's[56:57]', 's[54:55]', 's8'); a('s_lshl_b32', 's58', 's56', 16)
    a('s_cmp_gt_u32', 's3', 5); a('s_cselect_b32', 's98', 2, 1); a('s_sub_u32', 's98', 's3', 's98'); a('s_min_u32', 's98', 's98', 8)
    a('s_cmp_lg_u32', 's12', 0); a('s_cselect_b32', 's98', 8, 's98')
    for x in range(16): a('v_mov_b32', v(ACC+x), 0)
    a('s_lshl_b32', 's14', 's9', 3); a('s_add_u32', 's14', 's14', L_CNT + 4*C_RED); a('v_mov_b32', v(ca), 's14')
    a('v_and_b32', v(u), 7, 'v0'); a('v_lshl_add_u32', v(u), v(q), 3, v(u)); a('s_lshl_b32', 's8', 's12', 11); a('s_add_u32', 's8', 's8', 's59'); a('s_add_u32', 's8', 's8', 4096)
    a('v_lshl_add_u32', v(fi), v(u), 4, 's8')
    a('v_sub_u32', v(t), 15, v(n)); a('v_lshlrev_b32', v(u), 1, v(q)); a('v_sub_u32', v(u), 6, v(u))
    a('v_xor_b32', v(u), v(t), v(u)); a('v_and_b32', v(u), 7, v(u)); a('v_lshlrev_b32', v(u), 4, v(u))
    a('v_lshl_add_u32', v(sa), v(t), 7, v(u)); a('v_add_u32', v(sa), 's8', v(sa)); a('v_xor_b32', v(sa2), 16, v(sa))
    a('v_lshrrev_b32', v(t), 3, 'v0'); a('v_xor_b32', v(u), v(t), 'v0'); a('v_and_b32', v(u), 7, v(u)); a('v_lshlrev_b32', v(u), 4, v(u))
    a('v_lshl_add_u32', v(sr), v(t), 7, v(u)); a('v_add_u32', v(sr), 's8', v(sr))
    a('s_lshl_b32', 's8', 's13', 12); a('s_lshl_b32', 's14', 's12', 11); a('s_sub_u32', 's8', 's8', 's14'); a('s_add_u32', 's8', 's8', WS_U + 2048)
    a('v_lshl_add_u32', v(zo), 'v0', 4, 's8')
    a('s_cmp_eq_u32', 's62', 0); a('s_cbranch_scc1', 'LB2go')
    stamp(a, 7)
    lo2 = newlabel('Lb2'); lo3 = newlabel('Lb2')
    a('s_cmp_lg_u32', 's5', 0); a('s_cbranch_scc1', lo3)
    wait_lds(a, OPT['eg'][0], OPT['eg'][1], t, u)
    a('s_branch', lo2)
    a.label(lo3)
    lx = newlabel('Lb2'); a('s_cmp_ge_u32', 's3', 10); a('s_cbranch_scc1', lx)
    arrive(a, C_B1D, t, u, vm=True)
    stamp(a, 6)
    a.label(lx)
    wait_lds(a, C_B1D, 10, t, u)
    a.label(lo2)
    stamp(a, 2)
    a('s_lshl_b32', 's8', 's63', 12); a('v_subrev_u32', v(fa), 's8', v(go))
    def ul():
        a('global_load_dwordx4', v(U, 4), v(go), WS_, mods=SC); a('global_load_dwordx4', v(U+4, 4), v(fa), WS_, mods=SC)
    poll_tags(a, ul, [U, U+4], t, 1, XS[0])
    sk2 = newlabel('Lb2'); a('s_cmp_eq_u32', 's63', 0); a('s_cbranch_scc1', sk2)
    a('v_subrev_u32', v(t), CHS, v(lw))
    a('ds_write_b128', v(t), v(U+4, 4))
    a.label(sk2)
    a('ds_write_b128', v(lw), v(U, 4))
    await_cnt(a, C_H, 4, t, u)
    stamp(a, 8)
    subbar_s(a, 's60', 4, t, u)
    a.label('LB2go')
    PD = 3
    def rdA(ring, w, off, last):
        if w > last: return
        a('ds_read_b128', v(ring + 4*(w % NW), 4), v(aa), mods=f'offset:{off + 16*w}')
        if w and w % NW == 0: a('ds_read_b64', v(ring+4*NW, 2), v(aa), mods=f'offset:{off + 16*w}')
    def rdB(tau, last, hi=False):
        if tau > last: return
        a('ds_read_b128', v(RB + 4*(tau % NBR), 4), v(ba2 if (hi and tau % 8 == 7) else ba), mods=f'offset:{144*(tau >> 3) + 16*(tau & 7)}')
    a('s_cmp_eq_u32', 's11', 3); a('s_cbranch_scc1', 'LB2hi')
    rdB(0, 32); rdA(RA, 1, 0, 33)
    for k in range(PD): rdB(k+1, 32); rdA(RA, k+2, 0, 33)
    lp_ = newlabel('Lb2'); a('s_cmp_eq_u32', 's11', 0); a('s_cbranch_scc1', lp_)
    a('s_setprio', 1)
    a('ds_read_b128', v(U, 4), v(ia), mods='offset:96'); a('ds_read_b128', v(U+4, 4), v(ia), mods='offset:112')
    for x in range(16):
        e = 15 - x
        if e & 1: a('v_and_b32', v(ACC+x), v(msk), v(U + (e >> 1)))
        else: a('v_lshlrev_b32', v(ACC+x), 16, v(U + (e >> 1)))
        a('v_mul_f32', v(ACC+x), 's58', v(ACC+x))
    pend = a.snap[lp_][0]
    a.label(lp_)
    a.lg = list(pend[1])
    stamp(a, 9)
    for tau in range(32):
        if tau == 16:
            a.raw('    s_cmp_eq_u32 s12, 0'); a.raw('    s_cbranch_scc1 LB2r'); a.bytes += 8
            a.snap.setdefault('LB2r', []).append((list(a.vm), list(a.lg)))
        d0 = (4*(tau+1)) % (4*NW)
        for k, (acc, dd, bt) in enumerate(((2, d0, tau), (3, d0+2, tau), (0, d0, tau+1), (1, d0+2, tau+1))):
            a(MF, v(ACC+4*acc, 4), v(RA+dd, 4), v(RB + 4*(bt % NBR), 4), v(ACC+4*acc, 4))
            if k == 1: rdB(tau + PD + 1, 32)
            if k == 3: rdA(RA, tau + PD + 2, 0, 33)
    a.label('LB2r'); a._nop(8)
    stamp(a, 10)
    lf = newlabel('Lb2')
    a('v_mov_b32', v(u), 1)
    a('s_cmp_lg_u32', 's11', 1); a('s_cbranch_scc1', lf)
    for tt in range(4): a('ds_write_b128', v(ra), v(ACC+4*tt, 4), mods=f'offset:{1024*tt}')
    a.wait(lgkm=0); lds_cnt_add(a, ca, u)
    a('s_branch', 'LB2end')
    a.label('LB2hi')
    a('s_setprio', 1)
    rdA(RA, 0, 0, 16); rdA(RA2, 0, 2048, 16)
    for k in range(PD): rdB(k, 15, True); rdA(RA, k+1, 0, 16); rdA(RA2, k+1, 2048, 16)
    stamp(a, 9)
    for tau in range(16):
        d0 = (4*tau) % (4*NW)
        for k, (acc, ring, dd) in enumerate(((0, RA, d0), (1, RA, d0+2), (2, RA2, d0), (3, RA2, d0+2))):
            a(MF, v(ACC+4*acc, 4), v(ring+dd, 4), v(RB + 4*(tau % NBR), 4), v(ACC+4*acc, 4))
            if k == 0: rdB(tau + PD, 15, True)
            if k == 1: rdA(RA, tau + PD + 1, 0, 16)
            if k == 3: rdA(RA2, tau + PD + 1, 2048, 16)
    stamp(a, 10)
    a('v_mov_b32', v(u), 1)
    for acc in range(4): a('ds_write_b128', v(ra), v(ACC+4*acc, 4), mods=f'offset:{4096 + 2048*(acc >> 1) + 512*(acc & 1)}')
    a.wait(lgkm=0)
    a('s_mov_b64', 'exec', 1); a('ds_add_u32', v(ca), v(u)); a('ds_add_u32', v(ca), v(u), mods='offset:4'); a('s_mov_b64', 'exec', -1)
    a('s_branch', 'LB2end')
    a.label(lf)
    a('s_lshl_b32', 's8', 's11', 1); a('v_add_u32', v(t), 's8', v(ca)); a('s_add_u32', 's14', 's12', 1)
    lp = newlabel('Lb2'); a.label(lp)
    a('ds_read_b32', v(u), v(t)); a('v_readfirstlane_b32', 's40', v(u)); a('s_cmp_lt_u32', 's40', 's14'); a('s_cbranch_scc1', lp)
    for tt in range(4): a('ds_read_b128', v(RA+4*tt, 4), v(fi), mods=f'offset:{512*tt}')
    ls = newlabel('Lb2'); a('s_cmp_eq_u32', 's12', 0); a('s_cbranch_scc1', ls)
    for tt in range(4): a('ds_read_b128', v(RB+4*tt, 4), v(ra), mods=f'offset:{1024*tt}')
    for x in range(16): a('v_add_f32', v(ACC+x), v(ACC+x), v(RB+x))
    a.label(ls)
    a('s_mov_b32', 'exec_lo', 0xff00ff00); a('s_mov_b32', 'exec_hi', 0xff00ff00)
    for x in range(16): a('v_add_f32', v(ACC+x), v(ACC+x), v(RA+x))
    a('s_mov_b64', 'exec', -1)
    for jj in range(8):
        a('v_cvt_pk_bf16_f32', v(U+jj), v(ACC+15-2*jj), v(ACC+14-2*jj)); tag2(a, U+jj, jj)
        if jj == 3: a('ds_write_b128', v(sa), v(U, 4))
    a('ds_write_b128', v(sa2), v(U+4, 4))
    a('ds_read_b128', v(RB, 4), v(sr)); a('ds_read_b128', v(RB+4, 4), v(sr), mods='offset:1024')
    a('global_store_dwordx4', v(zo), v(RB, 4), WS_, mods=SC)
    a('global_store_dwordx4', v(zo), v(RB+4, 4), WS_, mods=f'offset:1024 {SC}')
    a('s_cmp_eq_u32', 's5', 0); a('s_cbranch_scc1', 'LB2end')
    arrive(a, C_HZ, t, u, vm=True)
    a.label('LB2end')
    a('s_setprio', 0)
    a('s_mov_b32', 's62', 0); a.wait(lgkm=0)
    a('s_lshr_b32', 's99', 's99', 5); a('s_cbranch_scc1', 'LB2p')
    a('s_cmp_eq_u32', 's5', 0); a('s_cbranch_scc1', 'LA3' if OPT['stop'] == 0 else 'Lfin')
    a('s_cmp_eq_u32', 's98', 8); a('s_cbranch_scc1', 'LB3')
    srd(a, 44, 's22', 's23', 2048*1280)
    a('v_mul_u32_u24', v(t), 26, 'v0'); a('v_lshrrev_b32', v(t), 8, v(t)); a('v_mul_u32_u24', v(u), 1280 - 160, v(t)); a('v_lshl_add_u32', v(u), 'v0', 4, v(u))
    a('s_lshl_b32', 's8', 's6', 3); a('s_add_u32', 's8', 's8', 's98'); a('s_mul_i32', 's8', 's8', 16*1280); a('s_mul_i32', 's14', 's4', 160); a('s_add_u32', 's8', 's8', 's14')
    a('s_mul_i32', 's14', 's98', 2*1296); a('s_mov_b32', 'exec_hi', 0xff)
    for k in range(4):
        a('s_add_u32', 'm0', 's14', L_VI + (k >> 1)*1296 + (k & 1)*640)
        a('buffer_load_dwordx4', v(u), 's[44:47]', 's8', mods='offen lds')
        if k < 3: a('s_addk_i32', 's8', 4*1280)
    a('s_mov_b64', 'exec', -1)
    arrive(a, C_QL, t, u, vm=True)
    a('s_branch', 'LB3')

def build(stamps=False):
    STAMPS[0] = stamps
    roles.WS_ST = 0xD00000
    for it in range(4):
        roles._lbl[0] = 0
        a = Asm(); a.ignore = {('v', k) for k in (159, 162, 163, 164, 165, 166, 167)}
        a.raw(f"; @launch grid=(256,1,1) block=(768,1,1) lds={LDS_TOTAL}")
        a.raw('.amdgcn_target "amdgcn-amd-amdhsa--gfx950"\n.text')
        entry(a)
        A1(a); auxE(a); A2(a, lambda: h_even(a, 1)); B1(a); auxO(a); B2(a)
        A3(a); a('s_branch', 'Lfin')
        B3(a)
        a.label('Lfin'); stamp_flush(a, 0); a('s_endpgm')
        a.raw('.p2align 10')
        if OPT['stop']: a.raw('.fill 4096, 4, 0xbf800000')
        a.raw(kernel_desc(KNAME, 168, 102))
        hi = max(0, (a.bytes + 1023)//1024*1024 - 12288)
        if hi == CODE_HI[0]: break
        CODE_HI[0] = hi
    print('est bytes', a.bytes, 'instrs', a.nins, 'maxv', a.maxv)
    return a.text()

if __name__ == '__main__':
    open('m16.s', 'w').write(build(False))
    open('m16st.s', 'w').write(build(True))
    OPT['a3p'] = 0; open('m16a.s', 'w').write(build(False))
```

```python
import m16
hdr = open('concat_heads__spectral_gfnet__ssm_conv_h3__prompt.s.ref').read().split('; Override launch geometry')[0]
doc = """; One persistent launch, 256 workgroups (one per CU, 160 KB LDS) x 12 waves; generated by gen/m16.py (hand-written generator).
"""
body = m16.build(False)
lines = body.split('\n', 1)
open('concat_heads__spectral_gfnet__ssm_conv_h3__prompt.s', 'w').write(hdr + doc + lines[0] + '\n' + lines[1])
```

```python
import sys
from asmlib import *
import roles
from roles import (X_, WR_, WI_, Q_, K_, V_, SK_, H_, D_, OUT_, DBG_, WS_, HSZ, newlabel, stamp, stamp_flush, sincos, srd, quad_voff, STAMPS)
KNAME = "concat_heads__spectral_gfnet__ssm_conv_h3__prompt_kernel"
SPIN = 1 << 15
SC = 'sc1'
TBLK = 161*128
WS_U = 0x300000
L_CNT = 0
USZ = 40*144; O_U = HSZ; O_RED = 22784; CHS = 30976; L_CH = 256
L_FREE = L_CH + 2*CHS
L_P1 = 163840 - 47616
L_EI = L_P1; EP = 2880; L_XR = L_EI + 8*EP
L_KI = L_P1; L_VI = L_KI + 17*1296
LDS_TOTAL = 163840
L_W1 = L_FREE; L_T1 = L_FREE + 32768
L_T2 = L_T1 + 16384; L_W2 = L_T2 + 16384
assert L_W2 + 32768 <= 163840 and L_T2 <= L_P1 and L_FREE % 256 == 0 and L_P1 % 256 == 0 and L_XR % 128 == 0
TABH, TABG = L_CH + O_RED, L_CH + CHS + O_RED
TABW = [TABH + 6144, TABG + 6144, L_CH + O_U]
L_T3 = L_W1
L_T3B = 163840 - 16384
roles.L_CNT, roles.L_KI, roles.L_VI = L_CNT, L_KI, L_VI
from roles import subbar, arrive, await_cnt, b13_lane
import pk17 as P
P.L_CNT = L_CNT
from pk17 import lds_cnt_add, subbar_s, tag_consts, tag1, tag2, poll_tags, wait_lds, h_srd, h_load, h_expand, S_M, S_C
from fin16 import row_offsets
roles.L_CNT, roles.L_KI, roles.L_VI = L_CNT, L_KI, L_VI
C_A1, C_A1D, C_W1, C_WR, C_A3, C_B1, C_B1D, C_H, C_Q, C_QL, C_A2, C_X, C_HZ = 0, 1, 2, 3, 4, 5, 6, 7, 8, 9, 10, 19, 23
C_ST = 30; C_SP = 31; L_SPB = 160
C_U, C_RED = 20, 24
XS, LS = [8], [8]
OPT = dict(wgate=8, hgate=1, stop=0, eg=(C_A2, 1), tm=None, wearly=1, wlate=0, wpf=0, wat=1, dl=1, wal=2, wsp=0, a3p=1, wge=(C_X, 8))
ND = 33
MF = 'v_mfma_f32_16x16x32_bf16'

def bar0(a):
    a.wait(lgkm=0)
    a('s_lshl_b32', 's96', 's53', 1); a('s_and_b32', 's96', 's96', -4); a('s_min_u32', 's96', 's96', 1272)
    a('s_load_dwordx2', 's[54:55]', D_, 's96')
    stamp(a, 1)
    a('s_barrier')

def u_pad(a, slc, Zr, t):
    a('s_mul_i32', 's8', slc, CHS); a('s_add_u32', 's8', 's8', L_CH + O_U + 32*144)
    a('v_lshl_add_u32', v(t), 'v0', 4, 's8')
    a('ds_write_b128', v(t), v(Zr, 4))
    a('s_mov_b64', 'exec', 0xff); a('ds_write_b128', v(t), v(Zr, 4), mods='offset:1024'); a('s_mov_b64', 'exec', -1)

CODE_HI = [6144]
def entry(a):
    a.raw(f".globl {KNAME}\n.p2align 12\n.type {KNAME},@function\n{KNAME}:")
    a('s_cmp_ge_u32', 's2', 256); a('s_cbranch_scc1', 'Lexit')
    if STAMPS[0]:
        for i in range(1, 16): a('s_mov_b32', s(64+2*i), 0)
    stamp(a, 0)
    a('s_load_dwordx16', 's[16:31]', 's[0:1]', 0)
    a('s_load_dwordx8', 's[32:39]', 's[0:1]', 64)
    a('s_getpc_b64', 's[42:43]'); a('s_and_b32', 's42', 's42', 0xfffff000)
    a('s_bitcmp1_b32', 's2', 3); a('s_cselect_b32', 's8', CODE_HI[0], 0); a('s_add_u32', 's42', 's42', 's8'); a('s_addc_u32', 's43', 's43', 0)
    a('v_lshlrev_b32', 'v2', 4, 'v0'); a('v_mov_b32', 'v3', 's43')
    a('v_add_co_u32', 'v2', 'vcc', 's42', 'v2'); a('v_addc_co_u32', 'v3', 'vcc', 0, 'v3', 'vcc')
    a('global_load_dwordx4', 'v[164:167]', 'v[2:3]', 'off')
    a('v_lshrrev_b32', 'v1', 6, 'v0'); a('v_and_b32', 'v0', 63, 'v0')
    a('v_readfirstlane_b32', 's3', 'v1')
    a('s_and_b32', 's4', 's2', 7); a('s_bfe_u32', 's5', 's2', (1 << 16) | 3); a('s_lshr_b32', 's6', 's2', 4)
    a('s_lshl3_add_u32', 's7', 's6', 's4')
    tag_consts(a)
    a('s_mul_i32', 's53', 's4', 80); a('s_mul_i32', 's8', 's6', 5); a('s_add_u32', 's53', 's53', 's8'); a('s_lshl1_add_u32', 's53', 's5', 's53')
    a('v_lshlrev_b32', 'v1', 2, 'v0'); a('v_mov_b32', 'v2', 0)
    a('ds_write_b32', 'v1', 'v2', mods=f'offset:{L_CNT}')
    a('s_cmp_lg_u32', 's5', 0); a('s_cbranch_scc1', 'LentO')
    a('s_cmp_ge_u32', 's3', 8); a('s_cbranch_scc1', 'LentP')
    a('s_lshl_b32', 's9', 's3', 7); a('s_add_u32', 's9', 's9', 's7'); a('s_mul_i32', 's10', 's9', 1280)
    row_offsets(a, [1, 2, 3], 4, 's10', 1024*1280)
    a('s_mul_i32', 's11', 's3', 3072); a('s_add_u32', 's11', 's11', L_XR); a('s_mov_b32', 'm0', 's11')
    for t in range(3): a('global_load_lds_dwordx4', v(1+t), X_, mods=f'offset:{1024*t}')
    a('s_branch', 'LA1')
    a.label('LentP')
    a('s_mul_i32', 's10', 's6', 128*1280); a('s_mul_i32', 's8', 's4', 160); a('s_add_u32', 's10', 's10', 's8')
    a('s_bitcmp1_b32', 's3', 0); a('s_cselect_b32', 's8', 156, 0); a('s_add_u32', 's10', 's10', 's8'); a('s_add_u32', 's10', 's10', 64*1280)
    a('v_mul_u32_u24', 'v1', 1280, 'v0'); a('v_add_u32', 'v1', 's10', 'v1')
    a('s_bitcmp1_b32', 's3', 1); a('s_cselect_b64', 's[12:13]', V_, K_)
    a('global_load_dword', 'v163', 'v1', 's[12:13]')
    a('s_add_u32', 's8', 's53', 2); a('s_lshl_b32', 's8', 's8', 12); a('s_sub_u32', 's9', 's3', 8); a('s_mul_i32', 's9', 's9', 3072); a('s_add_u32', 's8', 's8', 's9')
    a('v_min_u32', 'v1', 23, 'v0'); a('v_lshl_add_u32', 'v1', 'v1', 7, 's8')
    a('global_load_dword', 'v162', 'v1', H_)
    a('s_branch', 'Lbar0')
    a.label('LentO')
    a('s_cmp_ge_u32', 's3', 9); a('s_cbranch_scc1', 'Lbar0')
    R = RegAlloc(1, 120)
    vo = quad_voff(a, R); t = R.alloc()
    a('s_mul_i32', 's10', 's6', 128*1280); a('s_mul_i32', 's8', 's4', 160); a('s_add_u32', 's10', 's10', 's8')
    a('s_sub_u32', 's8', 's10', 4*1280); a('v_add_u32', v(t), 's8', v(vo))
    NB = 2048*1280
    srd(a, 44, 's24', 's25', NB); srd(a, 48, 's26', 's27', NB)
    a('s_mov_b32', 'exec_hi', 0xff)
    a('s_cmp_eq_u32', 's3', 8); a('s_cbranch_scc1', 'LentH')
    a('s_mul_i32', 's11', 's3', 8*1280); a('s_add_u32', 's11', 's11', 's10')
    a('s_mul_i32', 's12', 's3', 1296); a('s_add_u32', 's12', 's12', L_KI + 1296)
    for k in range(4):
        a('s_mov_b32', 'm0', 's12')
        a('buffer_load_dwordx4', v(vo), 's[44:47]', 's11', mods='offen lds')
        a('s_add_u32', 'm0', 's12', L_VI - L_KI - 1296)
        a('buffer_load_dwordx4', v(vo), 's[48:51]', 's11', mods='offen lds')
        if k == 1: a('s_add_u32', 's11', 's11', 60*1280); a('s_addk_i32', 's12', 8*1296 - 640)
        elif k < 3: a('s_addk_i32', 's11', 4*1280); a('s_addk_i32', 's12', 640)
    a('s_branch', 'LentX')
    a.label('LentH')
    a('s_mov_b32', 'm0', L_KI + 640)
    a('buffer_load_dwordx4', v(t), 's[44:47]', 0, mods='offen lds')
    a.label('LentX')
    a('s_mov_b64', 'exec', -1)
    a.label('Lbar0')
    bar0(a)
    a('s_cmp_eq_u32', 's5', 0); a('s_cbranch_scc1', 'LauxE')
    a('s_cmp_ge_u32', 's3', 10); a('s_cbranch_scc1', 'LauxO')
    a('s_branch', 'LB1')
    a.label('Lexit')
    a('s_endpgm')

def quad_trig(a, ang, step, C, S):
    for r in range(1, 4): a('v_add_f32', v(ang+r), v(ang+r-1), v(step))
    for r in range(4): sincos(a, ang+r, C+r, S+r)

def a1_tables(a):
    n, q, qf, st, t, ad, ang, C, S, PK = 5, 6, 7, 8, 9, 10, 12, 16, 20, 24
    a('v_and_b32', v(n), 15, 'v0'); a('v_lshrrev_b32', v(q), 4, 'v0'); a('v_mul_u32_u24', v(n), 5, v(n))
    a('s_mov_b32', 's12', 's3')
    lp = newlabel('Lc'); ltw = newlabel('Lc'); lnx = newlabel('Lc')
    a.label(lp)
    a('s_cmp_ge_u32', 's12', 11); a('s_cbranch_scc1', ltw)
    a('s_cmp_ge_u32', 's12', 5); a('s_cselect_b32', 's13', 2, 1); a('s_cselect_b32', 's14', 5, 0); a('s_sub_u32', 's14', 's12', 's14')
    a('s_cmp_eq_u32', 's12', 10); a('s_cselect_b32', 's13', 0, 's13')
    a('v_add_u32', v(st), 's13', v(n)); a('v_cvt_f32_u32', v(st), v(st)); a('v_mul_f32', v(st), fl(1/80), v(st))
    a('v_lshlrev_b32', v(qf), 2, v(q)); a('v_cvt_f32_u32', v(qf), v(qf))
    a('s_mul_i32', 's8', 's13', 's14'); a('v_cvt_f32_u32', v(t), 's8'); a('v_mul_f32', v(t), fl(0.2), v(t))
    a('v_fma_f32', v(ang), v(st), v(qf), v(t))
    quad_trig(a, ang, st, C, S)
    for h in range(2):
        a('v_cvt_pk_bf16_f32', v(PK+h), v(C+2*h), v(C+2*h+1)); a('v_cvt_pk_bf16_f32', v(PK+2+h), '-' + v(S+2*h), '-' + v(S+2*h+1))
    a('s_sub_u32', 's15', 's13', 1); a('s_lshl_b32', 's8', 's15', 2); a('s_add_u32', 's8', 's8', 's14')
    a('s_add_u32', 's15', 's15', 8); a('s_cmp_eq_u32', 's14', 4); a('s_cselect_b32', 's8', 's15', 's8')
    a('s_cmp_eq_u32', 's12', 10); a('s_cselect_b32', 's8', 10, 's8'); a('s_cselect_b32', 's41', 8, 0)
    a('s_lshr_b32', 's15', 's8', 1); a('s_lshl_b32', 's15', 's15', 10); a('s_and_b32', 's8', 's8', 1); a('s_lshl3_add_u32', 's8', 's8', 's15'); a('s_add_u32', 's8', 's8', TABH)
    a('v_lshl_add_u32', v(ad), 'v0', 4, 's8'); a('v_add_u32', v(t), 's41', v(ad))
    for r_ in (ad, t):
        a('ds_write_b64', v(r_), v(PK, 2)); a('ds_write_b64', v(r_), v(PK+2, 2), mods=f'offset:{CHS}')
    a('s_branch', lnx)
    a.label(ltw)
    a('s_sub_u32', 's13', 's12', 11)
    a('v_add_u32', v(st), 's13', v(n)); a('v_cvt_f32_u32', v(st), v(st)); a('v_mul_f32', v(st), fl(1/640), v(st))
    a('v_and_b32', v(qf), 1, v(q)); a('v_lshlrev_b32', v(qf), 2, v(qf)); a('v_cvt_f32_u32', v(qf), v(qf))
    a('v_mul_f32', v(ang), v(st), v(qf))
    quad_trig(a, ang, st, C, S)
    a('s_mul_i32', 's8', 's13', CHS); a('s_add_u32', 's8', 's8', TABW[0]); a('s_cmp_eq_u32', 's13', 2); a('s_cselect_b32', 's8', TABW[2], 's8')
    a('v_lshl_add_u32', v(ad), 'v0', 4, 's8')
    a('ds_write_b128', v(ad), v(C, 4)); a('ds_write_b128', v(ad), v(S, 4), mods='offset:1024')
    a.label(lnx)
    a('s_add_u32', 's12', 's12', 8); a('s_cmp_lt_u32', 's12', 14); a('s_cbranch_scc1', lp)

def a3_tables(a, first=8, step=4):
    n, q, t, ad, k1, ang, C, S, PK = 132, 133, 134, 135, 136, 136, 140, 144, 148
    a('v_and_b32', v(n), 15, 'v0'); a('v_lshrrev_b32', v(q), 4, 'v0')
    a('s_sub_u32', 's12', 's3', first)
    lp = newlabel('Lc'); ltw = newlabel('Lc'); lnx = newlabel('Lc')
    a.label(lp)
    a('s_cmp_ge_u32', 's12', 5); a('s_cselect_b32', 's13', 1, 0); a('s_sub_u32', 's8', 's12', 10); a('s_cmp_ge_u32', 's12', 10); a('s_cselect_b32', 's13', 's8', 's13')
    a('s_cmp_eq_u32', 's13', 2); a('s_cselect_b32', 's14', 20, 10); a('s_mov_b32', 's15', 0x07060201); a('s_cselect_b32', 's15', 0x0f0a0500, 's15')
    a('s_and_b32', 's8', 's13', 1); a('s_mul_i32', 's8', 's8', 40)
    a('v_mul_lo_u32', v(t), v(q), 's14'); a('v_add_u32', v(t), 's8', v(t))
    for r in range(4):
        a('s_bfe_u32', 's8', 's15', (8 << 16) | (8*r)); a('v_add_u32', v(k1+r), 's8', v(t))
    a('s_cmp_ge_u32', 's12', 10); a('s_cbranch_scc1', ltw)
    a('s_mul_i32', 's8', 's13', 5); a('s_sub_u32', 's8', 's12', 's8'); a('s_lshl_b32', 's8', 's8', 4); a('v_add_u32', v(t), 's8', v(n))
    for r in range(4):
        a('v_mul_u32_u24', v(ang+r), v(t), v(k1+r)); a('v_cvt_f32_u32', v(ang+r), v(ang+r)); a('v_mul_f32', v(ang+r), fl(1/80), v(ang+r))
    for r in range(4): sincos(a, ang+r, C+r, S+r)
    for h in range(2):
        a('v_cvt_pk_bf16_f32', v(PK+h), v(C+2*h), v(C+2*h+1)); a('v_cvt_pk_bf16_f32', v(PK+2+h), '-' + v(S+2*h), '-' + v(S+2*h+1))
    a('s_lshl_b32', 's8', 's12', 10); a('s_add_u32', 's8', 's8', 's52'); a('v_lshl_add_u32', v(ad), 'v0', 4, 's8')
    a('ds_write_b128', v(ad), v(PK, 4))
    a('s_branch', lnx)
    a.label(ltw)
    a('v_and_b32', v(t), 7, 'v0')
    for r in range(4):
        a('v_mul_u32_u24', v(ang+r), v(t), v(k1+r)); a('v_cvt_f32_u32', v(ang+r), v(ang+r)); a('v_mul_f32', v(ang+r), fl(1/640), v(ang+r))
    for r in range(4): sincos(a, ang+r, C+r, S+r)
    a('s_lshl_b32', 's8', 's13', 11); a('s_add_u32', 's8', 's8', 10240); a('s_add_u32', 's8', 's8', 's52')
    a('v_lshl_add_u32', v(ad), 'v0', 4, 's8')
    a('ds_write_b128', v(ad), v(C, 4)); a('ds_write_b128', v(ad), v(S, 4), mods='offset:1024')
    a.label(lnx)
    a('s_add_u32', 's12', 's12', step); a('s_cmp_lt_u32', 's12', 13); a('s_cbranch_scc1', lp)

def m2_angles(a, tmp, inv):
    u2, t, u, ang, C, S = tmp, tmp+1, tmp+2, tmp+3, tmp+7, tmp+11
    a('v_and_b32', v(u2), 7, 'v0'); a('v_cvt_f32_u32', v(u2), v(u2)); a('v_mul_f32', v(u2), fl(1/8), v(u2))
    a('v_bfe_u32', v(t if inv else u), 'v0', 3, 1); a('v_lshrrev_b32', v(u if inv else t), 5, 'v0')
    a('v_lshl_add_u32', v(t), v(t), 10, 's9'); a('v_mul_u32_u24', v(t), v(t), v(u))
    a('v_cvt_f32_u32', v(t), v(t)); a('v_mul_f32', v(t), fl(1/2048), v(t))
    a('v_lshlrev_b32', v(C), 27 if inv else 29, 'v0'); a('v_and_b32', v(C), 0x80000000, v(C)); a('v_xor_b32', v(t), v(t), v(C))
    a('v_bfe_u32', v(u), 'v0', 4, 1); a('v_lshlrev_b32', v(u), 2, v(u)); a('v_cvt_f32_u32', v(u), v(u))
    a('v_fma_f32', v(ang), v(u2), v(u), v(t))
    a('v_lshrrev_b32', v(u), 16, v(C)); a('v_or_b32', v(u), v(u), v(C))
    quad_trig(a, ang, u2, C, S)
    return C, S, u

def msg_addrs(a, go, go2, gs, t):
    a('s_mul_i32', 's8', 's7', TBLK)
    a('s_and_b32', 's12', 's3', 1); a('s_mul_i32', 's13', 's12', 1280); a('s_lshr_b32', 's14', 's3', 1); a('s_lshl_b32', 's14', 's14', 7)
    a('s_add_u32', 's13', 's13', 's14'); a('s_add_u32', 's13', 's13', 's8')
    a('v_lshrrev_b32', v(t), 4, 'v0'); a('v_mul_u32_u24', v(go), 2560 - 128, v(t)); a('v_lshl_add_u32', v(go), 'v0', 3, v(go)); a('v_add_u32', v(go), 's13', v(go))
    a('v_add_u32', v(go2), 10240, v(go))
    a('s_lshl2_add_u32', 's8', 's12', 's8'); a('s_add_u32', 's8', 's8', 160*128); a('v_lshl_add_u32', v(gs), v(t), 3, 's8')

def A1(a):
    a.label('LA1')
    a('s_setprio', 2)
    a('s_mul_i32', 's10', 's3', EP); a('s_add_u32', 's10', 's10', L_EI)
    a('v_lshrrev_b32', 'v5', 4, 'v0'); a('v_mul_u32_u24', 'v5', 704 - 64, 'v5'); a('v_lshl_add_u32', 'v5', 'v0', 2, 'v5'); a('v_add_u32', 'v5', 's10', 'v5'); a('v_mov_b32', 'v6', 0)
    a('ds_write_b32', 'v5', 'v6', mods='offset:640')
    a1_tables(a)
    bar0(a)
    t, u, q, tra, wd, wz, tr2, go, go2, gs, hf, mk, tl0, tl1, tls = range(1, 16)
    Hs, Gs, TW, Mre, Mim, M3, AC, Dr, PK, X = 16, 40, 64, 88, 92, 96, 104, 128, 138, 150
    a('v_lshlrev_b32', v(u), 4, 'v0'); a('v_add_u32', v(t), TABH, v(u)); a('v_add_u32', v(u), TABW[2], v(u))
    C, S, sg = m2_angles(a, AC, False)
    for r in range(4):
        a('v_cvt_pk_bf16_f32', v(Mre+r), v(C+r), v(S+r)); a('v_cvt_pk_bf16_f32', v(Mim+r), '-' + v(S+r), v(C+r)); a('v_xor_b32', v(Mim+r), v(sg), v(Mim+r))
    a.wait(lgkm=0)
    for k in (4, 0, 1, 2, 3, 5):
        a('ds_read_b128', v(Hs+4*k, 4), v(t), mods=f'offset:{1024*k}'); a('ds_read_b128', v(Gs+4*k, 4), v(t), mods=f'offset:{CHS+1024*k}')
    for h in range(2):
        a('ds_read_b128', v(TW+8+4*h, 4), v(t), mods=f'offset:{CHS+6144+1024*h}')
    for h in range(2):
        a('ds_read_b128', v(TW+16+4*h, 4), v(u), mods=f'offset:{1024*h}'); a('ds_read_b128', v(TW+4*h, 4), v(t), mods=f'offset:{6144+1024*h}')
    a('v_lshrrev_b32', v(q), 4, 'v0')
    a('v_bfe_u32', v(tra), 'v0', 1, 1); a('v_mul_u32_u24', v(tra), 1408, v(tra))
    a('v_and_b32', v(t), 1, 'v0'); a('v_lshl_add_u32', v(tra), v(t), 3, v(tra)); a('v_lshrrev_b32', v(t), 2, 'v0'); a('v_lshl_add_u32', v(tra), v(t), 4, v(tra)); a('v_add_u32', v(tra), 's11', v(tra))
    fh, ph, an = X, X+1, X+2
    a('v_and_b32', v(t), 1, 'v0'); a('v_lshrrev_b32', v(u), 5, 'v0'); a('v_sub_u32', v(t), v(t), v(u)); a('v_cvt_f32_i32', v(ph), v(t)); a('v_mul_f32', v(ph), fl(0.25), v(ph))
    a('v_bfe_u32', v(t), 'v0', 1, 1); a('v_bfe_u32', v(u), 'v0', 4, 1); a('v_cmp_eq_u32', 'vcc', v(t), v(u)); a('v_cndmask_b32', v(mk), 0, -1, 'vcc')
    a('v_cvt_f32_u32', v(t), 's7'); a('v_mul_f32', v(t), fl(1/128), v(t))
    for mu in range(2):
        a('v_bfe_u32', v(fh), 'v0', 2, 2)
        if mu: a('v_add_u32', v(fh), 4, v(fh))
        a('v_cvt_f32_u32', v(fh), v(fh)); a('v_mul_f32', v(fh), fl(1/8), v(fh))
        a('v_fma_f32', v(an), v(fh), v(t), v(ph))
        for i in range(8):
            a('v_cos_f32', v(an+1+(i & 1)), v(an))
            if i < 7: a('v_add_f32', v(an), v(an), v(fh))
            if i & 1:
                a('v_cvt_pk_bf16_f32', v(M3+4*mu+(i >> 1)), v(an+1), v(an+2)); a('v_and_b32', v(M3+4*mu+(i >> 1)), v(mk), v(M3+4*mu+(i >> 1)))
    a('v_mov_b32', v(go), L_CNT + 4*C_X); a('v_mov_b32', v(go2), 1)
    stamp(a, 2)
    a.wait(vm=0)
    stamp(a, 3)
    for e in (4, 0, 1, 2, 3): a('ds_read_b64_tr_b16', v(Dr+2*e, 2), v(tra), mods=f'offset:{256*e}')
    lds_cnt_add(a, go, go2)
    a('v_and_b32', v(t), 7, 'v0'); a('v_lshl_add_u32', v(t), v(t), 2, v(q)); a('v_sub_u32', v(u), 31, v(t)); a('v_cmp_gt_u32', 'vcc', 16, v(t))
    a('v_min_u32', v(u), v(t), v(u)); a('v_mul_u32_u24', v(wd), 40, v(u)); a('v_add_u32', v(wz), 32, v(wd)); a('v_add_u32', v(u), 16, v(wd)); a('v_cndmask_b32', v(wd), v(u), v(wd), 'vcc')
    a('v_mov_b32', v(u), 656); a('v_cndmask_b32', v(wz), v(u), v(wz), 'vcc')
    a('v_cmp_eq_u32', 'vcc', 16, v(t)); a('v_mov_b32', v(u), 640); a('v_cndmask_b32', v(wz), v(wz), v(u), 'vcc')
    a('v_and_b32', v(u), 15, v(t)); a('v_cmp_eq_u32', 'vcc', 0, v(u)); a('v_cndmask_b32', v(hf), 1.0, 0.5, 'vcc')
    SL = {1: (0, 1, 16), 2: (2, 3, 18), 0: (5, 5, 20)}
    for k5 in (1, 2, 0):
        for ri, M in enumerate((Hs, Gs)): a('v_mfma_f32_16x16x16_bf16', v(AC+8*k5+4*ri, 4), v(Dr+8, 2), v(M+SL[k5][2], 2), 0)
    a('v_bfe_u32', v(u), 'v0', 3, 1); a('v_mul_u32_u24', v(u), 1408, v(u)); a('v_add_u32', v(u), 's10', v(u)); a('v_add_u32', v(wd), v(wd), v(u)); a('v_add_u32', v(wz), v(wz), v(u))
    for k5 in (1, 2, 0):
        for p in range(2):
            for ri, M in enumerate((Hs, Gs)): a(MF, v(AC+8*k5+4*ri, 4), v(Dr+4*p, 4), v(M+4*SL[k5][p], 4), v(AC+8*k5+4*ri, 4))
        if k5 == 1:
            msg_addrs(a, go, go2, gs, t)
        if k5 == 2:
            a('v_bfe_u32', v(tr2), 'v0', 2, 2); a('v_mul_u32_u24', v(tr2), EP, v(tr2)); a('v_and_b32', v(t), 3, 'v0'); a('v_lshl_add_u32', v(tr2), v(t), 3, v(tr2))
            a('v_and_b32', v(t), 1, v(q)); a('v_lshl_add_u32', v(tr2), v(t), 5, v(tr2)); a('v_lshrrev_b32', v(t), 5, 'v0'); a('v_mul_u32_u24', v(t), 704, v(t)); a('v_add_u32', v(tr2), v(tr2), v(t))
            a('s_mul_i32', 's8', 's12', 1408); a('s_lshr_b32', 's14', 's14', 1); a('s_add_u32', 's8', 's8', 's14'); a('s_add_u32', 's8', 's8', L_EI); a('v_add_u32', v(tr2), 's8', v(tr2))
    A2r = Hs
    for k5 in (1, 2, 0):
        for r in range(4):
            re, im, c, s_ = AC+8*k5+r, AC+8*k5+4+r, TW+8*k5+r, TW+8*k5+4+r
            a('v_mul_f32', v(X+r), v(re), v(c)); a('v_mul_f32', v(X+4+r), v(im), v(c))
            a('v_fmac_f32', v(X+r), v(im), v(s_)); a('v_fma_f32', v(X+4+r), '-' + v(re), v(s_), v(X+4+r))
            a('v_cvt_pk_bf16_f32', v(PK+4*k5+r), v(X+r), v(X+4+r))
        a(MF, v(A2r+8*k5, 4), v(PK+4*k5, 4), v(Mre, 4), 0); a(MF, v(A2r+8*k5+4, 4), v(PK+4*k5, 4), v(Mim, 4), 0)
    for ri in range(2):
        for r in range(4): a('v_cvt_pk_bf16_f32', v(PK+4*ri+r), v(A2r+8+4*ri+r), v(A2r+16+4*ri+r))
        a('ds_write_b64', v(wd), v(PK+4*ri, 2), mods=f'offset:{704*ri}'); a('ds_write_b64', v(wd), v(PK+4*ri+2, 2), mods=f'offset:{704*ri+8}')
    for ri in range(2):
        a('v_mul_f32', v(A2r+4*ri), v(hf), v(A2r+4*ri))
        for h in range(2): a('v_cvt_pk_bf16_f32', v(PK+8+2*ri+h), v(A2r+4*ri+2*h), v(A2r+4*ri+2*h+1))
        a('ds_write_b64', v(wz), v(PK+8+2*ri, 2), mods=f'offset:{704*ri}')
    a('v_mov_b32', v(mk), 0xfffefffe); a('v_and_b32', v(tl0), 1, 'v0'); a('v_lshlrev_b32', v(tl0), 16, v(tl0)); a('v_or_b32', v(tl1), 1, v(tl0))
    stamp(a, 4)
    subbar(a, C_A1, 8, t, u)
    OP = TW; O3 = AC; ST = PK
    for it in range(3):
        a('ds_read_b64_tr_b16', v(OP+4*it, 2), v(tr2), mods=f'offset:{256*it}')
        a('ds_read_b64_tr_b16', v(OP+4*it+2, 2), v(tr2), mods=f'offset:{256*it + 4*EP}')
    for it in range(3):
        for mu in range(2): a(MF, v(O3+8*it+4*mu, 4), v(M3+4*mu, 4), v(OP+4*it, 4), 0)
    skip = newlabel('La1s'); lsp = newlabel('La1s')
    for it in range(3):
        if it == 2:
            a('s_cmp_ge_u32', 's3', 4); a('s_cbranch_scc1', lsp)
        for mu, g_ in enumerate((go, go2)):
            b = O3+8*it+4*mu; d = ST+4*it+2*mu
            a('v_cvt_pk_bf16_f32', v(d), v(b), v(b+1)); a('v_cvt_pk_bf16_f32', v(d+1), v(b+2), v(b+3))
            a('v_and_or_b32', v(d), v(d), v(mk), v(tl0)); a('v_and_or_b32', v(d+1), v(d+1), v(mk), v(tl1))
            a('global_store_dwordx2', v(g_), v(d, 2), WS_, mods=f'offset:{512*it} {SC}')
    a('s_branch', skip)
    a.label(lsp)
    a('s_cmp_ge_u32', 's3', 6); a('s_cbranch_scc1', skip)
    for mu in range(2): a('v_cvt_pk_bf16_f32', v(ST+8+mu), v(O3+16+4*mu), v(O3+17+4*mu))
    a('v_and_b32', v(t), 63, v(gs))
    a('s_mov_b32', 'exec_lo', 0x10001); a('s_mov_b32', 'exec_hi', 0x10001)
    for mu in range(2): a('ds_write_b32', v(t), v(ST+8+mu), mods=f'offset:{L_SPB + 32*mu}')
    a('s_mov_b64', 'exec', -1)
    arrive(a, C_SP, t, u)
    a.label(skip)
    if OPT['wsp']: arrive(a, C_ST, t, u)
    stamp(a, 5)
    a('s_setprio', 0)
    lt3 = newlabel('La1'); a('s_cmp_lt_u32', 's7', ND); a('s_cbranch_scc1', lt3)
    a._nop(2); a('s_mov_b32', 's52', L_T3B); a3_tables(a, 0, 8)
    a.label(lt3)
    arrive(a, C_A1D, 1, 2, vm=True)
    stamp(a, 6)
    if OPT['stop'] == 1: a('s_branch', 'Lfin'); return
    a('s_cmp_ge_u32', 's7', ND); a('s_cbranch_scc1', 'LB2')
    a('s_cmp_ge_u32', 's3', 4); a('s_cbranch_scc1', 'LB2')
    a('s_add_u32', 's9', 's6', 16); a('s_mov_b32', 's10', 's3')
    a('s_mov_b32', 's62', L_T2); a('s_mov_b32', 's63', L_W2); a('s_mov_b32', 's61', L_CNT + 4*(C_A2+4)); a('s_mov_b32', 's60', L_CNT + 4*18)
    a('s_branch', 'LA2')

def A3(a):
    a.label('LA3')
    t, u, q, go, go2, gs, lw, ra0, ra1, rz, wa, rd = range(1, 13)
    vo = [13, 14, 15]
    Mre, Mim, M3, TW, F, IN, X, P0, AC, Y = 16, 20, 24, 32, 56, 100, 112, 120, 124, 148
    msg_addrs(a, go, go2, gs, t)
    await_cnt(a, C_A1D, 8, t, u)
    a('s_lshl_b32', 's9', 's3', 7); a('s_add_u32', 's9', 's9', 's7'); a('s_mul_i32', 's10', 's9', 2560)
    a('s_mul_i32', 's11', 's3', 3072); a('s_add_u32', 's11', 's11', L_XR)
    row_offsets(a, vo, t, 's10', 1024*2560)
    a('v_lshrrev_b32', v(q), 4, 'v0')
    C, S, sg = m2_angles(a, AC, True)
    for r in range(8): a('v_mul_f32', v(C+r), fl(2.0/(2048*640)), v(C+r))
    for h in range(2):
        a('v_cvt_pk_bf16_f32', v(Mre+h), v(C+2*h), v(C+2*h+1)); a('v_cvt_pk_bf16_f32', v(Mim+h), v(S+2*h), v(S+2*h+1))
        a('v_cvt_pk_bf16_f32', v(Mre+2+h), '-' + v(S+2*h), '-' + v(S+2*h+1)); a('v_xor_b32', v(Mre+2+h), v(sg), v(Mre+2+h))
        a('v_xor_b32', v(Mim+2+h), v(sg), v(Mre+h))
    a('v_and_b32', v(t), 15, 'v0'); a('v_cvt_f32_u32', v(t), v(t)); a('v_mul_f32', v(t), fl(1/16), v(t)); a('v_lshlrev_b32', v(u), 2, v(q)); a('v_cvt_f32_u32', v(u), v(u))
    a('v_mul_f32', v(AC), v(t), v(u)); quad_trig(a, AC, t, AC+4, AC+8)
    for h in range(2):
        a('v_cvt_pk_bf16_f32', v(F+40+h), v(AC+4+2*h), v(AC+5+2*h)); a('v_cvt_pk_bf16_f32', v(F+42+h), '-' + v(AC+8+2*h), '-' + v(AC+9+2*h))
    a('v_and_b32', v(t), 7, 'v0'); a('v_lshl_add_u32', v(t), v(t), 7, 's7')
    a('v_and_b32', v(u), 8, 'v0'); a('v_cmp_eq_u32', 'vcc', 0, v(u))
    for mu in range(2):
        a('v_add_u32', v(u), 4*mu, v(q)); a('v_mul_u32_u24', v(u), v(u), v(t)); a('v_cvt_f32_u32', v(u), v(u)); a('v_mul_f32', v(u), fl(1/1024), v(u))
        sincos(a, u, X, X+1)
        a('v_cvt_pk_bf16_f32', v(X+2), v(X), '-' + v(X+1)); a('v_cvt_pk_bf16_f32', v(X+3), v(X+1), v(X))
        for nu in range(2):
            a('v_cndmask_b32', v(M3+4*nu+2*mu), 0, v(X+2+nu), 'vcc'); a('v_cndmask_b32', v(M3+4*nu+2*mu+1), v(X+2+nu), 0, 'vcc')
    a('v_and_b32', v(lw), 7, 'v0'); a('v_mul_u32_u24', v(lw), EP, v(lw)); a('v_and_b32', v(t), 8, 'v0'); a('v_lshl_add_u32', v(lw), v(t), 2, v(lw)); a('v_lshl_add_u32', v(lw), v(q), 3, v(lw))
    a('s_mul_i32', 's8', 's12', 1408); a('s_lshr_b32', 's14', 's14', 1); a('s_add_u32', 's8', 's8', 's14'); a('s_add_u32', 's8', 's8', L_EI); a('v_add_u32', v(lw), 's8', v(lw))
    k4, bs = X, X+1
    a('v_and_b32', v(k4), 28, 'v0'); a('v_lshrrev_b32', v(bs), 5, 'v0'); a('v_mul_u32_u24', v(bs), 1408, v(bs))
    a('s_mul_i32', 's8', 's3', EP); a('s_add_u32', 's8', 's8', L_EI); a('v_add_u32', v(bs), 's8', v(bs))
    a('v_cmp_gt_u32', 'vcc', 16, v(k4))
    for hx, dst in enumerate((ra0, ra1)):
        a('v_bfe_u32', v(t), 'v0', 1, 1); a('v_add3_u32', v(t), v(t), v(k4), 2*hx); a('v_sub_u32', v(u), 31, v(t)); a('v_min_u32', v(t), v(t), v(u))
        a('v_mul_u32_u24', v(dst), 40, v(t)); a('v_add_u32', v(u), 16, v(dst)); a('v_cndmask_b32', v(dst), v(u), v(dst), 'vcc')
        a('v_and_b32', v(t), 1, 'v0'); a('v_lshl_add_u32', v(dst), v(t), 3, v(dst)); a('v_add_u32', v(dst), v(dst), v(bs))
    a('v_and_b32', v(t), 31, 'v0'); a('v_mul_u32_u24', v(rz), 40, v(t)); a('v_add_u32', v(rz), 32, v(rz)); a('v_mov_b32', v(u), 648); a('v_cndmask_b32', v(rz), v(u), v(rz), 'vcc')
    a('v_cmp_eq_u32', 'vcc', 16, v(t)); a('v_mov_b32', v(u), 640); a('v_cndmask_b32', v(rz), v(rz), v(u), 'vcc'); a('v_add_u32', v(rz), v(rz), v(bs))
    a('v_lshrrev_b32', v(wa), 5, 'v0'); a('v_mul_u32_u24', v(wa), 1408, v(wa)); a('v_and_b32', v(t), 1, v(q)); a('v_lshl_add_u32', v(wa), v(t), 3, v(wa))
    a('v_and_b32', v(t), 15, 'v0'); a('v_lshl_add_u32', v(wa), v(t), 4, v(wa)); a('v_add_u32', v(wa), 's11', v(wa))
    a('v_lshl_add_u32', v(rd), 'v0', 4, 's11')
    lw2 = newlabel('La3'); a('s_cmp_ge_u32', 's7', ND); a('s_cbranch_scc1', lw2)
    wait_lds(a, C_A2+4+3, 4, t, u)
    a.label(lw2)
    wait_lds(a, C_A2+3, 4, t, u)
    a('s_cmp_lt_u32', 's7', ND); a('s_mov_b32', 's8', L_T3B); a('s_cselect_b32', 's8', L_T3, 's8'); a('v_lshl_add_u32', v(t), 'v0', 4, 's8')
    for k in range(10): a('ds_read_b128', v(F+4*k, 4), v(t), mods=f'offset:{1024*k}')
    for k in range(6): a('ds_read_b128', v(TW+4*k, 4), v(t), mods=f'offset:{10240+1024*k}')
    stamp(a, 11)
    a('s_setprio', 2)
    def ld(its):
        for it in its:
            for mu, g_ in enumerate((go, go2)): a('global_load_dwordx2', v(IN+4*it+2*mu, 2), v(g_), WS_, mods=f'offset:{512*it} {SC}')
    l4 = newlabel('La3'); lj = newlabel('La3'); l6 = newlabel('La3')
    if OPT['a3p']:
        lpz = newlabel('La3'); a('s_cmp_lt_u32', 's7', ND); a('s_cbranch_scc1', lpz)
        def l1():
            a('global_load_dwordx2', v(IN, 2), v(go2), WS_, mods=SC); a('global_load_dwordx2', v(IN+2, 2), v(go), WS_, mods=f'offset:512 {SC}')
        poll_tags(a, l1, [IN], t, 2, LS[0])
        if OPT['a3p'] > 1: subbar(a, C_WR, 8, t, u)
        a.label(lpz)
    a('s_cmp_ge_u32', 's3', 4); a('s_cbranch_scc1', l4)
    poll_tags(a, lambda: ld((0, 1, 2)), [IN, IN+4, IN+8], t, 2, LS[0])
    a('s_branch', lj)
    a.label(l4)
    def ld2():
        ld((0, 1))
        for mu in range(2): a('global_load_dword', v(X+mu), v(gs), WS_, mods=f'offset:{32*mu} {SC}')
        for mu in range(2): a('v_xor_b32', v(IN+8+2*mu), 's12', v(X+mu))
    a('v_mov_b32', v(IN+9), 0); a('v_mov_b32', v(IN+11), 0)
    poll_tags(a, ld2, [IN, IN+4, IN+8], t, 2, LS[0])
    a('v_and_b32', v(t), 15, 'v0'); a('v_cmp_eq_u32', 'vcc', 0, v(t))
    for mu in range(2): a('v_cndmask_b32', v(IN+8+2*mu), 0, v(X+mu), 'vcc')
    a.label(lj)
    stamp(a, 12)
    for it in range(3):
        for nu in range(2): a(MF, v(AC+8*it+4*nu, 4), v(IN+4*it, 4), v(M3+4*nu, 4), 0)
    for it in range(3):
        if it == 2: a('s_cmp_ge_u32', 's3', 6); a('s_cbranch_scc1', l6)
        for nu in range(2):
            b = AC+8*it+4*nu; d = IN+4*it+2*nu
            a('v_cvt_pk_bf16_f32', v(d), v(b), v(b+1)); a('v_cvt_pk_bf16_f32', v(d+1), v(b+2), v(b+3))
            a('ds_write_b64', v(lw), v(d, 2), mods=f'offset:{256*it + 704*nu}')
    a.label(l6)
    subbar(a, C_A3, 8, t, u)
    stamp(a, 13)
    Z = IN
    order = (2, 0, 1)
    for st in order:
        ad = (ra0, ra1, rz)[st]
        for ri in range(2): a('ds_read_b64_tr_b16', v(Z+4*st+2*ri, 2), v(ad), mods=f'offset:{704*ri}')
    for st in order:
        a(MF, v(AC+8*st, 4), v(Z+4*st, 4), v(Mre, 4), 0); a(MF, v(AC+8*st+4, 4), v(Z+4*st, 4), v(Mim, 4), 0)
    for st in order:
        for r in range(4):
            re, im, c, s_ = AC+8*st+r, AC+8*st+4+r, TW+8*st+r, TW+8*st+4+r
            a('v_mul_f32', v(X+r), v(re), v(c)); a('v_mul_f32', v(X+4+r), v(im), v(c))
            a('v_fma_f32', v(X+r), '-' + v(im), v(s_), v(X+r)); a('v_fmac_f32', v(X+4+r), v(re), v(s_))
            if r & 1:
                a('v_cvt_pk_bf16_f32', v(Z+4*st+(r >> 1)), v(X+r-1), v(X+r)); a('v_cvt_pk_bf16_f32', v(Z+4*st+2+(r >> 1)), v(X+4+r-1), v(X+4+r))
        if st == 2: a(MF, v(P0, 4), v(Z+8, 4), v(F+40, 4), 0)
        else:
            for e in range(5): a(MF, v(Y+4*e, 4), v(Z+4*st, 4), v(F+20*st+4*e, 4), v(P0, 4) if st == 0 else v(Y+4*e, 4))
    for e in range(5):
        a('v_cvt_pk_bf16_f32', v(AC+2*e), v(Y+4*e), v(Y+4*e+1)); a('v_cvt_pk_bf16_f32', v(AC+2*e+1), v(Y+4*e+2), v(Y+4*e+3))
        a('ds_write_b64', v(wa), v(AC+2*e, 2), mods=f'offset:{256*e}')
    for k in range(3): a('ds_read_b128', v(Z+4*k, 4), v(rd), mods=f'offset:{1024*k}')
    a('global_store_dwordx4', v(vo[0]), v(Z, 4), OUT_, mods=SC)
    a('s_mov_b32', 'exec_lo', 0xff00ffff)
    a('global_store_dwordx4', v(vo[1]), v(Z+4, 4), OUT_, mods='offset:1024 sc1')
    a('s_mov_b32', 'exec_lo', -1); a('s_mov_b32', 'exec_hi', 0xff)
    a('global_store_dwordx4', v(vo[2]), v(Z+8, 4), OUT_, mods='offset:2048 sc1')
    stamp(a, 14)
    a('s_mov_b64', 'exec', -1)

def auxE(a):
    a.label('LauxE')
    a('s_sub_u32', 's10', 's3', 8)
    a('s_mov_b32', 's9', 's6')
    a('s_mov_b32', 's62', L_T1); a('s_mov_b32', 's63', L_W1); a('s_mov_b32', 's61', L_CNT + 4*C_A2); a('s_mov_b32', 's60', L_CNT + 4*C_W1)
    h_even(a, 0)
    if OPT['wpf'] in (1, 2):
        a('v_lshrrev_b32', 'v1', 3, 'v0'); a('v_and_b32', 'v2', 7, 'v0'); a('v_lshlrev_b32', 'v2', 7, 'v2'); a('v_min_u32', 'v2', 640, 'v2'); a('v_mul_u32_u24', 'v1', 8*642, 'v1'); a('v_add_u32', 'v1', 'v1', 'v2')
        a('s_lshl_b32', 's8', 's6', 1); a('s_and_b32', 's11', 's3', 1); a('s_add_u32', 's8', 's8', 's11'); a('s_lshl_b32', 's8', 's8', 6); a('s_add_u32', 's8', 's8', 's4'); a('s_mul_i32', 's8', 's8', 642)
        a('v_add_u32', 'v159', 's8', 'v1')
    if OPT['wpf'] == 3: wpf3(a, OPT['wge'])
def wpf3(a, gate):
    sk = newlabel('La2'); a('s_cmp_lt_u32', 's3', 10); a('s_cbranch_scc1', sk)
    if gate: wait_lds(a, gate[0], gate[1], 1, 2)
    a('v_lshrrev_b32', 'v1', 3, 'v0'); a('v_and_b32', 'v2', 7, 'v0'); a('v_lshlrev_b32', 'v2', 7, 'v2'); a('v_min_u32', 'v2', 640, 'v2'); a('v_mul_u32_u24', 'v1', 8*642, 'v1'); a('v_add_u32', 'v1', 'v1', 'v2')
    a('s_lshr_b32', 's8', 's2', 3); a('s_lshl_b32', 's8', 's8', 6); a('s_add_u32', 's8', 's8', 's4'); a('s_mul_i32', 's8', 's8', 642)
    a('v_add_u32', 'v1', 's8', 'v1')
    a('s_bitcmp1_b32', 's3', 0); a('s_cselect_b64', 's[98:99]', WI_, WR_)
    a.raw('    global_load_ushort v164, v1, s[98:99]'); a.bytes += 8; a.vm.append(set())
    a.label(sk)
def wpf(a):
    sk = newlabel('La2'); a('s_cmp_lt_u32', 's3', 8); a('s_cbranch_scc1', sk)
    a('s_bitcmp1_b32', 's3', 1); a('s_cselect_b64', 's[98:99]', WI_, WR_)
    a('global_load_ushort', 'v163', 'v159', 's[98:99]')
    a.label(sk)
def h_even(a, part):
    t, u, vo, vq, vh, vh2, D, T = 1, 2, 132, 133, 134, 135, 136, 100
    if part == 0:
        a('s_and_b32', 's15', 's10', 1)
        a('v_lshlrev_b32', v(vo), 4, 'v0')
        a('s_lshl_b32', 's8', 's10', 10); a('v_add_u32', v(vq), 's8', v(vo)); a('v_subrev_u32', v(vh), 128, v(vo)); a('v_subrev_u32', v(vh2), 112, v(vo))
        for lc in range(2):
            h_srd(a, lc)
            a('buffer_load_dwordx4', v(D+6*lc, 4), v(vq), 's[44:47]', 0, mods='offen'); a('buffer_load_dwordx2', v(D+6*lc+4, 2), v(vq), 's[44:47]', 0, mods='offen offset:16')
        h_srd(a, 's15'); h_load(a, D+12, vh, vh2, 0)
        lw6 = newlabel('La1'); a('s_cmp_lg_u32', 's3', 11); a('s_cbranch_scc1', lw6)
        a('v_and_b32', v(t), 15, 'v0'); a('v_lshl_add_u32', v(t), 's7', 4, v(t)); a('v_mul_u32_u24', v(t), 642, v(t))
        a('global_load_ushort', 'v112', v(t), WR_, mods='offset:640'); a('global_load_ushort', 'v113', v(t), WI_, mods='offset:640')
        a.label(lw6)
        for k in range(4): a('v_mov_b32', v(T+k), 0)
        u_pad(a, 's15', T, t)
        a('v_add_u32', v(vq), L_CH, v(vq)); a('s_mul_i32', 's8', 's15', CHS); a('s_add_u32', 's8', 's8', L_CH); a('v_add_u32', v(vh), 's8', v(vo))
        return
    sk = newlabel('La2'); a('s_cmp_lt_u32', 's3', 8); a('s_cbranch_scc1', sk)
    for lc in range(2): h_expand(a, D+6*lc, T, vq, lc*CHS + 128)
    a('s_mov_b64', 'exec', 0xff)
    h_expand(a, D+12, T, vh, 0)
    a('s_mov_b64', 'exec', -1)
    arrive(a, C_H, t, u)
    stamp(a, 2)
    a('s_cmp_lg_u32', 's3', 11); a('s_cbranch_scc1', sk)
    await_cnt(a, C_SP, 2, t, u)
    a('v_lshlrev_b32', v(t), 2, 'v0'); a('ds_read_b32', 'v114', v(t), mods=f'offset:{L_SPB}')
    a('v_lshl_or_b32', 'v112', 'v113', 16, 'v112')
    a('v_cmp_gt_u32', 'vcc', 16, 'v0'); a('v_cndmask_b32', 'v112', 'v112', 'v114', 'vcc')
    a('v_and_b32', v(u), 2, 'v0'); a('v_lshlrev_b32', v(u), 15, v(u)); a('v_and_or_b32', v(u), 'v0', 1, v(u)); a('v_and_b32', 'v112', 0xfffefffe, 'v112'); a('v_or_b32', 'v112', 'v112', v(u))
    a('s_mul_i32', 's8', 's7', TBLK); a('s_add_u32', 's8', 's8', 160*128); a('v_add_u32', v(t), 's8', v(t))
    a('s_mov_b32', 'exec_hi', 0)
    a('global_store_dword', v(t), 'v112', WS_, mods=SC)
    a('s_mov_b64', 'exec', -1)
    a.label(sk)

def A2(a, HOOK):
    a.label('LA2')
    t, u, go, lw, lr, q, n = range(1, 8)
    wr = [8, 9, 10, 11]; lr2, wv, ww, ww2, pl_, ph_, msk, IL = 154, 155, 156, 157, 158, 160, 161, 44
    Fr, Fi, Mr, Mi, T1c, T2c, X, Wv, Z, AC, SW = 12, 16, 20, 24, 28, 36, 44, 52, 84, 100, 52
    a('s_cmp_ge_u32', 's9', 10); a('s_cselect_b32', 's11', 8, 0); a('s_cselect_b32', 's12', 10, 0); a('s_add_u32', 's11', 's11', 's4'); a('s_sub_u32', 's12', 's9', 's12')
    a('s_mul_i32', 's13', 's11', 10); a('s_add_u32', 's13', 's13', 's12')
    a('s_cmp_eq_u32', 's9', 20); a('s_cselect_b32', 's13', 160, 's13')
    a('s_mul_i32', 's14', 's12', 32*205); a('s_lshr_b32', 's14', 's14', 12); a('s_mul_i32', 's14', 's14', 20)
    a('v_lshrrev_b32', v(t), 3, 'v0'); a('v_and_b32', v(u), 7, 'v0'); a('v_mul_u32_u24', v(wv), 16*642, v(t)); a('v_lshl_add_u32', v(wv), v(u), 4, v(wv))
    a('s_lshl_b32', 's8', 's10', 9); a('s_add_u32', 's8', 's8', 's11'); a('s_mul_i32', 's8', 's8', 642); a('s_lshl1_add_u32', 's8', 's14', 's8'); a('s_bfe_u32', 's15', 's8', ((OPT['wal']-1) << 16) | 1); a('s_and_b32', 's8', 's8', -(1 << OPT['wal']))
    a('v_add_u32', v(wv), 's8', v(wv))
    WB = 2048*321*2
    def wload(ks=None):
        if ks is None: ks = range(OPT['wsp'], 4)
        lns = newlabel('La2'); a('s_cmp_eq_u32', 's9', 20); a('s_cbranch_scc1', lns)
        for k in ks:
            a('s_mov_b32', 's8', 128*642*k)
            for pl, sd in enumerate((12, 56)): a('buffer_load_dwordx4', v(SW+16*pl+4*k, 4), v(wv), s(sd, 4), 's8', mods='offen')
        a.label(lns)
    a('v_and_b32', v(n), 15, 'v0'); a('v_lshrrev_b32', v(q), 4, 'v0')
    a('v_lshrrev_b32', v(t), 3, 'v0'); a('v_lshl_add_u32', v(t), 's10', 3, v(t))
    a('v_mul_u32_u24', v(go), TBLK, v(t)); a('v_and_b32', v(u), 7, 'v0'); a('v_lshl_add_u32', v(go), v(u), 4, v(go)); a('s_lshl_b32', 's8', 's13', 7); a('v_add_u32', v(go), 's8', v(go))
    a('v_xor_b32', v(lw), v(t), v(u)); a('v_and_b32', v(lw), 7, v(lw)); a('v_lshlrev_b32', v(lw), 4, v(lw)); a('v_lshl_add_u32', v(lw), v(t), 7, v(lw)); a('v_add_u32', v(lw), 's62', v(lw))
    a('s_lshl_b32', 's8', 's10', 1); a('v_xor_b32', v(lr), 's8', v(u)); a('v_lshlrev_b32', v(lr), 4, v(lr)); a('v_lshl_add_u32', v(t), v(q), 5, v(u)); a('v_lshl_add_u32', v(lr), v(t), 7, v(lr))
    a('v_bfe_u32', v(t), 'v0', 3, 1); a('v_lshl_add_u32', v(lr), v(t), 2, v(lr)); a('v_add_u32', v(lr), 's62', v(lr)); a('v_xor_b32', v(lr2), 16, v(lr))
    a('v_lshrrev_b32', v(t), 3, 'v0')
    a('v_lshlrev_b32', v(u), 1, v(u)); a('v_xor_b32', v(u), v(t), v(u)); a('v_lshlrev_b32', v(t), 8, v(t)); a('v_lshl_add_u32', v(ww), v(u), 4, v(t)); a('s_lshl_b32', 's8', 's10', 13); a('s_add_u32', 's8', 's8', 's63'); a('v_add_u32', v(ww), 's8', v(ww)); a('v_xor_b32', v(ww2), 16, v(ww))
    rel, b_, o_, y_, c_, base = X, X+1, X+2, X+3, X+4, X+5
    a('v_and_b32', v(t), 1, v(q)); a('v_lshlrev_b32', v(base), 14, v(t)); a('v_add_u32', v(base), 's63', v(base))
    a('s_lshl_b32', 's8', 's12', 5); a('s_lshl2_add_u32', 's8', 's10', 's8'); a('s_sub_u32', 's8', 's8', 's14')
    a('v_lshrrev_b32', v(t), 5, 'v0'); a('v_lshl_add_u32', v(rel), v(t), 4, 's8')
    lsp2 = newlabel('La2'); lj2 = newlabel('La2')
    a('s_cmp_eq_u32', 's9', 20); a('s_cbranch_scc1', lsp2)
    a('v_lshl_add_u32', v(base), v(n), 8, v(base)); a('v_and_b32', v(X+6), 7, 'v0')
    for tt in range(4):
        if tt: a('v_add_u32', v(rel), 1, v(rel))
        a('v_mul_u32_u24', v(b_), 13, v(rel)); a('v_lshrrev_b32', v(b_), 8, v(b_)); a('v_mul_u32_u24', v(b_), 20, v(b_)); a('v_sub_u32', v(o_), v(rel), v(b_))
        a('v_lshrrev_b32', v(y_), 1, v(o_)); a('v_mul_u32_u24', v(y_), 5, v(y_)); a('v_and_b32', v(u), 1, v(o_)); a('v_add_u32', v(y_), v(y_), v(u))
        a('v_add_u32', v(c_), 1, v(y_)); a('v_sub_u32', v(y_), 39, v(y_)); a('v_cmp_gt_u32', 'vcc', 8, v(o_)); a('v_cndmask_b32', v(c_), v(y_), v(c_), 'vcc')
        a('v_mul_u32_u24', v(y_), 5, v(o_)); a('v_subrev_u32', v(y_), 80, v(y_)); a('v_cmp_gt_u32', 'vcc', 16, v(o_)); a('v_cndmask_b32', v(c_), v(y_), v(c_), 'vcc')
        a('v_add3_u32', v(c_), v(c_), v(b_), 's15')
        a('v_lshrrev_b32', v(y_), 2, v(c_)); a('v_xor_b32', v(y_), v(y_), v(X+6)); a('v_lshl_add_u32', v(wr[tt]), v(y_), 4, v(base))
        a('v_and_b32', v(c_), 3, v(c_)); a('v_lshl_add_u32', v(wr[tt]), v(c_), 2, v(wr[tt]))
    a('s_branch', lj2)
    a.label(lsp2)
    a('v_and_b32', v(u), 1, v(q)); a('v_lshl_add_u32', v(u), v(u), 6, v(n)); a('v_lshlrev_b32', v(base), 7, v(u)); a('v_lshl_add_u32', v(base), v(t), 2, v(base)); a('v_add_u32', v(base), 's62', v(base))
    a('s_and_b32', 's8', 's10', 1); a('s_lshl_b32', 's8', 's8', 1); a('s_add_u32', 's8', 's8', 4); a('v_xor_b32', v(u), 's8', v(n)); a('v_and_b32', v(u), 7, v(u))
    a('v_lshl_add_u32', v(wr[0]), v(u), 4, v(base)); a('v_xor_b32', v(wr[2]), 16, v(wr[0]))
    a.label(lj2)
    nf, qf, st, ang, C, S = Z, Z+1, Z+2, Z+4, Z+8, Z+12
    a('v_cvt_f32_u32', v(nf), v(n)); a('v_lshlrev_b32', v(qf), 2, v(q)); a('v_cvt_f32_u32', v(qf), v(qf))
    a('v_mul_f32', v(st), fl(1/16), v(nf)); a('v_mul_f32', v(ang), v(st), v(qf)); quad_trig(a, ang, st, C, S)
    for r in range(4):
        a('v_cvt_pk_bf16_f32', v(Fr+r), v(C+r), v(S+r)); a('v_cvt_pk_bf16_f32', v(Fi+r), '-' + v(S+r), v(C+r))
    a('v_and_b32', v(u), 7, 'v0'); a('v_cvt_f32_u32', v(u), v(u))
    a('v_mul_f32', v(st), fl(1/128), v(u)); a('v_mul_f32', v(ang), v(st), v(qf)); quad_trig(a, ang, st, T2c, T2c+4)
    a('v_and_b32', v(qf), 1, v(q)); a('v_lshlrev_b32', v(qf), 2, v(qf)); a('v_cvt_f32_u32', v(qf), v(qf))
    a('v_mul_f32', v(st), fl(1/128), v(nf)); a('v_mul_f32', v(ang), v(st), v(qf)); quad_trig(a, ang, st, T1c, T1c+4)
    a('v_mul_f32', v(st), fl(1/8), v(u)); a('v_mul_f32', v(ang), v(st), v(qf)); quad_trig(a, ang, st, C, S)
    a('v_bfe_u32', v(t), 'v0', 3, 1); a('v_lshrrev_b32', v(u), 5, 'v0'); a('v_cmp_eq_u32', 'vcc', v(t), v(u)); a('v_cndmask_b32', v(u), 0, -1, 'vcc')
    for r in range(4):
        a('v_cvt_pk_bf16_f32', v(Mr+r), v(C+r), v(S+r)); a('v_cvt_pk_bf16_f32', v(Mi+r), '-' + v(S+r), v(C+r))
        a('v_and_b32', v(Mr+r), v(u), v(Mr+r)); a('v_and_b32', v(Mi+r), v(u), v(Mi+r))
    srd(a, 12, 's18', 's19', WB); srd(a, 56, 's20', 's21', WB)
    if OPT['wsp']:
        a.wait(vm=0)
        wait_lds(a, C_ST, 8, t, u); wload(range(OPT['wsp']))
    HOOK()
    for it in range(4):
        a('s_add_u32', s(44+2*it), 's38', 32*TBLK*it); a('s_addc_u32', s(45+2*it), 's39', 0)
    a('v_mov_b32', v(pl_), 0x05040100); a('v_mov_b32', v(ph_), 0x07060302); a('v_mov_b32', v(msk), 0xffff0000)
    stamp(a, 3)
    if OPT['wpf'] == 1:
        wait_lds(a, C_A1D, 1, t, u); wpf(a)
    wait_lds(a, C_A1D, 8, t, u)
    a('s_setprio', 3)
    stamp(a, 7)
    def tl():
        for it in range(4): a('global_load_dwordx4', v(AC+4*it, 4), v(go), s(44+2*it, 2), mods=SC)
    if OPT['wat'] == -1:
        tl(); wload()
        keep = set().union(*a.vm) & {('v', k) for k in range(SW, SW+32)}
        lsw = newlabel('La2'); a('s_cmp_eq_u32', 's9', 20); a('s_cbranch_scc1', lsw)
        a.raw('    s_waitcnt vmcnt(8)'); a.bytes += 4
        first = True
        a.vm = [keep]
        for b in [AC+4*i for i in range(4)]:
            if first: a('v_bitop3_b32', v(t), v(b+3), v(b), v(b), mods='bitop3:0xcf')
            else: a('v_bitop3_b32', v(t), v(t), v(b+3), v(b), mods='bitop3:0xfb')
            a('v_bitop3_b32', v(t), v(t), v(b+1), 1, mods='bitop3:0xf6'); a('v_bitop3_b32', v(t), v(t), v(b+2), S_C, mods='bitop3:0xf6')
            first = False
        a('v_and_b32', v(t), 0x10001, v(t)); a('v_cmp_ne_u32', 'vcc', 0, v(t))
        lok = newlabel('La2'); a('s_cbranch_vccz', lok)
        a.label(lsw)
        poll_tags(a, tl, [AC+4*i for i in range(4)], t, 1, XS[0])
        a.label(lok)
    else:
        poll_tags(a, tl, [AC+4*i for i in range(4)], t, 1, XS[0])
    if OPT['wpf'] == 2: wpf(a)
    stamp(a, 8)
    for it in range(4): a('ds_write_b128', v(lw), v(AC+4*it, 4), mods=f'offset:{4096*it}')
    a('v_mov_b32', v(t), 's61'); a('v_mov_b32', v(u), 1); a.wait(lgkm=0); lds_cnt_add(a, t, u)
    if OPT['wat'] == 0: wload()
    lq = newlabel('La2'); a.label(lq)
    a('ds_read_b32', v(u), v(t)); a('v_readfirstlane_b32', 's40', v(u)); a('s_cmp_lt_u32', 's40', 4); a('s_cbranch_scc1', lq)
    stamp(a, 9)
    for tt in range(4):
        for al in range(4): a('ds_read_b32', v(Z+4*tt+al), v(lr2 if tt & 2 else lr), mods=f'offset:{1024*al + 8*(tt & 1)}')
    def w_regs():
        lg3 = newlabel('La2'); lg4 = newlabel('La2')
        a('s_cmp_eq_u32', 's9', 20); a('s_cbranch_scc1', lg4)
        if STAMPS[0]: a.wait(vm=0); stamp(a, 4)
        for k in range(4):
            for hh in range(2):
                for j in range(2):
                    r_, i_ = SW+4*k+2*hh+j, SW+16+4*k+2*hh+j
                    a('v_perm_b32', v(IL+4*hh+2*j), v(i_), v(r_), v(pl_)); a('v_perm_b32', v(IL+4*hh+2*j+1), v(i_), v(r_), v(ph_))
                a('ds_write_b128', v(ww2 if hh else ww), v(IL+4*hh, 4), mods=f'offset:{2048*k}')
        stamp(a, 5)
        subbar_s(a, 's60', 4, t, u)
        stamp(a, 6)
        for tt in range(4):
            for r in range(4): a('ds_read_b32', v(Wv+8*tt+4+r), v(wr[tt]), mods=f'offset:{4096*r}')
        a('s_branch', lg3)
        a.label(lg4)
        for tt in range(4):
            for r in range(4): a('ds_read_b32', v(Wv+8*tt+4+r), v(wr[tt & 2]), mods=f'offset:{8*(tt & 1) + 2048*r}')
        subbar_s(a, 's60', 4, t, u)
        pend = a.snap[lg3][0]
        a.label(lg3)
        a.lg = list(pend[1])
    def cm(tt, cc, ss, conj, swap_in, swap_out):
        for r in range(4):
            re, im = AC+8*tt+r, AC+8*tt+4+r
            if swap_in: re, im = im, re
            x0, x1 = X+2*(r & 1), X+2*(r & 1)+1
            a('v_mul_f32', v(x0), v(re), v(cc+r)); a('v_mul_f32', v(x1), v(im), v(cc+r))
            if conj: a('v_fmac_f32', v(x0), v(im), v(ss+r)); a('v_fma_f32', v(x1), '-' + v(re), v(ss+r), v(x1))
            else: a('v_fma_f32', v(x0), '-' + v(im), v(ss+r), v(x0)); a('v_fmac_f32', v(x1), v(re), v(ss+r))
            if swap_out: x0, x1 = x1, x0
            a('v_cvt_pk_bf16_f32', v(Z+4*tt+r), v(x0), v(x1))
    def mm(tt, dataA, R_, I_):
        for k, M in enumerate((R_, I_)):
            if dataA: a(MF, v(AC+8*tt+4*k, 4), v(Z+4*tt, 4), v(M, 4), 0)
            else: a(MF, v(AC+8*tt+4*k, 4), v(M, 4), v(Z+4*tt, 4), 0)
    for tt in range(4): mm(tt, True, Fr, Fi)
    if OPT['wat'] == 1: wload()
    for tt in range(4): cm(tt, T1c, T1c+4, True, False, False); mm(tt, False, Mr, Mi)
    if OPT['wat'] == 2: wload()
    stamp(a, 11)
    w_regs()
    stamp(a, 12)
    for tt in range(4):
        for r in range(4):
            a('v_lshlrev_b32', v(Wv+8*tt+r), 16, v(Wv+8*tt+4+r)); a('v_and_b32', v(Wv+8*tt+4+r), v(msk), v(Wv+8*tt+4+r))
        cm(tt, Wv+8*tt, Wv+8*tt+4, False, False, True); mm(tt, True, Mr, Mi)
    for tt in range(4): cm(tt, T2c, T2c+4, False, True, True); mm(tt, False, Fr, Fi)
    a('v_bfe_u32', v(t), 'v0', 3, 1); a('v_xor_b32', v(t), 1, v(t))
    for tt in range(4):
        for r in range(4):
            a('v_cvt_pk_bf16_f32', v(Z+4*tt+r), v(AC+8*tt+4+r), v(AC+8*tt+r)); a('v_and_or_b32', v(Z+4*tt+r), v(Z+4*tt+r), -2, v(t))
            a('ds_write_b32', v(lr2 if tt & 2 else lr), v(Z+4*tt+r), mods=f'offset:{1024*r + 8*(tt & 1)}')
    stamp(a, 10)
    a('s_add_u32', 's8', 's61', 8)
    subbar_s(a, 's8', 4, t, u)
    for it in range(4): a('ds_read_b128', v(AC+4*it, 4), v(lw), mods=f'offset:{4096*it}')
    for it in range(4): a('global_store_dwordx4', v(go), v(AC+4*it, 4), s(44+2*it, 2), mods=SC)
    a('s_setprio', 0)
    stamp(a, 13)
    if OPT['stop'] == 2: a('s_branch', 'Lfin'); return
    if OPT['dl'] == 0:
        ll = newlabel('La2'); a('s_and_b32', 's8', 's3', 14); a('s_cmp_lg_u32', 's8', 2); a('s_cbranch_scc1', ll)
        a('s_and_b32', 's99', 's3', 1); a('s_lshl_b32', 's99', 's99', 2); a('s_or_b32', 's99', 's99', 18); a('s_mov_b32', 's62', 0)
        arrive(a, C_A2+4+3, t, u)
        await_cnt(a, C_U+1, 4, t, u)
        a('s_branch', 'LB2p')
        a.label(ll)
    lh8 = newlabel('La2'); a('s_cmp_ge_u32', 's3', 8); a('s_cbranch_scc1', lh8)
    arrive(a, C_A2+4+3, t, u)
    a('s_branch', 'LA3')
    a.label(lh8)
    lt4 = newlabel('La2'); a('s_cmp_ge_u32', 's7', ND); a('s_cbranch_scc1', lt4)
    a('s_setprio', 3); a('s_mov_b32', 's52', L_T3); a3_tables(a)
    a.label(lt4)
    arrive(a, C_A2+3, t, u, vm=True)
    a('s_branch', 'Lfin')

def B1(a):
    import fin16
    fin16.L_VI, fin16.L_KI, fin16.WS_U, fin16.C_B1 = L_VI, L_KI, WS_U, C_B1
    fin16.B1(a)
def B3(a):
    import fin16
    fin16.L_VI, fin16.L_KI, fin16.WS_U, fin16.C_HZ, fin16.C_QL, fin16.C_Q, fin16.LS = L_VI, L_KI, WS_U, C_HZ, C_QL, C_Q, LS
    fin16.B3(a)

def auxO(a):
    a.label('LauxO')
    R = RegAlloc(1, 120); t = R.alloc(); u = R.alloc(); vo = R.alloc(); vh = R.alloc(); vh2 = R.alloc(); wa = R.alloc(); wh = R.alloc()
    T = R.alloc(12); D = R.alloc(54)
    a('s_sub_u32', 's62', 's3', 10); a('s_lshl_b32', 's62', 's62', 11)
    a('v_lshlrev_b32', v(t), 4, 'v0'); a('v_add_u32', v(vo), 's62', v(t)); a('v_subrev_u32', v(vh), 128, v(t)); a('v_subrev_u32', v(vh2), 112, v(t))
    a('v_add_u32', v(wh), L_CH, v(t)); a('v_add_u32', v(wa), 's62', v(wh))
    for k in range(4): a('v_mov_b32', v(T+k), 0)
    for lc in range(3): u_pad(a, lc, T, t)
    if OPT['hgate']: wait_lds(a, C_B1, OPT['hgate'], t, u)
    for lc in range(3):
        h_srd(a, lc)
        for b in range(2):
            a('buffer_load_dwordx4', v(D+18*lc+6*b, 4), v(vo), 's[44:47]', 0, mods=f'offen offset:{1024*b}')
            a('buffer_load_dwordx2', v(D+18*lc+6*b+4, 2), v(vo), 's[44:47]', 0, mods=f'offen offset:{1024*b+16}')
        h_load(a, D+18*lc+12, vh, vh2, 0)
    if OPT['wpf'] == 3:
        keep = list(a.vm); wpf3(a, None); a.vm = keep + [set()]
    for lc in range(3):
        for b in range(2): h_expand(a, D+18*lc+6*b, T, wa, 128 + 1024*b)
        a('s_mov_b64', 'exec', 0xff)
        h_expand(a, D+18*lc+12, T, wh, 0)
        a('s_mov_b64', 'exec', -1)
        if lc < 2: a('v_add_u32', v(wa), CHS, v(wa)); a('v_add_u32', v(wh), CHS, v(wh))
    a('v_mov_b32', v(t), L_CNT + 4*C_H); a('v_mov_b32', v(u), 2); a.wait(lgkm=0); lds_cnt_add(a, t, u)
    stamp(a, 6)
    a('s_branch', 'LB2')

def B2(a):
    a.label('LB2')
    R = RegAlloc(1, 130)
    t = R.alloc(); u = R.alloc(); lw = R.alloc(); U = R.alloc(8); go = R.alloc(); fa = R.alloc(); msk = R.alloc()
    n = R.alloc(); q = R.alloc(); aa = R.alloc(); ba = R.alloc(); ba2 = R.alloc(); ia = R.alloc(); ra = R.alloc()
    fi = R.alloc(); sa = R.alloc(); sa2 = R.alloc(); sr = R.alloc(); zo = R.alloc(); ca = R.alloc()
    ACC = R.alloc(16); NW = 6; RA = R.alloc(4*NW + 2); RA2 = R.alloc(4*NW + 2); NBR = 6; RB = R.alloc(4*NBR)
    a.wait(lgkm=0)
    a('s_lshr_b32', 's9', 's3', 2); a('s_and_b32', 's10', 's3', 3)
    a('s_mul_i32', 's15', 's9', CHS); a('s_add_u32', 's15', 's15', L_CH + O_U)
    a('v_lshrrev_b32', v(t), 3, 'v0'); a('v_lshlrev_b32', v(t), 4, v(t)); a('v_lshl_add_u32', v(lw), 'v0', 4, v(t))
    a('s_mul_i32', 's8', 's10', 8*144); a('s_add_u32', 's8', 's8', 's15'); a('v_add_u32', v(lw), 's8', v(lw))
    a('s_add_u32', 's13', 's53', 's9')
    a('s_lshl_b32', 's8', 's13', 12); a('s_lshl_b32', 's12', 's10', 10); a('s_add_u32', 's8', 's8', 's12'); a('s_add_u32', 's8', 's8', WS_U)
    a('v_lshl_add_u32', v(go), 'v0', 4, 's8')
    a('s_lshl_b32', 's60', 's9', 2); a('s_add_u32', 's60', 's60', L_CNT + 4*C_U)
    a('s_sub_u32', 's11', 's10', 's9'); a('s_and_b32', 's11', 's11', 3); a('s_lshl2_add_u32', 's99', 's9', 's11'); a('s_or_b32', 's99', 's99', 16)
    a('s_cmp_lt_u32', 's7', ND); a('s_cselect_b32', 's63', 1, 0); a('s_cmp_eq_u32', 's5', 0); a('s_cselect_b32', 's63', 's63', 0)
    lj_ = newlabel('Lb2'); a('s_cmp_eq_u32', 's63', 0); a('s_cbranch_scc1', lj_)
    J = lambda l: sum((16 | lc << 2 | ro) << (5*i) for i, (lc, ro) in enumerate(l))
    lists = [[J([(0, 0)]), J([(1, 0)]), J([(0, 3), (1, 3)]), J([(0, 1), (1, 1)])],
             [J([(0, 2), (0, 0)]), J([(1, 2), (1, 0)]), J([(0, 3), (0, 1)]), J([(1, 3), (1, 1)])],
             [J([(0, 0)]), J([(1, 0)]), J([(0, 3), (1, 3), (0, 2)]), J([(0, 1), (1, 1), (1, 2)])]][OPT['dl']]
    a('s_mov_b32', 's56', lists[0] | lists[1] << 16); a('s_mov_b32', 's57', lists[2] | lists[3] << 16)
    a('s_lshl_b32', 's8', 's10', 4); a('s_lshr_b64', 's[56:57]', 's[56:57]', 's8'); a('s_and_b32', 's99', 's56', 0x7fff)
    a.label(lj_)
    a('s_mov_b32', 's62', 1)
    a.label('LB2p')
    a('s_bfe_u32', 's9', 's99', (2 << 16) | 2); a('s_and_b32', 's11', 's99', 3)
    a('s_add_u32', 's13', 's53', 's9')
    a('s_mul_i32', 's15', 's9', CHS); a('s_add_u32', 's15', 's15', L_CH + O_U)
    a('v_and_b32', v(n), 15, 'v0'); a('v_lshrrev_b32', v(q), 4, 'v0')
    a('v_mov_b32', v(msk), 0xffff0000)
    a('v_and_b32', v(t), 1, 'v0'); a('v_mul_u32_u24', v(aa), 529*16, v(t))
    a('v_bfe_u32', v(t), 'v0', 1, 1); a('v_mul_u32_u24', v(t), 264*16, v(t)); a('v_add_u32', v(aa), v(aa), v(t))
    a('v_bfe_u32', v(t), 'v0', 2, 2); a('v_lshl_add_u32', v(aa), v(t), 5, v(aa))
    a('s_cmp_eq_u32', 's11', 0); a('s_cselect_b32', 's12', 1, 0)
    a('s_add_u32', 's14', 's12', 8); a('v_lshl_add_u32', v(aa), v(q), 's14', v(aa))
    a('s_cmp_eq_u32', 's11', 1); a('s_cselect_b32', 's14', 2048, 0)
    a('s_cmp_eq_u32', 's11', 3); a('s_cselect_b32', 's14', 1040, 's14')
    a('s_add_u32', 's8', 's15', 's14'); a('s_sub_u32', 's8', 's8', O_U)
    a('v_add_u32', v(aa), 's8', v(aa))
    a('s_add_u32', 's14', 's12', 1); a('v_lshlrev_b32', v(t), 's14', v(q)); a('v_sub_u32', v(t), v(t), v(n))
    a('s_lshl_b32', 's14', 's12', 4); a('s_sub_u32', 's14', 31, 's14'); a('v_add_u32', v(t), 's14', v(t))
    a('v_mul_u32_u24', v(ba), 144, v(t)); a('v_add_u32', v(ba), 's15', v(ba))
    a('s_cmp_eq_u32', 's11', 2); a('s_cselect_b32', 's14', 31, 15)
    a('v_sub_u32', v(t), 's14', v(n)); a('v_mul_u32_u24', v(ia), 144, v(t)); a('v_add_u32', v(ia), 's15', v(ia))
    a('v_lshlrev_b32', v(t), 5, v(q)); a('v_sub_u32', v(ia), v(ia), v(t))
    a('s_add_u32', 's59', 's15', O_RED - O_U); a('v_lshl_add_u32', v(ra), 'v0', 4, 's59')
    lnh = newlabel('Lb2'); a('s_cmp_lg_u32', 's11', 3); a('s_cbranch_scc1', lnh)
    a('v_and_b32', v(t), 7, 'v0'); a('v_lshlrev_b32', v(u), 1, v(q)); a('v_sub_u32', v(u), v(u), v(t)); a('v_add_u32', v(u), 31, v(u))
    a('v_mul_u32_u24', v(ba), 144, v(u)); a('v_add_u32', v(ba), 's15', v(ba))
    a('v_and_b32', v(u), 8, 'v0'); a('v_xor_b32', v(u), 8, v(u)); a('v_lshl_add_u32', v(ba), v(u), 1, v(ba)); a('v_lshl_add_u32', v(ba2), v(u), 1, v(ba))
    a('v_lshl_add_u32', v(t), v(q), 3, v(t)); a('v_lshlrev_b32', v(t), 4, v(t)); a('v_and_b32', v(u), 8, 'v0'); a('v_lshl_add_u32', v(t), v(u), 7, v(t))
    a('v_add_u32', v(ra), 's59', v(t))
    a.label(lnh)
    a('s_lshl_b32', 's8', 's13', 1); a('s_sub_u32', 's8', 's8', 's96'); a('s_lshl_b32', 's8', 's8', 3)
    a('s_lshr_b64', 's[56:57]', 's[54:55]', 's8'); a('s_lshl_b32', 's58', 's56', 16)
    a('s_cmp_gt_u32', 's3', 5); a('s_cselect_b32', 's98', 2, 1); a('s_sub_u32', 's98', 's3', 's98'); a('s_min_u32', 's98', 's98', 8)
    a('s_cmp_lg_u32', 's12', 0); a('s_cselect_b32', 's98', 8, 's98')
    for x in range(16): a('v_mov_b32', v(ACC+x), 0)
    a('s_lshl_b32', 's14', 's9', 3); a('s_add_u32', 's14', 's14', L_CNT + 4*C_RED); a('v_mov_b32', v(ca), 's14')
    a('v_and_b32', v(u), 7, 'v0'); a('v_lshl_add_u32', v(u), v(q), 3, v(u)); a('s_lshl_b32', 's8', 's12', 11); a('s_add_u32', 's8', 's8', 's59'); a('s_add_u32', 's8', 's8', 4096)
    a('v_lshl_add_u32', v(fi), v(u), 4, 's8')
    a('v_sub_u32', v(t), 15, v(n)); a('v_lshlrev_b32', v(u), 1, v(q)); a('v_sub_u32', v(u), 6, v(u))
    a('v_xor_b32', v(u), v(t), v(u)); a('v_and_b32', v(u), 7, v(u)); a('v_lshlrev_b32', v(u), 4, v(u))
    a('v_lshl_add_u32', v(sa), v(t), 7, v(u)); a('v_add_u32', v(sa), 's8', v(sa)); a('v_xor_b32', v(sa2), 16, v(sa))
    a('v_lshrrev_b32', v(t), 3, 'v0'); a('v_xor_b32', v(u), v(t), 'v0'); a('v_and_b32', v(u), 7, v(u)); a('v_lshlrev_b32', v(u), 4, v(u))
    a('v_lshl_add_u32', v(sr), v(t), 7, v(u)); a('v_add_u32', v(sr), 's8', v(sr))
    a('s_lshl_b32', 's8', 's13', 12); a('s_lshl_b32', 's14', 's12', 11); a('s_sub_u32', 's8', 's8', 's14'); a('s_add_u32', 's8', 's8', WS_U + 2048)
    a('v_lshl_add_u32', v(zo), 'v0', 4, 's8')
    a('s_cmp_eq_u32', 's62', 0); a('s_cbranch_scc1', 'LB2go')
    stamp(a, 7)
    lo2 = newlabel('Lb2'); lo3 = newlabel('Lb2')
    a('s_cmp_lg_u32', 's5', 0); a('s_cbranch_scc1', lo3)
    wait_lds(a, OPT['eg'][0], OPT['eg'][1], t, u)
    a('s_branch', lo2)
    a.label(lo3)
    lx = newlabel('Lb2'); a('s_cmp_ge_u32', 's3', 10); a('s_cbranch_scc1', lx)
    arrive(a, C_B1D, t, u, vm=True)
    stamp(a, 6)
    a.label(lx)
    wait_lds(a, C_B1D, 10, t, u)
    a.label(lo2)
    stamp(a, 2)
    a('s_lshl_b32', 's8', 's63', 12); a('v_subrev_u32', v(fa), 's8', v(go))
    def ul():
        a('global_load_dwordx4', v(U, 4), v(go), WS_, mods=SC); a('global_load_dwordx4', v(U+4, 4), v(fa), WS_, mods=SC)
    poll_tags(a, ul, [U, U+4], t, 1, XS[0])
    sk2 = newlabel('Lb2'); a('s_cmp_eq_u32', 's63', 0); a('s_cbranch_scc1', sk2)
    a('v_subrev_u32', v(t), CHS, v(lw))
    a('ds_write_b128', v(t), v(U+4, 4))
    a.label(sk2)
    a('ds_write_b128', v(lw), v(U, 4))
    await_cnt(a, C_H, 4, t, u)
    stamp(a, 8)
    subbar_s(a, 's60', 4, t, u)
    a.label('LB2go')
    PD = 3
    def rdA(ring, w, off, last):
        if w > last: return
        a('ds_read_b128', v(ring + 4*(w % NW), 4), v(aa), mods=f'offset:{off + 16*w}')
        if w and w % NW == 0: a('ds_read_b64', v(ring+4*NW, 2), v(aa), mods=f'offset:{off + 16*w}')
    def rdB(tau, last, hi=False):
        if tau > last: return
        a('ds_read_b128', v(RB + 4*(tau % NBR), 4), v(ba2 if (hi and tau % 8 == 7) else ba), mods=f'offset:{144*(tau >> 3) + 16*(tau & 7)}')
    a('s_cmp_eq_u32', 's11', 3); a('s_cbranch_scc1', 'LB2hi')
    rdB(0, 32); rdA(RA, 1, 0, 33)
    for k in range(PD): rdB(k+1, 32); rdA(RA, k+2, 0, 33)
    lp_ = newlabel('Lb2'); a('s_cmp_eq_u32', 's11', 0); a('s_cbranch_scc1', lp_)
    a('s_setprio', 1)
    a('ds_read_b128', v(U, 4), v(ia), mods='offset:96'); a('ds_read_b128', v(U+4, 4), v(ia), mods='offset:112')
    for x in range(16):
        e = 15 - x
        if e & 1: a('v_and_b32', v(ACC+x), v(msk), v(U + (e >> 1)))
        else: a('v_lshlrev_b32', v(ACC+x), 16, v(U + (e >> 1)))
        a('v_mul_f32', v(ACC+x), 's58', v(ACC+x))
    pend = a.snap[lp_][0]
    a.label(lp_)
    a.lg = list(pend[1])
    stamp(a, 9)
    for tau in range(32):
        if tau == 16:
            a.raw('    s_cmp_eq_u32 s12, 0'); a.raw('    s_cbranch_scc1 LB2r'); a.bytes += 8
            a.snap.setdefault('LB2r', []).append((list(a.vm), list(a.lg)))
        d0 = (4*(tau+1)) % (4*NW)
        for k, (acc, dd, bt) in enumerate(((2, d0, tau), (3, d0+2, tau), (0, d0, tau+1), (1, d0+2, tau+1))):
            a(MF, v(ACC+4*acc, 4), v(RA+dd, 4), v(RB + 4*(bt % NBR), 4), v(ACC+4*acc, 4))
            if k == 1: rdB(tau + PD + 1, 32)
            if k == 3: rdA(RA, tau + PD + 2, 0, 33)
    a.label('LB2r'); a._nop(8)
    stamp(a, 10)
    lf = newlabel('Lb2')
    a('v_mov_b32', v(u), 1)
    a('s_cmp_lg_u32', 's11', 1); a('s_cbranch_scc1', lf)
    for tt in range(4): a('ds_write_b128', v(ra), v(ACC+4*tt, 4), mods=f'offset:{1024*tt}')
    a.wait(lgkm=0); lds_cnt_add(a, ca, u)
    a('s_branch', 'LB2end')
    a.label('LB2hi')
    a('s_setprio', 1)
    rdA(RA, 0, 0, 16); rdA(RA2, 0, 2048, 16)
    for k in range(PD): rdB(k, 15, True); rdA(RA, k+1, 0, 16); rdA(RA2, k+1, 2048, 16)
    stamp(a, 9)
    for tau in range(16):
        d0 = (4*tau) % (4*NW)
        for k, (acc, ring, dd) in enumerate(((0, RA, d0), (1, RA, d0+2), (2, RA2, d0), (3, RA2, d0+2))):
            a(MF, v(ACC+4*acc, 4), v(ring+dd, 4), v(RB + 4*(tau % NBR), 4), v(ACC+4*acc, 4))
            if k == 0: rdB(tau + PD, 15, True)
            if k == 1: rdA(RA, tau + PD + 1, 0, 16)
            if k == 3: rdA(RA2, tau + PD + 1, 2048, 16)
    stamp(a, 10)
    a('v_mov_b32', v(u), 1)
    for acc in range(4): a('ds_write_b128', v(ra), v(ACC+4*acc, 4), mods=f'offset:{4096 + 2048*(acc >> 1) + 512*(acc & 1)}')
    a.wait(lgkm=0)
    a('s_mov_b64', 'exec', 1); a('ds_add_u32', v(ca), v(u)); a('ds_add_u32', v(ca), v(u), mods='offset:4'); a('s_mov_b64', 'exec', -1)
    a('s_branch', 'LB2end')
    a.label(lf)
    a('s_lshl_b32', 's8', 's11', 1); a('v_add_u32', v(t), 's8', v(ca)); a('s_add_u32', 's14', 's12', 1)
    lp = newlabel('Lb2'); a.label(lp)
    a('ds_read_b32', v(u), v(t)); a('v_readfirstlane_b32', 's40', v(u)); a('s_cmp_lt_u32', 's40', 's14'); a('s_cbranch_scc1', lp)
    for tt in range(4): a('ds_read_b128', v(RA+4*tt, 4), v(fi), mods=f'offset:{512*tt}')
    ls = newlabel('Lb2'); a('s_cmp_eq_u32', 's12', 0); a('s_cbranch_scc1', ls)
    for tt in range(4): a('ds_read_b128', v(RB+4*tt, 4), v(ra), mods=f'offset:{1024*tt}')
    for x in range(16): a('v_add_f32', v(ACC+x), v(ACC+x), v(RB+x))
    a.label(ls)
    a('s_mov_b32', 'exec_lo', 0xff00ff00); a('s_mov_b32', 'exec_hi', 0xff00ff00)
    for x in range(16): a('v_add_f32', v(ACC+x), v(ACC+x), v(RA+x))
    a('s_mov_b64', 'exec', -1)
    for jj in range(8):
        a('v_cvt_pk_bf16_f32', v(U+jj), v(ACC+15-2*jj), v(ACC+14-2*jj)); tag2(a, U+jj, jj)
        if jj == 3: a('ds_write_b128', v(sa), v(U, 4))
    a('ds_write_b128', v(sa2), v(U+4, 4))
    a('ds_read_b128', v(RB, 4), v(sr)); a('ds_read_b128', v(RB+4, 4), v(sr), mods='offset:1024')
    a('global_store_dwordx4', v(zo), v(RB, 4), WS_, mods=SC)
    a('global_store_dwordx4', v(zo), v(RB+4, 4), WS_, mods=f'offset:1024 {SC}')
    a('s_cmp_eq_u32', 's5', 0); a('s_cbranch_scc1', 'LB2end')
    arrive(a, C_HZ, t, u, vm=True)
    a.label('LB2end')
    a('s_setprio', 0)
    a('s_mov_b32', 's62', 0); a.wait(lgkm=0)
    a('s_lshr_b32', 's99', 's99', 5); a('s_cbranch_scc1', 'LB2p')
    a('s_cmp_eq_u32', 's5', 0); a('s_cbranch_scc1', 'LA3' if OPT['stop'] == 0 else 'Lfin')
    a('s_cmp_eq_u32', 's98', 8); a('s_cbranch_scc1', 'LB3')
    srd(a, 44, 's22', 's23', 2048*1280)
    a('v_mul_u32_u24', v(t), 26, 'v0'); a('v_lshrrev_b32', v(t), 8, v(t)); a('v_mul_u32_u24', v(u), 1280 - 160, v(t)); a('v_lshl_add_u32', v(u), 'v0', 4, v(u))
    a('s_lshl_b32', 's8', 's6', 3); a('s_add_u32', 's8', 's8', 's98'); a('s_mul_i32', 's8', 's8', 16*1280); a('s_mul_i32', 's14', 's4', 160); a('s_add_u32', 's8', 's8', 's14')
    a('s_mul_i32', 's14', 's98', 2*1296); a('s_mov_b32', 'exec_hi', 0xff)
    for k in range(4):
        a('s_add_u32', 'm0', 's14', L_VI + (k >> 1)*1296 + (k & 1)*640)
        a('buffer_load_dwordx4', v(u), 's[44:47]', 's8', mods='offen lds')
        if k < 3: a('s_addk_i32', 's8', 4*1280)
    a('s_mov_b64', 'exec', -1)
    arrive(a, C_QL, t, u, vm=True)
    a('s_branch', 'LB3')

def build(stamps=False):
    STAMPS[0] = stamps
    roles.WS_ST = 0xD00000
    for it in range(4):
        roles._lbl[0] = 0
        a = Asm(); a.ignore = {('v', k) for k in (159, 162, 163, 164, 165, 166, 167)}
        a.raw(f"; @launch grid=(256,1,1) block=(768,1,1) lds={LDS_TOTAL}")
        a.raw('.amdgcn_target "amdgcn-amd-amdhsa--gfx950"\n.text')
        entry(a)
        A1(a); auxE(a); A2(a, lambda: h_even(a, 1)); B1(a); auxO(a); B2(a)
        A3(a); a('s_branch', 'Lfin')
        B3(a)
        a.label('Lfin'); stamp_flush(a, 0); a('s_endpgm')
        a.raw('.p2align 10')
        if OPT['stop']: a.raw('.fill 4096, 4, 0xbf800000')
        a.raw(kernel_desc(KNAME, 168, 102))
        hi = max(0, (a.bytes + 1023)//1024*1024 - 12288)
        if hi == CODE_HI[0]: break
        CODE_HI[0] = hi
    print('est bytes', a.bytes, 'instrs', a.nins, 'maxv', a.maxv)
    return a.text()

if __name__ == '__main__':
    open('m16.s', 'w').write(build(False))
    open('m16st.s', 'w').write(build(True))
```
